```python
import torch

def _softmax(x, axis=-1):
    return torch.softmax(x, dim=axis)

def _gelu(x):
    return torch.nn.functional.gelu(x, approximate='tanh')

def _silu(x):
    return torch.nn.functional.silu(x)

def _sigmoid(x):
    return torch.sigmoid(x)

def _layernorm(x, axis=-1, eps=1e-05):
    m = x.mean(dim=axis, keepdim=True)
    v = x.var(dim=axis, keepdim=True, unbiased=False)
    return (x - m) / torch.sqrt(v + eps)

def _scatter_add(tgt, idx, src, axis=0):
    return tgt.clone().index_add_(axis, idx, src)

def _segment_sum(src, seg, n):
    out = torch.zeros((n,) + src.shape[1:], dtype=src.dtype)
    return out.index_add_(0, seg, src)

def _pad(x, pw):
    flat = tuple((v for pair in reversed(pw) for v in pair))
    return torch.nn.functional.pad(x, flat)
kernel_name = 'gated_mix__memory_aug_recurrent_mem_tr__swiglu_ffn__prompt'

def setup_inputs():

    _w = lambda a: (lambda t: t.to(torch.bfloat16) if t.is_floating_point() else t)(torch.as_tensor(a))

    def _A_setup():
        B, S, Dm = (1, 2048, 448)
        H, Dh = (16, 256)
        M, seg = (8, 32)
        seg = min(seg, S)
        S = S // seg * seg
        return {'x': _w((lambda *s: torch.randn(*s, dtype=torch.bfloat16) * 0.05)(B, S, Dm)), 'mem0': _w((lambda *s: torch.randn(*s, dtype=torch.bfloat16) * 0.4)(B, M, Dm)), 'Wq': _w((lambda *s: torch.randn(*s, dtype=torch.bfloat16) * 6.4)(Dm, H, Dh) * Dm ** (-0.5)), 'Wk': _w((lambda *s: torch.randn(*s, dtype=torch.bfloat16) * 6.4)(Dm, H, Dh) * Dm ** (-0.5)), 'Wv': _w((lambda *s: torch.randn(*s, dtype=torch.bfloat16) * 0.4)(Dm, H, Dh) * Dm ** (-0.5)), 'Wo': _w((lambda *s: torch.randn(*s, dtype=torch.bfloat16) * 0.4)(H, Dh, Dm) * (H * Dh) ** (-0.5)), 'seg_len': seg}
    _A_in = _A_setup()

    def _B_setup():
        B, S, D, F = (1, 2048, 448, 1792)
        return {'x': _w((lambda *s: torch.randn(*s, dtype=torch.bfloat16) * 0.05)(B, S, D)), 'w_gate': _w((lambda *s: torch.randn(*s, dtype=torch.bfloat16) * 0.05)(D, F)), 'w_up': _w((lambda *s: torch.randn(*s, dtype=torch.bfloat16) * 0.05)(D, F)), 'w_down': _w((lambda *s: torch.randn(*s, dtype=torch.bfloat16) * 0.05)(F, D))}
    _B_in = _B_setup()
    return {'A_x': _A_in['x'], 'A_mem0': _A_in['mem0'], 'A_Wq': _A_in['Wq'], 'A_Wk': _A_in['Wk'], 'A_Wv': _A_in['Wv'], 'A_Wo': _A_in['Wo'], 'A_seg_len': _A_in['seg_len'], 'B_x': _B_in['x'], 'B_w_gate': _B_in['w_gate'], 'B_w_up': _B_in['w_up'], 'B_w_down': _B_in['w_down'], 'gate_w': _w((lambda *s: torch.randn(*s, dtype=torch.bfloat16) * 0.05)(448) * 16.0)}

def reference(A_x, A_mem0, A_Wq, A_Wk, A_Wv, A_Wo, A_seg_len, B_x, B_w_gate, B_w_up, B_w_down, gate_w):

    def _A_ref(x, mem0, Wq, Wk, Wv, Wo, seg_len):
        B, S, Dm = x.shape
        H, Dh = (Wq.shape[1], Wq.shape[2])
        M = mem0.shape[1]
        scale = Dh ** (-0.5)
        n_seg = S // seg_len
        L = M + seg_len
        idx = torch.arange(L)
        mask = (idx[:, None] < M) | (idx[:, None] >= idx[None, :])
        mem = mem0
        outs = []
        for s in range(n_seg):
            xs = x[:, s * seg_len:(s + 1) * seg_len, :].clone()
            h = torch.concatenate([mem, xs], axis=1)
            q = torch.einsum('btd,dhe->bhte', h, Wq)
            k = torch.einsum('btd,dhe->bhte', h, Wk)
            v = torch.einsum('btd,dhe->bhte', h, Wv)
            scores = torch.einsum('bhqe,bhke->bhqk', q, k) * scale
            scores = torch.where(mask[None, None], scores, -1000000000.0)
            p = _softmax(scores, axis=-1)
            o = torch.einsum('bhqk,bhke->bhqe', p, v)
            o = torch.einsum('bhte,hed->btd', o, Wo)
            mem = o[:, :M, :].clone()
            outs.append(o[:, M:, :])
        return torch.concatenate(outs, axis=1)

    def _B_ref(x, w_gate, w_up, w_down):
        g = _silu(x @ w_gate)
        u = x @ w_up
        return g * u @ w_down
    x = A_x
    g = _sigmoid((x * gate_w).sum(-1, keepdims=True))
    a = _A_ref(x, A_mem0, A_Wq, A_Wk, A_Wv, A_Wo, A_seg_len)
    b = _B_ref(x, B_w_gate, B_w_up, B_w_down)
    return g * a + (1 - g) * b
```

```python
NAME = 'gated_mix__memory_aug_recurrent_mem_tr__swiglu_ffn__prompt'
DM, H, S, SEG, M, F, NSEG = 448, 16, 2048, 32, 8, 1792, 64
WS_BYTES = 0x10000000
WF_A = 0x0000000
WF_C = 0x0620000
XF = 0x0C40000
XSEG = 28672
GG = 0x0E10000
U0 = 0x0E20000
UNIT = 7168
MEMX = U0
PR = U0 + 4 * UNIT
PSLOT = 10240
VX = U0 + 10 * UNIT
VSLOT = 114688
MEME = U0 + 74 * UNIT
CNT = U0 + 138 * UNIT
NUNITS = 139
VE = 0x1000000
H1 = 0x1700000
PX = 0x1E00000
PXSEG = 40960
DD = 0x2100000
DSEG = 458752
DPROG = CNT + 0
HPROG = CNT + 256
XPROG = CNT + 512
VPROG = CNT + 1024
KA = dict(x=0, mem0=8, Wq=16, Wk=24, Wv=32, Wo=40, seg=48, bx=56, wg=64, wu=72, wd=80, gw=88, out=96, dbg=104, ws=112)
WBYTES = 448 * 8192
FBYTES = 448 * 1792 * 2
XBYTES = 2048 * 896
LOG2E = 1.4426950408889634

import struct
def fbits(x): return struct.unpack('<I', struct.pack('<f', x))[0]

class Asm:
    def __init__(self): self.l = []; self.uid = 0
    def __call__(self, s, *a):
        if a: s = s % a
        for line in s.split('\n'): self.l.append('    ' + line.strip())
    def label(self, s): self.l.append(s + ':')
    def c(self, s): self.l.append('    ; ' + s)
    def new(self, p='L'):
        self.uid += 1
        return '%s_%d' % (p, self.uid)
    def text(self): return '\n'.join(self.l) + '\n'
    def srd(self, d, b, size):
        self('s_mov_b32 s%d, s%d', d, b)
        self('s_mov_b32 s%d, s%d', d + 1, b + 1)
        self('s_mov_b32 s%d, 0x%x', d + 2, size)
        self('s_mov_b32 s%d, 0x20000', d + 3)

def V(b, n=1): return 'v%d' % b if n == 1 else 'v[%d:%d]' % (b, b + n - 1)
def A(b, n=1): return 'a%d' % b if n == 1 else 'a[%d:%d]' % (b, b + n - 1)
def SR(b, n=1): return 's%d' % b if n == 1 else 's[%d:%d]' % (b, b + n - 1)
```

```python
from common import *

PREP_LDS = 65536
def gen_prep(a, name):
    assert all((t * 4682) >> 16 == t // 14 for t in range(448))
    assert all((t * 1171) >> 16 == t // 56 for t in range(448))
    GOFF = 61440
    a.label(name)
    a('s_cmp_ge_u32 s2, 256')
    a('s_cbranch_scc0 %s_go', name)
    a('s_endpgm')
    a.label(name + '_go')
    a('s_load_dwordx4 s[36:39], s[0:1], 0')
    a('s_load_dwordx4 s[40:43], s[0:1], 16')
    a('s_load_dwordx4 s[44:47], s[0:1], 32')
    a('s_load_dwordx2 s[48:49], s[0:1], %d', KA['gw'])
    a('s_load_dwordx2 s[50:51], s[0:1], %d', KA['ws'])
    a('s_and_b32 s4, s2, 15')
    a('s_bfe_u32 s5, s2, 0x10004')
    a('s_bfe_u32 s6, s2, 0x20005')
    a('s_lshr_b32 s7, s2, 7')
    a('v_lshrrev_b32 v1, 6, v0')
    a('v_and_b32 v2, 63, v0')
    a('v_readfirstlane_b32 s3, v1')
    a('v_and_b32 v3, 15, v0')
    a('v_bfe_u32 v4, v0, 4, 2')
    a('s_mul_i32 s28, s7, 7')
    a('s_add_u32 s28, s28, s3')
    a('s_waitcnt lgkmcnt(0)')
    a.srd(8, 50, WS_BYTES)
    a('s_cmp_eq_u32 s5, 0')
    a('s_cselect_b32 s12, s40, s44')
    a('s_cselect_b32 s13, s41, s45')
    a('s_mov_b32 s14, 0x%x', WBYTES); a('s_mov_b32 s15, 0x20000')
    a('s_cselect_b32 s16, s42, s46')
    a('s_cselect_b32 s17, s43, s47')
    a('s_mov_b32 s18, 0x%x', WBYTES); a('s_mov_b32 s19, 0x20000')
    a.srd(20, 36, XBYTES)
    a.srd(24, 48, 896)
    a.srd(32, 38, 7168)
    a('s_lshl_b32 s29, s4, 9')
    BST = 16
    AF = 48
    ACC = 112
    BF = 168
    XR = 184
    FILL = 192
    a('s_cmp_eq_u32 s5, 0')
    a('s_cbranch_scc0 %s_ldC', name)
    a('s_mul_i32 s30, s6, 112')
    a('s_lshl_b32 s31, s3, 4')
    a('s_add_u32 s30, s30, s31')
    a('v_add_u32 v5, s30, v3')
    a('v_lshlrev_b32 v5, 13, v5')
    a('v_lshl_add_u32 v5, v4, 4, v5')
    for es in range(8):
        a('buffer_load_dwordx4 %s, v5, s[16:19], s29 offen offset:%d', V(BST + 4 * es, 4), es * 64)
    a('s_lshl_b32 s31, s3, 13')
    a('v_lshl_add_u32 v6, v2, 4, s31')
    a('v_lshlrev_b32 v7, 4, v2')
    a('s_branch %s_ldA', name)
    a.label(name + '_ldC')
    a('s_movk_i32 s30, 4682')
    a('v_mul_u32_u24 v8, s30, v0')
    a('v_lshrrev_b32 v8, 16, v8')
    a('v_mul_u32_u24 v9, 14, v8')
    a('v_sub_u32 v9, v0, v9')
    a('s_movk_i32 s30, 896')
    a('v_mul_u32_u24 v5, s30, v8')
    a('v_lshl_add_u32 v5, v9, 4, v5')
    a('s_mul_i32 s30, s4, 229376')
    a('s_mul_i32 s31, s6, 224')
    a('s_add_u32 s30, s30, s31')
    for i in range(8):
        a('buffer_load_dwordx4 %s, v5, s[16:19], s30 offen', V(BST + 4 * i, 4))
        if i < 7: a('s_add_u32 s30, s30, 28672')
    a('s_movk_i32 s31, 240')
    a('v_mul_u32_u24 v6, s31, v8')
    a('v_lshl_add_u32 v6, v9, 4, v6')
    a('v_lshrrev_b32 v7, 2, v3')
    a('v_lshl_add_u32 v7, v4, 3, v7')
    a('v_mul_u32_u24 v7, s31, v7')
    a('v_and_b32 v9, 3, v0')
    a('v_lshl_add_u32 v7, v9, 3, v7')
    a.label(name + '_ldA')
    a('v_lshrrev_b32 v8, 2, v3')
    a('v_lshlrev_b32 v8, 3, v8')
    a('v_and_b32 v9, 3, v0')
    a('s_lshl_b32 s30, s28, 5')
    a('v_add3_u32 v8, v8, v9, s30')
    a('v_lshlrev_b32 v8, 13, v8')
    a('v_lshl_add_u32 v8, v4, 4, v8')
    a('s_add_u32 s30, s29, 32768')
    for es in range(8):
        a('buffer_load_dwordx4 %s, v8, s[12:15], s29 offen offset:%d', V(AF + 4 * es, 4), es * 64)
        a('buffer_load_dwordx4 %s, v8, s[12:15], s30 offen offset:%d', V(AF + 32 + 4 * es, 4), es * 64)
    a('v_lshlrev_b32 v10, 4, v0')
    a('s_mul_i32 s30, s2, 7168')
    a('buffer_load_dwordx4 %s, v10, s[20:23], s30 offen', V(XR, 4))
    a('s_movk_i32 s31, 1171')
    a('v_mul_u32_u24 v11, s31, v0')
    a('v_lshrrev_b32 v11, 16, v11')
    a('v_mul_u32_u24 v12, 56, v11')
    a('v_sub_u32 v12, v0, v12')
    a('v_lshlrev_b32 v13, 4, v12')
    a('buffer_load_dwordx4 %s, v13, s[24:27], 0 offen', V(XR + 4, 4))
    for r in range(56): a('v_mov_b32 v%d, 0', ACC + r)
    a('s_add_u32 s30, s30, 0x%x', U0)
    a('s_cmp_ge_u32 s2, %d', NUNITS)
    a('s_cbranch_scc1 %s_nofill', name)
    a('s_cmp_eq_u32 s2, 0')
    a('s_cbranch_scc1 %s_fm0', name)
    a('s_cmp_eq_u32 s2, 74')
    a('s_cbranch_scc1 %s_fm0', name)
    a('s_cmp_eq_u32 s2, 138')
    a('s_cselect_b32 s31, 0, -1')
    for r in range(4): a('v_mov_b32 v%d, s31', FILL + r)
    a('s_branch %s_fst', name)
    a.label(name + '_fm0')
    a('v_bfe_u32 v14, v0, 2, 2')
    a('v_and_b32 v15, 1, v0')
    a('v_lshl_add_u32 v14, v14, 1, v15')
    a('s_movk_i32 s31, 896')
    a('v_mul_u32_u24 v14, s31, v14')
    a('v_lshl_add_u32 v14, v1, 7, v14')
    a('v_lshl_add_u32 v14, v4, 5, v14')
    a('v_bfe_u32 v15, v0, 1, 1')
    a('v_lshl_add_u32 v14, v15, 2, v14')
    for q in range(4): a('buffer_load_dword v%d, v14, s[32:35], 0 offen offset:%d', FILL + q, 8 * q)
    a('s_waitcnt vmcnt(0)')
    for r in range(4): a('v_min_u32 v%d, -2, v%d', FILL + r, FILL + r)
    a.label(name + '_fst')
    a('buffer_store_dwordx4 %s, v10, s[8:11], s30 offen', V(FILL, 4))
    a('s_waitcnt vmcnt(19)')
    a('s_branch %s_stg', name)
    a.label(name + '_nofill')
    a('s_waitcnt vmcnt(18)')
    a.label(name + '_stg')
    a('s_cmp_eq_u32 s5, 0')
    a('s_cbranch_scc0 %s_C', name)
    for mat in (0, 1):
        if mat: a.label(name + '_C')
        for i in range(8):
            a('ds_write_b128 v6, %s offset:%d', V(BST + 4 * i, 4), i * (7680 if mat else 1024))
        a('s_waitcnt lgkmcnt(0)')
        a('s_barrier')
        seq = [(es, t) for es in range(8) for t in range(7)]
        def rd(i):
            es, t = seq[i]
            b = BF + 4 * (i % 4)
            if mat == 0:
                a('ds_read_b128 %s, v7 offset:%d', V(b, 4), (t * 8 + es) * 1024)
            else:
                a('ds_read_b64_tr_b16 %s, v7 offset:%d', V(b, 2), es * 7680 + t * 32)
                a('ds_read_b64_tr_b16 %s, v7 offset:%d', V(b + 2, 2), es * 7680 + t * 32 + 960)
        per = 2 if mat else 1
        for i in range(3): rd(i)
        for i, (es, t) in enumerate(seq):
            if i + 3 < len(seq): rd(i + 3)
            ahead = min(3, len(seq) - 1 - i)
            if t == 0:
                a('s_waitcnt vmcnt(%d) lgkmcnt(%d)', 16 - 2 * (es + 1) + 2, ahead * per)
            else:
                a('s_waitcnt lgkmcnt(%d)', ahead * per)
            b = BF + 4 * (i % 4)
            for u in range(2):
                c = ACC + (t * 2 + u) * 4
                a('v_mfma_f32_16x16x32_bf16 %s, %s, %s, %s', V(c, 4), V(AF + 32 * u + 4 * es, 4), V(b, 4), V(c, 4))
        if mat == 0: a('s_branch %s_epi', name)
    a.label(name + '_epi')
    a('s_waitcnt vmcnt(0)')
    a('s_and_b32 s30, s2, 3')
    a('s_lshl_b32 s30, s30, 3')
    a('v_add_u32 v14, s30, v11')
    a('v_lshrrev_b32 v15, 4, v14')
    a('s_movk_i32 s31, 14336')
    a('v_mul_u32_u24 v15, s31, v15')
    a('v_and_b32 v14, 15, v14')
    a('v_lshl_add_u32 v15, v14, 4, v15')
    a('v_lshl_add_u32 v15, v12, 8, v15')
    a('s_lshr_b32 s30, s2, 2')
    a('s_mul_i32 s30, s30, %d', XSEG)
    a('s_add_u32 s30, s30, 0x%x', XF)
    a('buffer_store_dwordx4 %s, v15, s[8:11], s30 offen', V(XR, 4))
    a('v_mov_b32 v14, 0')
    for r in range(4):
        a('v_dot2_f32_bf16 v14, v%d, v%d, v14', XR + r, XR + 4 + r)
    a('v_lshlrev_b32 v15, 2, v0')
    a('s_nop 2')
    a('ds_write_b32 v15, v14 offset:%d', GOFF)
    a('s_cmp_eq_u32 s5, 0')
    a('s_cselect_b32 s31, 0x%x, 1.0', fbits(LOG2E / 16.0))
    a('s_mul_i32 s30, s5, 0x%x', WF_C - WF_A)
    a('s_mul_i32 s29, s4, 28')
    a('s_mul_i32 s52, s6, 7')
    a('s_add_u32 s29, s29, s52')
    a('s_mul_i32 s29, s29, 14')
    a('s_add_u32 s29, s29, s28')
    a('s_lshl_b32 s29, s29, 10')
    a('s_add_u32 s30, s30, s29')
    a('v_lshlrev_b32 v13, 4, v2')
    for t in range(7):
        c = ACC + t * 8
        for r in range(8): a('v_mul_f32 v%d, s31, v%d', c + r, c + r)
        o = BST + 4 * t
        for d in range(4): a('v_cvt_pk_bf16_f32 v%d, v%d, v%d', o + d, c + 2 * d, c + 2 * d + 1)
        a('buffer_store_dwordx4 %s, v13, s[8:11], s30 offen', V(o, 4))
        if t < 6: a('s_add_u32 s30, s30, 14336')
    a('s_waitcnt lgkmcnt(0)')
    a('s_barrier')
    a('s_cmp_eq_u32 s3, 0')
    a('s_cbranch_scc1 %s_gate', name)
    a('s_endpgm')
    a.label(name + '_gate')
    a('v_mul_u32_u24 v14, 28, v2')
    for i in range(7): a('ds_read_b32 v%d, v14 offset:%d', 48 + i, GOFF + 4 * i)
    a('s_waitcnt lgkmcnt(0)')
    for i in range(1, 7): a('v_add_f32 v48, v48, v%d', 48 + i)
    for ctl in ('quad_perm:[1,0,3,2]', 'quad_perm:[2,3,0,1]', 'row_half_mirror'):
        a('s_nop 1')
        a('v_add_f32_dpp v48, v48, v48 %s row_mask:0xf bank_mask:0xf', ctl)
    a('v_mul_f32 v48, 0x%x, v48', fbits(-LOG2E))
    a('v_exp_f32 v48, v48')
    a('s_nop 0')
    a('v_add_f32 v48, 1.0, v48')
    a('v_rcp_f32 v48, v48')
    a('v_lshrrev_b32 v14, 3, v2')
    a('v_lshlrev_b32 v14, 2, v14')
    a('s_lshl_b32 s30, s2, 5')
    a('s_add_u32 s30, s30, 0x%x', GG)
    a('buffer_store_dword v48, v14, s[8:11], s30 offen')
    a('s_endpgm')
```

```python
from common import *

L_MEM = 0
L_T = 7680
L_S = L_T + 8192
L_C = L_S + 12288
L_X = L_C + 2048
ZXS = 28672 + 512
L_D = 98304
L_END = L_D + 32768
assert L_X + 2 * ZXS <= L_D
SPIN = 200000

TACC, MF, SB, TA, SACC = 20, 48, 76, 100, 108
PF, VB, DB, CACC = 76, 60, 36, 20
OOB = 0x8000000

ORDER = [(0, 0), (0, 1), (1, 0), (1, 1)] + [(t, l) for l in (0, 1) for t in range(2, 7)] + [(t, l) for t in range(7) for l in range(2, 7)]
def W(t, lam, n=8, off=0):
    i = ORDER.index((t, lam))
    return A(8 * i + off, n) if i < 32 else V(120 + 8 * (i - 32) + off, n)

def gen_team(a, dev=False):
    dev = set(dev.split('+')) if dev else set()
    def stamp(k):
        if 'st%d' % k in dev or 'stall' in dev: a('s_memtime s[%d:%d]', 64 + 2 * k, 65 + 2 * k)
    def bits(dst, spec, first=True):
        for pos, w, sh in spec:
            a('v_bfe_u32 v3, v0, %d, %d', pos, w)
            if first: a('v_lshlrev_b32 v%d, %d, v3', dst, sh); first = False
            else: a('v_lshl_add_u32 v%d, v3, %d, v%d', dst, sh, dst)
    a.label('team')
    a('s_and_b32 s4, s30, 15')
    a('s_lshr_b32 s5, s30, 4')
    a('s_add_u32 s6, s4, 16')
    a('s_cmp_eq_u32 s5, 1')
    a('s_cselect_b32 s6, s4, s6')
    a('s_cmp_lt_u32 s6, 28')
    a('s_cselect_b32 s7, 1, 0')
    a('s_getreg_b32 s31, hwreg(HW_REG_XCC_ID)')
    a('s_and_b32 s31, s31, 15')
    a('s_add_u32 s31, s31, 1')
    a('v_mov_b32 v3, s31')
    a('s_lshl_b32 s32, s30, 2')
    a('v_mov_b32 v18, s32')
    a('buffer_store_dword v3, v18, s[44:47], 0 offen sc1')
    a('v_lshlrev_b32 v1, 4, v0')
    a('s_mul_i32 s30, s5, 0x%x', WF_C - WF_A)
    a('s_mul_i32 s31, s4, 28')
    a('s_mul_i32 s32, s3, 7')
    a('s_add_u32 s31, s31, s32')
    a('s_mul_i32 s31, s31, 14336')
    a('s_add_u32 s30, s30, s31')
    a('s_lshl_b32 s33, s3, 1')
    for lam in range(7):
        a('s_lshl_b32 s%d, s33, 10', 15 + lam)
        a('s_lshl_b32 s31, s33, 11')
        a('s_add_u32 s31, s31, s30')
        for t in range(7):
            a('buffer_load_dwordx4 %s, v1, s[8:11], s31 offen', W(t, lam, 4, 0))
            a('buffer_load_dwordx4 %s, v1, s[8:11], s31 offen offset:1024', W(t, lam, 4, 4))
            if t < 6: a('s_add_u32 s31, s31, 14336')
        if lam < 6:
            a('s_add_u32 s33, s33, 1')
            a('s_cmp_ge_u32 s33, 7')
            a('s_cselect_b32 s32, 7, 0')
            a('s_sub_u32 s33, s33, s32')
        if lam >= 3: a('s_waitcnt vmcnt(40)')
    a('v_and_b32 v3, 2, v0')
    a('v_cmp_eq_u32 vcc, 0, v3')
    a('v_mov_b32 v2, 0xeeee')
    a('v_mov_b32 v18, 0x4444')
    a('v_cndmask_b32 v2, v2, v18, vcc')
    a('v_cndmask_b32 v14, 0, 1.0, vcc')
    bits(17, [(4, 2, 7), (2, 2, 5), (0, 1, 4)])
    a('s_mul_i32 s30, s3, 1536')
    a('s_sub_u32 s30, 8192, s30')
    a('v_add_u32 v17, s30, v17')
    a('v_mov_b32 v18, 0x%x', OOB)
    a('v_cndmask_b32 v17, v18, v17, vcc')
    lv, lj = a.new('iv'), a.new('ij')
    a('s_cmp_eq_u32 s5, 1')
    a('s_cbranch_scc1 %s', lv)
    bits(4, [(2, 2, 6), (0, 1, 5), (4, 2, 3), (1, 1, 2)])
    bits(5, [(4, 2, 8), (0, 4, 3)])
    a('s_lshl_b32 s30, s3, 11')
    a('s_add_u32 s30, s30, %d', L_T)
    a('v_add_u32 v4, s30, v4')
    a('v_add_u32 v5, s30, v5')
    a('s_branch %s', lj)
    a.label(lv)
    bits(5, [(0, 4, 4), (4, 2, 2)])
    a('s_mul_i32 s30, s3, 1792')
    a('s_add_u32 s30, s30, %d', L_T)
    a('v_add_u32 v4, s30, v5')
    a.label(lj)
    a('s_mul_i32 s30, s3, 3584')
    a('s_add_u32 s30, s30, %d', L_X)
    a('v_add_u32 v6, s30, v1')
    bits(8, [(5, 1, 8), (1, 2, 6), (0, 1, 4), (4, 1, 3)])
    a('s_mul_i32 s30, s3, 1792')
    a('v_add_u32 v8, s30, v8')
    a('v_add_u32 v9, 1024, v8')
    bits(10, [(4, 2, 8), (4, 2, 9), (1, 1, 5), (3, 1, 4), (2, 1, 3), (0, 1, 2)])
    a('s_mul_i32 s31, s3, 3072')
    a('s_add_u32 s31, s31, %d', L_S)
    a('v_add_u32 v10, s31, v10')
    bits(11, [(3, 3, 7), (3, 3, 8)])
    a('v_add_u32 v11, %d, v11', L_S)
    a('v_and_b32 v3, 7, v0')
    a('v_lshl_add_u32 v15, v3, 3, v11')
    a('v_lshl_add_u32 v11, v3, 4, v11')
    bits(12, [(2, 1, 8), (4, 2, 6), (1, 1, 5), (3, 1, 4), (0, 1, 3)])
    a('s_lshl_b32 s30, s4, 9')
    a('v_add_u32 v12, s30, v12')
    bits(13, [(3, 3, 4), (0, 1, 3), (2, 1, 2)])
    a('s_lshl_b32 s30, s4, 7')
    a('s_add_u32 s30, s30, 8192')
    a('v_add_u32 v13, s30, v13')
    bits(16, [(4, 2, 7), (0, 4, 2)])
    a('s_lshl_b32 s30, s3, 9')
    a('s_add_u32 s30, s30, %d', L_C)
    a('v_add_u32 v16, s30, v16')
    bits(7, [(4, 2, 7), (2, 1, 6), (0, 2, 4), (3, 1, 3)])
    a('v_add_u32 v7, %d, v7', L_C)
    a('v_mov_b32 v3, 0')
    a('v_lshlrev_b32 v18, 2, v0')
    a('ds_write_b32 v18, v3 offset:%d', L_MEM + 7168)
    for w in range(4): a('ds_write_b32 v18, v3 offset:%d', L_T + w * 2048 + 1792)
    a('v_add_u32 v18, %d, v18', L_X + 28672)
    for o in (0, 256, ZXS, ZXS + 256): a('ds_write_b32 v18, v3 offset:%d', o)
    a('s_mul_i32 s30, s3, 7168')
    a('s_add_u32 s34, s30, 0x%x', XF)
    a('s_add_u32 s36, s30, %d', L_X)
    a('s_mul_i32 s51, s3, 6720')
    a('s_sub_u32 s51, s51, %d', 2 * XSEG)
    a('s_lshl_b32 s30, s3, 12')
    a('s_lshl_b32 s31, s6, 14')
    a('s_add_u32 s35, s30, s31')
    a('s_add_u32 s35, s35, 0x%x', DD)
    a('s_add_u32 s37, s30, %d', L_D)
    a('s_lshl_b32 s49, s6, 2')
    a('s_add_u32 s49, s49, 0x%x', DPROG)
    def xdma():
        r = [['s_mov_b32 m0, s36', 's_add_u32 s30, s34, 4096', 'buffer_load_dwordx4 v1, s[8:11], s34 offen lds']]
        for i in (1, 2, 3): r.append(['buffer_load_dwordx4 v1, s[8:11], s34 offen offset:%d lds' % (1024 * i)])
        r[3].append('s_add_u32 m0, s36, 4096')
        for i in (0, 1, 2): r.append(['buffer_load_dwordx4 v1, s[8:11], s30 offen offset:%d lds' % (1024 * i)])
        return r
    def ddma(src):
        return [['buffer_load_dwordx4 v1, s[8:11], %s offen offset:%d sc1 lds' % (src, 1024 * i)] for i in range(4)]
    def dwait(off, need):
        lp, ok = a.new('dw'), a.new('dk')
        a('s_mov_b32 s14, 0')
        a.label(lp)
        a('buffer_load_dword v19, off, s[8:11], %s sc1', off)
        a('s_waitcnt vmcnt(0)')
        a('v_readfirstlane_b32 s31, v19')
        a('s_cmp_ge_u32 s31, %s', need)
        a('s_cbranch_scc1 %s', ok)
        a('s_sleep 2')
        a('s_add_u32 s14, s14, 1')
        a('s_cmp_lt_u32 s14, %d', SPIN)
        a('s_cbranch_scc1 %s', lp)
        a('s_endpgm')
        a.label(ok)
    l = a.new('nx')
    a('s_cmp_eq_u32 s5, 1')
    a('s_cbranch_scc1 %s', l)
    for grp in xdma():
        for i in grp: a(i)
        a('s_nop 0')
    a.label(l)
    l = a.new('nd')
    a('v_mov_b32 v19, 64')
    a('s_cmp_eq_u32 s7, 0')
    a('s_cbranch_scc1 %s', l)
    dwait('s49', '1')
    a('s_mov_b32 m0, s37')
    a('s_add_u32 s30, s49, 128')
    for grp in ddma('s35'): a(grp[0])
    a('buffer_load_dword v19, off, s[8:11], s30 sc1')
    a.label(l)
    lp, l2 = a.new('xc'), a.new('xo')
    a('v_and_b32 v18, 31, v0')
    a('v_lshlrev_b32 v18, 2, v18')
    a('s_mov_b32 s14, 0')
    a.label(lp)
    a('buffer_load_dword v3, v18, s[44:47], 0 offen sc1')
    a('s_waitcnt vmcnt(0)')
    a('v_cmp_eq_u32 vcc, 0, v3')
    a('s_cbranch_vccz %s', l2)
    a('s_add_u32 s14, s14, 1')
    a('s_cmp_lt_u32 s14, %d', SPIN)
    a('s_cbranch_scc1 %s', lp)
    a('s_endpgm')
    a.label(l2)
    a('v_readfirstlane_b32 s31, v3')
    a('s_mov_b32 s12, 0')
    a('s_mov_b32 s50, %d', ZXS)
    a('s_nop 1')
    a('v_cmp_ne_u32 vcc, s31, v3')
    a('s_waitcnt lgkmcnt(0)')
    if 'slow' in dev: a('s_branch tslow')
    a('s_cbranch_vccnz tslow')
    a('s_cmp_eq_u32 s5, 1')
    a('s_cbranch_scc1 vloopF')
    a('s_branch sloopF')
    a.label('tslow')
    a('s_cmp_eq_u32 s5, 1')
    a('s_cbranch_scc1 vloopS')
    a('s_branch sloopS')
    a.label('tend')
    a('s_endpgm')

    def loop(role, mode):
        SC = ' sc1' if mode == 'S' else ''
        tails = []
        a.l.append('.p2align 6')
        a.label(role + 'loop' + mode)
        if dev:
            l = a.new('pp')
            a('s_cmp_eq_u32 s12, 8')
            a('s_cbranch_scc0 %s', l)
            a('s_memtime s[78:79]')
            a.label(l)
        a('s_and_b32 s30, s12, 3')
        a('s_mul_i32 s39, s30, %d', UNIT)
        a('s_add_u32 s39, s39, 0x%x', MEMX)
        a('s_add_u32 s32, s39, s15')
        a('s_add_u32 s33, s39, s16')
        def mpoll():
            a('buffer_load_dwordx4 %s, v1, s[8:11], s32 offen sc1', V(MF, 4))
            a('buffer_load_dwordx4 %s, v1, s[8:11], s33 offen sc1', V(MF + 4, 4))
        mpoll()
        for r in range(28): a('v_mov_b32 v%d, 0', TACC + r)
        mpoll()
        a('s_mul_i32 s22, s30, %d', PSLOT)
        a('s_add_u32 s22, s22, 0x%x', PR)
        a('s_lshl_b32 s31, s3, 11')
        a('s_add_u32 s43, s22, s31')
        a('s_mul_i32 s23, s30, %d', VSLOT)
        a('s_add_u32 s23, s23, 0x%x', VX)
        a('s_lshl_b32 s41, s6, 12')
        a('s_add_u32 s41, s41, s23')
        a('s_lshl_b32 s31, s3, 10')
        a('s_add_u32 s41, s41, s31')
        a('s_add_u32 s31, s12, 1')
        a('s_and_b32 s31, s31, 3')
        a('s_mul_i32 s42, s31, %d', UNIT)
        a('s_lshl_b32 s31, s6, 8')
        a('s_add_u32 s42, s42, s31')
        a('s_add_u32 s42, s42, 0x%x', MEMX)
        a('s_add_u32 s39, s39, s31')
        if role == 's':
            for r in range(12): a('v_mov_b32 v%d, 0', SACC + r)
            a('s_add_u32 s31, s12, 3')
            a('s_and_b32 s31, s31, 3')
            a('s_mul_i32 s40, s31, %d', PSLOT)
            a('s_add_u32 s40, s40, 0x%x', PR)
        else:
            a('s_mul_i32 s31, s3, 7*4096')
            a('s_add_u32 s23, s23, s31')
            a('s_lshl_b32 s31, s4, 8')
            a('s_add_u32 s23, s23, s31')
            for t in range(1, 7): a('s_add_u32 s%d, s23, %d', 23 + t, 4096 * t)
        a('s_add_u32 s34, s34, %d', XSEG)
        a('s_add_u32 s35, s35, %d', DSEG)
        a('s_add_u32 s36, s36, s50')
        a('s_xor_b32 s37, s37, 0x4000')
        a('s_cmp_ge_u32 s12, 62')
        a('s_cselect_b32 s30, 0, s7')
        a('s_cmp_eq_u32 s30, 0')
        a('s_cselect_b32 s38, 0x%x, s35', OOB)
        a('s_add_u32 s31, s12, 3')
        a('s_lshr_b32 s31, s31, 1')
        a('s_mul_i32 s13, s31, s30')
        a('v_readfirstlane_b32 s31, v19')
        a('s_and_b32 s48, s12, 1')
        a('s_lshl_b32 s48, s48, 7')
        a('s_add_u32 s48, s48, s49')
        a('s_cmp_ge_u32 s31, s13')
        lslow, lback = a.new('dq'), a.new('db')
        a('s_cbranch_scc0 %s', lslow)
        a.label(lback)
        tails.append(('dw', lslow, lback))
        a('v_add_u32 v18, s15, v1')
        a('v_add_u32 v3, s16, v1')
        for i in range(5): a('v_add_u32 v%d, s%d, v1', TA + 2 + i, 17 + i)
        a('s_mov_b32 m0, s37')
        a('s_mov_b32 s14, 0')
        def smf(t, lam):
            a('v_smfmac_f32_16x16x64_bf16 %s, %s, %s, v2', V(TACC + 4 * t, 4), V(MF + 4 * lam, 4), W(t, lam))
        lp, lf = a.new('mp'), a.new('mf')
        a.label(lp)
        a('s_waitcnt vmcnt(2)')
        stamp(0)
        a('v_max3_u32 v%d, v%d, v%d, v%d', TA, MF, MF + 1, MF + 2)
        a('v_max3_u32 v%d, v%d, v%d, v%d', TA, MF + 3, MF + 4, TA)
        smf(0, 0)
        a('ds_write_b128 v18, %s', V(MF, 4))
        a('v_max3_u32 v%d, v%d, v%d, v%d', TA, MF + 5, MF + 6, TA)
        smf(1, 0)
        a('v_max_u32 v%d, v%d, v%d', TA, MF + 7, TA)
        smf(0, 1)
        a('ds_write_b128 v3, %s', V(MF + 4, 4))
        a('v_cmp_eq_u32 vcc, -1, v%d', TA)
        smf(1, 1)
        a('s_cbranch_vccnz %s', lf)
        tails.append(('mf', lf, lp, mpoll))
        a('s_waitcnt lgkmcnt(0)')
        a('s_barrier')
        ga = [['ds_read_b128 %s, v%d' % (V(MF + 8 + 4 * i, 4), TA + 2 + i)] for i in range(5)]
        ga += ddma('s38') if 'nod' not in dev else [[], [], [], []]
        ga.append(['buffer_load_dword v19, off, s[8:11], s48 sc1'])
        a(ga[0][0])
        for i, (t, lam) in enumerate(ORDER[4:14]):
            smf(t, lam)
            if i + 1 < len(ga):
                for ins in ga[i + 1]: a(ins)
        a('s_waitcnt lgkmcnt(0)')
        gm = [[] for _ in range(45)]
        gv = [[] for _ in range(45)]
        def epi(t):
            c = TACC + 4 * t
            v = ['v_add_f32 v%d, v%d, v%d' % (c, c, c + 2), 'v_add_f32 v%d, v%d, v%d' % (c + 1, c + 1, c + 3),
                 'v_cvt_pk_bf16_f32 v%d, v%d, v%d' % (c, c, c + 1)]
            m = ['ds_write_b32 v4, v%d offset:%d' % (c, 256 * t)]
            if role == 'v':
                v.append('v_min_u32 v%d, -2, v%d' % (c, c))
                m.insert(0, 'buffer_store_dword v%d, v5, s[8:11], s%d offen%s' % (c, 23 + t, SC))
            return v, m
        for t in range(6):
            v, m = epi(t)
            for i, ins in enumerate(v): gv[5 * t + 8 + i].append(ins)
            for i, ins in enumerate(m): gm[5 * t + 8 + len(v) + i].append(ins)
        def place(ins, lo):
            k = lo
            while gm[k]: k += 1
            gm[k] += ins if isinstance(ins, list) else [ins]
            return k
        if role == 's':
            place('ds_read_b64_tr_b16 %s, v5' % V(TA, 2), 27)
            place('ds_read_b64_tr_b16 %s, v5 offset:128' % V(TA + 2, 2), 28)
            if 'nox' not in dev:
                for grp in xdma(): place(grp, 0)
            def brd(step, xb0, xb1, mb):
                r = []
                for kt, b in ((0, xb0), (1, xb1)):
                    for hh in range(2):
                        r.append('ds_read_b128 %s, v6 offset:%d' % (V(b + 4 * hh, 4), kt * 14336 + (2 * step + hh) * 1024))
                ad = 'v8' if step == 0 else 'v9'
                for hh in range(2):
                    for qq in range(2):
                        r.append('ds_read2_b32 %s, %s offset0:%d offset1:%d' % (V(mb + 4 * hh + 2 * qq, 2), ad, 128 * hh + qq, 128 * hh + qq + 8))
                return r
            for ins in brd(0, SB, SB + 8, SB + 16): place(ins, 7)
            b1 = brd(1, TACC, TACC + 8, MF)
            k = place(['s_waitcnt vmcnt(12)', b1[4]], 17)
            for ins in b1[5:]: place(ins, k)
            for ins in b1[0:2]: place(ins, 17)
            for ins in b1[2:4]: place(ins, 27)
        else:
            gv[0].append('v_lshrrev_b32 v3, 1, v1')
            gm[0] += ['s_mul_i32 s30, s4, 1792', 's_sub_u32 s30, s30, s51', 's_add_u32 s30, s30, s34']
            gm[1] += ['buffer_load_dword v9, v3, s[8:11], s30 offen']
            lme, lmb = a.new('me'), a.new('mb')
            gm[2] += ['s_lshl_b32 s30, s4, 2', 's_add_u32 s30, s30, s3', 's_cmp_eq_u32 s30, %d' % (3 if 'noext' not in dev else 99)]
            gm[3] += ['s_cbranch_scc1 ' + lme, lmb + ':']
            tails.append(('meme', lme, lmb))
        for k, (t, lam) in enumerate(ORDER[14:]):
            smf(t, lam)
            for ins in gm[k] + gv[k]: a(ins)
        stamp(1)
        def vld(): a('buffer_load_dwordx4 %s, v1, s[8:11], s41 offen sc1', V(VB, 4))
        if role == 's':
            a('s_waitcnt lgkmcnt(1)')
            for kt in range(3):
                a('v_smfmac_f32_16x16x64_bf16 %s, %s, %s, v2', V(SACC + 4 * kt, 4), V(TA, 4), V(SB + 8 * kt, 8))
                for ins in gm[35 + kt] + gv[35 + kt]: a(ins)
            assert not any(gm[38:]) and not any(gv[38:])
            v, m = epi(6)
            for ins in v + m: a(ins)
            a('ds_read_b64_tr_b16 %s, v5 offset:1024', V(TA + 4, 2))
            a('ds_read_b64_tr_b16 %s, v5 offset:1152', V(TA + 6, 2))
            vld()
            a('v_add_u32 v6, s50, v6')
            a('s_sub_u32 s50, 0, s50')
            a('s_xor_b32 s30, s37, 0x4000')
            a('v_add_u32 v18, s30, v1')
            a('s_waitcnt lgkmcnt(0)')
            for kt, b in enumerate((TACC, TACC + 8, MF)):
                a('v_smfmac_f32_16x16x64_bf16 %s, %s, %s, v2', V(SACC + 4 * kt, 4), V(TA + 4, 4), V(b, 8))
            a('s_nop 5')
            for kt in range(3):
                c = SACC + 4 * kt
                a('v_add_f32 v%d, v%d, v%d', c, c, c + 2)
                a('v_add_f32 v%d, v%d, v%d', c + 1, c + 1, c + 3)
                a('ds_write2_b32 v10, v%d, v%d offset0:%d offset1:%d', c, c + 1, 16 * kt, 16 * kt + 96)
            a('s_cmp_eq_u32 s3, 0')
            a('s_waitcnt lgkmcnt(0)')
            a('s_barrier')
            stamp(2)
            lns = a.new('ns')
            a('s_cbranch_scc0 %s', lns)
            for w in range(4):
                a('ds_read_b128 %s, v11 offset:%d', V(76 + 8 * w, 4), 3072 * w)
                a('ds_read_b64 %s, v15 offset:%d', V(80 + 8 * w, 2), 3072 * w + 128)
            a('s_waitcnt lgkmcnt(4)')
            for i in range(3): a('v_pk_add_f32 %s, %s, %s', V(76 + 2 * i, 2), V(76 + 2 * i, 2), V(84 + 2 * i, 2))
            a('s_waitcnt lgkmcnt(0)')
            for i in range(3): a('v_pk_add_f32 %s, %s, %s', V(92 + 2 * i, 2), V(92 + 2 * i, 2), V(100 + 2 * i, 2))
            for i in range(3): a('v_pk_add_f32 %s, %s, %s', V(76 + 2 * i, 2), V(76 + 2 * i, 2), V(92 + 2 * i, 2))
            a('v_max3_f32 v84, v76, v77, v78')
            a('v_max3_f32 v85, v79, v80, v81')
            a('v_max_f32 v84, v84, v85')
            DP = ('quad_perm:[1,0,3,2]', 'quad_perm:[2,3,0,1]', 'row_half_mirror')
            for ctl in DP:
                a('s_nop 1')
                a('v_max_f32_dpp v84, v84, v84 %s row_mask:0xf bank_mask:0xf', ctl)
            for i in range(6): a('v_sub_f32 v%d, v%d, v84', 76 + i, 76 + i)
            for i in range(6): a('v_exp_f32 v%d, v%d', 76 + i, 76 + i)
            a('v_add_f32 v85, v76, v77')
            a('v_add_f32 v86, v78, v79')
            a('v_add_f32 v87, v80, v81')
            a('v_add_f32 v85, v85, v86')
            a('v_fmac_f32 v85, v87, v14')
            for ctl in DP:
                a('s_nop 1')
                a('v_add_f32_dpp v85, v85, v85 %s row_mask:0xf bank_mask:0xf', ctl)
            a('v_rcp_f32 v85, v85')
            a('s_nop 0')
            for i in range(4): a('v_mul_f32 v%d, v%d, v85', 76 + i, 76 + i)
            for i in range(2): a('v_cvt_pk_bf16_f32 v%d, |v%d|, |v%d|', 88 + i, 76 + 2 * i, 77 + 2 * i)
            a('buffer_store_dwordx2 v[88:89], v12, s[8:11], s22 offen' + SC)
            for i in range(4, 6): a('v_mul_f32 v%d, v%d, v85', 76 + i, 76 + i)
            a('v_cvt_pk_bf16_f32 v90, |v80|, |v81|')
            a('buffer_store_dword v90, v13, s[8:11], s22 offen' + SC)
            stamp(3)
            a('v_mov_b32 v92, -1')
            a('v_mov_b32 v93, -1')
            a('buffer_store_dwordx2 v[92:93], v12, s[8:11], s40 offen' + SC)
            a('buffer_store_dword v92, v13, s[8:11], s40 offen' + SC)
            a.label(lns)
        else:
            for kk in range(35, 39):
                for ins in gm[kk] + gv[kk]: a(ins)
            assert not any(gm[39:]) and not any(gv[39:])
            a('s_nop 2')
            v, m = epi(6)
            for ins in v + m: a(ins)
            stamp(2)
            a('s_xor_b32 s30, s37, 0x4000')
            a('v_add_u32 v18, s30, v1')
            a('s_waitcnt lgkmcnt(0)')
            a('s_barrier')
            lw = a.new('nw')
            a('s_cmp_eq_u32 s3, %d', 2 if 'noext' not in dev else 9)
            a('s_cbranch_scc0 %s', lw)
            for i in range(7): a('ds_read_b128 %s, v1 offset:%d', V(76 + 4 * i, 4), L_T + 1024 * i)
            a('s_lshl_b32 s31, s4, 2')
            a('s_add_u32 s31, s31, 0x%x', VPROG)
            a('v_mov_b32 v3, s12')
            a('buffer_store_dword v3, off, s[8:11], s31 sc1')
            a('s_mul_i32 s30, s12, %d', VSLOT)
            a('s_mul_i32 s32, s4, 7168')
            a('s_add_u32 s30, s30, s32')
            a('s_add_u32 s30, s30, 0x%x', VE)
            a('s_add_u32 s32, s30, 4096')
            a('s_waitcnt lgkmcnt(0)')
            for i in range(7):
                a('buffer_store_dwordx4 %s, v1, s[8:11], s%d offen offset:%d sc1', V(76 + 4 * i, 4), 30 if i < 4 else 32, 1024 * (i & 3))
            a('s_cmp_eq_u32 s12, 63')
            a('s_cbranch_scc0 %s', lw)
            a('s_waitcnt vmcnt(0)')
            a('v_mov_b32 v3, 64')
            a('buffer_store_dword v3, off, s[8:11], s31 sc1')
            a.label(lw)
            a('s_cmp_eq_u32 s12, 63')
            a('s_cbranch_scc1 tend')
            vld()
        lnc = a.new('nc')
        if role == 's':
            a('s_cmp_eq_u32 s7, 0')
            a('s_cbranch_scc1 %s', lnc)
        for i in range(4): a('ds_read_b128 %s, v18 offset:%d', V(DB + 4 * i, 4), 1024 * i)
        a('s_mov_b32 s14, 0')
        lp, ok = a.new('vp'), a.new('vk')
        a.label(lp)
        a('s_waitcnt vmcnt(0)')
        a('v_max3_u32 v3, v%d, v%d, v%d', VB, VB + 1, VB + 2)
        a('v_max_u32 v3, v%d, v3', VB + 3)
        a('v_cmp_eq_u32 vcc, -1, v3')
        a('s_cbranch_vccz %s', ok)
        vld()
        a('s_add_u32 s14, s14, 1')
        a('s_cmp_lt_u32 s14, %d', SPIN)
        a('s_cbranch_scc1 %s', lp)
        a('s_endpgm')
        a.label(ok)
        stamp(4)
        def pld():
            a('buffer_load_dwordx4 %s, v17, s[8:11], s43 offen sc1', V(PF, 4))
            a('buffer_load_dwordx4 %s, v1, s[8:11], s43 offen sc1', V(PF + 4, 4))
            a('buffer_load_dwordx4 %s, v1, s[8:11], s43 offen offset:1024 sc1', V(PF + 8, 4))
        pld()
        for r in range(4): a('v_mov_b32 v%d, -1', 56 + r)
        a('buffer_store_dwordx4 v[56:59], v1, s[8:11], s41 offen' + SC)
        a('s_waitcnt lgkmcnt(0)')
        lp, lr = a.new('pp'), a.new('pr')
        a.label(lr)
        pld()
        a('s_waitcnt vmcnt(3)')
        a('v_or3_b32 v3, v%d, v%d, v%d', PF, PF + 1, PF + 2)
        a('v_or3_b32 v3, v%d, v%d, v3', PF + 3, PF + 4)
        a('v_mfma_f32_16x16x32_bf16 %s, %s, %s, 0', V(CACC, 4), V(PF, 4), V(VB, 4))
        a('v_or3_b32 v3, v%d, v%d, v3', PF + 7, PF + 8)
        a('v_smfmac_f32_16x16x64_bf16 %s, %s, %s, v2', V(CACC, 4), V(PF + 4, 4), V(DB, 8))
        a('v_or_b32 v3, v%d, v3', PF + 11)
        a('v_smfmac_f32_16x16x64_bf16 %s, %s, %s, v2', V(CACC, 4), V(PF + 8, 4), V(DB + 8, 8))
        a('v_cmp_gt_i32 vcc, 0, v3')
        lf = a.new('pf')
        a('s_cbranch_vccnz %s', lf)
        tails.append(('pf', lf, lr))
        stamp(5)
        a('s_cmp_eq_u32 s3, 3')
        a('s_nop 4')
        a('v_add_f32 v%d, v%d, v%d', CACC, CACC, CACC + 2)
        a('v_add_f32 v%d, v%d, v%d', CACC + 1, CACC + 1, CACC + 3)
        a('ds_write2_b32 v16, v%d, v%d offset0:0 offset1:16', CACC, CACC + 1)
        a('s_waitcnt lgkmcnt(0)')
        a('s_barrier')
        lnr = a.new('nr')
        a('s_cbranch_scc0 %s', lnr)
        for w in range(4): a('ds_read_b64 %s, v7 offset:%d', V(88 + 2 * w, 2), 512 * w)
        a('v_lshrrev_b32 v18, 2, v1')
        a('s_waitcnt lgkmcnt(2)')
        a('v_pk_add_f32 v[88:89], v[88:89], v[90:91]')
        a('s_waitcnt lgkmcnt(0)')
        a('v_pk_add_f32 v[92:93], v[92:93], v[94:95]')
        a('v_pk_add_f32 v[88:89], v[88:89], v[92:93]')
        a('v_cvt_pk_bf16_f32 v3, v88, v89')
        a('v_min_u32 v3, -2, v3')
        a('buffer_store_dword v3, v18, s[8:11], s42 offen' + SC)
        stamp(6)
        a('buffer_store_dword v56, v18, s[8:11], s39 offen' + SC)
        a.label(lnr)
        a.label(lnc)
        if dev:
            ld = a.new('dv')
            a('s_cmp_eq_u32 s12, 40')
            a('s_cbranch_scc0 %s', ld)
            a('s_memtime s[80:81]')
            a('s_waitcnt lgkmcnt(0)')
            a('s_sub_u32 s78, s80, s78')
            a('s_lshl_b32 s30, s5, 4')
            a('s_add_u32 s30, s30, s4')
            a('s_lshl_b32 s30, s30, 2')
            a('s_add_u32 s30, s30, s3')
            a('s_lshl_b32 s30, s30, 6')
            a('s_add_u32 s30, s30, 0x3F00000')
            for kk in range(8):
                a('v_mov_b32 v3, s%d', 64 + 2 * kk)
                a('buffer_store_dword v3, off, s[8:11], s30 offset:%d', 4 * kk)
                a('s_nop 1')
            a.label(ld)
        a('s_add_u32 s12, s12, 1')
        a('s_cmp_lt_u32 s12, %d', 63 if role == 's' else 64)
        a('s_cbranch_scc1 %sloop%s', role, mode)
        a('s_endpgm')
        for p in tails:
            a.label(p[1])
            if p[0] == 'dw':
                a('s_xor_b32 s30, s48, 128')
                dwait('s30', 's13')
                a('s_branch %s', p[2])
            elif p[0] == 'mf':
                p[3]()
                a('s_add_u32 s14, s14, 1')
                a('s_cmp_lt_u32 s14, %d', SPIN)
                a('s_nop 2')
                for r in range(8): a('v_mov_b32 v%d, 0', TACC + r)
                a('s_cbranch_scc1 %s', p[2])
                a('s_endpgm')
            elif p[0] == 'pf':
                a('s_add_u32 s14, s14, 1')
                a('s_cmp_lt_u32 s14, %d', SPIN)
                a('s_cbranch_scc1 %s', p[2])
                a('s_endpgm')
            elif p[0] == 'meme':
                a('s_mul_i32 s30, s12, %d', UNIT)
                a('s_add_u32 s30, s30, 0x%x', MEME)
                for lam in range(7):
                    a('s_add_u32 s31, s30, s%d', 15 + lam)
                    a('buffer_store_dwordx4 %s, v1, s[8:11], s31 offen sc1', V(MF + 4 * lam, 4))
                a('s_branch %s', p[2])
    for mode in 'FS':
        for role in 'sv': loop(role, mode)
```

```python
from common import *
SPIN = 400000
XB = 28672 + 128
KT1 = 14336 + 64
NSET_D, NSET_F, NSET_X, NSET_O = 2, 2, 3, 13

def lane_consts(a):
    a('v_lshlrev_b32 v1, 4, v0')
    a('v_and_b32 v2, 15, v0')
    a('v_lshrrev_b32 v3, 4, v0')

def x_setup(a, lx):
    a('s_mul_i32 s30, s3, 7168')
    a('s_mul_i32 s34, s12, %d', XSEG)
    a('s_add_u32 s34, s34, s30')
    a('s_add_u32 s34, s34, 0x%x', XF)
    a('s_lshr_b32 s31, s3, 1')
    a('s_lshl_b32 s31, s31, 6')
    a('s_add_u32 s36, s30, s31')
    a('s_add_u32 s36, s36, %d', lx)
    a('s_mov_b32 s50, %d', XB)

def x_dma(a):
    a('s_mov_b32 m0, s36')
    a('s_add_u32 s30, s34, 4096')
    for i in range(4): a('buffer_load_dwordx4 v1, s[8:11], s34 offen offset:%d lds', 1024 * i)
    a('s_add_u32 m0, s36, 4096')
    a('s_nop 0')
    for i in range(3): a('buffer_load_dwordx4 v1, s[8:11], s30 offen offset:%d lds', 1024 * i)

def x_next(a, nset):
    a('s_add_u32 s34, s34, %d', XSEG * nset)
    a('s_add_u32 s36, s36, s50')

def perm_rows_addr(a, dst, lx, gmul_shift, tmp):
    a('v_lshrrev_b32 v%d, 3, v2', tmp)
    a('s_movk_i32 s30, %d', KT1)
    a('v_mul_u32_u24 v%d, s30, v%d', dst, tmp)
    a('v_bfe_u32 v%d, v0, 2, 1', tmp)
    a('v_lshl_add_u32 v%d, v%d, 7, v%d', dst, tmp, dst)
    a('v_and_b32 v%d, 3, v0', tmp)
    a('v_lshl_add_u32 v%d, v%d, 4, v%d', dst, tmp, dst)
    a('v_add_u32 v%d, %d, v%d', dst, lx, dst)

def publish(a, word_sgpr_off, val):
    l = a.new('pb')
    a('s_cmp_eq_u32 s3, 0')
    a('s_cbranch_scc0 %s', l)
    a('v_mov_b32 v4, %s', val)
    a('v_mov_b32 v5, 0')
    a('buffer_store_dword v4, v5, s[8:11], %s offen sc1', word_sgpr_off)
    a.label(l)

def sg_loop(a, name, nset, nst, mfma_fn, epi_fn, rd_fn):
    XR = 64
    x_dma(a)
    a('s_mov_b32 s13, 0')
    a('s_waitcnt vmcnt(0)')
    a('s_branch %s_in', name)
    a.label(name + '_loop')
    a('s_waitcnt vmcnt(%d)', nst)
    a.label(name + '_in')
    a('s_barrier')
    l = a.new('np')
    a('s_cmp_lt_u32 s13, 2')
    a('s_cbranch_scc1 %s', l)
    a('s_sub_u32 s31, s13, 1')
    publish(a, 's35', 's31')
    a.label(l)
    x_next(a, nset)
    x_dma(a)
    def rd(j):
        for mt in range(2): rd_fn(XR + 8 * (j % 4) + 4 * mt, j, mt)
    for j in range(3): rd(j)
    for j in range(14):
        if j + 3 < 14: rd(j + 3)
        a('s_waitcnt lgkmcnt(%d)', 2 * min(3, 13 - j))
        mfma_fn(j, XR + 8 * (j % 4))
    a('v_add_u32 v6, s50, v6')
    a('s_sub_u32 s50, 0, s50')
    a('s_nop 6')
    epi_fn()
    a('s_add_u32 s13, s13, 1')
    a('s_add_u32 s12, s12, %d', nset)
    a('s_cmp_lt_u32 s12, 64')
    a('s_cbranch_scc1 %s_loop', name)
    a('s_waitcnt vmcnt(0)')
    a('s_barrier')
    publish(a, 's35', 's13')
    a('s_endpgm')

def gen_d(a):
    a.label('role_d')
    a('s_lshr_b32 s6, s30, 1')
    a('s_and_b32 s12, s30, 1')
    lane_consts(a)
    a('s_lshl_b32 s31, s3, 2')
    a('s_mul_i32 s31, s31, 28')
    a('s_add_u32 s31, s31, s6')
    a('s_mul_i32 s31, s31, 14336')
    a('s_add_u32 s31, s31, 0x%x', WF_C)
    for hh in range(4):
        for j in range(14):
            if j % 4 == 0: a('s_add_u32 s32, s31, %d', hh * 28 * 14336 + j * 1024)
            a('buffer_load_dwordx4 %s, v1, s[8:11], s32 offen offset:%d', A((hh * 14 + j) * 4, 4), (j % 4) * 1024)
    x_setup(a, 0)
    perm_rows_addr(a, 6, 0, 0, 7)
    a('v_lshl_add_u32 v6, v3, 8, v6')
    a('s_lshl_b32 s35, s12, 7')
    a('s_lshl_b32 s31, s6, 2')
    a('s_add_u32 s35, s35, s31')
    a('s_add_u32 s35, s35, 0x%x', DPROG)
    ACC = 32
    def rd(b, j, mt): a('ds_read_b128 %s, v6 offset:%d', V(b, 4), j * 1024 + mt * 64)
    def mf(j, xb):
        for hh in range(4):
            for mt in range(2):
                c = ACC + (hh * 2 + mt) * 4
                a('v_mfma_f32_16x16x32_bf16 %s, %s, %s, %s', V(c, 4), V(xb + 4 * mt, 4), A((hh * 14 + j) * 4, 4), V(c, 4) if j else '0')
    def epi():
        a('s_mul_i32 s30, s12, %d', DSEG)
        a('s_lshl_b32 s31, s6, 14')
        a('s_add_u32 s30, s30, s31')
        a('s_lshl_b32 s31, s3, 12')
        a('s_add_u32 s30, s30, s31')
        a('s_add_u32 s30, s30, 0x%x', DD)
        for hh in range(4):
            c = ACC + hh * 8
            o = 96 + 4 * hh
            for d in range(4): a('v_cvt_pk_bf16_f32 v%d, v%d, v%d', o + d, c + 2 * d, c + 2 * d + 1)
            a('buffer_store_dwordx4 %s, v1, s[8:11], s30 offen offset:%d sc1', V(o, 4), 1024 * hh)
    sg_loop(a, 'rd', NSET_D, 4, mf, epi, rd)

def gen_f1(a):
    a.label('role_f1')
    a('s_lshr_b32 s6, s30, 1')
    a('s_and_b32 s12, s30, 1')
    a('s_load_dwordx4 s[56:59], s[0:1], %d', KA['wg'])
    lane_consts(a)
    RS = 272
    a('s_lshl_b32 s31, s3, 2')
    a('v_add_u32 v4, s31, v3')
    a('s_movk_i32 s30, 3584')
    a('v_mul_u32_u24 v5, s30, v4')
    a('v_lshl_add_u32 v5, v2, 4, v5')
    a('s_movk_i32 s30, %d', RS)
    a('v_mul_u32_u24 v7, s30, v4')
    a('v_lshl_add_u32 v7, v2, 4, v7')
    a('v_add_u32 v8, %d, v7', 14 * 16 * RS)
    a('v_lshrrev_b32 v9, 2, v2')
    a('v_lshl_add_u32 v9, v3, 3, v9')
    a('v_mul_u32_u24 v9, s30, v9')
    a('v_and_b32 v4, 3, v0')
    a('v_lshl_add_u32 v9, v4, 4, v9')
    a('s_lshl_b32 s31, s3, 6')
    a('v_add_u32 v9, s31, v9')
    a('v_add_u32 v10, %d, v9', 7 * 32 * RS)
    a('s_waitcnt lgkmcnt(0)')
    a.srd(16, 56, FBYTES)
    a.srd(20, 58, FBYTES)
    ST = 16
    for mat in range(2):
        a('s_lshl_b32 s31, s6, 8')
        for p in range(28):
            a('buffer_load_dwordx4 %s, v5, s[%d:%d], s31 offen', V(ST + (mat * 28 + p) * 4, 4), 16 + 4 * mat, 19 + 4 * mat)
            if p < 27: a('s_add_u32 s31, s31, %d', 16 * 3584)
    for mat in range(2):
        a('s_waitcnt vmcnt(%d)', 28 if mat == 0 else 0)
        for p in range(28):
            a('ds_write_b128 v%d, %s offset:%d', 7 if p < 14 else 8, V(ST + (mat * 28 + p) * 4, 4), (p % 14) * 16 * RS)
        a('s_waitcnt lgkmcnt(0)')
        a('s_barrier')
        for u in range(2):
            for j in range(14):
                b = ((mat * 2 + u) * 14 + j) * 4
                o = (j % 7) * 32 * RS + u * 8
                a('ds_read_b64_tr_b16 %s, v%d offset:%d', A(b, 2), 9 if j < 7 else 10, o)
                a('ds_read_b64_tr_b16 %s, v%d offset:%d', A(b + 2, 2), 9 if j < 7 else 10, o + 4 * RS)
        a('s_waitcnt lgkmcnt(0)')
        a('s_barrier')
    x_setup(a, 0)
    a('v_mov_b32 v6, v1')
    a('s_lshl_b32 s35, s12, 7')
    a('s_lshl_b32 s31, s6, 2')
    a('s_add_u32 s35, s35, s31')
    a('s_add_u32 s35, s35, 0x%x', HPROG)
    ACC = 32
    def rd(b, j, tt): a('ds_read_b128 %s, v6 offset:%d', V(b, 4), j * 1024 + tt * KT1)
    def mf(j, xb):
        for q in range(4):
            for tt in range(2):
                c = ACC + (tt * 4 + q) * 4
                a('v_mfma_f32_16x16x32_bf16 %s, %s, %s, %s', V(c, 4), A((q * 14 + j) * 4, 4), V(xb + 4 * tt, 4), V(c, 4) if j else '0')
    def epi():
        a('s_mul_i32 s30, s12, %d', VSLOT)
        a('s_lshl_b32 s31, s6, 12')
        a('s_add_u32 s30, s30, s31')
        a('s_lshl_b32 s31, s3, 10')
        a('s_add_u32 s30, s30, s31')
        a('s_add_u32 s30, s30, 0x%x', H1)
        a('s_add_u32 s31, s30, 57344')
        for tt in range(2):
            g = ACC + tt * 16
            u = g + 8
            t = 104
            for i in range(8): a('v_mul_f32 v%d, 0x%x, v%d', t + i, fbits(-LOG2E), g + i)
            for i in range(8): a('v_exp_f32 v%d, v%d', t + i, t + i)
            for i in range(8): a('v_mul_f32 v%d, v%d, v%d', u + i, u + i, g + i)
            for i in range(8): a('v_add_f32 v%d, 1.0, v%d', t + i, t + i)
            for i in range(8): a('v_rcp_f32 v%d, v%d', t + i, t + i)
            a('s_nop 0')
            for i in range(8): a('v_mul_f32 v%d, v%d, v%d', u + i, u + i, t + i)
            o = 96 + 4 * tt
            for d in range(4): a('v_cvt_pk_bf16_f32 v%d, v%d, v%d', o + d, u + 2 * d, u + 2 * d + 1)
            a('buffer_store_dwordx4 %s, v1, s[8:11], s%d offen sc1', V(o, 4), 30 + tt)
    sg_loop(a, 'rf', NSET_F, 2, mf, epi, rd)

def poll_ge(a, voff, soff, vthr, tmp):
    lp, ok = a.new('pl'), a.new('pk')
    a('s_mov_b32 s14, 0')
    a.label(lp)
    a('buffer_load_dword v%d, v%d, s[8:11], %s offen sc1', tmp, voff, soff)
    a('s_waitcnt vmcnt(0)')
    a('v_cmp_lt_u32 vcc, v%d, v%d', tmp, vthr)
    a('s_cbranch_vccz %s', ok)
    a('s_sleep 4')
    a('s_add_u32 s14, s14, 1')
    a('s_cmp_lt_u32 s14, %d', SPIN)
    a('s_cbranch_scc1 %s', lp)
    a('s_endpgm')
    a.label(ok)

def gen_xs(a):
    LX, LM, LP = 0, 2 * XB, 2 * XB + 7168
    a.label('role_xs')
    a('s_mul_i32 s4, s30, 21846')
    a('s_lshr_b32 s4, s4, 16')
    a('s_mul_i32 s31, s4, 3')
    a('s_sub_u32 s12, s30, s31')
    lane_consts(a)
    def W(t, j):
        i = t * 14 + j
        return A(4 * i, 4) if i < 64 else V(120 + 4 * (i - 64), 4)
    a('s_mul_i32 s31, s4, 28')
    a('s_mul_i32 s32, s3, 7')
    a('s_add_u32 s31, s31, s32')
    a('s_mul_i32 s31, s31, 14336')
    if WF_A: a('s_add_u32 s31, s31, 0x%x', WF_A)
    for i in range(98):
        if i % 4 == 0 and i: a('s_add_u32 s31, s31, 4096')
        a('buffer_load_dwordx4 %s, v1, s[8:11], s31 offen offset:%d', W(i // 14, i % 14), (i % 4) * 1024)
        if i >= 48 and i % 8 == 0: a('s_waitcnt vmcnt(40)')
    x_setup(a, LX)
    a('v_add_u32 v6, %d, v1', LX) if LX else a('v_mov_b32 v6, v1')
    perm_rows_addr(a, 7, LX, 0, 4)
    a('v_lshrrev_b32 v4, 1, v3')
    a('s_mul_i32 s31, s3, 14')
    a('v_add_u32 v4, s31, v4')
    a('v_lshl_add_u32 v7, v4, 8, v7')
    a('v_and_b32 v4, 1, v3')
    a('v_lshl_add_u32 v7, v4, 3, v7')
    a('v_bfe_u32 v4, v0, 1, 2')
    a('v_lshlrev_b32 v8, 6, v4')
    a('v_and_b32 v4, 1, v0')
    a('v_lshl_add_u32 v8, v4, 4, v8')
    a('v_lshl_add_u32 v8, v3, 2, v8')
    a('s_mul_i32 s31, s3, 1792')
    a('s_add_u32 s31, s31, %d', LM)
    a('v_add_u32 v8, s31, v8')
    a('s_lshl_b32 s15, s3, 11')
    a('s_add_u32 s16, s15, 1024')
    a('s_cmp_eq_u32 s3, 3')
    a('s_cselect_b32 s16, 0, s16')
    a('s_add_u32 s31, s15, %d', LM)
    a('v_add_u32 v9, s31, v1')
    a('s_add_u32 s31, s16, %d', LM)
    a('v_add_u32 v10, s31, v1')
    a('s_mul_i32 s31, s3, 6144')
    a('s_add_u32 s31, s31, %d', LP)
    a('v_add_u32 v11, s31, v1')
    a('s_lshl_b32 s31, s3, 10')
    a('s_add_u32 s31, s31, %d', LP)
    a('v_add_u32 v12, s31, v1')
    a('s_lshl_b32 s31, s3, 4')
    a('v_add_u32 v4, s31, v2')
    a('v_lshlrev_b32 v5, 3, v3')
    a('v_sub_u32 v4, v4, v5')
    for i in range(8): a('v_cmp_gt_i32 s[%d:%d], %d, v4', 64 + 2 * i, 65 + 2 * i, i)
    a('v_cmp_gt_u32 vcc, 2, v3')
    a('v_mov_b32 v13, 0xff800000')
    a('s_nop 0')
    a('v_cndmask_b32 v14, 0, 1.0, vcc')
    a('s_lshl_b32 s31, s4, 11')
    a('s_lshl_b32 s32, s3, 10')
    a('s_add_u32 s31, s31, s32')
    a('v_add_u32 v15, s31, v1')
    a('s_lshr_b32 s31, s4, 2')
    a('s_lshl_b32 s31, s31, 11')
    a('s_add_u32 s31, s31, s32')
    a('s_and_b32 s32, s4, 3')
    a('s_lshl_b32 s32, s32, 8')
    a('s_add_u32 s31, s31, s32')
    a('s_add_u32 s31, s31, 32768')
    a('v_and_b32 v4, 1, v3')
    a('v_lshlrev_b32 v16, 4, v2')
    a('v_lshl_add_u32 v16, v4, 3, v16')
    a('v_add_u32 v16, s31, v16')
    a('s_lshl_b32 s35, s12, 7')
    a('s_lshl_b32 s31, s4, 3')
    a('s_add_u32 s35, s35, s31')
    a('s_lshl_b32 s31, s3, 2')
    a('s_add_u32 s35, s35, s31')
    a('s_add_u32 s35, s35, 0x%x', XPROG)
    a('v_mov_b32 v17, 0')
    a('s_mov_b32 s13, 0')
    x_dma(a)
    ACC, XR, SA, KO = 20, 76, 92, 76
    a.label('rx_loop')
    a('s_waitcnt vmcnt(0)')
    a('s_barrier')
    x_next(a, NSET_X)
    x_dma(a)
    def rd(j):
        for tt in range(2): a('ds_read_b128 %s, v6 offset:%d', V(XR + 8 * (j & 1) + 4 * tt, 4), j * 1024 + tt * KT1)
    rd(0)
    for j in range(14):
        if j + 1 < 14: rd(j + 1)
        a('s_waitcnt lgkmcnt(%d)', 2 if j < 13 else 0)
        for t in range(7):
            for tt in range(2):
                c = ACC + (t * 2 + tt) * 4
                a('v_mfma_f32_16x16x32_bf16 %s, %s, %s, %s', V(c, 4), W(t, j), V(XR + 8 * (j & 1) + 4 * tt, 4), V(c, 4) if j else '0')
    a('s_mul_i32 s39, s12, %d', UNIT)
    a('s_add_u32 s39, s39, 0x%x', MEME)
    a('s_add_u32 s32, s39, s15')
    a('s_add_u32 s33, s39, s16')
    def krd(t):
        for ku in range(2): a('ds_read_b64 %s, v7 offset:%d', V(KO + 4 * (t % 4) + 2 * ku, 2), t * 512 + ku * 64)
    for t in range(3): krd(t)
    a('s_nop 2')
    for i in range(14):
        c = ACC + 4 * i
        a('v_cvt_pk_bf16_f32 v%d, v%d, v%d', c, c, c + 1)
        a('v_cvt_pk_bf16_f32 v%d, v%d, v%d', c + 1, c + 2, c + 3)
    a('s_nop 1')
    for t in range(7):
        if t + 3 < 7: krd(t + 3)
        a('s_waitcnt lgkmcnt(%d)', 2 * min(3, 6 - t))
        for ku in range(2):
            for tt in range(2):
                c = SA + (ku * 2 + tt) * 4
                a('v_mfma_f32_16x16x16_bf16 %s, %s, %s, %s', V(c, 4), V(KO + 4 * (t % 4) + 2 * ku, 2), V(ACC + (t * 2 + tt) * 4, 2), V(c, 4) if t else '0')
    a('v_add_u32 v6, s50, v6')
    a('v_add_u32 v7, s50, v7')
    a('s_sub_u32 s50, 0, s50')
    lp, ok = a.new('xm'), a.new('xk')
    a('s_mov_b32 s14, 0')
    a.label(lp)
    a('buffer_load_dwordx4 %s, v1, s[8:11], s32 offen sc1', V(KO, 4))
    a('buffer_load_dwordx4 %s, v1, s[8:11], s33 offen sc1', V(KO + 4, 4))
    a('s_waitcnt vmcnt(0)')
    a('v_max3_u32 v4, v%d, v%d, v%d', KO, KO + 1, KO + 2)
    a('v_max3_u32 v5, v%d, v%d, v%d', KO + 3, KO + 4, KO + 5)
    a('v_max3_u32 v4, v%d, v%d, v4', KO + 6, KO + 7)
    a('v_max_u32 v4, v4, v5')
    a('v_cmp_eq_u32 vcc, -1, v4')
    a('s_cbranch_vccz %s', ok)
    a('s_sleep 2')
    a('s_add_u32 s14, s14, 1')
    a('s_cmp_lt_u32 s14, %d', SPIN)
    a('s_cbranch_scc1 %s', lp)
    a('s_endpgm')
    a.label(ok)
    a('ds_write_b128 v9, %s', V(KO, 4))
    a('ds_write_b128 v10, %s', V(KO + 4, 4))
    for b in range(4): a('ds_write_b128 v11, %s offset:%d', V(SA + 4 * b, 4), 1024 * b)
    a('s_waitcnt lgkmcnt(0)')
    a('s_barrier')
    for t in range(7):
        a('ds_read_b32 v%d, v8 offset:%d', KO + 2 * t, 256 * t)
        a('ds_read_b32 v%d, v8 offset:%d', KO + 2 * t + 1, 256 * t + 32)
    for t in range(7):
        a('s_waitcnt lgkmcnt(%d)', 2 * (6 - t))
        for tt in range(2):
            c = SA + 16 + tt * 4
            a('v_mfma_f32_16x16x16_bf16 %s, %s, %s, %s', V(c, 4), V(KO + 2 * t, 2), V(ACC + (t * 2 + tt) * 4, 2), V(c, 4) if t else '0')
    a('s_nop 7')
    for b in (4, 5): a('ds_write_b128 v11, %s offset:%d', V(SA + 4 * b, 4), 1024 * b)
    a('s_waitcnt lgkmcnt(0)')
    a('s_barrier')
    lsk = a.new('xs')
    a('s_add_u32 s13, s13, 1')
    a('s_cmp_lt_u32 s3, 2')
    a('s_cbranch_scc0 %s', lsk)
    R = 20
    for w in range(4):
        for b in range(3): a('ds_read_b128 %s, v12 offset:%d', V(R + 12 * w + 4 * b, 4), 6144 * w + 2048 * b)
    a('s_mul_i32 s30, s12, %d', PXSEG)
    a('s_add_u32 s30, s30, 0x%x', PX)
    for w in range(1, 4):
        a('s_waitcnt lgkmcnt(%d)', 3 * (3 - w))
        for i in range(6): a('v_pk_add_f32 %s, %s, %s', V(R + 2 * i, 2), V(R + 2 * i, 2), V(R + 12 * w + 2 * i, 2))
    for i in range(8): a('v_cndmask_b32 v%d, v%d, v13, s[%d:%d]', R + i, R + i, 64 + 2 * i, 65 + 2 * i)
    a('v_max3_f32 v4, v%d, v%d, v%d', R, R + 1, R + 2)
    for i in range(3, 11, 2): a('v_max3_f32 v4, v%d, v%d, v4', R + i, R + i + 1)
    a('v_max_f32 v4, v%d, v4', R + 11)
    def xred(op):
        for sw in ('v_permlane32_swap_b32', 'v_permlane16_swap_b32'):
            a('v_mov_b32 v5, v4')
            a('s_nop 1')
            a('%s v4, v5', sw)
            a('%s v4, v4, v5', op)
    xred('v_max_f32')
    for i in range(12): a('v_sub_f32 v%d, v%d, v4', R + i, R + i)
    for i in range(12): a('v_exp_f32 v%d, v%d', R + i, R + i)
    a('v_add_f32 v4, v%d, v%d', R, R + 1)
    for i in range(2, 8): a('v_add_f32 v4, v%d, v4', R + i)
    for i in range(8, 12): a('v_fmac_f32 v4, v%d, v14', R + i)
    xred('v_add_f32')
    a('v_rcp_f32 v4, v4')
    a('s_nop 0')
    for i in range(12): a('v_mul_f32 v%d, v%d, v4', R + i, R + i)
    for d in range(6): a('v_cvt_pk_bf16_f32 v%d, v%d, v%d', 40 + d, R + 2 * d, R + 2 * d + 1)
    a('buffer_store_dwordx4 v[40:43], v15, s[8:11], s30 offen sc1')
    a('buffer_store_dwordx2 v[44:45], v16, s[8:11], s30 offen sc1')
    a('v_mov_b32 v4, s13')
    a('s_waitcnt vmcnt(0)')
    a('buffer_store_dword v4, v17, s[8:11], s35 offen sc1')
    a.label(lsk)
    a('s_add_u32 s12, s12, %d', NSET_X)
    a('s_cmp_lt_u32 s12, 64')
    a('s_cbranch_scc1 rx_loop')
    a('s_endpgm')

def gen_fin(a):
    a.label('role_fin')
    a('s_mul_i32 s12, s30, 9363')
    a('s_lshr_b32 s12, s12, 16')
    a('s_mul_i32 s31, s12, 7')
    a('s_sub_u32 s6, s30, s31')
    a('s_load_dwordx2 s[56:57], s[0:1], %d', KA['wd'])
    a('s_load_dwordx2 s[58:59], s[0:1], %d', KA['out'])
    lane_consts(a)
    RS = 144
    a('v_lshrrev_b32 v4, 3, v0')
    a('v_and_b32 v5, 7, v0')
    a('s_movk_i32 s30, 896')
    a('v_mul_u32_u24 v6, s30, v4')
    a('v_lshl_add_u32 v6, v5, 4, v6')
    a('s_movk_i32 s30, %d', RS)
    a('v_mul_u32_u24 v7, s30, v4')
    a('v_lshl_add_u32 v7, v5, 4, v7')
    a('s_mul_i32 s31, s3, %d', 224 * RS)
    a('v_add_u32 v7, s31, v7')
    a('v_lshrrev_b32 v8, 2, v2')
    a('v_lshl_add_u32 v8, v3, 3, v8')
    a('v_mul_u32_u24 v8, s30, v8')
    a('v_and_b32 v4, 3, v0')
    a('v_lshl_add_u32 v8, v4, 3, v8')
    a('v_add_u32 v8, s31, v8')
    a('s_waitcnt lgkmcnt(0)')
    a.srd(16, 56, FBYTES)
    a.srd(20, 58, XBYTES)
    ST = 16
    a('s_mul_i32 s31, s3, %d', 448 * 896)
    a('s_lshl_b32 s32, s6, 7')
    a('s_add_u32 s31, s31, s32')
    for p in range(56):
        a('buffer_load_dwordx4 %s, v6, s[16:19], s31 offen', V(ST + 4 * p, 4))
        if p < 55: a('s_add_u32 s31, s31, %d', 8 * 896)
    for rnd in range(2):
        a('s_waitcnt vmcnt(%d)', 28 if rnd == 0 else 0)
        for p in range(28): a('ds_write_b128 v7, %s offset:%d', V(ST + 4 * (rnd * 28 + p), 4), p * 8 * RS)
        for jj in range(7):
            for t in range(4):
                b = ((rnd * 7 + jj) * 4 + t) * 4
                a('ds_read_b64_tr_b16 %s, v8 offset:%d', A(b, 2), jj * 32 * RS + t * 32)
                a('ds_read_b64_tr_b16 %s, v8 offset:%d', A(b + 2, 2), jj * 32 * RS + t * 32 + 4 * RS)
            a('s_waitcnt lgkmcnt(0)')
    a('s_barrier')
    a('v_lshlrev_b32 v4, 2, v0')
    a('s_lshl_b32 s31, s6, 4')
    a('s_sub_u32 s31, s31, 56')
    a('v_add_u32 v5, s31, v4')
    a('v_add_u32 v4, %d, v4', HPROG - CNT)
    a('v_cmp_gt_u32 vcc, 14, v0')
    a('s_nop 1')
    a('v_cndmask_b32 v4, v5, v4, vcc')
    a('v_cmp_gt_u32 vcc, 18, v0')
    a('v_mov_b32 v5, %d', HPROG - CNT)
    a('s_nop 0')
    a('v_cndmask_b32 v4, v5, v4, vcc')
    a('v_and_b32 v5, 7, v0')
    a('v_lshlrev_b32 v5, 2, v5')
    a('s_lshl_b32 s31, s3, 5')
    a('s_add_u32 s31, s31, %d', XPROG - CNT)
    a('v_add_u32 v5, s31, v5')
    a('v_and_b32 v6, 3, v0')
    a('v_lshlrev_b32 v6, 2, v6')
    a('s_lshl_b32 s31, s3, 4')
    a('s_add_u32 s31, s31, %d', VPROG - CNT)
    a('v_add_u32 v6, s31, v6')
    a('v_cmp_gt_u32 s[60:61], 8, v2')
    a('s_movk_i32 s30, 7168')
    a('v_mul_u32_u24 v7, s30, v3')
    a('v_lshl_add_u32 v7, v2, 4, v7')
    a('v_lshlrev_b32 v8, 2, v2')
    RO = 272
    a('s_lshl_b32 s31, s3, 5')
    a('v_add_u32 v9, s31, v2')
    a('s_movk_i32 s30, %d', RO)
    a('v_mul_u32_u24 v9, s30, v9')
    a('v_lshl_add_u32 v9, v3, 4, v9')
    a('v_lshrrev_b32 v12, 3, v0')
    a('s_lshl_b32 s31, s3, 3')
    a('v_add_u32 v12, s31, v12')
    a('v_mul_u32_u24 v10, s30, v12')
    a('v_and_b32 v13, 7, v0')
    a('v_lshl_add_u32 v10, v13, 5, v10')
    a('s_movk_i32 s30, 896')
    a('v_mul_u32_u24 v11, s30, v12')
    a('v_lshl_add_u32 v11, v13, 4, v11')
    a('s_mov_b32 s50, %d', 128 * RO)
    HF, DF, AB, AA, GR = 16, 128, 192, 224, 14
    a.label('ro_loop')
    a('s_and_b32 s30, s12, 1')
    a('s_lshl_b32 s30, s30, 7')
    a('s_add_u32 s30, s30, 0x%x', CNT)
    a('s_lshr_b32 s31, s12, 1')
    a('s_add_u32 s31, s31, 1')
    a('v_mov_b32 v12, s31')
    poll_ge(a, 4, 's30', 12, 13)
    a('s_mul_i32 s30, s12, %d', VSLOT)
    a('s_mul_i32 s31, s3, 14336')
    a('s_add_u32 s30, s30, s31')
    a('s_add_u32 s30, s30, 0x%x', H1)
    for jj in range(14):
        if jj % 4 == 0:
            a('s_add_u32 s32, s30, %d', jj * 1024)
            a('s_add_u32 s33, s30, %d', jj * 1024 + 57344)
        for tt in range(2):
            a('buffer_load_dwordx4 %s, v1, s[8:11], s%d offen offset:%d sc1', V(HF + (jj * 2 + tt) * 4, 4), 32 + tt, (jj % 4) * 1024)
    a('s_mul_i32 s30, s12, %d', DSEG)
    a('s_lshl_b32 s31, s6, 16')
    a('s_add_u32 s30, s30, s31')
    a('s_lshl_b32 s31, s3, 12')
    a('s_add_u32 s30, s30, s31')
    a('s_add_u32 s30, s30, 0x%x', DD)
    for t in range(4):
        for hh in range(4):
            a('buffer_load_dwordx4 %s, v1, s[8:11], s30 offen offset:%d sc1', V(DF + (t * 4 + hh) * 4, 4), hh * 1024)
        if t < 3: a('s_add_u32 s30, s30, 16384')
    a('s_lshl_b32 s30, s12, 7')
    a('s_add_u32 s30, s30, 0x%x', GG)
    for tt in range(2): a('buffer_load_dword v%d, v8, s[8:11], s30 offen offset:%d', GR + tt, 64 * tt)
    for jj in range(14):
        a('s_waitcnt vmcnt(%d)', 18 + 2 * (13 - jj))
        for tt in range(2):
            for t in range(4):
                c = AB + (t * 2 + tt) * 4
                a('v_mfma_f32_16x16x32_bf16 %s, %s, %s, %s', V(c, 4), A((jj * 4 + t) * 4, 4), V(HF + (jj * 2 + tt) * 4, 4), V(c, 4) if jj else '0')
    a('s_mul_i32 s31, s12, 21846')
    a('s_lshr_b32 s31, s31, 16')
    a('s_mul_i32 s32, s31, 3')
    a('s_sub_u32 s32, s12, s32')
    a('s_lshl_b32 s32, s32, 7')
    a('v_add_u32 v12, s32, v5')
    a('v_cndmask_b32 v%d, v6, v12, s[60:61]', HF)
    a('s_add_u32 s31, s31, 1')
    a('s_add_u32 s32, s12, 1')
    a('v_mov_b32 v12, s31')
    a('v_mov_b32 v13, s32')
    a('v_cndmask_b32 v12, v13, v12, s[60:61]')
    a('s_mov_b32 s30, 0x%x', CNT)
    poll_ge(a, HF, 's30', 12, 13)
    PF, PM, VF = 20, 52, 60
    a('s_mul_i32 s30, s12, %d', PXSEG)
    a('s_add_u32 s30, s30, 0x%x', PX)
    a('s_lshl_b32 s31, s3, 13')
    a('s_add_u32 s31, s31, s30')
    a('s_add_u32 s32, s31, 4096')
    for i in range(8):
        a('buffer_load_dwordx4 %s, v1, s[8:11], s%d offen offset:%d sc1', V(PF + 4 * i, 4), 31 + (i >> 2), (i & 3) * 1024)
    a('s_lshl_b32 s31, s3, 11')
    a('s_add_u32 s31, s31, s30')
    a('s_add_u32 s31, s31, 32768')
    for tt in range(2): a('buffer_load_dwordx4 %s, v1, s[8:11], s31 offen offset:%d sc1', V(PM + 4 * tt, 4), 1024 * tt)
    a('s_mul_i32 s30, s12, %d', VSLOT)
    a('s_mul_i32 s31, s3, 28672')
    a('s_add_u32 s30, s30, s31')
    a('s_lshl_b32 s31, s6, 10')
    a('s_add_u32 s30, s30, s31')
    a('s_add_u32 s30, s30, 0x%x', VE)
    for t in range(4): a('buffer_load_dwordx4 %s, v7, s[8:11], s30 offen offset:%d sc1', V(VF + 4 * t, 4), 256 * t)
    for hh in range(4):
        a('s_waitcnt vmcnt(%d)', 6 + 2 * (3 - hh))
        for tt in range(2):
            for t in range(4):
                c = AA + (t * 2 + tt) * 4
                a('v_mfma_f32_16x16x32_bf16 %s, %s, %s, %s', V(c, 4), V(DF + (t * 4 + hh) * 4, 4), V(PF + (hh * 2 + tt) * 4, 4), V(c, 4) if hh else '0')
    a('s_waitcnt vmcnt(0)')
    for t in range(4):
        for tt in range(2):
            c = AA + (t * 2 + tt) * 4
            a('v_mfma_f32_16x16x32_bf16 %s, %s, %s, %s', V(c, 4), V(VF + 4 * t, 4), V(PM + 4 * tt, 4), V(c, 4))
    a('s_mul_i32 s30, s12, %d', 32 * 896)
    a('s_lshl_b32 s31, s6, 7')
    a('s_add_u32 s30, s30, s31')
    for t in range(4):
        for tt in range(2):
            i = (t * 2 + tt) * 4
            for r in range(4): a('v_sub_f32 v%d, v%d, v%d', AA + i + r, AA + i + r, AB + i + r)
            for r in range(4): a('v_fmac_f32 v%d, v%d, v%d', AB + i + r, GR + tt, AA + i + r)
            a('ds_write_b128 v9, %s offset:%d', V(AB + i, 4), tt * 16 * RO + t * 64)
    a('s_waitcnt lgkmcnt(0)')
    a('s_barrier')
    for w in range(4):
        for hf in range(2): a('ds_read_b128 %s, v10 offset:%d', V(20 + 8 * w + 4 * hf, 4), w * 32 * RO + 16 * hf)
    a('v_add_u32 v9, s50, v9')
    a('v_add_u32 v10, s50, v10')
    a('s_sub_u32 s50, 0, s50')
    for w in range(1, 4):
        a('s_waitcnt lgkmcnt(%d)', 2 * (3 - w))
        for i in range(4): a('v_pk_add_f32 %s, %s, %s', V(20 + 2 * i, 2), V(20 + 2 * i, 2), V(20 + 8 * w + 2 * i, 2))
    for d in range(4): a('v_cvt_pk_bf16_f32 v%d, v%d, v%d', 56 + d, 20 + 2 * d, 21 + 2 * d)
    a('buffer_store_dwordx4 v[56:59], v11, s[20:23], s30 offen')
    a('s_add_u32 s12, s12, %d', NSET_O)
    a('s_cmp_lt_u32 s12, 64')
    a('s_cbranch_scc1 ro_loop')
    a('s_endpgm')
```

```python
import sys
from common import *
import prep, team, workers

HEADER = open('cdna_kernels/%s.s.ref' % NAME).read().split('; Override launch geometry')[0]
MAIN_LDS = 131072

def kd(name, vgpr, acc, sgpr):
    return '''.p2align 6
.amdhsa_kernel %s
  .amdhsa_next_free_vgpr %d
  .amdhsa_next_free_sgpr %d
  .amdhsa_accum_offset %d
  .amdhsa_group_segment_fixed_size 0
  .amdhsa_kernarg_size 120
  .amdhsa_user_sgpr_count 2
  .amdhsa_user_sgpr_kernarg_segment_ptr 1
  .amdhsa_system_sgpr_workgroup_id_x 1
.end_amdhsa_kernel
''' % (name, vgpr, sgpr, acc)

def head(a, name):
    a.l.append('.globl %s\n.p2align 8\n.type %s,@function' % (name, name))

def build(masks, dev=False):
    a = Asm()
    names = []
    head(a, 'prep_kernel')
    prep.gen_prep(a, 'prep_kernel')
    for m in masks:
        nm = (NAME + '_kernel') if m == 31 else 'main%d_kernel' % m
        if nm in names: continue
        names.append(nm)
        head(a, nm)
        a.label(nm)
        a('s_cmp_ge_u32 s2, 256')
        a('s_cbranch_scc1 quit')
        a('s_load_dwordx4 s[52:55], s[0:1], %d', KA['dbg'])
        a('v_lshrrev_b32 v1, 6, v0')
        a('v_and_b32 v0, 63, v0')
        a('v_readfirstlane_b32 s3, v1')
        a('s_and_b32 s31, s2, 7')
        a('s_lshr_b32 s30, s2, 3')
        a('s_waitcnt lgkmcnt(0)')
        a.srd(8, 54, team.OOB)
        a.srd(44, 52, 256)
        a('s_cmp_eq_u32 s31, 0')
        a('s_cbranch_scc1 %s', 'team' if m & 1 else 'quit')
        a('s_sub_u32 s31, s31, 1')
        a('s_lshl_b32 s31, s31, 5')
        a('s_add_u32 s30, s30, s31')
        for bit, n, lab in ((2, 56, 'role_d'), (4, 48, 'role_xs'), (8, 28, 'role_f1'), (16, 91, 'role_fin')):
            a('s_cmp_lt_u32 s30, %d', n)
            a('s_cbranch_scc1 %s', lab if m & bit else 'quit')
            a('s_sub_u32 s30, s30, %d', n)
        a('s_endpgm')
    a.label('quit')
    a('s_endpgm')
    team.gen_team(a, dev)
    workers.gen_d(a)
    workers.gen_xs(a)
    workers.gen_f1(a)
    workers.gen_fin(a)
    s = HEADER
    s += '; @launch kernel=prep_kernel grid=(256,1,1) block=(448,1,1) lds=%d\n' % prep.PREP_LDS
    for m in masks:
        nm = (NAME + '_kernel') if m == 31 else 'main%d_kernel' % m
        s += '; @launch kernel=%s grid=(256,1,1) block=(256,1,1) lds=%d\n' % (nm, MAIN_LDS)
    s += '.amdgcn_target "amdgcn-amd-amdhsa--gfx950"\n.text\n' + a.text()
    s += '.section .rodata,"a"\n' + kd('prep_kernel', 200, 200, 64)
    for nm in names: s += kd(nm, 512, 256, 96)
    return s

if __name__ == '__main__':
    out = sys.argv[1]
    masks = [int(x) for x in sys.argv[2].split(',')]
    dev = sys.argv[3] if len(sys.argv) > 3 else False
    open(out, 'w').write(build(masks, dev))
```

```python
from common import *

PREP_LDS = 65536
DEV = False
def gen_prep(a, name):
    assert all((t * 4682) >> 16 == t // 14 for t in range(448))
    assert all((t * 1171) >> 16 == t // 56 for t in range(448))
    GOFF = 61440
    a.label(name)
    a('s_cmp_ge_u32 s2, 256')
    a('s_cbranch_scc0 %s_go', name)
    a('s_endpgm')
    a.label(name + '_go')
    if DEV: a('s_memrealtime s[56:57]')
    a('s_load_dwordx4 s[36:39], s[0:1], 0')
    a('s_load_dwordx4 s[40:43], s[0:1], 16')
    a('s_load_dwordx4 s[44:47], s[0:1], 32')
    a('s_load_dwordx2 s[48:49], s[0:1], %d', KA['gw'])
    a('s_load_dwordx2 s[50:51], s[0:1], %d', KA['ws'])
    a('s_and_b32 s4, s2, 15')
    a('s_bfe_u32 s5, s2, 0x10004')
    a('s_bfe_u32 s6, s2, 0x20005')
    a('s_lshr_b32 s7, s2, 7')
    a('v_lshrrev_b32 v1, 6, v0')
    a('v_and_b32 v2, 63, v0')
    a('v_readfirstlane_b32 s3, v1')
    a('v_and_b32 v3, 15, v0')
    a('v_bfe_u32 v4, v0, 4, 2')
    a('s_mul_i32 s28, s7, 7')
    a('s_add_u32 s28, s28, s3')
    a('s_waitcnt lgkmcnt(0)')
    a.srd(8, 50, WS_BYTES)
    a('s_cmp_eq_u32 s5, 0')
    a('s_cselect_b32 s12, s40, s44')
    a('s_cselect_b32 s13, s41, s45')
    a('s_mov_b32 s14, 0x%x', WBYTES); a('s_mov_b32 s15, 0x20000')
    a('s_cselect_b32 s16, s42, s46')
    a('s_cselect_b32 s17, s43, s47')
    a('s_mov_b32 s18, 0x%x', WBYTES); a('s_mov_b32 s19, 0x20000')
    a.srd(20, 36, XBYTES)
    a.srd(24, 48, 896)
    a.srd(32, 38, 7168)
    a('s_lshl_b32 s29, s4, 9')
    BST = 16
    AF = 48
    ACC = 112
    BF = 168
    XR = 184
    FILL = 192
    a('s_cmp_eq_u32 s5, 0')
    a('s_cbranch_scc0 %s_ldC', name)
    a('s_mul_i32 s30, s6, 112')
    a('s_lshl_b32 s31, s3, 4')
    a('s_add_u32 s30, s30, s31')
    a('v_add_u32 v5, s30, v3')
    a('v_lshlrev_b32 v5, 13, v5')
    a('v_lshl_add_u32 v5, v4, 4, v5')
    for es in range(8):
        a('buffer_load_dwordx4 %s, v5, s[16:19], s29 offen offset:%d', V(BST + 4 * es, 4), es * 64)
    a('s_lshl_b32 s31, s3, 13')
    a('v_lshl_add_u32 v6, v2, 4, s31')
    a('v_lshlrev_b32 v7, 4, v2')
    a('s_branch %s_ldA', name)
    a.label(name + '_ldC')
    a('s_movk_i32 s30, 4682')
    a('v_mul_u32_u24 v8, s30, v0')
    a('v_lshrrev_b32 v8, 16, v8')
    a('v_mul_u32_u24 v9, 14, v8')
    a('v_sub_u32 v9, v0, v9')
    a('s_movk_i32 s30, 896')
    a('v_mul_u32_u24 v5, s30, v8')
    a('v_lshl_add_u32 v5, v9, 4, v5')
    a('s_mul_i32 s30, s4, 229376')
    a('s_mul_i32 s31, s6, 224')
    a('s_add_u32 s30, s30, s31')
    for i in range(8):
        a('buffer_load_dwordx4 %s, v5, s[16:19], s30 offen', V(BST + 4 * i, 4))
        if i < 7: a('s_add_u32 s30, s30, 28672')
    a('s_movk_i32 s31, 240')
    a('v_mul_u32_u24 v6, s31, v8')
    a('v_lshl_add_u32 v6, v9, 4, v6')
    a('v_lshrrev_b32 v7, 2, v3')
    a('v_lshl_add_u32 v7, v4, 3, v7')
    a('v_mul_u32_u24 v7, s31, v7')
    a('v_and_b32 v9, 3, v0')
    a('v_lshl_add_u32 v7, v9, 3, v7')
    a.label(name + '_ldA')
    a('v_lshrrev_b32 v8, 2, v3')
    a('v_lshlrev_b32 v8, 3, v8')
    a('v_and_b32 v9, 3, v0')
    a('s_lshl_b32 s30, s28, 5')
    a('v_add3_u32 v8, v8, v9, s30')
    a('v_lshlrev_b32 v8, 13, v8')
    a('v_lshl_add_u32 v8, v4, 4, v8')
    a('s_add_u32 s30, s29, 32768')
    for es in range(8):
        a('buffer_load_dwordx4 %s, v8, s[12:15], s29 offen offset:%d', V(AF + 4 * es, 4), es * 64)
        a('buffer_load_dwordx4 %s, v8, s[12:15], s30 offen offset:%d', V(AF + 32 + 4 * es, 4), es * 64)
    a('v_lshlrev_b32 v10, 4, v0')
    a('s_mul_i32 s30, s2, 7168')
    a('buffer_load_dwordx4 %s, v10, s[20:23], s30 offen', V(XR, 4))
    a('s_movk_i32 s31, 1171')
    a('v_mul_u32_u24 v11, s31, v0')
    a('v_lshrrev_b32 v11, 16, v11')
    a('v_mul_u32_u24 v12, 56, v11')
    a('v_sub_u32 v12, v0, v12')
    a('v_lshlrev_b32 v13, 4, v12')
    a('buffer_load_dwordx4 %s, v13, s[24:27], 0 offen', V(XR + 4, 4))
    for r in range(56): a('v_mov_b32 v%d, 0', ACC + r)
    a('s_add_u32 s30, s30, 0x%x', U0)
    a('s_cmp_ge_u32 s2, %d', NUNITS)
    a('s_cbranch_scc1 %s_nofill', name)
    a('s_cmp_eq_u32 s2, 0')
    a('s_cbranch_scc1 %s_fm0', name)
    a('s_cmp_eq_u32 s2, 74')
    a('s_cbranch_scc1 %s_fm0', name)
    a('s_cmp_eq_u32 s2, 138')
    a('s_cselect_b32 s31, 0, -1')
    for r in range(4): a('v_mov_b32 v%d, s31', FILL + r)
    a('s_branch %s_fst', name)
    a.label(name + '_fm0')
    a('v_bfe_u32 v14, v0, 2, 2')
    a('v_and_b32 v15, 1, v0')
    a('v_lshl_add_u32 v14, v14, 1, v15')
    a('s_movk_i32 s31, 896')
    a('v_mul_u32_u24 v14, s31, v14')
    a('v_lshl_add_u32 v14, v1, 7, v14')
    a('v_lshl_add_u32 v14, v4, 5, v14')
    a('v_bfe_u32 v15, v0, 1, 1')
    a('v_lshl_add_u32 v14, v15, 2, v14')
    for q in range(4): a('buffer_load_dword v%d, v14, s[32:35], 0 offen offset:%d', FILL + q, 8 * q)
    a('s_waitcnt vmcnt(0)')
    for r in range(4): a('v_min_u32 v%d, -2, v%d', FILL + r, FILL + r)
    a.label(name + '_fst')
    a('buffer_store_dwordx4 %s, v10, s[8:11], s30 offen', V(FILL, 4))
    a('s_waitcnt vmcnt(19)')
    a('s_branch %s_stg', name)
    a.label(name + '_nofill')
    a('s_waitcnt vmcnt(18)')
    a.label(name + '_stg')
    a('s_cmp_eq_u32 s5, 0')
    a('s_cbranch_scc0 %s_C', name)
    for mat in (0, 1):
        if mat: a.label(name + '_C')
        for i in range(8):
            a('ds_write_b128 v6, %s offset:%d', V(BST + 4 * i, 4), i * (7680 if mat else 1024))
        a('s_waitcnt lgkmcnt(0)')
        a('s_barrier')
        seq = [(es, t) for es in range(8) for t in range(7)]
        def rd(i):
            es, t = seq[i]
            b = BF + 4 * (i % 4)
            if mat == 0:
                a('ds_read_b128 %s, v7 offset:%d', V(b, 4), (t * 8 + es) * 1024)
            else:
                a('ds_read_b64_tr_b16 %s, v7 offset:%d', V(b, 2), es * 7680 + t * 32)
                a('ds_read_b64_tr_b16 %s, v7 offset:%d', V(b + 2, 2), es * 7680 + t * 32 + 960)
        per = 2 if mat else 1
        for i in range(3): rd(i)
        for i, (es, t) in enumerate(seq):
            if i + 3 < len(seq): rd(i + 3)
            ahead = min(3, len(seq) - 1 - i)
            if t == 0:
                a('s_waitcnt vmcnt(%d) lgkmcnt(%d)', 16 - 2 * (es + 1) + 2, ahead * per)
            else:
                a('s_waitcnt lgkmcnt(%d)', ahead * per)
            b = BF + 4 * (i % 4)
            for u in range(2):
                c = ACC + (t * 2 + u) * 4
                a('v_mfma_f32_16x16x32_bf16 %s, %s, %s, %s', V(c, 4), V(AF + 32 * u + 4 * es, 4), V(b, 4), V(c, 4))
        if mat == 0: a('s_branch %s_epi', name)
    a.label(name + '_epi')
    a('s_waitcnt vmcnt(0)')
    a('s_and_b32 s30, s2, 3')
    a('s_lshl_b32 s30, s30, 3')
    a('v_add_u32 v14, s30, v11')
    a('v_lshrrev_b32 v15, 4, v14')
    a('s_movk_i32 s31, 14336')
    a('v_mul_u32_u24 v15, s31, v15')
    a('v_and_b32 v14, 15, v14')
    a('v_lshl_add_u32 v15, v14, 4, v15')
    a('v_lshl_add_u32 v15, v12, 8, v15')
    a('s_lshr_b32 s30, s2, 2')
    a('s_mul_i32 s30, s30, %d', XSEG)
    a('s_add_u32 s30, s30, 0x%x', XF)
    a('buffer_store_dwordx4 %s, v15, s[8:11], s30 offen', V(XR, 4))
    a('v_mov_b32 v14, 0')
    for r in range(4):
        a('v_dot2_f32_bf16 v14, v%d, v%d, v14', XR + r, XR + 4 + r)
    a('v_lshlrev_b32 v15, 2, v0')
    a('s_nop 2')
    a('ds_write_b32 v15, v14 offset:%d', GOFF)
    a('s_cmp_eq_u32 s5, 0')
    a('s_cselect_b32 s31, 0x%x, 1.0', fbits(LOG2E / 16.0))
    a('s_mul_i32 s30, s5, 0x%x', WF_C - WF_A)
    a('s_mul_i32 s29, s4, 28')
    a('s_mul_i32 s52, s6, 7')
    a('s_add_u32 s29, s29, s52')
    a('s_mul_i32 s29, s29, 14')
    a('s_add_u32 s29, s29, s28')
    a('s_lshl_b32 s29, s29, 10')
    a('s_add_u32 s30, s30, s29')
    a('v_lshlrev_b32 v13, 4, v2')
    for t in range(7):
        c = ACC + t * 8
        for r in range(8): a('v_mul_f32 v%d, s31, v%d', c + r, c + r)
        o = BST + 4 * t
        for d in range(4): a('v_cvt_pk_bf16_f32 v%d, v%d, v%d', o + d, c + 2 * d, c + 2 * d + 1)
        a('buffer_store_dwordx4 %s, v13, s[8:11], s30 offen', V(o, 4))
        if t < 6: a('s_add_u32 s30, s30, 14336')
    a('s_waitcnt lgkmcnt(0)')
    a('s_barrier')
    a('s_cmp_eq_u32 s3, 0')
    a('s_cbranch_scc1 %s_gate', name)
    a('s_endpgm')
    a.label(name + '_gate')
    a('v_mul_u32_u24 v14, 28, v2')
    for i in range(7): a('ds_read_b32 v%d, v14 offset:%d', 48 + i, GOFF + 4 * i)
    a('s_waitcnt lgkmcnt(0)')
    for i in range(1, 7): a('v_add_f32 v48, v48, v%d', 48 + i)
    for ctl in ('quad_perm:[1,0,3,2]', 'quad_perm:[2,3,0,1]', 'row_half_mirror'):
        a('s_nop 1')
        a('v_add_f32_dpp v48, v48, v48 %s row_mask:0xf bank_mask:0xf', ctl)
    a('v_mul_f32 v48, 0x%x, v48', fbits(-LOG2E))
    a('v_exp_f32 v48, v48')
    a('s_nop 0')
    a('v_add_f32 v48, 1.0, v48')
    a('v_rcp_f32 v48, v48')
    a('v_lshrrev_b32 v14, 3, v2')
    a('v_lshlrev_b32 v14, 2, v14')
    a('s_lshl_b32 s30, s2, 5')
    a('s_add_u32 s30, s30, 0x%x', GG)
    a('buffer_store_dword v48, v14, s[8:11], s30 offen')
    if DEV:
        a('s_waitcnt vmcnt(0)')
        a('s_memrealtime s[58:59]')
        a('s_waitcnt lgkmcnt(0)')
        a('s_lshl_b32 s30, s2, 4')
        a('s_add_u32 s30, s30, 0x3F20000')
        a('v_mov_b32 v48, s56')
        a('v_mov_b32 v49, s58')
        a('buffer_store_dwordx2 v[48:49], off, s[8:11], s30')
    a('s_endpgm')
```

```python
from common import *

L_MEM = 0
L_T = 7680
L_S = L_T + 8192
L_X = L_S + 12288
L_C = 7680
L_D = 32768
L_W = 98304
TEAM_LDS = L_W + 57344
SPIN = 200000
OOB = 0x8000000
NTEAM = 30

ORD_S = ([(0, 0), (1, 0), (0, 1), (1, 1), (2, 0), (3, 0), (2, 1), (3, 1), (4, 0), (5, 0), (6, 0), (4, 1), (5, 1), (6, 1)]
         + [(t, 2) for t in range(7)] + [(t, l) for t in range(7) for l in range(3, 7)])
ORD_C = [(t, l) for l in range(7) for t in range(8)]
CSPILL = [80, 88, 96, 104, 112, 52, 60]
def Wreg(i, n=8, off=0):
    if i >= 49: return V(CSPILL[i - 49] + off, n)
    return A(8 * i + off, n) if i < 32 else V(120 + 8 * (i - 32) + off, n)

def gen_team(a, dev=False):
    dev = set(dev.split('+')) if dev else set()
    def stamp(k):
        if 'st%d' % k in dev or 'stall' in dev: a('s_memtime s[%d:%d]', 64 + 2 * k, 65 + 2 * k)
    def bits(dst, spec, first=True):
        for pos, w, sh in spec:
            a('v_bfe_u32 v3, v0, %d, %d', pos, w)
            if first: a('v_lshlrev_b32 v%d, %d, v3', dst, sh); first = False
            else: a('v_lshl_add_u32 v%d, v3, %d, v%d', dst, sh, dst)
    def spin(lp):
        a('s_add_u32 s14, s14, 1')
        a('s_cmp_lt_u32 s14, %d', SPIN)
        a('s_cbranch_scc1 %s', lp)
        a('s_endpgm')
    def xdma():
        a('s_mov_b32 m0, s36')
        a('s_add_u32 s30, s34, 4096')
        for i in range(4): a('buffer_load_dwordx4 v1, s[8:11], s34 offen offset:%d lds', 1024 * i)
        a('s_add_u32 m0, s36, 4096')
        a('s_add_u32 s34, s34, %d', XSEG)
        for i in range(3): a('buffer_load_dwordx4 v1, s[8:11], s30 offen offset:%d lds', 1024 * i)
    def ddma(src0, src1):
        r = [['buffer_load_dwordx4 v1, s[8:11], %s offen offset:%d sc1 lds' % (src0, 1024 * i)] for i in range(4)]
        r[3].append('s_add_u32 m0, s37, 16384')
        r += [['buffer_load_dwordx4 v1, s[8:11], %s offen offset:%d sc1 lds' % (src1, 1024 * i)] for i in range(4)]
        return r
    def fcheck(src, tmp, seg):
        a('v_lshrrev_b32 v%d, 5, v0', tmp)
        a('v_lshl_add_u32 v%d, v%d, 1, v%d', tmp, src, tmp)
        a('v_cmp_ge_u32 vcc, %s, v%d', seg, tmp)
        a('s_nop 1')
        a('s_and_b64 vcc, vcc, s[60:61]')
    def dwait(seg):
        lp, ok = a.new('dw'), a.new('dk')
        a('s_mov_b32 s14, 0')
        a.label(lp)
        a('v_lshlrev_b32 v3, 2, v0')
        a('buffer_load_dword v18, v3, s[8:11], s49 offen sc1')
        a('s_waitcnt vmcnt(0)')
        fcheck(18, 3, seg)
        a('s_cbranch_scc0 %s', ok)
        a('s_sleep 2')
        spin(lp)
        a.label(ok)
    def frag_offsets():
        a('s_lshl_b32 s33, s3, 1')
        for lam in range(7):
            a('s_lshl_b32 s%d, s33, 10', 15 + lam)
            if lam < 6:
                a('s_add_u32 s33, s33, 1')
                a('s_cmp_ge_u32 s33, 7')
                a('s_cselect_b32 s32, 7, 0')
                a('s_sub_u32 s33, s33, s32')
    def wload(order, tile_off):
        n = 0
        for i in list(range(49, len(order))) + list(range(49)):
            t, lam = order[i]
            a('s_lshl_b32 s31, s%d, 1', 15 + lam)
            a('s_add_u32 s31, s31, s30')
            if tile_off(t): a('s_add_u32 s31, s31, %d', tile_off(t))
            if i >= 49:
                a('s_add_u32 m0, s29, %d', 2048 * (i - 49))
                a('s_nop 0')
                a('buffer_load_dwordx4 v1, s[8:11], s31 offen lds')
                a('buffer_load_dwordx4 v1, s[8:11], s31 offen offset:1024 lds')
            else:
                a('buffer_load_dwordx4 %s, v1, s[8:11], s31 offen', Wreg(i, 4, 0))
                a('buffer_load_dwordx4 %s, v1, s[8:11], s31 offen offset:1024', Wreg(i, 4, 4))
            n += 2
            if n >= 48 and n % 8 == 0: a('s_waitcnt vmcnt(40)')

    a.label('team')
    if dev: a('s_memrealtime s[90:91]')
    a('s_cmp_ge_u32 s30, %d', NTEAM)
    a('s_cbranch_scc1 tdie')
    a('s_and_b32 s4, s30, 15')
    a('s_lshr_b32 s5, s30, 4')
    a('s_getreg_b32 s31, hwreg(HW_REG_XCC_ID)')
    a('s_and_b32 s31, s31, 15')
    a('s_add_u32 s31, s31, 1')
    a('v_mov_b32 v3, s31')
    a('s_lshl_b32 s32, s30, 2')
    a('buffer_store_dword v3, off, s[44:47], s32 sc1')
    a('v_lshlrev_b32 v1, 4, v0')
    frag_offsets()
    for r in range(4, 16): a('v_mov_b32 v%d, 0', r)
    a('v_and_b32 v3, 2, v0')
    a('v_cmp_eq_u32 s[58:59], 0, v3')
    a('v_mov_b32 v2, 0xeeee')
    a('v_mov_b32 v18, 0x4444')
    a('v_cndmask_b32 v2, v2, v18, s[58:59]')
    a('v_add_u32 v16, s15, v1')
    a('v_add_u32 v17, s16, v1')
    a('s_mov_b32 s49, 0x%x', DPROG)
    a('v_and_b32 v3, 31, v0')
    a('v_cmp_gt_u32 s[60:61], 28, v3')
    a('v_cmp_gt_u32 s[62:63], 56, v0')
    lv, lj = a.new('iv'), a.new('ij')
    a('s_cmp_eq_u32 s5, 1')
    a('s_cbranch_scc1 %s', lv)
    a('s_mul_i32 s30, s4, 28')
    a('s_mul_i32 s32, s3, 7')
    a('s_add_u32 s30, s30, s32')
    a('s_mul_i32 s30, s30, 14336')
    wload(ORD_S, lambda t: t * 14336)
    a('v_cndmask_b32 v14, 0, 1.0, s[58:59]')
    bits(4, [(2, 2, 6), (0, 1, 5), (4, 2, 3), (1, 1, 2)])
    bits(5, [(4, 2, 8), (0, 4, 3)])
    a('s_lshl_b32 s30, s3, 11')
    a('s_add_u32 s30, s30, %d', L_T)
    a('v_add_u32 v4, s30, v4')
    a('v_add_u32 v5, s30, v5')
    a('s_mul_i32 s30, s3, 3584')
    a('s_add_u32 s30, s30, %d', L_X)
    a('v_add_u32 v6, s30, v1')
    bits(8, [(5, 1, 8), (1, 2, 6), (0, 1, 4), (4, 1, 3)])
    a('s_mul_i32 s30, s3, 1792')
    a('v_add_u32 v8, s30, v8')
    a('v_add_u32 v9, 1024, v8')
    bits(10, [(4, 2, 8), (4, 2, 9), (1, 1, 5), (3, 1, 4), (2, 1, 3), (0, 1, 2)])
    a('s_mul_i32 s31, s3, 3072')
    a('s_add_u32 s31, s31, %d', L_S)
    a('v_add_u32 v10, s31, v10')
    bits(11, [(3, 3, 7), (3, 3, 8)])
    a('v_add_u32 v11, %d, v11', L_S)
    a('v_and_b32 v3, 7, v0')
    a('v_lshl_add_u32 v15, v3, 3, v11')
    a('v_lshl_add_u32 v11, v3, 4, v11')
    bits(12, [(2, 1, 8), (4, 2, 6), (1, 1, 5), (3, 1, 4), (0, 1, 3)])
    a('s_lshl_b32 s30, s4, 9')
    a('v_add_u32 v12, s30, v12')
    bits(13, [(3, 3, 4), (0, 1, 8), (2, 1, 7)])
    a('s_lshr_b32 s30, s4, 2')
    a('s_lshl_b32 s30, s30, 9')
    a('s_and_b32 s31, s4, 3')
    a('s_lshl_b32 s31, s31, 2')
    a('s_add_u32 s30, s30, s31')
    a('s_add_u32 s30, s30, 8192')
    a('v_add_u32 v13, s30, v13')
    a('v_mov_b32 v3, 0')
    a('v_lshlrev_b32 v18, 2, v0')
    a('ds_write_b32 v18, v3 offset:%d', L_MEM + 7168)
    for w in range(4): a('ds_write_b32 v18, v3 offset:%d', L_T + w * 2048 + 1792)
    for o in (0, 256): a('ds_write_b32 v18, v3 offset:%d', L_X + 28672 + o)
    a('s_mul_i32 s30, s3, 7168')
    a('s_add_u32 s34, s30, 0x%x', XF)
    a('s_add_u32 s36, s30, %d', L_X)
    xdma()
    a('s_lshl_b32 s31, s4, 10')
    a('s_add_u32 s27, s31, 0x%x', MEMX)
    a('s_cmp_lt_u32 s4, 7')
    a('s_cselect_b32 s27, s27, 0x%x', OOB)
    a('s_add_u32 s26, s31, 0x%x', PR)
    a('s_cmp_lt_u32 s4, 10')
    a('s_cselect_b32 s26, s26, 0x%x', OOB)
    a('s_cmp_eq_u32 s3, 1')
    a('s_cselect_b32 s27, s27, 0x%x', OOB)
    a('s_cmp_eq_u32 s3, 2')
    a('s_cselect_b32 s27, s26, s27')
    a('s_mov_b32 s28, %d', UNIT)
    a('s_cselect_b32 s28, %d, s28', PSLOT)
    a('s_lshl_b32 s31, s4, 2')
    a('s_add_u32 s31, s31, s3')
    a('s_mul_i32 s35, s31, 7168')
    a('s_add_u32 s35, s35, 0x%x', DD + 2 * DSEG)
    a('v_lshl_add_u32 v7, v0, 7, s35')
    a('s_lshl_b32 s31, s31, 9')
    a('s_add_u32 s31, s31, 0x%x', XF + 2 * XSEG)
    a('v_and_b32 v3, 3, v0')
    a('v_lshl_add_u32 v3, v3, 7, s31')
    if 'tx' in dev: a('v_cmp_gt_u32 s[62:63], 0, v0'); a('s_nop 1')
    a('v_cndmask_b32 v7, v3, v7, s[62:63]')
    a('s_mov_b32 s38, 0x%x', OOB)
    a('s_branch %s', lj)
    a.label(lv)
    a('s_mul_i32 s30, s3, 4*28')
    a('s_lshl_b32 s32, s4, 1')
    a('s_add_u32 s30, s30, s32')
    a('s_mul_i32 s30, s30, 14336')
    a('s_add_u32 s30, s30, 0x%x', WF_C)
    a('s_mul_i32 s29, s3, 14336')
    a('s_add_u32 s29, s29, %d', L_W)
    wload(ORD_C, lambda t: ((t & 3) * 28 + (t >> 2)) * 14336)
    a('v_add_u32 v14, s29, v1')
    for r, i in zip((4, 5, 7, 12, 13), range(5)): a('v_add_u32 v%d, s%d, v1', r, 17 + i)
    bits(6, [(4, 2, 7), (2, 2, 5), (0, 1, 4)])
    a('s_mul_i32 s30, s3, 1536')
    a('s_sub_u32 s30, 8192, s30')
    a('v_add_u32 v6, s30, v6')
    a('v_mov_b32 v18, 0x%x', OOB)
    a('v_cndmask_b32 v6, v18, v6, s[58:59]')
    bits(8, [(4, 2, 7), (0, 4, 2)])
    a('s_lshl_b32 s30, s3, 9')
    a('s_add_u32 s30, s30, %d', L_C)
    a('v_add_u32 v8, s30, v8')
    a('v_add_u32 v10, 2048, v8')
    bits(9, [(4, 2, 7), (2, 1, 6), (0, 2, 4), (3, 1, 3)])
    a('s_and_b32 s31, s3, 1')
    a('s_lshl_b32 s30, s31, 11')
    a('s_add_u32 s30, s30, %d', L_C)
    a('v_add_u32 v9, s30, v9')
    a('s_lshl_b32 s30, s4, 9')
    a('s_lshl_b32 s31, s31, 8')
    a('s_add_u32 s30, s30, s31')
    a('v_lshl_add_u32 v11, v0, 2, s30')
    a('s_lshl_b32 s30, s3, 12')
    a('s_lshl_b32 s31, s4, 15')
    a('s_add_u32 s35, s30, s31')
    a('s_add_u32 s35, s35, 0x%x', DD)
    a('s_add_u32 s37, s30, %d', L_D)
    dwait('0')
    a('s_mov_b32 m0, s37')
    a('s_add_u32 s30, s35, 16384')
    for grp in ddma('s35', 's30'):
        for i in grp: a(i)
        a('s_nop 0')
    a('s_add_u32 s35, s35, %d', DSEG)
    a('s_mov_b32 s38, s35')
    a('s_add_u32 s6, s35, 16384')
    a('s_mov_b32 s13, 1')
    a.label(lj)
    lp, l2 = a.new('xc'), a.new('xo')
    a('v_min_u32 v20, %d, v0', NTEAM - 1)
    a('v_lshlrev_b32 v20, 2, v20')
    a('s_mov_b32 s14, 0')
    a.label(lp)
    a('buffer_load_dword v3, v20, s[44:47], 0 offen sc1')
    a('s_waitcnt vmcnt(0)')
    a('v_cmp_eq_u32 vcc, 0, v3')
    a('s_cbranch_vccz %s', l2)
    spin(lp)
    a.label(l2)
    a('v_readfirstlane_b32 s31, v3')
    a('s_mov_b32 s12, 0')
    a('s_add_u32 s32, s15, 0x%x', MEMX)
    a('s_add_u32 s33, s16, 0x%x', MEMX)
    a('v_cmp_ne_u32 vcc, s31, v3')
    a('s_waitcnt lgkmcnt(0)')
    if dev:
        lc = a.new('cal')
        a('s_memrealtime s[82:83]')
        a('s_waitcnt lgkmcnt(0)')
        a.label(lc)
        a('s_memrealtime s[84:85]')
        a('s_memtime s[86:87]')
        a('s_waitcnt lgkmcnt(0)')
        a('s_cmp_eq_u32 s84, s82')
        a('s_cbranch_scc1 %s', lc)
    if 'slow' in dev: a('s_branch tslow')
    a('s_cbranch_vccnz tslow')
    a('s_cmp_eq_u32 s5, 1')
    a('s_cbranch_scc1 cloopF')
    a('s_branch sloopF')
    a.label('tslow')
    a('s_cmp_eq_u32 s5, 1')
    a('s_cbranch_scc1 cloopS')
    a('s_branch sloopS')
    a.label('tdie')
    a('s_endpgm')

    def loop(role, mode):
        SC = ' sc1' if mode == 'S' else ''
        ORDER = ORD_S if role == 's' else ORD_C
        TACC = 20
        MF = 48 if role == 's' else 52
        SB, TA, SACC = 76, 100, 108
        VB, PF, CACC, DB, RT = 52, 60, 72, 80, 112
        TMP = TA if role == 's' else 19
        tails = []
        a.l.append('.p2align 6')
        a.label(role + 'loop' + mode)
        if dev:
            l = a.new('pp')
            a('s_cmp_eq_u32 s12, 8')
            a('s_cbranch_scc0 %s', l)
            a('s_memtime s[78:79]')
            a('s_memrealtime s[88:89]')
            a.label(l)
        if 'stall' in dev and role == 'c':
            a('s_waitcnt lgkmcnt(0)')
            a('s_mov_b32 s70, s76')
        def mpoll():
            a('buffer_load_dwordx4 %s, v1, s[8:11], s32 offen sc1', V(MF, 4))
            a('buffer_load_dwordx4 %s, v1, s[8:11], s33 offen sc1', V(MF + 4, 4))
        NE = 0
        if role == 'c':
            for x in dev:
                if x.startswith('ne'): NE = int(x[2:])
            dd = ddma('s38', 's6') if 'nod' not in dev else []
            a('s_xor_b32 s37, s37, 0x18000')
            a('s_cmp_lg_u32 s13, 0')
            lslow, lback = a.new('dq'), a.new('db')
            a('s_cbranch_scc1 %s', lslow)
            a.label(lback)
            tails.append(('dw', lslow, lback))
            a('s_mov_b32 m0, s37')
            a('s_nop 0')
            for grp in dd[:NE]:
                for ins in grp: a(ins)
                if len(grp) > 1: a('s_nop 0')
        mpoll()
        for r in range(MF - TACC): a('v_mov_b32 v%d, 0', TACC + r)
        mpoll()
        sc = ['s_and_b32 s30, s12, 3', 's_mul_i32 s22, s30, %d' % PSLOT, 's_add_u32 s22, s22, 0x%x' % PR,
              's_add_u32 s31, s12, 1', 's_mul_i32 s41, s31, %d' % UNIT, 's_and_b32 s31, s31, 3', 's_mul_i32 s42, s31, %d' % UNIT,
              's_add_u32 s42, s42, 0x%x' % MEMX, 's_add_u32 s32, s42, s15', 's_add_u32 s33, s42, s16']
        if role == 's':
            for r in range(12): a('v_mov_b32 v%d, 0', SACC + r)
            for i in range(5): a('v_add_u32 v%d, s%d, v1', TA + 2 + i, 17 + i)
            radr = [TA + 2 + i for i in range(5)]
            sc += ['s_add_u32 s31, s12, 3', 's_and_b32 s31, s31, 3', 's_mul_i32 s24, s31, s28', 's_add_u32 s24, s24, s27',
                   's_min_u32 s24, s24, 0x%x' % OOB]
        else:
            radr = [4, 5, 7, 12, 13]
            sc += ['s_lshl_b32 s31, s3, 11', 's_add_u32 s43, s22, s31', 's_add_u32 s41, s41, 0x%x' % MEME, 's_xor_b32 s30, s37, 0x18000']
        if 'md3' in dev and role == 's': mpoll()
        a('s_mov_b32 s14, 0')
        def smf(i):
            t, lam = ORDER[i]
            a('v_smfmac_f32_16x16x64_bf16 %s, %s, %s, v2', V(TACC + 4 * t, 4), V(MF + 4 * lam, 4), Wreg(i))
        lp, lf = a.new('mp'), a.new('mf')
        a('s_branch %s', lp)
        a.label(lf)
        for x in dev:
            if x.startswith('ms' + role): a('s_sleep %d', int(x[3:]))
        mpoll()
        a('s_add_u32 s14, s14, 1')
        a('s_cmp_lt_u32 s14, %d', SPIN)
        a('s_cbranch_scc0 tdie')
        a.label(lp)
        a('s_waitcnt vmcnt(%d)', 4 if 'md3' in dev and role == 's' else 2)
        a('v_max3_u32 v3, v%d, v%d, v%d', MF, MF + 1, MF + 2)
        a('v_max3_u32 v%d, v%d, v%d, v%d', TMP, MF + 3, MF + 4, MF + 5)
        a('v_max3_u32 v3, v%d, v%d, v3', MF + 6, MF + 7)
        a('v_max_u32 v3, v%d, v3', TMP)
        a('v_cmp_eq_u32 vcc, -1, v3')
        if 'm0' in dev:
            a('ds_write_b128 v16, %s', V(MF, 4))
            a('ds_write_b128 v17, %s', V(MF + 4, 4))
        a('s_cbranch_vccnz %s', lf)
        stamp(0)
        N = len(ORDER)
        gm = [[] for _ in range(N + 8)]
        gv = [[] for _ in range(N + 8)]
        pre = [[] for _ in range(N + 8)]
        rd = ['ds_read_b128 %s, v%d' % (V(MF + 8 + 4 * i, 4), radr[i]) for i in range(5)]
        gv[2].append('v_lshlrev_b32 v3, 2, v0')
        if 'm0' not in dev:
            gm[0].append('ds_write_b128 v16, %s' % V(MF, 4))
            gm[1].append('ds_write_b128 v17, %s' % V(MF + 4, 4))
        gm[5] += ['s_waitcnt lgkmcnt(0)', 's_barrier', rd[0]]
        for i in range(1, 5): gm[5 + i].append(rd[i])
        for k in range(0, len(sc), 2): gv[8 + k // 2] += sc[k:k + 2]
        def place(ins, lo):
            k = lo
            while gm[k]: k += 1
            gm[k] += ins if isinstance(ins, list) else [ins]
            return k
        if role == 's':
            B0 = 21
            def epi(t):
                c = TACC + 4 * t
                return (['v_add_f32 v%d, v%d, v%d' % (c, c, c + 2), 'v_add_f32 v%d, v%d, v%d' % (c + 1, c + 1, c + 3),
                         'v_cvt_pk_bf16_f32 v%d, v%d, v%d' % (c, c, c + 1)], ['ds_write_b32 v4, v%d offset:%d' % (c, 256 * t)])
            for t in range(6):
                v, m = epi(t)
                for i, ins in enumerate(v): gv[B0 + 4 * t + 7 + i].append(ins)
                gm[B0 + 4 * t + 10].append(m[0])
            pre[14].append('s_waitcnt lgkmcnt(6)')
            pre[B0].append('s_waitcnt lgkmcnt(9)')
            place('ds_read_b64_tr_b16 %s, v5' % V(TA, 2), B0 + 23)
            place('ds_read_b64_tr_b16 %s, v5 offset:128' % V(TA + 2, 2), B0 + 24)
            def brd(step, xb0, xb1, mb):
                r = []
                for kt, b in ((0, xb0), (1, xb1)):
                    for hh in range(2):
                        r.append('ds_read_b128 %s, v6 offset:%d' % (V(b + 4 * hh, 4), kt * 14336 + (2 * step + hh) * 1024))
                ad = 'v8' if step == 0 else 'v9'
                for hh in range(2):
                    for qq in range(2):
                        r.append('ds_read2_b32 %s, %s offset0:%d offset1:%d' % (V(mb + 4 * hh + 2 * qq, 2), ad, 128 * hh + qq, 128 * hh + qq + 8))
                return r
            gm[10].append('buffer_load_dword v18, v3, s[8:11], s49 offen sc1')
            gm[11].append('buffer_load_dword v19, v7, s[8:11], s38 offen' if 'notouch' not in dev else 'buffer_load_dword v19, v3, s[8:11], s49 offen sc1')
            for ins in brd(0, SB, SB + 8, SB + 16): place(ins, 12)
            b1 = brd(1, TACC, TACC + 8, MF)
            k = place(['s_waitcnt vmcnt(2)', b1[4]], 20)
            for ins in b1[5:]: place(ins, k)
            for ins in b1[0:2]: place(ins, B0 + 15)
            for ins in b1[2:4]: place(ins, B0 + 23)
        else:
            pre[16].append('s_waitcnt lgkmcnt(4)')
            pre[24].append('s_waitcnt lgkmcnt(0)')
            sp = 4
            for x in dev:
                if x.startswith('sp'): sp = int(x[2:])
            rest = dd[NE:]
            for i, grp in enumerate(rest): gm[12 + sp * i] += grp
            gm[10].append('buffer_load_dword v18, v3, s[8:11], s49 offen sc1')
            wr = ['ds_read_b128 %s, v14 offset:%d' % (V(CSPILL[i >> 1] + 4 * (i & 1), 4), 1024 * i) for i in range(14)]
            for ins in wr[:10]: place(ins, 24)
            k = 38
            while gm[k]: k += 1
            younger = sum(1 for kk in range(k) for x in gm[kk] if x.startswith('buffer_'))
            k = place(['s_waitcnt vmcnt(%d)' % younger, wr[10]], 38)
            for ins in wr[11:]: place(ins, k)
            pre[49].append('s_waitcnt lgkmcnt(0)')
            gv[20].append('v_add_u32 v15, s30, v1')
        for k in range(N):
            for ins in pre[k]: a(ins)
            smf(k)
            for ins in gm[k] + gv[k]: a(ins)
        stamp(1)
        if role == 's':
            a('s_waitcnt lgkmcnt(3)')
            for kt in range(3):
                a('v_smfmac_f32_16x16x64_bf16 %s, %s, %s, v2', V(SACC + 4 * kt, 4), V(TA, 4), V(SB + 8 * kt, 8))
                for ins in gm[N + kt] + gv[N + kt]: a(ins)
            assert not any(gm[N + 3:]) and not any(gv[N + 3:])
            v, m = epi(6)
            for ins in v + m: a(ins)
            a('ds_read_b64_tr_b16 %s, v5 offset:1024', V(TA + 4, 2))
            a('ds_read_b64_tr_b16 %s, v5 offset:1152', V(TA + 6, 2))
            a('s_cmp_eq_u32 s3, 0')
            a('s_waitcnt lgkmcnt(0)')
            for kt, b in enumerate((TACC, TACC + 8, MF)):
                a('v_smfmac_f32_16x16x64_bf16 %s, %s, %s, v2', V(SACC + 4 * kt, 4), V(TA + 4, 4), V(b, 8))
            a('s_nop 5')
            for kt in range(3):
                c = SACC + 4 * kt
                a('v_add_f32 v%d, v%d, v%d', c, c, c + 2)
                a('v_add_f32 v%d, v%d, v%d', c + 1, c + 1, c + 3)
                a('ds_write2_b32 v10, v%d, v%d offset0:%d offset1:%d', c, c + 1, 16 * kt, 16 * kt + 96)
            lns, ljn = a.new('ns'), a.new('jn')
            a('s_cbranch_scc0 %s', lns)
            tails.append(('nv', lns, ljn))
            a('s_waitcnt lgkmcnt(0)')
            a('s_barrier')
            stamp(2)
            for w in range(4):
                a('ds_read_b128 %s, v11 offset:%d', V(76 + 8 * w, 4), 3072 * w)
                a('ds_read_b64 %s, v15 offset:%d', V(80 + 8 * w, 2), 3072 * w + 128)
            a('s_waitcnt lgkmcnt(4)')
            for i in range(3): a('v_pk_add_f32 %s, %s, %s', V(76 + 2 * i, 2), V(76 + 2 * i, 2), V(84 + 2 * i, 2))
            a('s_waitcnt lgkmcnt(0)')
            for i in range(3): a('v_pk_add_f32 %s, %s, %s', V(92 + 2 * i, 2), V(92 + 2 * i, 2), V(100 + 2 * i, 2))
            for i in range(3): a('v_pk_add_f32 %s, %s, %s', V(76 + 2 * i, 2), V(76 + 2 * i, 2), V(92 + 2 * i, 2))
            a('v_max3_f32 v84, v76, v77, v78')
            a('v_max3_f32 v85, v79, v80, v81')
            a('v_max_f32 v84, v84, v85')
            DP = ('quad_perm:[1,0,3,2]', 'quad_perm:[2,3,0,1]', 'row_half_mirror')
            for ctl in DP:
                a('s_nop 1')
                a('v_max_f32_dpp v84, v84, v84 %s row_mask:0xf bank_mask:0xf', ctl)
            for i in range(6): a('v_sub_f32 v%d, v%d, v84', 76 + i, 76 + i)
            for i in range(6): a('v_exp_f32 v%d, v%d', 76 + i, 76 + i)
            a('v_add_f32 v85, v76, v77')
            a('v_add_f32 v86, v78, v79')
            a('v_add_f32 v87, v80, v81')
            a('v_add_f32 v85, v85, v86')
            a('v_fmac_f32 v85, v87, v14')
            for ctl in DP:
                a('s_nop 1')
                a('v_add_f32_dpp v85, v85, v85 %s row_mask:0xf bank_mask:0xf', ctl)
            a('v_rcp_f32 v85, v85')
            a('s_nop 0')
            for i in range(4): a('v_mul_f32 v%d, v%d, v85', 76 + i, 76 + i)
            for i in range(2): a('v_cvt_pk_bf16_f32 v%d, |v%d|, |v%d|', 88 + i, 76 + 2 * i, 77 + 2 * i)
            a('buffer_store_dwordx2 v[88:89], v12, s[8:11], s22 offen' + SC)
            for i in range(4, 6): a('v_mul_f32 v%d, v%d, v85', 76 + i, 76 + i)
            a('v_cvt_pk_bf16_f32 v90, |v80|, |v81|')
            a('buffer_store_dword v90, v13, s[8:11], s22 offen' + SC)
            stamp(3)
            a('s_waitcnt vmcnt(3)')
            a.label(ljn)
            a('s_barrier')
            if 'nox' not in dev: xdma()
            if 'stall' in dev:
                a('s_waitcnt vmcnt(0)')
                stamp(4)
            a('v_add_u32 v7, %d, v7', XSEG)
            a('s_mov_b64 exec, s[62:63]')
            a('v_add_u32 v7, %d, v7', DSEG - XSEG)
            a('s_mov_b64 exec, -1')
            a('s_add_u32 s31, s12, 3')
            fcheck(18, 3, 's31')
            a('s_cselect_b32 s38, 0x%x, 0', OOB)
            a('s_cmp_gt_u32 s31, 62')
            a('s_cselect_b32 s38, 0x%x, s38', OOB)
            if 'now' not in dev: a('s_waitcnt vmcnt(0)')
            for x in dev:
                if x.startswith('ds'): a('s_sleep %d', int(x[2:]))
        else:
            assert not any(gm[N:]) and not any(gv[N:])
            def pld():
                a('buffer_load_dwordx4 %s, v6, s[8:11], s43 offen sc1', V(PF, 4))
                a('buffer_load_dwordx4 %s, v1, s[8:11], s43 offen sc1', V(PF + 4, 4))
                a('buffer_load_dwordx4 %s, v1, s[8:11], s43 offen offset:1024 sc1', V(PF + 8, 4))
            for i in range(8): a('ds_read_b128 %s, v15 offset:%d', V(DB + 4 * i, 4), 1024 * (i & 3) + 16384 * (i >> 2))
            pld()
            for t in range(8):
                c = TACC + 4 * t
                a('v_add_f32 v%d, v%d, v%d', c, c, c + 2)
                a('v_add_f32 v%d, v%d, v%d', c + 1, c + 1, c + 3)
                a('v_cvt_pk_bf16_f32 v%d, v%d, v%d', VB + t, c, c + 1)
            a('s_waitcnt vmcnt(3)')
            a('s_add_u32 s35, s35, %d', DSEG)
            a('s_add_u32 s31, s12, 2')
            fcheck(18, 3, 's31')
            a('s_cselect_b32 s13, 1, 0')
            a('s_add_u32 s6, s35, 16384')
            a('s_cmp_gt_u32 s31, 62')
            a('s_cselect_b32 s38, 0x%x, s35', OOB)
            a('s_cselect_b32 s6, 0x%x, s6', OOB)
            a('s_cselect_b32 s13, 0, s13')
            a('s_mov_b32 s14, 0')
            stamp(4)
            a('s_waitcnt lgkmcnt(0)')
            lr, lq = a.new('pr'), a.new('pq')
            a.label(lr)
            for x in dev:
                if x.startswith('ps'): a('s_sleep %d', int(x[2:]))
            if 'pd1' not in dev: pld()
            a('s_add_u32 s14, s14, 1')
            a('s_cmp_lt_u32 s14, %d', SPIN)
            a('s_cbranch_scc0 tdie')
            if 'pd1' not in dev: a('s_waitcnt vmcnt(3)')
            else:
                a('s_waitcnt vmcnt(0)')
                pld()
            a('v_or3_b32 v3, v%d, v%d, v%d', PF, PF + 1, PF + 2)
            a('v_or3_b32 v19, v%d, v%d, v%d', PF + 3, PF + 4, PF + 7)
            a('v_or3_b32 v3, v%d, v%d, v3', PF + 8, PF + 11)
            a('v_or_b32 v3, v19, v3')
            a('v_cmp_gt_i32 vcc, 0, v3')
            a('v_mfma_f32_16x16x32_bf16 %s, %s, %s, 0', V(CACC, 4), V(PF, 4), V(VB, 4))
            a('s_cmp_lt_u32 s3, 2')
            a('s_cbranch_vccnz %s', lr)
            a('v_smfmac_f32_16x16x64_bf16 %s, %s, %s, v2', V(CACC, 4), V(PF + 4, 4), V(DB, 8))
            a('v_smfmac_f32_16x16x64_bf16 %s, %s, %s, v2', V(CACC, 4), V(PF + 8, 4), V(DB + 8, 8))
            a('v_mfma_f32_16x16x32_bf16 %s, %s, %s, 0', V(CACC + 4, 4), V(PF, 4), V(VB + 4, 4))
            a('v_smfmac_f32_16x16x64_bf16 %s, %s, %s, v2', V(CACC + 4, 4), V(PF + 4, 4), V(DB + 16, 8))
            a('v_smfmac_f32_16x16x64_bf16 %s, %s, %s, v2', V(CACC + 4, 4), V(PF + 8, 4), V(DB + 24, 8))
            stamp(5)
            a('v_add_f32 v%d, v%d, v%d', CACC, CACC, CACC + 2)
            a('v_add_f32 v%d, v%d, v%d', CACC + 1, CACC + 1, CACC + 3)
            a('ds_write2_b32 v8, v%d, v%d offset0:0 offset1:16', CACC, CACC + 1)
            a('s_nop 4')
            a('v_add_f32 v%d, v%d, v%d', CACC + 4, CACC + 4, CACC + 6)
            a('v_add_f32 v%d, v%d, v%d', CACC + 5, CACC + 5, CACC + 7)
            a('ds_write2_b32 v10, v%d, v%d offset0:0 offset1:16', CACC + 4, CACC + 5)
            lnr, ljr = a.new('nr'), a.new('jr')
            a('s_cbranch_scc0 %s', lnr)
            tails.append(('ns', lnr, ljr))
            a('s_waitcnt lgkmcnt(0)')
            a('s_barrier')
            for w in range(4): a('ds_read_b64 %s, v9 offset:%d', V(RT + 2 * w, 2), 512 * w)
            a('s_waitcnt lgkmcnt(2)')
            a('v_pk_add_f32 %s, %s, %s', V(RT, 2), V(RT, 2), V(RT + 2, 2))
            a('s_waitcnt lgkmcnt(0)')
            a('v_pk_add_f32 %s, %s, %s', V(RT + 4, 2), V(RT + 4, 2), V(RT + 6, 2))
            a('v_pk_add_f32 %s, %s, %s', V(RT, 2), V(RT, 2), V(RT + 4, 2))
            a('v_cvt_pk_bf16_f32 v%d, v%d, v%d', RT, RT, RT + 1)
            a('v_min_u32 v%d, -2, v%d', RT, RT)
            a('buffer_store_dword v%d, v11, s[8:11], s42 offen%s', RT, SC)
            stamp(6)
            a('s_barrier')
            if 'noext' not in dev: a('buffer_store_dword v%d, v11, s[8:11], s41 offen sc1', RT)
            a.label(ljr)
            for x in dev:
                if x.startswith('dc'): a('s_sleep %d', int(x[2:]))
        if dev:
            ld = a.new('dv')
            a('s_cmp_eq_u32 s12, 40')
            a('s_cbranch_scc0 %s', ld)
            a('s_memtime s[80:81]')
            a('s_memrealtime s[82:83]')
            a('s_waitcnt lgkmcnt(0)')
            a('s_sub_u32 s78, s80, s78')
            a('s_sub_u32 s88, s82, s88')
            a('s_lshl_b32 s30, s5, 4')
            a('s_add_u32 s30, s30, s4')
            a('s_lshl_b32 s30, s30, 2')
            a('s_add_u32 s30, s30, s3')
            a('s_lshl_b32 s30, s30, 6')
            a('s_add_u32 s30, s30, 0x3F00000')
            for kk in range(13):
                a('v_mov_b32 v99, s%d', 64 + 2 * kk)
                a('buffer_store_dword v99, off, s[8:11], s30 offset:%d', 4 * kk)
                a('s_nop 1')
            a.label(ld)
        a('s_add_u32 s12, s12, 1')
        a('s_cmp_lt_u32 s12, 63')
        a('s_cbranch_scc1 %sloop%s', role, mode)
        if dev:
            a('s_memrealtime s[82:83]')
            a('s_waitcnt lgkmcnt(0)')
            a('s_lshl_b32 s30, s2, 4')
            a('s_add_u32 s30, s30, 0x3F10000')
            for kk, r in enumerate((90, 84, 82)):
                a('v_mov_b32 v99, s%d', r)
                a('buffer_store_dword v99, off, s[8:11], s30 offset:%d', 4 * kk)
                a('s_nop 1')
        a('s_endpgm')
        for p in tails:
            a.label(p[1])
            if p[0] == 'dw':
                a('s_add_u32 s31, s12, 1')
                dwait('s31')
                a('s_branch %s', p[2])
            elif p[0] == 'nv':
                a('s_waitcnt lgkmcnt(0)')
                a('s_barrier')
                for r in range(4): a('v_mov_b32 v%d, -1', 92 + r)
                a('buffer_store_dwordx4 v[92:95], v1, s[8:11], s24 offen' + SC)
                a('s_waitcnt vmcnt(2)')
                a('s_branch %s', p[2])
            elif p[0] == 'ns':
                a('s_waitcnt lgkmcnt(0)')
                a('s_barrier')
                a('s_barrier')
                a('s_branch %s', p[2])
    for mode in 'FS':
        for role in 'sc': loop(role, mode)
```

```python
from common import *
SPIN = 400000
XB = 28672 + 128
KT1 = 14336 + 64
DST = 'sc1'
DEV = False
def tl(a, k):
    if DEV:
        a('s_memrealtime s[82:83]')
        a('s_waitcnt lgkmcnt(0)')
        a('s_lshl_b32 s84, s2, 4')
        a('s_add_u32 s84, s84, 0x3F10000')
        a('v_mov_b32 v4, s82')
        a('buffer_store_dword v4, off, s[8:11], s84 offset:%d', 4 * k)
        a('s_nop 1')

NSET_D, NSET_F, NSET_X, NSET_O = 2, 2, 3, 13

def lane_consts(a):
    a('v_lshlrev_b32 v1, 4, v0')
    a('v_and_b32 v2, 15, v0')
    a('v_lshrrev_b32 v3, 4, v0')

def x_setup(a, lx):
    a('s_mul_i32 s30, s3, 7168')
    a('s_mul_i32 s34, s12, %d', XSEG)
    a('s_add_u32 s34, s34, s30')
    a('s_add_u32 s34, s34, 0x%x', XF)
    a('s_lshr_b32 s31, s3, 1')
    a('s_lshl_b32 s31, s31, 6')
    a('s_add_u32 s36, s30, s31')
    a('s_add_u32 s36, s36, %d', lx)
    a('s_mov_b32 s50, %d', XB)

def x_dma(a):
    a('s_mov_b32 m0, s36')
    a('s_add_u32 s30, s34, 4096')
    for i in range(4): a('buffer_load_dwordx4 v1, s[8:11], s34 offen offset:%d lds', 1024 * i)
    a('s_add_u32 m0, s36, 4096')
    a('s_nop 0')
    for i in range(3): a('buffer_load_dwordx4 v1, s[8:11], s30 offen offset:%d lds', 1024 * i)

def x_next(a, nset):
    a('s_add_u32 s34, s34, %d', XSEG * nset)
    a('s_add_u32 s36, s36, s50')

def perm_rows_addr(a, dst, lx, gmul_shift, tmp):
    a('v_lshrrev_b32 v%d, 3, v2', tmp)
    a('s_movk_i32 s30, %d', KT1)
    a('v_mul_u32_u24 v%d, s30, v%d', dst, tmp)
    a('v_bfe_u32 v%d, v0, 2, 1', tmp)
    a('v_lshl_add_u32 v%d, v%d, 7, v%d', dst, tmp, dst)
    a('v_and_b32 v%d, 3, v0', tmp)
    a('v_lshl_add_u32 v%d, v%d, 4, v%d', dst, tmp, dst)
    a('v_add_u32 v%d, %d, v%d', dst, lx, dst)

def publish(a, word_sgpr_off, val):
    l = a.new('pb')
    a('s_cmp_eq_u32 s3, 0')
    a('s_cbranch_scc0 %s', l)
    a('v_mov_b32 v4, %s', val)
    a('v_mov_b32 v5, 0')
    a('buffer_store_dword v4, v5, s[8:11], %s offen sc1', word_sgpr_off)
    a.label(l)

def sg_loop(a, name, nset, nst, mfma_fn, epi_fn, rd_fn, tail_fn=None):
    XR = 64
    x_dma(a)
    a('s_mov_b32 s13, 0')
    a('s_waitcnt vmcnt(0)')
    tl(a, 1)
    a('s_branch %s_in', name)
    a.label(name + '_loop')
    a('s_waitcnt vmcnt(%d)', nst)
    a.label(name + '_in')
    a('s_barrier')
    l = a.new('np')
    a('s_cmp_lt_u32 s13, 2')
    a('s_cbranch_scc1 %s', l)
    a('s_sub_u32 s31, s13, 1')
    publish(a, 's35', 's31')
    a.label(l)
    x_next(a, nset)
    x_dma(a)
    def rd(j):
        for mt in range(2): rd_fn(XR + 8 * (j % 4) + 4 * mt, j, mt)
    for j in range(3): rd(j)
    for j in range(14):
        if j + 3 < 14: rd(j + 3)
        a('s_waitcnt lgkmcnt(%d)', 2 * min(3, 13 - j))
        mfma_fn(j, XR + 8 * (j % 4))
    a('v_add_u32 v6, s50, v6')
    a('s_sub_u32 s50, 0, s50')
    a('s_nop 6')
    epi_fn()
    a('s_add_u32 s13, s13, 1')
    a('s_add_u32 s12, s12, %d', nset)
    a('s_cmp_lt_u32 s12, 64')
    a('s_cbranch_scc1 %s_loop', name)
    a('s_waitcnt vmcnt(0)')
    a('s_barrier')
    publish(a, 's35', 's13')
    tl(a, 2)
    if tail_fn is None: a('s_endpgm')
    else: tail_fn()

def mem_fetch(a, KO, va0, va1):
    lp, ok = a.new('xm'), a.new('xk')
    a('s_mov_b32 s14, 0')
    a.label(lp)
    a('buffer_load_dwordx4 %s, v1, s[8:11], s32 offen sc1', V(KO, 4))
    a('buffer_load_dwordx4 %s, v1, s[8:11], s33 offen sc1', V(KO + 4, 4))
    a('s_waitcnt vmcnt(0)')
    a('v_max3_u32 v4, v%d, v%d, v%d', KO, KO + 1, KO + 2)
    a('v_max3_u32 v5, v%d, v%d, v%d', KO + 3, KO + 4, KO + 5)
    a('v_max3_u32 v4, v%d, v%d, v4', KO + 6, KO + 7)
    a('v_max_u32 v4, v4, v5')
    a('v_cmp_eq_u32 vcc, -1, v4')
    a('s_cbranch_vccz %s', ok)
    a('s_sleep 2')
    a('s_add_u32 s14, s14, 1')
    a('s_cmp_lt_u32 s14, %d', SPIN)
    a('s_cbranch_scc1 %s', lp)
    a('s_endpgm')
    a.label(ok)
    a('ds_write_b128 v%d, %s', va0, V(KO, 4))
    a('ds_write_b128 v%d, %s', va1, V(KO + 4, 4))

def own_frags(a, lm, va0, va1):
    a('s_lshl_b32 s15, s3, 11')
    a('s_add_u32 s16, s15, 1024')
    a('s_cmp_eq_u32 s3, 3')
    a('s_cselect_b32 s16, 0, s16')
    a('s_add_u32 s31, s15, %d', lm)
    a('v_add_u32 v%d, s31, v1', va0)
    a('s_add_u32 s31, s16, %d', lm)
    a('v_add_u32 v%d, s31, v1', va1)

def gen_d(a, vtail=True):
    a.label('role_d')
    tl(a, 0)
    a('s_lshr_b32 s6, s30, 1')
    a('s_and_b32 s12, s30, 1')
    lane_consts(a)
    a('s_lshl_b32 s31, s3, 2')
    a('s_mul_i32 s31, s31, 28')
    a('s_add_u32 s31, s31, s6')
    a('s_mul_i32 s31, s31, 14336')
    a('s_add_u32 s31, s31, 0x%x', WF_C)
    for hh in range(4):
        for j in range(14):
            if j % 4 == 0: a('s_add_u32 s32, s31, %d', hh * 28 * 14336 + j * 1024)
            a('buffer_load_dwordx4 %s, v1, s[8:11], s32 offen offset:%d', A((hh * 14 + j) * 4, 4), (j % 4) * 1024)
    x_setup(a, 0)
    perm_rows_addr(a, 6, 0, 0, 7)
    a('v_lshl_add_u32 v6, v3, 8, v6')
    a('s_lshl_b32 s35, s12, 7')
    a('s_lshl_b32 s31, s6, 2')
    a('s_add_u32 s35, s35, s31')
    a('s_add_u32 s35, s35, 0x%x', DPROG)
    ACC = 32
    def rd(b, j, mt): a('ds_read_b128 %s, v6 offset:%d', V(b, 4), j * 1024 + mt * 64)
    def mf(j, xb):
        for hh in range(4):
            for mt in range(2):
                c = ACC + (hh * 2 + mt) * 4
                a('v_mfma_f32_16x16x32_bf16 %s, %s, %s, %s', V(c, 4), V(xb + 4 * mt, 4), A((hh * 14 + j) * 4, 4), V(c, 4) if j else '0')
    def epi():
        a('s_mul_i32 s30, s12, %d', DSEG)
        a('s_lshl_b32 s31, s6, 14')
        a('s_add_u32 s30, s30, s31')
        a('s_lshl_b32 s31, s3, 12')
        a('s_add_u32 s30, s30, s31')
        a('s_add_u32 s30, s30, 0x%x', DD)
        for hh in range(4):
            c = ACC + hh * 8
            o = 96 + 4 * hh
            for d in range(4): a('v_cvt_pk_bf16_f32 v%d, v%d, v%d', o + d, c + 2 * d, c + 2 * d + 1)
            a('buffer_store_dwordx4 %s, v1, s[8:11], s30 offen offset:%d %s', V(o, 4), 1024 * hh, DST)
    def tail():
        LM = 65536
        own_frags(a, LM, 9, 10)
        a('v_lshrrev_b32 v4, 1, v3')
        a('v_lshlrev_b32 v8, 8, v4')
        a('v_bfe_u32 v4, v0, 1, 2')
        a('v_lshl_add_u32 v8, v4, 6, v8')
        a('v_and_b32 v4, 1, v0')
        a('v_lshl_add_u32 v8, v4, 4, v8')
        a('v_and_b32 v4, 1, v3')
        a('v_lshl_add_u32 v8, v4, 3, v8')
        a('v_add_u32 v8, %d, v8', LM)
        a('v_lshlrev_b32 v11, 4, v2')
        a('v_lshl_add_u32 v11, v4, 3, v11')
        a('v_lshrrev_b32 v4, 1, v3')
        a('v_lshl_add_u32 v11, v4, 8, v11')
        a('v_cmp_gt_u32 s[60:61], 32, v0')
        a('s_and_b32 s12, s12, 1')
        a('s_lshl_b32 s35, s12, 9')
        a('s_lshl_b32 s31, s6, 4')
        a('s_add_u32 s35, s35, s31')
        a('s_lshl_b32 s31, s3, 2')
        a('s_add_u32 s35, s35, s31')
        a('s_add_u32 s35, s35, 0x%x', VPROG)
        a('s_mov_b32 s13, 0')
        a.label('rv_loop')
        a('s_mul_i32 s39, s12, %d', UNIT)
        a('s_add_u32 s39, s39, 0x%x', MEME)
        a('s_add_u32 s32, s39, s15')
        a('s_add_u32 s33, s39, s16')
        mem_fetch(a, 64, 9, 10)
        a('s_waitcnt lgkmcnt(0)')
        a('s_barrier')
        AF = 120
        for j in range(14):
            if j % 2 == 0 and j: a('v_add_u32 v8, 1024, v8')
            for qq in range(2):
                o = 128 * (j & 1) + qq
                a('ds_read2_b32 %s, v8 offset0:%d offset1:%d', V(AF + 4 * j + 2 * qq, 2), o, o + 8)
            if j % 4 == 3: a('s_waitcnt lgkmcnt(4)')
        a('v_subrev_u32 v8, 6144, v8')
        for r in (8, 9, 10): a('v_xor_b32 v%d, 0x2000, v%d', r, r)
        a('s_waitcnt lgkmcnt(0)')
        for j in range(14):
            for hh in range(4):
                c = ACC + hh * 4
                a('v_mfma_f32_16x16x32_bf16 %s, %s, %s, %s', V(c, 4), V(AF + 4 * j, 4), A((hh * 14 + j) * 4, 4), V(c, 4) if j else '0')
        a('s_mul_i32 s30, s12, %d', VSLOT)
        a('s_lshl_b32 s31, s6, 12')
        a('s_add_u32 s30, s30, s31')
        a('s_lshl_b32 s31, s3, 10')
        a('s_add_u32 s30, s30, s31')
        a('s_add_u32 s30, s30, 0x%x', VE)
        a('s_add_u32 s13, s13, 1')
        a('s_nop 1')
        for hp in range(2):
            c = ACC + hp * 8
            for r in range(4): a('v_cndmask_b32 v%d, v%d, v%d, s[60:61]', c + r, c + 4 + r, c + r)
            a('v_cvt_pk_bf16_f32 v%d, v%d, v%d', 96 + 2 * hp, c, c + 1)
            a('v_cvt_pk_bf16_f32 v%d, v%d, v%d', 97 + 2 * hp, c + 2, c + 3)
            a('buffer_store_dwordx2 %s, v11, s[8:11], s30 offen offset:%d sc1', V(96 + 2 * hp, 2), 512 * hp)
        a('v_mov_b32 v4, s13')
        a('s_waitcnt vmcnt(0)')
        a('buffer_store_dword v4, off, s[8:11], s35 sc1')
        a('s_add_u32 s12, s12, %d', NSET_D)
        a('s_cmp_lt_u32 s12, 64')
        a('s_cbranch_scc1 rv_loop')
        tl(a, 3)
        a('s_endpgm')
    sg_loop(a, 'rd', NSET_D, 4, mf, epi, rd, tail if vtail else None)

def gen_f1(a):
    a.label('role_f1')
    tl(a, 0)
    a('s_lshr_b32 s6, s30, 1')
    a('s_and_b32 s12, s30, 1')
    a('s_load_dwordx4 s[56:59], s[0:1], %d', KA['wg'])
    lane_consts(a)
    RS = 272
    a('s_lshl_b32 s31, s3, 2')
    a('v_add_u32 v4, s31, v3')
    a('s_movk_i32 s30, 3584')
    a('v_mul_u32_u24 v5, s30, v4')
    a('v_lshl_add_u32 v5, v2, 4, v5')
    a('s_movk_i32 s30, %d', RS)
    a('v_mul_u32_u24 v7, s30, v4')
    a('v_lshl_add_u32 v7, v2, 4, v7')
    a('v_add_u32 v8, %d, v7', 14 * 16 * RS)
    a('v_lshrrev_b32 v9, 2, v2')
    a('v_lshl_add_u32 v9, v3, 3, v9')
    a('v_mul_u32_u24 v9, s30, v9')
    a('v_and_b32 v4, 3, v0')
    a('v_lshl_add_u32 v9, v4, 4, v9')
    a('s_lshl_b32 s31, s3, 6')
    a('v_add_u32 v9, s31, v9')
    a('v_add_u32 v10, %d, v9', 7 * 32 * RS)
    a('s_waitcnt lgkmcnt(0)')
    a.srd(16, 56, FBYTES)
    a.srd(20, 58, FBYTES)
    ST = 16
    for mat in range(2):
        a('s_lshl_b32 s31, s6, 8')
        for p in range(28):
            a('buffer_load_dwordx4 %s, v5, s[%d:%d], s31 offen', V(ST + (mat * 28 + p) * 4, 4), 16 + 4 * mat, 19 + 4 * mat)
            if p < 27: a('s_add_u32 s31, s31, %d', 16 * 3584)
    for mat in range(2):
        a('s_waitcnt vmcnt(%d)', 28 if mat == 0 else 0)
        for p in range(28):
            a('ds_write_b128 v%d, %s offset:%d', 7 if p < 14 else 8, V(ST + (mat * 28 + p) * 4, 4), (p % 14) * 16 * RS)
        a('s_waitcnt lgkmcnt(0)')
        a('s_barrier')
        for u in range(2):
            for j in range(14):
                b = ((mat * 2 + u) * 14 + j) * 4
                o = (j % 7) * 32 * RS + u * 8
                a('ds_read_b64_tr_b16 %s, v%d offset:%d', A(b, 2), 9 if j < 7 else 10, o)
                a('ds_read_b64_tr_b16 %s, v%d offset:%d', A(b + 2, 2), 9 if j < 7 else 10, o + 4 * RS)
        a('s_waitcnt lgkmcnt(0)')
        a('s_barrier')
    x_setup(a, 0)
    a('v_mov_b32 v6, v1')
    a('s_lshl_b32 s35, s12, 7')
    a('s_lshl_b32 s31, s6, 2')
    a('s_add_u32 s35, s35, s31')
    a('s_add_u32 s35, s35, 0x%x', HPROG)
    ACC = 32
    def rd(b, j, tt): a('ds_read_b128 %s, v6 offset:%d', V(b, 4), j * 1024 + tt * KT1)
    def mf(j, xb):
        for q in range(4):
            for tt in range(2):
                c = ACC + (tt * 4 + q) * 4
                a('v_mfma_f32_16x16x32_bf16 %s, %s, %s, %s', V(c, 4), A((q * 14 + j) * 4, 4), V(xb + 4 * tt, 4), V(c, 4) if j else '0')
    def epi():
        a('s_mul_i32 s30, s12, %d', VSLOT)
        a('s_lshl_b32 s31, s6, 12')
        a('s_add_u32 s30, s30, s31')
        a('s_lshl_b32 s31, s3, 10')
        a('s_add_u32 s30, s30, s31')
        a('s_add_u32 s30, s30, 0x%x', H1)
        a('s_add_u32 s31, s30, 57344')
        for tt in range(2):
            g = ACC + tt * 16
            u = g + 8
            t = 104
            for i in range(8): a('v_mul_f32 v%d, 0x%x, v%d', t + i, fbits(-LOG2E), g + i)
            for i in range(8): a('v_exp_f32 v%d, v%d', t + i, t + i)
            for i in range(8): a('v_mul_f32 v%d, v%d, v%d', u + i, u + i, g + i)
            for i in range(8): a('v_add_f32 v%d, 1.0, v%d', t + i, t + i)
            for i in range(8): a('v_rcp_f32 v%d, v%d', t + i, t + i)
            a('s_nop 0')
            for i in range(8): a('v_mul_f32 v%d, v%d, v%d', u + i, u + i, t + i)
            o = 96 + 4 * tt
            for d in range(4): a('v_cvt_pk_bf16_f32 v%d, v%d, v%d', o + d, u + 2 * d, u + 2 * d + 1)
            a('buffer_store_dwordx4 %s, v1, s[8:11], s%d offen sc1', V(o, 4), 30 + tt)
    sg_loop(a, 'rf', NSET_F, 2, mf, epi, rd)

def poll_ge(a, voff, soff, vthr, tmp):
    lp, ok = a.new('pl'), a.new('pk')
    a('s_mov_b32 s14, 0')
    a.label(lp)
    a('buffer_load_dword v%d, v%d, s[8:11], %s offen sc1', tmp, voff, soff)
    a('s_waitcnt vmcnt(0)')
    a('v_cmp_lt_u32 vcc, v%d, v%d', tmp, vthr)
    a('s_cbranch_vccz %s', ok)
    a('s_sleep 4')
    a('s_add_u32 s14, s14, 1')
    a('s_cmp_lt_u32 s14, %d', SPIN)
    a('s_cbranch_scc1 %s', lp)
    a('s_endpgm')
    a.label(ok)

def gen_xs(a):
    LX, LM, LP = 0, 2 * XB, 2 * XB + 7168
    a.label('role_xs')
    tl(a, 0)
    a('s_mul_i32 s4, s30, 21846')
    a('s_lshr_b32 s4, s4, 16')
    a('s_mul_i32 s31, s4, 3')
    a('s_sub_u32 s12, s30, s31')
    lane_consts(a)
    def W(t, j):
        i = t * 14 + j
        return A(4 * i, 4) if i < 64 else V(120 + 4 * (i - 64), 4)
    a('s_mul_i32 s31, s4, 28')
    a('s_mul_i32 s32, s3, 7')
    a('s_add_u32 s31, s31, s32')
    a('s_mul_i32 s31, s31, 14336')
    if WF_A: a('s_add_u32 s31, s31, 0x%x', WF_A)
    for i in range(98):
        if i % 4 == 0 and i: a('s_add_u32 s31, s31, 4096')
        a('buffer_load_dwordx4 %s, v1, s[8:11], s31 offen offset:%d', W(i // 14, i % 14), (i % 4) * 1024)
        if i >= 48 and i % 8 == 0: a('s_waitcnt vmcnt(40)')
    x_setup(a, LX)
    a('v_add_u32 v6, %d, v1', LX) if LX else a('v_mov_b32 v6, v1')
    perm_rows_addr(a, 7, LX, 0, 4)
    a('v_lshrrev_b32 v4, 1, v3')
    a('s_mul_i32 s31, s3, 14')
    a('v_add_u32 v4, s31, v4')
    a('v_lshl_add_u32 v7, v4, 8, v7')
    a('v_and_b32 v4, 1, v3')
    a('v_lshl_add_u32 v7, v4, 3, v7')
    a('v_bfe_u32 v4, v0, 1, 2')
    a('v_lshlrev_b32 v8, 6, v4')
    a('v_and_b32 v4, 1, v0')
    a('v_lshl_add_u32 v8, v4, 4, v8')
    a('v_lshl_add_u32 v8, v3, 2, v8')
    a('s_mul_i32 s31, s3, 1792')
    a('s_add_u32 s31, s31, %d', LM)
    a('v_add_u32 v8, s31, v8')
    own_frags(a, LM, 9, 10)
    a('s_mul_i32 s31, s3, 6144')
    a('s_add_u32 s31, s31, %d', LP)
    a('v_add_u32 v11, s31, v1')
    a('s_lshl_b32 s31, s3, 10')
    a('s_add_u32 s31, s31, %d', LP)
    a('v_add_u32 v12, s31, v1')
    a('s_lshl_b32 s31, s3, 4')
    a('v_add_u32 v4, s31, v2')
    a('v_lshlrev_b32 v5, 3, v3')
    a('v_sub_u32 v4, v4, v5')
    for i in range(8): a('v_cmp_gt_i32 s[%d:%d], %d, v4', 64 + 2 * i, 65 + 2 * i, i)
    a('v_cmp_gt_u32 vcc, 2, v3')
    a('v_mov_b32 v13, 0xff800000')
    a('s_nop 0')
    a('v_cndmask_b32 v14, 0, 1.0, vcc')
    a('s_lshl_b32 s31, s4, 11')
    a('s_lshl_b32 s32, s3, 10')
    a('s_add_u32 s31, s31, s32')
    a('v_add_u32 v15, s31, v1')
    a('s_lshr_b32 s31, s4, 2')
    a('s_lshl_b32 s31, s31, 11')
    a('s_add_u32 s31, s31, s32')
    a('s_and_b32 s32, s4, 3')
    a('s_lshl_b32 s32, s32, 8')
    a('s_add_u32 s31, s31, s32')
    a('s_add_u32 s31, s31, 32768')
    a('v_and_b32 v4, 1, v3')
    a('v_lshlrev_b32 v16, 4, v2')
    a('v_lshl_add_u32 v16, v4, 3, v16')
    a('v_add_u32 v16, s31, v16')
    a('s_lshl_b32 s35, s12, 7')
    a('s_lshl_b32 s31, s4, 3')
    a('s_add_u32 s35, s35, s31')
    a('s_lshl_b32 s31, s3, 2')
    a('s_add_u32 s35, s35, s31')
    a('s_add_u32 s35, s35, 0x%x', XPROG)
    a('v_mov_b32 v17, 0')
    a('s_mov_b32 s13, 0')
    x_dma(a)
    ACC, XR, SA, KO = 20, 76, 92, 76
    if DEV: a('s_waitcnt vmcnt(0)')
    tl(a, 1)
    a.label('rx_loop')
    a('s_waitcnt vmcnt(0)')
    a('s_barrier')
    x_next(a, NSET_X)
    x_dma(a)
    def rd(j):
        for tt in range(2): a('ds_read_b128 %s, v6 offset:%d', V(XR + 8 * (j & 1) + 4 * tt, 4), j * 1024 + tt * KT1)
    rd(0)
    for j in range(14):
        if j + 1 < 14: rd(j + 1)
        a('s_waitcnt lgkmcnt(%d)', 2 if j < 13 else 0)
        for t in range(7):
            for tt in range(2):
                c = ACC + (t * 2 + tt) * 4
                a('v_mfma_f32_16x16x32_bf16 %s, %s, %s, %s', V(c, 4), W(t, j), V(XR + 8 * (j & 1) + 4 * tt, 4), V(c, 4) if j else '0')
    a('s_mul_i32 s39, s12, %d', UNIT)
    a('s_add_u32 s39, s39, 0x%x', MEME)
    a('s_add_u32 s32, s39, s15')
    a('s_add_u32 s33, s39, s16')
    def krd(t):
        for ku in range(2): a('ds_read_b64 %s, v7 offset:%d', V(KO + 4 * (t % 4) + 2 * ku, 2), t * 512 + ku * 64)
    for t in range(3): krd(t)
    a('s_nop 2')
    for i in range(14):
        c = ACC + 4 * i
        a('v_cvt_pk_bf16_f32 v%d, v%d, v%d', c, c, c + 1)
        a('v_cvt_pk_bf16_f32 v%d, v%d, v%d', c + 1, c + 2, c + 3)
    a('s_nop 1')
    for t in range(7):
        if t + 3 < 7: krd(t + 3)
        a('s_waitcnt lgkmcnt(%d)', 2 * min(3, 6 - t))
        for ku in range(2):
            for tt in range(2):
                c = SA + (ku * 2 + tt) * 4
                a('v_mfma_f32_16x16x16_bf16 %s, %s, %s, %s', V(c, 4), V(KO + 4 * (t % 4) + 2 * ku, 2), V(ACC + (t * 2 + tt) * 4, 2), V(c, 4) if t else '0')
    a('v_add_u32 v6, s50, v6')
    a('v_add_u32 v7, s50, v7')
    a('s_sub_u32 s50, 0, s50')
    mem_fetch(a, KO, 9, 10)
    for b in range(4): a('ds_write_b128 v11, %s offset:%d', V(SA + 4 * b, 4), 1024 * b)
    a('s_waitcnt lgkmcnt(0)')
    a('s_barrier')
    for t in range(7):
        a('ds_read_b32 v%d, v8 offset:%d', KO + 2 * t, 256 * t)
        a('ds_read_b32 v%d, v8 offset:%d', KO + 2 * t + 1, 256 * t + 32)
    for t in range(7):
        a('s_waitcnt lgkmcnt(%d)', 2 * (6 - t))
        for tt in range(2):
            c = SA + 16 + tt * 4
            a('v_mfma_f32_16x16x16_bf16 %s, %s, %s, %s', V(c, 4), V(KO + 2 * t, 2), V(ACC + (t * 2 + tt) * 4, 2), V(c, 4) if t else '0')
    a('s_nop 7')
    for b in (4, 5): a('ds_write_b128 v11, %s offset:%d', V(SA + 4 * b, 4), 1024 * b)
    a('s_waitcnt lgkmcnt(0)')
    a('s_barrier')
    lsk = a.new('xs')
    a('s_add_u32 s13, s13, 1')
    a('s_cmp_lt_u32 s3, 2')
    a('s_cbranch_scc0 %s', lsk)
    R = 20
    for w in range(4):
        for b in range(3): a('ds_read_b128 %s, v12 offset:%d', V(R + 12 * w + 4 * b, 4), 6144 * w + 2048 * b)
    a('s_mul_i32 s30, s12, %d', PXSEG)
    a('s_add_u32 s30, s30, 0x%x', PX)
    for w in range(1, 4):
        a('s_waitcnt lgkmcnt(%d)', 3 * (3 - w))
        for i in range(6): a('v_pk_add_f32 %s, %s, %s', V(R + 2 * i, 2), V(R + 2 * i, 2), V(R + 12 * w + 2 * i, 2))
    for i in range(8): a('v_cndmask_b32 v%d, v%d, v13, s[%d:%d]', R + i, R + i, 64 + 2 * i, 65 + 2 * i)
    a('v_max3_f32 v4, v%d, v%d, v%d', R, R + 1, R + 2)
    for i in range(3, 11, 2): a('v_max3_f32 v4, v%d, v%d, v4', R + i, R + i + 1)
    a('v_max_f32 v4, v%d, v4', R + 11)
    def xred(op):
        for sw in ('v_permlane32_swap_b32', 'v_permlane16_swap_b32'):
            a('v_mov_b32 v5, v4')
            a('s_nop 1')
            a('%s v4, v5', sw)
            a('%s v4, v4, v5', op)
    xred('v_max_f32')
    for i in range(12): a('v_sub_f32 v%d, v%d, v4', R + i, R + i)
    for i in range(12): a('v_exp_f32 v%d, v%d', R + i, R + i)
    a('v_add_f32 v4, v%d, v%d', R, R + 1)
    for i in range(2, 8): a('v_add_f32 v4, v%d, v4', R + i)
    for i in range(8, 12): a('v_fmac_f32 v4, v%d, v14', R + i)
    xred('v_add_f32')
    a('v_rcp_f32 v4, v4')
    a('s_nop 0')
    for i in range(12): a('v_mul_f32 v%d, v%d, v4', R + i, R + i)
    for d in range(6): a('v_cvt_pk_bf16_f32 v%d, v%d, v%d', 40 + d, R + 2 * d, R + 2 * d + 1)
    a('buffer_store_dwordx4 v[40:43], v15, s[8:11], s30 offen sc1')
    a('buffer_store_dwordx2 v[44:45], v16, s[8:11], s30 offen sc1')
    a('v_mov_b32 v4, s13')
    a('s_waitcnt vmcnt(0)')
    a('buffer_store_dword v4, v17, s[8:11], s35 offen sc1')
    a.label(lsk)
    a('s_add_u32 s12, s12, %d', NSET_X)
    a('s_cmp_lt_u32 s12, 64')
    a('s_cbranch_scc1 rx_loop')
    tl(a, 2)
    a('s_endpgm')

def gen_fin(a):
    a.label('role_fin')
    tl(a, 0)
    a('s_mul_i32 s12, s30, 9363')
    a('s_lshr_b32 s12, s12, 16')
    a('s_mul_i32 s31, s12, 7')
    a('s_sub_u32 s6, s30, s31')
    a('s_load_dwordx2 s[56:57], s[0:1], %d', KA['wd'])
    a('s_load_dwordx2 s[58:59], s[0:1], %d', KA['out'])
    lane_consts(a)
    RS = 144
    a('v_lshrrev_b32 v4, 3, v0')
    a('v_and_b32 v5, 7, v0')
    a('s_movk_i32 s30, 896')
    a('v_mul_u32_u24 v6, s30, v4')
    a('v_lshl_add_u32 v6, v5, 4, v6')
    a('s_movk_i32 s30, %d', RS)
    a('v_mul_u32_u24 v7, s30, v4')
    a('v_lshl_add_u32 v7, v5, 4, v7')
    a('s_mul_i32 s31, s3, %d', 224 * RS)
    a('v_add_u32 v7, s31, v7')
    a('v_lshrrev_b32 v8, 2, v2')
    a('v_lshl_add_u32 v8, v3, 3, v8')
    a('v_mul_u32_u24 v8, s30, v8')
    a('v_and_b32 v4, 3, v0')
    a('v_lshl_add_u32 v8, v4, 3, v8')
    a('v_add_u32 v8, s31, v8')
    a('s_waitcnt lgkmcnt(0)')
    a.srd(16, 56, FBYTES)
    a.srd(20, 58, XBYTES)
    ST = 16
    a('s_mul_i32 s31, s3, %d', 448 * 896)
    a('s_lshl_b32 s32, s6, 7')
    a('s_add_u32 s31, s31, s32')
    for p in range(56):
        a('buffer_load_dwordx4 %s, v6, s[16:19], s31 offen', V(ST + 4 * p, 4))
        if p < 55: a('s_add_u32 s31, s31, %d', 8 * 896)
    for rnd in range(2):
        a('s_waitcnt vmcnt(%d)', 28 if rnd == 0 else 0)
        for p in range(28): a('ds_write_b128 v7, %s offset:%d', V(ST + 4 * (rnd * 28 + p), 4), p * 8 * RS)
        for jj in range(7):
            for t in range(4):
                b = ((rnd * 7 + jj) * 4 + t) * 4
                a('ds_read_b64_tr_b16 %s, v8 offset:%d', A(b, 2), jj * 32 * RS + t * 32)
                a('ds_read_b64_tr_b16 %s, v8 offset:%d', A(b + 2, 2), jj * 32 * RS + t * 32 + 4 * RS)
            a('s_waitcnt lgkmcnt(0)')
    a('s_barrier')
    tl(a, 1)
    a('v_lshlrev_b32 v4, 2, v0')
    a('s_lshl_b32 s31, s6, 4')
    a('s_sub_u32 s31, s31, 56')
    a('v_add_u32 v5, s31, v4')
    a('v_add_u32 v4, %d, v4', HPROG - CNT)
    a('v_cmp_gt_u32 vcc, 14, v0')
    a('s_nop 1')
    a('v_cndmask_b32 v4, v5, v4, vcc')
    a('v_cmp_gt_u32 vcc, 18, v0')
    a('v_mov_b32 v5, %d', HPROG - CNT)
    a('s_nop 0')
    a('v_cndmask_b32 v4, v5, v4, vcc')
    a('v_and_b32 v5, 7, v0')
    a('v_lshlrev_b32 v5, 2, v5')
    a('s_lshl_b32 s31, s3, 5')
    a('s_add_u32 s31, s31, %d', XPROG - CNT)
    a('v_add_u32 v5, s31, v5')
    a('v_and_b32 v6, 3, v0')
    a('v_lshlrev_b32 v6, 4, v6')
    a('s_lshl_b32 s31, s3, 2')
    a('s_lshl_b32 s32, s6, 6')
    a('s_add_u32 s31, s31, s32')
    a('s_add_u32 s31, s31, %d', VPROG - CNT)
    a('v_add_u32 v6, s31, v6')
    a('v_cmp_gt_u32 s[60:61], 8, v2')
    a('v_lshlrev_b32 v8, 2, v2')
    RO = 272
    a('s_lshl_b32 s31, s3, 5')
    a('v_add_u32 v9, s31, v2')
    a('s_movk_i32 s30, %d', RO)
    a('v_mul_u32_u24 v9, s30, v9')
    a('v_lshl_add_u32 v9, v3, 4, v9')
    a('v_lshrrev_b32 v12, 3, v0')
    a('s_lshl_b32 s31, s3, 3')
    a('v_add_u32 v12, s31, v12')
    a('v_mul_u32_u24 v10, s30, v12')
    a('v_and_b32 v13, 7, v0')
    a('v_lshl_add_u32 v10, v13, 5, v10')
    a('s_movk_i32 s30, 896')
    a('v_mul_u32_u24 v11, s30, v12')
    a('v_lshl_add_u32 v11, v13, 4, v11')
    a('s_mov_b32 s50, %d', 128 * RO)
    HF, DF, AB, AA, GR = 16, 128, 192, 224, 14
    a.label('ro_loop')
    a('s_and_b32 s30, s12, 1')
    a('s_lshl_b32 s30, s30, 7')
    a('s_add_u32 s30, s30, 0x%x', CNT)
    a('s_lshr_b32 s31, s12, 1')
    a('s_add_u32 s31, s31, 1')
    a('v_mov_b32 v12, s31')
    poll_ge(a, 4, 's30', 12, 13)
    a('s_mul_i32 s30, s12, %d', VSLOT)
    a('s_mul_i32 s31, s3, 14336')
    a('s_add_u32 s30, s30, s31')
    a('s_add_u32 s30, s30, 0x%x', H1)
    for jj in range(14):
        if jj % 4 == 0:
            a('s_add_u32 s32, s30, %d', jj * 1024)
            a('s_add_u32 s33, s30, %d', jj * 1024 + 57344)
        for tt in range(2):
            a('buffer_load_dwordx4 %s, v1, s[8:11], s%d offen offset:%d sc1', V(HF + (jj * 2 + tt) * 4, 4), 32 + tt, (jj % 4) * 1024)
    a('s_mul_i32 s30, s12, %d', DSEG)
    a('s_lshl_b32 s31, s6, 16')
    a('s_add_u32 s30, s30, s31')
    a('s_lshl_b32 s31, s3, 12')
    a('s_add_u32 s30, s30, s31')
    a('s_add_u32 s30, s30, 0x%x', DD)
    for t in range(4):
        for hh in range(4):
            a('buffer_load_dwordx4 %s, v1, s[8:11], s30 offen offset:%d sc1', V(DF + (t * 4 + hh) * 4, 4), hh * 1024)
        if t < 3: a('s_add_u32 s30, s30, 16384')
    a('s_lshl_b32 s30, s12, 7')
    a('s_add_u32 s30, s30, 0x%x', GG)
    for tt in range(2): a('buffer_load_dword v%d, v8, s[8:11], s30 offen offset:%d', GR + tt, 64 * tt)
    for jj in range(14):
        a('s_waitcnt vmcnt(%d)', 18 + 2 * (13 - jj))
        for tt in range(2):
            for t in range(4):
                c = AB + (t * 2 + tt) * 4
                a('v_mfma_f32_16x16x32_bf16 %s, %s, %s, %s', V(c, 4), A((jj * 4 + t) * 4, 4), V(HF + (jj * 2 + tt) * 4, 4), V(c, 4) if jj else '0')
    a('s_mul_i32 s31, s12, 21846')
    a('s_lshr_b32 s31, s31, 16')
    a('s_mul_i32 s32, s31, 3')
    a('s_sub_u32 s32, s12, s32')
    a('s_lshl_b32 s32, s32, 7')
    a('v_add_u32 v12, s32, v5')
    a('s_and_b32 s32, s12, 1')
    a('s_lshl_b32 s32, s32, 9')
    a('v_add_u32 v13, s32, v6')
    a('v_cndmask_b32 v%d, v13, v12, s[60:61]', HF)
    a('s_add_u32 s31, s31, 1')
    a('s_lshr_b32 s32, s12, 1')
    a('s_add_u32 s32, s32, 1')
    a('v_mov_b32 v12, s31')
    a('v_mov_b32 v13, s32')
    a('v_cndmask_b32 v12, v13, v12, s[60:61]')
    a('s_mov_b32 s30, 0x%x', CNT)
    poll_ge(a, HF, 's30', 12, 13)
    PF, PM, VF = 20, 52, 60
    a('s_mul_i32 s30, s12, %d', PXSEG)
    a('s_add_u32 s30, s30, 0x%x', PX)
    a('s_lshl_b32 s31, s3, 13')
    a('s_add_u32 s31, s31, s30')
    a('s_add_u32 s32, s31, 4096')
    for i in range(8):
        a('buffer_load_dwordx4 %s, v1, s[8:11], s%d offen offset:%d sc1', V(PF + 4 * i, 4), 31 + (i >> 2), (i & 3) * 1024)
    a('s_lshl_b32 s31, s3, 11')
    a('s_add_u32 s31, s31, s30')
    a('s_add_u32 s31, s31, 32768')
    for tt in range(2): a('buffer_load_dwordx4 %s, v1, s[8:11], s31 offen offset:%d sc1', V(PM + 4 * tt, 4), 1024 * tt)
    a('s_mul_i32 s30, s12, %d', VSLOT)
    a('s_lshl_b32 s31, s3, 10')
    a('s_add_u32 s30, s30, s31')
    a('s_lshl_b32 s31, s6, 14')
    a('s_add_u32 s30, s30, s31')
    a('s_add_u32 s30, s30, 0x%x', VE)
    for t in range(4):
        a('buffer_load_dwordx4 %s, v1, s[8:11], s30 offen sc1', V(VF + 4 * t, 4))
        if t < 3: a('s_add_u32 s30, s30, 4096')
    for hh in range(4):
        a('s_waitcnt vmcnt(%d)', 6 + 2 * (3 - hh))
        for tt in range(2):
            for t in range(4):
                c = AA + (t * 2 + tt) * 4
                a('v_mfma_f32_16x16x32_bf16 %s, %s, %s, %s', V(c, 4), V(DF + (t * 4 + hh) * 4, 4), V(PF + (hh * 2 + tt) * 4, 4), V(c, 4) if hh else '0')
    a('s_waitcnt vmcnt(0)')
    for t in range(4):
        for tt in range(2):
            c = AA + (t * 2 + tt) * 4
            a('v_mfma_f32_16x16x32_bf16 %s, %s, %s, %s', V(c, 4), V(VF + 4 * t, 4), V(PM + 4 * tt, 4), V(c, 4))
    a('s_mul_i32 s30, s12, %d', 32 * 896)
    a('s_lshl_b32 s31, s6, 7')
    a('s_add_u32 s30, s30, s31')
    for t in range(4):
        for tt in range(2):
            i = (t * 2 + tt) * 4
            for r in range(4): a('v_sub_f32 v%d, v%d, v%d', AA + i + r, AA + i + r, AB + i + r)
            for r in range(4): a('v_fmac_f32 v%d, v%d, v%d', AB + i + r, GR + tt, AA + i + r)
            a('ds_write_b128 v9, %s offset:%d', V(AB + i, 4), tt * 16 * RO + t * 64)
    a('s_waitcnt lgkmcnt(0)')
    a('s_barrier')
    for w in range(4):
        for hf in range(2): a('ds_read_b128 %s, v10 offset:%d', V(20 + 8 * w + 4 * hf, 4), w * 32 * RO + 16 * hf)
    a('v_add_u32 v9, s50, v9')
    a('v_add_u32 v10, s50, v10')
    a('s_sub_u32 s50, 0, s50')
    for w in range(1, 4):
        a('s_waitcnt lgkmcnt(%d)', 2 * (3 - w))
        for i in range(4): a('v_pk_add_f32 %s, %s, %s', V(20 + 2 * i, 2), V(20 + 2 * i, 2), V(20 + 8 * w + 2 * i, 2))
    for d in range(4): a('v_cvt_pk_bf16_f32 v%d, v%d, v%d', 56 + d, 20 + 2 * d, 21 + 2 * d)
    a('buffer_store_dwordx4 v[56:59], v11, s[20:23], s30 offen')
    a('s_add_u32 s12, s12, %d', NSET_O)
    a('s_cmp_lt_u32 s12, 64')
    a('s_cbranch_scc1 ro_loop')
    if DEV: a('s_waitcnt vmcnt(0)')
    tl(a, 2)
    a('s_endpgm')
```

```python
import sys
from common import *
import prep, team, workers

HEADER = open('cdna_kernels/%s.s.ref' % NAME).read().split('; Override launch geometry')[0]
MAIN_LDS = team.TEAM_LDS

def kd(name, vgpr, acc, sgpr):
    return '''.p2align 6
.amdhsa_kernel %s
  .amdhsa_next_free_vgpr %d
  .amdhsa_next_free_sgpr %d
  .amdhsa_accum_offset %d
  .amdhsa_group_segment_fixed_size 0
  .amdhsa_kernarg_size 120
  .amdhsa_user_sgpr_count 2
  .amdhsa_user_sgpr_kernarg_segment_ptr 1
  .amdhsa_system_sgpr_workgroup_id_x 1
.end_amdhsa_kernel
''' % (name, vgpr, sgpr, acc)

def head(a, name):
    a.l.append('.globl %s\n.p2align 8\n.type %s,@function' % (name, name))

def build(masks, dev=False):
    a = Asm()
    workers.DEV = bool(dev)
    prep.DEV = bool(dev)
    if dev and 'dstpl' in dev: workers.DST = ''
    if dev and 'dst01' in dev: workers.DST = 'sc0 sc1'
    names = []
    head(a, 'prep_kernel')
    prep.gen_prep(a, 'prep_kernel')
    for m in masks:
        nm = (NAME + '_kernel') if m == 31 else 'main%d_kernel' % m
        if nm in names: continue
        names.append(nm)
        head(a, nm)
        a.label(nm)
        a('s_cmp_ge_u32 s2, 256')
        a('s_cbranch_scc1 quit')
        a('s_load_dwordx4 s[52:55], s[0:1], %d', KA['dbg'])
        a('v_lshrrev_b32 v1, 6, v0')
        a('v_and_b32 v0, 63, v0')
        a('v_readfirstlane_b32 s3, v1')
        a('s_and_b32 s31, s2, 7')
        a('s_lshr_b32 s30, s2, 3')
        a('s_waitcnt lgkmcnt(0)')
        a.srd(8, 54, team.OOB)
        a.srd(44, 52, 256)
        a('s_cmp_eq_u32 s31, 0')
        a('s_cbranch_scc1 %s', 'team' if m & 1 else 'quit')
        a('s_sub_u32 s31, s31, 1')
        a('s_lshl_b32 s31, s31, 5')
        a('s_add_u32 s30, s30, s31')
        for bit, n, lab in ((2, 56, 'role_d'), (4, 48, 'role_xs'), (8, 28, 'role_f1'), (16, 91, 'role_fin')):
            a('s_cmp_lt_u32 s30, %d', n)
            a('s_cbranch_scc1 %s', lab if m & bit else 'quit')
            a('s_sub_u32 s30, s30, %d', n)
        a('s_endpgm')
    a.label('quit')
    a('s_endpgm')
    team.gen_team(a, dev)
    workers.gen_d(a, vtail=any(m & 3 == 3 for m in masks))
    workers.gen_xs(a)
    workers.gen_f1(a)
    workers.gen_fin(a)
    s = HEADER
    s += '; @launch kernel=prep_kernel grid=(256,1,1) block=(448,1,1) lds=%d\n' % prep.PREP_LDS
    for m in masks:
        nm = (NAME + '_kernel') if m == 31 else 'main%d_kernel' % m
        s += '; @launch kernel=%s grid=(256,1,1) block=(256,1,1) lds=%d\n' % (nm, MAIN_LDS)
    s += '.amdgcn_target "amdgcn-amd-amdhsa--gfx950"\n.text\n' + a.text()
    s += '.section .rodata,"a"\n' + kd('prep_kernel', 200, 200, 64)
    for nm in names: s += kd(nm, 512, 256, 96)
    return s

if __name__ == '__main__':
    out = sys.argv[1]
    masks = [int(x) for x in sys.argv[2].split(',')]
    dev = sys.argv[3] if len(sys.argv) > 3 else False
    open(out, 'w').write(build(masks, dev))
```

```python
NAME = 'gated_mix__memory_aug_recurrent_mem_tr__swiglu_ffn__prompt'
DM, H, S, SEG, M, F, NSEG = 448, 16, 2048, 32, 8, 1792, 64
WS_BYTES = 0x10000000
WF_A = 0x0000000
WF_C = 0x0620000
XF = 0x0C40000
XSEG = 28672
GG = 0x0E10000
U0 = 0x0E20000
UNIT = 7168
MEMX = U0
PR = U0 + 4 * UNIT
PSLOT = 10240
VSLOT = 114688
MEME = U0 + 10 * UNIT
NUNITS = 74
CNT = 0x0F00000
VE = 0x1000000
H1 = 0x1700000
PX = 0x1E00000
PXSEG = 40960
DD = 0x2100000
DSEG = 458752
DPROG = CNT + 0
HPROG = CNT + 256
XPROG = CNT + 512
VPROG = CNT + 1024
FLG_M = CNT + 2048
FLG_A = CNT + 3072
KA = dict(x=0, mem0=8, Wq=16, Wk=24, Wv=32, Wo=40, seg=48, bx=56, wg=64, wu=72, wd=80, gw=88, out=96, dbg=104, ws=112)
WBYTES = 448 * 8192
FBYTES = 448 * 1792 * 2
XBYTES = 2048 * 896
LOG2E = 1.4426950408889634

import struct
def fbits(x): return struct.unpack('<I', struct.pack('<f', x))[0]

class Asm:
    def __init__(self): self.l = []; self.uid = 0
    def __call__(self, s, *a):
        if a: s = s % a
        for line in s.split('\n'): self.l.append('    ' + line.strip())
    def label(self, s): self.l.append(s + ':')
    def c(self, s): self.l.append('    ; ' + s)
    def new(self, p='L'):
        self.uid += 1
        return '%s_%d' % (p, self.uid)
    def text(self): return '\n'.join(self.l) + '\n'
    def srd(self, d, b, size):
        self('s_mov_b32 s%d, s%d', d, b)
        self('s_mov_b32 s%d, s%d', d + 1, b + 1)
        self('s_mov_b32 s%d, 0x%x', d + 2, size)
        self('s_mov_b32 s%d, 0x20000', d + 3)

def V(b, n=1): return 'v%d' % b if n == 1 else 'v[%d:%d]' % (b, b + n - 1)
def A(b, n=1): return 'a%d' % b if n == 1 else 'a[%d:%d]' % (b, b + n - 1)
def SR(b, n=1): return 's%d' % b if n == 1 else 's[%d:%d]' % (b, b + n - 1)
```

```python
from common import *
SPIN = 400000
DEV = False
DBGT = False
NOWARM = False
LATEFLAG = False
LA, LB, LG = 0, 32768, 147456

def tl(a, k, base=0x3F20000):
    if DEV:
        a('s_memrealtime s[82:83]')
        a('s_waitcnt lgkmcnt(0)')
        a('s_lshl_b32 s84, s2, 4')
        a('s_add_u32 s84, s84, 0x%x', base)
        a('v_mov_b32 v250, s82')
        a('buffer_store_dword v250, off, s[8:11], s84 offset:%d', 4 * k)
        if DBGT and k:
            a('s_mov_b32 s%d, s82', 93 + k)

def wait_words(a, voff, soff, width, wave0_only=True, R=244):
    lp, ok = a.new('ww'), a.new('wk')
    if wave0_only:
        a('s_cmp_eq_u32 s3, 0')
        a('s_cbranch_scc0 %s', ok)
    a('s_mov_b32 s14, 0')
    a.label(lp)
    srd = 's[44:47]' if soff is None else 's[8:11]'
    if width == 4:
        a('buffer_load_dwordx4 %s, %s, %s, %s offen sc1', V(R, 4), voff, srd, soff or '0')
        a('s_waitcnt vmcnt(0)')
        a('v_min3_u32 v%d, v%d, v%d, v%d', R, R, R + 1, R + 2)
        a('v_min_u32 v%d, v%d, v%d', R, R, R + 3)
    else:
        a('buffer_load_dword v%d, %s, %s, %s offen sc1', R, voff, srd, soff or '0')
        a('s_waitcnt vmcnt(0)')
    a('v_cmp_eq_u32 vcc, 0, v%d', R)
    a('s_cbranch_vccz %s', ok)
    a('s_sleep 3')
    a('s_add_u32 s14, s14, 1')
    a('s_cmp_lt_u32 s14, %d', SPIN)
    a('s_cbranch_scc1 %s', lp)
    a('s_endpgm')
    a.label(ok)
    if wave0_only: a('s_barrier')

def wait_all(a, base, n, R=244):
    a('v_min_u32 v%d, %d, v0', R - 1, n // 4 - 1)
    a('v_lshlrev_b32 v%d, 4, v%d', R - 1, R - 1)
    a('s_mov_b32 s31, 0x%x', base)
    wait_words(a, 'v%d' % (R - 1), 's31', 4, R=R)

def wait_head(a, base, hreg):
    a('v_min_u32 v243, 13, v0')
    a('v_lshlrev_b32 v243, 2, v243')
    a('s_mul_i32 s31, %s, 56', hreg)
    a('s_add_u32 s31, s31, 0x%x', base)
    wait_words(a, 'v243', 's31', 1)

def set_flag(a, base, idx, younger=0):
    a('s_waitcnt vmcnt(%d)', younger)
    a('s_barrier')
    l = a.new('sf')
    a('s_cmp_eq_u32 s3, 0')
    a('s_cbranch_scc0 %s', l)
    a('s_lshl_b32 s31, %s, 2', idx)
    a('s_add_u32 s31, s31, 0x%x', base)
    a('v_mov_b32 v244, 1')
    a('buffer_store_dword v244, off, s[8:11], s31 sc1')
    a.label(l)

def misc_loads(a):
    a('s_lshl_b32 s31, s3, 6')
    a('v_add_u32 v240, s31, v0')
    a('s_movk_i32 s31, 1171')
    for r in range(2):
        t = 224 + 2 * r
        if r: a('v_add_u32 v241, 256, v240')
        src = 241 if r else 240
        a('v_mul_u32_u24 v%d, s31, v%d', t, src)
        a('v_lshrrev_b32 v%d, 16, v%d', t, t)
        a('v_mul_u32_u24 v%d, 56, v%d', t + 1, t)
        a('v_sub_u32 v%d, v%d, v%d', t + 1, src, t + 1)
    a('v_lshlrev_b32 v228, 4, v240')
    a('v_cmp_gt_u32 vcc, 192, v240')
    a('v_add_u32 v229, 4096, v228')
    a('v_mov_b32 v230, 0x7000000')
    a('v_cndmask_b32 v229, v230, v229, vcc')
    a('s_mul_i32 s30, s2, 7168')
    a('buffer_load_dwordx4 v[208:211], v228, s[20:23], s30 offen')
    a('buffer_load_dwordx4 v[212:215], v229, s[20:23], s30 offen')
    a('v_lshlrev_b32 v230, 4, v225')
    a('v_lshlrev_b32 v231, 4, v227')
    a('buffer_load_dwordx4 v[216:219], v230, s[24:27], 0 offen')
    a('buffer_load_dwordx4 v[220:223], v231, s[24:27], 0 offen')
    return 4

def misc_rest(a):
    a('s_and_b32 s30, s2, 3')
    a('s_lshl_b32 s30, s30, 3')
    a('s_movk_i32 s31, 14336')
    a('s_lshr_b32 s32, s2, 2')
    a('s_mul_i32 s32, s32, %d', XSEG)
    a('s_add_u32 s32, s32, 0x%x', XF)
    a('v_cmp_gt_u32 vcc, 192, v240')
    for r in range(2):
        t = 224 + 2 * r
        a('v_add_u32 v232, s30, v%d', t)
        a('v_lshrrev_b32 v233, 4, v232')
        a('v_mul_u32_u24 v233, s31, v233')
        a('v_and_b32 v232, 15, v232')
        a('v_lshl_add_u32 v233, v232, 4, v233')
        a('v_lshl_add_u32 v233, v%d, 8, v233', t + 1)
        if r:
            a('v_mov_b32 v232, 0x8000000')
            a('v_cndmask_b32 v233, v232, v233, vcc')
        a('buffer_store_dwordx4 %s, v233, s[8:11], s32 offen sc1', V(208 + 4 * r, 4))
        a('v_mov_b32 v%d, 0', 234 + r)
        for d in range(4): a('v_dot2_f32_bf16 v%d, v%d, v%d, v%d', 234 + r, 208 + 4 * r + d, 216 + 4 * r + d, 234 + r)
    a('v_lshlrev_b32 v232, 2, v240')
    a('v_add_u32 v232, %d, v232', LG)
    a('s_nop 1')
    a('ds_write_b32 v232, v234')
    a('ds_write_b32 v232, v235 offset:1024')
    a('s_waitcnt lgkmcnt(0)')
    a('s_barrier')
    lg = a.new('ng')
    a('s_cmp_eq_u32 s3, 3')
    a('s_cbranch_scc0 %s', lg)
    a('v_mul_u32_u24 v232, 28, v0')
    a('v_add_u32 v232, %d, v232', LG)
    for i in range(7): a('ds_read_b32 v%d, v232 offset:%d', 233 + i, 4 * i)
    a('s_waitcnt lgkmcnt(0)')
    for i in range(1, 7): a('v_add_f32 v233, v233, v%d', 233 + i)
    for ctl in ('quad_perm:[1,0,3,2]', 'quad_perm:[2,3,0,1]', 'row_half_mirror'):
        a('s_nop 1')
        a('v_add_f32_dpp v233, v233, v233 %s row_mask:0xf bank_mask:0xf', ctl)
    a('v_mul_f32 v233, 0x%x, v233', fbits(-LOG2E))
    a('v_exp_f32 v233, v233')
    a('s_nop 0')
    a('v_add_f32 v233, 1.0, v233')
    a('v_rcp_f32 v233, v233')
    a('v_lshrrev_b32 v232, 3, v0')
    a('v_lshlrev_b32 v232, 2, v232')
    a('s_lshl_b32 s30, s2, 5')
    a('s_add_u32 s30, s30, 0x%x', GG)
    a('buffer_store_dword v233, v232, s[8:11], s30 offen sc1')
    a.label(lg)

def unit_fill(a):
    a('v_cmp_gt_u32 vcc, 192, v240')
    a('v_mov_b32 v229, 0x8000000')
    a('v_add_u32 v232, 4096, v228')
    a('v_cndmask_b32 v229, v229, v232, vcc')
    for r in range(8): a('v_mov_b32 v%d, -1', 200 + r)
    a('s_mul_i32 s30, s53, 7168')
    a('s_add_u32 s30, s30, 0x%x', U0)
    a('s_add_u32 s31, s30, %d', 32 * UNIT)
    a('s_add_u32 s32, s30, %d', 64 * UNIT)
    a('s_cmp_lt_u32 s53, %d', NUNITS - 64)
    a('s_cselect_b32 s32, s32, 0x8000000')
    for sr in (31, 32):
        a('buffer_store_dwordx4 v[200:203], v228, s[8:11], s%d offen sc1', sr)
        a('buffer_store_dwordx4 v[204:207], v229, s[8:11], s%d offen sc1', sr)
    lm0, lst = a.new('m0'), a.new('fs')
    a('s_cmp_eq_u32 s53, 0')
    a('s_cbranch_scc1 %s', lm0)
    a('s_cmp_eq_u32 s53, 10')
    a('s_cbranch_scc0 %s', lst)
    a.label(lm0)
    a('v_bfe_u32 v232, v0, 2, 2')
    a('v_and_b32 v233, 1, v0')
    a('v_lshl_add_u32 v232, v232, 1, v233')
    a('s_movk_i32 s31, 896')
    a('v_mul_u32_u24 v232, s31, v232')
    a('v_lshrrev_b32 v233, 4, v240')
    a('v_lshl_add_u32 v232, v233, 5, v232')
    a('v_bfe_u32 v233, v0, 1, 1')
    a('v_lshl_add_u32 v232, v233, 2, v232')
    for r in range(2):
        for q in range(4): a('buffer_load_dword v%d, v232, s[40:43], 0 offen offset:%d', 200 + 4 * r + q, 8 * q + 512 * r)
    a('s_waitcnt vmcnt(0)')
    for r in range(8): a('v_min_u32 v%d, -2, v%d', 200 + r, 200 + r)
    a.label(lst)
    a('buffer_store_dwordx4 v[200:203], v228, s[8:11], s30 offen sc1')
    a('buffer_store_dwordx4 v[204:207], v229, s[8:11], s30 offen sc1')

def wait_janitor(a):
    a('v_mov_b32 v243, 252')
    lp = a.new('wj')
    a('s_cmp_eq_u32 s3, 0')
    a('s_cbranch_scc0 %s', lp)
    wait_words(a, 'v243', None, 1, wave0_only=False)
    a.label(lp)

def janitor(a):
    for r in range(4): a('v_mov_b32 v%d, 0', 244 + r)
    a('v_lshlrev_b32 v243, 4, v0')
    a('s_mov_b32 s31, 0x%x', CNT)
    l = a.new('jn')
    a('s_cmp_eq_u32 s3, 0')
    a('s_cbranch_scc0 %s', l)
    for i in range(4): a('buffer_store_dwordx4 v[244:247], v243, s[8:11], s31 offen offset:%d sc1', 1024 * i)
    a('s_waitcnt vmcnt(0)')
    a('v_mov_b32 v244, 1')
    a('buffer_store_dword v244, off, s[44:47], 0 offset:252 sc1')
    a.label(l)

def gen_fold(a):
    a('s_mul_i32 s4, s53, 4682')
    a('s_lshr_b32 s4, s4, 16')
    a('s_mul_i32 s31, s4, 14')
    a('s_sub_u32 s31, s53, s31')
    a('s_and_b32 s6, s31, 1')
    a('s_lshr_b32 s7, s31, 1')
    a('v_and_b32 v2, 15, v0')
    a('v_lshrrev_b32 v3, 4, v0')
    a('v_lshlrev_b32 v1, 4, v0')
    a('v_lshrrev_b32 v4, 5, v0')
    a('v_and_b32 v5, 31, v0')
    a('v_xor_b32 v5, v5, v4')
    a('s_and_b32 s31, s3, 1')
    a('s_lshl_b32 s30, s31, 3')
    a('v_xor_b32 v5, s30, v5')
    a('v_lshlrev_b32 v5, 4, v5')
    a('v_lshl_add_u32 v4, v4, 13, v5')
    a('s_lshl_b32 s28, s7, 2')
    a('s_add_u32 s28, s28, s3')
    a('s_lshl_b32 s28, s28, 17')
    a('s_lshl_b32 s29, s4, 9')
    a('s_add_u32 s28, s28, s29')
    a('s_lshl_b32 s48, s3, 13')
    def aside(srd):
        for ii in range(8):
            a('v_xor_b32 v5, %d, v4', ((2 * (ii & 1)) ^ (4 * (ii >> 2))) << 4)
            a('s_add_u32 m0, s48, %d', LA + 1024 * ii)
            a('s_add_u32 s33, s28, %d', 2 * ii * 8192)
            a('buffer_load_dwordx4 v5, %s, s33 offen lds', srd)
    a('s_movk_i32 s31, 2341')
    a('s_movk_i32 s49, 896')
    for z in range(7):
        a('v_add_u32 v5, %d, v0', 64 * z)
        a('v_mul_u32_u24 v6, s31, v5')
        a('v_lshrrev_b32 v6, 16, v6')
        a('v_mul_u32_u24 v7, 28, v6')
        a('v_sub_u32 v7, v5, v7')
        a('v_mul_u32_u24 v6, s49, v6')
        a('v_lshl_add_u32 v%d, v7, 4, v6', 8 + z)
    a('s_mul_i32 s30, s4, 229376')
    a('s_mul_i32 s31, s3, 64*896')
    a('s_add_u32 s30, s30, s31')
    a('s_mul_i32 s31, s6, 448')
    a('s_add_u32 s30, s30, s31')
    a('s_mul_i32 s49, s3, 28672')
    a('s_add_u32 s49, s49, %d', LB)
    for grp in range(4):
        a('s_add_u32 s31, s7, %d', grp)
        a('s_and_b32 s31, s31, 3')
        a('s_mul_i32 s32, s31, 14336')
        a('s_add_u32 s32, s32, s30')
        a('s_mul_i32 s31, s31, 7168')
        a('s_add_u32 s31, s31, s49')
        for z in range(7):
            a('s_add_u32 m0, s31, %d', z * 1024)
            a('s_nop 0')
            a('buffer_load_dwordx4 v%d, s[16:19], s32 offen lds', 8 + z)
        if grp == 0:
            aside('s[12:15]')
            a('s_mov_b32 s34, s30')
            misc_loads(a)
            a('s_mov_b32 s30, s34')
    a('s_mul_i32 s50, s6, 224')
    a('s_mul_i32 s31, s3, 56')
    a('s_add_u32 s50, s50, s31')
    a('s_lshl_b32 s50, s50, 13')
    a('s_add_u32 s50, s50, s29')
    a('s_lshr_b32 s51, s3, 1')
    a('s_and_b32 s52, s3, 1')
    a('v_xor_b32 v6, v3, v2')
    a('v_lshlrev_b32 v6, 4, v6')
    a('v_lshrrev_b32 v7, 2, v2')
    a('v_lshlrev_b32 v7, 3, v7')
    a('v_and_b32 v8, 3, v0')
    a('v_add_u32 v7, v7, v8')
    a('v_lshl_add_u32 v7, v7, 9, v6')
    a('s_lshl_b32 s30, s51, 14')
    a('v_add_u32 v7, s30, v7')
    a('v_lshl_add_u32 v9, v2, 9, v6')
    a('s_mul_i32 s30, s52, 57344')
    a('s_add_u32 s30, s30, %d', LB)
    a('v_add_u32 v9, s30, v9')
    a('v_lshrrev_b32 v10, 2, v2')
    a('v_lshl_add_u32 v10, v3, 3, v10')
    a('s_movk_i32 s30, 448')
    a('v_mul_u32_u24 v10, s30, v10')
    a('v_lshl_add_u32 v10, v8, 3, v10')
    a('s_mul_i32 s30, s52, 224')
    a('s_add_u32 s30, s30, %d', LB)
    a('v_add_u32 v10, s30, v10')
    a('s_waitcnt vmcnt(21)')
    misc_rest(a)
    wait_janitor(a)
    a('s_waitcnt vmcnt(0)')
    a('s_barrier')
    tl(a, 2)
    a('v_bfe_u32 v5, v0, 2, 3')
    a('v_lshlrev_b32 v5, 13, v5')
    a('v_and_b32 v6, 3, v0')
    a('v_lshl_add_u32 v5, v6, 7, v5')
    a('s_lshl_b32 s30, s6, 16')
    a('s_add_u32 s30, s30, s28')
    a('s_lshl_b32 s31, s7, 16')
    a('s_add_u32 s31, s31, s50')
    if not NOWARM:
        a('buffer_load_dword v13, v5, s[36:39], s30 offen')
        a('buffer_load_dword v14, v5, s[56:59], s31 offen')
    ACC, AF, BF = 48, 104, 120
    def gemm(mat):
        seq = [(es, t) for es in range(8) for t in range(7)]
        def rdA(es):
            a('v_xor_b32 v11, %d, v7', es << 6)
            for u in range(2): a('ds_read_b128 %s, v11 offset:%d', V(AF + 8 * (es & 1) + 4 * u, 4), LA + 2048 * u)
        def rdB(i):
            es, t = seq[i]
            b = BF + 4 * (i % 4)
            if t == 0:
                if mat == 0: a('v_xor_b32 v12, %d, v9', es << 6)
                else: a('v_add_u32 v12, %d, v10', es * 14336)
            if mat == 0: a('ds_read_b128 %s, v12 offset:%d', V(b, 4), t * 8192)
            else:
                a('ds_read_b64_tr_b16 %s, v12 offset:%d', V(b, 2), t * 32)
                a('ds_read_b64_tr_b16 %s, v12 offset:%d', V(b + 2, 2), t * 32 + 1792)
        per = 2 if mat else 1
        rdA(0)
        issued = []
        for i in range(3): rdB(i); issued.append(per)
        for i, (es, t) in enumerate(seq):
            n = 0
            if t == 1 and es < 7: rdA(es + 1); n += 2
            if i + 3 < len(seq): rdB(i + 3); n += per
            issued.append(n)
            a('s_waitcnt lgkmcnt(%d)', sum(issued[i + 1:]))
            for u in range(2):
                c = ACC + (t * 2 + u) * 4
                a('v_mfma_f32_16x16x32_bf16 %s, %s, %s, %s', V(c, 4), V(AF + 8 * (es & 1) + 4 * u, 4), V(BF + 4 * (i % 4), 4), V(c, 4) if es else '0')
    def store(mat):
        a('s_mul_i32 s30, s4, 28')
        a('s_mul_i32 s31, s6, 14')
        a('s_add_u32 s30, s30, s31')
        a('s_mul_i32 s31, s52, 7')
        a('s_add_u32 s30, s30, s31')
        a('s_mul_i32 s30, s30, 14')
        a('s_lshl_b32 s31, s7, 1')
        a('s_add_u32 s30, s30, s31')
        a('s_add_u32 s30, s30, s51')
        a('s_lshl_b32 s30, s30, 10')
        if mat: a('s_add_u32 s30, s30, 0x%x', WF_C)
        a('s_mov_b32 s31, 0x%x', fbits(LOG2E / 16.0))
        for t in range(7):
            c = ACC + t * 8
            if mat == 0:
                for r in range(8): a('v_mul_f32 v%d, s31, v%d', c + r, c + r)
            o = 136 + 4 * t
            for d in range(4): a('v_cvt_pk_bf16_f32 v%d, v%d, v%d', o + d, c + 2 * d, c + 2 * d + 1)
            a('buffer_store_dwordx4 %s, v1, s[8:11], s30 offen sc1', V(o, 4))
            if t < 6: a('s_add_u32 s30, s30, 14336')
    gemm(1)
    a('s_barrier')
    store(1)
    set_flag(a, FLG_M, 's53')
    tl(a, 3)
    for q in range(7):
        a('s_add_u32 s31, s7, %d', q)
        a('s_cmp_ge_u32 s31, 7')
        a('s_cselect_b32 s32, 7, 0')
        a('s_sub_u32 s31, s31, s32')
        a('s_lshl_b32 s32, s31, 16')
        a('s_add_u32 s32, s32, s50')
        a('s_and_b32 s30, s31, 1')
        a('s_lshl_b32 s30, s30, 7')
        a('v_xor_b32 v6, s30, v4')
        a('s_lshl_b32 s31, s31, 12')
        a('s_add_u32 s31, s31, s49')
        for i in range(4):
            a('v_xor_b32 v5, %d, v6', (2 * i) << 4)
            a('s_add_u32 m0, s31, %d', 1024 * i)
            a('s_nop 0')
            a('buffer_load_dwordx4 v5, s[56:59], s32 offen lds')
            if i < 3: a('s_add_u32 s32, s32, 16384')
        if q == 0: aside('s[36:39]')
    a('s_waitcnt vmcnt(0)')
    a('s_barrier')
    gemm(0)
    store(0)
    set_flag(a, FLG_A, 's53')
    tl(a, 1)

def wait_started(a):
    lp, ok = a.new('ws'), a.new('wo')
    a('s_cmp_eq_u32 s3, 0')
    a('s_cbranch_scc0 %s', ok)
    a('s_mov_b32 s14, 0')
    a('s_mov_b32 s31, 0x%x', MEME + UNIT)
    a.label(lp)
    a('buffer_load_dword v244, off, s[8:11], s31 sc1')
    a('s_waitcnt vmcnt(0)')
    a('v_cmp_eq_u32 vcc, -1, v244')
    a('s_cbranch_vccz %s', ok)
    a('s_sleep 8')
    a('s_add_u32 s14, s14, 1')
    a('s_cmp_lt_u32 s14, %d', SPIN)
    a('s_cbranch_scc1 %s', lp)
    a('s_endpgm')
    a.label(ok)
    a('s_barrier')

def wait_wave_heads(a):
    a('v_min_u32 v243, 55, v0')
    a('v_lshlrev_b32 v243, 2, v243')
    a('s_mul_i32 s31, s3, 224')
    a('s_add_u32 s31, s31, 0x%x', FLG_M)
    wait_words(a, 'v243', 's31', 1, wave0_only=False)
```

```python
from common import *
import fold

L_MEM = 0
L_T = 7680
L_S = L_T + 8192
L_X = L_S + 12288
L_C = 7680
L_D = 32768
L_W = 98304
TEAM_LDS = L_W + 57344
SPIN = 200000
OOB = 0x8000000
NTEAM = 30

ORD_S = ([(0, 0), (1, 0), (0, 1), (1, 1), (2, 0), (3, 0), (2, 1), (3, 1), (4, 0), (5, 0), (6, 0), (4, 1), (5, 1), (6, 1)]
         + [(t, 2) for t in range(7)] + [(t, l) for t in range(7) for l in range(3, 7)])
ORD_C = [(t, l) for l in range(7) for t in range(8)]
CSPILL = [80, 88, 96, 104, 112, 52, 60]
def Wreg(i, n=8, off=0):
    if i >= 49: return V(CSPILL[i - 49] + off, n)
    return A(8 * i + off, n) if i < 32 else V(120 + 8 * (i - 32) + off, n)

def gen_team(a, dev=False):
    dev = set(dev.split('+')) if dev else set()
    def stamp(k):
        if 'st%d' % k in dev or 'stall' in dev: a('s_memtime s[%d:%d]', 64 + 2 * k, 65 + 2 * k)
    def bits(dst, spec, first=True):
        for pos, w, sh in spec:
            a('v_bfe_u32 v3, v0, %d, %d', pos, w)
            if first: a('v_lshlrev_b32 v%d, %d, v3', dst, sh); first = False
            else: a('v_lshl_add_u32 v%d, v3, %d, v%d', dst, sh, dst)
    def spin(lp):
        a('s_add_u32 s14, s14, 1')
        a('s_cmp_lt_u32 s14, %d', SPIN)
        a('s_cbranch_scc1 %s', lp)
        a('s_endpgm')
    def xdma():
        a('s_mov_b32 m0, s36')
        a('s_add_u32 s30, s34, 4096')
        for i in range(4): a('buffer_load_dwordx4 v1, s[8:11], s34 offen offset:%d sc1 lds', 1024 * i)
        a('s_add_u32 m0, s36, 4096')
        a('s_add_u32 s34, s34, %d', XSEG)
        for i in range(3): a('buffer_load_dwordx4 v1, s[8:11], s30 offen offset:%d sc1 lds', 1024 * i)
    def ddma(src0, src1):
        r = [['buffer_load_dwordx4 v1, s[8:11], %s offen offset:%d sc1 lds' % (src0, 1024 * i)] for i in range(4)]
        r[3].append('s_add_u32 m0, s37, 16384')
        r += [['buffer_load_dwordx4 v1, s[8:11], %s offen offset:%d sc1 lds' % (src1, 1024 * i)] for i in range(4)]
        return r
    def fcheck(src, tmp, seg):
        a('v_lshrrev_b32 v%d, 5, v0', tmp)
        a('v_lshl_add_u32 v%d, v%d, 1, v%d', tmp, src, tmp)
        a('v_cmp_ge_u32 vcc, %s, v%d', seg, tmp)
        a('s_nop 1')
        a('s_and_b64 vcc, vcc, s[60:61]')
    def dwait(seg):
        lp, ok = a.new('dw'), a.new('dk')
        a('s_mov_b32 s14, 0')
        a.label(lp)
        a('v_lshlrev_b32 v3, 2, v0')
        a('buffer_load_dword v18, v3, s[8:11], s49 offen sc1')
        a('s_waitcnt vmcnt(0)')
        fcheck(18, 3, seg)
        a('s_cbranch_scc0 %s', ok)
        a('s_sleep 2')
        spin(lp)
        a.label(ok)
    def frag_offsets():
        a('s_lshl_b32 s33, s3, 1')
        for lam in range(7):
            a('s_lshl_b32 s%d, s33, 10', 15 + lam)
            if lam < 6:
                a('s_add_u32 s33, s33, 1')
                a('s_cmp_ge_u32 s33, 7')
                a('s_cselect_b32 s32, 7, 0')
                a('s_sub_u32 s33, s33, s32')
    def wload(order, tile_off):
        n = 0
        for i in list(range(49, len(order))) + list(range(49)):
            t, lam = order[i]
            a('s_lshl_b32 s31, s%d, 1', 15 + lam)
            a('s_add_u32 s31, s31, s30')
            if tile_off(t): a('s_add_u32 s31, s31, %d', tile_off(t))
            if i >= 49:
                a('s_add_u32 m0, s29, %d', 2048 * (i - 49))
                a('s_nop 0')
                a('buffer_load_dwordx4 v1, s[8:11], s31 offen sc1 lds')
                a('buffer_load_dwordx4 v1, s[8:11], s31 offen offset:1024 sc1 lds')
            else:
                a('buffer_load_dwordx4 %s, v1, s[8:11], s31 offen sc1', Wreg(i, 4, 0))
                a('buffer_load_dwordx4 %s, v1, s[8:11], s31 offen offset:1024 sc1', Wreg(i, 4, 4))
            n += 2
            if n >= 48 and n % 8 == 0: a('s_waitcnt vmcnt(40)')

    a.label('team')
    if dev: a('s_memrealtime s[90:91]')
    a('s_cmp_ge_u32 s30, %d', NTEAM)
    a('s_cbranch_scc1 tdie')
    a('s_and_b32 s4, s30, 15')
    a('s_lshr_b32 s5, s30, 4')
    a('s_getreg_b32 s31, hwreg(HW_REG_XCC_ID)')
    a('s_and_b32 s31, s31, 15')
    a('s_add_u32 s31, s31, 1')
    a('v_mov_b32 v3, s31')
    a('s_lshl_b32 s32, s30, 2')
    a('buffer_store_dword v3, off, s[44:47], s32 sc1')
    a('v_lshlrev_b32 v1, 4, v0')
    frag_offsets()
    for r in range(4, 16): a('v_mov_b32 v%d, 0', r)
    a('v_and_b32 v3, 2, v0')
    a('v_cmp_eq_u32 s[58:59], 0, v3')
    a('v_mov_b32 v2, 0xeeee')
    a('v_mov_b32 v18, 0x4444')
    a('v_cndmask_b32 v2, v2, v18, s[58:59]')
    a('v_add_u32 v16, s15, v1')
    a('v_add_u32 v17, s16, v1')
    a('s_mov_b32 s49, 0x%x', DPROG)
    a('v_and_b32 v3, 31, v0')
    a('v_cmp_gt_u32 s[60:61], 28, v3')
    a('v_cmp_gt_u32 s[62:63], 56, v0')
    lv, lj = a.new('iv'), a.new('ij')
    a('s_cmp_eq_u32 s5, 1')
    a('s_cbranch_scc1 %s', lv)
    fold.wait_all(a, FLG_M, 256)
    fold.wait_head(a, FLG_A, 's4')
    a('s_mul_i32 s30, s4, 28')
    a('s_mul_i32 s32, s3, 7')
    a('s_add_u32 s30, s30, s32')
    a('s_mul_i32 s30, s30, 14336')
    wload(ORD_S, lambda t: t * 14336)
    a('v_and_b32 v3, 8, v0')
    a('v_cmp_eq_u32 vcc, 0, v3')
    a('s_nop 1')
    a('v_cndmask_b32 v14, 0, 1.0, vcc')
    bits(4, [(2, 2, 6), (0, 1, 5), (4, 2, 3), (1, 1, 2)])
    bits(5, [(4, 2, 8), (0, 4, 3)])
    a('s_lshl_b32 s30, s3, 11')
    a('s_add_u32 s30, s30, %d', L_T)
    a('v_add_u32 v4, s30, v4')
    a('v_add_u32 v5, s30, v5')
    a('s_mul_i32 s30, s3, 3584')
    a('s_add_u32 s30, s30, %d', L_X)
    a('v_add_u32 v6, s30, v1')
    bits(8, [(5, 1, 8), (1, 2, 6), (0, 1, 4), (4, 1, 3)])
    a('s_mul_i32 s30, s3, 1792')
    a('v_add_u32 v8, s30, v8')
    a('v_add_u32 v9, 1024, v8')
    bits(10, [(4, 2, 9), (1, 1, 6), (2, 2, 4), (0, 1, 2)])
    bits(15, [(4, 2, 9), (0, 4, 4)])
    a('s_lshl_b32 s31, s3, 11')
    a('s_add_u32 s31, s31, %d', L_S)
    a('v_add_u32 v10, s31, v10')
    a('v_add_u32 v15, s31, v15')
    a('s_lshl_b32 s31, s3, 10')
    a('s_add_u32 s31, s31, %d', L_S)
    a('v_add_u32 v11, s31, v1')
    bits(12, [(3, 1, 8), (5, 1, 6), (2, 1, 5), (4, 1, 4), (0, 2, 2)])
    a('s_lshl_b32 s30, s4, 9')
    a('s_lshl_b32 s31, s3, 7')
    a('s_add_u32 s30, s30, s31')
    a('v_add_u32 v12, s30, v12')
    bits(13, [(1, 2, 7), (4, 2, 4)])
    a('s_lshr_b32 s30, s4, 2')
    a('s_lshl_b32 s30, s30, 9')
    a('s_and_b32 s31, s4, 3')
    a('s_lshl_b32 s31, s31, 2')
    a('s_add_u32 s30, s30, s31')
    a('s_lshl_b32 s31, s3, 6')
    a('s_add_u32 s30, s30, s31')
    a('s_add_u32 s30, s30, 8192')
    a('v_add_u32 v13, s30, v13')
    a('v_and_b32 v3, 9, v0')
    a('v_cmp_eq_u32 vcc, 0, v3')
    a('v_mov_b32 v18, 0x%x', OOB)
    a('s_nop 0')
    a('v_cndmask_b32 v13, v18, v13, vcc')
    a('v_mov_b32 v3, 0')
    a('v_lshlrev_b32 v18, 2, v0')
    a('ds_write_b32 v18, v3 offset:%d', L_MEM + 7168)
    for w in range(4): a('ds_write_b32 v18, v3 offset:%d', L_T + w * 2048 + 1792)
    for o in (0, 256): a('ds_write_b32 v18, v3 offset:%d', L_X + 28672 + o)
    a('s_mul_i32 s30, s3, 7168')
    a('s_add_u32 s34, s30, 0x%x', XF)
    a('s_add_u32 s36, s30, %d', L_X)
    xdma()
    a('s_lshl_b32 s31, s4, 10')
    a('s_add_u32 s27, s31, 0x%x', MEMX)
    a('s_cmp_lt_u32 s4, 7')
    a('s_cselect_b32 s27, s27, 0x%x', OOB)
    a('s_add_u32 s26, s31, 0x%x', PR)
    a('s_cmp_lt_u32 s4, 10')
    a('s_cselect_b32 s26, s26, 0x%x', OOB)
    a('s_cmp_eq_u32 s3, 2')
    a('s_cselect_b32 s27, s26, s27')
    a('s_mov_b32 s28, %d', UNIT)
    a('s_cselect_b32 s28, %d, s28', PSLOT)
    a('s_lshl_b32 s31, s4, 2')
    a('s_add_u32 s31, s31, s3')
    a('s_mul_i32 s35, s31, 7168')
    a('s_add_u32 s35, s35, 0x%x', DD + 2 * DSEG)
    a('v_lshl_add_u32 v7, v0, 7, s35')
    a('s_lshl_b32 s31, s31, 9')
    a('s_add_u32 s31, s31, 0x%x', XF + 2 * XSEG)
    a('v_and_b32 v3, 3, v0')
    a('v_lshl_add_u32 v3, v3, 7, s31')
    if 'tx' in dev: a('v_cmp_gt_u32 s[62:63], 0, v0'); a('s_nop 1')
    a('v_cndmask_b32 v7, v3, v7, s[62:63]')
    a('s_mov_b32 s38, 0x%x', OOB)
    a('s_branch %s', lj)
    a.label(lv)
    fold.wait_wave_heads(a)
    a('s_mul_i32 s30, s3, 4*28')
    a('s_lshl_b32 s32, s4, 1')
    a('s_add_u32 s30, s30, s32')
    a('s_mul_i32 s30, s30, 14336')
    a('s_add_u32 s30, s30, 0x%x', WF_C)
    a('s_mul_i32 s29, s3, 14336')
    a('s_add_u32 s29, s29, %d', L_W)
    wload(ORD_C, lambda t: ((t & 3) * 28 + (t >> 2)) * 14336)
    a('v_add_u32 v14, s29, v1')
    for r, i in zip((4, 5, 7, 12, 13), range(5)): a('v_add_u32 v%d, s%d, v1', r, 17 + i)
    bits(6, [(4, 2, 7), (2, 2, 5), (0, 1, 4)])
    a('s_mul_i32 s30, s3, 1536')
    a('s_sub_u32 s30, 8192, s30')
    a('v_add_u32 v6, s30, v6')
    a('v_mov_b32 v18, 0x%x', OOB)
    a('v_cndmask_b32 v6, v18, v6, s[58:59]')
    bits(8, [(4, 2, 7), (0, 4, 2)])
    a('s_lshl_b32 s30, s3, 9')
    a('s_add_u32 s30, s30, %d', L_C)
    a('v_add_u32 v8, s30, v8')
    a('v_add_u32 v10, 2048, v8')
    bits(9, [(4, 2, 7), (2, 1, 6), (0, 2, 4), (3, 1, 3)])
    a('s_and_b32 s31, s3, 1')
    a('s_lshl_b32 s30, s31, 11')
    a('s_add_u32 s30, s30, %d', L_C)
    a('v_add_u32 v9, s30, v9')
    a('s_lshl_b32 s30, s4, 9')
    a('s_lshl_b32 s31, s31, 8')
    a('s_add_u32 s30, s30, s31')
    a('v_lshl_add_u32 v11, v0, 2, s30')
    a('s_lshl_b32 s30, s3, 12')
    a('s_lshl_b32 s31, s4, 15')
    a('s_add_u32 s35, s30, s31')
    a('s_add_u32 s35, s35, 0x%x', DD)
    a('s_add_u32 s37, s30, %d', L_D)
    fold.wait_all(a, FLG_M, 256, R=24)
    dwait('0')
    a('s_mov_b32 m0, s37')
    a('s_add_u32 s30, s35, 16384')
    for grp in ddma('s35', 's30'):
        for i in grp: a(i)
        a('s_nop 0')
    a('s_add_u32 s35, s35, %d', DSEG)
    a('s_mov_b32 s38, s35')
    a('s_add_u32 s6, s35, 16384')
    a('s_mov_b32 s13, 1')
    a.label(lj)
    lp, l2 = a.new('xc'), a.new('xo')
    a('v_min_u32 v20, %d, v0', NTEAM - 1)
    a('v_lshlrev_b32 v20, 2, v20')
    a('s_mov_b32 s14, 0')
    a.label(lp)
    a('buffer_load_dword v3, v20, s[44:47], 0 offen sc1')
    a('s_waitcnt vmcnt(0)')
    a('v_cmp_eq_u32 vcc, 0, v3')
    a('s_cbranch_vccz %s', l2)
    spin(lp)
    a.label(l2)
    a('v_readfirstlane_b32 s31, v3')
    a('s_mov_b32 s12, 0')
    a('s_add_u32 s32, s15, 0x%x', MEMX)
    a('s_add_u32 s33, s16, 0x%x', MEMX)
    a('v_cmp_ne_u32 vcc, s31, v3')
    a('s_waitcnt lgkmcnt(0)')
    if dev:
        lc = a.new('cal')
        a('s_memrealtime s[82:83]')
        a('s_waitcnt lgkmcnt(0)')
        a.label(lc)
        a('s_memrealtime s[84:85]')
        a('s_memtime s[86:87]')
        a('s_waitcnt lgkmcnt(0)')
        a('s_cmp_eq_u32 s84, s82')
        a('s_cbranch_scc1 %s', lc)
    if 'slow' in dev: a('s_branch tslow')
    a('s_cbranch_vccnz tslow')
    a('s_cmp_eq_u32 s5, 1')
    a('s_cbranch_scc1 cloopF')
    a('s_branch sloopF')
    a.label('tslow')
    a('s_cmp_eq_u32 s5, 1')
    a('s_cbranch_scc1 cloopS')
    a('s_branch sloopS')
    a.label('tdie')
    a('s_endpgm')

    def loop(role, mode):
        SC = ' sc1' if mode == 'S' else ''
        ORDER = ORD_S if role == 's' else ORD_C
        TACC = 20
        MF = 48 if role == 's' else 52
        SB, TA, SACC = 76, 100, 108
        VB, PF, CACC, DB, RT = 52, 60, 72, 80, 112
        TMP = TA if role == 's' else 19
        tails = []
        a.l.append('.p2align 6')
        a.label(role + 'loop' + mode)
        if dev:
            l = a.new('pp')
            a('s_cmp_eq_u32 s12, 8')
            a('s_cbranch_scc0 %s', l)
            a('s_memtime s[78:79]')
            a('s_memrealtime s[88:89]')
            a.label(l)
        if 'stall' in dev and role == 'c':
            a('s_waitcnt lgkmcnt(0)')
            a('s_mov_b32 s70, s76')
        def mpoll():
            a('buffer_load_dwordx4 %s, v1, s[8:11], s32 offen sc1', V(MF, 4))
            a('buffer_load_dwordx4 %s, v1, s[8:11], s33 offen sc1', V(MF + 4, 4))
        NE = 0
        if role == 'c':
            for x in dev:
                if x.startswith('ne'): NE = int(x[2:])
            dd = ddma('s38', 's6') if 'nod' not in dev else []
            a('s_xor_b32 s37, s37, 0x18000')
            a('s_cmp_lg_u32 s13, 0')
            lslow, lback = a.new('dq'), a.new('db')
            a('s_cbranch_scc1 %s', lslow)
            a.label(lback)
            tails.append(('dw', lslow, lback))
            a('s_mov_b32 m0, s37')
            a('s_nop 0')
            for grp in dd[:NE]:
                for ins in grp: a(ins)
                if len(grp) > 1: a('s_nop 0')
        if role == 'c': mpoll()
        for r in range(MF - TACC): a('v_mov_b32 v%d, 0', TACC + r)
        if role == 'c': mpoll()
        sc = ['s_and_b32 s30, s12, 3', 's_mul_i32 s22, s30, %d' % PSLOT, 's_add_u32 s22, s22, 0x%x' % PR,
              's_add_u32 s31, s12, 1', 's_mul_i32 s41, s31, %d' % UNIT, 's_and_b32 s31, s31, 3', 's_mul_i32 s42, s31, %d' % UNIT,
              's_add_u32 s42, s42, 0x%x' % MEMX, 's_add_u32 s32, s42, s15', 's_add_u32 s33, s42, s16']
        if role == 's':
            for r in range(12): a('v_mov_b32 v%d, 0', SACC + r)
            for i in range(5): a('v_add_u32 v%d, s%d, v1', TA + 2 + i, 17 + i)
            radr = [TA + 2 + i for i in range(5)]
            sc += ['s_add_u32 s31, s12, 3', 's_and_b32 s31, s31, 3', 's_mul_i32 s24, s31, s28', 's_add_u32 s24, s24, s27',
                   's_min_u32 s24, s24, 0x%x' % OOB]
        else:
            radr = [4, 5, 7, 12, 13]
            sc += ['s_lshl_b32 s31, s3, 11', 's_add_u32 s43, s22, s31', 's_add_u32 s41, s41, 0x%x' % MEME, 's_xor_b32 s30, s37, 0x18000']
        MD = 2
        if role == 's':
            MD = 3
            for x in dev:
                if x.startswith('md'): MD = int(x[2:])
            for r in range(8): a('v_mov_b32 v%d, -1', MF + r)
            if 'now' not in dev: a('s_waitcnt vmcnt(0)')
        a('s_mov_b32 s14, 0')
        def smf(i):
            t, lam = ORDER[i]
            a('v_smfmac_f32_16x16x64_bf16 %s, %s, %s, v2', V(TACC + 4 * t, 4), V(MF + 4 * lam, 4), Wreg(i))
        lp, lf = a.new('mp'), a.new('mf')
        if role == 'c': a('s_branch %s', lp)
        a.label(lf)
        for x in dev:
            if x.startswith('ms' + role): a('s_sleep %d', int(x[3:]))
        mpoll()
        a('s_add_u32 s14, s14, 1')
        a('s_cmp_lt_u32 s14, %d', SPIN)
        a('s_cbranch_scc0 tdie')
        a.label(lp)
        a('s_waitcnt vmcnt(%d)', 2 * MD - 2)
        a('v_max3_u32 v3, v%d, v%d, v%d', MF, MF + 1, MF + 2)
        a('v_max3_u32 v%d, v%d, v%d, v%d', TMP, MF + 3, MF + 4, MF + 5)
        a('v_max3_u32 v3, v%d, v%d, v3', MF + 6, MF + 7)
        a('v_max_u32 v3, v%d, v3', TMP)
        a('v_cmp_eq_u32 vcc, -1, v3')
        if 'm0' in dev:
            a('ds_write_b128 v16, %s', V(MF, 4))
            a('ds_write_b128 v17, %s', V(MF + 4, 4))
        a('s_cbranch_vccnz %s', lf)
        stamp(0)
        N = len(ORDER)
        gm = [[] for _ in range(N + 8)]
        gv = [[] for _ in range(N + 8)]
        pre = [[] for _ in range(N + 8)]
        rd = ['ds_read_b128 %s, v%d' % (V(MF + 8 + 4 * i, 4), radr[i]) for i in range(5)]
        gv[2].append('v_lshlrev_b32 v3, 2, v0')
        if 'm0' not in dev:
            gm[0].append('ds_write_b128 v16, %s' % V(MF, 4))
            gm[1].append('ds_write_b128 v17, %s' % V(MF + 4, 4))
        GB = 5
        for x in dev:
            if x.startswith('gb') and role == 's': GB = int(x[2:])
        gm[GB] += ['s_waitcnt lgkmcnt(0)', 's_barrier', rd[0]]
        for i in range(1, 5): gm[GB + i].append(rd[i])
        for k in range(0, len(sc), 2): gv[(8 if role == 'c' else 20) + k // 2] += sc[k:k + 2]
        def place(ins, lo):
            k = lo
            while gm[k]: k += 1
            gm[k] += ins if isinstance(ins, list) else [ins]
            return k
        if role == 's':
            B0 = 21
            def epi(t):
                c = TACC + 4 * t
                return (['v_add_f32 v%d, v%d, v%d' % (c, c, c + 2), 'v_add_f32 v%d, v%d, v%d' % (c + 1, c + 1, c + 3),
                         'v_cvt_pk_bf16_f32 v%d, v%d, v%d' % (c, c, c + 1)], ['ds_write_b32 v4, v%d offset:%d' % (c, 256 * t)])
            for t in range(6):
                v, m = epi(t)
                for i, ins in enumerate(v): gv[B0 + 4 * t + 7 + i].append(ins)
                gm[B0 + 4 * t + 10].append(m[0])
            place('ds_read_b64_tr_b16 %s, v5' % V(TA, 2), B0 + 23)
            place('ds_read_b64_tr_b16 %s, v5 offset:128' % V(TA + 2, 2), B0 + 24)
            def brd(step, xb0, xb1, mb):
                r = []
                for kt, b in ((0, xb0), (1, xb1)):
                    for hh in range(2):
                        r.append('ds_read_b128 %s, v6 offset:%d' % (V(b + 4 * hh, 4), kt * 14336 + (2 * step + hh) * 1024))
                ad = 'v8' if step == 0 else 'v9'
                for hh in range(2):
                    for qq in range(2):
                        r.append('ds_read2_b32 %s, %s offset0:%d offset1:%d' % (V(mb + 4 * hh + 2 * qq, 2), ad, 128 * hh + qq, 128 * hh + qq + 8))
                return r
            place('buffer_load_dword v18, v3, s[8:11], s49 offen sc1', GB)
            place('buffer_load_dword v19, v7, s[8:11], s38 offen' if 'notouch' not in dev else 'buffer_load_dword v19, v3, s[8:11], s49 offen sc1', GB)
            BL = 12
            for x in dev:
                if x.startswith('bl'): BL = int(x[2:])
            for ins in brd(0, SB, SB + 8, SB + 16): place(ins, BL)
            b1 = brd(1, TACC, TACC + 8, MF)
            k = place(['s_waitcnt vmcnt(2)', b1[4]], 20)
            for ins in b1[5:]: place(ins, k)
            for ins in b1[0:2]: place(ins, B0 + 15)
            for ins in b1[2:4]: place(ins, B0 + 23)
            def younger_ds(k0, k1): return sum(1 for kk in range(k0, k1) for x in gm[kk] if x.startswith('ds_'))
            pre[14].append('s_waitcnt lgkmcnt(%d)' % younger_ds(GB + 1, 14))
            pre[B0].append('s_waitcnt lgkmcnt(%d)' % younger_ds(GB + 5, B0))
        else:
            pre[16].append('s_waitcnt lgkmcnt(4)')
            pre[24].append('s_waitcnt lgkmcnt(0)')
            sp = 4
            for x in dev:
                if x.startswith('sp'): sp = int(x[2:])
            rest = dd[NE:]
            for i, grp in enumerate(rest): gm[12 + sp * i] += grp
            gm[10].append('buffer_load_dword v18, v3, s[8:11], s49 offen sc1')
            wr = ['ds_read_b128 %s, v14 offset:%d' % (V(CSPILL[i >> 1] + 4 * (i & 1), 4), 1024 * i) for i in range(14)]
            for ins in wr[:10]: place(ins, 24)
            k = 38
            while gm[k]: k += 1
            younger = sum(1 for kk in range(k) for x in gm[kk] if x.startswith('buffer_'))
            k = place(['s_waitcnt vmcnt(%d)' % younger, wr[10]], 38)
            for ins in wr[11:]: place(ins, k)
            pre[49].append('s_waitcnt lgkmcnt(0)')
            gv[20].append('v_add_u32 v15, s30, v1')
        for k in range(N):
            for ins in pre[k]: a(ins)
            smf(k)
            for ins in gm[k] + gv[k]: a(ins)
        stamp(1)
        if role == 's':
            for kk in range(N, N + 3):
                for ins in gm[kk] + gv[kk]: a(ins)
            assert not any(gm[N + 3:]) and not any(gv[N + 3:])
            a('s_cmp_lt_u32 s3, 2')
            a('s_nop 1')
            v, m = epi(6)
            for ins in v + m: a(ins)
            a('ds_read_b64_tr_b16 %s, v5 offset:1024', V(TA + 4, 2))
            a('ds_read_b64_tr_b16 %s, v5 offset:1152', V(TA + 6, 2))
            a('s_waitcnt lgkmcnt(7)')
            for kt in range(3):
                a('v_smfmac_f32_16x16x64_bf16 %s, %s, %s, v2', V(SACC + 4 * kt, 4), V(TA, 4), V(SB + 8 * kt, 8))
            a('s_waitcnt lgkmcnt(0)')
            for kt, b in enumerate((TACC, TACC + 8, MF)):
                a('v_smfmac_f32_16x16x64_bf16 %s, %s, %s, v2', V(SACC + 4 * kt, 4), V(TA + 4, 4), V(b, 8))
            a('s_nop %d', 5 if 'tight' not in dev else 1)
            def sadd(kt):
                c = SACC + 4 * kt
                if 'nopk' not in dev: a('v_pk_add_f32 %s, %s, %s', V(c, 2), V(c, 2), V(c + 2, 2))
                else:
                    a('v_add_f32 v%d, v%d, v%d', c, c, c + 2)
                    a('v_add_f32 v%d, v%d, v%d', c + 1, c + 1, c + 3)
            def swr(kt):
                c = SACC + 4 * kt
                if kt < 2: a('ds_write2_b32 v10, v%d, v%d offset0:%d offset1:%d', c, c + 1, 32 * kt, 32 * kt + 64)
                else: a('ds_write2_b32 v15, v%d, v%d offset0:2 offset1:66', c, c + 1)
            if 'so0' not in dev: sadd(0); sadd(1); swr(0); sadd(2); swr(1); swr(2)
            else:
                for kt in range(3): sadd(kt); swr(kt)
            lns, ljn = a.new('ns'), a.new('jn')
            a('s_cbranch_scc0 %s', lns)
            tails.append(('nv', lns, ljn))
            def warm(key, regs):
                n = 0
                for x in dev:
                    if x.startswith(key): n = int(x[len(key):])
                for i in range(n):
                    a('v_mov_b32 v%d, 0', regs + i)
                    a('s_nop 2')
            warm('wa', TACC + 16)
            a('s_waitcnt lgkmcnt(0)')
            a('s_barrier')
            stamp(2)
            for w in range(4): a('ds_read_b96 %s, v11 offset:%d', V(76 + 4 * w, 3), 2048 * w) if 'b96' in dev else a('ds_read_b128 %s, v11 offset:%d', V(76 + 4 * w, 4), 2048 * w)
            warm('wb', TACC + 22)
            a('s_waitcnt lgkmcnt(2)')
            a('v_pk_add_f32 v[76:77], v[76:77], v[80:81]')
            a('v_add_f32 v78, v78, v82')
            a('s_waitcnt lgkmcnt(0)')
            a('v_pk_add_f32 v[84:85], v[84:85], v[88:89]')
            a('v_add_f32 v86, v86, v90')
            a('v_pk_add_f32 v[76:77], v[76:77], v[84:85]')
            a('v_add_f32 v78, v78, v86')
            DP = ('quad_perm:[1,0,3,2]', 'quad_perm:[2,3,0,1]', 'row_half_mirror', 'row_mirror')
            def dpp(op, d, s_, ctl): a('%s_dpp v%d, v%d, v%d %s row_mask:0xf bank_mask:0xf', op, d, s_, s_, ctl)
            a('v_max3_f32 v84, v76, v77, v78')
            a('v_sub_f32 v76, v76, v84')
            a('v_sub_f32 v77, v77, v84')
            dpp('v_max_f32', 85, 84, DP[0])
            a('v_sub_f32 v78, v78, v84')
            a('v_exp_f32 v76, v76')
            dpp('v_max_f32', 85, 85, DP[1])
            a('v_exp_f32 v77, v77')
            a('s_nop 0')
            dpp('v_max_f32', 85, 85, DP[2])
            a('v_exp_f32 v78, v78')
            a('v_add_f32 v86, v76, v77')
            dpp('v_max_f32', 85, 85, DP[3])
            a('v_sub_f32 v84, v84, v85')
            a('v_exp_f32 v84, v84')
            a('v_fmac_f32 v86, v78, v14')
            a('v_mul_f32 v86, v86, v84')
            a('v_mul_f32 v76, v76, v84')
            a('v_mul_f32 v77, v77, v84')
            dpp('v_add_f32', 86, 86, DP[0])
            a('v_mul_f32 v78, v78, v84')
            a('s_nop 0')
            for ctl in DP[1:]:
                dpp('v_add_f32', 86, 86, ctl)
                if ctl != DP[3]: a('s_nop 1')
            a('v_rcp_f32 v86, v86')
            a('s_nop 0')
            a('v_mul_f32 v76, v76, v86')
            a('v_mul_f32 v77, v77, v86')
            a('v_cvt_pk_bf16_f32 v88, |v76|, |v77|')
            a('buffer_store_dword v88, v12, s[8:11], s22 offen' + SC)
            a('v_mul_f32_dpp v79, v78, v86 quad_perm:[1,0,3,2] row_mask:0xf bank_mask:0xf')
            a('v_mul_f32 v78, v78, v86')
            a('v_cvt_pk_bf16_f32 v90, |v78|, |v79|')
            a('buffer_store_dword v90, v13, s[8:11], s22 offen' + SC)
            stamp(3)
            a('s_waitcnt vmcnt(3)')
            a.label(ljn)
            a('s_barrier')
            if 'nox' not in dev: xdma()
            a('v_add_u32 v7, %d, v7', XSEG)
            a('s_mov_b64 exec, s[62:63]')
            a('v_add_u32 v7, %d, v7', DSEG - XSEG)
            a('s_mov_b64 exec, -1')
            a('s_add_u32 s31, s12, 3')
            fcheck(18, 3, 's31')
            a('s_cselect_b32 s38, 0x%x, 0', OOB)
            a('s_cmp_gt_u32 s31, 62')
            a('s_cselect_b32 s38, 0x%x, s38', OOB)
            for x in dev:
                if x.startswith('ds'): a('s_sleep %d', int(x[2:]))
        else:
            assert not any(gm[N:]) and not any(gv[N:])
            def pld1(k):
                a('buffer_load_dwordx4 %s, %s, s[8:11], s43 offen offset:%d sc1', V(PF + 4 * k, 4), 'v1' if k else 'v6', 1024 if k == 2 else 0)
            def pld():
                for k in range(3): pld1(k)
            for i in range(8): a('ds_read_b128 %s, v15 offset:%d', V(DB + 4 * i, 4), 1024 * (i & 3) + 16384 * (i >> 2))
            pld()
            for t in range(8):
                c = TACC + 4 * t
                a('v_add_f32 v%d, v%d, v%d', c, c, c + 2)
                a('v_add_f32 v%d, v%d, v%d', c + 1, c + 1, c + 3)
                a('v_cvt_pk_bf16_f32 v%d, v%d, v%d', VB + t, c, c + 1)
            a('s_waitcnt vmcnt(3)')
            a('s_add_u32 s35, s35, %d', DSEG)
            a('s_add_u32 s31, s12, 2')
            fcheck(18, 3, 's31')
            a('s_cselect_b32 s13, 1, 0')
            a('s_add_u32 s6, s35, 16384')
            a('s_cmp_gt_u32 s31, 62')
            a('s_cselect_b32 s38, 0x%x, s35', OOB)
            a('s_cselect_b32 s6, 0x%x, s6', OOB)
            a('s_cselect_b32 s13, 0, s13')
            a('s_mov_b32 s14, 0')
            stamp(4)
            a('s_waitcnt lgkmcnt(0)')
            lr, lq = a.new('pr'), a.new('pq')
            def pchk():
                a('v_or3_b32 v3, v%d, v%d, v%d', PF, PF + 1, PF + 2)
                a('v_or3_b32 v19, v%d, v%d, v%d', PF + 3, PF + 4, PF + 5)
                a('v_or3_b32 v3, v%d, v%d, v3', PF + 6, PF + 7)
                a('v_or3_b32 v19, v%d, v%d, v19', PF + 8, PF + 9)
                a('v_or3_b32 v3, v%d, v%d, v3', PF + 10, PF + 11)
                a('v_or_b32 v3, v19, v3')
                a('v_cmp_gt_i32 vcc, 0, v3')
            if 'pone' not in dev:
                a.label(lr)
                pld()
                a('s_add_u32 s14, s14, 1')
                a('s_cmp_lt_u32 s14, %d', SPIN)
                a('s_cbranch_scc0 tdie')
                a('s_waitcnt vmcnt(3)')
                pchk()
                a('v_mfma_f32_16x16x32_bf16 %s, %s, %s, 0', V(CACC, 4), V(PF, 4), V(VB, 4))
                a('s_cmp_lt_u32 s3, 2')
                a('s_cbranch_vccnz %s', lr)
            else:
                PD = 3
                for x in dev:
                    if x.startswith('pq'): PD = int(x[2:])
                a('s_waitcnt vmcnt(0)')
                a.label(lr)
                for k in range(3):
                    pld1(k)
                    if k == 0:
                        a('s_add_u32 s14, s14, 1')
                        a('s_cmp_lt_u32 s14, %d', SPIN)
                        a('s_cbranch_scc0 tdie')
                    a('s_waitcnt vmcnt(%d)', PD)
                    pchk()
                    a('s_cbranch_vccz %s' % lq if k < 2 else 's_cbranch_vccnz %s' % lr)
                a.label(lq)
                a('v_mfma_f32_16x16x32_bf16 %s, %s, %s, 0', V(CACC, 4), V(PF, 4), V(VB, 4))
                a('s_cmp_lt_u32 s3, 2')
            a('v_smfmac_f32_16x16x64_bf16 %s, %s, %s, v2', V(CACC, 4), V(PF + 4, 4), V(DB, 8))
            a('v_smfmac_f32_16x16x64_bf16 %s, %s, %s, v2', V(CACC, 4), V(PF + 8, 4), V(DB + 8, 8))
            a('v_mfma_f32_16x16x32_bf16 %s, %s, %s, 0', V(CACC + 4, 4), V(PF, 4), V(VB + 4, 4))
            a('v_smfmac_f32_16x16x64_bf16 %s, %s, %s, v2', V(CACC + 4, 4), V(PF + 4, 4), V(DB + 16, 8))
            a('v_smfmac_f32_16x16x64_bf16 %s, %s, %s, v2', V(CACC + 4, 4), V(PF + 8, 4), V(DB + 24, 8))
            stamp(5)
            a('v_add_f32 v%d, v%d, v%d', CACC, CACC, CACC + 2)
            a('v_add_f32 v%d, v%d, v%d', CACC + 1, CACC + 1, CACC + 3)
            a('ds_write2_b32 v8, v%d, v%d offset0:0 offset1:16', CACC, CACC + 1)
            a('s_nop 4')
            a('v_add_f32 v%d, v%d, v%d', CACC + 4, CACC + 4, CACC + 6)
            a('v_add_f32 v%d, v%d, v%d', CACC + 5, CACC + 5, CACC + 7)
            a('ds_write2_b32 v10, v%d, v%d offset0:0 offset1:16', CACC + 4, CACC + 5)
            lnr, ljr = a.new('nr'), a.new('jr')
            a('s_cbranch_scc0 %s', lnr)
            tails.append(('ns', lnr, ljr))
            a('s_waitcnt lgkmcnt(0)')
            a('s_barrier')
            for w in range(4): a('ds_read_b64 %s, v9 offset:%d', V(RT + 2 * w, 2), 512 * w)
            a('s_waitcnt lgkmcnt(2)')
            a('v_pk_add_f32 %s, %s, %s', V(RT, 2), V(RT, 2), V(RT + 2, 2))
            a('s_waitcnt lgkmcnt(0)')
            a('v_pk_add_f32 %s, %s, %s', V(RT + 4, 2), V(RT + 4, 2), V(RT + 6, 2))
            a('v_pk_add_f32 %s, %s, %s', V(RT, 2), V(RT, 2), V(RT + 4, 2))
            a('v_cvt_pk_bf16_f32 v%d, v%d, v%d', RT, RT, RT + 1)
            a('v_min_u32 v%d, -2, v%d', RT, RT)
            a('buffer_store_dword v%d, v11, s[8:11], s42 offen%s', RT, SC)
            stamp(6)
            a('s_barrier')
            if 'noext' not in dev: a('buffer_store_dword v%d, v11, s[8:11], s41 offen sc1', RT)
            a.label(ljr)
            for x in dev:
                if x.startswith('dc'): a('s_sleep %d', int(x[2:]))
        if dev:
            ld = a.new('dv')
            a('s_cmp_eq_u32 s12, 40')
            a('s_cbranch_scc0 %s', ld)
            a('s_memtime s[80:81]')
            a('s_memrealtime s[82:83]')
            a('s_waitcnt lgkmcnt(0)')
            a('s_sub_u32 s78, s80, s78')
            a('s_sub_u32 s88, s82, s88')
            a('s_lshl_b32 s30, s5, 4')
            a('s_add_u32 s30, s30, s4')
            a('s_lshl_b32 s30, s30, 2')
            a('s_add_u32 s30, s30, s3')
            a('s_lshl_b32 s30, s30, 6')
            a('s_add_u32 s30, s30, 0x3F00000')
            for kk in range(13):
                a('v_mov_b32 v99, s%d', 64 + 2 * kk)
                a('buffer_store_dword v99, off, s[8:11], s30 offset:%d', 4 * kk)
                a('s_nop 1')
            a.label(ld)
        a('s_add_u32 s12, s12, 1')
        a('s_cmp_lt_u32 s12, 63')
        a('s_cbranch_scc1 %sloop%s', role, mode)
        if dev:
            a('s_memrealtime s[82:83]')
            a('s_waitcnt lgkmcnt(0)')
            a('s_lshl_b32 s30, s2, 4')
            a('s_add_u32 s30, s30, 0x3F10000')
            for kk, r in enumerate((90, 84, 82)):
                a('v_mov_b32 v99, s%d', r)
                a('buffer_store_dword v99, off, s[8:11], s30 offset:%d', 4 * kk)
                a('s_nop 1')
        a('s_endpgm')
        for p in tails:
            a.label(p[1])
            if p[0] == 'dw':
                a('s_add_u32 s31, s12, 1')
                dwait('s31')
                a('s_branch %s', p[2])
            elif p[0] == 'nv':
                for r in range(4): a('v_mov_b32 v%d, -1', 92 + r)
                a('s_waitcnt lgkmcnt(0)')
                a('s_barrier')
                a('buffer_store_dwordx4 v[92:95], v1, s[8:11], s24 offen' + SC)
                a('s_waitcnt vmcnt(2)')
                a('s_branch %s', p[2])
            elif p[0] == 'ns':
                a('s_waitcnt lgkmcnt(0)')
                a('s_barrier')
                a('s_barrier')
                a('s_branch %s', p[2])
    for mode in 'FS':
        for role in 'sc': loop(role, mode)
```

```python
from common import *
import fold
SPIN = 400000
XB = 28672 + 128
KT1 = 14336 + 64
DST = 'sc1'
DEV = False
def tl(a, k):
    if DEV:
        a('s_memrealtime s[82:83]')
        a('s_waitcnt lgkmcnt(0)')
        a('s_lshl_b32 s84, s2, 4')
        a('s_add_u32 s84, s84, 0x3F10000')
        a('v_mov_b32 v4, s82')
        a('buffer_store_dword v4, off, s[8:11], s84 offset:%d', 4 * k)
        a('s_nop 1')

NSET_D, NSET_F, NSET_X, NSET_O = 2, 2, 3, 13

def lane_consts(a):
    a('v_lshlrev_b32 v1, 4, v0')
    a('v_and_b32 v2, 15, v0')
    a('v_lshrrev_b32 v3, 4, v0')

def x_setup(a, lx):
    a('s_mul_i32 s30, s3, 7168')
    a('s_mul_i32 s34, s12, %d', XSEG)
    a('s_add_u32 s34, s34, s30')
    a('s_add_u32 s34, s34, 0x%x', XF)
    a('s_lshr_b32 s31, s3, 1')
    a('s_lshl_b32 s31, s31, 6')
    a('s_add_u32 s36, s30, s31')
    a('s_add_u32 s36, s36, %d', lx)
    a('s_mov_b32 s50, %d', XB)

def x_dma(a):
    a('s_mov_b32 m0, s36')
    a('s_add_u32 s30, s34, 4096')
    for i in range(4): a('buffer_load_dwordx4 v1, s[8:11], s34 offen offset:%d sc1 lds', 1024 * i)
    a('s_add_u32 m0, s36, 4096')
    a('s_nop 0')
    for i in range(3): a('buffer_load_dwordx4 v1, s[8:11], s30 offen offset:%d sc1 lds', 1024 * i)

def x_next(a, nset):
    a('s_add_u32 s34, s34, %d', XSEG * nset)
    a('s_add_u32 s36, s36, s50')

def perm_rows_addr(a, dst, lx, gmul_shift, tmp):
    a('v_lshrrev_b32 v%d, 3, v2', tmp)
    a('s_movk_i32 s30, %d', KT1)
    a('v_mul_u32_u24 v%d, s30, v%d', dst, tmp)
    a('v_bfe_u32 v%d, v0, 2, 1', tmp)
    a('v_lshl_add_u32 v%d, v%d, 7, v%d', dst, tmp, dst)
    a('v_and_b32 v%d, 3, v0', tmp)
    a('v_lshl_add_u32 v%d, v%d, 4, v%d', dst, tmp, dst)
    a('v_add_u32 v%d, %d, v%d', dst, lx, dst)

def publish(a, word_sgpr_off, val):
    l = a.new('pb')
    a('s_cmp_eq_u32 s3, 0')
    a('s_cbranch_scc0 %s', l)
    a('v_mov_b32 v4, %s', val)
    a('v_mov_b32 v5, 0')
    a('buffer_store_dword v4, v5, s[8:11], %s offen sc1', word_sgpr_off)
    a.label(l)

def sg_loop(a, name, nset, nst, mfma_fn, epi_fn, rd_fn, tail_fn=None):
    XR = 64
    x_dma(a)
    a('s_mov_b32 s13, 0')
    a('s_waitcnt vmcnt(0)')
    tl(a, 1)
    a('s_branch %s_in', name)
    a.label(name + '_loop')
    a('s_waitcnt vmcnt(%d)', nst)
    a.label(name + '_in')
    a('s_barrier')
    l = a.new('np')
    a('s_cmp_lt_u32 s13, 2')
    a('s_cbranch_scc1 %s', l)
    a('s_sub_u32 s31, s13, 1')
    publish(a, 's35', 's31')
    a.label(l)
    x_next(a, nset)
    x_dma(a)
    def rd(j):
        for mt in range(2): rd_fn(XR + 8 * (j % 4) + 4 * mt, j, mt)
    for j in range(3): rd(j)
    for j in range(14):
        if j + 3 < 14: rd(j + 3)
        a('s_waitcnt lgkmcnt(%d)', 2 * min(3, 13 - j))
        mfma_fn(j, XR + 8 * (j % 4))
    a('v_add_u32 v6, s50, v6')
    a('s_sub_u32 s50, 0, s50')
    a('s_nop 6')
    epi_fn()
    a('s_add_u32 s13, s13, 1')
    a('s_add_u32 s12, s12, %d', nset)
    if tail_fn is not None or name == 'rd':
        l = a.new('fp')
        a('s_cmp_eq_u32 s13, 1')
        a('s_cbranch_scc0 %s', l)
        a('s_waitcnt vmcnt(0)')
        a('s_barrier')
        publish(a, 's35', 's13')
        a.label(l)
    a('s_cmp_lt_u32 s12, 64')
    a('s_cbranch_scc1 %s_loop', name)
    a('s_waitcnt vmcnt(0)')
    a('s_barrier')
    publish(a, 's35', 's13')
    tl(a, 2)
    if tail_fn is None: a('s_endpgm')
    else: tail_fn()

def mem_fetch(a, KO, va0, va1):
    lp, ok = a.new('xm'), a.new('xk')
    a('s_mov_b32 s14, 0')
    a.label(lp)
    a('buffer_load_dwordx4 %s, v1, s[8:11], s32 offen sc1', V(KO, 4))
    a('buffer_load_dwordx4 %s, v1, s[8:11], s33 offen sc1', V(KO + 4, 4))
    a('s_waitcnt vmcnt(0)')
    a('v_max3_u32 v4, v%d, v%d, v%d', KO, KO + 1, KO + 2)
    a('v_max3_u32 v5, v%d, v%d, v%d', KO + 3, KO + 4, KO + 5)
    a('v_max3_u32 v4, v%d, v%d, v4', KO + 6, KO + 7)
    a('v_max_u32 v4, v4, v5')
    a('v_cmp_eq_u32 vcc, -1, v4')
    a('s_cbranch_vccz %s', ok)
    a('s_sleep 2')
    a('s_add_u32 s14, s14, 1')
    a('s_cmp_lt_u32 s14, %d', SPIN)
    a('s_cbranch_scc1 %s', lp)
    a('s_endpgm')
    a.label(ok)
    a('ds_write_b128 v%d, %s', va0, V(KO, 4))
    a('ds_write_b128 v%d, %s', va1, V(KO + 4, 4))

def own_frags(a, lm, va0, va1):
    a('s_lshl_b32 s15, s3, 11')
    a('s_add_u32 s16, s15, 1024')
    a('s_cmp_eq_u32 s3, 3')
    a('s_cselect_b32 s16, 0, s16')
    a('s_add_u32 s31, s15, %d', lm)
    a('v_add_u32 v%d, s31, v1', va0)
    a('s_add_u32 s31, s16, %d', lm)
    a('v_add_u32 v%d, s31, v1', va1)

def gen_d(a, vtail=True):
    a.label('role_d')
    tl(a, 0)
    a('s_lshr_b32 s6, s30, 1')
    a('s_and_b32 s12, s30, 1')
    lane_consts(a)
    fold.wait_all(a, FLG_M, 256)
    a('s_lshl_b32 s31, s3, 2')
    a('s_mul_i32 s31, s31, 28')
    a('s_add_u32 s31, s31, s6')
    a('s_mul_i32 s31, s31, 14336')
    a('s_add_u32 s31, s31, 0x%x', WF_C)
    for hh in range(4):
        for j in range(14):
            if j % 4 == 0: a('s_add_u32 s32, s31, %d', hh * 28 * 14336 + j * 1024)
            a('buffer_load_dwordx4 %s, v1, s[8:11], s32 offen offset:%d sc1', A((hh * 14 + j) * 4, 4), (j % 4) * 1024)
    x_setup(a, 0)
    perm_rows_addr(a, 6, 0, 0, 7)
    a('v_lshl_add_u32 v6, v3, 8, v6')
    a('s_lshl_b32 s35, s12, 7')
    a('s_lshl_b32 s31, s6, 2')
    a('s_add_u32 s35, s35, s31')
    a('s_add_u32 s35, s35, 0x%x', DPROG)
    ACC = 32
    def rd(b, j, mt): a('ds_read_b128 %s, v6 offset:%d', V(b, 4), j * 1024 + mt * 64)
    def mf(j, xb):
        for hh in range(4):
            for mt in range(2):
                c = ACC + (hh * 2 + mt) * 4
                a('v_mfma_f32_16x16x32_bf16 %s, %s, %s, %s', V(c, 4), V(xb + 4 * mt, 4), A((hh * 14 + j) * 4, 4), V(c, 4) if j else '0')
    def epi():
        a('s_mul_i32 s30, s12, %d', DSEG)
        a('s_lshl_b32 s31, s6, 14')
        a('s_add_u32 s30, s30, s31')
        a('s_lshl_b32 s31, s3, 12')
        a('s_add_u32 s30, s30, s31')
        a('s_add_u32 s30, s30, 0x%x', DD)
        for hh in range(4):
            c = ACC + hh * 8
            o = 96 + 4 * hh
            for d in range(4): a('v_cvt_pk_bf16_f32 v%d, v%d, v%d', o + d, c + 2 * d, c + 2 * d + 1)
            a('buffer_store_dwordx4 %s, v1, s[8:11], s30 offen offset:%d %s', V(o, 4), 1024 * hh, DST)
    def tail():
        LM = 65536
        own_frags(a, LM, 9, 10)
        a('v_lshrrev_b32 v4, 1, v3')
        a('v_lshlrev_b32 v8, 8, v4')
        a('v_bfe_u32 v4, v0, 1, 2')
        a('v_lshl_add_u32 v8, v4, 6, v8')
        a('v_and_b32 v4, 1, v0')
        a('v_lshl_add_u32 v8, v4, 4, v8')
        a('v_and_b32 v4, 1, v3')
        a('v_lshl_add_u32 v8, v4, 3, v8')
        a('v_add_u32 v8, %d, v8', LM)
        a('v_lshlrev_b32 v11, 4, v2')
        a('v_lshl_add_u32 v11, v4, 3, v11')
        a('v_lshrrev_b32 v4, 1, v3')
        a('v_lshl_add_u32 v11, v4, 8, v11')
        a('v_cmp_gt_u32 s[60:61], 32, v0')
        a('s_and_b32 s12, s12, 1')
        a('s_lshl_b32 s35, s12, 9')
        a('s_lshl_b32 s31, s6, 4')
        a('s_add_u32 s35, s35, s31')
        a('s_lshl_b32 s31, s3, 2')
        a('s_add_u32 s35, s35, s31')
        a('s_add_u32 s35, s35, 0x%x', VPROG)
        a('s_mov_b32 s13, 0')
        a.label('rv_loop')
        a('s_mul_i32 s39, s12, %d', UNIT)
        a('s_add_u32 s39, s39, 0x%x', MEME)
        a('s_add_u32 s32, s39, s15')
        a('s_add_u32 s33, s39, s16')
        mem_fetch(a, 64, 9, 10)
        a('s_waitcnt lgkmcnt(0)')
        a('s_barrier')
        AF = 120
        for j in range(14):
            if j % 2 == 0 and j: a('v_add_u32 v8, 1024, v8')
            for qq in range(2):
                o = 128 * (j & 1) + qq
                a('ds_read2_b32 %s, v8 offset0:%d offset1:%d', V(AF + 4 * j + 2 * qq, 2), o, o + 8)
            if j % 4 == 3: a('s_waitcnt lgkmcnt(4)')
        a('v_subrev_u32 v8, 6144, v8')
        for r in (8, 9, 10): a('v_xor_b32 v%d, 0x2000, v%d', r, r)
        a('s_waitcnt lgkmcnt(0)')
        for j in range(14):
            for hh in range(4):
                c = ACC + hh * 4
                a('v_mfma_f32_16x16x32_bf16 %s, %s, %s, %s', V(c, 4), V(AF + 4 * j, 4), A((hh * 14 + j) * 4, 4), V(c, 4) if j else '0')
        a('s_mul_i32 s30, s12, %d', VSLOT)
        a('s_lshl_b32 s31, s6, 12')
        a('s_add_u32 s30, s30, s31')
        a('s_lshl_b32 s31, s3, 10')
        a('s_add_u32 s30, s30, s31')
        a('s_add_u32 s30, s30, 0x%x', VE)
        a('s_add_u32 s13, s13, 1')
        a('s_nop 1')
        for hp in range(2):
            c = ACC + hp * 8
            for r in range(4): a('v_cndmask_b32 v%d, v%d, v%d, s[60:61]', c + r, c + 4 + r, c + r)
            a('v_cvt_pk_bf16_f32 v%d, v%d, v%d', 96 + 2 * hp, c, c + 1)
            a('v_cvt_pk_bf16_f32 v%d, v%d, v%d', 97 + 2 * hp, c + 2, c + 3)
            a('buffer_store_dwordx2 %s, v11, s[8:11], s30 offen offset:%d sc1', V(96 + 2 * hp, 2), 512 * hp)
        a('v_mov_b32 v4, s13')
        a('s_waitcnt vmcnt(0)')
        a('buffer_store_dword v4, off, s[8:11], s35 sc1')
        a('s_add_u32 s12, s12, %d', NSET_D)
        a('s_cmp_lt_u32 s12, 64')
        a('s_cbranch_scc1 rv_loop')
        tl(a, 3)
        a('s_endpgm')
    sg_loop(a, 'rd', NSET_D, 4, mf, epi, rd, tail if vtail else None)

def gen_f1(a):
    a.label('role_f1')
    tl(a, 0)
    a('s_lshr_b32 s6, s30, 1')
    a('s_and_b32 s12, s30, 1')
    a('s_load_dwordx4 s[56:59], s[0:1], %d', KA['wg'])
    lane_consts(a)
    RS = 272
    a('s_lshl_b32 s31, s3, 2')
    a('v_add_u32 v4, s31, v3')
    a('s_movk_i32 s30, 3584')
    a('v_mul_u32_u24 v5, s30, v4')
    a('v_lshl_add_u32 v5, v2, 4, v5')
    a('s_movk_i32 s30, %d', RS)
    a('v_mul_u32_u24 v7, s30, v4')
    a('v_lshl_add_u32 v7, v2, 4, v7')
    a('v_add_u32 v8, %d, v7', 14 * 16 * RS)
    a('v_lshrrev_b32 v9, 2, v2')
    a('v_lshl_add_u32 v9, v3, 3, v9')
    a('v_mul_u32_u24 v9, s30, v9')
    a('v_and_b32 v4, 3, v0')
    a('v_lshl_add_u32 v9, v4, 4, v9')
    a('s_lshl_b32 s31, s3, 6')
    a('v_add_u32 v9, s31, v9')
    a('v_add_u32 v10, %d, v9', 7 * 32 * RS)
    a('s_waitcnt lgkmcnt(0)')
    a.srd(16, 56, FBYTES)
    a.srd(20, 58, FBYTES)
    ST = 16
    for mat in range(2):
        a('s_lshl_b32 s31, s6, 8')
        for p in range(28):
            a('buffer_load_dwordx4 %s, v5, s[%d:%d], s31 offen', V(ST + (mat * 28 + p) * 4, 4), 16 + 4 * mat, 19 + 4 * mat)
            if p < 27: a('s_add_u32 s31, s31, %d', 16 * 3584)
    for mat in range(2):
        a('s_waitcnt vmcnt(%d)', 28 if mat == 0 else 0)
        for p in range(28):
            a('ds_write_b128 v%d, %s offset:%d', 7 if p < 14 else 8, V(ST + (mat * 28 + p) * 4, 4), (p % 14) * 16 * RS)
        a('s_waitcnt lgkmcnt(0)')
        a('s_barrier')
        for u in range(2):
            for j in range(14):
                b = ((mat * 2 + u) * 14 + j) * 4
                o = (j % 7) * 32 * RS + u * 8
                a('ds_read_b64_tr_b16 %s, v%d offset:%d', A(b, 2), 9 if j < 7 else 10, o)
                a('ds_read_b64_tr_b16 %s, v%d offset:%d', A(b + 2, 2), 9 if j < 7 else 10, o + 4 * RS)
        a('s_waitcnt lgkmcnt(0)')
        a('s_barrier')
    x_setup(a, 0)
    a('v_mov_b32 v6, v1')
    a('s_lshl_b32 s35, s12, 7')
    a('s_lshl_b32 s31, s6, 2')
    a('s_add_u32 s35, s35, s31')
    a('s_add_u32 s35, s35, 0x%x', HPROG)
    ACC = 32
    def rd(b, j, tt): a('ds_read_b128 %s, v6 offset:%d', V(b, 4), j * 1024 + tt * KT1)
    def mf(j, xb):
        for q in range(4):
            for tt in range(2):
                c = ACC + (tt * 4 + q) * 4
                a('v_mfma_f32_16x16x32_bf16 %s, %s, %s, %s', V(c, 4), A((q * 14 + j) * 4, 4), V(xb + 4 * tt, 4), V(c, 4) if j else '0')
    def epi():
        a('s_mul_i32 s30, s12, %d', VSLOT)
        a('s_lshl_b32 s31, s6, 12')
        a('s_add_u32 s30, s30, s31')
        a('s_lshl_b32 s31, s3, 10')
        a('s_add_u32 s30, s30, s31')
        a('s_add_u32 s30, s30, 0x%x', H1)
        a('s_add_u32 s31, s30, 57344')
        for tt in range(2):
            g = ACC + tt * 16
            u = g + 8
            t = 104
            for i in range(8): a('v_mul_f32 v%d, 0x%x, v%d', t + i, fbits(-LOG2E), g + i)
            for i in range(8): a('v_exp_f32 v%d, v%d', t + i, t + i)
            for i in range(8): a('v_mul_f32 v%d, v%d, v%d', u + i, u + i, g + i)
            for i in range(8): a('v_add_f32 v%d, 1.0, v%d', t + i, t + i)
            for i in range(8): a('v_rcp_f32 v%d, v%d', t + i, t + i)
            a('s_nop 0')
            for i in range(8): a('v_mul_f32 v%d, v%d, v%d', u + i, u + i, t + i)
            o = 96 + 4 * tt
            for d in range(4): a('v_cvt_pk_bf16_f32 v%d, v%d, v%d', o + d, u + 2 * d, u + 2 * d + 1)
            a('buffer_store_dwordx4 %s, v1, s[8:11], s%d offen sc1', V(o, 4), 30 + tt)
    sg_loop(a, 'rf', NSET_F, 2, mf, epi, rd)

def poll_ge(a, voff, soff, vthr, tmp):
    lp, ok = a.new('pl'), a.new('pk')
    a('s_mov_b32 s14, 0')
    a.label(lp)
    a('buffer_load_dword v%d, v%d, s[8:11], %s offen sc1', tmp, voff, soff)
    a('s_waitcnt vmcnt(0)')
    a('v_cmp_lt_u32 vcc, v%d, v%d', tmp, vthr)
    a('s_cbranch_vccz %s', ok)
    a('s_sleep 4')
    a('s_add_u32 s14, s14, 1')
    a('s_cmp_lt_u32 s14, %d', SPIN)
    a('s_cbranch_scc1 %s', lp)
    a('s_endpgm')
    a.label(ok)

def gen_xs(a):
    LX, LM, LP = 0, 2 * XB, 2 * XB + 7168
    a.label('role_xs')
    tl(a, 0)
    a('s_mul_i32 s4, s30, 21846')
    a('s_lshr_b32 s4, s4, 16')
    a('s_mul_i32 s31, s4, 3')
    a('s_sub_u32 s12, s30, s31')
    lane_consts(a)
    fold.wait_head(a, FLG_A, 's4')
    def W(t, j):
        i = t * 14 + j
        return A(4 * i, 4) if i < 64 else V(120 + 4 * (i - 64), 4)
    a('s_mul_i32 s31, s4, 28')
    a('s_mul_i32 s32, s3, 7')
    a('s_add_u32 s31, s31, s32')
    a('s_mul_i32 s31, s31, 14336')
    if WF_A: a('s_add_u32 s31, s31, 0x%x', WF_A)
    for i in range(98):
        if i % 4 == 0 and i: a('s_add_u32 s31, s31, 4096')
        a('buffer_load_dwordx4 %s, v1, s[8:11], s31 offen offset:%d sc1', W(i // 14, i % 14), (i % 4) * 1024)
        if i >= 48 and i % 8 == 0: a('s_waitcnt vmcnt(40)')
    x_setup(a, LX)
    a('v_add_u32 v6, %d, v1', LX) if LX else a('v_mov_b32 v6, v1')
    perm_rows_addr(a, 7, LX, 0, 4)
    a('v_lshrrev_b32 v4, 1, v3')
    a('s_mul_i32 s31, s3, 14')
    a('v_add_u32 v4, s31, v4')
    a('v_lshl_add_u32 v7, v4, 8, v7')
    a('v_and_b32 v4, 1, v3')
    a('v_lshl_add_u32 v7, v4, 3, v7')
    a('v_bfe_u32 v4, v0, 1, 2')
    a('v_lshlrev_b32 v8, 6, v4')
    a('v_and_b32 v4, 1, v0')
    a('v_lshl_add_u32 v8, v4, 4, v8')
    a('v_lshl_add_u32 v8, v3, 2, v8')
    a('s_mul_i32 s31, s3, 1792')
    a('s_add_u32 s31, s31, %d', LM)
    a('v_add_u32 v8, s31, v8')
    own_frags(a, LM, 9, 10)
    a('s_mul_i32 s31, s3, 6144')
    a('s_add_u32 s31, s31, %d', LP)
    a('v_add_u32 v11, s31, v1')
    a('s_lshl_b32 s31, s3, 10')
    a('s_add_u32 s31, s31, %d', LP)
    a('v_add_u32 v12, s31, v1')
    a('s_lshl_b32 s31, s3, 4')
    a('v_add_u32 v4, s31, v2')
    a('v_lshlrev_b32 v5, 3, v3')
    a('v_sub_u32 v4, v4, v5')
    for i in range(8): a('v_cmp_gt_i32 s[%d:%d], %d, v4', 64 + 2 * i, 65 + 2 * i, i)
    a('v_cmp_gt_u32 vcc, 2, v3')
    a('v_mov_b32 v13, 0xff800000')
    a('s_nop 0')
    a('v_cndmask_b32 v14, 0, 1.0, vcc')
    a('s_lshl_b32 s31, s4, 11')
    a('s_lshl_b32 s32, s3, 10')
    a('s_add_u32 s31, s31, s32')
    a('v_add_u32 v15, s31, v1')
    a('s_lshr_b32 s31, s4, 2')
    a('s_lshl_b32 s31, s31, 11')
    a('s_add_u32 s31, s31, s32')
    a('s_and_b32 s32, s4, 3')
    a('s_lshl_b32 s32, s32, 8')
    a('s_add_u32 s31, s31, s32')
    a('s_add_u32 s31, s31, 32768')
    a('v_and_b32 v4, 1, v3')
    a('v_lshlrev_b32 v16, 4, v2')
    a('v_lshl_add_u32 v16, v4, 3, v16')
    a('v_add_u32 v16, s31, v16')
    a('s_lshl_b32 s35, s12, 7')
    a('s_lshl_b32 s31, s4, 3')
    a('s_add_u32 s35, s35, s31')
    a('s_lshl_b32 s31, s3, 2')
    a('s_add_u32 s35, s35, s31')
    a('s_add_u32 s35, s35, 0x%x', XPROG)
    a('v_mov_b32 v17, 0')
    a('s_mov_b32 s13, 0')
    x_dma(a)
    ACC, XR, SA, KO = 20, 76, 92, 76
    if DEV: a('s_waitcnt vmcnt(0)')
    tl(a, 1)
    a.label('rx_loop')
    a('s_waitcnt vmcnt(0)')
    a('s_barrier')
    x_next(a, NSET_X)
    x_dma(a)
    def rd(j):
        for tt in range(2): a('ds_read_b128 %s, v6 offset:%d', V(XR + 8 * (j & 1) + 4 * tt, 4), j * 1024 + tt * KT1)
    rd(0)
    for j in range(14):
        if j + 1 < 14: rd(j + 1)
        a('s_waitcnt lgkmcnt(%d)', 2 if j < 13 else 0)
        for t in range(7):
            for tt in range(2):
                c = ACC + (t * 2 + tt) * 4
                a('v_mfma_f32_16x16x32_bf16 %s, %s, %s, %s', V(c, 4), W(t, j), V(XR + 8 * (j & 1) + 4 * tt, 4), V(c, 4) if j else '0')
    a('s_mul_i32 s39, s12, %d', UNIT)
    a('s_add_u32 s39, s39, 0x%x', MEME)
    a('s_add_u32 s32, s39, s15')
    a('s_add_u32 s33, s39, s16')
    def krd(t):
        for ku in range(2): a('ds_read_b64 %s, v7 offset:%d', V(KO + 4 * (t % 4) + 2 * ku, 2), t * 512 + ku * 64)
    for t in range(3): krd(t)
    a('s_nop 2')
    for i in range(14):
        c = ACC + 4 * i
        a('v_cvt_pk_bf16_f32 v%d, v%d, v%d', c, c, c + 1)
        a('v_cvt_pk_bf16_f32 v%d, v%d, v%d', c + 1, c + 2, c + 3)
    a('s_nop 1')
    for t in range(7):
        if t + 3 < 7: krd(t + 3)
        a('s_waitcnt lgkmcnt(%d)', 2 * min(3, 6 - t))
        for ku in range(2):
            for tt in range(2):
                c = SA + (ku * 2 + tt) * 4
                a('v_mfma_f32_16x16x16_bf16 %s, %s, %s, %s', V(c, 4), V(KO + 4 * (t % 4) + 2 * ku, 2), V(ACC + (t * 2 + tt) * 4, 2), V(c, 4) if t else '0')
    a('v_add_u32 v6, s50, v6')
    a('v_add_u32 v7, s50, v7')
    a('s_sub_u32 s50, 0, s50')
    mem_fetch(a, KO, 9, 10)
    for b in range(4): a('ds_write_b128 v11, %s offset:%d', V(SA + 4 * b, 4), 1024 * b)
    a('s_waitcnt lgkmcnt(0)')
    a('s_barrier')
    for t in range(7):
        a('ds_read_b32 v%d, v8 offset:%d', KO + 2 * t, 256 * t)
        a('ds_read_b32 v%d, v8 offset:%d', KO + 2 * t + 1, 256 * t + 32)
    for t in range(7):
        a('s_waitcnt lgkmcnt(%d)', 2 * (6 - t))
        for tt in range(2):
            c = SA + 16 + tt * 4
            a('v_mfma_f32_16x16x16_bf16 %s, %s, %s, %s', V(c, 4), V(KO + 2 * t, 2), V(ACC + (t * 2 + tt) * 4, 2), V(c, 4) if t else '0')
    a('s_nop 7')
    for b in (4, 5): a('ds_write_b128 v11, %s offset:%d', V(SA + 4 * b, 4), 1024 * b)
    a('s_waitcnt lgkmcnt(0)')
    a('s_barrier')
    lsk = a.new('xs')
    a('s_add_u32 s13, s13, 1')
    a('s_cmp_lt_u32 s3, 2')
    a('s_cbranch_scc0 %s', lsk)
    R = 20
    for w in range(4):
        for b in range(3): a('ds_read_b128 %s, v12 offset:%d', V(R + 12 * w + 4 * b, 4), 6144 * w + 2048 * b)
    a('s_mul_i32 s30, s12, %d', PXSEG)
    a('s_add_u32 s30, s30, 0x%x', PX)
    for w in range(1, 4):
        a('s_waitcnt lgkmcnt(%d)', 3 * (3 - w))
        for i in range(6): a('v_pk_add_f32 %s, %s, %s', V(R + 2 * i, 2), V(R + 2 * i, 2), V(R + 12 * w + 2 * i, 2))
    for i in range(8): a('v_cndmask_b32 v%d, v%d, v13, s[%d:%d]', R + i, R + i, 64 + 2 * i, 65 + 2 * i)
    a('v_max3_f32 v4, v%d, v%d, v%d', R, R + 1, R + 2)
    for i in range(3, 11, 2): a('v_max3_f32 v4, v%d, v%d, v4', R + i, R + i + 1)
    a('v_max_f32 v4, v%d, v4', R + 11)
    def xred(op):
        for sw in ('v_permlane32_swap_b32', 'v_permlane16_swap_b32'):
            a('v_mov_b32 v5, v4')
            a('s_nop 1')
            a('%s v4, v5', sw)
            a('%s v4, v4, v5', op)
    xred('v_max_f32')
    for i in range(12): a('v_sub_f32 v%d, v%d, v4', R + i, R + i)
    for i in range(12): a('v_exp_f32 v%d, v%d', R + i, R + i)
    a('v_add_f32 v4, v%d, v%d', R, R + 1)
    for i in range(2, 8): a('v_add_f32 v4, v%d, v4', R + i)
    for i in range(8, 12): a('v_fmac_f32 v4, v%d, v14', R + i)
    xred('v_add_f32')
    a('v_rcp_f32 v4, v4')
    a('s_nop 0')
    for i in range(12): a('v_mul_f32 v%d, v%d, v4', R + i, R + i)
    for d in range(6): a('v_cvt_pk_bf16_f32 v%d, v%d, v%d', 40 + d, R + 2 * d, R + 2 * d + 1)
    a('buffer_store_dwordx4 v[40:43], v15, s[8:11], s30 offen sc1')
    a('buffer_store_dwordx2 v[44:45], v16, s[8:11], s30 offen sc1')
    a('v_mov_b32 v4, s13')
    a('s_waitcnt vmcnt(0)')
    a('buffer_store_dword v4, v17, s[8:11], s35 offen sc1')
    a.label(lsk)
    a('s_add_u32 s12, s12, %d', NSET_X)
    a('s_cmp_lt_u32 s12, 64')
    a('s_cbranch_scc1 rx_loop')
    tl(a, 2)
    a('s_endpgm')

def gen_fin(a):
    a.label('role_fin')
    tl(a, 0)
    a('s_mul_i32 s12, s30, 9363')
    a('s_lshr_b32 s12, s12, 16')
    a('s_mul_i32 s31, s12, 7')
    a('s_sub_u32 s6, s30, s31')
    a('s_load_dwordx2 s[56:57], s[0:1], %d', KA['wd'])
    a('s_load_dwordx2 s[58:59], s[0:1], %d', KA['out'])
    lane_consts(a)
    RS = 144
    a('v_lshrrev_b32 v4, 3, v0')
    a('v_and_b32 v5, 7, v0')
    a('s_movk_i32 s30, 896')
    a('v_mul_u32_u24 v6, s30, v4')
    a('v_lshl_add_u32 v6, v5, 4, v6')
    a('s_movk_i32 s30, %d', RS)
    a('v_mul_u32_u24 v7, s30, v4')
    a('v_lshl_add_u32 v7, v5, 4, v7')
    a('s_mul_i32 s31, s3, %d', 224 * RS)
    a('v_add_u32 v7, s31, v7')
    a('v_lshrrev_b32 v8, 2, v2')
    a('v_lshl_add_u32 v8, v3, 3, v8')
    a('v_mul_u32_u24 v8, s30, v8')
    a('v_and_b32 v4, 3, v0')
    a('v_lshl_add_u32 v8, v4, 3, v8')
    a('v_add_u32 v8, s31, v8')
    a('s_waitcnt lgkmcnt(0)')
    a.srd(16, 56, FBYTES)
    a.srd(20, 58, XBYTES)
    ST = 16
    a('s_mul_i32 s31, s3, %d', 448 * 896)
    a('s_lshl_b32 s32, s6, 7')
    a('s_add_u32 s31, s31, s32')
    for p in range(56):
        a('buffer_load_dwordx4 %s, v6, s[16:19], s31 offen', V(ST + 4 * p, 4))
        if p < 55: a('s_add_u32 s31, s31, %d', 8 * 896)
    for rnd in range(2):
        a('s_waitcnt vmcnt(%d)', 28 if rnd == 0 else 0)
        for p in range(28): a('ds_write_b128 v7, %s offset:%d', V(ST + 4 * (rnd * 28 + p), 4), p * 8 * RS)
        for jj in range(7):
            for t in range(4):
                b = ((rnd * 7 + jj) * 4 + t) * 4
                a('ds_read_b64_tr_b16 %s, v8 offset:%d', A(b, 2), jj * 32 * RS + t * 32)
                a('ds_read_b64_tr_b16 %s, v8 offset:%d', A(b + 2, 2), jj * 32 * RS + t * 32 + 4 * RS)
            a('s_waitcnt lgkmcnt(0)')
    a('s_barrier')
    tl(a, 1)
    a('v_lshlrev_b32 v4, 2, v0')
    a('s_lshl_b32 s31, s6, 4')
    a('s_sub_u32 s31, s31, 56')
    a('v_add_u32 v5, s31, v4')
    a('v_add_u32 v4, %d, v4', HPROG - CNT)
    a('v_cmp_gt_u32 vcc, 14, v0')
    a('s_nop 1')
    a('v_cndmask_b32 v4, v5, v4, vcc')
    a('v_cmp_gt_u32 vcc, 18, v0')
    a('v_mov_b32 v5, %d', HPROG - CNT)
    a('s_nop 0')
    a('v_cndmask_b32 v4, v5, v4, vcc')
    a('v_and_b32 v5, 7, v0')
    a('v_lshlrev_b32 v5, 2, v5')
    a('s_lshl_b32 s31, s3, 5')
    a('s_add_u32 s31, s31, %d', XPROG - CNT)
    a('v_add_u32 v5, s31, v5')
    a('v_and_b32 v6, 3, v0')
    a('v_lshlrev_b32 v6, 4, v6')
    a('s_lshl_b32 s31, s3, 2')
    a('s_lshl_b32 s32, s6, 6')
    a('s_add_u32 s31, s31, s32')
    a('s_add_u32 s31, s31, %d', VPROG - CNT)
    a('v_add_u32 v6, s31, v6')
    a('v_cmp_gt_u32 s[60:61], 8, v2')
    a('v_lshlrev_b32 v8, 2, v2')
    RO = 272
    a('s_lshl_b32 s31, s3, 5')
    a('v_add_u32 v9, s31, v2')
    a('s_movk_i32 s30, %d', RO)
    a('v_mul_u32_u24 v9, s30, v9')
    a('v_lshl_add_u32 v9, v3, 4, v9')
    a('v_lshrrev_b32 v12, 3, v0')
    a('s_lshl_b32 s31, s3, 3')
    a('v_add_u32 v12, s31, v12')
    a('v_mul_u32_u24 v10, s30, v12')
    a('v_and_b32 v13, 7, v0')
    a('v_lshl_add_u32 v10, v13, 5, v10')
    a('s_movk_i32 s30, 896')
    a('v_mul_u32_u24 v11, s30, v12')
    a('v_lshl_add_u32 v11, v13, 4, v11')
    a('s_mov_b32 s50, %d', 128 * RO)
    HF, DF, AB, AA, GR = 16, 128, 192, 224, 14
    a.label('ro_loop')
    a('s_and_b32 s30, s12, 1')
    a('s_lshl_b32 s30, s30, 7')
    a('s_add_u32 s30, s30, 0x%x', CNT)
    a('s_lshr_b32 s31, s12, 1')
    a('s_add_u32 s31, s31, 1')
    a('v_mov_b32 v12, s31')
    poll_ge(a, 4, 's30', 12, 13)
    a('s_mul_i32 s30, s12, %d', VSLOT)
    a('s_mul_i32 s31, s3, 14336')
    a('s_add_u32 s30, s30, s31')
    a('s_add_u32 s30, s30, 0x%x', H1)
    for jj in range(14):
        if jj % 4 == 0:
            a('s_add_u32 s32, s30, %d', jj * 1024)
            a('s_add_u32 s33, s30, %d', jj * 1024 + 57344)
        for tt in range(2):
            a('buffer_load_dwordx4 %s, v1, s[8:11], s%d offen offset:%d sc1', V(HF + (jj * 2 + tt) * 4, 4), 32 + tt, (jj % 4) * 1024)
    a('s_mul_i32 s30, s12, %d', DSEG)
    a('s_lshl_b32 s31, s6, 16')
    a('s_add_u32 s30, s30, s31')
    a('s_lshl_b32 s31, s3, 12')
    a('s_add_u32 s30, s30, s31')
    a('s_add_u32 s30, s30, 0x%x', DD)
    for t in range(4):
        for hh in range(4):
            a('buffer_load_dwordx4 %s, v1, s[8:11], s30 offen offset:%d sc1', V(DF + (t * 4 + hh) * 4, 4), hh * 1024)
        if t < 3: a('s_add_u32 s30, s30, 16384')
    a('s_lshl_b32 s30, s12, 7')
    a('s_add_u32 s30, s30, 0x%x', GG)
    for tt in range(2): a('buffer_load_dword v%d, v8, s[8:11], s30 offen offset:%d sc1', GR + tt, 64 * tt)
    for jj in range(14):
        a('s_waitcnt vmcnt(%d)', 18 + 2 * (13 - jj))
        for tt in range(2):
            for t in range(4):
                c = AB + (t * 2 + tt) * 4
                a('v_mfma_f32_16x16x32_bf16 %s, %s, %s, %s', V(c, 4), A((jj * 4 + t) * 4, 4), V(HF + (jj * 2 + tt) * 4, 4), V(c, 4) if jj else '0')
    a('s_mul_i32 s31, s12, 21846')
    a('s_lshr_b32 s31, s31, 16')
    a('s_mul_i32 s32, s31, 3')
    a('s_sub_u32 s32, s12, s32')
    a('s_lshl_b32 s32, s32, 7')
    a('v_add_u32 v12, s32, v5')
    a('s_and_b32 s32, s12, 1')
    a('s_lshl_b32 s32, s32, 9')
    a('v_add_u32 v13, s32, v6')
    a('v_cndmask_b32 v%d, v13, v12, s[60:61]', HF)
    a('s_add_u32 s31, s31, 1')
    a('s_lshr_b32 s32, s12, 1')
    a('s_add_u32 s32, s32, 1')
    a('v_mov_b32 v12, s31')
    a('v_mov_b32 v13, s32')
    a('v_cndmask_b32 v12, v13, v12, s[60:61]')
    a('s_mov_b32 s30, 0x%x', CNT)
    poll_ge(a, HF, 's30', 12, 13)
    PF, PM, VF = 20, 52, 60
    a('s_mul_i32 s30, s12, %d', PXSEG)
    a('s_add_u32 s30, s30, 0x%x', PX)
    a('s_lshl_b32 s31, s3, 13')
    a('s_add_u32 s31, s31, s30')
    a('s_add_u32 s32, s31, 4096')
    for i in range(8):
        a('buffer_load_dwordx4 %s, v1, s[8:11], s%d offen offset:%d sc1', V(PF + 4 * i, 4), 31 + (i >> 2), (i & 3) * 1024)
    a('s_lshl_b32 s31, s3, 11')
    a('s_add_u32 s31, s31, s30')
    a('s_add_u32 s31, s31, 32768')
    for tt in range(2): a('buffer_load_dwordx4 %s, v1, s[8:11], s31 offen offset:%d sc1', V(PM + 4 * tt, 4), 1024 * tt)
    a('s_mul_i32 s30, s12, %d', VSLOT)
    a('s_lshl_b32 s31, s3, 10')
    a('s_add_u32 s30, s30, s31')
    a('s_lshl_b32 s31, s6, 14')
    a('s_add_u32 s30, s30, s31')
    a('s_add_u32 s30, s30, 0x%x', VE)
    for t in range(4):
        a('buffer_load_dwordx4 %s, v1, s[8:11], s30 offen sc1', V(VF + 4 * t, 4))
        if t < 3: a('s_add_u32 s30, s30, 4096')
    for hh in range(4):
        a('s_waitcnt vmcnt(%d)', 6 + 2 * (3 - hh))
        for tt in range(2):
            for t in range(4):
                c = AA + (t * 2 + tt) * 4
                a('v_mfma_f32_16x16x32_bf16 %s, %s, %s, %s', V(c, 4), V(DF + (t * 4 + hh) * 4, 4), V(PF + (hh * 2 + tt) * 4, 4), V(c, 4) if hh else '0')
    a('s_waitcnt vmcnt(0)')
    for t in range(4):
        for tt in range(2):
            c = AA + (t * 2 + tt) * 4
            a('v_mfma_f32_16x16x32_bf16 %s, %s, %s, %s', V(c, 4), V(VF + 4 * t, 4), V(PM + 4 * tt, 4), V(c, 4))
    a('s_mul_i32 s30, s12, %d', 32 * 896)
    a('s_lshl_b32 s31, s6, 7')
    a('s_add_u32 s30, s30, s31')
    for t in range(4):
        for tt in range(2):
            i = (t * 2 + tt) * 4
            for r in range(4): a('v_sub_f32 v%d, v%d, v%d', AA + i + r, AA + i + r, AB + i + r)
            for r in range(4): a('v_fmac_f32 v%d, v%d, v%d', AB + i + r, GR + tt, AA + i + r)
            a('ds_write_b128 v9, %s offset:%d', V(AB + i, 4), tt * 16 * RO + t * 64)
    a('s_waitcnt lgkmcnt(0)')
    a('s_barrier')
    for w in range(4):
        for hf in range(2): a('ds_read_b128 %s, v10 offset:%d', V(20 + 8 * w + 4 * hf, 4), w * 32 * RO + 16 * hf)
    a('v_add_u32 v9, s50, v9')
    a('v_add_u32 v10, s50, v10')
    a('s_sub_u32 s50, 0, s50')
    for w in range(1, 4):
        a('s_waitcnt lgkmcnt(%d)', 2 * (3 - w))
        for i in range(4): a('v_pk_add_f32 %s, %s, %s', V(20 + 2 * i, 2), V(20 + 2 * i, 2), V(20 + 8 * w + 2 * i, 2))
    for d in range(4): a('v_cvt_pk_bf16_f32 v%d, v%d, v%d', 56 + d, 20 + 2 * d, 21 + 2 * d)
    a('buffer_store_dwordx4 v[56:59], v11, s[20:23], s30 offen')
    a('s_add_u32 s12, s12, %d', NSET_O)
    a('s_cmp_lt_u32 s12, 64')
    a('s_cbranch_scc1 ro_loop')
    if DEV: a('s_waitcnt vmcnt(0)')
    tl(a, 2)
    a('s_endpgm')
```

```python
import sys
from common import *
import fold, team, workers

HEADER = open('cdna_kernels/%s.s.ref' % NAME).read().split('; Override launch geometry')[0]
MAIN_LDS = team.TEAM_LDS

def kd(name, vgpr, acc, sgpr):
    return '''.p2align 6
.amdhsa_kernel %s
  .amdhsa_next_free_vgpr %d
  .amdhsa_next_free_sgpr %d
  .amdhsa_accum_offset %d
  .amdhsa_group_segment_fixed_size 0
  .amdhsa_kernarg_size 120
  .amdhsa_user_sgpr_count 2
  .amdhsa_user_sgpr_kernarg_segment_ptr 1
  .amdhsa_system_sgpr_workgroup_id_x 1
.end_amdhsa_kernel
''' % (name, vgpr, sgpr, acc)

def build(mask, dev=False, aslist=False):
    a = Asm()
    workers.DEV = fold.DEV = bool(dev)
    fold.NOWARM = bool(dev) and 'nowarm' in dev
    nm = NAME + '_kernel'
    a.l.append('.globl %s\n.p2align 8\n.type %s,@function' % (nm, nm))
    a.label(nm)
    a('s_cmp_ge_u32 s2, 256')
    a('s_cbranch_scc1 quit')
    a('s_load_dwordx8 s[64:71], s[0:1], 0')
    a('s_load_dwordx4 s[72:75], s[0:1], 32')
    a('s_load_dwordx2 s[76:77], s[0:1], %d', KA['gw'])
    a('s_load_dwordx4 s[52:55], s[0:1], %d', KA['dbg'])
    a('v_lshrrev_b32 v1, 6, v0')
    a('v_and_b32 v0, 63, v0')
    a('v_readfirstlane_b32 s3, v1')
    a('s_waitcnt lgkmcnt(0)')
    a.srd(8, 54, team.OOB)
    a.srd(44, 52, 256)
    a.srd(12, 72, WBYTES)
    a.srd(16, 74, WBYTES)
    a.srd(36, 68, WBYTES)
    a.srd(56, 70, WBYTES)
    a.srd(20, 64, XBYTES)
    a.srd(24, 76, 896)
    a.srd(40, 66, 7168)
    fold.tl(a, 0)
    a('s_and_b32 s31, s2, 7')
    a('s_lshr_b32 s53, s2, 3')
    a('s_cmp_eq_u32 s31, 0')
    a('s_cbranch_scc1 die0')
    a('s_sub_u32 s31, s31, 1')
    a('s_lshl_b32 s31, s31, 5')
    a('s_add_u32 s53, s53, s31')
    fold.gen_fold(a)
    a('s_mov_b32 s30, s53')
    for bit, n, lab in ((2, 56, 'role_d'), (4, 48, 'role_xs'), (8, 28, 'role_f1'), (16, 91, 'role_fin')):
        a('s_cmp_lt_u32 s30, %d', n)
        a('s_cbranch_scc1 %s', lab if mask & bit else 'quit')
        a('s_sub_u32 s30, s30, %d', n)
        if lab == 'role_d':
            fold.wait_all(a, FLG_M, 256)
            if not (dev and 'nogate' in dev): fold.wait_started(a)
    a.label('quit')
    a('s_endpgm')
    a.label('die0')
    l = a.new('nj')
    a('s_cmp_eq_u32 s53, 31')
    a('s_cbranch_scc0 %s', l)
    fold.janitor(a)
    a.label(l)
    fold.misc_loads(a)
    fold.unit_fill(a)
    a('s_waitcnt vmcnt(0)')
    fold.misc_rest(a)
    fold.wait_janitor(a)
    a('s_add_u32 s34, s53, 224')
    fold.set_flag(a, FLG_M, 's34')
    a('s_mov_b32 s30, s53')
    team.gen_team(a, dev)
    workers.gen_d(a, vtail=bool(mask & 16))
    workers.gen_xs(a)
    workers.gen_f1(a)
    workers.gen_fin(a)
    s = HEADER
    if aslist: s += '; @launch kernel=%s grid=(256,1,1) block=(256,1,1) lds=%d\n' % (nm, MAIN_LDS)
    else: s += '; @launch grid=(256,1,1) block=(256,1,1) lds=%d\n' % MAIN_LDS
    s += '.amdgcn_target "amdgcn-amd-amdhsa--gfx950"\n.text\n' + a.text()
    s += '.section .rodata,"a"\n' + kd(nm, 512, 256, 96)
    return s

if __name__ == '__main__':
    out = sys.argv[1]
    dev = sys.argv[3] if len(sys.argv) > 3 else False
    open(out, 'w').write(build(int(sys.argv[2]), dev, aslist='/bench/' in out))
```

```python
from common import *
import fold

L_MEM = 0
L_T = 7680
L_S = L_T + 8192
L_X = L_S + 12288
L_C = 7680
L_D = 32768
L_W = 98304
TEAM_LDS = L_W + 57344
SPIN = 200000
OOB = 0x8000000
NTEAM = 30

ORD_S = ([(0, 0), (1, 0), (0, 1), (1, 1), (2, 0), (3, 0), (2, 1), (3, 1), (4, 0), (5, 0), (6, 0), (4, 1), (5, 1), (6, 1)]
         + [(t, 2) for t in range(7)] + [(t, l) for t in range(7) for l in range(3, 7)])
ORD_C = [(t, l) for l in range(7) for t in range(8)]
CSPILL = [80, 88, 96, 104, 112, 52, 60]
def Wreg(i, n=8, off=0):
    if i >= 49: return V(CSPILL[i - 49] + off, n)
    return A(8 * i + off, n) if i < 32 else V(120 + 8 * (i - 32) + off, n)

def gen_team(a, dev=False):
    dev = set(dev.split('+')) if dev else set()
    def stamp(k):
        if 'st%d' % k in dev or 'stall' in dev: a('s_memtime s[%d:%d]', 64 + 2 * k, 65 + 2 * k)
    def bits(dst, spec, first=True):
        for pos, w, sh in spec:
            a('v_bfe_u32 v3, v0, %d, %d', pos, w)
            if first: a('v_lshlrev_b32 v%d, %d, v3', dst, sh); first = False
            else: a('v_lshl_add_u32 v%d, v3, %d, v%d', dst, sh, dst)
    def spin(lp):
        a('s_add_u32 s14, s14, 1')
        a('s_cmp_lt_u32 s14, %d', SPIN)
        a('s_cbranch_scc1 %s', lp)
        a('s_endpgm')
    def xdma():
        a('s_mov_b32 m0, s36')
        a('s_add_u32 s30, s34, 4096')
        for i in range(4): a('buffer_load_dwordx4 v1, s[8:11], s34 offen offset:%d sc1 lds', 1024 * i)
        a('s_add_u32 m0, s36, 4096')
        a('s_add_u32 s34, s34, %d', XSEG)
        for i in range(3): a('buffer_load_dwordx4 v1, s[8:11], s30 offen offset:%d sc1 lds', 1024 * i)
    def ddma(src0, src1):
        r = [['buffer_load_dwordx4 v1, s[8:11], %s offen offset:%d sc1 lds' % (src0, 1024 * i)] for i in range(4)]
        r[3].append('s_add_u32 m0, s37, 16384')
        r += [['buffer_load_dwordx4 v1, s[8:11], %s offen offset:%d sc1 lds' % (src1, 1024 * i)] for i in range(4)]
        return r
    def fcheck(src, tmp, seg):
        a('v_lshrrev_b32 v%d, 5, v0', tmp)
        a('v_lshl_add_u32 v%d, v%d, 1, v%d', tmp, src, tmp)
        a('v_cmp_ge_u32 vcc, %s, v%d', seg, tmp)
        a('s_nop 1')
        a('s_and_b64 vcc, vcc, s[60:61]')
    def dwait(seg):
        lp, ok = a.new('dw'), a.new('dk')
        a('s_mov_b32 s14, 0')
        a.label(lp)
        a('v_lshlrev_b32 v3, 2, v0')
        a('buffer_load_dword v18, v3, s[8:11], s49 offen sc1')
        a('s_waitcnt vmcnt(0)')
        fcheck(18, 3, seg)
        a('s_cbranch_scc0 %s', ok)
        a('s_sleep 2')
        spin(lp)
        a.label(ok)
    def frag_offsets():
        a('s_lshl_b32 s33, s3, 1')
        for lam in range(7):
            a('s_lshl_b32 s%d, s33, 10', 15 + lam)
            if lam < 6:
                a('s_add_u32 s33, s33, 1')
                a('s_cmp_ge_u32 s33, 7')
                a('s_cselect_b32 s32, 7, 0')
                a('s_sub_u32 s33, s33, s32')
    def wload(order, tile_off):
        n = 0
        for i in list(range(49, len(order))) + list(range(49)):
            t, lam = order[i]
            a('s_lshl_b32 s31, s%d, 1', 15 + lam)
            a('s_add_u32 s31, s31, s30')
            if tile_off(t): a('s_add_u32 s31, s31, %d', tile_off(t))
            if i >= 49:
                a('s_add_u32 m0, s29, %d', 2048 * (i - 49))
                a('s_nop 0')
                a('buffer_load_dwordx4 v1, s[8:11], s31 offen sc1 lds')
                a('buffer_load_dwordx4 v1, s[8:11], s31 offen offset:1024 sc1 lds')
            else:
                a('buffer_load_dwordx4 %s, v1, s[8:11], s31 offen sc1', Wreg(i, 4, 0))
                a('buffer_load_dwordx4 %s, v1, s[8:11], s31 offen offset:1024 sc1', Wreg(i, 4, 4))
            n += 2
            if n >= 48 and n % 8 == 0: a('s_waitcnt vmcnt(40)')

    a.label('team')
    if dev: a('s_memrealtime s[90:91]')
    a('s_cmp_ge_u32 s30, %d', NTEAM)
    a('s_cbranch_scc1 tdie')
    a('s_and_b32 s4, s30, 15')
    a('s_lshr_b32 s5, s30, 4')
    a('s_getreg_b32 s31, hwreg(HW_REG_XCC_ID)')
    a('s_and_b32 s31, s31, 15')
    a('s_add_u32 s31, s31, 1')
    a('v_mov_b32 v3, s31')
    a('s_lshl_b32 s32, s30, 2')
    a('buffer_store_dword v3, off, s[44:47], s32 sc1')
    a('v_lshlrev_b32 v1, 4, v0')
    frag_offsets()
    for r in range(4, 16): a('v_mov_b32 v%d, 0', r)
    a('v_and_b32 v3, 2, v0')
    a('v_cmp_eq_u32 s[58:59], 0, v3')
    a('v_mov_b32 v2, 0xeeee')
    a('v_mov_b32 v18, 0x4444')
    a('v_cndmask_b32 v2, v2, v18, s[58:59]')
    a('v_add_u32 v16, s15, v1')
    a('v_add_u32 v17, s16, v1')
    a('s_mov_b32 s49, 0x%x', DPROG)
    a('v_and_b32 v3, 31, v0')
    a('v_cmp_gt_u32 s[60:61], 28, v3')
    a('v_cmp_gt_u32 s[62:63], 56, v0')
    lv, lj = a.new('iv'), a.new('ij')
    a('s_cmp_eq_u32 s5, 1')
    a('s_cbranch_scc1 %s', lv)
    fold.wait_all(a, FLG_M, 256)
    fold.wait_head(a, FLG_A, 's4')
    a('s_mul_i32 s30, s4, 28')
    a('s_mul_i32 s32, s3, 7')
    a('s_add_u32 s30, s30, s32')
    a('s_mul_i32 s30, s30, 14336')
    wload(ORD_S, lambda t: t * 14336)
    a('v_and_b32 v3, 8, v0')
    a('v_cmp_eq_u32 vcc, 0, v3')
    a('s_nop 1')
    a('v_cndmask_b32 v14, 0, 1.0, vcc')
    bits(4, [(2, 2, 6), (0, 1, 5), (4, 2, 3), (1, 1, 2)])
    bits(5, [(4, 2, 8), (0, 4, 3)])
    a('s_lshl_b32 s30, s3, 11')
    a('s_add_u32 s30, s30, %d', L_T)
    a('v_add_u32 v4, s30, v4')
    a('v_add_u32 v5, s30, v5')
    a('s_mul_i32 s30, s3, 3584')
    a('s_add_u32 s30, s30, %d', L_X)
    a('v_add_u32 v6, s30, v1')
    bits(8, [(5, 1, 8), (1, 2, 6), (0, 1, 4), (4, 1, 3)])
    a('s_mul_i32 s30, s3, 1792')
    a('v_add_u32 v8, s30, v8')
    a('v_add_u32 v9, 1024, v8')
    bits(10, [(4, 2, 9), (1, 1, 6), (2, 2, 4), (0, 1, 2)])
    bits(15, [(4, 2, 9), (0, 4, 4)])
    a('s_lshl_b32 s31, s3, 11')
    a('s_add_u32 s31, s31, %d', L_S)
    a('v_add_u32 v10, s31, v10')
    a('v_add_u32 v15, s31, v15')
    a('s_lshl_b32 s31, s3, 10')
    a('s_add_u32 s31, s31, %d', L_S)
    a('v_add_u32 v11, s31, v1')
    bits(12, [(3, 1, 8), (5, 1, 6), (2, 1, 5), (4, 1, 4), (0, 2, 2)])
    a('s_lshl_b32 s30, s4, 9')
    a('s_lshl_b32 s31, s3, 7')
    a('s_add_u32 s30, s30, s31')
    a('v_add_u32 v12, s30, v12')
    bits(13, [(1, 2, 7), (4, 2, 4)])
    a('s_lshr_b32 s30, s4, 2')
    a('s_lshl_b32 s30, s30, 9')
    a('s_and_b32 s31, s4, 3')
    a('s_lshl_b32 s31, s31, 2')
    a('s_add_u32 s30, s30, s31')
    a('s_lshl_b32 s31, s3, 6')
    a('s_add_u32 s30, s30, s31')
    a('s_add_u32 s30, s30, 8192')
    a('v_add_u32 v13, s30, v13')
    a('v_and_b32 v3, 9, v0')
    a('v_cmp_eq_u32 vcc, 0, v3')
    a('v_mov_b32 v18, 0x%x', OOB)
    a('s_nop 0')
    a('v_cndmask_b32 v13, v18, v13, vcc')
    a('v_mov_b32 v3, 0')
    a('v_lshlrev_b32 v18, 2, v0')
    a('ds_write_b32 v18, v3 offset:%d', L_MEM + 7168)
    for w in range(4): a('ds_write_b32 v18, v3 offset:%d', L_T + w * 2048 + 1792)
    for o in (0, 256): a('ds_write_b32 v18, v3 offset:%d', L_X + 28672 + o)
    a('s_mul_i32 s30, s3, 7168')
    a('s_add_u32 s34, s30, 0x%x', XF)
    a('s_add_u32 s36, s30, %d', L_X)
    xdma()
    a('s_lshl_b32 s31, s4, 10')
    a('s_add_u32 s27, s31, 0x%x', MEMX)
    a('s_cmp_lt_u32 s4, 7')
    a('s_cselect_b32 s27, s27, 0x%x', OOB)
    a('s_add_u32 s26, s31, 0x%x', PR)
    a('s_cmp_lt_u32 s4, 10')
    a('s_cselect_b32 s26, s26, 0x%x', OOB)
    a('s_cmp_eq_u32 s3, 2')
    a('s_cselect_b32 s27, s26, s27')
    a('s_mov_b32 s28, %d', UNIT)
    a('s_cselect_b32 s28, %d, s28', PSLOT)
    a('s_lshl_b32 s31, s4, 2')
    a('s_add_u32 s31, s31, s3')
    a('s_mul_i32 s35, s31, 7168')
    a('s_add_u32 s35, s35, 0x%x', DD + 2 * DSEG)
    a('v_lshl_add_u32 v7, v0, 7, s35')
    a('s_lshl_b32 s31, s31, 9')
    a('s_add_u32 s31, s31, 0x%x', XF + 2 * XSEG)
    a('v_and_b32 v3, 3, v0')
    a('v_lshl_add_u32 v3, v3, 7, s31')
    if 'tx' in dev: a('v_cmp_gt_u32 s[62:63], 0, v0'); a('s_nop 1')
    a('v_cndmask_b32 v7, v3, v7, s[62:63]')
    a('s_mov_b32 s38, 0x%x', OOB)
    a('s_branch %s', lj)
    a.label(lv)
    fold.wait_wave_heads(a)
    a('s_mul_i32 s30, s3, 4*28')
    a('s_lshl_b32 s32, s4, 1')
    a('s_add_u32 s30, s30, s32')
    a('s_mul_i32 s30, s30, 14336')
    a('s_add_u32 s30, s30, 0x%x', WF_C)
    a('s_mul_i32 s29, s3, 14336')
    a('s_add_u32 s29, s29, %d', L_W)
    wload(ORD_C, lambda t: ((t & 3) * 28 + (t >> 2)) * 14336)
    a('v_add_u32 v14, s29, v1')
    for r, i in zip((4, 5, 7, 12, 13), range(5)): a('v_add_u32 v%d, s%d, v1', r, 17 + i)
    bits(6, [(4, 2, 7), (2, 2, 5), (0, 1, 4)])
    a('s_mul_i32 s30, s3, 1536')
    a('s_sub_u32 s30, 8192, s30')
    a('v_add_u32 v6, s30, v6')
    a('v_mov_b32 v18, 0x%x', OOB)
    a('v_cndmask_b32 v6, v18, v6, s[58:59]')
    bits(8, [(4, 2, 7), (0, 4, 2)])
    a('s_lshl_b32 s30, s3, 9')
    a('s_add_u32 s30, s30, %d', L_C)
    a('v_add_u32 v8, s30, v8')
    a('v_add_u32 v10, 2048, v8')
    bits(9, [(4, 2, 7), (2, 1, 6), (0, 2, 4), (3, 1, 3)])
    a('s_and_b32 s31, s3, 1')
    a('s_lshl_b32 s30, s31, 11')
    a('s_add_u32 s30, s30, %d', L_C)
    a('v_add_u32 v9, s30, v9')
    a('s_lshl_b32 s30, s4, 9')
    a('s_lshl_b32 s31, s31, 8')
    a('s_add_u32 s30, s30, s31')
    a('v_lshl_add_u32 v11, v0, 2, s30')
    a('s_lshl_b32 s30, s3, 12')
    a('s_lshl_b32 s31, s4, 15')
    a('s_add_u32 s35, s30, s31')
    a('s_add_u32 s35, s35, 0x%x', DD)
    a('s_add_u32 s37, s30, %d', L_D)
    fold.wait_all(a, FLG_M, 256, R=24)
    dwait('0')
    a('s_mov_b32 m0, s37')
    a('s_add_u32 s30, s35, 16384')
    for grp in ddma('s35', 's30'):
        for i in grp: a(i)
        a('s_nop 0')
    a('s_add_u32 s35, s35, %d', DSEG)
    a('s_mov_b32 s38, s35')
    a('s_add_u32 s6, s35, 16384')
    a('s_mov_b32 s13, 1')
    a.label(lj)
    lp, l2 = a.new('xc'), a.new('xo')
    a('v_min_u32 v20, %d, v0', NTEAM - 1)
    a('v_lshlrev_b32 v20, 2, v20')
    a('s_mov_b32 s14, 0')
    a.label(lp)
    a('buffer_load_dword v3, v20, s[44:47], 0 offen sc1')
    a('s_waitcnt vmcnt(0)')
    a('v_cmp_eq_u32 vcc, 0, v3')
    a('s_cbranch_vccz %s', l2)
    spin(lp)
    a.label(l2)
    a('v_readfirstlane_b32 s31, v3')
    a('s_mov_b32 s12, 0')
    a('s_add_u32 s32, s15, 0x%x', MEMX)
    a('s_add_u32 s33, s16, 0x%x', MEMX)
    a('v_cmp_ne_u32 vcc, s31, v3')
    a('s_waitcnt lgkmcnt(0)')
    if dev:
        lc = a.new('cal')
        a('s_memrealtime s[82:83]')
        a('s_waitcnt lgkmcnt(0)')
        a.label(lc)
        a('s_memrealtime s[84:85]')
        a('s_memtime s[86:87]')
        a('s_waitcnt lgkmcnt(0)')
        a('s_cmp_eq_u32 s84, s82')
        a('s_cbranch_scc1 %s', lc)
    if 'slow' in dev: a('s_branch tslow')
    a('s_cbranch_vccnz tslow')
    a('s_cmp_eq_u32 s5, 1')
    a('s_cbranch_scc1 cloopF')
    a('s_branch sloopF')
    a.label('tslow')
    a('s_cmp_eq_u32 s5, 1')
    a('s_cbranch_scc1 cloopS')
    a('s_branch sloopS')
    a.label('tdie')
    a('s_endpgm')

    def loop(role, mode):
        SC = ' sc1' if mode == 'S' else ''
        ORDER = ORD_S if role == 's' else ORD_C
        TACC = 20
        MF = 48 if role == 's' else 52
        SB, TA, SACC = 76, 100, 108
        VB, PF, CACC, DB, RT = 52, 60, 72, 80, 112
        TMP = TA if role == 's' else 19
        tails = []
        a.l.append('.p2align 6')
        a.label(role + 'loop' + mode)
        if dev:
            l = a.new('pp')
            a('s_cmp_eq_u32 s12, 8')
            a('s_cbranch_scc0 %s', l)
            a('s_memtime s[78:79]')
            a('s_memrealtime s[88:89]')
            a.label(l)
        if 'stall' in dev and role == 'c':
            a('s_waitcnt lgkmcnt(0)')
            a('s_mov_b32 s70, s76')
        def mpoll():
            a('buffer_load_dwordx4 %s, v1, s[8:11], s32 offen sc1', V(MF, 4))
            a('buffer_load_dwordx4 %s, v1, s[8:11], s33 offen sc1', V(MF + 4, 4))
        NE = 0
        if role == 'c':
            for x in dev:
                if x.startswith('ne'): NE = int(x[2:])
            dd = ddma('s38', 's6') if 'nod' not in dev else []
            a('s_xor_b32 s37, s37, 0x18000')
            a('s_cmp_lg_u32 s13, 0')
            lslow, lback = a.new('dq'), a.new('db')
            a('s_cbranch_scc1 %s', lslow)
            a.label(lback)
            tails.append(('dw', lslow, lback))
            a('s_mov_b32 m0, s37')
            a('s_nop 0')
            for grp in dd[:NE]:
                for ins in grp: a(ins)
                if len(grp) > 1: a('s_nop 0')
        if role == 'c': mpoll()
        for r in range(MF - TACC): a('v_mov_b32 v%d, 0', TACC + r)
        if role == 'c': mpoll()
        sc = ['s_and_b32 s30, s12, 3', 's_mul_i32 s22, s30, %d' % PSLOT, 's_add_u32 s22, s22, 0x%x' % PR,
              's_add_u32 s31, s12, 1', 's_mul_i32 s41, s31, %d' % UNIT, 's_and_b32 s31, s31, 3', 's_mul_i32 s42, s31, %d' % UNIT,
              's_add_u32 s42, s42, 0x%x' % MEMX, 's_add_u32 s32, s42, s15', 's_add_u32 s33, s42, s16']
        if role == 's':
            for r in range(12): a('v_mov_b32 v%d, 0', SACC + r)
            for i in range(5): a('v_add_u32 v%d, s%d, v1', TA + 2 + i, 17 + i)
            radr = [TA + 2 + i for i in range(5)]
            sc += ['s_add_u32 s31, s12, 3', 's_and_b32 s31, s31, 3', 's_mul_i32 s24, s31, s28', 's_add_u32 s24, s24, s27',
                   's_min_u32 s24, s24, 0x%x' % OOB]
        else:
            radr = [4, 5, 7, 12, 13]
            sc += ['s_lshl_b32 s31, s3, 11', 's_add_u32 s43, s22, s31', 's_add_u32 s41, s41, 0x%x' % MEME, 's_xor_b32 s30, s37, 0x18000']
        MD = 2
        if role == 's':
            MD = 3
            for x in dev:
                if x.startswith('md'): MD = int(x[2:])
            for r in range(8): a('v_mov_b32 v%d, -1', MF + r)
            if 'now' not in dev: a('s_waitcnt vmcnt(0)')
        a('s_mov_b32 s14, 0')
        def smf(i):
            t, lam = ORDER[i]
            a('v_smfmac_f32_16x16x64_bf16 %s, %s, %s, v2', V(TACC + 4 * t, 4), V(MF + 4 * lam, 4), Wreg(i))
        lp, lf = a.new('mp'), a.new('mf')
        if role == 'c': a('s_branch %s', lp)
        a.label(lf)
        for x in dev:
            if x.startswith('ms' + role): a('s_sleep %d', int(x[3:]))
        mpoll()
        a('s_add_u32 s14, s14, 1')
        a('s_cmp_lt_u32 s14, %d', SPIN)
        a('s_cbranch_scc0 tdie')
        a.label(lp)
        a('s_waitcnt vmcnt(%d)', 2 * MD - 2)
        a('v_max3_u32 v3, v%d, v%d, v%d', MF, MF + 1, MF + 2)
        a('v_max3_u32 v%d, v%d, v%d, v%d', TMP, MF + 3, MF + 4, MF + 5)
        a('v_max3_u32 v3, v%d, v%d, v3', MF + 6, MF + 7)
        a('v_max_u32 v3, v%d, v3', TMP)
        a('v_cmp_eq_u32 vcc, -1, v3')
        if 'm0' in dev:
            a('ds_write_b128 v16, %s', V(MF, 4))
            a('ds_write_b128 v17, %s', V(MF + 4, 4))
        a('s_cbranch_vccnz %s', lf)
        stamp(0)
        N = len(ORDER)
        gm = [[] for _ in range(N + 8)]
        gv = [[] for _ in range(N + 8)]
        pre = [[] for _ in range(N + 8)]
        rd = ['ds_read_b128 %s, v%d' % (V(MF + 8 + 4 * i, 4), radr[i]) for i in range(5)]
        gv[2].append('v_lshlrev_b32 v3, 2, v0')
        if 'm0' not in dev:
            gm[0].append('ds_write_b128 v16, %s' % V(MF, 4))
            gm[1].append('ds_write_b128 v17, %s' % V(MF + 4, 4))
        GB = 5
        for x in dev:
            if x.startswith('gb') and role == 's': GB = int(x[2:])
        gm[GB] += ['s_waitcnt lgkmcnt(0)', 's_barrier', rd[0]]
        for i in range(1, 5): gm[GB + i].append(rd[i])
        for k in range(0, len(sc), 2): gv[(8 if role == 'c' else 20) + k // 2] += sc[k:k + 2]
        def place(ins, lo):
            k = lo
            while gm[k]: k += 1
            gm[k] += ins if isinstance(ins, list) else [ins]
            return k
        if role == 's':
            B0 = 21
            def epi(t):
                c = TACC + 4 * t
                return (['v_add_f32 v%d, v%d, v%d' % (c, c, c + 2), 'v_add_f32 v%d, v%d, v%d' % (c + 1, c + 1, c + 3),
                         'v_cvt_pk_bf16_f32 v%d, v%d, v%d' % (c, c, c + 1)], ['ds_write_b32 v4, v%d offset:%d' % (c, 256 * t)])
            for t in range(6):
                v, m = epi(t)
                for i, ins in enumerate(v): gv[B0 + 4 * t + 7 + i].append(ins)
                gm[B0 + 4 * t + 10].append(m[0])
            place('ds_read_b64_tr_b16 %s, v5' % V(TA, 2), B0 + 23)
            place('ds_read_b64_tr_b16 %s, v5 offset:128' % V(TA + 2, 2), B0 + 24)
            def brd(step, xb0, xb1, mb):
                r = []
                for kt, b in ((0, xb0), (1, xb1)):
                    for hh in range(2):
                        r.append('ds_read_b128 %s, v6 offset:%d' % (V(b + 4 * hh, 4), kt * 14336 + (2 * step + hh) * 1024))
                ad = 'v8' if step == 0 else 'v9'
                for hh in range(2):
                    for qq in range(2):
                        r.append('ds_read2_b32 %s, %s offset0:%d offset1:%d' % (V(mb + 4 * hh + 2 * qq, 2), ad, 128 * hh + qq, 128 * hh + qq + 8))
                return r
            place('buffer_load_dword v18, v3, s[8:11], s49 offen sc1', GB)
            place('buffer_load_dword v19, v7, s[8:11], s38 offen' if 'notouch' not in dev else 'buffer_load_dword v19, v3, s[8:11], s49 offen sc1', GB)
            BL = 12
            for x in dev:
                if x.startswith('bl'): BL = int(x[2:])
            for ins in brd(0, SB, SB + 8, SB + 16): place(ins, BL)
            b1 = brd(1, TACC, TACC + 8, MF)
            k = place(['s_waitcnt vmcnt(2)', b1[4]], 20)
            for ins in b1[5:]: place(ins, k)
            for ins in b1[0:2]: place(ins, B0 + 15)
            for ins in b1[2:4]: place(ins, B0 + 23)
            def younger_ds(k0, k1): return sum(1 for kk in range(k0, k1) for x in gm[kk] if x.startswith('ds_'))
            pre[14].append('s_waitcnt lgkmcnt(%d)' % younger_ds(GB + 1, 14))
            pre[B0].append('s_waitcnt lgkmcnt(%d)' % younger_ds(GB + 5, B0))
        else:
            pre[16].append('s_waitcnt lgkmcnt(4)')
            pre[24].append('s_waitcnt lgkmcnt(0)')
            sp = 4
            for x in dev:
                if x.startswith('sp'): sp = int(x[2:])
            rest = dd[NE:]
            for i, grp in enumerate(rest): gm[12 + sp * i] += grp
            gm[10].append('buffer_load_dword v18, v3, s[8:11], s49 offen sc1')
            wr = ['ds_read_b128 %s, v14 offset:%d' % (V(CSPILL[i >> 1] + 4 * (i & 1), 4), 1024 * i) for i in range(14)]
            for ins in wr[:10]: place(ins, 24)
            k = 38
            while gm[k]: k += 1
            younger = sum(1 for kk in range(k) for x in gm[kk] if x.startswith('buffer_'))
            k = place(['s_waitcnt vmcnt(%d)' % younger, wr[10]], 38)
            for ins in wr[11:]: place(ins, k)
            pre[49].append('s_waitcnt lgkmcnt(0)')
            gv[20].append('v_add_u32 v15, s30, v1')
        for k in range(N):
            for ins in pre[k]: a(ins)
            smf(k)
            for ins in gm[k] + gv[k]: a(ins)
        stamp(1)
        if role == 's':
            for kk in range(N, N + 3):
                for ins in gm[kk] + gv[kk]: a(ins)
            assert not any(gm[N + 3:]) and not any(gv[N + 3:])
            a('s_cmp_lt_u32 s3, 2')
            a('s_nop 1')
            v, m = epi(6)
            for ins in v + m: a(ins)
            a('ds_read_b64_tr_b16 %s, v5 offset:1024', V(TA + 4, 2))
            a('ds_read_b64_tr_b16 %s, v5 offset:1152', V(TA + 6, 2))
            a('s_waitcnt lgkmcnt(7)')
            for kt in range(3):
                a('v_smfmac_f32_16x16x64_bf16 %s, %s, %s, v2', V(SACC + 4 * kt, 4), V(TA, 4), V(SB + 8 * kt, 8))
            a('s_waitcnt lgkmcnt(0)')
            for kt, b in enumerate((TACC, TACC + 8, MF)):
                a('v_smfmac_f32_16x16x64_bf16 %s, %s, %s, v2', V(SACC + 4 * kt, 4), V(TA + 4, 4), V(b, 8))
            a('s_nop %d', 5 if 'tight' not in dev else 1)
            def sadd(kt):
                c = SACC + 4 * kt
                if 'nopk' not in dev: a('v_pk_add_f32 %s, %s, %s', V(c, 2), V(c, 2), V(c + 2, 2))
                else:
                    a('v_add_f32 v%d, v%d, v%d', c, c, c + 2)
                    a('v_add_f32 v%d, v%d, v%d', c + 1, c + 1, c + 3)
            def swr(kt):
                c = SACC + 4 * kt
                if kt < 2: a('ds_write2_b32 v10, v%d, v%d offset0:%d offset1:%d', c, c + 1, 32 * kt, 32 * kt + 64)
                else: a('ds_write2_b32 v15, v%d, v%d offset0:2 offset1:66', c, c + 1)
            if 'so0' not in dev: sadd(0); sadd(1); swr(0); sadd(2); swr(1); swr(2)
            else:
                for kt in range(3): sadd(kt); swr(kt)
            lns, ljn = a.new('ns'), a.new('jn')
            a('s_cbranch_scc0 %s', lns)
            tails.append(('nv', lns, ljn))
            def warm(key, regs):
                n = 0
                for x in dev:
                    if x.startswith(key): n = int(x[len(key):])
                for i in range(n):
                    a('v_mov_b32 v%d, 0', regs + i)
                    a('s_nop 2')
            warm('wa', TACC + 16)
            a('s_waitcnt lgkmcnt(0)')
            a('s_barrier')
            stamp(2)
            for w in range(4): a('ds_read_b96 %s, v11 offset:%d', V(76 + 4 * w, 3), 2048 * w) if 'b96' in dev else a('ds_read_b128 %s, v11 offset:%d', V(76 + 4 * w, 4), 2048 * w)
            warm('wb', TACC + 22)
            a('s_waitcnt lgkmcnt(2)')
            a('v_pk_add_f32 v[76:77], v[76:77], v[80:81]')
            a('v_add_f32 v78, v78, v82')
            a('s_waitcnt lgkmcnt(0)')
            a('v_pk_add_f32 v[84:85], v[84:85], v[88:89]')
            a('v_add_f32 v86, v86, v90')
            a('v_pk_add_f32 v[76:77], v[76:77], v[84:85]')
            a('v_add_f32 v78, v78, v86')
            DP = ('quad_perm:[1,0,3,2]', 'quad_perm:[2,3,0,1]', 'row_half_mirror', 'row_mirror')
            def dpp(op, d, s_, ctl): a('%s_dpp v%d, v%d, v%d %s row_mask:0xf bank_mask:0xf', op, d, s_, s_, ctl)
            a('v_max3_f32 v84, v76, v77, v78')
            a('v_sub_f32 v76, v76, v84')
            a('v_sub_f32 v77, v77, v84')
            dpp('v_max_f32', 85, 84, DP[0])
            a('v_sub_f32 v78, v78, v84')
            a('v_exp_f32 v76, v76')
            dpp('v_max_f32', 85, 85, DP[1])
            a('v_exp_f32 v77, v77')
            a('s_nop 0')
            dpp('v_max_f32', 85, 85, DP[2])
            a('v_exp_f32 v78, v78')
            a('v_add_f32 v86, v76, v77')
            dpp('v_max_f32', 85, 85, DP[3])
            a('v_sub_f32 v84, v84, v85')
            a('v_exp_f32 v84, v84')
            a('v_fmac_f32 v86, v78, v14')
            a('v_mul_f32 v86, v86, v84')
            a('v_mul_f32 v76, v76, v84')
            a('v_mul_f32 v77, v77, v84')
            dpp('v_add_f32', 86, 86, DP[0])
            a('v_mul_f32 v78, v78, v84')
            a('s_nop 0')
            for ctl in DP[1:]:
                dpp('v_add_f32', 86, 86, ctl)
                if ctl != DP[3]: a('s_nop 1')
            a('v_rcp_f32 v86, v86')
            a('s_nop 0')
            a('v_mul_f32 v76, v76, v86')
            a('v_mul_f32 v77, v77, v86')
            a('v_cvt_pk_bf16_f32 v88, |v76|, |v77|')
            a('buffer_store_dword v88, v12, s[8:11], s22 offen' + SC)
            a('v_mul_f32_dpp v79, v78, v86 quad_perm:[1,0,3,2] row_mask:0xf bank_mask:0xf')
            a('v_mul_f32 v78, v78, v86')
            a('v_cvt_pk_bf16_f32 v90, |v78|, |v79|')
            a('buffer_store_dword v90, v13, s[8:11], s22 offen' + SC)
            stamp(3)
            a('s_waitcnt vmcnt(3)')
            a.label(ljn)
            a('s_barrier')
            if 'nox' not in dev: xdma()
            a('v_add_u32 v7, %d, v7', XSEG)
            a('s_mov_b64 exec, s[62:63]')
            a('v_add_u32 v7, %d, v7', DSEG - XSEG)
            a('s_mov_b64 exec, -1')
            a('s_add_u32 s31, s12, 3')
            fcheck(18, 3, 's31')
            a('s_cselect_b32 s38, 0x%x, 0', OOB)
            a('s_cmp_gt_u32 s31, 62')
            a('s_cselect_b32 s38, 0x%x, s38', OOB)
            for x in dev:
                if x.startswith('ds'): a('s_sleep %d', int(x[2:]))
        else:
            assert not any(gm[N:]) and not any(gv[N:])
            def pld1(k):
                a('buffer_load_dwordx4 %s, %s, s[8:11], s43 offen offset:%d sc1', V(PF + 4 * k, 4), 'v1' if k else 'v6', 1024 if k == 2 else 0)
            def pld():
                for k in range(3): pld1(k)
            for i in range(8): a('ds_read_b128 %s, v15 offset:%d', V(DB + 4 * i, 4), 1024 * (i & 3) + 16384 * (i >> 2))
            pld()
            for t in range(8):
                c = TACC + 4 * t
                a('v_add_f32 v%d, v%d, v%d', c, c, c + 2)
                a('v_add_f32 v%d, v%d, v%d', c + 1, c + 1, c + 3)
                a('v_cvt_pk_bf16_f32 v%d, v%d, v%d', VB + t, c, c + 1)
            a('s_waitcnt vmcnt(3)')
            a('s_add_u32 s35, s35, %d', DSEG)
            a('s_add_u32 s31, s12, 2')
            fcheck(18, 3, 's31')
            a('s_cselect_b32 s13, 1, 0')
            a('s_add_u32 s6, s35, 16384')
            a('s_cmp_gt_u32 s31, 62')
            a('s_cselect_b32 s38, 0x%x, s35', OOB)
            a('s_cselect_b32 s6, 0x%x, s6', OOB)
            a('s_cselect_b32 s13, 0, s13')
            a('s_mov_b32 s14, 0')
            stamp(4)
            a('s_waitcnt lgkmcnt(0)')
            lr, lq = a.new('pr'), a.new('pq')
            def pchk():
                a('v_or3_b32 v3, v%d, v%d, v%d', PF, PF + 1, PF + 2)
                a('v_or3_b32 v19, v%d, v%d, v%d', PF + 3, PF + 4, PF + 5)
                a('v_or3_b32 v3, v%d, v%d, v3', PF + 6, PF + 7)
                a('v_or3_b32 v19, v%d, v%d, v19', PF + 8, PF + 9)
                a('v_or3_b32 v3, v%d, v%d, v3', PF + 10, PF + 11)
                a('v_or_b32 v3, v19, v3')
                a('v_cmp_gt_i32 vcc, 0, v3')
            if 'pone' not in dev:
                a.label(lr)
                pld()
                a('s_add_u32 s14, s14, 1')
                a('s_cmp_lt_u32 s14, %d', SPIN)
                a('s_cbranch_scc0 tdie')
                a('s_waitcnt vmcnt(3)')
                pchk()
                a('v_mfma_f32_16x16x32_bf16 %s, %s, %s, 0', V(CACC, 4), V(PF, 4), V(VB, 4))
                a('s_cmp_lt_u32 s3, 2')
                a('s_cbranch_vccnz %s', lr)
            else:
                PD = 3
                for x in dev:
                    if x.startswith('pq'): PD = int(x[2:])
                a('s_waitcnt vmcnt(0)')
                a.label(lr)
                for k in range(3):
                    pld1(k)
                    if k == 0:
                        a('s_add_u32 s14, s14, 1')
                        a('s_cmp_lt_u32 s14, %d', SPIN)
                        a('s_cbranch_scc0 tdie')
                    a('s_waitcnt vmcnt(%d)', PD)
                    pchk()
                    a('s_cbranch_vccz %s' % lq if k < 2 else 's_cbranch_vccnz %s' % lr)
                a.label(lq)
                a('v_mfma_f32_16x16x32_bf16 %s, %s, %s, 0', V(CACC, 4), V(PF, 4), V(VB, 4))
                a('s_cmp_lt_u32 s3, 2')
            a('v_smfmac_f32_16x16x64_bf16 %s, %s, %s, v2', V(CACC, 4), V(PF + 4, 4), V(DB, 8))
            a('v_smfmac_f32_16x16x64_bf16 %s, %s, %s, v2', V(CACC, 4), V(PF + 8, 4), V(DB + 8, 8))
            a('v_mfma_f32_16x16x32_bf16 %s, %s, %s, 0', V(CACC + 4, 4), V(PF, 4), V(VB + 4, 4))
            a('v_smfmac_f32_16x16x64_bf16 %s, %s, %s, v2', V(CACC + 4, 4), V(PF + 4, 4), V(DB + 16, 8))
            a('v_smfmac_f32_16x16x64_bf16 %s, %s, %s, v2', V(CACC + 4, 4), V(PF + 8, 4), V(DB + 24, 8))
            stamp(5)
            a('v_add_f32 v%d, v%d, v%d', CACC, CACC, CACC + 2)
            a('v_add_f32 v%d, v%d, v%d', CACC + 1, CACC + 1, CACC + 3)
            a('ds_write2_b32 v8, v%d, v%d offset0:0 offset1:16', CACC, CACC + 1)
            a('s_nop 4')
            a('v_add_f32 v%d, v%d, v%d', CACC + 4, CACC + 4, CACC + 6)
            a('v_add_f32 v%d, v%d, v%d', CACC + 5, CACC + 5, CACC + 7)
            a('ds_write2_b32 v10, v%d, v%d offset0:0 offset1:16', CACC + 4, CACC + 5)
            lnr, ljr = a.new('nr'), a.new('jr')
            a('s_cbranch_scc0 %s', lnr)
            tails.append(('ns', lnr, ljr))
            a('s_waitcnt lgkmcnt(0)')
            a('s_barrier')
            for w in range(4): a('ds_read_b64 %s, v9 offset:%d', V(RT + 2 * w, 2), 512 * w)
            a('s_waitcnt lgkmcnt(2)')
            a('v_pk_add_f32 %s, %s, %s', V(RT, 2), V(RT, 2), V(RT + 2, 2))
            a('s_waitcnt lgkmcnt(0)')
            a('v_pk_add_f32 %s, %s, %s', V(RT + 4, 2), V(RT + 4, 2), V(RT + 6, 2))
            a('v_pk_add_f32 %s, %s, %s', V(RT, 2), V(RT, 2), V(RT + 4, 2))
            a('v_cvt_pk_bf16_f32 v%d, v%d, v%d', RT, RT, RT + 1)
            a('v_min_u32 v%d, -2, v%d', RT, RT)
            a('buffer_store_dword v%d, v11, s[8:11], s42 offen%s', RT, SC)
            stamp(6)
            a('s_barrier')
            if 'noext' not in dev: a('buffer_store_dword v%d, v11, s[8:11], s41 offen sc1', RT)
            a.label(ljr)
            for x in dev:
                if x.startswith('dc'): a('s_sleep %d', int(x[2:]))
        if dev:
            ld = a.new('dv')
            a('s_cmp_eq_u32 s12, 40')
            a('s_cbranch_scc0 %s', ld)
            a('s_memtime s[80:81]')
            a('s_memrealtime s[82:83]')
            a('s_waitcnt lgkmcnt(0)')
            a('s_sub_u32 s78, s80, s78')
            a('s_sub_u32 s88, s82, s88')
            a('s_lshl_b32 s30, s5, 4')
            a('s_add_u32 s30, s30, s4')
            a('s_lshl_b32 s30, s30, 2')
            a('s_add_u32 s30, s30, s3')
            a('s_lshl_b32 s30, s30, 6')
            a('s_add_u32 s30, s30, 0x3F00000')
            for kk in range(13):
                a('v_mov_b32 v99, s%d', 64 + 2 * kk)
                a('buffer_store_dword v99, off, s[8:11], s30 offset:%d', 4 * kk)
                a('s_nop 1')
            a.label(ld)
        a('s_add_u32 s12, s12, 1')
        a('s_cmp_lt_u32 s12, 63')
        a('s_cbranch_scc1 %sloop%s', role, mode)
        if dev:
            a('s_memrealtime s[82:83]')
            a('s_waitcnt lgkmcnt(0)')
            a('s_lshl_b32 s30, s2, 4')
            a('s_add_u32 s30, s30, 0x3F10000')
            for kk, r in enumerate((90, 84, 82)):
                a('v_mov_b32 v99, s%d', r)
                a('buffer_store_dword v99, off, s[8:11], s30 offset:%d', 4 * kk)
                a('s_nop 1')
            if 'dbgt' in dev:
                l = a.new('dt')
                a('s_cmp_eq_u32 s4, 5')
                a('s_cbranch_scc0 %s', l)
                a('s_lshl_b32 s30, s5, 4')
                for kk, r in enumerate((90, 84, 82, 78)):
                    if r != 78: a('s_sub_u32 s31, s%d, s92', r)
                    else: a('s_mov_b32 s31, s78')
                    a('v_mov_b32 v99, s31')
                    a('buffer_store_dword v99, off, s[44:47], s30 offset:%d', 4 * kk)
                    a('s_nop 1')
                a.label(l)
        a('s_endpgm')
        for p in tails:
            a.label(p[1])
            if p[0] == 'dw':
                a('s_add_u32 s31, s12, 1')
                dwait('s31')
                a('s_branch %s', p[2])
            elif p[0] == 'nv':
                for r in range(4): a('v_mov_b32 v%d, -1', 92 + r)
                a('s_waitcnt lgkmcnt(0)')
                a('s_barrier')
                a('buffer_store_dwordx4 v[92:95], v1, s[8:11], s24 offen' + SC)
                a('s_waitcnt vmcnt(2)')
                a('s_branch %s', p[2])
            elif p[0] == 'ns':
                a('s_waitcnt lgkmcnt(0)')
                a('s_barrier')
                a('s_barrier')
                a('s_branch %s', p[2])
    for mode in 'FS':
        for role in 'sc': loop(role, mode)
```

```python
from common import *
import fold
SPIN = 400000
XB = 28672 + 128
KT1 = 14336 + 64
DST = 'sc1'
DEV = False
DBGT = False
def tl(a, k):
    if DEV:
        a('s_memrealtime s[82:83]')
        a('s_waitcnt lgkmcnt(0)')
        a('s_lshl_b32 s84, s2, 4')
        a('s_add_u32 s84, s84, 0x3F10000')
        a('v_mov_b32 v4, s82')
        a('buffer_store_dword v4, off, s[8:11], s84 offset:%d', 4 * k)
        a('s_nop 1')

NSET_D, NSET_F, NSET_X, NSET_O = 2, 2, 3, 13

def lane_consts(a):
    a('v_lshlrev_b32 v1, 4, v0')
    a('v_and_b32 v2, 15, v0')
    a('v_lshrrev_b32 v3, 4, v0')

def x_setup(a, lx):
    a('s_mul_i32 s30, s3, 7168')
    a('s_mul_i32 s34, s12, %d', XSEG)
    a('s_add_u32 s34, s34, s30')
    a('s_add_u32 s34, s34, 0x%x', XF)
    a('s_lshr_b32 s31, s3, 1')
    a('s_lshl_b32 s31, s31, 6')
    a('s_add_u32 s36, s30, s31')
    a('s_add_u32 s36, s36, %d', lx)
    a('s_mov_b32 s50, %d', XB)

def x_dma(a):
    a('s_mov_b32 m0, s36')
    a('s_add_u32 s30, s34, 4096')
    for i in range(4): a('buffer_load_dwordx4 v1, s[8:11], s34 offen offset:%d sc1 lds', 1024 * i)
    a('s_add_u32 m0, s36, 4096')
    a('s_nop 0')
    for i in range(3): a('buffer_load_dwordx4 v1, s[8:11], s30 offen offset:%d sc1 lds', 1024 * i)

def x_next(a, nset):
    a('s_add_u32 s34, s34, %d', XSEG * nset)
    a('s_add_u32 s36, s36, s50')

def perm_rows_addr(a, dst, lx, gmul_shift, tmp):
    a('v_lshrrev_b32 v%d, 3, v2', tmp)
    a('s_movk_i32 s30, %d', KT1)
    a('v_mul_u32_u24 v%d, s30, v%d', dst, tmp)
    a('v_bfe_u32 v%d, v0, 2, 1', tmp)
    a('v_lshl_add_u32 v%d, v%d, 7, v%d', dst, tmp, dst)
    a('v_and_b32 v%d, 3, v0', tmp)
    a('v_lshl_add_u32 v%d, v%d, 4, v%d', dst, tmp, dst)
    a('v_add_u32 v%d, %d, v%d', dst, lx, dst)

def publish(a, word_sgpr_off, val):
    l = a.new('pb')
    a('s_cmp_eq_u32 s3, 0')
    a('s_cbranch_scc0 %s', l)
    a('v_mov_b32 v4, %s', val)
    a('v_mov_b32 v5, 0')
    a('buffer_store_dword v4, v5, s[8:11], %s offen sc1', word_sgpr_off)
    a.label(l)

def sg_loop(a, name, nset, nst, mfma_fn, epi_fn, rd_fn, tail_fn=None):
    XR = 64
    x_dma(a)
    a('s_mov_b32 s13, 0')
    a('s_waitcnt vmcnt(0)')
    tl(a, 1)
    a('s_branch %s_in', name)
    a.label(name + '_loop')
    a('s_waitcnt vmcnt(%d)', nst)
    a.label(name + '_in')
    a('s_barrier')
    l = a.new('np')
    a('s_cmp_lt_u32 s13, 2')
    a('s_cbranch_scc1 %s', l)
    a('s_sub_u32 s31, s13, 1')
    publish(a, 's35', 's31')
    a.label(l)
    x_next(a, nset)
    x_dma(a)
    def rd(j):
        for mt in range(2): rd_fn(XR + 8 * (j % 4) + 4 * mt, j, mt)
    for j in range(3): rd(j)
    for j in range(14):
        if j + 3 < 14: rd(j + 3)
        a('s_waitcnt lgkmcnt(%d)', 2 * min(3, 13 - j))
        mfma_fn(j, XR + 8 * (j % 4))
    a('v_add_u32 v6, s50, v6')
    a('s_sub_u32 s50, 0, s50')
    a('s_nop 6')
    epi_fn()
    a('s_add_u32 s13, s13, 1')
    a('s_add_u32 s12, s12, %d', nset)
    if tail_fn is not None or name == 'rd':
        l = a.new('fp')
        a('s_cmp_eq_u32 s13, 1')
        a('s_cbranch_scc0 %s', l)
        a('s_waitcnt vmcnt(0)')
        a('s_barrier')
        publish(a, 's35', 's13')
        a.label(l)
    a('s_cmp_lt_u32 s12, 64')
    a('s_cbranch_scc1 %s_loop', name)
    a('s_waitcnt vmcnt(0)')
    a('s_barrier')
    publish(a, 's35', 's13')
    tl(a, 2)
    if tail_fn is None: a('s_endpgm')
    else: tail_fn()

def mem_fetch(a, KO, va0, va1):
    lp, ok = a.new('xm'), a.new('xk')
    a('s_mov_b32 s14, 0')
    a.label(lp)
    a('buffer_load_dwordx4 %s, v1, s[8:11], s32 offen sc1', V(KO, 4))
    a('buffer_load_dwordx4 %s, v1, s[8:11], s33 offen sc1', V(KO + 4, 4))
    a('s_waitcnt vmcnt(0)')
    a('v_max3_u32 v4, v%d, v%d, v%d', KO, KO + 1, KO + 2)
    a('v_max3_u32 v5, v%d, v%d, v%d', KO + 3, KO + 4, KO + 5)
    a('v_max3_u32 v4, v%d, v%d, v4', KO + 6, KO + 7)
    a('v_max_u32 v4, v4, v5')
    a('v_cmp_eq_u32 vcc, -1, v4')
    a('s_cbranch_vccz %s', ok)
    a('s_sleep 2')
    a('s_add_u32 s14, s14, 1')
    a('s_cmp_lt_u32 s14, %d', SPIN)
    a('s_cbranch_scc1 %s', lp)
    a('s_endpgm')
    a.label(ok)
    a('ds_write_b128 v%d, %s', va0, V(KO, 4))
    a('ds_write_b128 v%d, %s', va1, V(KO + 4, 4))

def own_frags(a, lm, va0, va1):
    a('s_lshl_b32 s15, s3, 11')
    a('s_add_u32 s16, s15, 1024')
    a('s_cmp_eq_u32 s3, 3')
    a('s_cselect_b32 s16, 0, s16')
    a('s_add_u32 s31, s15, %d', lm)
    a('v_add_u32 v%d, s31, v1', va0)
    a('s_add_u32 s31, s16, %d', lm)
    a('v_add_u32 v%d, s31, v1', va1)

def gen_d(a, vtail=True):
    a.label('role_d')
    tl(a, 0)
    a('s_lshr_b32 s6, s30, 1')
    a('s_and_b32 s12, s30, 1')
    lane_consts(a)
    fold.wait_all(a, FLG_M, 256)
    a('s_lshl_b32 s31, s3, 2')
    a('s_mul_i32 s31, s31, 28')
    a('s_add_u32 s31, s31, s6')
    a('s_mul_i32 s31, s31, 14336')
    a('s_add_u32 s31, s31, 0x%x', WF_C)
    for hh in range(4):
        for j in range(14):
            if j % 4 == 0: a('s_add_u32 s32, s31, %d', hh * 28 * 14336 + j * 1024)
            a('buffer_load_dwordx4 %s, v1, s[8:11], s32 offen offset:%d sc1', A((hh * 14 + j) * 4, 4), (j % 4) * 1024)
    x_setup(a, 0)
    perm_rows_addr(a, 6, 0, 0, 7)
    a('v_lshl_add_u32 v6, v3, 8, v6')
    a('s_lshl_b32 s35, s12, 7')
    a('s_lshl_b32 s31, s6, 2')
    a('s_add_u32 s35, s35, s31')
    a('s_add_u32 s35, s35, 0x%x', DPROG)
    ACC = 32
    def rd(b, j, mt): a('ds_read_b128 %s, v6 offset:%d', V(b, 4), j * 1024 + mt * 64)
    def mf(j, xb):
        for hh in range(4):
            for mt in range(2):
                c = ACC + (hh * 2 + mt) * 4
                a('v_mfma_f32_16x16x32_bf16 %s, %s, %s, %s', V(c, 4), V(xb + 4 * mt, 4), A((hh * 14 + j) * 4, 4), V(c, 4) if j else '0')
    def epi():
        a('s_mul_i32 s30, s12, %d', DSEG)
        a('s_lshl_b32 s31, s6, 14')
        a('s_add_u32 s30, s30, s31')
        a('s_lshl_b32 s31, s3, 12')
        a('s_add_u32 s30, s30, s31')
        a('s_add_u32 s30, s30, 0x%x', DD)
        for hh in range(4):
            c = ACC + hh * 8
            o = 96 + 4 * hh
            for d in range(4): a('v_cvt_pk_bf16_f32 v%d, v%d, v%d', o + d, c + 2 * d, c + 2 * d + 1)
            a('buffer_store_dwordx4 %s, v1, s[8:11], s30 offen offset:%d %s', V(o, 4), 1024 * hh, DST)
    def tail():
        LM = 65536
        own_frags(a, LM, 9, 10)
        a('v_lshrrev_b32 v4, 1, v3')
        a('v_lshlrev_b32 v8, 8, v4')
        a('v_bfe_u32 v4, v0, 1, 2')
        a('v_lshl_add_u32 v8, v4, 6, v8')
        a('v_and_b32 v4, 1, v0')
        a('v_lshl_add_u32 v8, v4, 4, v8')
        a('v_and_b32 v4, 1, v3')
        a('v_lshl_add_u32 v8, v4, 3, v8')
        a('v_add_u32 v8, %d, v8', LM)
        a('v_lshlrev_b32 v11, 4, v2')
        a('v_lshl_add_u32 v11, v4, 3, v11')
        a('v_lshrrev_b32 v4, 1, v3')
        a('v_lshl_add_u32 v11, v4, 8, v11')
        a('v_cmp_gt_u32 s[60:61], 32, v0')
        a('s_and_b32 s12, s12, 1')
        a('s_lshl_b32 s35, s12, 9')
        a('s_lshl_b32 s31, s6, 4')
        a('s_add_u32 s35, s35, s31')
        a('s_lshl_b32 s31, s3, 2')
        a('s_add_u32 s35, s35, s31')
        a('s_add_u32 s35, s35, 0x%x', VPROG)
        a('s_mov_b32 s13, 0')
        a.label('rv_loop')
        a('s_mul_i32 s39, s12, %d', UNIT)
        a('s_add_u32 s39, s39, 0x%x', MEME)
        a('s_add_u32 s32, s39, s15')
        a('s_add_u32 s33, s39, s16')
        mem_fetch(a, 64, 9, 10)
        a('s_waitcnt lgkmcnt(0)')
        a('s_barrier')
        AF = 120
        for j in range(14):
            if j % 2 == 0 and j: a('v_add_u32 v8, 1024, v8')
            for qq in range(2):
                o = 128 * (j & 1) + qq
                a('ds_read2_b32 %s, v8 offset0:%d offset1:%d', V(AF + 4 * j + 2 * qq, 2), o, o + 8)
            if j % 4 == 3: a('s_waitcnt lgkmcnt(4)')
        a('v_subrev_u32 v8, 6144, v8')
        for r in (8, 9, 10): a('v_xor_b32 v%d, 0x2000, v%d', r, r)
        a('s_waitcnt lgkmcnt(0)')
        for j in range(14):
            for hh in range(4):
                c = ACC + hh * 4
                a('v_mfma_f32_16x16x32_bf16 %s, %s, %s, %s', V(c, 4), V(AF + 4 * j, 4), A((hh * 14 + j) * 4, 4), V(c, 4) if j else '0')
        a('s_mul_i32 s30, s12, %d', VSLOT)
        a('s_lshl_b32 s31, s6, 12')
        a('s_add_u32 s30, s30, s31')
        a('s_lshl_b32 s31, s3, 10')
        a('s_add_u32 s30, s30, s31')
        a('s_add_u32 s30, s30, 0x%x', VE)
        a('s_add_u32 s13, s13, 1')
        a('s_nop 1')
        for hp in range(2):
            c = ACC + hp * 8
            for r in range(4): a('v_cndmask_b32 v%d, v%d, v%d, s[60:61]', c + r, c + 4 + r, c + r)
            a('v_cvt_pk_bf16_f32 v%d, v%d, v%d', 96 + 2 * hp, c, c + 1)
            a('v_cvt_pk_bf16_f32 v%d, v%d, v%d', 97 + 2 * hp, c + 2, c + 3)
            a('buffer_store_dwordx2 %s, v11, s[8:11], s30 offen offset:%d sc1', V(96 + 2 * hp, 2), 512 * hp)
        a('v_mov_b32 v4, s13')
        a('s_waitcnt vmcnt(0)')
        a('buffer_store_dword v4, off, s[8:11], s35 sc1')
        a('s_add_u32 s12, s12, %d', NSET_D)
        a('s_cmp_lt_u32 s12, 64')
        a('s_cbranch_scc1 rv_loop')
        tl(a, 3)
        a('s_endpgm')
    sg_loop(a, 'rd', NSET_D, 4, mf, epi, rd, tail if vtail else None)

def gen_f1(a):
    a.label('role_f1')
    tl(a, 0)
    a('s_lshr_b32 s6, s30, 1')
    a('s_and_b32 s12, s30, 1')
    a('s_load_dwordx4 s[56:59], s[0:1], %d', KA['wg'])
    lane_consts(a)
    RS = 272
    a('s_lshl_b32 s31, s3, 2')
    a('v_add_u32 v4, s31, v3')
    a('s_movk_i32 s30, 3584')
    a('v_mul_u32_u24 v5, s30, v4')
    a('v_lshl_add_u32 v5, v2, 4, v5')
    a('s_movk_i32 s30, %d', RS)
    a('v_mul_u32_u24 v7, s30, v4')
    a('v_lshl_add_u32 v7, v2, 4, v7')
    a('v_add_u32 v8, %d, v7', 14 * 16 * RS)
    a('v_lshrrev_b32 v9, 2, v2')
    a('v_lshl_add_u32 v9, v3, 3, v9')
    a('v_mul_u32_u24 v9, s30, v9')
    a('v_and_b32 v4, 3, v0')
    a('v_lshl_add_u32 v9, v4, 4, v9')
    a('s_lshl_b32 s31, s3, 6')
    a('v_add_u32 v9, s31, v9')
    a('v_add_u32 v10, %d, v9', 7 * 32 * RS)
    a('s_waitcnt lgkmcnt(0)')
    a.srd(16, 56, FBYTES)
    a.srd(20, 58, FBYTES)
    ST = 16
    for mat in range(2):
        a('s_lshl_b32 s31, s6, 8')
        for p in range(28):
            a('buffer_load_dwordx4 %s, v5, s[%d:%d], s31 offen', V(ST + (mat * 28 + p) * 4, 4), 16 + 4 * mat, 19 + 4 * mat)
            if p < 27: a('s_add_u32 s31, s31, %d', 16 * 3584)
    for mat in range(2):
        a('s_waitcnt vmcnt(%d)', 28 if mat == 0 else 0)
        for p in range(28):
            a('ds_write_b128 v%d, %s offset:%d', 7 if p < 14 else 8, V(ST + (mat * 28 + p) * 4, 4), (p % 14) * 16 * RS)
        a('s_waitcnt lgkmcnt(0)')
        a('s_barrier')
        for u in range(2):
            for j in range(14):
                b = ((mat * 2 + u) * 14 + j) * 4
                o = (j % 7) * 32 * RS + u * 8
                a('ds_read_b64_tr_b16 %s, v%d offset:%d', A(b, 2), 9 if j < 7 else 10, o)
                a('ds_read_b64_tr_b16 %s, v%d offset:%d', A(b + 2, 2), 9 if j < 7 else 10, o + 4 * RS)
        a('s_waitcnt lgkmcnt(0)')
        a('s_barrier')
    x_setup(a, 0)
    a('v_mov_b32 v6, v1')
    a('s_lshl_b32 s35, s12, 7')
    a('s_lshl_b32 s31, s6, 2')
    a('s_add_u32 s35, s35, s31')
    a('s_add_u32 s35, s35, 0x%x', HPROG)
    ACC = 32
    def rd(b, j, tt): a('ds_read_b128 %s, v6 offset:%d', V(b, 4), j * 1024 + tt * KT1)
    def mf(j, xb):
        for q in range(4):
            for tt in range(2):
                c = ACC + (tt * 4 + q) * 4
                a('v_mfma_f32_16x16x32_bf16 %s, %s, %s, %s', V(c, 4), A((q * 14 + j) * 4, 4), V(xb + 4 * tt, 4), V(c, 4) if j else '0')
    def epi():
        a('s_mul_i32 s30, s12, %d', VSLOT)
        a('s_lshl_b32 s31, s6, 12')
        a('s_add_u32 s30, s30, s31')
        a('s_lshl_b32 s31, s3, 10')
        a('s_add_u32 s30, s30, s31')
        a('s_add_u32 s30, s30, 0x%x', H1)
        a('s_add_u32 s31, s30, 57344')
        for tt in range(2):
            g = ACC + tt * 16
            u = g + 8
            t = 104
            for i in range(8): a('v_mul_f32 v%d, 0x%x, v%d', t + i, fbits(-LOG2E), g + i)
            for i in range(8): a('v_exp_f32 v%d, v%d', t + i, t + i)
            for i in range(8): a('v_mul_f32 v%d, v%d, v%d', u + i, u + i, g + i)
            for i in range(8): a('v_add_f32 v%d, 1.0, v%d', t + i, t + i)
            for i in range(8): a('v_rcp_f32 v%d, v%d', t + i, t + i)
            a('s_nop 0')
            for i in range(8): a('v_mul_f32 v%d, v%d, v%d', u + i, u + i, t + i)
            o = 96 + 4 * tt
            for d in range(4): a('v_cvt_pk_bf16_f32 v%d, v%d, v%d', o + d, u + 2 * d, u + 2 * d + 1)
            a('buffer_store_dwordx4 %s, v1, s[8:11], s%d offen sc1', V(o, 4), 30 + tt)
    sg_loop(a, 'rf', NSET_F, 2, mf, epi, rd)

def poll_ge(a, voff, soff, vthr, tmp):
    lp, ok = a.new('pl'), a.new('pk')
    a('s_mov_b32 s14, 0')
    a.label(lp)
    a('buffer_load_dword v%d, v%d, s[8:11], %s offen sc1', tmp, voff, soff)
    a('s_waitcnt vmcnt(0)')
    a('v_cmp_lt_u32 vcc, v%d, v%d', tmp, vthr)
    a('s_cbranch_vccz %s', ok)
    a('s_sleep 4')
    a('s_add_u32 s14, s14, 1')
    a('s_cmp_lt_u32 s14, %d', SPIN)
    a('s_cbranch_scc1 %s', lp)
    a('s_endpgm')
    a.label(ok)

def gen_xs(a):
    LX, LM, LP = 0, 2 * XB, 2 * XB + 7168
    a.label('role_xs')
    tl(a, 0)
    a('s_mul_i32 s4, s30, 21846')
    a('s_lshr_b32 s4, s4, 16')
    a('s_mul_i32 s31, s4, 3')
    a('s_sub_u32 s12, s30, s31')
    lane_consts(a)
    fold.wait_head(a, FLG_A, 's4')
    def W(t, j):
        i = t * 14 + j
        return A(4 * i, 4) if i < 64 else V(120 + 4 * (i - 64), 4)
    a('s_mul_i32 s31, s4, 28')
    a('s_mul_i32 s32, s3, 7')
    a('s_add_u32 s31, s31, s32')
    a('s_mul_i32 s31, s31, 14336')
    if WF_A: a('s_add_u32 s31, s31, 0x%x', WF_A)
    for i in range(98):
        if i % 4 == 0 and i: a('s_add_u32 s31, s31, 4096')
        a('buffer_load_dwordx4 %s, v1, s[8:11], s31 offen offset:%d sc1', W(i // 14, i % 14), (i % 4) * 1024)
        if i >= 48 and i % 8 == 0: a('s_waitcnt vmcnt(40)')
    x_setup(a, LX)
    a('v_add_u32 v6, %d, v1', LX) if LX else a('v_mov_b32 v6, v1')
    perm_rows_addr(a, 7, LX, 0, 4)
    a('v_lshrrev_b32 v4, 1, v3')
    a('s_mul_i32 s31, s3, 14')
    a('v_add_u32 v4, s31, v4')
    a('v_lshl_add_u32 v7, v4, 8, v7')
    a('v_and_b32 v4, 1, v3')
    a('v_lshl_add_u32 v7, v4, 3, v7')
    a('v_bfe_u32 v4, v0, 1, 2')
    a('v_lshlrev_b32 v8, 6, v4')
    a('v_and_b32 v4, 1, v0')
    a('v_lshl_add_u32 v8, v4, 4, v8')
    a('v_lshl_add_u32 v8, v3, 2, v8')
    a('s_mul_i32 s31, s3, 1792')
    a('s_add_u32 s31, s31, %d', LM)
    a('v_add_u32 v8, s31, v8')
    own_frags(a, LM, 9, 10)
    a('s_mul_i32 s31, s3, 6144')
    a('s_add_u32 s31, s31, %d', LP)
    a('v_add_u32 v11, s31, v1')
    a('s_lshl_b32 s31, s3, 10')
    a('s_add_u32 s31, s31, %d', LP)
    a('v_add_u32 v12, s31, v1')
    a('s_lshl_b32 s31, s3, 4')
    a('v_add_u32 v4, s31, v2')
    a('v_lshlrev_b32 v5, 3, v3')
    a('v_sub_u32 v4, v4, v5')
    for i in range(8): a('v_cmp_gt_i32 s[%d:%d], %d, v4', 64 + 2 * i, 65 + 2 * i, i)
    a('v_cmp_gt_u32 vcc, 2, v3')
    a('v_mov_b32 v13, 0xff800000')
    a('s_nop 0')
    a('v_cndmask_b32 v14, 0, 1.0, vcc')
    a('s_lshl_b32 s31, s4, 11')
    a('s_lshl_b32 s32, s3, 10')
    a('s_add_u32 s31, s31, s32')
    a('v_add_u32 v15, s31, v1')
    a('s_lshr_b32 s31, s4, 2')
    a('s_lshl_b32 s31, s31, 11')
    a('s_add_u32 s31, s31, s32')
    a('s_and_b32 s32, s4, 3')
    a('s_lshl_b32 s32, s32, 8')
    a('s_add_u32 s31, s31, s32')
    a('s_add_u32 s31, s31, 32768')
    a('v_and_b32 v4, 1, v3')
    a('v_lshlrev_b32 v16, 4, v2')
    a('v_lshl_add_u32 v16, v4, 3, v16')
    a('v_add_u32 v16, s31, v16')
    a('s_lshl_b32 s35, s12, 7')
    a('s_lshl_b32 s31, s4, 3')
    a('s_add_u32 s35, s35, s31')
    a('s_lshl_b32 s31, s3, 2')
    a('s_add_u32 s35, s35, s31')
    a('s_add_u32 s35, s35, 0x%x', XPROG)
    a('v_mov_b32 v17, 0')
    a('s_mov_b32 s13, 0')
    x_dma(a)
    ACC, XR, SA, KO = 20, 76, 92, 76
    if DEV: a('s_waitcnt vmcnt(0)')
    tl(a, 1)
    a.label('rx_loop')
    a('s_waitcnt vmcnt(0)')
    a('s_barrier')
    x_next(a, NSET_X)
    x_dma(a)
    def rd(j):
        for tt in range(2): a('ds_read_b128 %s, v6 offset:%d', V(XR + 8 * (j & 1) + 4 * tt, 4), j * 1024 + tt * KT1)
    rd(0)
    for j in range(14):
        if j + 1 < 14: rd(j + 1)
        a('s_waitcnt lgkmcnt(%d)', 2 if j < 13 else 0)
        for t in range(7):
            for tt in range(2):
                c = ACC + (t * 2 + tt) * 4
                a('v_mfma_f32_16x16x32_bf16 %s, %s, %s, %s', V(c, 4), W(t, j), V(XR + 8 * (j & 1) + 4 * tt, 4), V(c, 4) if j else '0')
    a('s_mul_i32 s39, s12, %d', UNIT)
    a('s_add_u32 s39, s39, 0x%x', MEME)
    a('s_add_u32 s32, s39, s15')
    a('s_add_u32 s33, s39, s16')
    def krd(t):
        for ku in range(2): a('ds_read_b64 %s, v7 offset:%d', V(KO + 4 * (t % 4) + 2 * ku, 2), t * 512 + ku * 64)
    for t in range(3): krd(t)
    a('s_nop 2')
    for i in range(14):
        c = ACC + 4 * i
        a('v_cvt_pk_bf16_f32 v%d, v%d, v%d', c, c, c + 1)
        a('v_cvt_pk_bf16_f32 v%d, v%d, v%d', c + 1, c + 2, c + 3)
    a('s_nop 1')
    for t in range(7):
        if t + 3 < 7: krd(t + 3)
        a('s_waitcnt lgkmcnt(%d)', 2 * min(3, 6 - t))
        for ku in range(2):
            for tt in range(2):
                c = SA + (ku * 2 + tt) * 4
                a('v_mfma_f32_16x16x16_bf16 %s, %s, %s, %s', V(c, 4), V(KO + 4 * (t % 4) + 2 * ku, 2), V(ACC + (t * 2 + tt) * 4, 2), V(c, 4) if t else '0')
    a('v_add_u32 v6, s50, v6')
    a('v_add_u32 v7, s50, v7')
    a('s_sub_u32 s50, 0, s50')
    mem_fetch(a, KO, 9, 10)
    for b in range(4): a('ds_write_b128 v11, %s offset:%d', V(SA + 4 * b, 4), 1024 * b)
    a('s_waitcnt lgkmcnt(0)')
    a('s_barrier')
    for t in range(7):
        a('ds_read_b32 v%d, v8 offset:%d', KO + 2 * t, 256 * t)
        a('ds_read_b32 v%d, v8 offset:%d', KO + 2 * t + 1, 256 * t + 32)
    for t in range(7):
        a('s_waitcnt lgkmcnt(%d)', 2 * (6 - t))
        for tt in range(2):
            c = SA + 16 + tt * 4
            a('v_mfma_f32_16x16x16_bf16 %s, %s, %s, %s', V(c, 4), V(KO + 2 * t, 2), V(ACC + (t * 2 + tt) * 4, 2), V(c, 4) if t else '0')
    a('s_nop 7')
    for b in (4, 5): a('ds_write_b128 v11, %s offset:%d', V(SA + 4 * b, 4), 1024 * b)
    a('s_waitcnt lgkmcnt(0)')
    a('s_barrier')
    lsk = a.new('xs')
    a('s_add_u32 s13, s13, 1')
    a('s_cmp_lt_u32 s3, 2')
    a('s_cbranch_scc0 %s', lsk)
    R = 20
    for w in range(4):
        for b in range(3): a('ds_read_b128 %s, v12 offset:%d', V(R + 12 * w + 4 * b, 4), 6144 * w + 2048 * b)
    a('s_mul_i32 s30, s12, %d', PXSEG)
    a('s_add_u32 s30, s30, 0x%x', PX)
    for w in range(1, 4):
        a('s_waitcnt lgkmcnt(%d)', 3 * (3 - w))
        for i in range(6): a('v_pk_add_f32 %s, %s, %s', V(R + 2 * i, 2), V(R + 2 * i, 2), V(R + 12 * w + 2 * i, 2))
    for i in range(8): a('v_cndmask_b32 v%d, v%d, v13, s[%d:%d]', R + i, R + i, 64 + 2 * i, 65 + 2 * i)
    a('v_max3_f32 v4, v%d, v%d, v%d', R, R + 1, R + 2)
    for i in range(3, 11, 2): a('v_max3_f32 v4, v%d, v%d, v4', R + i, R + i + 1)
    a('v_max_f32 v4, v%d, v4', R + 11)
    def xred(op):
        for sw in ('v_permlane32_swap_b32', 'v_permlane16_swap_b32'):
            a('v_mov_b32 v5, v4')
            a('s_nop 1')
            a('%s v4, v5', sw)
            a('%s v4, v4, v5', op)
    xred('v_max_f32')
    for i in range(12): a('v_sub_f32 v%d, v%d, v4', R + i, R + i)
    for i in range(12): a('v_exp_f32 v%d, v%d', R + i, R + i)
    a('v_add_f32 v4, v%d, v%d', R, R + 1)
    for i in range(2, 8): a('v_add_f32 v4, v%d, v4', R + i)
    for i in range(8, 12): a('v_fmac_f32 v4, v%d, v14', R + i)
    xred('v_add_f32')
    a('v_rcp_f32 v4, v4')
    a('s_nop 0')
    for i in range(12): a('v_mul_f32 v%d, v%d, v4', R + i, R + i)
    for d in range(6): a('v_cvt_pk_bf16_f32 v%d, v%d, v%d', 40 + d, R + 2 * d, R + 2 * d + 1)
    a('buffer_store_dwordx4 v[40:43], v15, s[8:11], s30 offen sc1')
    a('buffer_store_dwordx2 v[44:45], v16, s[8:11], s30 offen sc1')
    a('v_mov_b32 v4, s13')
    a('s_waitcnt vmcnt(0)')
    a('buffer_store_dword v4, v17, s[8:11], s35 offen sc1')
    a.label(lsk)
    a('s_add_u32 s12, s12, %d', NSET_X)
    a('s_cmp_lt_u32 s12, 64')
    a('s_cbranch_scc1 rx_loop')
    tl(a, 2)
    a('s_endpgm')

def gen_fin(a):
    a.label('role_fin')
    tl(a, 0)
    a('s_mul_i32 s12, s30, 9363')
    a('s_lshr_b32 s12, s12, 16')
    a('s_mul_i32 s31, s12, 7')
    a('s_sub_u32 s6, s30, s31')
    a('s_load_dwordx2 s[56:57], s[0:1], %d', KA['wd'])
    a('s_load_dwordx2 s[58:59], s[0:1], %d', KA['out'])
    lane_consts(a)
    RS = 144
    a('v_lshrrev_b32 v4, 3, v0')
    a('v_and_b32 v5, 7, v0')
    a('s_movk_i32 s30, 896')
    a('v_mul_u32_u24 v6, s30, v4')
    a('v_lshl_add_u32 v6, v5, 4, v6')
    a('s_movk_i32 s30, %d', RS)
    a('v_mul_u32_u24 v7, s30, v4')
    a('v_lshl_add_u32 v7, v5, 4, v7')
    a('s_mul_i32 s31, s3, %d', 224 * RS)
    a('v_add_u32 v7, s31, v7')
    a('v_lshrrev_b32 v8, 2, v2')
    a('v_lshl_add_u32 v8, v3, 3, v8')
    a('v_mul_u32_u24 v8, s30, v8')
    a('v_and_b32 v4, 3, v0')
    a('v_lshl_add_u32 v8, v4, 3, v8')
    a('v_add_u32 v8, s31, v8')
    a('s_waitcnt lgkmcnt(0)')
    a.srd(16, 56, FBYTES)
    a.srd(20, 58, XBYTES)
    ST = 16
    a('s_mul_i32 s31, s3, %d', 448 * 896)
    a('s_lshl_b32 s32, s6, 7')
    a('s_add_u32 s31, s31, s32')
    for p in range(56):
        a('buffer_load_dwordx4 %s, v6, s[16:19], s31 offen', V(ST + 4 * p, 4))
        if p < 55: a('s_add_u32 s31, s31, %d', 8 * 896)
    for rnd in range(2):
        a('s_waitcnt vmcnt(%d)', 28 if rnd == 0 else 0)
        for p in range(28): a('ds_write_b128 v7, %s offset:%d', V(ST + 4 * (rnd * 28 + p), 4), p * 8 * RS)
        for jj in range(7):
            for t in range(4):
                b = ((rnd * 7 + jj) * 4 + t) * 4
                a('ds_read_b64_tr_b16 %s, v8 offset:%d', A(b, 2), jj * 32 * RS + t * 32)
                a('ds_read_b64_tr_b16 %s, v8 offset:%d', A(b + 2, 2), jj * 32 * RS + t * 32 + 4 * RS)
            a('s_waitcnt lgkmcnt(0)')
    a('s_barrier')
    tl(a, 1)
    a('v_lshlrev_b32 v4, 2, v0')
    a('s_lshl_b32 s31, s6, 4')
    a('s_sub_u32 s31, s31, 56')
    a('v_add_u32 v5, s31, v4')
    a('v_add_u32 v4, %d, v4', HPROG - CNT)
    a('v_cmp_gt_u32 vcc, 14, v0')
    a('s_nop 1')
    a('v_cndmask_b32 v4, v5, v4, vcc')
    a('v_cmp_gt_u32 vcc, 18, v0')
    a('v_mov_b32 v5, %d', HPROG - CNT)
    a('s_nop 0')
    a('v_cndmask_b32 v4, v5, v4, vcc')
    a('v_and_b32 v5, 7, v0')
    a('v_lshlrev_b32 v5, 2, v5')
    a('s_lshl_b32 s31, s3, 5')
    a('s_add_u32 s31, s31, %d', XPROG - CNT)
    a('v_add_u32 v5, s31, v5')
    a('v_and_b32 v6, 3, v0')
    a('v_lshlrev_b32 v6, 4, v6')
    a('s_lshl_b32 s31, s3, 2')
    a('s_lshl_b32 s32, s6, 6')
    a('s_add_u32 s31, s31, s32')
    a('s_add_u32 s31, s31, %d', VPROG - CNT)
    a('v_add_u32 v6, s31, v6')
    a('v_cmp_gt_u32 s[60:61], 8, v2')
    a('v_lshlrev_b32 v8, 2, v2')
    RO = 272
    a('s_lshl_b32 s31, s3, 5')
    a('v_add_u32 v9, s31, v2')
    a('s_movk_i32 s30, %d', RO)
    a('v_mul_u32_u24 v9, s30, v9')
    a('v_lshl_add_u32 v9, v3, 4, v9')
    a('v_lshrrev_b32 v12, 3, v0')
    a('s_lshl_b32 s31, s3, 3')
    a('v_add_u32 v12, s31, v12')
    a('v_mul_u32_u24 v10, s30, v12')
    a('v_and_b32 v13, 7, v0')
    a('v_lshl_add_u32 v10, v13, 5, v10')
    a('s_movk_i32 s30, 896')
    a('v_mul_u32_u24 v11, s30, v12')
    a('v_lshl_add_u32 v11, v13, 4, v11')
    a('s_mov_b32 s50, %d', 128 * RO)
    HF, DF, AB, AA, GR = 16, 128, 192, 224, 14
    a.label('ro_loop')
    a('s_and_b32 s30, s12, 1')
    a('s_lshl_b32 s30, s30, 7')
    a('s_add_u32 s30, s30, 0x%x', CNT)
    a('s_lshr_b32 s31, s12, 1')
    a('s_add_u32 s31, s31, 1')
    a('v_mov_b32 v12, s31')
    poll_ge(a, 4, 's30', 12, 13)
    a('s_mul_i32 s30, s12, %d', VSLOT)
    a('s_mul_i32 s31, s3, 14336')
    a('s_add_u32 s30, s30, s31')
    a('s_add_u32 s30, s30, 0x%x', H1)
    for jj in range(14):
        if jj % 4 == 0:
            a('s_add_u32 s32, s30, %d', jj * 1024)
            a('s_add_u32 s33, s30, %d', jj * 1024 + 57344)
        for tt in range(2):
            a('buffer_load_dwordx4 %s, v1, s[8:11], s%d offen offset:%d sc1', V(HF + (jj * 2 + tt) * 4, 4), 32 + tt, (jj % 4) * 1024)
    a('s_mul_i32 s30, s12, %d', DSEG)
    a('s_lshl_b32 s31, s6, 16')
    a('s_add_u32 s30, s30, s31')
    a('s_lshl_b32 s31, s3, 12')
    a('s_add_u32 s30, s30, s31')
    a('s_add_u32 s30, s30, 0x%x', DD)
    for t in range(4):
        for hh in range(4):
            a('buffer_load_dwordx4 %s, v1, s[8:11], s30 offen offset:%d sc1', V(DF + (t * 4 + hh) * 4, 4), hh * 1024)
        if t < 3: a('s_add_u32 s30, s30, 16384')
    a('s_lshl_b32 s30, s12, 7')
    a('s_add_u32 s30, s30, 0x%x', GG)
    for tt in range(2): a('buffer_load_dword v%d, v8, s[8:11], s30 offen offset:%d sc1', GR + tt, 64 * tt)
    for jj in range(14):
        a('s_waitcnt vmcnt(%d)', 18 + 2 * (13 - jj))
        for tt in range(2):
            for t in range(4):
                c = AB + (t * 2 + tt) * 4
                a('v_mfma_f32_16x16x32_bf16 %s, %s, %s, %s', V(c, 4), A((jj * 4 + t) * 4, 4), V(HF + (jj * 2 + tt) * 4, 4), V(c, 4) if jj else '0')
    a('s_mul_i32 s31, s12, 21846')
    a('s_lshr_b32 s31, s31, 16')
    a('s_mul_i32 s32, s31, 3')
    a('s_sub_u32 s32, s12, s32')
    a('s_lshl_b32 s32, s32, 7')
    a('v_add_u32 v12, s32, v5')
    a('s_and_b32 s32, s12, 1')
    a('s_lshl_b32 s32, s32, 9')
    a('v_add_u32 v13, s32, v6')
    a('v_cndmask_b32 v%d, v13, v12, s[60:61]', HF)
    a('s_add_u32 s31, s31, 1')
    a('s_lshr_b32 s32, s12, 1')
    a('s_add_u32 s32, s32, 1')
    a('v_mov_b32 v12, s31')
    a('v_mov_b32 v13, s32')
    a('v_cndmask_b32 v12, v13, v12, s[60:61]')
    a('s_mov_b32 s30, 0x%x', CNT)
    poll_ge(a, HF, 's30', 12, 13)
    PF, PM, VF = 20, 52, 60
    a('s_mul_i32 s30, s12, %d', PXSEG)
    a('s_add_u32 s30, s30, 0x%x', PX)
    a('s_lshl_b32 s31, s3, 13')
    a('s_add_u32 s31, s31, s30')
    a('s_add_u32 s32, s31, 4096')
    for i in range(8):
        a('buffer_load_dwordx4 %s, v1, s[8:11], s%d offen offset:%d sc1', V(PF + 4 * i, 4), 31 + (i >> 2), (i & 3) * 1024)
    a('s_lshl_b32 s31, s3, 11')
    a('s_add_u32 s31, s31, s30')
    a('s_add_u32 s31, s31, 32768')
    for tt in range(2): a('buffer_load_dwordx4 %s, v1, s[8:11], s31 offen offset:%d sc1', V(PM + 4 * tt, 4), 1024 * tt)
    a('s_mul_i32 s30, s12, %d', VSLOT)
    a('s_lshl_b32 s31, s3, 10')
    a('s_add_u32 s30, s30, s31')
    a('s_lshl_b32 s31, s6, 14')
    a('s_add_u32 s30, s30, s31')
    a('s_add_u32 s30, s30, 0x%x', VE)
    for t in range(4):
        a('buffer_load_dwordx4 %s, v1, s[8:11], s30 offen sc1', V(VF + 4 * t, 4))
        if t < 3: a('s_add_u32 s30, s30, 4096')
    for hh in range(4):
        a('s_waitcnt vmcnt(%d)', 6 + 2 * (3 - hh))
        for tt in range(2):
            for t in range(4):
                c = AA + (t * 2 + tt) * 4
                a('v_mfma_f32_16x16x32_bf16 %s, %s, %s, %s', V(c, 4), V(DF + (t * 4 + hh) * 4, 4), V(PF + (hh * 2 + tt) * 4, 4), V(c, 4) if hh else '0')
    a('s_waitcnt vmcnt(0)')
    for t in range(4):
        for tt in range(2):
            c = AA + (t * 2 + tt) * 4
            a('v_mfma_f32_16x16x32_bf16 %s, %s, %s, %s', V(c, 4), V(VF + 4 * t, 4), V(PM + 4 * tt, 4), V(c, 4))
    a('s_mul_i32 s30, s12, %d', 32 * 896)
    a('s_lshl_b32 s31, s6, 7')
    a('s_add_u32 s30, s30, s31')
    for t in range(4):
        for tt in range(2):
            i = (t * 2 + tt) * 4
            for r in range(4): a('v_sub_f32 v%d, v%d, v%d', AA + i + r, AA + i + r, AB + i + r)
            for r in range(4): a('v_fmac_f32 v%d, v%d, v%d', AB + i + r, GR + tt, AA + i + r)
            a('ds_write_b128 v9, %s offset:%d', V(AB + i, 4), tt * 16 * RO + t * 64)
    a('s_waitcnt lgkmcnt(0)')
    a('s_barrier')
    for w in range(4):
        for hf in range(2): a('ds_read_b128 %s, v10 offset:%d', V(20 + 8 * w + 4 * hf, 4), w * 32 * RO + 16 * hf)
    a('v_add_u32 v9, s50, v9')
    a('v_add_u32 v10, s50, v10')
    a('s_sub_u32 s50, 0, s50')
    for w in range(1, 4):
        a('s_waitcnt lgkmcnt(%d)', 2 * (3 - w))
        for i in range(4): a('v_pk_add_f32 %s, %s, %s', V(20 + 2 * i, 2), V(20 + 2 * i, 2), V(20 + 8 * w + 2 * i, 2))
    for d in range(4): a('v_cvt_pk_bf16_f32 v%d, v%d, v%d', 56 + d, 20 + 2 * d, 21 + 2 * d)
    a('buffer_store_dwordx4 v[56:59], v11, s[20:23], s30 offen')
    a('s_add_u32 s12, s12, %d', NSET_O)
    a('s_cmp_lt_u32 s12, 64')
    a('s_cbranch_scc1 ro_loop')
    if DEV: a('s_waitcnt vmcnt(0)')
    tl(a, 2)
    if DBGT:
        a('s_sub_u32 s82, s82, s92')
        a('v_mov_b32 v4, s82')
        a('v_mov_b32 v5, 32')
        a('buffer_atomic_umax v4, v5, s[44:47], 0 offen')
        for k in (1, 2, 3):
            a('s_sub_u32 s82, s%d, s92', 93 + k)
            a('v_mov_b32 v%d, s82', 6 + k)
            a('buffer_atomic_umax v%d, v5, s[44:47], 0 offen offset:%d', 6 + k, 4 * k)
    a('s_endpgm')
```

```python
import sys
from common import *
import fold, team, workers

HEADER = open('cdna_kernels/%s.s.ref' % NAME).read().split('; Override launch geometry')[0]
MAIN_LDS = team.TEAM_LDS

def kd(name, vgpr, acc, sgpr):
    return '''.p2align 6
.amdhsa_kernel %s
  .amdhsa_next_free_vgpr %d
  .amdhsa_next_free_sgpr %d
  .amdhsa_accum_offset %d
  .amdhsa_group_segment_fixed_size 0
  .amdhsa_kernarg_size 120
  .amdhsa_user_sgpr_count 2
  .amdhsa_user_sgpr_kernarg_segment_ptr 1
  .amdhsa_system_sgpr_workgroup_id_x 1
.end_amdhsa_kernel
''' % (name, vgpr, sgpr, acc)

def build(mask, dev=False, aslist=False):
    a = Asm()
    workers.DEV = fold.DEV = bool(dev)
    fold.NOWARM = bool(dev) and 'nowarm' in dev
    workers.DBGT = fold.DBGT = bool(dev) and 'dbgt' in dev
    nm = NAME + '_kernel'
    a.l.append('.globl %s\n.p2align 8\n.type %s,@function' % (nm, nm))
    a.label(nm)
    a('s_cmp_ge_u32 s2, 256')
    a('s_cbranch_scc1 quit')
    if dev: a('s_memrealtime s[92:93]')
    a('s_load_dwordx8 s[64:71], s[0:1], 0')
    a('s_load_dwordx4 s[72:75], s[0:1], 32')
    a('s_load_dwordx2 s[76:77], s[0:1], %d', KA['gw'])
    a('s_load_dwordx4 s[52:55], s[0:1], %d', KA['dbg'])
    a('v_lshrrev_b32 v1, 6, v0')
    a('v_and_b32 v0, 63, v0')
    a('v_readfirstlane_b32 s3, v1')
    a('s_waitcnt lgkmcnt(0)')
    a.srd(8, 54, team.OOB)
    a.srd(44, 52, 256)
    a.srd(12, 72, WBYTES)
    a.srd(16, 74, WBYTES)
    a.srd(36, 68, WBYTES)
    a.srd(56, 70, WBYTES)
    a.srd(20, 64, XBYTES)
    a.srd(24, 76, 896)
    a.srd(40, 66, 7168)
    fold.tl(a, 0)
    a('s_and_b32 s31, s2, 7')
    a('s_lshr_b32 s53, s2, 3')
    a('s_cmp_eq_u32 s31, 0')
    a('s_cbranch_scc1 die0')
    a('s_sub_u32 s31, s31, 1')
    a('s_lshl_b32 s31, s31, 5')
    a('s_add_u32 s53, s53, s31')
    fold.gen_fold(a)
    a('s_mov_b32 s30, s53')
    for bit, n, lab in ((2, 56, 'role_d'), (4, 48, 'role_xs'), (8, 28, 'role_f1'), (16, 91, 'role_fin')):
        a('s_cmp_lt_u32 s30, %d', n)
        a('s_cbranch_scc1 %s', lab if mask & bit else 'quit')
        a('s_sub_u32 s30, s30, %d', n)
        if lab == 'role_d':
            fold.wait_all(a, FLG_M, 256)
            if not (dev and 'nogate' in dev): fold.wait_started(a)
    a.label('quit')
    a('s_endpgm')
    a.label('die0')
    l = a.new('nj')
    a('s_cmp_eq_u32 s53, 31')
    a('s_cbranch_scc0 %s', l)
    fold.janitor(a)
    a.label(l)
    fold.misc_loads(a)
    fold.unit_fill(a)
    a('s_waitcnt vmcnt(0)')
    fold.misc_rest(a)
    fold.wait_janitor(a)
    a('s_add_u32 s34, s53, 224')
    fold.set_flag(a, FLG_M, 's34')
    a('s_mov_b32 s30, s53')
    team.gen_team(a, dev)
    workers.gen_d(a, vtail=bool(mask & 16))
    workers.gen_xs(a)
    workers.gen_f1(a)
    workers.gen_fin(a)
    s = HEADER
    if aslist: s += '; @launch kernel=%s grid=(256,1,1) block=(256,1,1) lds=%d\n' % (nm, MAIN_LDS)
    else: s += '; @launch grid=(256,1,1) block=(256,1,1) lds=%d\n' % MAIN_LDS
    s += '.amdgcn_target "amdgcn-amd-amdhsa--gfx950"\n.text\n' + a.text()
    s += '.section .rodata,"a"\n' + kd(nm, 512, 256, 100)
    return s

if __name__ == '__main__':
    out = sys.argv[1]
    dev = sys.argv[3] if len(sys.argv) > 3 else False
    open(out, 'w').write(build(int(sys.argv[2]), dev, aslist='/bench/' in out and 'dbgt' not in (dev or '')))
```

```python
NAME = 'gated_mix__memory_aug_recurrent_mem_tr__swiglu_ffn__prompt'
DM, H, S, SEG, M, F, NSEG = 448, 16, 2048, 32, 8, 1792, 64
WS_BYTES = 0x10000000
WF_A = 0x0000000
WF_C = 0x0620000
XF = 0x0C40000
XSEG = 28672
GG = 0x0E10000
U0 = 0x0E20000
UNIT = 7168
MEMX = U0 + 74 * UNIT
PR = U0 + 4 * UNIT
PSLOT = 10240
VSLOT = 114688
MEME = U0 + 10 * UNIT
NUNITS = 138
CNT = 0x0F80000
VE = 0x1000000
H1 = 0x1700000
PX = 0x1E00000
PXSEG = 40960
DD = 0x2100000
DSEG = 458752
DPROG = CNT + 0
HPROG = CNT + 256
XPROG = CNT + 512
VPROG = CNT + 1024
FLG_M = CNT + 2048
FLG_A = CNT + 3072
HZ = CNT + 3968
FLG_C = CNT + 4096
GO = CNT + 4992
STAT = CNT + 5120
KA = dict(x=0, mem0=8, Wq=16, Wk=24, Wv=32, Wo=40, seg=48, bx=56, wg=64, wu=72, wd=80, gw=88, out=96, dbg=104, ws=112)
WBYTES = 448 * 8192
FBYTES = 448 * 1792 * 2
XBYTES = 2048 * 896
LOG2E = 1.4426950408889634

import struct
def fbits(x): return struct.unpack('<I', struct.pack('<f', x))[0]

class Asm:
    def __init__(self): self.l = []; self.uid = 0
    def __call__(self, s, *a):
        if a: s = s % a
        for line in s.split('\n'): self.l.append('    ' + line.strip())
    def label(self, s): self.l.append(s + ':')
    def c(self, s): self.l.append('    ; ' + s)
    def new(self, p='L'):
        self.uid += 1
        return '%s_%d' % (p, self.uid)
    def text(self): return '\n'.join(self.l) + '\n'
    def srd(self, d, b, size):
        self('s_mov_b32 s%d, s%d', d, b)
        self('s_mov_b32 s%d, s%d', d + 1, b + 1)
        self('s_mov_b32 s%d, 0x%x', d + 2, size)
        self('s_mov_b32 s%d, 0x20000', d + 3)

def V(b, n=1): return 'v%d' % b if n == 1 else 'v[%d:%d]' % (b, b + n - 1)
def A(b, n=1): return 'a%d' % b if n == 1 else 'a[%d:%d]' % (b, b + n - 1)
def SR(b, n=1): return 's%d' % b if n == 1 else 's[%d:%d]' % (b, b + n - 1)
```

```python
from common import *
SPIN = 400000
DEV = False
DBGT = False
NOWARM = False
LATEFLAG = False
LA, LB, LG = 0, 32768, 147456

def tl(a, k, base=0x3F20000):
    if DEV:
        a('s_memrealtime s[82:83]')
        a('s_waitcnt lgkmcnt(0)')
        a('s_lshl_b32 s84, s2, 4')
        a('s_add_u32 s84, s84, 0x%x', base)
        a('v_mov_b32 v250, s82')
        a('buffer_store_dword v250, off, s[8:11], s84 offset:%d', 4 * k)
        if DBGT and k:
            a('s_mov_b32 s%d, s82', 93 + k)

def wait_words(a, voff, soff, width, wave0_only=True, R=244):
    lp, ok = a.new('ww'), a.new('wk')
    if wave0_only:
        a('s_cmp_eq_u32 s3, 0')
        a('s_cbranch_scc0 %s', ok)
    a('s_mov_b32 s14, 0')
    a.label(lp)
    srd = 's[44:47]' if soff is None else 's[8:11]'
    if width == 4:
        a('buffer_load_dwordx4 %s, %s, %s, %s offen sc1', V(R, 4), voff, srd, soff or '0')
        a('s_waitcnt vmcnt(0)')
        a('v_min3_u32 v%d, v%d, v%d, v%d', R, R, R + 1, R + 2)
        a('v_min_u32 v%d, v%d, v%d', R, R, R + 3)
    else:
        a('buffer_load_dword v%d, %s, %s, %s offen sc1', R, voff, srd, soff or '0')
        a('s_waitcnt vmcnt(0)')
    a('v_cmp_eq_u32 vcc, 0, v%d', R)
    a('s_cbranch_vccz %s', ok)
    a('s_sleep 3')
    a('s_add_u32 s14, s14, 1')
    a('s_cmp_lt_u32 s14, %d', SPIN)
    a('s_cbranch_scc1 %s', lp)
    a('s_endpgm')
    a.label(ok)
    if wave0_only: a('s_barrier')

def wait_all(a, base, n, R=244):
    a('v_min_u32 v%d, %d, v0', R - 1, n // 4 - 1)
    a('v_lshlrev_b32 v%d, 4, v%d', R - 1, R - 1)
    a('s_mov_b32 s31, 0x%x', base)
    wait_words(a, 'v%d' % (R - 1), 's31', 4, R=R)

def wait_head(a, base, hreg):
    a('v_min_u32 v243, 13, v0')
    a('v_lshlrev_b32 v243, 2, v243')
    a('s_mul_i32 s31, %s, 56', hreg)
    a('s_add_u32 s31, s31, 0x%x', base)
    wait_words(a, 'v243', 's31', 1)

def set_flag(a, base, idx, younger=0):
    a('s_waitcnt vmcnt(%d)', younger)
    a('s_barrier')
    l = a.new('sf')
    a('s_cmp_eq_u32 s3, 0')
    a('s_cbranch_scc0 %s', l)
    a('s_lshl_b32 s31, %s, 2', idx)
    a('s_add_u32 s31, s31, 0x%x', base)
    a('v_mov_b32 v244, 1')
    a('buffer_store_dword v244, off, s[8:11], s31 sc1')
    a.label(l)

def misc_loads(a):
    a('s_lshl_b32 s31, s3, 6')
    a('v_add_u32 v240, s31, v0')
    a('s_movk_i32 s31, 1171')
    for r in range(2):
        t = 224 + 2 * r
        if r: a('v_add_u32 v241, 256, v240')
        src = 241 if r else 240
        a('v_mul_u32_u24 v%d, s31, v%d', t, src)
        a('v_lshrrev_b32 v%d, 16, v%d', t, t)
        a('v_mul_u32_u24 v%d, 56, v%d', t + 1, t)
        a('v_sub_u32 v%d, v%d, v%d', t + 1, src, t + 1)
    a('v_lshlrev_b32 v228, 4, v240')
    a('v_cmp_gt_u32 vcc, 192, v240')
    a('v_add_u32 v229, 4096, v228')
    a('v_mov_b32 v230, 0x7000000')
    a('v_cndmask_b32 v229, v230, v229, vcc')
    a('s_mul_i32 s30, s2, 7168')
    a('buffer_load_dwordx4 v[208:211], v228, s[20:23], s30 offen')
    a('buffer_load_dwordx4 v[212:215], v229, s[20:23], s30 offen')
    a('v_lshlrev_b32 v230, 4, v225')
    a('v_lshlrev_b32 v231, 4, v227')
    a('buffer_load_dwordx4 v[216:219], v230, s[24:27], 0 offen')
    a('buffer_load_dwordx4 v[220:223], v231, s[24:27], 0 offen')
    return 4

def misc_rest(a):
    a('s_and_b32 s30, s2, 3')
    a('s_lshl_b32 s30, s30, 3')
    a('s_movk_i32 s31, 14336')
    a('s_lshr_b32 s32, s2, 2')
    a('s_mul_i32 s32, s32, %d', XSEG)
    a('s_add_u32 s32, s32, 0x%x', XF)
    a('v_cmp_gt_u32 vcc, 192, v240')
    for r in range(2):
        t = 224 + 2 * r
        a('v_add_u32 v232, s30, v%d', t)
        a('v_lshrrev_b32 v233, 4, v232')
        a('v_mul_u32_u24 v233, s31, v233')
        a('v_and_b32 v232, 15, v232')
        a('v_lshl_add_u32 v233, v232, 4, v233')
        a('v_lshl_add_u32 v233, v%d, 8, v233', t + 1)
        if r:
            a('v_mov_b32 v232, 0x8000000')
            a('v_cndmask_b32 v233, v232, v233, vcc')
        a('buffer_store_dwordx4 %s, v233, s[8:11], s32 offen sc1', V(208 + 4 * r, 4))
        a('v_mov_b32 v%d, 0', 234 + r)
        for d in range(4): a('v_dot2_f32_bf16 v%d, v%d, v%d, v%d', 234 + r, 208 + 4 * r + d, 216 + 4 * r + d, 234 + r)
    a('v_lshlrev_b32 v232, 2, v240')
    a('v_add_u32 v232, %d, v232', LG)
    a('s_nop 1')
    a('ds_write_b32 v232, v234')
    a('ds_write_b32 v232, v235 offset:1024')
    a('s_waitcnt lgkmcnt(0)')
    a('s_barrier')
    lg = a.new('ng')
    a('s_cmp_eq_u32 s3, 3')
    a('s_cbranch_scc0 %s', lg)
    a('v_mul_u32_u24 v232, 28, v0')
    a('v_add_u32 v232, %d, v232', LG)
    for i in range(7): a('ds_read_b32 v%d, v232 offset:%d', 233 + i, 4 * i)
    a('s_waitcnt lgkmcnt(0)')
    for i in range(1, 7): a('v_add_f32 v233, v233, v%d', 233 + i)
    for ctl in ('quad_perm:[1,0,3,2]', 'quad_perm:[2,3,0,1]', 'row_half_mirror'):
        a('s_nop 1')
        a('v_add_f32_dpp v233, v233, v233 %s row_mask:0xf bank_mask:0xf', ctl)
    a('v_mul_f32 v233, 0x%x, v233', fbits(-LOG2E))
    a('v_exp_f32 v233, v233')
    a('s_nop 0')
    a('v_add_f32 v233, 1.0, v233')
    a('v_rcp_f32 v233, v233')
    a('v_lshrrev_b32 v232, 3, v0')
    a('v_lshlrev_b32 v232, 2, v232')
    a('s_lshl_b32 s30, s2, 5')
    a('s_add_u32 s30, s30, 0x%x', GG)
    a('buffer_store_dword v233, v232, s[8:11], s30 offen sc1')
    a.label(lg)

def unit_fill(a):
    a('v_cmp_gt_u32 vcc, 192, v240')
    a('v_mov_b32 v229, 0x8000000')
    a('v_add_u32 v232, 4096, v228')
    a('v_cndmask_b32 v229, v229, v232, vcc')
    for r in range(8): a('v_mov_b32 v%d, -1', 200 + r)
    a('s_mul_i32 s30, s53, 7168')
    a('s_add_u32 s30, s30, 0x%x', U0)
    for k in (1, 3, 4):
        a('s_add_u32 s31, s30, %d', 32 * k * UNIT)
        if k == 4:
            a('s_cmp_lt_u32 s53, %d', NUNITS - 128)
            a('s_cselect_b32 s31, s31, 0x8000000')
        a('buffer_store_dwordx4 v[200:203], v228, s[8:11], s31 offen sc1')
        a('buffer_store_dwordx4 v[204:207], v229, s[8:11], s31 offen sc1')
    lm0, lst = a.new('m0'), a.new('fs')
    a('s_cmp_eq_u32 s53, 10')
    a('s_cbranch_scc0 %s', lst)
    a.label(lm0)
    a('v_bfe_u32 v232, v0, 2, 2')
    a('v_and_b32 v233, 1, v0')
    a('v_lshl_add_u32 v232, v232, 1, v233')
    a('s_movk_i32 s31, 896')
    a('v_mul_u32_u24 v232, s31, v232')
    a('v_lshrrev_b32 v233, 4, v240')
    a('v_lshl_add_u32 v232, v233, 5, v232')
    a('v_bfe_u32 v233, v0, 1, 1')
    a('v_lshl_add_u32 v232, v233, 2, v232')
    for r in range(2):
        for q in range(4): a('buffer_load_dword v%d, v232, s[40:43], 0 offen offset:%d', 200 + 4 * r + q, 8 * q + 512 * r)
    a('s_waitcnt vmcnt(0)')
    for r in range(8): a('v_min_u32 v%d, -2, v%d', 200 + r, 200 + r)
    a.label(lst)
    a('s_add_u32 s31, s30, %d', 64 * UNIT)
    for sr in (30, 31):
        a('buffer_store_dwordx4 v[200:203], v228, s[8:11], s%d offen sc1', sr)
        a('buffer_store_dwordx4 v[204:207], v229, s[8:11], s%d offen sc1', sr)

def wait_janitor(a):
    a('v_mov_b32 v243, 252')
    lp = a.new('wj')
    a('s_cmp_eq_u32 s3, 0')
    a('s_cbranch_scc0 %s', lp)
    wait_words(a, 'v243', None, 1, wave0_only=False)
    a.label(lp)

def janitor(a):
    for r in range(4): a('v_mov_b32 v%d, 0', 244 + r)
    a('v_lshlrev_b32 v243, 4, v0')
    a('s_mov_b32 s31, 0x%x', CNT)
    l = a.new('jn')
    a('s_cmp_eq_u32 s3, 0')
    a('s_cbranch_scc0 %s', l)
    for i in range(4): a('buffer_store_dwordx4 v[244:247], v243, s[8:11], s31 offen offset:%d sc1', 1024 * i)
    a('s_waitcnt vmcnt(0)')
    a('v_mov_b32 v244, 1')
    a('buffer_store_dword v244, off, s[44:47], 0 offset:252 sc1')
    a.label(l)

def gen_fold(a):
    a('s_mul_i32 s4, s53, 4682')
    a('s_lshr_b32 s4, s4, 16')
    a('s_mul_i32 s31, s4, 14')
    a('s_sub_u32 s31, s53, s31')
    a('s_and_b32 s6, s31, 1')
    a('s_lshr_b32 s7, s31, 1')
    a('v_and_b32 v2, 15, v0')
    a('v_lshrrev_b32 v3, 4, v0')
    a('v_lshlrev_b32 v1, 4, v0')
    a('v_lshrrev_b32 v4, 5, v0')
    a('v_and_b32 v5, 31, v0')
    a('v_xor_b32 v5, v5, v4')
    a('s_and_b32 s31, s3, 1')
    a('s_lshl_b32 s30, s31, 3')
    a('v_xor_b32 v5, s30, v5')
    a('v_lshlrev_b32 v5, 4, v5')
    a('v_lshl_add_u32 v4, v4, 13, v5')
    a('s_lshl_b32 s28, s7, 2')
    a('s_add_u32 s28, s28, s3')
    a('s_lshl_b32 s28, s28, 17')
    a('s_lshl_b32 s29, s4, 9')
    a('s_add_u32 s28, s28, s29')
    a('s_lshl_b32 s48, s3, 13')
    def aside(srd):
        for ii in range(8):
            a('v_xor_b32 v5, %d, v4', ((2 * (ii & 1)) ^ (4 * (ii >> 2))) << 4)
            a('s_add_u32 m0, s48, %d', LA + 1024 * ii)
            a('s_add_u32 s33, s28, %d', 2 * ii * 8192)
            a('buffer_load_dwordx4 v5, %s, s33 offen lds', srd)
    a('s_movk_i32 s31, 2341')
    a('s_movk_i32 s49, 896')
    for z in range(7):
        a('v_add_u32 v5, %d, v0', 64 * z)
        a('v_mul_u32_u24 v6, s31, v5')
        a('v_lshrrev_b32 v6, 16, v6')
        a('v_mul_u32_u24 v7, 28, v6')
        a('v_sub_u32 v7, v5, v7')
        a('v_mul_u32_u24 v6, s49, v6')
        a('v_lshl_add_u32 v%d, v7, 4, v6', 8 + z)
    a('s_mul_i32 s30, s4, 229376')
    a('s_mul_i32 s31, s3, 64*896')
    a('s_add_u32 s30, s30, s31')
    a('s_mul_i32 s31, s6, 448')
    a('s_add_u32 s30, s30, s31')
    a('s_mul_i32 s49, s3, 28672')
    a('s_add_u32 s49, s49, %d', LB)
    for grp in range(4):
        a('s_add_u32 s31, s7, %d', grp)
        a('s_and_b32 s31, s31, 3')
        a('s_mul_i32 s32, s31, 14336')
        a('s_add_u32 s32, s32, s30')
        a('s_mul_i32 s31, s31, 7168')
        a('s_add_u32 s31, s31, s49')
        for z in range(7):
            a('s_add_u32 m0, s31, %d', z * 1024)
            a('s_nop 0')
            a('buffer_load_dwordx4 v%d, s[16:19], s32 offen lds', 8 + z)
        if grp == 0:
            aside('s[12:15]')
            a('s_mov_b32 s34, s30')
            misc_loads(a)
            a('s_mov_b32 s30, s34')
    a('s_mul_i32 s50, s6, 224')
    a('s_mul_i32 s31, s3, 56')
    a('s_add_u32 s50, s50, s31')
    a('s_lshl_b32 s50, s50, 13')
    a('s_add_u32 s50, s50, s29')
    a('s_lshr_b32 s51, s3, 1')
    a('s_and_b32 s52, s3, 1')
    a('v_xor_b32 v6, v3, v2')
    a('v_lshlrev_b32 v6, 4, v6')
    a('v_lshrrev_b32 v7, 2, v2')
    a('v_lshlrev_b32 v7, 3, v7')
    a('v_and_b32 v8, 3, v0')
    a('v_add_u32 v7, v7, v8')
    a('v_lshl_add_u32 v7, v7, 9, v6')
    a('s_lshl_b32 s30, s51, 14')
    a('v_add_u32 v7, s30, v7')
    a('v_lshl_add_u32 v9, v2, 9, v6')
    a('s_mul_i32 s30, s52, 57344')
    a('s_add_u32 s30, s30, %d', LB)
    a('v_add_u32 v9, s30, v9')
    a('v_lshrrev_b32 v10, 2, v2')
    a('v_lshl_add_u32 v10, v3, 3, v10')
    a('s_movk_i32 s30, 448')
    a('v_mul_u32_u24 v10, s30, v10')
    a('v_lshl_add_u32 v10, v8, 3, v10')
    a('s_mul_i32 s30, s52, 224')
    a('s_add_u32 s30, s30, %d', LB)
    a('v_add_u32 v10, s30, v10')
    a('s_waitcnt vmcnt(21)')
    misc_rest(a)
    wait_janitor(a)
    a('s_waitcnt vmcnt(0)')
    a('s_barrier')
    tl(a, 2)
    a('v_bfe_u32 v5, v0, 2, 3')
    a('v_lshlrev_b32 v5, 13, v5')
    a('v_and_b32 v6, 3, v0')
    a('v_lshl_add_u32 v5, v6, 7, v5')
    a('s_lshl_b32 s30, s6, 16')
    a('s_add_u32 s30, s30, s28')
    a('s_lshl_b32 s31, s7, 16')
    a('s_add_u32 s31, s31, s50')
    if not NOWARM:
        a('buffer_load_dword v13, v5, s[36:39], s30 offen')
        a('buffer_load_dword v14, v5, s[56:59], s31 offen')
    ACC, AF, BF = 48, 104, 120
    def gemm(mat):
        seq = [(es, t) for es in range(8) for t in range(7)]
        def rdA(es):
            a('v_xor_b32 v11, %d, v7', es << 6)
            for u in range(2): a('ds_read_b128 %s, v11 offset:%d', V(AF + 8 * (es & 1) + 4 * u, 4), LA + 2048 * u)
        def rdB(i):
            es, t = seq[i]
            b = BF + 4 * (i % 4)
            if t == 0:
                if mat == 0: a('v_xor_b32 v12, %d, v9', es << 6)
                else: a('v_add_u32 v12, %d, v10', es * 14336)
            if mat == 0: a('ds_read_b128 %s, v12 offset:%d', V(b, 4), t * 8192)
            else:
                a('ds_read_b64_tr_b16 %s, v12 offset:%d', V(b, 2), t * 32)
                a('ds_read_b64_tr_b16 %s, v12 offset:%d', V(b + 2, 2), t * 32 + 1792)
        per = 2 if mat else 1
        rdA(0)
        issued = []
        for i in range(3): rdB(i); issued.append(per)
        for i, (es, t) in enumerate(seq):
            n = 0
            if t == 1 and es < 7: rdA(es + 1); n += 2
            if i + 3 < len(seq): rdB(i + 3); n += per
            issued.append(n)
            a('s_waitcnt lgkmcnt(%d)', sum(issued[i + 1:]))
            for u in range(2):
                c = ACC + (t * 2 + u) * 4
                a('v_mfma_f32_16x16x32_bf16 %s, %s, %s, %s', V(c, 4), V(AF + 8 * (es & 1) + 4 * u, 4), V(BF + 4 * (i % 4), 4), V(c, 4) if es else '0')
    def store(mat):
        a('s_mul_i32 s30, s4, 28')
        a('s_mul_i32 s31, s6, 14')
        a('s_add_u32 s30, s30, s31')
        a('s_mul_i32 s31, s52, 7')
        a('s_add_u32 s30, s30, s31')
        a('s_mul_i32 s30, s30, 14')
        a('s_lshl_b32 s31, s7, 1')
        a('s_add_u32 s30, s30, s31')
        a('s_add_u32 s30, s30, s51')
        a('s_lshl_b32 s30, s30, 10')
        if mat: a('s_add_u32 s30, s30, 0x%x', WF_C)
        a('s_mov_b32 s31, 0x%x', fbits(LOG2E / 16.0))
        for t in range(7):
            c = ACC + t * 8
            if mat == 0:
                for r in range(8): a('v_mul_f32 v%d, s31, v%d', c + r, c + r)
            o = 136 + 4 * t
            for d in range(4): a('v_cvt_pk_bf16_f32 v%d, v%d, v%d', o + d, c + 2 * d, c + 2 * d + 1)
            a('buffer_store_dwordx4 %s, v1, s[8:11], s30 offen sc1', V(o, 4))
            if t < 6: a('s_add_u32 s30, s30, 14336')
    gemm(1)
    a('s_barrier')
    store(1)
    set_flag(a, FLG_M, 's53')
    tl(a, 3)
    for q in range(7):
        a('s_add_u32 s31, s7, %d', q)
        a('s_cmp_ge_u32 s31, 7')
        a('s_cselect_b32 s32, 7, 0')
        a('s_sub_u32 s31, s31, s32')
        a('s_lshl_b32 s32, s31, 16')
        a('s_add_u32 s32, s32, s50')
        a('s_and_b32 s30, s31, 1')
        a('s_lshl_b32 s30, s30, 7')
        a('v_xor_b32 v6, s30, v4')
        a('s_lshl_b32 s31, s31, 12')
        a('s_add_u32 s31, s31, s49')
        for i in range(4):
            a('v_xor_b32 v5, %d, v6', (2 * i) << 4)
            a('s_add_u32 m0, s31, %d', 1024 * i)
            a('s_nop 0')
            a('buffer_load_dwordx4 v5, s[56:59], s32 offen lds')
            if i < 3: a('s_add_u32 s32, s32, 16384')
        if q == 0: aside('s[36:39]')
    a('s_waitcnt vmcnt(0)')
    a('s_barrier')
    gemm(0)
    store(0)
    set_flag(a, FLG_A, 's53')
    tl(a, 1)

def wait_started(a):
    lp, ok = a.new('ws'), a.new('wo')
    a('s_cmp_eq_u32 s3, 0')
    a('s_cbranch_scc0 %s', ok)
    a('s_mov_b32 s14, 0')
    a('s_mov_b32 s31, 0x%x', MEME + UNIT)
    a.label(lp)
    a('buffer_load_dword v244, off, s[8:11], s31 sc1')
    a('s_waitcnt vmcnt(0)')
    a('v_cmp_eq_u32 vcc, -1, v244')
    a('s_cbranch_vccz %s', ok)
    a('s_sleep 8')
    a('s_add_u32 s14, s14, 1')
    a('s_cmp_lt_u32 s14, %d', SPIN)
    a('s_cbranch_scc1 %s', lp)
    a('s_endpgm')
    a.label(ok)
    a('s_barrier')

def wait_wave_heads(a):
    a('v_min_u32 v243, 55, v0')
    a('v_lshlrev_b32 v243, 2, v243')
    a('s_mul_i32 s31, s3, 224')
    a('s_add_u32 s31, s31, 0x%x', FLG_M)
    wait_words(a, 'v243', 's31', 1, wave0_only=False)
```

```python
from common import *
import fold

L_MEM = 0
L_T = 7680
L_S = L_T + 8192
L_X = L_S + 12288
L_C = 7680
L_V = L_C + 4096
L_D = 32768
L_W = 98304
TEAM_LDS = L_W + 57344
SPIN = 200000
OOB = 0x8000000
NTEAM = 32

ORD_S = ([(0, 0), (1, 0), (0, 1), (1, 1), (2, 0), (3, 0), (2, 1), (3, 1), (4, 0), (5, 0), (6, 0), (4, 1), (5, 1), (6, 1)]
         + [(t, 2) for t in range(7)] + [(t, l) for t in range(7) for l in range(3, 7)])
ORD_C = [(t, l) for l in range(7) for t in range(8)]
CSPILL = [80, 88, 96, 104, 112, 52, 60]
def Wreg(i, n=8, off=0):
    if i >= 49: return V(CSPILL[i - 49] + off, n)
    return A(8 * i + off, n) if i < 32 else V(120 + 8 * (i - 32) + off, n)

def gen_team(a, dev=False):
    dev = set(dev.split('+')) if dev else set()
    def stamp(k):
        if 'st%d' % k in dev or 'stall' in dev: a('s_memtime s[%d:%d]', 64 + 2 * k, 65 + 2 * k)
    def bits(dst, spec, first=True):
        for pos, w, sh in spec:
            a('v_bfe_u32 v3, v0, %d, %d', pos, w)
            if first: a('v_lshlrev_b32 v%d, %d, v3', dst, sh); first = False
            else: a('v_lshl_add_u32 v%d, v3, %d, v%d', dst, sh, dst)
    def spin(lp):
        a('s_add_u32 s14, s14, 1')
        a('s_cmp_lt_u32 s14, %d', SPIN)
        a('s_cbranch_scc1 %s', lp)
        a('s_endpgm')
    def xdma():
        a('s_mov_b32 m0, s36')
        a('s_add_u32 s30, s34, 4096')
        for i in range(4): a('buffer_load_dwordx4 v1, s[8:11], s34 offen offset:%d sc1 lds', 1024 * i)
        a('s_add_u32 m0, s36, 4096')
        a('s_add_u32 s34, s34, %d', XSEG)
        for i in range(3): a('buffer_load_dwordx4 v1, s[8:11], s30 offen offset:%d sc1 lds', 1024 * i)
    def ddma(src0, src1):
        r = [['buffer_load_dwordx4 v1, s[8:11], %s offen offset:%d sc1 lds' % (src0, 1024 * i)] for i in range(4)]
        r[3].append('s_add_u32 m0, s37, 16384')
        r += [['buffer_load_dwordx4 v1, s[8:11], %s offen offset:%d sc1 lds' % (src1, 1024 * i)] for i in range(4)]
        return r
    def fcheck(src, tmp, seg):
        a('v_readfirstlane_b32 s29, v%d', src)
        a('s_cmp_le_u32 s29, %s', seg)
    def dwait(seg):
        lp, ok = a.new('dw'), a.new('dk')
        a('s_mov_b32 s14, 0')
        a.label(lp)
        a('buffer_load_dword v18, off, s[8:11], s49 sc1')
        a('s_waitcnt vmcnt(0)')
        fcheck(18, 3, seg)
        a('s_cbranch_scc0 %s', ok)
        a('s_sleep 1')
        spin(lp)
        a.label(ok)
    def xcc_gather():
        lp, l2 = a.new('xc'), a.new('xo')
        a('v_min_u32 v20, %d, v0', NTEAM - 1)
        a('v_lshlrev_b32 v20, 2, v20')
        a('s_mov_b32 s14, 0')
        a.label(lp)
        a('buffer_load_dword v3, v20, s[44:47], 0 offen sc1')
        a('s_waitcnt vmcnt(0)')
        a('v_cmp_eq_u32 vcc, 0, v3')
        a('s_cbranch_vccz %s', l2)
        spin(lp)
        a.label(l2)
    def frag_offsets():
        a('s_lshl_b32 s33, s3, 1')
        for lam in range(7):
            a('s_lshl_b32 s%d, s33, 10', 15 + lam)
            if lam < 6:
                a('s_add_u32 s33, s33, 1')
                a('s_cmp_ge_u32 s33, 7')
                a('s_cselect_b32 s32, 7, 0')
                a('s_sub_u32 s33, s33, s32')
    def wload(order, tile_off):
        n = 0
        for i in list(range(49, len(order))) + list(range(49)):
            t, lam = order[i]
            a('s_lshl_b32 s31, s%d, 1', 15 + lam)
            a('s_add_u32 s31, s31, s30')
            if tile_off(t): a('s_add_u32 s31, s31, %d', tile_off(t))
            if i >= 49:
                a('s_add_u32 m0, s29, %d', 2048 * (i - 49))
                a('s_nop 0')
                a('buffer_load_dwordx4 v1, s[8:11], s31 offen sc1 lds')
                a('buffer_load_dwordx4 v1, s[8:11], s31 offen offset:1024 sc1 lds')
            else:
                a('buffer_load_dwordx4 %s, v1, s[8:11], s31 offen sc1', Wreg(i, 4, 0))
                a('buffer_load_dwordx4 %s, v1, s[8:11], s31 offen offset:1024 sc1', Wreg(i, 4, 4))
            n += 2
            if n >= 48 and n % 8 == 0: a('s_waitcnt vmcnt(40)')

    a.label('team')
    if dev: a('s_memrealtime s[90:91]')
    a('s_and_b32 s4, s30, 15')
    a('s_lshr_b32 s5, s30, 4')
    a('s_getreg_b32 s31, hwreg(HW_REG_XCC_ID)')
    a('s_and_b32 s31, s31, 15')
    a('s_add_u32 s31, s31, 1')
    a('v_mov_b32 v3, s31')
    a('s_lshl_b32 s32, s30, 2')
    a('buffer_store_dword v3, off, s[44:47], s32 sc1')
    a('v_lshlrev_b32 v1, 4, v0')
    frag_offsets()
    a('s_cmp_ge_u32 s30, 30')
    a('s_cbranch_scc1 export')
    for r in range(4, 16): a('v_mov_b32 v%d, 0', r)
    a('v_and_b32 v3, 2, v0')
    a('v_cmp_eq_u32 s[58:59], 0, v3')
    a('v_mov_b32 v2, 0xeeee')
    a('v_mov_b32 v18, 0x4444')
    a('v_cndmask_b32 v2, v2, v18, s[58:59]')
    a('v_add_u32 v16, s15, v1')
    a('v_add_u32 v17, s16, v1')
    a('s_mov_b32 s49, 0x%x', HZ)
    a('v_cmp_gt_u32 s[62:63], 56, v0')
    lv, lj = a.new('iv'), a.new('ij')
    a('s_cmp_eq_u32 s5, 1')
    a('s_cbranch_scc1 %s', lv)
    fold.wait_all(a, FLG_M, 256)
    fold.wait_head(a, FLG_A, 's4')
    a('s_mul_i32 s30, s4, 28')
    a('s_mul_i32 s32, s3, 7')
    a('s_add_u32 s30, s30, s32')
    a('s_mul_i32 s30, s30, 14336')
    wload(ORD_S, lambda t: t * 14336)
    a('v_and_b32 v3, 8, v0')
    a('v_cmp_eq_u32 vcc, 0, v3')
    a('s_nop 1')
    a('v_cndmask_b32 v14, 0, 1.0, vcc')
    bits(4, [(2, 2, 6), (0, 1, 5), (4, 2, 3), (1, 1, 2)])
    bits(5, [(4, 2, 8), (0, 4, 3)])
    a('s_lshl_b32 s30, s3, 11')
    a('s_add_u32 s30, s30, %d', L_T)
    a('v_add_u32 v4, s30, v4')
    a('v_add_u32 v5, s30, v5')
    a('s_mul_i32 s30, s3, 3584')
    a('s_add_u32 s30, s30, %d', L_X)
    a('v_add_u32 v6, s30, v1')
    bits(8, [(5, 1, 8), (1, 2, 6), (0, 1, 4), (4, 1, 3)])
    a('s_mul_i32 s30, s3, 1792')
    a('v_add_u32 v8, s30, v8')
    a('v_add_u32 v9, 1024, v8')
    bits(10, [(4, 2, 9), (1, 1, 6), (2, 2, 4), (0, 1, 2)])
    bits(15, [(4, 2, 9), (3, 1, 7), (0, 1, 6), (1, 2, 4)])
    a('s_lshl_b32 s31, s3, 11')
    a('s_add_u32 s31, s31, %d', L_S)
    a('v_add_u32 v10, s31, v10')
    a('v_add_u32 v15, s31, v15')
    a('s_lshl_b32 s31, s3, 10')
    a('s_add_u32 s31, s31, %d', L_S)
    a('v_add_u32 v11, s31, v1')
    a('s_lshl_b32 s30, s4, 9')
    a('s_lshl_b32 s31, s3, 8')
    a('s_add_u32 s30, s30, s31')
    a('v_lshl_add_u32 v12, v0, 2, s30')
    bits(13, [(4, 2, 4), (0, 2, 2)])
    a('s_lshl_b32 s30, s4, 7')
    a('s_lshl_b32 s31, s3, 6')
    a('s_add_u32 s30, s30, s31')
    a('s_add_u32 s30, s30, 8192')
    a('v_add_u32 v13, s30, v13')
    a('v_and_b32 v3, 12, v0')
    a('v_cmp_eq_u32 vcc, 0, v3')
    a('v_mov_b32 v18, 0x%x', OOB)
    a('s_nop 0')
    a('v_cndmask_b32 v13, v18, v13, vcc')
    a('v_mov_b32 v3, 0')
    a('v_lshlrev_b32 v18, 2, v0')
    a('ds_write_b32 v18, v3 offset:%d', L_MEM + 7168)
    for w in range(4): a('ds_write_b32 v18, v3 offset:%d', L_T + w * 2048 + 1792)
    for o in (0, 256): a('ds_write_b32 v18, v3 offset:%d', L_X + 28672 + o)
    a('s_mul_i32 s30, s3, 7168')
    a('s_add_u32 s34, s30, 0x%x', XF)
    a('s_add_u32 s36, s30, %d', L_X)
    xdma()
    a('s_lshl_b32 s31, s4, 10')
    a('s_add_u32 s27, s31, 0x%x', PR)
    a('s_cmp_lt_u32 s4, 10')
    a('s_cselect_b32 s27, s27, 0x%x', OOB)
    a('s_cmp_eq_u32 s3, 2')
    a('s_cselect_b32 s27, s27, 0x%x', OOB)
    a('s_lshl_b32 s31, s4, 2')
    a('s_add_u32 s31, s31, s3')
    if 'thalf' in dev:
        a('s_mul_i32 s35, s31, 3584')
        a('v_lshl_add_u32 v7, v0, 7, s35')
        a('v_lshrrev_b32 v3, 14, v7')
        a('v_lshl_add_u32 v7, v3, 14, v7')
        a('v_add_u32 v7, 0x%x, v7', DD + 2 * DSEG + 16384)
        a('v_cmp_gt_u32 s[62:63], 28, v0')
    elif 't34' in dev:
        a('s_mul_i32 s35, s31, 42')
        a('v_add_u32 v7, s35, v0')
        a('s_movk_i32 s35, 2731')
        a('v_mul_u32_u24 v3, s35, v7')
        a('v_lshrrev_b32 v3, 16, v3')
        a('v_lshl_add_u32 v7, v3, 3, v7')
        a('v_lshlrev_b32 v7, 7, v7')
        a('v_add_u32 v7, 0x%x, v7', DD + 2 * DSEG + 1024)
        a('v_cmp_gt_u32 s[62:63], 42, v0')
    else:
        a('s_mul_i32 s35, s31, 7168')
        a('s_add_u32 s35, s35, 0x%x', DD + 2 * DSEG)
        a('v_lshl_add_u32 v7, v0, 7, s35')
    a('s_lshl_b32 s31, s31, 9')
    a('s_add_u32 s31, s31, 0x%x', XF + 2 * XSEG)
    a('v_and_b32 v3, 3, v0')
    a('v_lshl_add_u32 v3, v3, 7, s31')
    if 'tx' in dev: a('v_cmp_gt_u32 s[62:63], 0, v0'); a('s_nop 1')
    a('v_cndmask_b32 v7, v3, v7, s[62:63]')
    a('s_mov_b32 s38, 0x%x', OOB)
    a('s_branch %s', lj)
    a.label(lv)
    fold.wait_wave_heads(a)
    a('s_mul_i32 s30, s3, 4*28')
    a('s_lshl_b32 s32, s4, 1')
    a('s_add_u32 s30, s30, s32')
    a('s_mul_i32 s30, s30, 14336')
    a('s_add_u32 s30, s30, 0x%x', WF_C)
    a('s_mul_i32 s29, s3, 14336')
    a('s_add_u32 s29, s29, %d', L_W)
    wload(ORD_C, lambda t: ((t & 3) * 28 + (t >> 2)) * 14336)
    a('v_add_u32 v14, s29, v1')
    for r, i in zip((4, 5, 7, 12, 13), range(5)): a('v_add_u32 v%d, s%d, v1', r, 17 + i)
    bits(6, [(4, 2, 7), (2, 2, 5), (0, 1, 4)])
    a('s_mul_i32 s30, s3, 1536')
    a('s_sub_u32 s30, 8192, s30')
    a('v_add_u32 v6, s30, v6')
    a('v_mov_b32 v18, 0x%x', OOB)
    a('v_cndmask_b32 v6, v18, v6, s[58:59]')
    bits(8, [(4, 2, 7), (0, 4, 2)])
    a('s_lshl_b32 s30, s3, 9')
    a('s_add_u32 s30, s30, %d', L_C)
    a('v_add_u32 v8, s30, v8')
    bits(10, [(5, 1, 9), (2, 2, 7), (0, 1, 6), (4, 1, 5), (1, 1, 4)])
    a('s_lshl_b32 s48, s3, 11')
    a('s_add_u32 s48, s48, %d', L_V)
    bits(9, [(4, 2, 7), (2, 1, 6), (0, 2, 4), (3, 1, 3)])
    a('s_and_b32 s31, s3, 1')
    a('s_lshl_b32 s30, s31, 11')
    a('s_add_u32 s30, s30, %d', L_C)
    a('v_add_u32 v9, s30, v9')
    a('s_lshl_b32 s30, s4, 9')
    a('s_lshl_b32 s31, s31, 8')
    a('s_add_u32 s30, s30, s31')
    a('v_lshl_add_u32 v11, v0, 2, s30')
    a('s_lshl_b32 s30, s3, 12')
    a('s_lshl_b32 s31, s4, 15')
    a('s_add_u32 s35, s30, s31')
    a('s_add_u32 s35, s35, 0x%x', DD)
    a('s_add_u32 s37, s30, %d', L_D)
    fold.wait_all(a, FLG_M, 256, R=24)
    dwait('0')
    a('s_mov_b32 m0, s37')
    a('s_add_u32 s30, s35, 16384')
    for grp in ddma('s35', 's30'):
        for i in grp: a(i)
        a('s_nop 0')
    a('s_add_u32 s35, s35, %d', DSEG)
    a('s_mov_b32 s38, s35')
    a('s_add_u32 s6, s35, 16384')
    a('s_mov_b32 s40, 0x%x', OOB)
    a('s_mov_b32 s13, 1')
    a.label(lj)
    xcc_gather()
    a('v_readfirstlane_b32 s31, v3')
    a('s_mov_b32 s12, 0')
    a('s_add_u32 s32, s15, 0x%x', MEMX)
    a('s_add_u32 s33, s16, 0x%x', MEMX)
    a('v_cmp_ne_u32 vcc, s31, v3')
    a('s_waitcnt lgkmcnt(0)')
    if dev:
        lc = a.new('cal')
        a('s_memrealtime s[82:83]')
        a('s_waitcnt lgkmcnt(0)')
        a.label(lc)
        a('s_memrealtime s[84:85]')
        a('s_memtime s[86:87]')
        a('s_waitcnt lgkmcnt(0)')
        a('s_cmp_eq_u32 s84, s82')
        a('s_cbranch_scc1 %s', lc)
    if 'slow' in dev: a('s_branch tslow')
    a('s_cbranch_vccnz tslow')
    a('s_cmp_eq_u32 s5, 1')
    a('s_cbranch_scc1 cloopF')
    a('s_branch sloopF')
    a.label('tslow')
    a('s_cmp_eq_u32 s5, 1')
    a('s_cbranch_scc1 cloopS')
    a('s_branch sloopS')
    a.label('tdie')
    a('s_endpgm')
    a.label('export')
    fold.wait_all(a, FLG_M, 256)
    a('s_cmp_eq_u32 s30, 31')
    a('s_cbranch_scc1 relay')
    a('s_mov_b32 s12, 1')
    a('v_min_u32 v7, 55, v0')
    a('v_lshlrev_b32 v7, 7, v7')
    a('s_mul_i32 s31, s3, %d', UNIT)
    a('s_add_u32 s31, s31, 0x%x', MEMX)
    a('buffer_load_dword v9, v7, s[8:11], s31 offen sc1')
    a('s_lshl_b32 s31, s3, 13')
    a('s_add_u32 s31, s31, 0x%x', PR)
    a('v_lshlrev_b32 v8, 7, v0')
    a('buffer_load_dword v9, v8, s[8:11], s31 offen sc1')
    a('s_add_u32 s31, s31, 8192')
    a('buffer_load_dword v9, v8, s[8:11], s31 offen sc1')
    a.label('exloop')
    a('s_mul_i32 s30, s12, %d', UNIT)
    a('s_add_u32 s34, s30, 0x%x', MEMX)
    a('s_add_u32 s32, s34, s15')
    a('s_add_u32 s33, s34, s16')
    a('s_add_u32 s34, s34, %d', 3 * UNIT)
    a('s_cmp_eq_u32 s3, 0')
    a('s_cselect_b32 s34, s34, 0x%x', OOB)
    a('buffer_load_dword v9, v7, s[8:11], s34 offen sc1')
    a('s_mov_b32 s14, 0')
    lp = a.new('ex')
    a.label(lp)
    a('buffer_load_dwordx4 v[20:23], v1, s[8:11], s32 offen sc1')
    a('buffer_load_dwordx4 v[24:27], v1, s[8:11], s33 offen sc1')
    a('s_add_u32 s14, s14, 1')
    a('s_cmp_lt_u32 s14, %d', SPIN)
    a('s_cbranch_scc0 tdie')
    a('s_waitcnt vmcnt(0)')
    a('v_max3_u32 v3, v20, v21, v22')
    a('v_max3_u32 v4, v23, v24, v25')
    a('v_max3_u32 v3, v26, v27, v3')
    a('v_max_u32 v3, v4, v3')
    a('v_cmp_eq_u32 vcc, -1, v3')
    a('s_cbranch_vccnz %s', lp)
    a('s_sub_u32 s32, s32, %d', MEMX - MEME)
    a('s_sub_u32 s33, s33, %d', MEMX - MEME)
    a('s_barrier')
    a('buffer_store_dwordx4 v[20:23], v1, s[8:11], s32 offen sc1')
    a('buffer_store_dwordx4 v[24:27], v1, s[8:11], s33 offen sc1')
    a('s_add_u32 s12, s12, 1')
    a('s_cmp_lt_u32 s12, 63')
    a('s_cbranch_scc1 exloop')
    a('s_endpgm')
    a.label('relay')
    a('s_cmp_eq_u32 s3, 0')
    a('s_cbranch_scc0 tdie')
    xcc_gather()
    a('v_readfirstlane_b32 s31, v3')
    a('s_mov_b32 s12, 0')
    a('s_mov_b32 s14, 0')
    a('s_mov_b32 s49, 0x%x', DPROG)
    a('v_cmp_ne_u32 s[62:63], s31, v3')
    a('v_and_b32 v3, 31, v0')
    a('v_cmp_gt_u32 s[60:61], 28, v3')
    a('v_lshlrev_b32 v4, 2, v0')
    a('v_lshrrev_b32 v5, 5, v0')
    a('s_mov_b32 s48, 0x%x', HZ)
    if 'slow' in dev: a('s_mov_b64 s[62:63], -1')
    a.label('reloop')
    a('buffer_load_dword v6, v4, s[8:11], s49 offen sc1')
    a('s_add_u32 s14, s14, 1')
    a('s_cmp_lt_u32 s14, %d', SPIN)
    a('s_cbranch_scc0 tdie')
    a('s_mov_b32 s13, s12')
    a('s_waitcnt vmcnt(0)')
    a('v_lshl_add_u32 v6, v6, 1, v5')
    a.label('reinc')
    a('v_cmp_ge_u32 vcc, s12, v6')
    a('s_nop 1')
    a('s_and_b64 vcc, vcc, s[60:61]')
    a('s_cbranch_scc1 repub')
    a('s_add_u32 s12, s12, 1')
    a('s_cmp_lt_u32 s12, 64')
    a('s_cbranch_scc1 reinc')
    a.label('repub')
    a('s_cmp_eq_u32 s12, s13')
    a('s_cbranch_scc1 reloop')
    a('v_mov_b32 v7, s12')
    a('s_cmp_eq_u64 s[62:63], 0')
    a('s_cbranch_scc0 reslow')
    a('buffer_store_dword v7, off, s[8:11], s48')
    a('s_branch renext')
    a.label('reslow')
    a('buffer_store_dword v7, off, s[8:11], s48 sc1')
    a.label('renext')
    a('s_cmp_lt_u32 s12, 63')
    a('s_cbranch_scc1 reloop')
    a('s_endpgm')

    def loop(role, mode):
        SC = ' sc1' if mode == 'S' else ''
        ORDER = ORD_S if role == 's' else ORD_C
        TACC = 20
        MF = 48 if role == 's' else 52
        SB, TA, SACC = 76, 100, 108
        VB, PF, CACC, DB, RT = 52, 60, 72, 80, 112
        TMP = TA if role == 's' else 19
        tails = []
        a.l.append('.p2align 6')
        a.label(role + 'loop' + mode)
        if dev:
            l = a.new('pp')
            a('s_cmp_eq_u32 s12, 8')
            a('s_cbranch_scc0 %s', l)
            a('s_memtime s[78:79]')
            a('s_memrealtime s[88:89]')
            a.label(l)
        if 'stall' in dev and role == 'c':
            a('s_waitcnt lgkmcnt(0)')
            a('s_mov_b32 s70, s76')
        def mpoll():
            a('buffer_load_dwordx4 %s, v1, s[8:11], s32 offen sc1', V(MF, 4))
            a('buffer_load_dwordx4 %s, v1, s[8:11], s33 offen sc1', V(MF + 4, 4))
        NE = 0
        if role == 'c':
            for x in dev:
                if x.startswith('ne'): NE = int(x[2:])
            dd = ddma('s38', 's6') if 'nod' not in dev else []
            a('s_xor_b32 s37, s37, 0x18000')
            a('s_cmp_lg_u32 s13, 0')
            lslow, lback = a.new('dq'), a.new('db')
            a('s_cbranch_scc1 %s', lslow)
            a.label(lback)
            tails.append(('dw', lslow, lback))
            a('s_mov_b32 m0, s37')
            a('s_nop 0')
            for grp in dd[:NE]:
                for ins in grp: a(ins)
                if len(grp) > 1: a('s_nop 0')
        if role == 'c': mpoll()
        for r in range(MF - TACC): a('v_mov_b32 v%d, 0', TACC + r)
        if role == 'c': mpoll()
        sc = ['s_and_b32 s30, s12, 3', 's_mul_i32 s22, s30, %d' % PSLOT, 's_add_u32 s22, s22, 0x%x' % PR,
              's_add_u32 s32, s32, %d' % UNIT, 's_add_u32 s33, s33, %d' % UNIT]
        if role == 's':
            for r in range(12): a('v_mov_b32 v%d, 0', SACC + r)
            for i in range(5): a('v_add_u32 v%d, s%d, v1', TA + 2 + i, 17 + i)
            radr = [TA + 2 + i for i in range(5)]
            sc += ['s_add_u32 s31, s12, 3', 's_and_b32 s31, s31, 3', 's_mul_i32 s24, s31, %d' % PSLOT, 's_add_u32 s24, s24, s27',
                   's_min_u32 s24, s24, 0x%x' % OOB]
        else:
            radr = [4, 5, 7, 12, 13]
            sc += ['s_lshl_b32 s31, s3, 11', 's_add_u32 s43, s22, s31', 's_sub_u32 s42, s32, s15', 's_xor_b32 s30, s37, 0x18000']
        MD = 2
        if role == 's':
            MD = 3
            for x in dev:
                if x.startswith('md'): MD = int(x[2:])
            for r in range(8): a('v_mov_b32 v%d, -1', MF + r)
            if 'now' not in dev: a('s_waitcnt vmcnt(0)')
        a('s_mov_b32 s14, 0')
        def smf(i):
            t, lam = ORDER[i]
            a('v_smfmac_f32_16x16x64_bf16 %s, %s, %s, v2', V(TACC + 4 * t, 4), V(MF + 4 * lam, 4), Wreg(i))
        lp, lf = a.new('mp'), a.new('mf')
        if role == 'c': a('s_branch %s', lp)
        a.label(lf)
        for x in dev:
            if x.startswith('ms' + role): a('s_sleep %d', int(x[3:]))
        mpoll()
        a('s_add_u32 s14, s14, 1')
        a('s_cmp_lt_u32 s14, %d', SPIN)
        a('s_cbranch_scc0 tdie')
        a.label(lp)
        a('s_waitcnt vmcnt(%d)', 2 * MD - 2)
        a('v_max3_u32 v3, v%d, v%d, v%d', MF, MF + 1, MF + 2)
        a('v_max3_u32 v%d, v%d, v%d, v%d', TMP, MF + 3, MF + 4, MF + 5)
        a('v_max3_u32 v3, v%d, v%d, v3', MF + 6, MF + 7)
        a('v_max_u32 v3, v%d, v3', TMP)
        a('v_cmp_eq_u32 vcc, -1, v3')
        if 'm0' in dev:
            a('ds_write_b128 v16, %s', V(MF, 4))
            a('ds_write_b128 v17, %s', V(MF + 4, 4))
        a('s_cbranch_vccnz %s', lf)
        stamp(0)
        N = len(ORDER)
        gm = [[] for _ in range(N + 8)]
        gv = [[] for _ in range(N + 8)]
        pre = [[] for _ in range(N + 8)]
        rd = ['ds_read_b128 %s, v%d' % (V(MF + 8 + 4 * i, 4), radr[i]) for i in range(5)]
        if 'm0' not in dev:
            gm[0].append('ds_write_b128 v16, %s' % V(MF, 4))
            gm[1].append('ds_write_b128 v17, %s' % V(MF + 4, 4))
        GB = 5
        for x in dev:
            if x.startswith('gb') and role == 's': GB = int(x[2:])
        gm[GB] += ['s_waitcnt lgkmcnt(0)', 's_barrier', rd[0]]
        for i in range(1, 5): gm[GB + i].append(rd[i])
        for k in range(0, len(sc), 2): gv[(8 if role == 'c' else 20) + k // 2] += sc[k:k + 2]
        def place(ins, lo):
            k = lo
            while gm[k]: k += 1
            gm[k] += ins if isinstance(ins, list) else [ins]
            return k
        if role == 's':
            B0 = 21
            def epi(t):
                c = TACC + 4 * t
                return (['v_add_f32 v%d, v%d, v%d' % (c, c, c + 2), 'v_add_f32 v%d, v%d, v%d' % (c + 1, c + 1, c + 3),
                         'v_cvt_pk_bf16_f32 v%d, v%d, v%d' % (c, c, c + 1)], ['ds_write_b32 v4, v%d offset:%d' % (c, 256 * t)])
            for t in range(6):
                v, m = epi(t)
                for i, ins in enumerate(v): gv[B0 + 4 * t + 7 + i].append(ins)
                gm[B0 + 4 * t + 10].append(m[0])
            place('ds_read_b64_tr_b16 %s, v5' % V(TA, 2), B0 + 23)
            place('ds_read_b64_tr_b16 %s, v5 offset:128' % V(TA + 2, 2), B0 + 24)
            def brd(step, xb0, xb1, mb):
                r = []
                for kt, b in ((0, xb0), (1, xb1)):
                    for hh in range(2):
                        r.append('ds_read_b128 %s, v6 offset:%d' % (V(b + 4 * hh, 4), kt * 14336 + (2 * step + hh) * 1024))
                ad = 'v8' if step == 0 else 'v9'
                for hh in range(2):
                    for qq in range(2):
                        r.append('ds_read2_b32 %s, %s offset0:%d offset1:%d' % (V(mb + 4 * hh + 2 * qq, 2), ad, 128 * hh + qq, 128 * hh + qq + 8))
                return r
            place('buffer_load_dword v18, off, s[8:11], s49 sc1', GB)
            place('buffer_load_dword v19, v7, s[8:11], s38 offen' if 'notouch' not in dev else 'buffer_load_dword v19, off, s[8:11], s49 sc1', GB)
            BL = 12
            for x in dev:
                if x.startswith('bl'): BL = int(x[2:])
            for ins in brd(0, SB, SB + 8, SB + 16): place(ins, BL)
            b1 = brd(1, TACC, TACC + 8, MF)
            k = place(['s_waitcnt vmcnt(2)', b1[4]], 20)
            for ins in b1[5:]: place(ins, k)
            for ins in b1[0:2]: place(ins, B0 + 15)
            for ins in b1[2:4]: place(ins, B0 + 23)
            def younger_ds(k0, k1): return sum(1 for kk in range(k0, k1) for x in gm[kk] if x.startswith('ds_'))
            pre[14].append('s_waitcnt lgkmcnt(%d)' % younger_ds(GB + 1, 14))
            pre[B0].append('s_waitcnt lgkmcnt(%d)' % younger_ds(GB + 5, B0))
        else:
            pre[16].append('s_waitcnt lgkmcnt(4)')
            pre[24].append('s_waitcnt lgkmcnt(0)')
            sp = 4
            for x in dev:
                if x.startswith('sp'): sp = int(x[2:])
            rest = dd[NE:]
            for i, grp in enumerate(rest): gm[12 + sp * i] += grp
            gm[10].append('buffer_load_dword v18, off, s[8:11], s49 sc1')
            wr = ['ds_read_b128 %s, v14 offset:%d' % (V(CSPILL[i >> 1] + 4 * (i & 1), 4), 1024 * i) for i in range(14)]
            for ins in wr[:10]: place(ins, 24)
            k = 38
            while gm[k]: k += 1
            younger = sum(1 for kk in range(k) for x in gm[kk] if x.startswith('buffer_'))
            k = place(['s_waitcnt vmcnt(%d)' % younger, wr[10]], 38)
            for ins in wr[11:]: place(ins, k)
            pre[49].append('s_waitcnt lgkmcnt(0)')
            gv[20].append('v_add_u32 v15, s30, v1')
        for k in range(N):
            for ins in pre[k]: a(ins)
            smf(k)
            for ins in gm[k] + gv[k]: a(ins)
        stamp(1)
        if role == 's':
            for kk in range(N, N + 3):
                for ins in gm[kk] + gv[kk]: a(ins)
            assert not any(gm[N + 3:]) and not any(gv[N + 3:])
            a('s_cmp_lt_u32 s3, 2')
            a('s_nop 1')
            v, m = epi(6)
            for ins in v + m: a(ins)
            a('ds_read_b64_tr_b16 %s, v5 offset:1024', V(TA + 4, 2))
            a('ds_read_b64_tr_b16 %s, v5 offset:1152', V(TA + 6, 2))
            a('s_waitcnt lgkmcnt(7)')
            for kt in range(3):
                a('v_smfmac_f32_16x16x64_bf16 %s, %s, %s, v2', V(SACC + 4 * kt, 4), V(TA, 4), V(SB + 8 * kt, 8))
            a('s_waitcnt lgkmcnt(0)')
            for kt, b in enumerate((TACC, TACC + 8, MF)):
                a('v_smfmac_f32_16x16x64_bf16 %s, %s, %s, v2', V(SACC + 4 * kt, 4), V(TA + 4, 4), V(b, 8))
            a('s_nop %d', 5 if 'tight' not in dev else 1)
            def sadd(kt):
                c = SACC + 4 * kt
                if 'nopk' not in dev: a('v_pk_add_f32 %s, %s, %s', V(c, 2), V(c, 2), V(c + 2, 2))
                else:
                    a('v_add_f32 v%d, v%d, v%d', c, c, c + 2)
                    a('v_add_f32 v%d, v%d, v%d', c + 1, c + 1, c + 3)
            def swr(kt):
                c = SACC + 4 * kt
                if kt < 2: a('ds_write2_b32 v10, v%d, v%d offset0:%d offset1:%d', c, c + 1, 32 * kt, 32 * kt + 64)
                else: a('ds_write2_b32 v15, v%d, v%d offset0:2 offset1:66', c, c + 1)
            if 'so0' not in dev: sadd(0); sadd(1); swr(0); sadd(2); swr(1); swr(2)
            else:
                for kt in range(3): sadd(kt); swr(kt)
            lns, ljn = a.new('ns'), a.new('jn')
            a('s_cbranch_scc0 %s', lns)
            tails.append(('nv', lns, ljn))
            def warm(key, regs):
                n = 0
                for x in dev:
                    if x.startswith(key): n = int(x[len(key):])
                for i in range(n):
                    a('v_mov_b32 v%d, 0', regs + i)
                    a('s_nop 2')
            warm('wa', TACC + 16)
            a('s_waitcnt lgkmcnt(0)')
            a('s_barrier')
            stamp(2)
            for w in range(4): a('ds_read_b96 %s, v11 offset:%d', V(76 + 4 * w, 3), 2048 * w) if 'b96' in dev else a('ds_read_b128 %s, v11 offset:%d', V(76 + 4 * w, 4), 2048 * w)
            warm('wb', TACC + 22)
            a('s_waitcnt lgkmcnt(2)')
            a('v_pk_add_f32 v[76:77], v[76:77], v[80:81]')
            a('v_add_f32 v78, v78, v82')
            a('s_waitcnt lgkmcnt(0)')
            a('v_pk_add_f32 v[84:85], v[84:85], v[88:89]')
            a('v_add_f32 v86, v86, v90')
            a('v_pk_add_f32 v[76:77], v[76:77], v[84:85]')
            a('v_add_f32 v78, v78, v86')
            DP = ('quad_perm:[1,0,3,2]', 'quad_perm:[2,3,0,1]', 'row_half_mirror', 'row_mirror')
            def dpp(op, d, s_, ctl): a('%s_dpp v%d, v%d, v%d %s row_mask:0xf bank_mask:0xf', op, d, s_, s_, ctl)
            a('v_max3_f32 v84, v76, v77, v78')
            a('v_sub_f32 v76, v76, v84')
            a('v_sub_f32 v77, v77, v84')
            dpp('v_max_f32', 85, 84, DP[0])
            a('v_sub_f32 v78, v78, v84')
            a('v_exp_f32 v76, v76')
            dpp('v_max_f32', 85, 85, DP[1])
            a('v_exp_f32 v77, v77')
            a('s_nop 0')
            dpp('v_max_f32', 85, 85, DP[2])
            a('v_exp_f32 v78, v78')
            a('v_add_f32 v86, v76, v77')
            dpp('v_max_f32', 85, 85, DP[3])
            a('v_sub_f32 v84, v84, v85')
            a('v_exp_f32 v84, v84')
            a('v_fmac_f32 v86, v78, v14')
            a('v_mul_f32 v86, v86, v84')
            a('v_mul_f32 v76, v76, v84')
            a('v_mul_f32 v77, v77, v84')
            dpp('v_add_f32', 86, 86, DP[0])
            a('v_mul_f32 v78, v78, v84')
            a('s_nop 0')
            for ctl in DP[1:]:
                dpp('v_add_f32', 86, 86, ctl)
                if ctl != DP[3]: a('s_nop 1')
            a('v_rcp_f32 v86, v86')
            a('s_nop 0')
            a('v_mul_f32 v76, v76, v86')
            a('v_mul_f32 v77, v77, v86')
            a('v_cvt_pk_bf16_f32 v88, |v76|, |v77|')
            a('buffer_store_dword v88, v12, s[8:11], s22 offen' + SC)
            a('v_mul_f32_dpp v79, v78, v86 row_shl:4 row_mask:0xf bank_mask:0xf bound_ctrl:0')
            a('v_mul_f32 v78, v78, v86')
            a('v_cvt_pk_bf16_f32 v90, |v78|, |v79|')
            a('buffer_store_dword v90, v13, s[8:11], s22 offen' + SC)
            stamp(3)
            a('s_waitcnt vmcnt(3)')
            a.label(ljn)
            a('s_barrier')
            if 'nox' not in dev: xdma()
            a('v_add_u32 v7, %d, v7', XSEG)
            a('s_mov_b64 exec, s[62:63]')
            a('v_add_u32 v7, %d, v7', DSEG - XSEG)
            a('s_mov_b64 exec, -1')
            a('s_add_u32 s31, s12, 3')
            fcheck(18, 3, 's31')
            a('s_cselect_b32 s38, 0x%x, 0', OOB)
            a('s_cmp_gt_u32 s31, 62')
            a('s_cselect_b32 s38, 0x%x, s38', OOB)
            for x in dev:
                if x.startswith('ds'): a('s_sleep %d', int(x[2:]))
        else:
            assert not any(gm[N:]) and not any(gv[N:])
            def pld1(k):
                a('buffer_load_dwordx4 %s, %s, s[8:11], s43 offen offset:%d sc1', V(PF + 4 * k, 4), 'v10' if k else 'v6', 1024 if k == 2 else 0)
            def pld():
                for k in range(3): pld1(k)
            for i in range(8): a('ds_read_b128 %s, v15 offset:%d', V(DB + 4 * i, 4), 1024 * (i & 3) + 16384 * (i >> 2))
            pld()
            for t in range(8):
                c = TACC + 4 * t
                a('v_add_f32 v%d, v%d, v%d', c, c, c + 2)
                a('v_add_f32 v%d, v%d, v%d', c + 1, c + 1, c + 3)
                a('v_cvt_pk_bf16_f32 v%d, v%d, v%d', c, c, c + 1)
                if t == 0:
                    bits(19, [(0, 4, 4), (4, 2, 2)])
                    a('v_add_u32 v19, s48, v19')
                else: a('ds_write_b32 v19, v%d offset:%d', c - 4, 256 * (t - 1))
            a('v_add_u32 v3, s48, v1')
            a('ds_write_b32 v19, v%d offset:%d', TACC + 28, 256 * 7)
            a('ds_read_b128 %s, v3', V(VB, 4))
            a('ds_read_b128 %s, v3 offset:1024', V(VB + 4, 4))
            a('v_add_u32 v15, 2048, v8')
            a('s_waitcnt vmcnt(3)')
            a('s_add_u32 s35, s35, %d', DSEG)
            a('s_add_u32 s31, s12, 2')
            fcheck(18, 3, 's31')
            a('s_cselect_b32 s13, 1, 0')
            a('s_add_u32 s6, s35, 16384')
            a('s_cmp_gt_u32 s31, 62')
            a('s_cselect_b32 s38, 0x%x, s35', OOB)
            a('s_cselect_b32 s6, 0x%x, s6', OOB)
            a('s_cselect_b32 s13, 0, s13')
            a('s_mov_b32 s14, 0')
            stamp(4)
            a('s_waitcnt lgkmcnt(0)')
            lr, lq = a.new('pr'), a.new('pq')
            def pchk():
                a('v_or3_b32 v3, v%d, v%d, v%d', PF, PF + 1, PF + 2)
                a('v_or3_b32 v19, v%d, v%d, v%d', PF + 3, PF + 4, PF + 5)
                a('v_or3_b32 v3, v%d, v%d, v3', PF + 6, PF + 7)
                a('v_or3_b32 v19, v%d, v%d, v19', PF + 8, PF + 9)
                a('v_or3_b32 v3, v%d, v%d, v3', PF + 10, PF + 11)
                a('v_or_b32 v3, v19, v3')
                a('v_cmp_gt_i32 vcc, 0, v3')
            if 'pone' not in dev:
                a.label(lr)
                pld()
                a('s_add_u32 s14, s14, 1')
                a('s_cmp_lt_u32 s14, %d', SPIN)
                a('s_cbranch_scc0 tdie')
                a('s_waitcnt vmcnt(3)')
                pchk()
                a('v_mfma_f32_16x16x32_bf16 %s, %s, %s, 0', V(CACC, 4), V(PF, 4), V(VB, 4))
                a('s_cmp_lt_u32 s3, 2')
                a('s_cbranch_vccnz %s', lr)
            else:
                PD = 3
                for x in dev:
                    if x.startswith('pq'): PD = int(x[2:])
                a('s_waitcnt vmcnt(0)')
                a.label(lr)
                for k in range(3):
                    pld1(k)
                    if k == 0:
                        a('s_add_u32 s14, s14, 1')
                        a('s_cmp_lt_u32 s14, %d', SPIN)
                        a('s_cbranch_scc0 tdie')
                    a('s_waitcnt vmcnt(%d)', PD)
                    pchk()
                    a('s_cbranch_vccz %s' % lq if k < 2 else 's_cbranch_vccnz %s' % lr)
                a.label(lq)
                a('v_mfma_f32_16x16x32_bf16 %s, %s, %s, 0', V(CACC, 4), V(PF, 4), V(VB, 4))
                a('s_cmp_lt_u32 s3, 2')
            a('v_smfmac_f32_16x16x64_bf16 %s, %s, %s, v2', V(CACC, 4), V(PF + 4, 4), V(DB, 8))
            a('v_smfmac_f32_16x16x64_bf16 %s, %s, %s, v2', V(CACC, 4), V(PF + 8, 4), V(DB + 8, 8))
            a('v_mfma_f32_16x16x32_bf16 %s, %s, %s, 0', V(CACC + 4, 4), V(PF, 4), V(VB + 4, 4))
            a('v_smfmac_f32_16x16x64_bf16 %s, %s, %s, v2', V(CACC + 4, 4), V(PF + 4, 4), V(DB + 16, 8))
            a('v_smfmac_f32_16x16x64_bf16 %s, %s, %s, v2', V(CACC + 4, 4), V(PF + 8, 4), V(DB + 24, 8))
            stamp(5)
            a('v_add_f32 v%d, v%d, v%d', CACC, CACC, CACC + 2)
            a('v_add_f32 v%d, v%d, v%d', CACC + 1, CACC + 1, CACC + 3)
            a('ds_write2_b32 v8, v%d, v%d offset0:0 offset1:16', CACC, CACC + 1)
            a('s_nop 4')
            a('v_add_f32 v%d, v%d, v%d', CACC + 4, CACC + 4, CACC + 6)
            a('v_add_f32 v%d, v%d, v%d', CACC + 5, CACC + 5, CACC + 7)
            a('ds_write2_b32 v15, v%d, v%d offset0:0 offset1:16', CACC + 4, CACC + 5)
            lnr, ljr = a.new('nr'), a.new('jr')
            a('s_cbranch_scc0 %s', lnr)
            tails.append(('ns', lnr, ljr))
            a('s_waitcnt lgkmcnt(0)')
            a('s_barrier')
            for w in range(4): a('ds_read_b64 %s, v9 offset:%d', V(RT + 2 * w, 2), 512 * w)
            a('s_waitcnt lgkmcnt(2)')
            a('v_pk_add_f32 %s, %s, %s', V(RT, 2), V(RT, 2), V(RT + 2, 2))
            a('s_waitcnt lgkmcnt(0)')
            a('v_pk_add_f32 %s, %s, %s', V(RT + 4, 2), V(RT + 4, 2), V(RT + 6, 2))
            a('v_pk_add_f32 %s, %s, %s', V(RT, 2), V(RT, 2), V(RT + 4, 2))
            a('v_cvt_pk_bf16_f32 v%d, v%d, v%d', RT, RT, RT + 1)
            a('v_min_u32 v%d, -2, v%d', RT, RT)
            a('buffer_store_dword v%d, v11, s[8:11], s42 offen%s', RT, SC)
            stamp(6)
            a('s_barrier')
            a('s_mov_b32 s40, 0x%x', MEME + 63 * UNIT)
            a.label(ljr)
            for x in dev:
                if x.startswith('dc'): a('s_sleep %d', int(x[2:]))
        if dev and role == 's':
            l = a.new('ts')
            a('s_lshl_b32 s30, s4, 2')
            a('s_add_u32 s30, s30, s3')
            a('s_cmp_eq_u32 s30, 63')
            a('s_cbranch_scc0 %s', l)
            a('s_memtime s[80:81]')
            a('s_lshl_b32 s30, s12, 2')
            a('s_add_u32 s30, s30, 0x3F30000')
            a('s_waitcnt lgkmcnt(0)')
            a('v_mov_b32 v99, s80')
            a('buffer_store_dword v99, off, s[8:11], s30')
            a.label(l)
        if dev:
            ld = a.new('dv')
            a('s_cmp_eq_u32 s12, 40')
            a('s_cbranch_scc0 %s', ld)
            a('s_memtime s[80:81]')
            a('s_memrealtime s[82:83]')
            a('s_waitcnt lgkmcnt(0)')
            a('s_sub_u32 s78, s80, s78')
            a('s_sub_u32 s88, s82, s88')
            a('s_lshl_b32 s30, s5, 4')
            a('s_add_u32 s30, s30, s4')
            a('s_lshl_b32 s30, s30, 2')
            a('s_add_u32 s30, s30, s3')
            a('s_lshl_b32 s30, s30, 6')
            a('s_add_u32 s30, s30, 0x3F00000')
            for kk in range(13):
                a('v_mov_b32 v99, s%d', 64 + 2 * kk)
                a('buffer_store_dword v99, off, s[8:11], s30 offset:%d', 4 * kk)
                a('s_nop 1')
            a.label(ld)
        a('s_add_u32 s12, s12, 1')
        a('s_cmp_lt_u32 s12, 63')
        a('s_cbranch_scc1 %sloop%s', role, mode)
        if role == 'c': a('buffer_store_dword v%d, v11, s[8:11], s40 offen sc1', RT)
        if dev:
            a('s_memrealtime s[82:83]')
            a('s_waitcnt lgkmcnt(0)')
            a('s_lshl_b32 s30, s2, 4')
            a('s_add_u32 s30, s30, 0x3F10000')
            for kk, r in enumerate((90, 84, 82)):
                a('v_mov_b32 v99, s%d', r)
                a('buffer_store_dword v99, off, s[8:11], s30 offset:%d', 4 * kk)
                a('s_nop 1')
            if 'dbgt' in dev:
                l = a.new('dt')
                a('s_cmp_eq_u32 s4, 5')
                a('s_cbranch_scc0 %s', l)
                a('s_lshl_b32 s30, s5, 4')
                for kk, r in enumerate((90, 84, 82, 78)):
                    if r != 78: a('s_sub_u32 s31, s%d, s92', r)
                    else: a('s_mov_b32 s31, s78')
                    a('v_mov_b32 v99, s31')
                    a('buffer_store_dword v99, off, s[44:47], s30 offset:%d', 4 * kk)
                    a('s_nop 1')
                a.label(l)
        a('s_endpgm')
        for p in tails:
            a.label(p[1])
            if p[0] == 'dw':
                a('s_add_u32 s31, s12, 1')
                dwait('s31')
                a('s_branch %s', p[2])
            elif p[0] == 'nv':
                for r in range(4): a('v_mov_b32 v%d, -1', 92 + r)
                a('s_waitcnt lgkmcnt(0)')
                a('s_barrier')
                a('buffer_store_dwordx4 v[92:95], v1, s[8:11], s24 offen' + SC)
                a('s_waitcnt vmcnt(2)')
                a('s_branch %s', p[2])
            elif p[0] == 'ns':
                a('s_waitcnt lgkmcnt(0)')
                a('s_barrier')
                a('s_barrier')
                a('s_branch %s', p[2])
    for mode in 'FS':
        for role in 'sc': loop(role, mode)
```

```python
from common import *
SPIN = 400000
DEV = False
DBGT = False
OVERLAP = False
AFIRST = 16
BYK = True
WST = 'sc1'
LATEFLAG = False
LA, LB, LG = 0, 32768, 147456

def tl(a, k, base=0x3F20000):
    if DEV:
        a('s_memrealtime s[82:83]')
        a('s_waitcnt lgkmcnt(0)')
        a('s_lshl_b32 s84, s2, 4')
        a('s_add_u32 s84, s84, 0x%x', base)
        a('v_mov_b32 v250, s82')
        a('buffer_store_dword v250, off, s[8:11], s84 offset:%d', 4 * k)
        if DBGT and k:
            a('s_mov_b32 s%d, s82', 93 + k)

def wait_words(a, voff, soff, width, wave0_only=True, R=244):
    lp, ok = a.new('ww'), a.new('wk')
    if wave0_only:
        a('s_cmp_eq_u32 s3, 0')
        a('s_cbranch_scc0 %s', ok)
    a('s_mov_b32 s14, 0')
    a.label(lp)
    srd = 's[44:47]' if soff is None else 's[8:11]'
    if width == 4:
        a('buffer_load_dwordx4 %s, %s, %s, %s offen sc1', V(R, 4), voff, srd, soff or '0')
        a('s_waitcnt vmcnt(0)')
        a('v_min3_u32 v%d, v%d, v%d, v%d', R, R, R + 1, R + 2)
        a('v_min_u32 v%d, v%d, v%d', R, R, R + 3)
    else:
        a('buffer_load_dword v%d, %s, %s, %s offen sc1', R, voff, srd, soff or '0')
        a('s_waitcnt vmcnt(0)')
    a('v_cmp_eq_u32 vcc, 0, v%d', R)
    a('s_cbranch_vccz %s', ok)
    a('s_sleep 3')
    a('s_add_u32 s14, s14, 1')
    a('s_cmp_lt_u32 s14, %d', SPIN)
    a('s_cbranch_scc1 %s', lp)
    a('s_endpgm')
    a.label(ok)
    if wave0_only: a('s_barrier')

def wait_all(a, base, n, R=244):
    a('v_min_u32 v%d, %d, v0', R - 1, n // 4 - 1)
    a('v_lshlrev_b32 v%d, 4, v%d', R - 1, R - 1)
    a('s_mov_b32 s31, 0x%x', base)
    wait_words(a, 'v%d' % (R - 1), 's31', 4, R=R)

def wait_head(a, base, hreg, n=14, R=244, w0=True):
    a('v_min_u32 v%d, %d, v0', R - 1, n - 1)
    a('v_lshlrev_b32 v%d, 2, v%d', R - 1, R - 1)
    a('s_mul_i32 s31, %s, 56', hreg)
    a('s_add_u32 s31, s31, 0x%x', base)
    wait_words(a, 'v%d' % (R - 1), 's31', 1, wave0_only=w0, R=R)

def set_flag(a, base, idx, younger=0):
    a('s_waitcnt vmcnt(%d)', younger)
    a('s_barrier')
    l = a.new('sf')
    a('s_cmp_eq_u32 s3, 0')
    a('s_cbranch_scc0 %s', l)
    a('s_lshl_b32 s31, %s, 2', idx)
    a('s_add_u32 s31, s31, 0x%x', base)
    a('v_mov_b32 v244, 1')
    a('buffer_store_dword v244, off, s[8:11], s31 sc1')
    a.label(l)

def misc_loads(a):
    a('s_lshl_b32 s31, s3, 6')
    a('v_add_u32 v240, s31, v0')
    a('s_movk_i32 s31, 1171')
    for r in range(2):
        t = 224 + 2 * r
        if r: a('v_add_u32 v241, 256, v240')
        src = 241 if r else 240
        a('v_mul_u32_u24 v%d, s31, v%d', t, src)
        a('v_lshrrev_b32 v%d, 16, v%d', t, t)
        a('v_mul_u32_u24 v%d, 56, v%d', t + 1, t)
        a('v_sub_u32 v%d, v%d, v%d', t + 1, src, t + 1)
    a('v_lshlrev_b32 v228, 4, v240')
    a('v_cmp_gt_u32 vcc, 192, v240')
    a('v_add_u32 v229, 4096, v228')
    a('v_mov_b32 v230, 0x7000000')
    a('v_cndmask_b32 v229, v230, v229, vcc')
    a('s_mul_i32 s30, s2, 7168')
    a('buffer_load_dwordx4 v[208:211], v228, s[20:23], s30 offen')
    a('buffer_load_dwordx4 v[212:215], v229, s[20:23], s30 offen')
    a('v_lshlrev_b32 v230, 4, v225')
    a('v_lshlrev_b32 v231, 4, v227')
    a('buffer_load_dwordx4 v[216:219], v230, s[24:27], 0 offen')
    a('buffer_load_dwordx4 v[220:223], v231, s[24:27], 0 offen')
    return 4

def misc_rest(a):
    a('s_and_b32 s30, s2, 3')
    a('s_lshl_b32 s30, s30, 3')
    a('s_movk_i32 s31, 14336')
    a('s_lshr_b32 s32, s2, 2')
    a('s_mul_i32 s32, s32, %d', XSEG)
    a('s_add_u32 s32, s32, 0x%x', XF)
    a('v_cmp_gt_u32 vcc, 192, v240')
    for r in range(2):
        t = 224 + 2 * r
        a('v_add_u32 v232, s30, v%d', t)
        a('v_lshrrev_b32 v233, 4, v232')
        a('v_mul_u32_u24 v233, s31, v233')
        a('v_and_b32 v232, 15, v232')
        a('v_lshl_add_u32 v233, v232, 4, v233')
        a('v_lshl_add_u32 v233, v%d, 8, v233', t + 1)
        if r:
            a('v_mov_b32 v232, 0x8000000')
            a('v_cndmask_b32 v233, v232, v233, vcc')
        a('buffer_store_dwordx4 %s, v233, s[8:11], s32 offen sc1', V(208 + 4 * r, 4))
        a('v_mov_b32 v%d, 0', 234 + r)
        for d in range(4): a('v_dot2_f32_bf16 v%d, v%d, v%d, v%d', 234 + r, 208 + 4 * r + d, 216 + 4 * r + d, 234 + r)
    a('v_lshlrev_b32 v232, 2, v240')
    a('v_add_u32 v232, %d, v232', LG)
    a('s_nop 1')
    a('ds_write_b32 v232, v234')
    a('ds_write_b32 v232, v235 offset:1024')
    a('s_waitcnt lgkmcnt(0)')
    a('s_barrier')
    lg = a.new('ng')
    a('s_cmp_eq_u32 s3, 3')
    a('s_cbranch_scc0 %s', lg)
    a('v_mul_u32_u24 v232, 28, v0')
    a('v_add_u32 v232, %d, v232', LG)
    for i in range(7): a('ds_read_b32 v%d, v232 offset:%d', 233 + i, 4 * i)
    a('s_waitcnt lgkmcnt(0)')
    for i in range(1, 7): a('v_add_f32 v233, v233, v%d', 233 + i)
    for ctl in ('quad_perm:[1,0,3,2]', 'quad_perm:[2,3,0,1]', 'row_half_mirror'):
        a('s_nop 1')
        a('v_add_f32_dpp v233, v233, v233 %s row_mask:0xf bank_mask:0xf', ctl)
    a('v_mul_f32 v233, 0x%x, v233', fbits(-LOG2E))
    a('v_exp_f32 v233, v233')
    a('s_nop 0')
    a('v_add_f32 v233, 1.0, v233')
    a('v_rcp_f32 v233, v233')
    a('v_lshrrev_b32 v232, 3, v0')
    a('v_lshlrev_b32 v232, 2, v232')
    a('s_lshl_b32 s30, s2, 5')
    a('s_add_u32 s30, s30, 0x%x', GG)
    a('buffer_store_dword v233, v232, s[8:11], s30 offen sc1')
    a.label(lg)

def unit_fill(a):
    a('v_cmp_gt_u32 vcc, 192, v240')
    a('v_mov_b32 v229, 0x8000000')
    a('v_add_u32 v232, 4096, v228')
    a('v_cndmask_b32 v229, v229, v232, vcc')
    for r in range(8): a('v_mov_b32 v%d, -1', 200 + r)
    a('s_mul_i32 s30, s53, 7168')
    a('s_add_u32 s30, s30, 0x%x', U0)
    for k in (1, 3, 4):
        a('s_add_u32 s31, s30, %d', 32 * k * UNIT)
        if k == 4:
            a('s_cmp_lt_u32 s53, %d', NUNITS - 128)
            a('s_cselect_b32 s31, s31, 0x8000000')
        a('buffer_store_dwordx4 v[200:203], v228, s[8:11], s31 offen sc1')
        a('buffer_store_dwordx4 v[204:207], v229, s[8:11], s31 offen sc1')
    lm0, lst = a.new('m0'), a.new('fs')
    a('s_cmp_eq_u32 s53, 10')
    a('s_cbranch_scc0 %s', lst)
    a.label(lm0)
    a('v_bfe_u32 v232, v0, 2, 2')
    a('v_and_b32 v233, 1, v0')
    a('v_lshl_add_u32 v232, v232, 1, v233')
    a('s_movk_i32 s31, 896')
    a('v_mul_u32_u24 v232, s31, v232')
    a('v_lshrrev_b32 v233, 4, v240')
    a('v_lshl_add_u32 v232, v233, 5, v232')
    a('v_bfe_u32 v233, v0, 1, 1')
    a('v_lshl_add_u32 v232, v233, 2, v232')
    for r in range(2):
        for q in range(4): a('buffer_load_dword v%d, v232, s[40:43], 0 offen offset:%d', 200 + 4 * r + q, 8 * q + 512 * r)
    a('s_waitcnt vmcnt(0)')
    for r in range(8): a('v_min_u32 v%d, -2, v%d', 200 + r, 200 + r)
    a.label(lst)
    a('s_add_u32 s31, s30, %d', 64 * UNIT)
    for sr in (30, 31):
        a('buffer_store_dwordx4 v[200:203], v228, s[8:11], s%d offen sc1', sr)
        a('buffer_store_dwordx4 v[204:207], v229, s[8:11], s%d offen sc1', sr)

def wait_janitor(a):
    a('v_mov_b32 v243, 252')
    lp = a.new('wj')
    a('s_cmp_eq_u32 s3, 0')
    a('s_cbranch_scc0 %s', lp)
    wait_words(a, 'v243', None, 1, wave0_only=False)
    a.label(lp)

def janitor(a):
    for r in range(4): a('v_mov_b32 v%d, 0', 244 + r)
    a('v_lshlrev_b32 v243, 4, v0')
    a('s_mov_b32 s31, 0x%x', CNT)
    l = a.new('jn')
    a('s_cmp_eq_u32 s3, 0')
    a('s_cbranch_scc0 %s', l)
    for i in range(4): a('buffer_store_dwordx4 v[244:247], v243, s[8:11], s31 offen offset:%d sc1', 1024 * i)
    a('s_add_u32 s31, s31, 4096')
    a('buffer_store_dwordx4 v[244:247], v243, s[8:11], s31 offen sc1')
    a('s_waitcnt vmcnt(0)')
    a('v_mov_b32 v244, 1')
    a('buffer_store_dword v244, off, s[44:47], 0 offset:252 sc1')
    a.label(l)

def gen_fold(a):
    a('s_mul_i32 s4, s53, 4682')
    a('s_lshr_b32 s4, s4, 16')
    a('s_mul_i32 s31, s4, 14')
    a('s_sub_u32 s31, s53, s31')
    a('s_and_b32 s6, s31, 1')
    a('s_lshr_b32 s7, s31, 1')
    a('v_and_b32 v2, 15, v0')
    a('v_lshrrev_b32 v3, 4, v0')
    a('v_lshlrev_b32 v1, 4, v0')
    a('v_lshrrev_b32 v4, 5, v0')
    a('v_and_b32 v5, 31, v0')
    a('v_xor_b32 v5, v5, v4')
    a('s_and_b32 s31, s3, 1')
    a('s_lshl_b32 s30, s31, 3')
    a('v_xor_b32 v5, s30, v5')
    a('v_lshlrev_b32 v5, 4, v5')
    a('v_lshl_add_u32 v4, v4, 13, v5')
    a('s_lshl_b32 s28, s7, 2')
    a('s_add_u32 s28, s28, s3')
    a('s_lshl_b32 s28, s28, 17')
    a('s_lshl_b32 s29, s4, 9')
    a('s_add_u32 s28, s28, s29')
    a('s_lshl_b32 s48, s3, 13')
    def aside(srd):
        for ii in range(8):
            a('v_xor_b32 v5, %d, v4', ((2 * (ii & 1)) ^ (4 * (ii >> 2))) << 4)
            a('s_add_u32 m0, s48, %d', LA + 1024 * ii)
            a('s_add_u32 s33, s28, %d', 2 * ii * 8192)
            a('buffer_load_dwordx4 v5, %s, s33 offen lds', srd)
    a('s_mul_i32 s35, s4, 229376')
    a('s_mul_i32 s31, s3, 64*896')
    a('s_add_u32 s35, s35, s31')
    a('s_mul_i32 s31, s6, 448')
    a('s_add_u32 s35, s35, s31')
    a('s_mul_i32 s49, s3, 28672')
    a('s_add_u32 s49, s49, %d', LB)
    a('s_mul_i32 s50, s6, 224')
    a('s_mul_i32 s31, s3, 56')
    a('s_add_u32 s50, s50, s31')
    a('s_lshl_b32 s50, s50, 13')
    a('s_add_u32 s50, s50, s29')
    def issue(mat, mid):
        if mat:
            aside('s[60:63]')
            a('s_movk_i32 s31, 2341')
            a('s_movk_i32 s32, 896')
            for z in range(7):
                a('v_add_u32 v5, %d, v0', 64 * z)
                a('v_mul_u32_u24 v6, s31, v5')
                a('v_lshrrev_b32 v6, 16, v6')
                a('v_mul_u32_u24 v13, 28, v6')
                a('v_sub_u32 v13, v5, v13')
                a('v_mul_u32_u24 v6, s32, v6')
                a('v_lshl_add_u32 v%d, v13, 4, v6', 20 + z)
            for grp in range(4):
                a('s_add_u32 s31, s7, %d', grp)
                a('s_and_b32 s31, s31, 3')
                a('s_mul_i32 s32, s31, 14336')
                a('s_add_u32 s32, s32, s35')
                a('s_mul_i32 s31, s31, 7168')
                a('s_add_u32 s31, s31, s49')
                for z in range(7):
                    a('s_add_u32 m0, s31, %d', z * 1024)
                    a('s_nop 0')
                    a('buffer_load_dwordx4 v%d, s[16:19], s32 offen lds', 20 + z)
                if grp == 0 and mid: mid()
            return 21
        aside('s[36:39]')
        for q in range(7):
            a('s_add_u32 s31, s7, %d', q)
            a('s_cmp_ge_u32 s31, 7')
            a('s_cselect_b32 s32, 7, 0')
            a('s_sub_u32 s31, s31, s32')
            a('s_lshl_b32 s32, s31, 16')
            a('s_add_u32 s32, s32, s50')
            a('s_and_b32 s30, s31, 1')
            a('s_lshl_b32 s30, s30, 7')
            a('v_xor_b32 v6, s30, v4')
            a('s_lshl_b32 s31, s31, 12')
            a('s_add_u32 s31, s31, s49')
            for i in range(4):
                a('v_xor_b32 v5, %d, v6', (2 * i) << 4)
                a('s_add_u32 m0, s31, %d', 1024 * i)
                a('s_nop 0')
                a('buffer_load_dwordx4 v5, s[56:59], s32 offen lds')
                if i < 3: a('s_add_u32 s32, s32, 16384')
            if q == 0 and mid: mid()
        return 24
    def raddr():
        a('s_lshr_b32 s51, s3, 1')
        a('s_and_b32 s52, s3, 1')
        a('v_xor_b32 v6, v3, v2')
        a('v_lshlrev_b32 v6, 4, v6')
        a('v_lshrrev_b32 v7, 2, v2')
        a('v_lshlrev_b32 v7, 3, v7')
        a('v_and_b32 v8, 3, v0')
        a('v_add_u32 v7, v7, v8')
        a('v_lshl_add_u32 v7, v7, 9, v6')
        a('s_lshl_b32 s30, s51, 14')
        a('v_add_u32 v7, s30, v7')
        a('v_lshl_add_u32 v9, v2, 9, v6')
        a('s_mul_i32 s30, s52, 57344')
        a('s_add_u32 s30, s30, %d', LB)
        a('v_add_u32 v9, s30, v9')
        a('v_lshrrev_b32 v10, 2, v2')
        a('v_lshl_add_u32 v10, v3, 3, v10')
        a('s_movk_i32 s30, 448')
        a('v_mul_u32_u24 v10, s30, v10')
        a('v_lshl_add_u32 v10, v8, 3, v10')
        a('s_mul_i32 s30, s52, 224')
        a('s_add_u32 s30, s30, %d', LB)
        a('v_add_u32 v10, s30, v10')
    def warm(mat):
        a('v_bfe_u32 v5, v0, 2, 3')
        a('v_lshlrev_b32 v5, 13, v5')
        a('v_lshl_add_u32 v5, v8, 7, v5')
        a('s_lshl_b32 s30, s6, 16')
        a('s_add_u32 s30, s30, s28')
        a('buffer_load_dword v14, v5, %s, s30 offen', 's[60:63]' if mat else 's[36:39]')
        if mat:
            a('v_lshrrev_b32 v5, 2, v0')
            a('v_min_u32 v5, 9, v5')
            a('s_movk_i32 s31, 896')
            a('v_mul_u32_u24 v5, s31, v5')
            a('v_lshl_add_u32 v5, v8, 7, v5')
            a('s_mul_i32 s31, s7, 9*896')
            a('s_add_u32 s31, s31, s35')
            a('buffer_load_dword v15, v5, s[16:19], s31 offen')
        else:
            a('s_lshl_b32 s31, s7, 16')
            a('s_add_u32 s31, s31, s50')
            a('buffer_load_dword v15, v5, s[56:59], s31 offen')
    ACC, AF, BF = 48, 104, 120
    def gemm(mat):
        seq = [(es, t) for es in range(8) for t in range(7)]
        def rdA(es):
            a('v_xor_b32 v11, %d, v7', es << 6)
            for u in range(2): a('ds_read_b128 %s, v11 offset:%d', V(AF + 8 * (es & 1) + 4 * u, 4), LA + 2048 * u)
        def rdB(i):
            es, t = seq[i]
            b = BF + 4 * (i % 4)
            if t == 0:
                if mat == 0: a('v_xor_b32 v12, %d, v9', es << 6)
                else: a('v_add_u32 v12, %d, v10', es * 14336)
            if mat == 0: a('ds_read_b128 %s, v12 offset:%d', V(b, 4), t * 8192)
            else:
                a('ds_read_b64_tr_b16 %s, v12 offset:%d', V(b, 2), t * 32)
                a('ds_read_b64_tr_b16 %s, v12 offset:%d', V(b + 2, 2), t * 32 + 1792)
        per = 2 if mat else 1
        rdA(0)
        issued = []
        for i in range(3): rdB(i); issued.append(per)
        for i, (es, t) in enumerate(seq):
            n = 0
            if t == 1 and es < 7: rdA(es + 1); n += 2
            if i + 3 < len(seq): rdB(i + 3); n += per
            issued.append(n)
            a('s_waitcnt lgkmcnt(%d)', sum(issued[i + 1:]))
            for u in range(2):
                c = ACC + (t * 2 + u) * 4
                a('v_mfma_f32_16x16x32_bf16 %s, %s, %s, %s', V(c, 4), V(AF + 8 * (es & 1) + 4 * u, 4), V(BF + 4 * (i % 4), 4), V(c, 4) if es else '0')
    def store(mat):
        a('s_mul_i32 s30, s4, 28')
        a('s_mul_i32 s31, s6, 14')
        a('s_add_u32 s30, s30, s31')
        a('s_mul_i32 s31, s52, 7')
        a('s_add_u32 s30, s30, s31')
        a('s_mul_i32 s30, s30, 14')
        a('s_lshl_b32 s31, s7, 1')
        a('s_add_u32 s30, s30, s31')
        a('s_add_u32 s30, s30, s51')
        a('s_lshl_b32 s30, s30, 10')
        if mat: a('s_add_u32 s30, s30, 0x%x', WF_C)
        a('s_mov_b32 s31, 0x%x', fbits(LOG2E / 16.0))
        for t in range(7):
            c = ACC + t * 8
            if mat == 0:
                for r in range(8): a('v_mul_f32 v%d, s31, v%d', c + r, c + r)
            o = 136 + 4 * t
            for d in range(4): a('v_cvt_pk_bf16_f32 v%d, v%d, v%d', o + d, c + 2 * d, c + 2 * d + 1)
            a('buffer_store_dwordx4 %s, v1, s[8:11], s30 offen %s', V(o, 4), WST)
            if t < 6: a('s_add_u32 s30, s30, 14336')
    def flow(m1):
        m2 = 1 - m1
        n = issue(m1, lambda: misc_loads(a))
        raddr()
        a('s_waitcnt vmcnt(%d)', n)
        misc_rest(a)
        wait_janitor(a)
        set_flag(a, FLG_M, 's53')
        tl(a, 2)
        warm(m2)
        gemm(m1)
        a('s_barrier')
        store(m1)
        if OVERLAP: issue(m2, None)
        set_flag(a, FLG_C if m1 else FLG_A, 's53', 36 if OVERLAP else 0)
        tl(a, 3)
        if not OVERLAP: issue(m2, None)
        a('s_waitcnt vmcnt(0)')
        a('s_barrier')
        gemm(m2)
        store(m2)
        set_flag(a, FLG_C if m2 else FLG_A, 's53')
        tl(a, 1)
    l1, l2 = a.new('fa'), a.new('fe')
    if BYK: a('s_bitcmp1_b32 s7, 0')
    else: a('s_cmp_ge_u32 s4, %d', AFIRST)
    a('s_cbranch_scc1 %s', l1)
    flow(1)
    a('s_branch %s', l2)
    a.label(l1)
    flow(0)
    a.label(l2)

def wait_started(a):
    lp, ok = a.new('ws'), a.new('wo')
    a('s_cmp_eq_u32 s3, 0')
    a('s_cbranch_scc0 %s', ok)
    a('s_mov_b32 s14, 0')
    a('s_mov_b32 s31, 0x%x', MEME + UNIT)
    a.label(lp)
    a('buffer_load_dword v244, off, s[8:11], s31 sc1')
    a('s_waitcnt vmcnt(0)')
    a('v_cmp_eq_u32 vcc, -1, v244')
    a('s_cbranch_vccz %s', ok)
    a('s_sleep 8')
    a('s_add_u32 s14, s14, 1')
    a('s_cmp_lt_u32 s14, %d', SPIN)
    a('s_cbranch_scc1 %s', lp)
    a('s_endpgm')
    a.label(ok)
    a('s_barrier')

def wait_wave_heads(a):
    a('v_min_u32 v243, 55, v0')
    a('v_lshlrev_b32 v243, 2, v243')
    a('s_mul_i32 s31, s3, 224')
    a('s_add_u32 s31, s31, 0x%x', FLG_C)
    wait_words(a, 'v243', 's31', 1, wave0_only=False)

def wait_part(a, base, hreg, nheads, odd):
    a('v_min_u32 v243, %d, v0', 14 * nheads - 1)
    a('s_movk_i32 s31, 4682')
    a('v_mul_u32_u24 v242, s31, v243')
    a('v_lshrrev_b32 v242, 16, v242')
    a('v_mul_u32_u24 v242, 14, v242')
    a('v_sub_u32 v241, v243, v242')
    a('v_and_b32 v241, 2, v241')
    a('v_cmp_eq_u32 vcc, %d, v241', 2 if odd else 0)
    a('v_add_u32 v242, %d, v242', 2 if odd else 0)
    a('s_nop 0')
    a('v_cndmask_b32 v243, v242, v243, vcc')
    a('v_lshlrev_b32 v243, 2, v243')
    a('s_mul_i32 s31, %s, 56', hreg)
    a('s_add_u32 s31, s31, 0x%x', base)
    wait_words(a, 'v243', 's31', 1, wave0_only=False)
```

```python
from common import *
import fold

L_MEM = 0
L_T = 7680
L_S = L_T + 8192
L_X = L_S + 12288
ZXS = 28672 + 512
L_C = 7680
L_V = L_C + 4096
L_D = 32768
L_W = 98304
TEAM_LDS = L_W + 57344
SPIN = 200000
OOB = 0x8000000
NTEAM = 32

ORD_S = ([(0, 0), (1, 0), (0, 1), (1, 1), (2, 0), (3, 0), (2, 1), (3, 1), (4, 0), (5, 0), (6, 0), (4, 1), (5, 1), (6, 1)]
         + [(t, 2) for t in range(7)] + [(t, l) for t in range(7) for l in range(3, 7)])
ORD_C = [(t, l) for l in range(7) for t in range(8)]
CSPILL = [80, 88, 96, 104, 112, 52, 60]
def Wreg(i, n=8, off=0):
    if i >= 49: return V(CSPILL[i - 49] + off, n)
    return A(8 * i + off, n) if i < 32 else V(120 + 8 * (i - 32) + off, n)

def gen_team(a, dev=False):
    dev = set(dev.split('+')) if dev else set()
    def stamp(k):
        if 'st%d' % k in dev or 'stall' in dev: a('s_memtime s[%d:%d]', 64 + 2 * k, 65 + 2 * k)
    def bits(dst, spec, first=True):
        for pos, w, sh in spec:
            a('v_bfe_u32 v3, v0, %d, %d', pos, w)
            if first: a('v_lshlrev_b32 v%d, %d, v3', dst, sh); first = False
            else: a('v_lshl_add_u32 v%d, v3, %d, v%d', dst, sh, dst)
    def spin(lp):
        a('s_add_u32 s14, s14, 1')
        a('s_cmp_lt_u32 s14, %d', SPIN)
        a('s_cbranch_scc1 %s', lp)
        a('s_endpgm')
    def xdma():
        a('s_mov_b32 m0, s36')
        a('s_add_u32 s30, s34, 4096')
        for i in range(4): a('buffer_load_dwordx4 v1, s[8:11], s34 offen offset:%d sc1 lds', 1024 * i)
        a('s_add_u32 m0, s36, 4096')
        a('s_add_u32 s34, s34, %d', XSEG)
        for i in range(3): a('buffer_load_dwordx4 v1, s[8:11], s30 offen offset:%d sc1 lds', 1024 * i)
    def ddma(src0, src1):
        r = [['buffer_load_dwordx4 v1, s[8:11], %s offen offset:%d sc1 lds' % (src0, 1024 * i)] for i in range(4)]
        r[3].append('s_add_u32 m0, s37, 16384')
        r += [['buffer_load_dwordx4 v1, s[8:11], %s offen offset:%d sc1 lds' % (src1, 1024 * i)] for i in range(4)]
        return r
    def fcheck(src, tmp, seg):
        a('v_readfirstlane_b32 s29, v%d', src)
        a('s_cmp_le_u32 s29, %s', seg)
    def dwait(seg):
        lp, ok = a.new('dw'), a.new('dk')
        a('s_mov_b32 s14, 0')
        a.label(lp)
        a('buffer_load_dword v18, off, s[8:11], s49 sc1')
        a('s_waitcnt vmcnt(0)')
        fcheck(18, 3, seg)
        a('s_cbranch_scc0 %s', ok)
        a('s_sleep 1')
        spin(lp)
        a.label(ok)
    def xcc_gather():
        lp, l2 = a.new('xc'), a.new('xo')
        a('v_min_u32 v20, %d, v0', NTEAM - 1)
        a('v_lshlrev_b32 v20, 2, v20')
        a('s_mov_b32 s14, 0')
        a.label(lp)
        a('buffer_load_dword v3, v20, s[44:47], 0 offen sc1')
        a('s_waitcnt vmcnt(0)')
        a('v_cmp_eq_u32 vcc, 0, v3')
        a('s_cbranch_vccz %s', l2)
        spin(lp)
        a.label(l2)
    def frag_offsets():
        a('s_lshl_b32 s33, s3, 1')
        for lam in range(7):
            a('s_lshl_b32 s%d, s33, 10', 15 + lam)
            if lam < 6:
                a('s_add_u32 s33, s33, 1')
                a('s_cmp_ge_u32 s33, 7')
                a('s_cselect_b32 s32, 7, 0')
                a('s_sub_u32 s33, s33, s32')
    def wload(order, tile_off, early_odd, between):
        for ps in range(2):
            for lam in range(7):
                l = a.new('wl')
                a('s_bitcmp1_b32 s%d, 10', 15 + lam)
                a('s_cbranch_scc%d %s', 0 if (early_odd ^ ps) else 1, l)
                a('s_waitcnt vmcnt(40)')
                a('s_lshl_b32 s33, s%d, 1', 15 + lam)
                a('s_add_u32 s33, s33, s30')
                for i, (t, lm) in enumerate(order):
                    if lm != lam: continue
                    a('s_add_u32 s32, s33, %d', tile_off(t))
                    if i >= 49:
                        a('s_add_u32 m0, s29, %d', 2048 * (i - 49))
                        a('s_nop 0')
                        a('buffer_load_dwordx4 v1, s[8:11], s32 offen sc1 lds')
                        a('buffer_load_dwordx4 v1, s[8:11], s32 offen offset:1024 sc1 lds')
                    else:
                        a('buffer_load_dwordx4 %s, v1, s[8:11], s32 offen sc1', Wreg(i, 4, 0))
                        a('buffer_load_dwordx4 %s, v1, s[8:11], s32 offen offset:1024 sc1', Wreg(i, 4, 4))
                a.label(l)
            if ps == 0: between()

    a.label('team')
    if dev: a('s_memrealtime s[90:91]')
    a('s_and_b32 s4, s30, 15')
    a('s_lshr_b32 s5, s30, 4')
    a('s_getreg_b32 s31, hwreg(HW_REG_XCC_ID)')
    a('s_and_b32 s31, s31, 15')
    a('s_add_u32 s31, s31, 1')
    a('v_mov_b32 v3, s31')
    a('s_lshl_b32 s32, s30, 2')
    a('buffer_store_dword v3, off, s[44:47], s32 sc1')
    a('v_lshlrev_b32 v1, 4, v0')
    frag_offsets()
    a('s_cmp_ge_u32 s30, 30')
    a('s_cbranch_scc1 export')
    for r in range(4, 16): a('v_mov_b32 v%d, 0', r)
    a('v_and_b32 v3, 2, v0')
    a('v_cmp_eq_u32 s[58:59], 0, v3')
    a('v_mov_b32 v2, 0xeeee')
    a('v_mov_b32 v18, 0x4444')
    a('v_cndmask_b32 v2, v2, v18, s[58:59]')
    a('v_add_u32 v16, s15, v1')
    a('v_add_u32 v17, s16, v1')
    a('s_mov_b32 s49, 0x%x', HZ)
    a('v_cmp_gt_u32 s[62:63], 56, v0')
    if 'nocw' not in dev:
        a('s_getpc_b64 s[32:33]')
        a.label('pcref')
        a('s_add_u32 s32, s32, sloopF-pcref')
        a('s_addc_u32 s33, s33, 0')
        a('s_lshl_b32 s31, s3, 12')
        a('v_lshl_add_u32 v3, v0, 6, s31')
        a('v_min_u32 v3, sloopS-sloopF, v3')
        a('global_load_dword v19, v3, s[32:33]')
    lv, lj = a.new('iv'), a.new('ij')
    a('s_cmp_eq_u32 s5, 1')
    a('s_cbranch_scc1 %s', lv)
    fold.wait_all(a, FLG_M, 256)
    fold.wait_part(a, FLG_A, 's4', 1, True)
    a('s_mul_i32 s30, s4, 28')
    a('s_mul_i32 s32, s3, 7')
    a('s_add_u32 s30, s30, s32')
    a('s_mul_i32 s30, s30, 14336')
    wload(ORD_S, lambda t: t * 14336, 1, lambda: fold.wait_head(a, FLG_A, 's4', 14, R=24, w0=False))
    a('v_and_b32 v3, 8, v0')
    a('v_cmp_eq_u32 vcc, 0, v3')
    a('s_nop 1')
    a('v_cndmask_b32 v14, 0, 1.0, vcc')
    bits(4, [(2, 2, 6), (0, 1, 5), (4, 2, 3), (1, 1, 2)])
    bits(5, [(4, 2, 8), (0, 4, 3)])
    a('s_lshl_b32 s30, s3, 11')
    a('s_add_u32 s30, s30, %d', L_T)
    a('v_add_u32 v4, s30, v4')
    a('v_add_u32 v5, s30, v5')
    a('s_mul_i32 s30, s3, 3584')
    a('s_add_u32 s30, s30, %d', L_X)
    a('v_add_u32 v6, s30, v1')
    bits(8, [(5, 1, 8), (1, 2, 6), (0, 1, 4), (4, 1, 3)])
    a('s_mul_i32 s30, s3, 1792')
    a('v_add_u32 v8, s30, v8')
    a('v_add_u32 v9, 1024, v8')
    bits(10, [(4, 2, 9), (1, 1, 6), (2, 2, 4), (0, 1, 2)])
    bits(15, [(4, 2, 9), (3, 1, 7), (0, 1, 6), (1, 2, 4)])
    a('s_lshl_b32 s31, s3, 11')
    a('s_add_u32 s31, s31, %d', L_S)
    a('v_add_u32 v10, s31, v10')
    a('v_add_u32 v15, s31, v15')
    a('s_lshl_b32 s31, s3, 10')
    a('s_add_u32 s31, s31, %d', L_S)
    a('v_add_u32 v11, s31, v1')
    a('s_lshl_b32 s30, s4, 9')
    a('s_lshl_b32 s31, s3, 8')
    a('s_add_u32 s30, s30, s31')
    a('v_lshl_add_u32 v12, v0, 2, s30')
    bits(13, [(4, 2, 4), (0, 2, 2)])
    a('s_lshl_b32 s30, s4, 7')
    a('s_lshl_b32 s31, s3, 6')
    a('s_add_u32 s30, s30, s31')
    a('s_add_u32 s30, s30, 8192')
    a('v_add_u32 v13, s30, v13')
    a('v_and_b32 v3, 12, v0')
    a('v_cmp_eq_u32 vcc, 0, v3')
    a('v_mov_b32 v18, 0x%x', OOB)
    a('s_nop 0')
    a('v_cndmask_b32 v13, v18, v13, vcc')
    a('v_mov_b32 v3, 0')
    a('v_lshlrev_b32 v18, 2, v0')
    a('ds_write_b32 v18, v3 offset:%d', L_MEM + 7168)
    for w in range(4): a('ds_write_b32 v18, v3 offset:%d', L_T + w * 2048 + 1792)
    a('v_add_u32 v18, %d, v18', L_X + 28672)
    for o in (0, 256, ZXS, ZXS + 256): a('ds_write_b32 v18, v3 offset:%d', o)
    a('s_mov_b32 s50, %d', ZXS)
    a('s_mul_i32 s30, s3, 7168')
    a('s_add_u32 s34, s30, 0x%x', XF)
    a('s_add_u32 s36, s30, %d', L_X)
    xdma()
    a('s_lshl_b32 s31, s4, 10')
    a('s_add_u32 s27, s31, 0x%x', PR)
    a('s_cmp_lt_u32 s4, 10')
    a('s_cselect_b32 s27, s27, 0x%x', OOB)
    a('s_cmp_eq_u32 s3, 2')
    a('s_cselect_b32 s27, s27, 0x%x', OOB)
    a('s_lshl_b32 s31, s4, 2')
    a('s_add_u32 s31, s31, s3')
    if 'thalf' in dev:
        a('s_mul_i32 s35, s31, 3584')
        a('v_lshl_add_u32 v7, v0, 7, s35')
        a('v_lshrrev_b32 v3, 14, v7')
        a('v_lshl_add_u32 v7, v3, 14, v7')
        a('v_add_u32 v7, 0x%x, v7', DD + 2 * DSEG + 16384)
        a('v_cmp_gt_u32 s[62:63], 28, v0')
    elif 't34' in dev:
        a('s_mul_i32 s35, s31, 42')
        a('v_add_u32 v7, s35, v0')
        a('s_movk_i32 s35, 2731')
        a('v_mul_u32_u24 v3, s35, v7')
        a('v_lshrrev_b32 v3, 16, v3')
        a('v_lshl_add_u32 v7, v3, 3, v7')
        a('v_lshlrev_b32 v7, 7, v7')
        a('v_add_u32 v7, 0x%x, v7', DD + 2 * DSEG + 1024)
        a('v_cmp_gt_u32 s[62:63], 42, v0')
    else:
        a('s_mul_i32 s35, s31, 7168')
        a('s_add_u32 s35, s35, 0x%x', DD + 2 * DSEG)
        a('v_lshl_add_u32 v7, v0, 7, s35')
    a('s_lshl_b32 s31, s31, 9')
    a('s_add_u32 s31, s31, 0x%x', XF + 2 * XSEG)
    a('v_and_b32 v3, 3, v0')
    a('v_lshl_add_u32 v3, v3, 7, s31')
    if 'tx' in dev: a('v_cmp_gt_u32 s[62:63], 0, v0'); a('s_nop 1')
    a('v_cndmask_b32 v7, v3, v7, s[62:63]')
    a('s_mov_b32 s38, 0x%x', OOB)
    a('s_branch %s', lj)
    a.label(lv)
    a('s_lshl_b32 s34, s3, 2')
    fold.wait_part(a, FLG_C, 's34', 4, False)
    a('s_mul_i32 s30, s3, 4*28')
    a('s_lshl_b32 s32, s4, 1')
    a('s_add_u32 s30, s30, s32')
    a('s_mul_i32 s30, s30, 14336')
    a('s_add_u32 s30, s30, 0x%x', WF_C)
    a('s_mul_i32 s29, s3, 14336')
    a('s_add_u32 s29, s29, %d', L_W)
    wload(ORD_C, lambda t: ((t & 3) * 28 + (t >> 2)) * 14336, 0, lambda: fold.wait_head(a, FLG_C, 's34', 56, R=24, w0=False))
    a('v_add_u32 v14, s29, v1')
    for r, i in zip((4, 5, 7, 12, 13), range(5)): a('v_add_u32 v%d, s%d, v1', r, 17 + i)
    bits(6, [(4, 2, 7), (2, 2, 5), (0, 1, 4)])
    a('s_mul_i32 s30, s3, 1536')
    a('s_sub_u32 s30, 8192, s30')
    a('v_add_u32 v6, s30, v6')
    a('v_mov_b32 v18, 0x%x', OOB)
    a('v_cndmask_b32 v6, v18, v6, s[58:59]')
    bits(8, [(4, 2, 7), (0, 4, 2)])
    a('s_lshl_b32 s30, s3, 9')
    a('s_add_u32 s30, s30, %d', L_C)
    a('v_add_u32 v8, s30, v8')
    bits(10, [(5, 1, 9), (2, 2, 7), (0, 1, 6), (4, 1, 5), (1, 1, 4)])
    a('s_lshl_b32 s48, s3, 11')
    a('s_add_u32 s48, s48, %d', L_V)
    bits(9, [(4, 2, 7), (2, 1, 6), (0, 2, 4), (3, 1, 3)])
    a('s_and_b32 s31, s3, 1')
    a('s_lshl_b32 s30, s31, 11')
    a('s_add_u32 s30, s30, %d', L_C)
    a('v_add_u32 v9, s30, v9')
    a('s_lshl_b32 s30, s4, 9')
    a('s_lshl_b32 s31, s31, 8')
    a('s_add_u32 s30, s30, s31')
    a('v_lshl_add_u32 v11, v0, 2, s30')
    a('s_lshl_b32 s30, s3, 12')
    a('s_lshl_b32 s31, s4, 15')
    a('s_add_u32 s35, s30, s31')
    a('s_add_u32 s35, s35, 0x%x', DD)
    a('s_add_u32 s37, s30, %d', L_D)
    fold.wait_all(a, FLG_M, 256, R=24)
    dwait('0')
    a('s_mov_b32 m0, s37')
    a('s_add_u32 s30, s35, 16384')
    for grp in ddma('s35', 's30'):
        for i in grp: a(i)
        a('s_nop 0')
    a('s_add_u32 s35, s35, %d', DSEG)
    a('s_mov_b32 s38, s35')
    a('s_add_u32 s6, s35, 16384')
    a('s_mov_b32 s40, 0x%x', OOB)
    a('s_mov_b32 s13, 1')
    a.label(lj)
    xcc_gather()
    a('v_readfirstlane_b32 s31, v3')
    a('s_mov_b32 s12, 0')
    a('s_add_u32 s32, s15, 0x%x', MEMX)
    a('s_add_u32 s33, s16, 0x%x', MEMX)
    a('v_cmp_ne_u32 vcc, s31, v3')
    a('s_waitcnt lgkmcnt(0)')
    if dev:
        lc = a.new('cal')
        a('s_memrealtime s[82:83]')
        a('s_waitcnt lgkmcnt(0)')
        a.label(lc)
        a('s_memrealtime s[84:85]')
        a('s_memtime s[86:87]')
        a('s_waitcnt lgkmcnt(0)')
        a('s_cmp_eq_u32 s84, s82')
        a('s_cbranch_scc1 %s', lc)
    if 'slow' in dev: a('s_branch tslow')
    a('s_cbranch_vccnz tslow')
    a('s_cmp_eq_u32 s5, 1')
    a('s_cbranch_scc1 cloopF')
    a('s_branch sloopF')
    a.label('tslow')
    a('s_cmp_eq_u32 s5, 1')
    a('s_cbranch_scc1 cloopS')
    a('s_branch sloopS')
    a.label('tdie')
    a('s_endpgm')
    a.label('export')
    fold.wait_all(a, FLG_M, 256)
    a('s_cmp_eq_u32 s30, 31')
    a('s_cbranch_scc1 relay')
    a('s_mov_b32 s12, 1')
    a('v_min_u32 v7, 55, v0')
    a('v_lshlrev_b32 v7, 7, v7')
    a('s_mul_i32 s31, s3, %d', UNIT)
    a('s_add_u32 s31, s31, 0x%x', MEMX)
    a('buffer_load_dword v9, v7, s[8:11], s31 offen sc1')
    a('s_lshl_b32 s31, s3, 13')
    a('s_add_u32 s31, s31, 0x%x', PR)
    a('v_lshlrev_b32 v8, 7, v0')
    a('buffer_load_dword v9, v8, s[8:11], s31 offen sc1')
    a('s_add_u32 s31, s31, 8192')
    a('buffer_load_dword v9, v8, s[8:11], s31 offen sc1')
    if 'xw' in dev:
        a('s_mul_i32 s31, s3, 7168')
        a('s_add_u32 s31, s31, 0x%x', XF)
        for k in range(1, 4):
            a('s_add_u32 s31, s31, %d', XSEG)
            a('buffer_load_dword v9, v7, s[8:11], s31 offen sc1')
    a.label('exloop')
    a('s_mul_i32 s30, s12, %d', UNIT)
    a('s_add_u32 s34, s30, 0x%x', MEMX)
    a('s_add_u32 s32, s34, s15')
    a('s_add_u32 s33, s34, s16')
    a('s_add_u32 s34, s34, %d', 3 * UNIT)
    a('s_cmp_eq_u32 s3, 0')
    a('s_cselect_b32 s34, s34, 0x%x', OOB)
    a('buffer_load_dword v9, v7, s[8:11], s34 offen sc1')
    if 'xw' in dev:
        a('s_lshl_b32 s34, s12, 2')
        a('s_add_u32 s34, s34, s3')
        a('s_mul_i32 s34, s34, 7168')
        a('s_add_u32 s34, s34, 0x%x', XF + 3 * XSEG)
        a('buffer_load_dword v9, v7, s[8:11], s34 offen sc1')
    a('s_mov_b32 s14, 0')
    lp = a.new('ex')
    a.label(lp)
    a('buffer_load_dwordx4 v[20:23], v1, s[8:11], s32 offen sc1')
    a('buffer_load_dwordx4 v[24:27], v1, s[8:11], s33 offen sc1')
    a('s_add_u32 s14, s14, 1')
    a('s_cmp_lt_u32 s14, %d', SPIN)
    a('s_cbranch_scc0 tdie')
    a('s_waitcnt vmcnt(0)')
    a('v_max3_u32 v3, v20, v21, v22')
    a('v_max3_u32 v4, v23, v24, v25')
    a('v_max3_u32 v3, v26, v27, v3')
    a('v_max_u32 v3, v4, v3')
    a('v_cmp_eq_u32 vcc, -1, v3')
    a('s_cbranch_vccnz %s', lp)
    a('s_sub_u32 s32, s32, %d', MEMX - MEME)
    a('s_sub_u32 s33, s33, %d', MEMX - MEME)
    a('s_barrier')
    a('buffer_store_dwordx4 v[20:23], v1, s[8:11], s32 offen sc1')
    a('buffer_store_dwordx4 v[24:27], v1, s[8:11], s33 offen sc1')
    a('s_add_u32 s12, s12, 1')
    a('s_cmp_lt_u32 s12, 63')
    a('s_cbranch_scc1 exloop')
    a('s_endpgm')
    a.label('relay')
    a('s_cmp_eq_u32 s3, 0')
    a('s_cbranch_scc0 tdie')
    xcc_gather()
    a('v_readfirstlane_b32 s31, v3')
    a('s_mov_b32 s12, 0')
    a('s_mov_b32 s14, 0')
    a('s_mov_b32 s49, 0x%x', DPROG)
    a('v_cmp_ne_u32 s[62:63], s31, v3')
    a('v_and_b32 v3, 31, v0')
    a('v_cmp_gt_u32 s[60:61], 28, v3')
    a('v_lshlrev_b32 v4, 2, v0')
    a('v_lshrrev_b32 v5, 5, v0')
    a('s_mov_b32 s48, 0x%x', HZ)
    if 'slow' in dev: a('s_mov_b64 s[62:63], -1')
    a.label('reloop')
    a('buffer_load_dword v6, v4, s[8:11], s49 offen sc1')
    a('s_add_u32 s14, s14, 1')
    a('s_cmp_lt_u32 s14, %d', SPIN)
    a('s_cbranch_scc0 tdie')
    a('s_mov_b32 s13, s12')
    a('s_waitcnt vmcnt(0)')
    a('v_lshl_add_u32 v6, v6, 1, v5')
    a.label('reinc')
    a('v_cmp_ge_u32 vcc, s12, v6')
    a('s_nop 1')
    a('s_and_b64 vcc, vcc, s[60:61]')
    a('s_cbranch_scc1 repub')
    a('s_add_u32 s12, s12, 1')
    a('s_cmp_lt_u32 s12, 64')
    a('s_cbranch_scc1 reinc')
    a.label('repub')
    a('s_cmp_eq_u32 s12, s13')
    a('s_cbranch_scc1 reloop')
    a('v_mov_b32 v7, s12')
    a('s_cmp_eq_u64 s[62:63], 0')
    a('s_cbranch_scc0 reslow')
    a('buffer_store_dword v7, off, s[8:11], s48')
    a('s_branch renext')
    a.label('reslow')
    a('buffer_store_dword v7, off, s[8:11], s48 sc1')
    a.label('renext')
    a('s_cmp_lt_u32 s12, 63')
    a('s_cbranch_scc1 reloop')
    a('s_endpgm')

    def loop(role, mode):
        SC = ' sc1' if mode == 'S' else ''
        ORDER = ORD_S if role == 's' else ORD_C
        TACC = 20
        MF = 48 if role == 's' else 52
        SB, TA, SACC = 76, 100, 108
        VB, PF, CACC, DB, RT = 52, 60, 72, 80, 112
        TMP = TA if role == 's' else 19
        tails = []
        a.l.append('.p2align 6')
        a.label(role + 'loop' + mode)
        if dev:
            l = a.new('pp')
            a('s_cmp_eq_u32 s12, 8')
            a('s_cbranch_scc0 %s', l)
            a('s_memtime s[78:79]')
            a('s_memrealtime s[88:89]')
            a.label(l)
        if 'stall' in dev and role == 'c':
            a('s_waitcnt lgkmcnt(0)')
            a('s_mov_b32 s70, s76')
        def mpoll():
            a('buffer_load_dwordx4 %s, v1, s[8:11], s32 offen sc1', V(MF, 4))
            a('buffer_load_dwordx4 %s, v1, s[8:11], s33 offen sc1', V(MF + 4, 4))
        NE = 0
        if role == 'c':
            for x in dev:
                if x.startswith('ne'): NE = int(x[2:])
            dd = ddma('s38', 's6') if 'nod' not in dev else []
            a('s_xor_b32 s37, s37, 0x18000')
            a('s_cmp_lg_u32 s13, 0')
            lslow, lback = a.new('dq'), a.new('db')
            a('s_cbranch_scc1 %s', lslow)
            a.label(lback)
            tails.append(('dw', lslow, lback))
            a('s_mov_b32 m0, s37')
            a('s_nop 0')
            for grp in dd[:NE]:
                for ins in grp: a(ins)
                if len(grp) > 1: a('s_nop 0')
        if role == 'c': mpoll()
        for r in range(MF - TACC): a('v_mov_b32 v%d, 0', TACC + r)
        if role == 'c': mpoll()
        sc = ['s_and_b32 s30, s12, 3', 's_mul_i32 s22, s30, %d' % PSLOT, 's_add_u32 s22, s22, 0x%x' % PR,
              's_add_u32 s32, s32, %d' % UNIT, 's_add_u32 s33, s33, %d' % UNIT]
        if role == 's':
            for r in range(12): a('v_mov_b32 v%d, 0', SACC + r)
            for i in range(5): a('v_add_u32 v%d, s%d, v1', TA + 2 + i, 17 + i)
            radr = [TA + 2 + i for i in range(5)]
            if 'xt' in dev:
                a('s_add_u32 s36, s36, s50')
                a('s_mov_b32 m0, s36')
            sc += ['s_add_u32 s31, s12, 3', 's_and_b32 s31, s31, 3', 's_mul_i32 s24, s31, %d' % PSLOT, 's_add_u32 s24, s24, s27',
                   's_min_u32 s24, s24, 0x%x' % OOB]
        else:
            radr = [4, 5, 7, 12, 13]
            sc += ['s_lshl_b32 s31, s3, 11', 's_add_u32 s43, s22, s31', 's_sub_u32 s42, s32, s15', 's_xor_b32 s30, s37, 0x18000']
        MD = 2
        if role == 's':
            MD = 3
            for x in dev:
                if x.startswith('md'): MD = int(x[2:])
            for r in range(8): a('v_mov_b32 v%d, -1', MF + r)
            if 'now' not in dev: a('s_waitcnt vmcnt(0)')
        a('s_mov_b32 s14, 0')
        def smf(i):
            t, lam = ORDER[i]
            if 'nomf' + role in dev: a('s_nop 3'); return
            if 'chalf' in dev and role == 'c' and i >= 42: return
            for x in dev:
                if x.startswith('cs') and role == 'c': a('s_nop %d', int(x[2:]))
            a('v_smfmac_f32_16x16x64_bf16 %s, %s, %s, v2', V(TACC + 4 * t, 4), V(MF + 4 * lam, 4), Wreg(i))
        lp, lf = a.new('mp'), a.new('mf')
        if role == 'c': a('s_branch %s', lp)
        a.label(lf)
        for x in dev:
            if x.startswith('ms' + role): a('s_sleep %d', int(x[3:]))
        mpoll()
        a('s_add_u32 s14, s14, 1')
        a('s_cmp_lt_u32 s14, %d', SPIN)
        a('s_cbranch_scc0 tdie')
        a.label(lp)
        a('s_waitcnt vmcnt(%d)', 2 * MD - 2)
        a('v_max3_u32 v3, v%d, v%d, v%d', MF, MF + 1, MF + 2)
        a('v_max3_u32 v%d, v%d, v%d, v%d', TMP, MF + 3, MF + 4, MF + 5)
        a('v_max3_u32 v3, v%d, v%d, v3', MF + 6, MF + 7)
        a('v_max_u32 v3, v%d, v3', TMP)
        a('v_cmp_eq_u32 vcc, -1, v3')
        if 'm0' in dev:
            a('ds_write_b128 v16, %s', V(MF, 4))
            a('ds_write_b128 v17, %s', V(MF + 4, 4))
        a('s_cbranch_vccnz %s', lf)
        stamp(0)
        N = len(ORDER)
        gm = [[] for _ in range(N + 8)]
        gv = [[] for _ in range(N + 8)]
        pre = [[] for _ in range(N + 8)]
        rd = ['ds_read_b128 %s, v%d' % (V(MF + 8 + 4 * i, 4), radr[i]) for i in range(5)]
        if 'm0' not in dev:
            gm[0].append('ds_write_b128 v16, %s' % V(MF, 4))
            gm[1].append('ds_write_b128 v17, %s' % V(MF + 4, 4))
        GB = 5
        for x in dev:
            if x.startswith('gb') and role == 's': GB = int(x[2:])
        gm[GB] += ['s_waitcnt lgkmcnt(0)', 's_barrier', rd[0]]
        for i in range(1, 5): gm[GB + i].append(rd[i])
        for k in range(0, len(sc), 2): gv[(8 if role == 'c' else 20) + k // 2] += sc[k:k + 2]
        def place(ins, lo):
            k = lo
            while gm[k]: k += 1
            gm[k] += ins if isinstance(ins, list) else [ins]
            return k
        if role == 's':
            B0 = 21
            def epi(t):
                c = TACC + 4 * t
                return (['v_add_f32 v%d, v%d, v%d' % (c, c, c + 2), 'v_add_f32 v%d, v%d, v%d' % (c + 1, c + 1, c + 3),
                         'v_cvt_pk_bf16_f32 v%d, v%d, v%d' % (c, c, c + 1)], ['ds_write_b32 v4, v%d offset:%d' % (c, 256 * t)])
            for t in range(6):
                v, m = epi(t)
                for i, ins in enumerate(v): gv[B0 + 4 * t + 7 + i].append(ins)
                gm[B0 + 4 * t + 10].append(m[0])
            place('ds_read_b64_tr_b16 %s, v5' % V(TA, 2), B0 + 23)
            place('ds_read_b64_tr_b16 %s, v5 offset:128' % V(TA + 2, 2), B0 + 24)
            def brd(step, xb0, xb1, mb):
                r = []
                for kt, b in ((0, xb0), (1, xb1)):
                    for hh in range(2):
                        r.append('ds_read_b128 %s, v6 offset:%d' % (V(b + 4 * hh, 4), kt * 14336 + (2 * step + hh) * 1024))
                ad = 'v8' if step == 0 else 'v9'
                for hh in range(2):
                    for qq in range(2):
                        r.append('ds_read2_b32 %s, %s offset0:%d offset1:%d' % (V(mb + 4 * hh + 2 * qq, 2), ad, 128 * hh + qq, 128 * hh + qq + 8))
                return r
            place('buffer_load_dword v18, off, s[8:11], s49 sc1', GB)
            place('buffer_load_dword v19, v7, s[8:11], s38 offen' if 'notouch' not in dev else 'buffer_load_dword v19, off, s[8:11], s49 sc1', GB)
            if 'xt' in dev:
                xl = [['buffer_load_dwordx4 v1, s[8:11], s34 offen offset:%d sc1 lds' % (1024 * i)] for i in range(4)]
                xl[3] += ['s_add_u32 m0, s36, 4096', 's_add_u32 s28, s34, 4096']
                xl += [['buffer_load_dwordx4 v1, s[8:11], s28 offen offset:%d sc1 lds' % (1024 * i)] for i in range(3)]
                k, xs = GB + 7, 4
                for x in dev:
                    if x.startswith('xs'): xs = int(x[2:])
                for grp in xl: k = place(grp, k) + xs
            BL = 12
            for x in dev:
                if x.startswith('bl'): BL = int(x[2:])
            for ins in brd(0, SB, SB + 8, SB + 16): place(ins, BL)
            b1 = brd(1, TACC, TACC + 8, MF)
            k = 20
            while gm[k]: k += 1
            yv = sum(1 for kk in range(k) for x in gm[kk] if x.startswith('buffer_'))
            k = place(['s_waitcnt vmcnt(%d)' % yv, b1[4]], 20)
            for ins in b1[5:]: place(ins, k)
            for ins in b1[0:2]: place(ins, B0 + 15)
            for ins in b1[2:4]: place(ins, B0 + 23)
            def younger_ds(k0, k1): return sum(1 for kk in range(k0, k1) for x in gm[kk] if x.startswith('ds_'))
            pre[14].append('s_waitcnt lgkmcnt(%d)' % younger_ds(GB + 1, 14))
            pre[B0].append('s_waitcnt lgkmcnt(%d)' % younger_ds(GB + 5, B0))
        else:
            pre[16].append('s_waitcnt lgkmcnt(4)')
            pre[24].append('s_waitcnt lgkmcnt(0)')
            sp = 4
            for x in dev:
                if x.startswith('sp'): sp = int(x[2:])
            rest = dd[NE:]
            for i, grp in enumerate(rest): gm[12 + sp * i] += grp
            gm[10].append('buffer_load_dword v18, off, s[8:11], s49 sc1')
            wr = ['ds_read_b128 %s, v14 offset:%d' % (V(CSPILL[i >> 1] + 4 * (i & 1), 4), 1024 * i) for i in range(14)]
            for ins in wr[:10]: place(ins, 24)
            k = 38
            while gm[k]: k += 1
            younger = sum(1 for kk in range(k) for x in gm[kk] if x.startswith('buffer_'))
            k = place(['s_waitcnt vmcnt(%d)' % younger, wr[10]], 38)
            for ins in wr[11:]: place(ins, k)
            pre[49].append('s_waitcnt lgkmcnt(0)')
            gv[20].append('v_add_u32 v15, s30, v1')
        for k in range(N):
            for ins in pre[k]: a(ins)
            smf(k)
            for ins in gm[k] + gv[k]: a(ins)
        stamp(1)
        if role == 's':
            for kk in range(N, N + 3):
                for ins in gm[kk] + gv[kk]: a(ins)
            assert not any(gm[N + 3:]) and not any(gv[N + 3:])
            a('s_cmp_lt_u32 s3, 2')
            a('s_nop 1')
            v, m = epi(6)
            for ins in v + m: a(ins)
            a('ds_read_b64_tr_b16 %s, v5 offset:1024', V(TA + 4, 2))
            a('ds_read_b64_tr_b16 %s, v5 offset:1152', V(TA + 6, 2))
            a('s_waitcnt lgkmcnt(7)')
            for kt in range(3):
                a('v_smfmac_f32_16x16x64_bf16 %s, %s, %s, v2', V(SACC + 4 * kt, 4), V(TA, 4), V(SB + 8 * kt, 8))
            a('s_waitcnt lgkmcnt(0)')
            for kt, b in enumerate((TACC, TACC + 8, MF)):
                a('v_smfmac_f32_16x16x64_bf16 %s, %s, %s, v2', V(SACC + 4 * kt, 4), V(TA + 4, 4), V(b, 8))
            a('s_nop %d', 5 if 'tight' not in dev else 1)
            def sadd(kt):
                c = SACC + 4 * kt
                if 'nopk' not in dev: a('v_pk_add_f32 %s, %s, %s', V(c, 2), V(c, 2), V(c + 2, 2))
                else:
                    a('v_add_f32 v%d, v%d, v%d', c, c, c + 2)
                    a('v_add_f32 v%d, v%d, v%d', c + 1, c + 1, c + 3)
            def swr(kt):
                c = SACC + 4 * kt
                if kt < 2: a('ds_write2_b32 v10, v%d, v%d offset0:%d offset1:%d', c, c + 1, 32 * kt, 32 * kt + 64)
                else: a('ds_write2_b32 v15, v%d, v%d offset0:2 offset1:66', c, c + 1)
            if 'so0' not in dev: sadd(0); sadd(1); swr(0); sadd(2); swr(1); swr(2)
            else:
                for kt in range(3): sadd(kt); swr(kt)
            lns, ljn = a.new('ns'), a.new('jn')
            a('s_cbranch_scc0 %s', lns)
            tails.append(('nv', lns, ljn))
            def warm(key, regs):
                n = 0
                for x in dev:
                    if x.startswith(key): n = int(x[len(key):])
                for i in range(n):
                    a('v_mov_b32 v%d, 0', regs + i)
                    a('s_nop 2')
            warm('wa', TACC + 16)
            a('s_waitcnt lgkmcnt(0)')
            a('s_barrier')
            stamp(2)
            for w in range(4): a('ds_read_b96 %s, v11 offset:%d', V(76 + 4 * w, 3), 2048 * w) if 'b96' in dev else a('ds_read_b128 %s, v11 offset:%d', V(76 + 4 * w, 4), 2048 * w)
            warm('wb', TACC + 22)
            a('s_waitcnt lgkmcnt(2)')
            a('v_pk_add_f32 v[76:77], v[76:77], v[80:81]')
            a('v_add_f32 v78, v78, v82')
            a('s_waitcnt lgkmcnt(0)')
            a('v_pk_add_f32 v[84:85], v[84:85], v[88:89]')
            a('v_add_f32 v86, v86, v90')
            a('v_pk_add_f32 v[76:77], v[76:77], v[84:85]')
            a('v_add_f32 v78, v78, v86')
            DP = ('quad_perm:[1,0,3,2]', 'quad_perm:[2,3,0,1]', 'row_half_mirror', 'row_mirror')
            def dpp(op, d, s_, ctl): a('%s_dpp v%d, v%d, v%d %s row_mask:0xf bank_mask:0xf', op, d, s_, s_, ctl)
            a('v_max3_f32 v84, v76, v77, v78')
            a('v_sub_f32 v76, v76, v84')
            a('v_sub_f32 v77, v77, v84')
            dpp('v_max_f32', 85, 84, DP[0])
            a('v_sub_f32 v78, v78, v84')
            a('v_exp_f32 v76, v76')
            dpp('v_max_f32', 85, 85, DP[1])
            a('v_exp_f32 v77, v77')
            a('s_nop 0')
            dpp('v_max_f32', 85, 85, DP[2])
            a('v_exp_f32 v78, v78')
            a('v_add_f32 v86, v76, v77')
            dpp('v_max_f32', 85, 85, DP[3])
            a('v_sub_f32 v84, v84, v85')
            a('v_exp_f32 v84, v84')
            a('v_fmac_f32 v86, v78, v14')
            a('v_mul_f32 v86, v86, v84')
            a('v_mul_f32 v76, v76, v84')
            a('v_mul_f32 v77, v77, v84')
            dpp('v_add_f32', 86, 86, DP[0])
            a('v_mul_f32 v78, v78, v84')
            a('s_nop 0')
            for ctl in DP[1:]:
                dpp('v_add_f32', 86, 86, ctl)
                if ctl != DP[3]: a('s_nop 1')
            a('v_rcp_f32 v86, v86')
            a('s_nop 0')
            a('v_mul_f32 v76, v76, v86')
            a('v_mul_f32 v77, v77, v86')
            a('v_cvt_pk_bf16_f32 v88, |v76|, |v77|')
            a('buffer_store_dword v88, v12, s[8:11], s22 offen' + SC)
            a('v_mul_f32_dpp v79, v78, v86 row_shl:4 row_mask:0xf bank_mask:0xf bound_ctrl:0')
            a('v_mul_f32 v78, v78, v86')
            a('v_cvt_pk_bf16_f32 v90, |v78|, |v79|')
            a('buffer_store_dword v90, v13, s[8:11], s22 offen' + SC)
            stamp(3)
            a('s_waitcnt vmcnt(%d)', 3 + (7 if 'xt' in dev else 0))
            a.label(ljn)
            a('s_barrier')
            if 'xt' in dev:
                a('v_add_u32 v6, s50, v6')
                a('s_sub_u32 s50, 0, s50')
                a('s_add_u32 s34, s34, %d', XSEG)
            elif 'nox' not in dev: xdma()
            a('v_add_u32 v7, %d, v7', XSEG)
            a('s_mov_b64 exec, s[62:63]')
            a('v_add_u32 v7, %d, v7', DSEG - XSEG)
            a('s_mov_b64 exec, -1')
            a('s_add_u32 s31, s12, 3')
            fcheck(18, 3, 's31')
            a('s_cselect_b32 s38, 0x%x, 0', OOB)
            a('s_cmp_gt_u32 s31, 62')
            a('s_cselect_b32 s38, 0x%x, s38', OOB)
            for x in dev:
                if x.startswith('ds'): a('s_sleep %d', int(x[2:]))
        else:
            assert not any(gm[N:]) and not any(gv[N:])
            def pld1(k):
                a('buffer_load_dwordx4 %s, %s, s[8:11], s43 offen offset:%d sc1', V(PF + 4 * k, 4), 'v10' if k else 'v6', 1024 if k == 2 else 0)
            def pld():
                for k in range(3): pld1(k)
            for i in range(8): a('ds_read_b128 %s, v15 offset:%d', V(DB + 4 * i, 4), 1024 * (i & 3) + 16384 * (i >> 2))
            pld()
            for t in range(8):
                c = TACC + 4 * t
                a('v_add_f32 v%d, v%d, v%d', c, c, c + 2)
                a('v_add_f32 v%d, v%d, v%d', c + 1, c + 1, c + 3)
                a('v_cvt_pk_bf16_f32 v%d, v%d, v%d', c, c, c + 1)
                if t == 0:
                    bits(19, [(0, 4, 4), (4, 2, 2)])
                    a('v_add_u32 v19, s48, v19')
                else: a('ds_write_b32 v19, v%d offset:%d', c - 4, 256 * (t - 1))
            a('v_add_u32 v3, s48, v1')
            a('ds_write_b32 v19, v%d offset:%d', TACC + 28, 256 * 7)
            a('ds_read_b128 %s, v3', V(VB, 4))
            a('ds_read_b128 %s, v3 offset:1024', V(VB + 4, 4))
            a('v_add_u32 v15, 2048, v8')
            a('s_waitcnt vmcnt(3)')
            a('s_add_u32 s35, s35, %d', DSEG)
            a('s_add_u32 s31, s12, 2')
            fcheck(18, 3, 's31')
            a('s_cselect_b32 s13, 1, 0')
            a('s_add_u32 s6, s35, 16384')
            a('s_cmp_gt_u32 s31, 62')
            a('s_cselect_b32 s38, 0x%x, s35', OOB)
            a('s_cselect_b32 s6, 0x%x, s6', OOB)
            a('s_cselect_b32 s13, 0, s13')
            a('s_mov_b32 s14, 0')
            stamp(4)
            a('s_waitcnt lgkmcnt(0)')
            lr, lq = a.new('pr'), a.new('pq')
            def pchk():
                a('v_or3_b32 v3, v%d, v%d, v%d', PF, PF + 1, PF + 2)
                a('v_or3_b32 v19, v%d, v%d, v%d', PF + 3, PF + 4, PF + 5)
                a('v_or3_b32 v3, v%d, v%d, v3', PF + 6, PF + 7)
                a('v_or3_b32 v19, v%d, v%d, v19', PF + 8, PF + 9)
                a('v_or3_b32 v3, v%d, v%d, v3', PF + 10, PF + 11)
                a('v_or_b32 v3, v19, v3')
                a('v_cmp_gt_i32 vcc, 0, v3')
            if 'pone' not in dev:
                a.label(lr)
                pld()
                a('s_add_u32 s14, s14, 1')
                a('s_cmp_lt_u32 s14, %d', SPIN)
                a('s_cbranch_scc0 tdie')
                a('s_waitcnt vmcnt(3)')
                pchk()
                a('v_mfma_f32_16x16x32_bf16 %s, %s, %s, 0', V(CACC, 4), V(PF, 4), V(VB, 4))
                a('s_cmp_lt_u32 s3, 2')
                a('s_cbranch_vccnz %s', lr)
            else:
                PD = 3
                for x in dev:
                    if x.startswith('pq'): PD = int(x[2:])
                a('s_waitcnt vmcnt(0)')
                a.label(lr)
                for k in range(3):
                    pld1(k)
                    if k == 0:
                        a('s_add_u32 s14, s14, 1')
                        a('s_cmp_lt_u32 s14, %d', SPIN)
                        a('s_cbranch_scc0 tdie')
                    a('s_waitcnt vmcnt(%d)', PD)
                    pchk()
                    a('s_cbranch_vccz %s' % lq if k < 2 else 's_cbranch_vccnz %s' % lr)
                a.label(lq)
                a('v_mfma_f32_16x16x32_bf16 %s, %s, %s, 0', V(CACC, 4), V(PF, 4), V(VB, 4))
                a('s_cmp_lt_u32 s3, 2')
            a('v_smfmac_f32_16x16x64_bf16 %s, %s, %s, v2', V(CACC, 4), V(PF + 4, 4), V(DB, 8))
            a('v_smfmac_f32_16x16x64_bf16 %s, %s, %s, v2', V(CACC, 4), V(PF + 8, 4), V(DB + 8, 8))
            a('v_mfma_f32_16x16x32_bf16 %s, %s, %s, 0', V(CACC + 4, 4), V(PF, 4), V(VB + 4, 4))
            a('v_smfmac_f32_16x16x64_bf16 %s, %s, %s, v2', V(CACC + 4, 4), V(PF + 4, 4), V(DB + 16, 8))
            a('v_smfmac_f32_16x16x64_bf16 %s, %s, %s, v2', V(CACC + 4, 4), V(PF + 8, 4), V(DB + 24, 8))
            stamp(5)
            a('v_add_f32 v%d, v%d, v%d', CACC, CACC, CACC + 2)
            a('v_add_f32 v%d, v%d, v%d', CACC + 1, CACC + 1, CACC + 3)
            a('ds_write2_b32 v8, v%d, v%d offset0:0 offset1:16', CACC, CACC + 1)
            a('s_nop 4')
            a('v_add_f32 v%d, v%d, v%d', CACC + 4, CACC + 4, CACC + 6)
            a('v_add_f32 v%d, v%d, v%d', CACC + 5, CACC + 5, CACC + 7)
            a('ds_write2_b32 v15, v%d, v%d offset0:0 offset1:16', CACC + 4, CACC + 5)
            lnr, ljr = a.new('nr'), a.new('jr')
            a('s_cbranch_scc0 %s', lnr)
            tails.append(('ns', lnr, ljr))
            a('s_waitcnt lgkmcnt(0)')
            a('s_barrier')
            for w in range(4): a('ds_read_b64 %s, v9 offset:%d', V(RT + 2 * w, 2), 512 * w)
            a('s_waitcnt lgkmcnt(2)')
            a('v_pk_add_f32 %s, %s, %s', V(RT, 2), V(RT, 2), V(RT + 2, 2))
            a('s_waitcnt lgkmcnt(0)')
            a('v_pk_add_f32 %s, %s, %s', V(RT + 4, 2), V(RT + 4, 2), V(RT + 6, 2))
            a('v_pk_add_f32 %s, %s, %s', V(RT, 2), V(RT, 2), V(RT + 4, 2))
            a('v_cvt_pk_bf16_f32 v%d, v%d, v%d', RT, RT, RT + 1)
            a('v_min_u32 v%d, -2, v%d', RT, RT)
            a('buffer_store_dword v%d, v11, s[8:11], s42 offen%s', RT, SC)
            stamp(6)
            a('s_barrier')
            a('s_mov_b32 s40, 0x%x', MEME + 63 * UNIT)
            a.label(ljr)
            for x in dev:
                if x.startswith('dc'): a('s_sleep %d', int(x[2:]))
        if dev and role == 's':
            l = a.new('ts')
            a('s_lshl_b32 s30, s4, 2')
            a('s_add_u32 s30, s30, s3')
            a('s_cmp_eq_u32 s30, 63')
            a('s_cbranch_scc0 %s', l)
            a('s_memtime s[80:81]')
            a('s_lshl_b32 s30, s12, 2')
            a('s_add_u32 s30, s30, 0x3F30000')
            a('s_waitcnt lgkmcnt(0)')
            a('v_mov_b32 v99, s80')
            a('buffer_store_dword v99, off, s[8:11], s30')
            a.label(l)
        if dev:
            ld = a.new('dv')
            a('s_cmp_eq_u32 s12, 40')
            a('s_cbranch_scc0 %s', ld)
            a('s_memtime s[80:81]')
            a('s_memrealtime s[82:83]')
            a('s_waitcnt lgkmcnt(0)')
            a('s_sub_u32 s78, s80, s78')
            a('s_sub_u32 s88, s82, s88')
            a('s_lshl_b32 s30, s5, 4')
            a('s_add_u32 s30, s30, s4')
            a('s_lshl_b32 s30, s30, 2')
            a('s_add_u32 s30, s30, s3')
            a('s_lshl_b32 s30, s30, 6')
            a('s_add_u32 s30, s30, 0x3F00000')
            for kk in range(13):
                a('v_mov_b32 v99, s%d', 64 + 2 * kk)
                a('buffer_store_dword v99, off, s[8:11], s30 offset:%d', 4 * kk)
                a('s_nop 1')
            a.label(ld)
        a('s_add_u32 s12, s12, 1')
        a('s_cmp_lt_u32 s12, 63')
        a('s_cbranch_scc1 %sloop%s', role, mode)
        if role == 'c': a('buffer_store_dword v%d, v11, s[8:11], s40 offen sc1', RT)
        if dev:
            a('s_memrealtime s[82:83]')
            a('s_waitcnt lgkmcnt(0)')
            a('s_lshl_b32 s30, s2, 4')
            a('s_add_u32 s30, s30, 0x3F10000')
            for kk, r in enumerate((90, 84, 82)):
                a('v_mov_b32 v99, s%d', r)
                a('buffer_store_dword v99, off, s[8:11], s30 offset:%d', 4 * kk)
                a('s_nop 1')
            if 'dbgt' in dev:
                l = a.new('dt')
                a('s_cmp_eq_u32 s4, 5')
                a('s_cbranch_scc0 %s', l)
                a('s_lshl_b32 s30, s5, 4')
                for kk, r in enumerate((90, 84, 82, 78)):
                    if r != 78: a('s_sub_u32 s31, s%d, s92', r)
                    else: a('s_mov_b32 s31, s78')
                    a('v_mov_b32 v99, s31')
                    a('buffer_store_dword v99, off, s[44:47], s30 offset:%d', 4 * kk)
                    a('s_nop 1')
                a.label(l)
        a('s_endpgm')
        for p in tails:
            a.label(p[1])
            if p[0] == 'dw':
                a('s_add_u32 s31, s12, 1')
                dwait('s31')
                a('s_branch %s', p[2])
            elif p[0] == 'nv':
                for r in range(4): a('v_mov_b32 v%d, -1', 92 + r)
                a('s_waitcnt lgkmcnt(0)')
                a('s_barrier')
                a('buffer_store_dwordx4 v[92:95], v1, s[8:11], s24 offen' + SC)
                a('s_waitcnt vmcnt(%d)', 2 + (7 if 'xt' in dev else 0))
                a('s_branch %s', p[2])
            elif p[0] == 'ns':
                a('s_waitcnt lgkmcnt(0)')
                a('s_barrier')
                a('s_barrier')
                a('s_branch %s', p[2])
    for mode in 'FS':
        for role in 'sc': loop(role, mode)
```

```python
from common import *
import fold
SPIN = 400000
XB = 28672 + 128
KT1 = 14336 + 64
DST = 'sc1'
DEV = False
DBGT = False
def tl(a, k):
    if DEV:
        a('s_memrealtime s[82:83]')
        a('s_waitcnt lgkmcnt(0)')
        a('s_lshl_b32 s84, s2, 4')
        a('s_add_u32 s84, s84, 0x3F10000')
        a('v_mov_b32 v4, s82')
        a('buffer_store_dword v4, off, s[8:11], s84 offset:%d', 4 * k)
        a('s_nop 1')

NSET_D, NSET_F, NSET_X, NSET_O = 2, 2, 3, 13

def lane_consts(a):
    a('v_lshlrev_b32 v1, 4, v0')
    a('v_and_b32 v2, 15, v0')
    a('v_lshrrev_b32 v3, 4, v0')

def x_setup(a, lx):
    a('s_mul_i32 s30, s3, 7168')
    a('s_mul_i32 s34, s12, %d', XSEG)
    a('s_add_u32 s34, s34, s30')
    a('s_add_u32 s34, s34, 0x%x', XF)
    a('s_lshr_b32 s31, s3, 1')
    a('s_lshl_b32 s31, s31, 6')
    a('s_add_u32 s36, s30, s31')
    a('s_add_u32 s36, s36, %d', lx)
    a('s_mov_b32 s50, %d', XB)

def x_dma(a):
    a('s_mov_b32 m0, s36')
    a('s_add_u32 s30, s34, 4096')
    for i in range(4): a('buffer_load_dwordx4 v1, s[8:11], s34 offen offset:%d sc1 lds', 1024 * i)
    a('s_add_u32 m0, s36, 4096')
    a('s_nop 0')
    for i in range(3): a('buffer_load_dwordx4 v1, s[8:11], s30 offen offset:%d sc1 lds', 1024 * i)

def x_next(a, nset):
    a('s_add_u32 s34, s34, %d', XSEG * nset)
    a('s_add_u32 s36, s36, s50')

def perm_rows_addr(a, dst, lx, gmul_shift, tmp):
    a('v_lshrrev_b32 v%d, 3, v2', tmp)
    a('s_movk_i32 s30, %d', KT1)
    a('v_mul_u32_u24 v%d, s30, v%d', dst, tmp)
    a('v_bfe_u32 v%d, v0, 2, 1', tmp)
    a('v_lshl_add_u32 v%d, v%d, 7, v%d', dst, tmp, dst)
    a('v_and_b32 v%d, 3, v0', tmp)
    a('v_lshl_add_u32 v%d, v%d, 4, v%d', dst, tmp, dst)
    a('v_add_u32 v%d, %d, v%d', dst, lx, dst)

def publish(a, word_sgpr_off, val):
    l = a.new('pb')
    a('s_cmp_eq_u32 s3, 0')
    a('s_cbranch_scc0 %s', l)
    a('v_mov_b32 v4, %s', val)
    a('v_mov_b32 v5, 0')
    a('buffer_store_dword v4, v5, s[8:11], %s offen sc1', word_sgpr_off)
    a.label(l)

def sg_loop(a, name, nset, nst, mfma_fn, epi_fn, rd_fn, tail_fn=None):
    XR = 64
    x_dma(a)
    a('s_mov_b32 s13, 0')
    a('s_waitcnt vmcnt(0)')
    tl(a, 1)
    a('s_branch %s_in', name)
    a.label(name + '_loop')
    a('s_waitcnt vmcnt(%d)', nst)
    a.label(name + '_in')
    a('s_barrier')
    x_next(a, nset)
    x_dma(a)
    def rd(j):
        for mt in range(2): rd_fn(XR + 8 * (j % 4) + 4 * mt, j, mt)
    for j in range(3): rd(j)
    for j in range(14):
        if j + 3 < 14: rd(j + 3)
        a('s_waitcnt lgkmcnt(%d)', 2 * min(3, 13 - j))
        mfma_fn(j, XR + 8 * (j % 4))
        if j == 8:
            a('s_waitcnt vmcnt(7)')
            a('s_barrier')
            publish(a, 's35', 's13')
    a('v_add_u32 v6, s50, v6')
    a('s_sub_u32 s50, 0, s50')
    a('s_nop 6')
    epi_fn()
    a('s_add_u32 s13, s13, 1')
    a('s_add_u32 s12, s12, %d', nset)
    a('s_cmp_lt_u32 s12, 64')
    a('s_cbranch_scc1 %s_loop', name)
    a('s_waitcnt vmcnt(0)')
    a('s_barrier')
    publish(a, 's35', 's13')
    tl(a, 2)
    if tail_fn is None: a('s_endpgm')
    else: tail_fn()

def mem_fetch(a, KO, va0, va1):
    lp, ok = a.new('xm'), a.new('xk')
    a('s_mov_b32 s14, 0')
    a.label(lp)
    a('buffer_load_dwordx4 %s, v1, s[8:11], s32 offen sc1', V(KO, 4))
    a('buffer_load_dwordx4 %s, v1, s[8:11], s33 offen sc1', V(KO + 4, 4))
    a('s_waitcnt vmcnt(0)')
    a('v_max3_u32 v4, v%d, v%d, v%d', KO, KO + 1, KO + 2)
    a('v_max3_u32 v5, v%d, v%d, v%d', KO + 3, KO + 4, KO + 5)
    a('v_max3_u32 v4, v%d, v%d, v4', KO + 6, KO + 7)
    a('v_max_u32 v4, v4, v5')
    a('v_cmp_eq_u32 vcc, -1, v4')
    a('s_cbranch_vccz %s', ok)
    a('s_sleep 2')
    a('s_add_u32 s14, s14, 1')
    a('s_cmp_lt_u32 s14, %d', SPIN)
    a('s_cbranch_scc1 %s', lp)
    a('s_endpgm')
    a.label(ok)
    a('ds_write_b128 v%d, %s', va0, V(KO, 4))
    a('ds_write_b128 v%d, %s', va1, V(KO + 4, 4))

def own_frags(a, lm, va0, va1):
    a('s_lshl_b32 s15, s3, 11')
    a('s_add_u32 s16, s15, 1024')
    a('s_cmp_eq_u32 s3, 3')
    a('s_cselect_b32 s16, 0, s16')
    a('s_add_u32 s31, s15, %d', lm)
    a('v_add_u32 v%d, s31, v1', va0)
    a('s_add_u32 s31, s16, %d', lm)
    a('v_add_u32 v%d, s31, v1', va1)

def gen_d(a, vtail=True):
    a.label('role_d')
    tl(a, 0)
    a('s_lshr_b32 s6, s30, 1')
    a('s_and_b32 s12, s30, 1')
    lane_consts(a)
    a('s_lshl_b32 s34, s3, 2')
    fold.wait_part(a, FLG_C, 's34', 4, False)
    a('s_mul_i32 s33, s34, 28')
    a('s_add_u32 s33, s33, s6')
    a('s_mul_i32 s33, s33, 14336')
    a('s_add_u32 s33, s33, 0x%x', WF_C)
    for ps in range(2):
        for hh in range(4):
            for j in range(14):
                if (j >> 1) & 1 != ps: continue
                if j % 2 == 0: a('s_add_u32 s32, s33, %d', hh * 28 * 14336 + j * 1024)
                a('buffer_load_dwordx4 %s, v1, s[8:11], s32 offen offset:%d sc1', A((hh * 14 + j) * 4, 4), (j % 2) * 1024)
        if ps == 0: fold.wait_head_and_misc(a, FLG_C, 's34', 56, 24)
    x_setup(a, 0)
    perm_rows_addr(a, 6, 0, 0, 7)
    a('v_lshl_add_u32 v6, v3, 8, v6')
    a('s_lshl_b32 s35, s12, 7')
    a('s_lshl_b32 s31, s6, 2')
    a('s_add_u32 s35, s35, s31')
    a('s_add_u32 s35, s35, 0x%x', DPROG)
    ACC = 32
    def rd(b, j, mt): a('ds_read_b128 %s, v6 offset:%d', V(b, 4), j * 1024 + mt * 64)
    def mf(j, xb):
        for hh in range(4):
            for mt in range(2):
                c = ACC + (hh * 2 + mt) * 4
                a('v_mfma_f32_16x16x32_bf16 %s, %s, %s, %s', V(c, 4), V(xb + 4 * mt, 4), A((hh * 14 + j) * 4, 4), V(c, 4) if j else '0')
    def epi():
        a('s_mul_i32 s30, s12, %d', DSEG)
        a('s_lshl_b32 s31, s6, 14')
        a('s_add_u32 s30, s30, s31')
        a('s_lshl_b32 s31, s3, 12')
        a('s_add_u32 s30, s30, s31')
        a('s_add_u32 s30, s30, 0x%x', DD)
        for hh in range(4):
            c = ACC + hh * 8
            o = 96 + 4 * hh
            for d in range(4): a('v_cvt_pk_bf16_f32 v%d, v%d, v%d', o + d, c + 2 * d, c + 2 * d + 1)
            a('buffer_store_dwordx4 %s, v1, s[8:11], s30 offen offset:%d %s', V(o, 4), 1024 * hh, DST)
    def tail():
        LM = 65536
        own_frags(a, LM, 9, 10)
        a('v_lshrrev_b32 v4, 1, v3')
        a('v_lshlrev_b32 v8, 8, v4')
        a('v_bfe_u32 v4, v0, 1, 2')
        a('v_lshl_add_u32 v8, v4, 6, v8')
        a('v_and_b32 v4, 1, v0')
        a('v_lshl_add_u32 v8, v4, 4, v8')
        a('v_and_b32 v4, 1, v3')
        a('v_lshl_add_u32 v8, v4, 3, v8')
        a('v_add_u32 v8, %d, v8', LM)
        a('v_lshlrev_b32 v11, 4, v2')
        a('v_lshl_add_u32 v11, v4, 3, v11')
        a('v_lshrrev_b32 v4, 1, v3')
        a('v_lshl_add_u32 v11, v4, 8, v11')
        a('v_cmp_gt_u32 s[60:61], 32, v0')
        a('s_and_b32 s12, s12, 1')
        a('s_lshl_b32 s35, s12, 9')
        a('s_lshl_b32 s31, s6, 4')
        a('s_add_u32 s35, s35, s31')
        a('s_lshl_b32 s31, s3, 2')
        a('s_add_u32 s35, s35, s31')
        a('s_add_u32 s35, s35, 0x%x', VPROG)
        a('s_mov_b32 s13, 0')
        a.label('rv_loop')
        a('s_mul_i32 s39, s12, %d', UNIT)
        a('s_add_u32 s39, s39, 0x%x', MEME)
        a('s_add_u32 s32, s39, s15')
        a('s_add_u32 s33, s39, s16')
        mem_fetch(a, 64, 9, 10)
        a('s_waitcnt lgkmcnt(0)')
        a('s_barrier')
        AF = 120
        for j in range(14):
            if j % 2 == 0 and j: a('v_add_u32 v8, 1024, v8')
            for qq in range(2):
                o = 128 * (j & 1) + qq
                a('ds_read2_b32 %s, v8 offset0:%d offset1:%d', V(AF + 4 * j + 2 * qq, 2), o, o + 8)
            if j % 4 == 3: a('s_waitcnt lgkmcnt(4)')
        a('v_subrev_u32 v8, 6144, v8')
        for r in (8, 9, 10): a('v_xor_b32 v%d, 0x2000, v%d', r, r)
        a('s_waitcnt lgkmcnt(0)')
        for j in range(14):
            for hh in range(4):
                c = ACC + hh * 4
                a('v_mfma_f32_16x16x32_bf16 %s, %s, %s, %s', V(c, 4), V(AF + 4 * j, 4), A((hh * 14 + j) * 4, 4), V(c, 4) if j else '0')
        a('s_mul_i32 s30, s12, %d', VSLOT)
        a('s_lshl_b32 s31, s6, 12')
        a('s_add_u32 s30, s30, s31')
        a('s_lshl_b32 s31, s3, 10')
        a('s_add_u32 s30, s30, s31')
        a('s_add_u32 s30, s30, 0x%x', VE)
        a('s_add_u32 s13, s13, 1')
        a('s_nop 1')
        for hp in range(2):
            c = ACC + hp * 8
            for r in range(4): a('v_cndmask_b32 v%d, v%d, v%d, s[60:61]', c + r, c + 4 + r, c + r)
            a('v_cvt_pk_bf16_f32 v%d, v%d, v%d', 96 + 2 * hp, c, c + 1)
            a('v_cvt_pk_bf16_f32 v%d, v%d, v%d', 97 + 2 * hp, c + 2, c + 3)
            a('buffer_store_dwordx2 %s, v11, s[8:11], s30 offen offset:%d sc1', V(96 + 2 * hp, 2), 512 * hp)
        a('v_mov_b32 v4, s13')
        a('s_waitcnt vmcnt(0)')
        a('buffer_store_dword v4, off, s[8:11], s35 sc1')
        a('s_add_u32 s12, s12, %d', NSET_D)
        a('s_cmp_lt_u32 s12, 64')
        a('s_cbranch_scc1 rv_loop')
        tl(a, 3)
        a('s_endpgm')
    sg_loop(a, 'rd', NSET_D, 4, mf, epi, rd, tail if vtail else None)

def gen_f1(a):
    a.label('role_f1')
    tl(a, 0)
    a('s_lshr_b32 s6, s30, 1')
    a('s_and_b32 s12, s30, 1')
    a('s_load_dwordx4 s[56:59], s[0:1], %d', KA['wg'])
    lane_consts(a)
    RS = 272
    a('s_lshl_b32 s31, s3, 2')
    a('v_add_u32 v4, s31, v3')
    a('s_movk_i32 s30, 3584')
    a('v_mul_u32_u24 v5, s30, v4')
    a('v_lshl_add_u32 v5, v2, 4, v5')
    a('s_movk_i32 s30, %d', RS)
    a('v_mul_u32_u24 v7, s30, v4')
    a('v_lshl_add_u32 v7, v2, 4, v7')
    a('v_add_u32 v8, %d, v7', 14 * 16 * RS)
    a('v_lshrrev_b32 v9, 2, v2')
    a('v_lshl_add_u32 v9, v3, 3, v9')
    a('v_mul_u32_u24 v9, s30, v9')
    a('v_and_b32 v4, 3, v0')
    a('v_lshl_add_u32 v9, v4, 4, v9')
    a('s_lshl_b32 s31, s3, 6')
    a('v_add_u32 v9, s31, v9')
    a('v_add_u32 v10, %d, v9', 7 * 32 * RS)
    a('s_waitcnt lgkmcnt(0)')
    a.srd(16, 56, FBYTES)
    a.srd(20, 58, FBYTES)
    ST = 16
    for mat in range(2):
        a('s_lshl_b32 s31, s6, 8')
        for p in range(28):
            a('buffer_load_dwordx4 %s, v5, s[%d:%d], s31 offen', V(ST + (mat * 28 + p) * 4, 4), 16 + 4 * mat, 19 + 4 * mat)
            if p < 27: a('s_add_u32 s31, s31, %d', 16 * 3584)
    for mat in range(2):
        a('s_waitcnt vmcnt(%d)', 28 if mat == 0 else 0)
        for p in range(28):
            a('ds_write_b128 v%d, %s offset:%d', 7 if p < 14 else 8, V(ST + (mat * 28 + p) * 4, 4), (p % 14) * 16 * RS)
        a('s_waitcnt lgkmcnt(0)')
        a('s_barrier')
        for u in range(2):
            for j in range(14):
                b = ((mat * 2 + u) * 14 + j) * 4
                o = (j % 7) * 32 * RS + u * 8
                a('ds_read_b64_tr_b16 %s, v%d offset:%d', A(b, 2), 9 if j < 7 else 10, o)
                a('ds_read_b64_tr_b16 %s, v%d offset:%d', A(b + 2, 2), 9 if j < 7 else 10, o + 4 * RS)
        a('s_waitcnt lgkmcnt(0)')
        a('s_barrier')
    x_setup(a, 0)
    a('v_mov_b32 v6, v1')
    a('s_lshl_b32 s35, s12, 7')
    a('s_lshl_b32 s31, s6, 2')
    a('s_add_u32 s35, s35, s31')
    a('s_add_u32 s35, s35, 0x%x', HPROG)
    ACC = 32
    def rd(b, j, tt): a('ds_read_b128 %s, v6 offset:%d', V(b, 4), j * 1024 + tt * KT1)
    def mf(j, xb):
        for q in range(4):
            for tt in range(2):
                c = ACC + (tt * 4 + q) * 4
                a('v_mfma_f32_16x16x32_bf16 %s, %s, %s, %s', V(c, 4), A((q * 14 + j) * 4, 4), V(xb + 4 * tt, 4), V(c, 4) if j else '0')
    def epi():
        a('s_mul_i32 s30, s12, %d', VSLOT)
        a('s_lshl_b32 s31, s6, 12')
        a('s_add_u32 s30, s30, s31')
        a('s_lshl_b32 s31, s3, 10')
        a('s_add_u32 s30, s30, s31')
        a('s_add_u32 s30, s30, 0x%x', H1)
        a('s_add_u32 s31, s30, 57344')
        for tt in range(2):
            g = ACC + tt * 16
            u = g + 8
            t = 104
            for i in range(8): a('v_mul_f32 v%d, 0x%x, v%d', t + i, fbits(-LOG2E), g + i)
            for i in range(8): a('v_exp_f32 v%d, v%d', t + i, t + i)
            for i in range(8): a('v_mul_f32 v%d, v%d, v%d', u + i, u + i, g + i)
            for i in range(8): a('v_add_f32 v%d, 1.0, v%d', t + i, t + i)
            for i in range(8): a('v_rcp_f32 v%d, v%d', t + i, t + i)
            a('s_nop 0')
            for i in range(8): a('v_mul_f32 v%d, v%d, v%d', u + i, u + i, t + i)
            o = 96 + 4 * tt
            for d in range(4): a('v_cvt_pk_bf16_f32 v%d, v%d, v%d', o + d, u + 2 * d, u + 2 * d + 1)
            a('buffer_store_dwordx4 %s, v1, s[8:11], s%d offen sc1', V(o, 4), 30 + tt)
    sg_loop(a, 'rf', NSET_F, 2, mf, epi, rd)

def poll_ge(a, voff, soff, vthr, tmp):
    lp, ok = a.new('pl'), a.new('pk')
    a('s_mov_b32 s14, 0')
    a.label(lp)
    a('buffer_load_dword v%d, v%d, s[8:11], %s offen sc1', tmp, voff, soff)
    a('s_waitcnt vmcnt(0)')
    a('v_cmp_lt_u32 vcc, v%d, v%d', tmp, vthr)
    a('s_cbranch_vccz %s', ok)
    a('s_sleep 4')
    a('s_add_u32 s14, s14, 1')
    a('s_cmp_lt_u32 s14, %d', SPIN)
    a('s_cbranch_scc1 %s', lp)
    a('s_endpgm')
    a.label(ok)

def gen_xs(a):
    LX, LM, LP = 0, 2 * XB, 2 * XB + 7168
    a.label('role_xs')
    tl(a, 0)
    a('s_mul_i32 s4, s30, 21846')
    a('s_lshr_b32 s4, s4, 16')
    a('s_mul_i32 s31, s4, 3')
    a('s_sub_u32 s12, s30, s31')
    lane_consts(a)
    fold.wait_head(a, FLG_A, 's4')
    def W(t, j):
        i = t * 14 + j
        return A(4 * i, 4) if i < 64 else V(120 + 4 * (i - 64), 4)
    a('s_mul_i32 s31, s4, 28')
    a('s_mul_i32 s32, s3, 7')
    a('s_add_u32 s31, s31, s32')
    a('s_mul_i32 s31, s31, 14336')
    if WF_A: a('s_add_u32 s31, s31, 0x%x', WF_A)
    for i in range(98):
        if i % 4 == 0 and i: a('s_add_u32 s31, s31, 4096')
        a('buffer_load_dwordx4 %s, v1, s[8:11], s31 offen offset:%d sc1', W(i // 14, i % 14), (i % 4) * 1024)
        if i >= 48 and i % 8 == 0: a('s_waitcnt vmcnt(40)')
    x_setup(a, LX)
    a('v_add_u32 v6, %d, v1', LX) if LX else a('v_mov_b32 v6, v1')
    perm_rows_addr(a, 7, LX, 0, 4)
    a('v_lshrrev_b32 v4, 1, v3')
    a('s_mul_i32 s31, s3, 14')
    a('v_add_u32 v4, s31, v4')
    a('v_lshl_add_u32 v7, v4, 8, v7')
    a('v_and_b32 v4, 1, v3')
    a('v_lshl_add_u32 v7, v4, 3, v7')
    a('v_bfe_u32 v4, v0, 1, 2')
    a('v_lshlrev_b32 v8, 6, v4')
    a('v_and_b32 v4, 1, v0')
    a('v_lshl_add_u32 v8, v4, 4, v8')
    a('v_lshl_add_u32 v8, v3, 2, v8')
    a('s_mul_i32 s31, s3, 1792')
    a('s_add_u32 s31, s31, %d', LM)
    a('v_add_u32 v8, s31, v8')
    own_frags(a, LM, 9, 10)
    a('s_mul_i32 s31, s3, 6144')
    a('s_add_u32 s31, s31, %d', LP)
    a('v_add_u32 v11, s31, v1')
    a('s_lshl_b32 s31, s3, 10')
    a('s_add_u32 s31, s31, %d', LP)
    a('v_add_u32 v12, s31, v1')
    a('s_lshl_b32 s31, s3, 4')
    a('v_add_u32 v4, s31, v2')
    a('v_lshlrev_b32 v5, 3, v3')
    a('v_sub_u32 v4, v4, v5')
    for i in range(8): a('v_cmp_gt_i32 s[%d:%d], %d, v4', 64 + 2 * i, 65 + 2 * i, i)
    a('v_cmp_gt_u32 vcc, 2, v3')
    a('v_mov_b32 v13, 0xff800000')
    a('s_nop 0')
    a('v_cndmask_b32 v14, 0, 1.0, vcc')
    a('s_lshl_b32 s31, s4, 11')
    a('s_lshl_b32 s32, s3, 10')
    a('s_add_u32 s31, s31, s32')
    a('v_add_u32 v15, s31, v1')
    a('s_lshr_b32 s31, s4, 2')
    a('s_lshl_b32 s31, s31, 11')
    a('s_add_u32 s31, s31, s32')
    a('s_and_b32 s32, s4, 3')
    a('s_lshl_b32 s32, s32, 8')
    a('s_add_u32 s31, s31, s32')
    a('s_add_u32 s31, s31, 32768')
    a('v_and_b32 v4, 1, v3')
    a('v_lshlrev_b32 v16, 4, v2')
    a('v_lshl_add_u32 v16, v4, 3, v16')
    a('v_add_u32 v16, s31, v16')
    a('s_lshl_b32 s35, s12, 7')
    a('s_lshl_b32 s31, s4, 3')
    a('s_add_u32 s35, s35, s31')
    a('s_lshl_b32 s31, s3, 2')
    a('s_add_u32 s35, s35, s31')
    a('s_add_u32 s35, s35, 0x%x', XPROG)
    a('v_mov_b32 v17, 0')
    a('s_mov_b32 s13, 0')
    x_dma(a)
    ACC, XR, SA, KO = 20, 76, 92, 76
    if DEV: a('s_waitcnt vmcnt(0)')
    tl(a, 1)
    a.label('rx_loop')
    a('s_waitcnt vmcnt(0)')
    a('s_barrier')
    x_next(a, NSET_X)
    x_dma(a)
    def rd(j):
        for tt in range(2): a('ds_read_b128 %s, v6 offset:%d', V(XR + 8 * (j & 1) + 4 * tt, 4), j * 1024 + tt * KT1)
    rd(0)
    for j in range(14):
        if j + 1 < 14: rd(j + 1)
        a('s_waitcnt lgkmcnt(%d)', 2 if j < 13 else 0)
        for t in range(7):
            for tt in range(2):
                c = ACC + (t * 2 + tt) * 4
                a('v_mfma_f32_16x16x32_bf16 %s, %s, %s, %s', V(c, 4), W(t, j), V(XR + 8 * (j & 1) + 4 * tt, 4), V(c, 4) if j else '0')
    a('s_mul_i32 s39, s12, %d', UNIT)
    a('s_add_u32 s39, s39, 0x%x', MEME)
    a('s_add_u32 s32, s39, s15')
    a('s_add_u32 s33, s39, s16')
    def krd(t):
        for ku in range(2): a('ds_read_b64 %s, v7 offset:%d', V(KO + 4 * (t % 4) + 2 * ku, 2), t * 512 + ku * 64)
    for t in range(3): krd(t)
    a('s_nop 2')
    for i in range(14):
        c = ACC + 4 * i
        a('v_cvt_pk_bf16_f32 v%d, v%d, v%d', c, c, c + 1)
        a('v_cvt_pk_bf16_f32 v%d, v%d, v%d', c + 1, c + 2, c + 3)
    a('s_nop 1')
    for t in range(7):
        if t + 3 < 7: krd(t + 3)
        a('s_waitcnt lgkmcnt(%d)', 2 * min(3, 6 - t))
        for ku in range(2):
            for tt in range(2):
                c = SA + (ku * 2 + tt) * 4
                a('v_mfma_f32_16x16x16_bf16 %s, %s, %s, %s', V(c, 4), V(KO + 4 * (t % 4) + 2 * ku, 2), V(ACC + (t * 2 + tt) * 4, 2), V(c, 4) if t else '0')
    a('v_add_u32 v6, s50, v6')
    a('v_add_u32 v7, s50, v7')
    a('s_sub_u32 s50, 0, s50')
    mem_fetch(a, KO, 9, 10)
    for b in range(4): a('ds_write_b128 v11, %s offset:%d', V(SA + 4 * b, 4), 1024 * b)
    a('s_waitcnt lgkmcnt(0)')
    a('s_barrier')
    for t in range(7):
        a('ds_read_b32 v%d, v8 offset:%d', KO + 2 * t, 256 * t)
        a('ds_read_b32 v%d, v8 offset:%d', KO + 2 * t + 1, 256 * t + 32)
    for t in range(7):
        a('s_waitcnt lgkmcnt(%d)', 2 * (6 - t))
        for tt in range(2):
            c = SA + 16 + tt * 4
            a('v_mfma_f32_16x16x16_bf16 %s, %s, %s, %s', V(c, 4), V(KO + 2 * t, 2), V(ACC + (t * 2 + tt) * 4, 2), V(c, 4) if t else '0')
    a('s_nop 7')
    for b in (4, 5): a('ds_write_b128 v11, %s offset:%d', V(SA + 4 * b, 4), 1024 * b)
    a('s_waitcnt lgkmcnt(0)')
    a('s_barrier')
    lsk = a.new('xs')
    a('s_add_u32 s13, s13, 1')
    a('s_cmp_lt_u32 s3, 2')
    a('s_cbranch_scc0 %s', lsk)
    R = 20
    for w in range(4):
        for b in range(3): a('ds_read_b128 %s, v12 offset:%d', V(R + 12 * w + 4 * b, 4), 6144 * w + 2048 * b)
    a('s_mul_i32 s30, s12, %d', PXSEG)
    a('s_add_u32 s30, s30, 0x%x', PX)
    for w in range(1, 4):
        a('s_waitcnt lgkmcnt(%d)', 3 * (3 - w))
        for i in range(6): a('v_pk_add_f32 %s, %s, %s', V(R + 2 * i, 2), V(R + 2 * i, 2), V(R + 12 * w + 2 * i, 2))
    for i in range(8): a('v_cndmask_b32 v%d, v%d, v13, s[%d:%d]', R + i, R + i, 64 + 2 * i, 65 + 2 * i)
    a('v_max3_f32 v4, v%d, v%d, v%d', R, R + 1, R + 2)
    for i in range(3, 11, 2): a('v_max3_f32 v4, v%d, v%d, v4', R + i, R + i + 1)
    a('v_max_f32 v4, v%d, v4', R + 11)
    def xred(op):
        for sw in ('v_permlane32_swap_b32', 'v_permlane16_swap_b32'):
            a('v_mov_b32 v5, v4')
            a('s_nop 1')
            a('%s v4, v5', sw)
            a('%s v4, v4, v5', op)
    xred('v_max_f32')
    for i in range(12): a('v_sub_f32 v%d, v%d, v4', R + i, R + i)
    for i in range(12): a('v_exp_f32 v%d, v%d', R + i, R + i)
    a('v_add_f32 v4, v%d, v%d', R, R + 1)
    for i in range(2, 8): a('v_add_f32 v4, v%d, v4', R + i)
    for i in range(8, 12): a('v_fmac_f32 v4, v%d, v14', R + i)
    xred('v_add_f32')
    a('v_rcp_f32 v4, v4')
    a('s_nop 0')
    for i in range(12): a('v_mul_f32 v%d, v%d, v4', R + i, R + i)
    for d in range(6): a('v_cvt_pk_bf16_f32 v%d, v%d, v%d', 40 + d, R + 2 * d, R + 2 * d + 1)
    a('buffer_store_dwordx4 v[40:43], v15, s[8:11], s30 offen sc1')
    a('buffer_store_dwordx2 v[44:45], v16, s[8:11], s30 offen sc1')
    a('v_mov_b32 v4, s13')
    a('s_waitcnt vmcnt(0)')
    a('buffer_store_dword v4, v17, s[8:11], s35 offen sc1')
    a.label(lsk)
    a('s_add_u32 s12, s12, %d', NSET_X)
    a('s_cmp_lt_u32 s12, 64')
    a('s_cbranch_scc1 rx_loop')
    tl(a, 2)
    a('s_endpgm')

def gen_fin(a):
    a.label('role_fin')
    tl(a, 0)
    a('s_mul_i32 s12, s30, 9363')
    a('s_lshr_b32 s12, s12, 16')
    a('s_mul_i32 s31, s12, 7')
    a('s_sub_u32 s6, s30, s31')
    a('s_load_dwordx2 s[56:57], s[0:1], %d', KA['wd'])
    a('s_load_dwordx2 s[58:59], s[0:1], %d', KA['out'])
    lane_consts(a)
    RS = 144
    a('v_lshrrev_b32 v4, 3, v0')
    a('v_and_b32 v5, 7, v0')
    a('s_movk_i32 s30, 896')
    a('v_mul_u32_u24 v6, s30, v4')
    a('v_lshl_add_u32 v6, v5, 4, v6')
    a('s_movk_i32 s30, %d', RS)
    a('v_mul_u32_u24 v7, s30, v4')
    a('v_lshl_add_u32 v7, v5, 4, v7')
    a('s_mul_i32 s31, s3, %d', 224 * RS)
    a('v_add_u32 v7, s31, v7')
    a('v_lshrrev_b32 v8, 2, v2')
    a('v_lshl_add_u32 v8, v3, 3, v8')
    a('v_mul_u32_u24 v8, s30, v8')
    a('v_and_b32 v4, 3, v0')
    a('v_lshl_add_u32 v8, v4, 3, v8')
    a('v_add_u32 v8, s31, v8')
    a('s_waitcnt lgkmcnt(0)')
    a.srd(16, 56, FBYTES)
    a.srd(20, 58, XBYTES)
    ST = 16
    a('s_mul_i32 s31, s3, %d', 448 * 896)
    a('s_lshl_b32 s32, s6, 7')
    a('s_add_u32 s31, s31, s32')
    for p in range(56):
        a('buffer_load_dwordx4 %s, v6, s[16:19], s31 offen', V(ST + 4 * p, 4))
        if p < 55: a('s_add_u32 s31, s31, %d', 8 * 896)
    for rnd in range(2):
        a('s_waitcnt vmcnt(%d)', 28 if rnd == 0 else 0)
        for p in range(28): a('ds_write_b128 v7, %s offset:%d', V(ST + 4 * (rnd * 28 + p), 4), p * 8 * RS)
        for jj in range(7):
            for t in range(4):
                b = ((rnd * 7 + jj) * 4 + t) * 4
                a('ds_read_b64_tr_b16 %s, v8 offset:%d', A(b, 2), jj * 32 * RS + t * 32)
                a('ds_read_b64_tr_b16 %s, v8 offset:%d', A(b + 2, 2), jj * 32 * RS + t * 32 + 4 * RS)
            a('s_waitcnt lgkmcnt(0)')
    a('s_barrier')
    tl(a, 1)
    a('v_lshlrev_b32 v4, 2, v0')
    a('s_lshl_b32 s31, s6, 4')
    a('s_sub_u32 s31, s31, 56')
    a('v_add_u32 v5, s31, v4')
    a('v_add_u32 v4, %d, v4', HPROG - CNT)
    a('v_cmp_gt_u32 vcc, 14, v0')
    a('s_nop 1')
    a('v_cndmask_b32 v4, v5, v4, vcc')
    a('v_cmp_gt_u32 vcc, 18, v0')
    a('v_mov_b32 v5, %d', HPROG - CNT)
    a('s_nop 0')
    a('v_cndmask_b32 v4, v5, v4, vcc')
    a('v_and_b32 v5, 7, v0')
    a('v_lshlrev_b32 v5, 2, v5')
    a('s_lshl_b32 s31, s3, 5')
    a('s_add_u32 s31, s31, %d', XPROG - CNT)
    a('v_add_u32 v5, s31, v5')
    a('v_and_b32 v6, 3, v0')
    a('v_lshlrev_b32 v6, 4, v6')
    a('s_lshl_b32 s31, s3, 2')
    a('s_lshl_b32 s32, s6, 6')
    a('s_add_u32 s31, s31, s32')
    a('s_add_u32 s31, s31, %d', VPROG - CNT)
    a('v_add_u32 v6, s31, v6')
    a('v_cmp_gt_u32 s[60:61], 8, v2')
    a('v_lshlrev_b32 v8, 2, v2')
    RO = 272
    a('s_lshl_b32 s31, s3, 5')
    a('v_add_u32 v9, s31, v2')
    a('s_movk_i32 s30, %d', RO)
    a('v_mul_u32_u24 v9, s30, v9')
    a('v_lshl_add_u32 v9, v3, 4, v9')
    a('v_lshrrev_b32 v12, 3, v0')
    a('s_lshl_b32 s31, s3, 3')
    a('v_add_u32 v12, s31, v12')
    a('v_mul_u32_u24 v10, s30, v12')
    a('v_and_b32 v13, 7, v0')
    a('v_lshl_add_u32 v10, v13, 5, v10')
    a('s_movk_i32 s30, 896')
    a('v_mul_u32_u24 v11, s30, v12')
    a('v_lshl_add_u32 v11, v13, 4, v11')
    a('s_mov_b32 s50, %d', 128 * RO)
    HF, DF, AB, AA, GR = 16, 128, 192, 224, 14
    a.label('ro_loop')
    a('s_and_b32 s30, s12, 1')
    a('s_lshl_b32 s30, s30, 7')
    a('s_add_u32 s30, s30, 0x%x', CNT)
    a('s_lshr_b32 s31, s12, 1')
    a('s_add_u32 s31, s31, 1')
    a('v_mov_b32 v12, s31')
    poll_ge(a, 4, 's30', 12, 13)
    a('s_mul_i32 s30, s12, %d', VSLOT)
    a('s_mul_i32 s31, s3, 14336')
    a('s_add_u32 s30, s30, s31')
    a('s_add_u32 s30, s30, 0x%x', H1)
    for jj in range(14):
        if jj % 4 == 0:
            a('s_add_u32 s32, s30, %d', jj * 1024)
            a('s_add_u32 s33, s30, %d', jj * 1024 + 57344)
        for tt in range(2):
            a('buffer_load_dwordx4 %s, v1, s[8:11], s%d offen offset:%d sc1', V(HF + (jj * 2 + tt) * 4, 4), 32 + tt, (jj % 4) * 1024)
    a('s_mul_i32 s30, s12, %d', DSEG)
    a('s_lshl_b32 s31, s6, 16')
    a('s_add_u32 s30, s30, s31')
    a('s_lshl_b32 s31, s3, 12')
    a('s_add_u32 s30, s30, s31')
    a('s_add_u32 s30, s30, 0x%x', DD)
    for t in range(4):
        for hh in range(4):
            a('buffer_load_dwordx4 %s, v1, s[8:11], s30 offen offset:%d sc1', V(DF + (t * 4 + hh) * 4, 4), hh * 1024)
        if t < 3: a('s_add_u32 s30, s30, 16384')
    a('s_lshl_b32 s30, s12, 7')
    a('s_add_u32 s30, s30, 0x%x', GG)
    for tt in range(2): a('buffer_load_dword v%d, v8, s[8:11], s30 offen offset:%d sc1', GR + tt, 64 * tt)
    for jj in range(14):
        a('s_waitcnt vmcnt(%d)', 18 + 2 * (13 - jj))
        for tt in range(2):
            for t in range(4):
                c = AB + (t * 2 + tt) * 4
                a('v_mfma_f32_16x16x32_bf16 %s, %s, %s, %s', V(c, 4), A((jj * 4 + t) * 4, 4), V(HF + (jj * 2 + tt) * 4, 4), V(c, 4) if jj else '0')
    a('s_mul_i32 s31, s12, 21846')
    a('s_lshr_b32 s31, s31, 16')
    a('s_mul_i32 s32, s31, 3')
    a('s_sub_u32 s32, s12, s32')
    a('s_lshl_b32 s32, s32, 7')
    a('v_add_u32 v12, s32, v5')
    a('s_and_b32 s32, s12, 1')
    a('s_lshl_b32 s32, s32, 9')
    a('v_add_u32 v13, s32, v6')
    a('v_cndmask_b32 v%d, v13, v12, s[60:61]', HF)
    a('s_add_u32 s31, s31, 1')
    a('s_lshr_b32 s32, s12, 1')
    a('s_add_u32 s32, s32, 1')
    a('v_mov_b32 v12, s31')
    a('v_mov_b32 v13, s32')
    a('v_cndmask_b32 v12, v13, v12, s[60:61]')
    a('s_mov_b32 s30, 0x%x', CNT)
    poll_ge(a, HF, 's30', 12, 13)
    PF, PM, VF = 20, 52, 60
    a('s_mul_i32 s30, s12, %d', PXSEG)
    a('s_add_u32 s30, s30, 0x%x', PX)
    a('s_lshl_b32 s31, s3, 13')
    a('s_add_u32 s31, s31, s30')
    a('s_add_u32 s32, s31, 4096')
    for i in range(8):
        a('buffer_load_dwordx4 %s, v1, s[8:11], s%d offen offset:%d sc1', V(PF + 4 * i, 4), 31 + (i >> 2), (i & 3) * 1024)
    a('s_lshl_b32 s31, s3, 11')
    a('s_add_u32 s31, s31, s30')
    a('s_add_u32 s31, s31, 32768')
    for tt in range(2): a('buffer_load_dwordx4 %s, v1, s[8:11], s31 offen offset:%d sc1', V(PM + 4 * tt, 4), 1024 * tt)
    a('s_mul_i32 s30, s12, %d', VSLOT)
    a('s_lshl_b32 s31, s3, 10')
    a('s_add_u32 s30, s30, s31')
    a('s_lshl_b32 s31, s6, 14')
    a('s_add_u32 s30, s30, s31')
    a('s_add_u32 s30, s30, 0x%x', VE)
    for t in range(4):
        a('buffer_load_dwordx4 %s, v1, s[8:11], s30 offen sc1', V(VF + 4 * t, 4))
        if t < 3: a('s_add_u32 s30, s30, 4096')
    for hh in range(4):
        a('s_waitcnt vmcnt(%d)', 6 + 2 * (3 - hh))
        for tt in range(2):
            for t in range(4):
                c = AA + (t * 2 + tt) * 4
                a('v_mfma_f32_16x16x32_bf16 %s, %s, %s, %s', V(c, 4), V(DF + (t * 4 + hh) * 4, 4), V(PF + (hh * 2 + tt) * 4, 4), V(c, 4) if hh else '0')
    a('s_waitcnt vmcnt(0)')
    for t in range(4):
        for tt in range(2):
            c = AA + (t * 2 + tt) * 4
            a('v_mfma_f32_16x16x32_bf16 %s, %s, %s, %s', V(c, 4), V(VF + 4 * t, 4), V(PM + 4 * tt, 4), V(c, 4))
    a('s_mul_i32 s30, s12, %d', 32 * 896)
    a('s_lshl_b32 s31, s6, 7')
    a('s_add_u32 s30, s30, s31')
    for t in range(4):
        for tt in range(2):
            i = (t * 2 + tt) * 4
            for r in range(4): a('v_sub_f32 v%d, v%d, v%d', AA + i + r, AA + i + r, AB + i + r)
            for r in range(4): a('v_fmac_f32 v%d, v%d, v%d', AB + i + r, GR + tt, AA + i + r)
            a('ds_write_b128 v9, %s offset:%d', V(AB + i, 4), tt * 16 * RO + t * 64)
    a('s_waitcnt lgkmcnt(0)')
    a('s_barrier')
    for w in range(4):
        for hf in range(2): a('ds_read_b128 %s, v10 offset:%d', V(20 + 8 * w + 4 * hf, 4), w * 32 * RO + 16 * hf)
    a('v_add_u32 v9, s50, v9')
    a('v_add_u32 v10, s50, v10')
    a('s_sub_u32 s50, 0, s50')
    for w in range(1, 4):
        a('s_waitcnt lgkmcnt(%d)', 2 * (3 - w))
        for i in range(4): a('v_pk_add_f32 %s, %s, %s', V(20 + 2 * i, 2), V(20 + 2 * i, 2), V(20 + 8 * w + 2 * i, 2))
    for d in range(4): a('v_cvt_pk_bf16_f32 v%d, v%d, v%d', 56 + d, 20 + 2 * d, 21 + 2 * d)
    a('buffer_store_dwordx4 v[56:59], v11, s[20:23], s30 offen')
    a('s_add_u32 s12, s12, %d', NSET_O)
    a('s_cmp_lt_u32 s12, 64')
    a('s_cbranch_scc1 ro_loop')
    if DEV: a('s_waitcnt vmcnt(0)')
    tl(a, 2)
    if DBGT:
        a('s_sub_u32 s82, s82, s92')
        a('v_mov_b32 v4, s82')
        a('v_mov_b32 v5, 32')
        a('buffer_atomic_umax v4, v5, s[44:47], 0 offen')
        for k in (1, 2, 3):
            a('s_sub_u32 s82, s%d, s92', 93 + k)
            a('v_mov_b32 v%d, s82', 6 + k)
            a('buffer_atomic_umax v%d, v5, s[44:47], 0 offen offset:%d', 6 + k, 4 * k)
    a('s_endpgm')
```

```python
import sys
from common import *
import fold, team, workers

HEADER = open('cdna_kernels/%s.s.ref' % NAME).read().split('; Override launch geometry')[0]
MAIN_LDS = team.TEAM_LDS

def kd(name, vgpr, acc, sgpr):
    return '''.p2align 6
.amdhsa_kernel %s
  .amdhsa_next_free_vgpr %d
  .amdhsa_next_free_sgpr %d
  .amdhsa_accum_offset %d
  .amdhsa_group_segment_fixed_size 0
  .amdhsa_kernarg_size 120
  .amdhsa_user_sgpr_count 2
  .amdhsa_user_sgpr_kernarg_segment_ptr 1
  .amdhsa_system_sgpr_workgroup_id_x 1
.end_amdhsa_kernel
''' % (name, vgpr, sgpr, acc)

def build(mask, dev=False, aslist=False):
    a = Asm()
    workers.DEV = fold.DEV = bool(dev)
    fold.OVERLAP = bool(dev) and 'ov' in dev.split('+')
    for x in (dev or '').split('+'):
        if x == 'wst01': fold.WST = 'sc0 sc1'
        if x == 'wstnt': fold.WST = 'nt sc1'
        if x.startswith('af'): fold.AFIRST = int(x[2:]); fold.BYK = False
    workers.DBGT = fold.DBGT = bool(dev) and 'dbgt' in dev
    nm = NAME + '_kernel'
    a.l.append('.globl %s\n.p2align 8\n.type %s,@function' % (nm, nm))
    a.label(nm)
    a('s_cmp_ge_u32 s2, 256')
    a('s_cbranch_scc1 quit')
    if dev: a('s_memrealtime s[92:93]')
    a('s_load_dwordx8 s[64:71], s[0:1], 0')
    a('s_load_dwordx4 s[72:75], s[0:1], 32')
    a('s_load_dwordx2 s[76:77], s[0:1], %d', KA['gw'])
    a('s_load_dwordx4 s[52:55], s[0:1], %d', KA['dbg'])
    a('v_lshrrev_b32 v1, 6, v0')
    a('v_and_b32 v0, 63, v0')
    a('v_readfirstlane_b32 s3, v1')
    a('s_waitcnt lgkmcnt(0)')
    a.srd(8, 54, team.OOB)
    a.srd(44, 52, 256)
    a.srd(60, 72, WBYTES)
    a.srd(16, 74, WBYTES)
    a.srd(36, 68, WBYTES)
    a.srd(56, 70, WBYTES)
    a.srd(20, 64, XBYTES)
    a.srd(24, 76, 896)
    a.srd(40, 66, 7168)
    fold.tl(a, 0)
    a('s_and_b32 s31, s2, 7')
    a('s_lshr_b32 s53, s2, 3')
    a('s_cmp_eq_u32 s31, 0')
    a('s_cbranch_scc1 die0')
    a('s_sub_u32 s31, s31, 1')
    a('s_lshl_b32 s31, s31, 5')
    a('s_add_u32 s53, s53, s31')
    fold.gen_fold(a)
    a('s_mov_b32 s30, s53')
    for bit, n, lab in ((2, 56, 'role_d'), (4, 48, 'role_xs'), (8, 28, 'role_f1'), (16, 91, 'role_fin')):
        a('s_cmp_lt_u32 s30, %d', n)
        a('s_cbranch_scc1 %s', lab if mask & bit else 'quit')
        a('s_sub_u32 s30, s30, %d', n)
        if lab == 'role_d':
            fold.wait_all(a, FLG_M, 256)
            if not (dev and 'nogate' in dev): fold.wait_started(a)
    a.label('quit')
    a('s_endpgm')
    a.label('die0')
    l = a.new('nj')
    a('s_cmp_eq_u32 s53, 31')
    a('s_cbranch_scc0 %s', l)
    fold.janitor(a)
    a.label(l)
    fold.misc_loads(a)
    fold.unit_fill(a)
    a('s_waitcnt vmcnt(0)')
    fold.misc_rest(a)
    fold.wait_janitor(a)
    a('s_add_u32 s34, s53, 224')
    fold.set_flag(a, FLG_M, 's34')
    a('s_mov_b32 s30, s53')
    team.gen_team(a, dev)
    workers.gen_d(a, vtail=bool(mask & 16))
    workers.gen_xs(a)
    workers.gen_f1(a)
    workers.gen_fin(a)
    s = HEADER
    if aslist: s += '; @launch kernel=%s grid=(256,1,1) block=(256,1,1) lds=%d\n' % (nm, MAIN_LDS)
    else: s += '; @launch grid=(256,1,1) block=(256,1,1) lds=%d\n' % MAIN_LDS
    s += '.amdgcn_target "amdgcn-amd-amdhsa--gfx950"\n.text\n' + a.text()
    s += '.section .rodata,"a"\n' + kd(nm, 512, 256, 100)
    return s

if __name__ == '__main__':
    out = sys.argv[1]
    dev = sys.argv[3] if len(sys.argv) > 3 else False
    open(out, 'w').write(build(int(sys.argv[2]), dev, aslist='/bench/' in out and 'dbgt' not in (dev or '')))
```

```python
from common import *
SPIN = 400000
DEV = False
DEPTH = 5
FINE = False
DBGT = False
OVERLAP = False
AFIRST = 16
BYK = True
WST = 'sc1'
LATEFLAG = False
LA, LB, LG = 0, 32768, 147456

def tl(a, k, base=0x3F20000):
    if DEV:
        a('s_memrealtime s[82:83]')
        a('s_waitcnt lgkmcnt(0)')
        a('s_lshl_b32 s84, s2, 4')
        a('s_add_u32 s84, s84, 0x%x', base)
        a('v_mov_b32 v250, s82')
        a('buffer_store_dword v250, off, s[8:11], s84 offset:%d', 4 * k)
        if DBGT and k:
            a('s_mov_b32 s%d, s82', 93 + k)

def rt(a, r):
    if FINE:
        a('s_memrealtime s[%d:%d]', r, r + 1)
        a('s_waitcnt lgkmcnt(0)')

def wait_words(a, voff, soff, width, wave0_only=True, R=244):
    lp, ok = a.new('ww'), a.new('wk')
    if wave0_only:
        a('s_cmp_eq_u32 s3, 0')
        a('s_cbranch_scc0 %s', ok)
    a('s_mov_b32 s14, 0')
    a.label(lp)
    srd = 's[44:47]' if soff is None else 's[8:11]'
    if width == 4:
        a('buffer_load_dwordx4 %s, %s, %s, %s offen sc1', V(R, 4), voff, srd, soff or '0')
        a('s_waitcnt vmcnt(0)')
        a('v_min3_u32 v%d, v%d, v%d, v%d', R, R, R + 1, R + 2)
        a('v_min_u32 v%d, v%d, v%d', R, R, R + 3)
    else:
        a('buffer_load_dword v%d, %s, %s, %s offen sc1', R, voff, srd, soff or '0')
        a('s_waitcnt vmcnt(0)')
    a('v_cmp_eq_u32 vcc, 0, v%d', R)
    a('s_cbranch_vccz %s', ok)
    a('s_sleep 3')
    a('s_add_u32 s14, s14, 1')
    a('s_cmp_lt_u32 s14, %d', SPIN)
    a('s_cbranch_scc1 %s', lp)
    a('s_endpgm')
    a.label(ok)
    if wave0_only: a('s_barrier')

def wait_all(a, base, n, R=244):
    a('v_min_u32 v%d, %d, v0', R - 1, n // 4 - 1)
    a('v_lshlrev_b32 v%d, 4, v%d', R - 1, R - 1)
    a('s_mov_b32 s31, 0x%x', base)
    wait_words(a, 'v%d' % (R - 1), 's31', 4, R=R)

def wait_head(a, base, hreg, n=14, R=244, w0=True):
    a('v_min_u32 v%d, %d, v0', R - 1, n - 1)
    a('v_lshlrev_b32 v%d, 2, v%d', R - 1, R - 1)
    a('s_mul_i32 s31, %s, 56', hreg)
    a('s_add_u32 s31, s31, 0x%x', base)
    wait_words(a, 'v%d' % (R - 1), 's31', 1, wave0_only=w0, R=R)

def set_flag(a, base, idx, younger=0, also=None):
    a('s_waitcnt vmcnt(%d)', younger)
    a('s_barrier')
    l = a.new('sf')
    a('s_cmp_eq_u32 s3, 0')
    a('s_cbranch_scc0 %s', l)
    a('s_lshl_b32 s31, %s, 2', idx)
    a('s_add_u32 s31, s31, 0x%x', base)
    a('v_mov_b32 v244, 1')
    a('buffer_store_dword v244, off, s[8:11], s31 sc1')
    if also:
        a('s_add_u32 s31, s31, %d', also - base)
        a('buffer_store_dword v244, off, s[8:11], s31 sc1')
    a.label(l)

def misc_loads(a):
    a('s_lshl_b32 s31, s3, 6')
    a('v_add_u32 v240, s31, v0')
    a('v_lshrrev_b32 v225, 3, v240')
    a('v_and_b32 v224, 7, v0')
    a('s_movk_i32 s31, 896')
    a('v_mul_u32_u24 v226, s31, v224')
    a('v_lshlrev_b32 v230, 4, v225')
    a('v_add_u32 v226, v226, v230')
    a('v_cmp_gt_u32 vcc, 192, v240')
    a('v_mov_b32 v227, 0x7000000')
    a('v_lshlrev_b32 v228, 4, v240')
    a('v_cndmask_b32 v227, v227, v226, vcc')
    a('s_mul_i32 s30, s2, 7168')
    a('buffer_load_dwordx4 v[208:211], v226, s[20:23], s30 offen')
    a('buffer_load_dwordx4 v[212:215], v227, s[20:23], s30 offen offset:512')
    a('buffer_load_dwordx4 v[216:219], v230, s[24:27], 0 offen')
    a('buffer_load_dwordx4 v[220:223], v230, s[24:27], 0 offen offset:512')
    return 4

def misc_rest(a):
    a('s_lshr_b32 s32, s2, 1')
    a('s_mul_i32 s32, s32, 14336')
    a('s_and_b32 s30, s2, 1')
    a('s_lshl_b32 s30, s30, 7')
    a('s_add_u32 s32, s32, s30')
    a('s_add_u32 s32, s32, 0x%x', XF)
    a('s_add_u32 s30, s32, 8192')
    a('v_cmp_gt_u32 vcc, 192, v240')
    a('v_lshlrev_b32 v233, 8, v225')
    a('v_lshl_add_u32 v233, v224, 4, v233')
    a('v_mov_b32 v232, 0x8000000')
    a('v_cndmask_b32 v232, v232, v233, vcc')
    a('buffer_store_dwordx4 v[208:211], v233, s[8:11], s32 offen sc1')
    a('buffer_store_dwordx4 v[212:215], v232, s[8:11], s30 offen sc1')
    a('v_mov_b32 v234, 0')
    for d in range(8): a('v_dot2_f32_bf16 v234, v%d, v%d, v234', 208 + d, 216 + d)
    a('v_lshlrev_b32 v232, 7, v224')
    a('v_lshl_add_u32 v232, v225, 2, v232')
    a('v_add_u32 v232, %d, v232', LG)
    a('s_nop 0')
    a('ds_write_b32 v232, v234')
    a('s_waitcnt lgkmcnt(0)')
    a('s_barrier')
    lg = a.new('ng')
    a('s_cmp_eq_u32 s3, 3')
    a('s_cbranch_scc0 %s', lg)
    a('v_lshlrev_b32 v232, 4, v0')
    a('v_add_u32 v232, %d, v232', LG)
    a('ds_read_b128 v[236:239], v232')
    a('s_waitcnt lgkmcnt(0)')
    a('v_add_f32 v233, v236, v237')
    a('v_add_f32 v238, v238, v239')
    a('v_add_f32 v233, v233, v238')
    for ctl in ('quad_perm:[1,0,3,2]', 'quad_perm:[2,3,0,1]', 'row_half_mirror'):
        a('s_nop 1')
        a('v_add_f32_dpp v233, v233, v233 %s row_mask:0xf bank_mask:0xf', ctl)
    a('v_mul_f32 v233, 0x%x, v233', fbits(-LOG2E))
    a('v_exp_f32 v233, v233')
    a('s_nop 0')
    a('v_add_f32 v233, 1.0, v233')
    a('v_rcp_f32 v233, v233')
    a('v_lshrrev_b32 v232, 3, v0')
    a('v_lshlrev_b32 v232, 2, v232')
    a('s_lshl_b32 s30, s2, 5')
    a('s_add_u32 s30, s30, 0x%x', GG)
    a('buffer_store_dword v233, v232, s[8:11], s30 offen sc1')
    a.label(lg)

def unit_fill(a):
    a('v_cmp_gt_u32 vcc, 192, v240')
    a('v_mov_b32 v229, 0x8000000')
    a('v_add_u32 v232, 4096, v228')
    a('v_cndmask_b32 v229, v229, v232, vcc')
    for r in range(8): a('v_mov_b32 v%d, -1', 200 + r)
    a('s_mul_i32 s30, s53, 7168')
    a('s_add_u32 s30, s30, 0x%x', U0)
    for k in (1, 3, 4):
        a('s_add_u32 s31, s30, %d', 32 * k * UNIT)
        if k == 4:
            a('s_cmp_lt_u32 s53, %d', NUNITS - 128)
            a('s_cselect_b32 s31, s31, 0x8000000')
        a('buffer_store_dwordx4 v[200:203], v228, s[8:11], s31 offen sc1')
        a('buffer_store_dwordx4 v[204:207], v229, s[8:11], s31 offen sc1')
    lm0, lst = a.new('m0'), a.new('fs')
    a('s_cmp_eq_u32 s53, 10')
    a('s_cbranch_scc0 %s', lst)
    a.label(lm0)
    a('v_bfe_u32 v232, v0, 2, 2')
    a('v_and_b32 v233, 1, v0')
    a('v_lshl_add_u32 v232, v232, 1, v233')
    a('s_movk_i32 s31, 896')
    a('v_mul_u32_u24 v232, s31, v232')
    a('v_lshrrev_b32 v233, 4, v240')
    a('v_lshl_add_u32 v232, v233, 5, v232')
    a('v_bfe_u32 v233, v0, 1, 1')
    a('v_lshl_add_u32 v232, v233, 2, v232')
    for r in range(2):
        for q in range(4): a('buffer_load_dword v%d, v232, s[40:43], 0 offen offset:%d', 200 + 4 * r + q, 8 * q + 512 * r)
    a('s_waitcnt vmcnt(0)')
    for r in range(8): a('v_min_u32 v%d, -2, v%d', 200 + r, 200 + r)
    a.label(lst)
    a('s_add_u32 s31, s30, %d', 64 * UNIT)
    for sr in (30, 31):
        a('buffer_store_dwordx4 v[200:203], v228, s[8:11], s%d offen sc1', sr)
        a('buffer_store_dwordx4 v[204:207], v229, s[8:11], s%d offen sc1', sr)

def wait_janitor(a):
    a('v_mov_b32 v243, 252')
    lp = a.new('wj')
    a('s_cmp_eq_u32 s3, 0')
    a('s_cbranch_scc0 %s', lp)
    wait_words(a, 'v243', None, 1, wave0_only=False)
    a.label(lp)

def janitor(a):
    for r in range(4): a('v_mov_b32 v%d, 0', 244 + r)
    a('v_lshlrev_b32 v243, 4, v0')
    a('s_mov_b32 s31, 0x%x', CNT)
    l = a.new('jn')
    a('s_cmp_eq_u32 s3, 0')
    a('s_cbranch_scc0 %s', l)
    for i in range(4): a('buffer_store_dwordx4 v[244:247], v243, s[8:11], s31 offen offset:%d sc1', 1024 * i)
    a('s_add_u32 s31, s31, 4096')
    a('buffer_store_dwordx4 v[244:247], v243, s[8:11], s31 offen sc1')
    a('s_waitcnt vmcnt(0)')
    a('v_mov_b32 v244, 1')
    a('buffer_store_dword v244, off, s[44:47], 0 offset:252 sc1')
    a.label(l)

def gen_fold(a):
    a('s_mul_i32 s4, s53, 4682')
    a('s_lshr_b32 s4, s4, 16')
    a('s_mul_i32 s31, s4, 14')
    a('s_sub_u32 s31, s53, s31')
    a('s_and_b32 s6, s31, 1')
    a('s_lshr_b32 s7, s31, 1')
    a('v_and_b32 v2, 15, v0')
    a('v_lshrrev_b32 v3, 4, v0')
    a('v_lshlrev_b32 v1, 4, v0')
    a('v_lshrrev_b32 v4, 5, v0')
    a('v_and_b32 v5, 31, v0')
    a('v_xor_b32 v5, v5, v4')
    a('s_and_b32 s31, s3, 1')
    a('s_lshl_b32 s30, s31, 3')
    a('v_xor_b32 v5, s30, v5')
    a('v_lshlrev_b32 v5, 4, v5')
    a('v_lshl_add_u32 v4, v4, 13, v5')
    a('s_lshl_b32 s28, s7, 2')
    a('s_add_u32 s28, s28, s3')
    a('s_lshl_b32 s28, s28, 17')
    a('s_lshl_b32 s29, s4, 9')
    a('s_add_u32 s28, s28, s29')
    a('s_lshl_b32 s48, s3, 13')
    def aside(srd):
        for ii in range(8):
            a('v_xor_b32 v5, %d, v4', ((2 * (ii & 1)) ^ (4 * (ii >> 2))) << 4)
            a('s_add_u32 m0, s48, %d', LA + 1024 * ii)
            a('s_add_u32 s33, s28, %d', 2 * ii * 8192)
            a('buffer_load_dwordx4 v5, %s, s33 offen lds', srd)
    a('s_mul_i32 s35, s4, 229376')
    a('s_mul_i32 s31, s3, 64*896')
    a('s_add_u32 s35, s35, s31')
    a('s_mul_i32 s31, s6, 448')
    a('s_add_u32 s35, s35, s31')
    a('s_mul_i32 s49, s3, 28672')
    a('s_add_u32 s49, s49, %d', LB)
    a('s_mul_i32 s50, s6, 224')
    a('s_mul_i32 s31, s3, 56')
    a('s_add_u32 s50, s50, s31')
    a('s_lshl_b32 s50, s50, 13')
    a('s_add_u32 s50, s50, s29')
    def issue(mat, mid):
        if mat:
            aside('s[60:63]')
            a('s_movk_i32 s31, 2341')
            a('s_movk_i32 s32, 896')
            for z in range(7):
                a('v_add_u32 v5, %d, v0', 64 * z)
                a('v_mul_u32_u24 v6, s31, v5')
                a('v_lshrrev_b32 v6, 16, v6')
                a('v_mul_u32_u24 v13, 28, v6')
                a('v_sub_u32 v13, v5, v13')
                a('v_mul_u32_u24 v6, s32, v6')
                a('v_lshl_add_u32 v%d, v13, 4, v6', 20 + z)
            for grp in range(4):
                a('s_add_u32 s31, s7, %d', grp)
                a('s_and_b32 s31, s31, 3')
                a('s_mul_i32 s32, s31, 14336')
                a('s_add_u32 s32, s32, s35')
                a('s_mul_i32 s31, s31, 7168')
                a('s_add_u32 s31, s31, s49')
                for z in range(7):
                    a('s_add_u32 m0, s31, %d', z * 1024)
                    a('s_nop 0')
                    a('buffer_load_dwordx4 v%d, s[16:19], s32 offen lds', 20 + z)
                if grp == 0 and mid: mid()
            return 21
        aside('s[36:39]')
        for q in range(7):
            a('s_add_u32 s31, s7, %d', q)
            a('s_cmp_ge_u32 s31, 7')
            a('s_cselect_b32 s32, 7, 0')
            a('s_sub_u32 s31, s31, s32')
            a('s_lshl_b32 s32, s31, 16')
            a('s_add_u32 s32, s32, s50')
            a('s_and_b32 s30, s31, 1')
            a('s_lshl_b32 s30, s30, 7')
            a('v_xor_b32 v6, s30, v4')
            a('s_lshl_b32 s31, s31, 12')
            a('s_add_u32 s31, s31, s49')
            for i in range(4):
                a('v_xor_b32 v5, %d, v6', (2 * i) << 4)
                a('s_add_u32 m0, s31, %d', 1024 * i)
                a('s_nop 0')
                a('buffer_load_dwordx4 v5, s[56:59], s32 offen lds')
                if i < 3: a('s_add_u32 s32, s32, 16384')
            if q == 0 and mid: mid()
        return 24
    def raddr():
        a('s_lshr_b32 s51, s3, 1')
        a('s_and_b32 s52, s3, 1')
        a('v_xor_b32 v6, v3, v2')
        a('v_lshlrev_b32 v6, 4, v6')
        a('v_lshrrev_b32 v7, 2, v2')
        a('v_lshlrev_b32 v7, 3, v7')
        a('v_and_b32 v8, 3, v0')
        a('v_add_u32 v7, v7, v8')
        a('v_lshl_add_u32 v7, v7, 9, v6')
        a('s_lshl_b32 s30, s51, 14')
        a('v_add_u32 v7, s30, v7')
        a('v_lshl_add_u32 v9, v2, 9, v6')
        a('s_mul_i32 s30, s52, 57344')
        a('s_add_u32 s30, s30, %d', LB)
        a('v_add_u32 v9, s30, v9')
        a('v_lshrrev_b32 v10, 2, v2')
        a('v_lshl_add_u32 v10, v3, 3, v10')
        a('s_movk_i32 s30, 448')
        a('v_mul_u32_u24 v10, s30, v10')
        a('v_lshl_add_u32 v10, v8, 3, v10')
        a('s_mul_i32 s30, s52, 224')
        a('s_add_u32 s30, s30, %d', LB)
        a('v_add_u32 v10, s30, v10')
    def warm(mat):
        a('v_bfe_u32 v5, v0, 2, 3')
        a('v_lshlrev_b32 v5, 13, v5')
        a('v_lshl_add_u32 v5, v8, 7, v5')
        a('s_lshl_b32 s30, s6, 16')
        a('s_add_u32 s30, s30, s28')
        a('buffer_load_dword v14, v5, %s, s30 offen', 's[60:63]' if mat else 's[36:39]')
        if mat:
            a('v_lshrrev_b32 v5, 2, v0')
            a('v_min_u32 v5, 9, v5')
            a('s_movk_i32 s31, 896')
            a('v_mul_u32_u24 v5, s31, v5')
            a('v_lshl_add_u32 v5, v8, 7, v5')
            a('s_mul_i32 s31, s7, 9*896')
            a('s_add_u32 s31, s31, s35')
            a('buffer_load_dword v15, v5, s[16:19], s31 offen')
        else:
            a('s_lshl_b32 s31, s7, 16')
            a('s_add_u32 s31, s31, s50')
            a('buffer_load_dword v15, v5, s[56:59], s31 offen')
    ACC, AF, BF = 48, 104, 168
    PFD = DEPTH
    def gemm(mat):
        seq = [(es, t) for es in range(8) for t in range(7)]
        def rdA(es):
            a('v_xor_b32 v11, %d, v7', es << 6)
            for u in range(2): a('ds_read_b128 %s, v11 offset:%d', V(AF + 8 * (es & 1) + 4 * u, 4), LA + 2048 * u)
        def rdB(i):
            es, t = seq[i]
            b = BF + 4 * (i % 8)
            if t == 0:
                if mat == 0: a('v_xor_b32 v12, %d, v9', es << 6)
                else: a('v_add_u32 v12, %d, v10', es * 14336)
            if mat == 0: a('ds_read_b128 %s, v12 offset:%d', V(b, 4), t * 8192)
            else:
                a('ds_read_b64_tr_b16 %s, v12 offset:%d', V(b, 2), t * 32)
                a('ds_read_b64_tr_b16 %s, v12 offset:%d', V(b + 2, 2), t * 32 + 1792)
        per = 2 if mat else 1
        rdA(0)
        issued = []
        for i in range(PFD): rdB(i); issued.append(per)
        for i, (es, t) in enumerate(seq):
            n = 0
            if t == 0 and es < 7: rdA(es + 1); n += 2
            if i + PFD < len(seq): rdB(i + PFD); n += per
            issued.append(n)
            a('s_waitcnt lgkmcnt(%d)', sum(issued[i + 1:]))
            for u in range(2):
                c = ACC + (t * 2 + u) * 4
                a('v_mfma_f32_16x16x32_bf16 %s, %s, %s, %s', V(c, 4), V(AF + 8 * (es & 1) + 4 * u, 4), V(BF + 4 * (i % 8), 4), V(c, 4) if es else '0')
    def store(mat):
        a('s_mul_i32 s30, s4, 28')
        a('s_mul_i32 s31, s6, 14')
        a('s_add_u32 s30, s30, s31')
        a('s_mul_i32 s31, s52, 7')
        a('s_add_u32 s30, s30, s31')
        a('s_mul_i32 s30, s30, 14')
        a('s_lshl_b32 s31, s7, 1')
        a('s_add_u32 s30, s30, s31')
        a('s_add_u32 s30, s30, s51')
        a('s_lshl_b32 s30, s30, 10')
        if mat: a('s_add_u32 s30, s30, 0x%x', WF_C)
        a('s_mov_b32 s31, 0x%x', fbits(LOG2E / 16.0))
        for t in range(7):
            c = ACC + t * 8
            if mat == 0:
                for r in range(8): a('v_mul_f32 v%d, s31, v%d', c + r, c + r)
            o = 136 + 4 * t
            for d in range(4): a('v_cvt_pk_bf16_f32 v%d, v%d, v%d', o + d, c + 2 * d, c + 2 * d + 1)
            a('buffer_store_dwordx4 %s, v1, s[8:11], s30 offen %s', V(o, 4), WST)
            if t < 6: a('s_add_u32 s30, s30, 14336')
    def flow(m1):
        m2 = 1 - m1
        n = issue(m1, lambda: misc_loads(a))
        a('buffer_load_dword v16, off, s[44:47], 0 offset:252 sc1')
        raddr()
        rt(a, 86)
        a('s_waitcnt vmcnt(0)')
        a('s_barrier')
        rt(a, 90)
        tl(a, 2)
        warm(m2)
        gemm(m1)
        rt(a, 80)
        store(m1)
        misc_rest(a)
        rt(a, 94)
        lj = a.new('js')
        a('v_cmp_eq_u32 vcc, 0, v16')
        a('s_cbranch_vccz %s', lj)
        wait_janitor(a)
        a.label(lj)
        if OVERLAP: issue(m2, None)
        set_flag(a, FLG_C if m1 else FLG_A, 's53', 36 if OVERLAP else 0, also=FLG_M)
        tl(a, 3)
        if not OVERLAP: issue(m2, None)
        a('s_waitcnt vmcnt(0)')
        a('s_barrier')
        gemm(m2)
        store(m2)
        set_flag(a, FLG_C if m2 else FLG_A, 's53')
        tl(a, 1)
        if FINE:
            a('s_lshl_b32 s84, s2, 5')
            a('s_add_u32 s84, s84, 0x3F40000')
            a('s_cmp_eq_u32 s3, 0')
            a('s_cselect_b32 s84, s84, 0x8000000')
            for k, r in enumerate((92, 86, 88, 90, 78, 80, 94)):
                a('v_mov_b32 v250, s%d', r)
                a('buffer_store_dword v250, off, s[8:11], s84 offset:%d', 4 * k)
                a('s_nop 1')
    l1, l2 = a.new('fa'), a.new('fe')
    if BYK: a('s_bitcmp1_b32 s7, 0')
    else: a('s_cmp_ge_u32 s4, %d', AFIRST)
    a('s_cbranch_scc1 %s', l1)
    flow(1)
    a('s_branch %s', l2)
    a.label(l1)
    flow(0)
    a.label(l2)

def wait_started(a):
    lp, ok = a.new('ws'), a.new('wo')
    a('s_cmp_eq_u32 s3, 0')
    a('s_cbranch_scc0 %s', ok)
    a('s_mov_b32 s14, 0')
    a('s_mov_b32 s31, 0x%x', MEME + UNIT)
    a.label(lp)
    a('buffer_load_dword v244, off, s[8:11], s31 sc1')
    a('s_waitcnt vmcnt(0)')
    a('v_cmp_eq_u32 vcc, -1, v244')
    a('s_cbranch_vccz %s', ok)
    a('s_sleep 8')
    a('s_add_u32 s14, s14, 1')
    a('s_cmp_lt_u32 s14, %d', SPIN)
    a('s_cbranch_scc1 %s', lp)
    a('s_endpgm')
    a.label(ok)
    a('s_barrier')

def wait_wave_heads(a):
    a('v_min_u32 v243, 55, v0')
    a('v_lshlrev_b32 v243, 2, v243')
    a('s_mul_i32 s31, s3, 224')
    a('s_add_u32 s31, s31, 0x%x', FLG_C)
    wait_words(a, 'v243', 's31', 1, wave0_only=False)

def wait_part(a, base, hreg, nheads, odd):
    a('v_min_u32 v243, %d, v0', 14 * nheads - 1)
    a('s_movk_i32 s31, 4682')
    a('v_mul_u32_u24 v242, s31, v243')
    a('v_lshrrev_b32 v242, 16, v242')
    a('v_mul_u32_u24 v242, 14, v242')
    a('v_sub_u32 v241, v243, v242')
    a('v_and_b32 v241, 2, v241')
    a('v_cmp_eq_u32 vcc, %d, v241', 2 if odd else 0)
    a('v_add_u32 v242, %d, v242', 2 if odd else 0)
    a('s_nop 0')
    a('v_cndmask_b32 v243, v242, v243, vcc')
    a('v_lshlrev_b32 v243, 2, v243')
    a('s_mul_i32 s31, %s, 56', hreg)
    a('s_add_u32 s31, s31, 0x%x', base)
    wait_words(a, 'v243', 's31', 1, wave0_only=False)

def wait_head_and_misc(a, base, hreg, n, R):
    lp, ok = a.new('wh'), a.new('wi')
    a('v_min_u32 v%d, %d, v0', R - 1, n - 1)
    a('v_lshlrev_b32 v%d, 2, v%d', R - 1, R - 1)
    a('s_mul_i32 s31, %s, 56', hreg)
    a('s_add_u32 s31, s31, 0x%x', base)
    a('s_mov_b32 s32, 0x%x', FLG_M)
    a('s_mov_b32 s14, 0')
    a.label(lp)
    a('buffer_load_dwordx4 %s, v1, s[8:11], s32 offen sc1', V(R, 4))
    a('buffer_load_dword v%d, v%d, s[8:11], s31 offen sc1', R + 4, R - 1)
    a('s_waitcnt vmcnt(0)')
    a('v_min3_u32 v%d, v%d, v%d, v%d', R, R, R + 1, R + 2)
    a('v_min3_u32 v%d, v%d, v%d, v%d', R, R, R + 3, R + 4)
    a('v_cmp_eq_u32 vcc, 0, v%d', R)
    a('s_cbranch_vccz %s', ok)
    a('s_sleep 3')
    a('s_add_u32 s14, s14, 1')
    a('s_cmp_lt_u32 s14, %d', SPIN)
    a('s_cbranch_scc1 %s', lp)
    a('s_endpgm')
    a.label(ok)
```

```python
from common import *
import fold

L_MEM = 0
L_T = 7680
L_S = L_T + 8192
L_X = L_S + 12288
ZXS = 28672 + 512
L_C = 7680
L_V = L_C + 4096
L_D = 32768
L_W = 98304
TEAM_LDS = L_W + 57344
SPIN = 200000
OOB = 0x8000000
NTEAM = 32

ORD_S = ([(0, 0), (1, 0), (0, 1), (1, 1), (2, 0), (3, 0), (2, 1), (3, 1), (4, 0), (5, 0), (6, 0), (4, 1), (5, 1), (6, 1)]
         + [(t, 2) for t in range(7)] + [(t, l) for t in range(7) for l in range(3, 7)])
ORD_C = [(t, l) for l in range(7) for t in range(8)]
CSPILL = [80, 88, 96, 104, 112, 52, 60]
def Wreg(i, n=8, off=0):
    if i >= 49: return V(CSPILL[i - 49] + off, n)
    return A(8 * i + off, n) if i < 32 else V(120 + 8 * (i - 32) + off, n)

def gen_team(a, dev=False):
    dev = set(dev.split('+')) if dev else set()
    def stamp(k):
        if 'st%d' % k in dev or 'stall' in dev: a('s_memtime s[%d:%d]', 64 + 2 * k, 65 + 2 * k)
    def bits(dst, spec, first=True):
        for pos, w, sh in spec:
            a('v_bfe_u32 v3, v0, %d, %d', pos, w)
            if first: a('v_lshlrev_b32 v%d, %d, v3', dst, sh); first = False
            else: a('v_lshl_add_u32 v%d, v3, %d, v%d', dst, sh, dst)
    def spin(lp):
        a('s_add_u32 s14, s14, 1')
        a('s_cmp_lt_u32 s14, %d', SPIN)
        a('s_cbranch_scc1 %s', lp)
        a('s_endpgm')
    def xdma():
        a('s_mov_b32 m0, s36')
        a('s_add_u32 s30, s34, 4096')
        for i in range(4): a('buffer_load_dwordx4 v1, s[8:11], s34 offen offset:%d sc1 lds', 1024 * i)
        a('s_add_u32 m0, s36, 4096')
        a('s_add_u32 s34, s34, %d', XSEG)
        for i in range(3): a('buffer_load_dwordx4 v1, s[8:11], s30 offen offset:%d sc1 lds', 1024 * i)
    def ddma(src0, src1):
        r = [['buffer_load_dwordx4 v1, s[8:11], %s offen offset:%d sc1 lds' % (src0, 1024 * i)] for i in range(4)]
        r[3].append('s_add_u32 m0, s37, 16384')
        r += [['buffer_load_dwordx4 v1, s[8:11], %s offen offset:%d sc1 lds' % (src1, 1024 * i)] for i in range(4)]
        return r
    def fcheck(src, tmp, seg):
        a('v_readfirstlane_b32 s29, v%d', src)
        a('s_cmp_le_u32 s29, %s', seg)
    def dwait(seg):
        lp, ok = a.new('dw'), a.new('dk')
        a('s_mov_b32 s14, 0')
        a.label(lp)
        a('buffer_load_dword v18, off, s[8:11], s49 sc1')
        a('s_waitcnt vmcnt(0)')
        fcheck(18, 3, seg)
        a('s_cbranch_scc0 %s', ok)
        a('s_sleep 1')
        spin(lp)
        a.label(ok)
    def xcc_gather():
        lp, l2 = a.new('xc'), a.new('xo')
        a('v_min_u32 v20, %d, v0', NTEAM - 1)
        a('v_lshlrev_b32 v20, 2, v20')
        a('s_mov_b32 s14, 0')
        a.label(lp)
        a('buffer_load_dword v3, v20, s[44:47], 0 offen sc1')
        a('s_waitcnt vmcnt(0)')
        a('v_cmp_eq_u32 vcc, 0, v3')
        a('s_cbranch_vccz %s', l2)
        spin(lp)
        a.label(l2)
    def frag_offsets():
        a('s_lshl_b32 s33, s3, 1')
        for lam in range(7):
            a('s_lshl_b32 s%d, s33, 10', 15 + lam)
            if lam < 6:
                a('s_add_u32 s33, s33, 1')
                a('s_cmp_ge_u32 s33, 7')
                a('s_cselect_b32 s32, 7, 0')
                a('s_sub_u32 s33, s33, s32')
    def wload(order, tile_off, early_odd, between):
        for ps in range(2):
            for lam in range(7):
                l = a.new('wl')
                a('s_bitcmp1_b32 s%d, 10', 15 + lam)
                a('s_cbranch_scc%d %s', 0 if (early_odd ^ ps) else 1, l)
                a('s_waitcnt vmcnt(40)')
                a('s_lshl_b32 s33, s%d, 1', 15 + lam)
                a('s_add_u32 s33, s33, s30')
                for i, (t, lm) in enumerate(order):
                    if lm != lam: continue
                    a('s_add_u32 s32, s33, %d', tile_off(t))
                    if i >= 49:
                        a('s_add_u32 m0, s29, %d', 2048 * (i - 49))
                        a('s_nop 0')
                        a('buffer_load_dwordx4 v1, s[8:11], s32 offen sc1 lds')
                        a('buffer_load_dwordx4 v1, s[8:11], s32 offen offset:1024 sc1 lds')
                    else:
                        a('buffer_load_dwordx4 %s, v1, s[8:11], s32 offen sc1', Wreg(i, 4, 0))
                        a('buffer_load_dwordx4 %s, v1, s[8:11], s32 offen offset:1024 sc1', Wreg(i, 4, 4))
                a.label(l)
            if ps == 0: between()

    a.label('team')
    if dev: a('s_memrealtime s[90:91]')
    a('s_and_b32 s4, s30, 15')
    a('s_lshr_b32 s5, s30, 4')
    a('s_getreg_b32 s31, hwreg(HW_REG_XCC_ID)')
    a('s_and_b32 s31, s31, 15')
    a('s_add_u32 s31, s31, 1')
    a('v_mov_b32 v3, s31')
    a('s_lshl_b32 s32, s30, 2')
    a('buffer_store_dword v3, off, s[44:47], s32 sc1')
    a('v_lshlrev_b32 v1, 4, v0')
    frag_offsets()
    a('s_cmp_ge_u32 s30, 30')
    a('s_cbranch_scc1 export')
    for r in range(4, 16): a('v_mov_b32 v%d, 0', r)
    a('v_and_b32 v3, 2, v0')
    a('v_cmp_eq_u32 s[58:59], 0, v3')
    a('v_mov_b32 v2, 0xeeee')
    a('v_mov_b32 v18, 0x4444')
    a('v_cndmask_b32 v2, v2, v18, s[58:59]')
    a('v_add_u32 v16, s15, v1')
    a('v_add_u32 v17, s16, v1')
    a('s_mov_b32 s49, 0x%x', HZ)
    a('v_cmp_gt_u32 s[62:63], 56, v0')
    lv, lj = a.new('iv'), a.new('ij')
    a('s_cmp_eq_u32 s5, 1')
    a('s_cbranch_scc1 %s', lv)
    fold.wait_part(a, FLG_A, 's4', 1, True)
    a('s_mul_i32 s30, s4, 28')
    a('s_mul_i32 s32, s3, 7')
    a('s_add_u32 s30, s30, s32')
    a('s_mul_i32 s30, s30, 14336')
    wload(ORD_S, lambda t: t * 14336, 1, lambda: fold.wait_head_and_misc(a, FLG_A, 's4', 14, 24))
    a('v_and_b32 v3, 8, v0')
    a('v_cmp_eq_u32 vcc, 0, v3')
    a('s_nop 1')
    a('v_cndmask_b32 v14, 0, 1.0, vcc')
    bits(4, [(2, 2, 6), (0, 1, 5), (4, 2, 3), (1, 1, 2)])
    bits(5, [(4, 2, 8), (0, 4, 3)])
    a('s_lshl_b32 s30, s3, 11')
    a('s_add_u32 s30, s30, %d', L_T)
    a('v_add_u32 v4, s30, v4')
    a('v_add_u32 v5, s30, v5')
    a('s_mul_i32 s30, s3, 3584')
    a('s_add_u32 s30, s30, %d', L_X)
    a('v_add_u32 v6, s30, v1')
    bits(8, [(5, 1, 8), (1, 2, 6), (0, 1, 4), (4, 1, 3)])
    a('s_mul_i32 s30, s3, 1792')
    a('v_add_u32 v8, s30, v8')
    a('v_add_u32 v9, 1024, v8')
    bits(10, [(4, 2, 9), (1, 1, 6), (2, 2, 4), (0, 1, 2)])
    bits(15, [(4, 2, 9), (3, 1, 7), (0, 1, 6), (1, 2, 4)])
    a('s_lshl_b32 s31, s3, 11')
    a('s_add_u32 s31, s31, %d', L_S)
    a('v_add_u32 v10, s31, v10')
    a('v_add_u32 v15, s31, v15')
    a('s_lshl_b32 s31, s3, 10')
    a('s_add_u32 s31, s31, %d', L_S)
    a('v_add_u32 v11, s31, v1')
    a('s_lshl_b32 s30, s4, 9')
    a('s_lshl_b32 s31, s3, 8')
    a('s_add_u32 s30, s30, s31')
    a('v_lshl_add_u32 v12, v0, 2, s30')
    bits(13, [(4, 2, 4), (0, 2, 2)])
    a('s_lshl_b32 s30, s4, 7')
    a('s_lshl_b32 s31, s3, 6')
    a('s_add_u32 s30, s30, s31')
    a('s_add_u32 s30, s30, 8192')
    a('v_add_u32 v13, s30, v13')
    a('v_and_b32 v3, 12, v0')
    a('v_cmp_eq_u32 vcc, 0, v3')
    a('v_mov_b32 v18, 0x%x', OOB)
    a('s_nop 0')
    a('v_cndmask_b32 v13, v18, v13, vcc')
    a('v_mov_b32 v3, 0')
    a('v_lshlrev_b32 v18, 2, v0')
    a('ds_write_b32 v18, v3 offset:%d', L_MEM + 7168)
    for w in range(4): a('ds_write_b32 v18, v3 offset:%d', L_T + w * 2048 + 1792)
    a('v_add_u32 v18, %d, v18', L_X + 28672)
    for o in (0, 256, ZXS, ZXS + 256): a('ds_write_b32 v18, v3 offset:%d', o)
    a('s_mov_b32 s50, %d', ZXS)
    a('s_mul_i32 s30, s3, 7168')
    a('s_add_u32 s34, s30, 0x%x', XF)
    a('s_add_u32 s36, s30, %d', L_X)
    xdma()
    a('s_lshl_b32 s31, s4, 10')
    a('s_add_u32 s27, s31, 0x%x', PR)
    a('s_cmp_lt_u32 s4, 10')
    a('s_cselect_b32 s27, s27, 0x%x', OOB)
    a('s_cmp_eq_u32 s3, 2')
    a('s_cselect_b32 s27, s27, 0x%x', OOB)
    a('s_lshl_b32 s31, s4, 2')
    a('s_add_u32 s31, s31, s3')
    if 'thalf' in dev:
        a('s_mul_i32 s35, s31, 3584')
        a('v_lshl_add_u32 v7, v0, 7, s35')
        a('v_lshrrev_b32 v3, 14, v7')
        a('v_lshl_add_u32 v7, v3, 14, v7')
        a('v_add_u32 v7, 0x%x, v7', DD + 2 * DSEG + 16384)
        a('v_cmp_gt_u32 s[62:63], 28, v0')
    elif 't34' in dev:
        a('s_mul_i32 s35, s31, 42')
        a('v_add_u32 v7, s35, v0')
        a('s_movk_i32 s35, 2731')
        a('v_mul_u32_u24 v3, s35, v7')
        a('v_lshrrev_b32 v3, 16, v3')
        a('v_lshl_add_u32 v7, v3, 3, v7')
        a('v_lshlrev_b32 v7, 7, v7')
        a('v_add_u32 v7, 0x%x, v7', DD + 2 * DSEG + 1024)
        a('v_cmp_gt_u32 s[62:63], 42, v0')
    else:
        a('s_mul_i32 s35, s31, 7168')
        a('s_add_u32 s35, s35, 0x%x', DD + 2 * DSEG)
        a('v_lshl_add_u32 v7, v0, 7, s35')
    a('s_lshl_b32 s31, s31, 9')
    a('s_add_u32 s31, s31, 0x%x', XF + 2 * XSEG)
    a('v_and_b32 v3, 3, v0')
    a('v_lshl_add_u32 v3, v3, 7, s31')
    if 'tx' in dev: a('v_cmp_gt_u32 s[62:63], 0, v0'); a('s_nop 1')
    a('v_cndmask_b32 v7, v3, v7, s[62:63]')
    a('s_mov_b32 s38, 0x%x', OOB)
    a('s_branch %s', lj)
    a.label(lv)
    a('s_lshl_b32 s34, s3, 2')
    fold.wait_part(a, FLG_C, 's34', 4, False)
    a('s_mul_i32 s30, s3, 4*28')
    a('s_lshl_b32 s32, s4, 1')
    a('s_add_u32 s30, s30, s32')
    a('s_mul_i32 s30, s30, 14336')
    a('s_add_u32 s30, s30, 0x%x', WF_C)
    a('s_mul_i32 s29, s3, 14336')
    a('s_add_u32 s29, s29, %d', L_W)
    wload(ORD_C, lambda t: ((t & 3) * 28 + (t >> 2)) * 14336, 0, lambda: fold.wait_head_and_misc(a, FLG_C, 's34', 56, 24))
    a('v_add_u32 v14, s29, v1')
    for r, i in zip((4, 5, 7, 12, 13), range(5)): a('v_add_u32 v%d, s%d, v1', r, 17 + i)
    bits(6, [(4, 2, 7), (2, 2, 5), (0, 1, 4)])
    a('s_mul_i32 s30, s3, 1536')
    a('s_sub_u32 s30, 8192, s30')
    a('v_add_u32 v6, s30, v6')
    a('v_mov_b32 v18, 0x%x', OOB)
    a('v_cndmask_b32 v6, v18, v6, s[58:59]')
    bits(8, [(4, 2, 7), (0, 4, 2)])
    a('s_lshl_b32 s30, s3, 9')
    a('s_add_u32 s30, s30, %d', L_C)
    a('v_add_u32 v8, s30, v8')
    bits(10, [(5, 1, 9), (2, 2, 7), (0, 1, 6), (4, 1, 5), (1, 1, 4)])
    a('s_lshl_b32 s48, s3, 11')
    a('s_add_u32 s48, s48, %d', L_V)
    bits(9, [(4, 2, 7), (2, 1, 6), (0, 2, 4), (3, 1, 3)])
    a('s_and_b32 s31, s3, 1')
    a('s_lshl_b32 s30, s31, 11')
    a('s_add_u32 s30, s30, %d', L_C)
    a('v_add_u32 v9, s30, v9')
    a('s_lshl_b32 s30, s4, 9')
    a('s_lshl_b32 s31, s31, 8')
    a('s_add_u32 s30, s30, s31')
    a('v_lshl_add_u32 v11, v0, 2, s30')
    a('s_lshl_b32 s30, s3, 12')
    a('s_lshl_b32 s31, s4, 15')
    a('s_add_u32 s35, s30, s31')
    a('s_add_u32 s35, s35, 0x%x', DD)
    a('s_add_u32 s37, s30, %d', L_D)
    dwait('0')
    a('s_mov_b32 m0, s37')
    a('s_add_u32 s30, s35, 16384')
    for grp in ddma('s35', 's30'):
        for i in grp: a(i)
        a('s_nop 0')
    a('s_add_u32 s35, s35, %d', DSEG)
    a('s_mov_b32 s38, s35')
    a('s_add_u32 s6, s35, 16384')
    a('s_mov_b32 s40, 0x%x', OOB)
    a('s_mov_b32 s13, 1')
    a.label(lj)
    xcc_gather()
    a('v_readfirstlane_b32 s31, v3')
    a('s_mov_b32 s12, 0')
    a('s_add_u32 s32, s15, 0x%x', MEMX)
    a('s_add_u32 s33, s16, 0x%x', MEMX)
    a('v_cmp_ne_u32 vcc, s31, v3')
    a('s_waitcnt lgkmcnt(0)')
    if dev:
        lc = a.new('cal')
        a('s_memrealtime s[82:83]')
        a('s_waitcnt lgkmcnt(0)')
        a.label(lc)
        a('s_memrealtime s[84:85]')
        a('s_memtime s[86:87]')
        a('s_waitcnt lgkmcnt(0)')
        a('s_cmp_eq_u32 s84, s82')
        a('s_cbranch_scc1 %s', lc)
    if 'slow' in dev: a('s_branch tslow')
    a('s_cbranch_vccnz tslow')
    a('s_cmp_eq_u32 s5, 1')
    a('s_cbranch_scc1 cloopF')
    a('s_branch sloopF')
    a.label('tslow')
    a('s_cmp_eq_u32 s5, 1')
    a('s_cbranch_scc1 cloopS')
    a('s_branch sloopS')
    a.label('tdie')
    a('s_endpgm')
    a.label('export')
    fold.wait_all(a, FLG_M, 256)
    a('s_cmp_eq_u32 s30, 31')
    a('s_cbranch_scc1 relay')
    a('s_mov_b32 s12, 1')
    a('v_min_u32 v7, 55, v0')
    a('v_lshlrev_b32 v7, 7, v7')
    a('s_mul_i32 s31, s3, %d', UNIT)
    a('s_add_u32 s31, s31, 0x%x', MEMX)
    a('buffer_load_dword v9, v7, s[8:11], s31 offen sc1')
    a('s_lshl_b32 s31, s3, 13')
    a('s_add_u32 s31, s31, 0x%x', PR)
    a('v_lshlrev_b32 v8, 7, v0')
    a('buffer_load_dword v9, v8, s[8:11], s31 offen sc1')
    a('s_add_u32 s31, s31, 8192')
    a('buffer_load_dword v9, v8, s[8:11], s31 offen sc1')
    if 'xw' in dev:
        a('s_mul_i32 s31, s3, 7168')
        a('s_add_u32 s31, s31, 0x%x', XF)
        for k in range(1, 4):
            a('s_add_u32 s31, s31, %d', XSEG)
            a('buffer_load_dword v9, v7, s[8:11], s31 offen sc1')
    a.label('exloop')
    a('s_mul_i32 s30, s12, %d', UNIT)
    a('s_add_u32 s34, s30, 0x%x', MEMX)
    a('s_add_u32 s32, s34, s15')
    a('s_add_u32 s33, s34, s16')
    a('s_add_u32 s34, s34, %d', 3 * UNIT)
    a('s_cmp_eq_u32 s3, 0')
    a('s_cselect_b32 s34, s34, 0x%x', OOB)
    a('buffer_load_dword v9, v7, s[8:11], s34 offen sc1')
    if 'xw' in dev:
        a('s_lshl_b32 s34, s12, 2')
        a('s_add_u32 s34, s34, s3')
        a('s_mul_i32 s34, s34, 7168')
        a('s_add_u32 s34, s34, 0x%x', XF + 3 * XSEG)
        a('buffer_load_dword v9, v7, s[8:11], s34 offen sc1')
    a('s_mov_b32 s14, 0')
    lp = a.new('ex')
    a.label(lp)
    a('buffer_load_dwordx4 v[20:23], v1, s[8:11], s32 offen sc1')
    a('buffer_load_dwordx4 v[24:27], v1, s[8:11], s33 offen sc1')
    a('s_add_u32 s14, s14, 1')
    a('s_cmp_lt_u32 s14, %d', SPIN)
    a('s_cbranch_scc0 tdie')
    a('s_waitcnt vmcnt(0)')
    a('v_max3_u32 v3, v20, v21, v22')
    a('v_max3_u32 v4, v23, v24, v25')
    a('v_max3_u32 v3, v26, v27, v3')
    a('v_max_u32 v3, v4, v3')
    a('v_cmp_eq_u32 vcc, -1, v3')
    a('s_cbranch_vccnz %s', lp)
    a('s_sub_u32 s32, s32, %d', MEMX - MEME)
    a('s_sub_u32 s33, s33, %d', MEMX - MEME)
    a('s_barrier')
    a('buffer_store_dwordx4 v[20:23], v1, s[8:11], s32 offen sc1')
    a('buffer_store_dwordx4 v[24:27], v1, s[8:11], s33 offen sc1')
    a('s_add_u32 s12, s12, 1')
    a('s_cmp_lt_u32 s12, 63')
    a('s_cbranch_scc1 exloop')
    a('s_endpgm')
    a.label('relay')
    a('s_cmp_eq_u32 s3, 0')
    a('s_cbranch_scc0 tdie')
    xcc_gather()
    a('v_readfirstlane_b32 s31, v3')
    a('s_mov_b32 s12, 0')
    a('s_mov_b32 s14, 0')
    a('s_mov_b32 s49, 0x%x', DPROG)
    a('v_cmp_ne_u32 s[62:63], s31, v3')
    a('v_and_b32 v3, 31, v0')
    a('v_cmp_gt_u32 s[60:61], 28, v3')
    a('v_lshlrev_b32 v4, 2, v0')
    a('v_lshrrev_b32 v5, 5, v0')
    a('s_mov_b32 s48, 0x%x', HZ)
    if 'slow' in dev: a('s_mov_b64 s[62:63], -1')
    a.label('reloop')
    a('buffer_load_dword v6, v4, s[8:11], s49 offen sc1')
    a('s_add_u32 s14, s14, 1')
    a('s_cmp_lt_u32 s14, %d', SPIN)
    a('s_cbranch_scc0 tdie')
    a('s_mov_b32 s13, s12')
    a('s_waitcnt vmcnt(0)')
    a('v_lshl_add_u32 v6, v6, 1, v5')
    a.label('reinc')
    a('v_cmp_ge_u32 vcc, s12, v6')
    a('s_nop 1')
    a('s_and_b64 vcc, vcc, s[60:61]')
    a('s_cbranch_scc1 repub')
    a('s_add_u32 s12, s12, 1')
    a('s_cmp_lt_u32 s12, 64')
    a('s_cbranch_scc1 reinc')
    a.label('repub')
    a('s_cmp_eq_u32 s12, s13')
    a('s_cbranch_scc1 reloop')
    a('v_mov_b32 v7, s12')
    a('s_cmp_eq_u64 s[62:63], 0')
    a('s_cbranch_scc0 reslow')
    a('buffer_store_dword v7, off, s[8:11], s48')
    a('s_branch renext')
    a.label('reslow')
    a('buffer_store_dword v7, off, s[8:11], s48 sc1')
    a.label('renext')
    a('s_cmp_lt_u32 s12, 63')
    a('s_cbranch_scc1 reloop')
    a('s_endpgm')

    def loop(role, mode):
        SC = ' sc1' if mode == 'S' else ''
        ORDER = ORD_S if role == 's' else ORD_C
        TACC = 20
        MF = 48 if role == 's' else 52
        SB, TA, SACC = 76, 100, 108
        VB, PF, CACC, DB, RT = 52, 60, 72, 80, 112
        TMP = TA if role == 's' else 19
        tails = []
        a.l.append('.p2align 6')
        a.label(role + 'loop' + mode)
        if dev:
            l = a.new('pp')
            a('s_cmp_eq_u32 s12, 8')
            a('s_cbranch_scc0 %s', l)
            a('s_memtime s[78:79]')
            a('s_memrealtime s[88:89]')
            a.label(l)
        if 'stall' in dev and role == 'c':
            a('s_waitcnt lgkmcnt(0)')
            a('s_mov_b32 s70, s76')
        def mpoll():
            a('buffer_load_dwordx4 %s, v1, s[8:11], s32 offen sc1', V(MF, 4))
            a('buffer_load_dwordx4 %s, v1, s[8:11], s33 offen sc1', V(MF + 4, 4))
        NE = 0
        if role == 'c':
            for x in dev:
                if x.startswith('ne'): NE = int(x[2:])
            dd = ddma('s38', 's6') if 'nod' not in dev else []
            a('s_xor_b32 s37, s37, 0x18000')
            a('s_cmp_lg_u32 s13, 0')
            lslow, lback = a.new('dq'), a.new('db')
            a('s_cbranch_scc1 %s', lslow)
            a.label(lback)
            tails.append(('dw', lslow, lback))
            a('s_mov_b32 m0, s37')
            a('s_nop 0')
            for grp in dd[:NE]:
                for ins in grp: a(ins)
                if len(grp) > 1: a('s_nop 0')
        if role == 'c': mpoll()
        for r in range(MF - TACC): a('v_mov_b32 v%d, 0', TACC + r)
        if role == 'c': mpoll()
        sc = ['s_and_b32 s30, s12, 3', 's_mul_i32 s22, s30, %d' % PSLOT, 's_add_u32 s22, s22, 0x%x' % PR,
              's_add_u32 s32, s32, %d' % UNIT, 's_add_u32 s33, s33, %d' % UNIT]
        if role == 's':
            for r in range(12): a('v_mov_b32 v%d, 0', SACC + r)
            for i in range(5): a('v_add_u32 v%d, s%d, v1', TA + 2 + i, 17 + i)
            radr = [TA + 2 + i for i in range(5)]
            if 'xt' in dev:
                a('s_add_u32 s36, s36, s50')
                a('s_mov_b32 m0, s36')
            sc += ['s_add_u32 s31, s12, 3', 's_and_b32 s31, s31, 3', 's_mul_i32 s24, s31, %d' % PSLOT, 's_add_u32 s24, s24, s27',
                   's_min_u32 s24, s24, 0x%x' % OOB]
        else:
            radr = [4, 5, 7, 12, 13]
            sc += ['s_lshl_b32 s31, s3, 11', 's_add_u32 s43, s22, s31', 's_sub_u32 s42, s32, s15', 's_xor_b32 s30, s37, 0x18000']
        MD = 2
        if role == 's':
            MD = 3
            for x in dev:
                if x.startswith('md'): MD = int(x[2:])
            for r in range(8): a('v_mov_b32 v%d, -1', MF + r)
            if 'now' not in dev: a('s_waitcnt vmcnt(0)')
        a('s_mov_b32 s14, 0')
        def smf(i):
            t, lam = ORDER[i]
            if 'nomf' + role in dev: a('s_nop 3'); return
            if 'chalf' in dev and role == 'c' and i >= 42: return
            for x in dev:
                if x.startswith('cs') and role == 'c': a('s_nop %d', int(x[2:]))
            a('v_smfmac_f32_16x16x64_bf16 %s, %s, %s, v2', V(TACC + 4 * t, 4), V(MF + 4 * lam, 4), Wreg(i))
        lp, lf = a.new('mp'), a.new('mf')
        if role == 'c': a('s_branch %s', lp)
        a.label(lf)
        for x in dev:
            if x.startswith('ms' + role): a('s_sleep %d', int(x[3:]))
        mpoll()
        a('s_add_u32 s14, s14, 1')
        a('s_cmp_lt_u32 s14, %d', SPIN)
        a('s_cbranch_scc0 tdie')
        a.label(lp)
        a('s_waitcnt vmcnt(%d)', 2 * MD - 2)
        a('v_max3_u32 v3, v%d, v%d, v%d', MF, MF + 1, MF + 2)
        a('v_max3_u32 v%d, v%d, v%d, v%d', TMP, MF + 3, MF + 4, MF + 5)
        a('v_max3_u32 v3, v%d, v%d, v3', MF + 6, MF + 7)
        a('v_max_u32 v3, v%d, v3', TMP)
        a('v_cmp_eq_u32 vcc, -1, v3')
        if 'm0' in dev:
            a('ds_write_b128 v16, %s', V(MF, 4))
            a('ds_write_b128 v17, %s', V(MF + 4, 4))
        a('s_cbranch_vccnz %s', lf)
        stamp(0)
        N = len(ORDER)
        gm = [[] for _ in range(N + 8)]
        gv = [[] for _ in range(N + 8)]
        pre = [[] for _ in range(N + 8)]
        rd = ['ds_read_b128 %s, v%d' % (V(MF + 8 + 4 * i, 4), radr[i]) for i in range(5)]
        if 'm0' not in dev:
            gm[0].append('ds_write_b128 v16, %s' % V(MF, 4))
            gm[1].append('ds_write_b128 v17, %s' % V(MF + 4, 4))
        GB = 5
        for x in dev:
            if x.startswith('gb') and role == 's': GB = int(x[2:])
        gm[GB] += ['s_waitcnt lgkmcnt(0)', 's_barrier', rd[0]]
        for i in range(1, 5): gm[GB + i].append(rd[i])
        for k in range(0, len(sc), 2): gv[(8 if role == 'c' else 20) + k // 2] += sc[k:k + 2]
        def place(ins, lo):
            k = lo
            while gm[k]: k += 1
            gm[k] += ins if isinstance(ins, list) else [ins]
            return k
        if role == 's':
            B0 = 21
            def epi(t):
                c = TACC + 4 * t
                return (['v_add_f32 v%d, v%d, v%d' % (c, c, c + 2), 'v_add_f32 v%d, v%d, v%d' % (c + 1, c + 1, c + 3),
                         'v_cvt_pk_bf16_f32 v%d, v%d, v%d' % (c, c, c + 1)], ['ds_write_b32 v4, v%d offset:%d' % (c, 256 * t)])
            for t in range(6):
                v, m = epi(t)
                for i, ins in enumerate(v): gv[B0 + 4 * t + 7 + i].append(ins)
                gm[B0 + 4 * t + 10].append(m[0])
            place('ds_read_b64_tr_b16 %s, v5' % V(TA, 2), B0 + 23)
            place('ds_read_b64_tr_b16 %s, v5 offset:128' % V(TA + 2, 2), B0 + 24)
            def brd(step, xb0, xb1, mb):
                r = []
                for kt, b in ((0, xb0), (1, xb1)):
                    for hh in range(2):
                        r.append('ds_read_b128 %s, v6 offset:%d' % (V(b + 4 * hh, 4), kt * 14336 + (2 * step + hh) * 1024))
                ad = 'v8' if step == 0 else 'v9'
                for hh in range(2):
                    for qq in range(2):
                        r.append('ds_read2_b32 %s, %s offset0:%d offset1:%d' % (V(mb + 4 * hh + 2 * qq, 2), ad, 128 * hh + qq, 128 * hh + qq + 8))
                return r
            place('buffer_load_dword v18, off, s[8:11], s49 sc1', GB)
            place('buffer_load_dword v19, v7, s[8:11], s38 offen' if 'notouch' not in dev else 'buffer_load_dword v19, off, s[8:11], s49 sc1', GB)
            if 'xt' in dev:
                xl = [['buffer_load_dwordx4 v1, s[8:11], s34 offen offset:%d sc1 lds' % (1024 * i)] for i in range(4)]
                xl[3] += ['s_add_u32 m0, s36, 4096', 's_add_u32 s28, s34, 4096']
                xl += [['buffer_load_dwordx4 v1, s[8:11], s28 offen offset:%d sc1 lds' % (1024 * i)] for i in range(3)]
                k, xs = GB + 7, 4
                for x in dev:
                    if x.startswith('xs'): xs = int(x[2:])
                for grp in xl: k = place(grp, k) + xs
            BL = 12
            for x in dev:
                if x.startswith('bl'): BL = int(x[2:])
            for ins in brd(0, SB, SB + 8, SB + 16): place(ins, BL)
            b1 = brd(1, TACC, TACC + 8, MF)
            k = 20
            while gm[k]: k += 1
            yv = sum(1 for kk in range(k) for x in gm[kk] if x.startswith('buffer_'))
            k = place(['s_waitcnt vmcnt(%d)' % yv, b1[4]], 20)
            for ins in b1[5:]: place(ins, k)
            for ins in b1[0:2]: place(ins, B0 + 15)
            for ins in b1[2:4]: place(ins, B0 + 23)
            def younger_ds(k0, k1): return sum(1 for kk in range(k0, k1) for x in gm[kk] if x.startswith('ds_'))
            pre[14].append('s_waitcnt lgkmcnt(%d)' % younger_ds(GB + 1, 14))
            pre[B0].append('s_waitcnt lgkmcnt(%d)' % younger_ds(GB + 5, B0))
        else:
            pre[16].append('s_waitcnt lgkmcnt(4)')
            pre[24].append('s_waitcnt lgkmcnt(0)')
            sp = 4
            for x in dev:
                if x.startswith('sp'): sp = int(x[2:])
            rest = dd[NE:]
            for i, grp in enumerate(rest): gm[12 + sp * i] += grp
            gm[10].append('buffer_load_dword v18, off, s[8:11], s49 sc1')
            wr = ['ds_read_b128 %s, v14 offset:%d' % (V(CSPILL[i >> 1] + 4 * (i & 1), 4), 1024 * i) for i in range(14)]
            for ins in wr[:10]: place(ins, 24)
            k = 38
            while gm[k]: k += 1
            younger = sum(1 for kk in range(k) for x in gm[kk] if x.startswith('buffer_'))
            k = place(['s_waitcnt vmcnt(%d)' % younger, wr[10]], 38)
            for ins in wr[11:]: place(ins, k)
            pre[49].append('s_waitcnt lgkmcnt(0)')
            gv[20].append('v_add_u32 v15, s30, v1')
        for k in range(N):
            for ins in pre[k]: a(ins)
            smf(k)
            for ins in gm[k] + gv[k]: a(ins)
        stamp(1)
        if role == 's':
            for kk in range(N, N + 3):
                for ins in gm[kk] + gv[kk]: a(ins)
            assert not any(gm[N + 3:]) and not any(gv[N + 3:])
            a('s_cmp_lt_u32 s3, 2')
            a('s_nop 1')
            v, m = epi(6)
            for ins in v + m: a(ins)
            a('ds_read_b64_tr_b16 %s, v5 offset:1024', V(TA + 4, 2))
            a('ds_read_b64_tr_b16 %s, v5 offset:1152', V(TA + 6, 2))
            a('s_waitcnt lgkmcnt(7)')
            for kt in range(3):
                a('v_smfmac_f32_16x16x64_bf16 %s, %s, %s, v2', V(SACC + 4 * kt, 4), V(TA, 4), V(SB + 8 * kt, 8))
            a('s_waitcnt lgkmcnt(0)')
            for kt, b in enumerate((TACC, TACC + 8, MF)):
                a('v_smfmac_f32_16x16x64_bf16 %s, %s, %s, v2', V(SACC + 4 * kt, 4), V(TA + 4, 4), V(b, 8))
            a('s_nop %d', 5 if 'tight' not in dev else 1)
            def sadd(kt):
                c = SACC + 4 * kt
                if 'nopk' not in dev: a('v_pk_add_f32 %s, %s, %s', V(c, 2), V(c, 2), V(c + 2, 2))
                else:
                    a('v_add_f32 v%d, v%d, v%d', c, c, c + 2)
                    a('v_add_f32 v%d, v%d, v%d', c + 1, c + 1, c + 3)
            def swr(kt):
                c = SACC + 4 * kt
                if kt < 2: a('ds_write2_b32 v10, v%d, v%d offset0:%d offset1:%d', c, c + 1, 32 * kt, 32 * kt + 64)
                else: a('ds_write2_b32 v15, v%d, v%d offset0:2 offset1:66', c, c + 1)
            if 'so0' not in dev: sadd(0); sadd(1); swr(0); sadd(2); swr(1); swr(2)
            else:
                for kt in range(3): sadd(kt); swr(kt)
            lns, ljn = a.new('ns'), a.new('jn')
            a('s_cbranch_scc0 %s', lns)
            tails.append(('nv', lns, ljn))
            def warm(key, regs):
                n = 0
                for x in dev:
                    if x.startswith(key): n = int(x[len(key):])
                for i in range(n):
                    a('v_mov_b32 v%d, 0', regs + i)
                    a('s_nop 2')
            warm('wa', TACC + 16)
            a('s_waitcnt lgkmcnt(0)')
            a('s_barrier')
            stamp(2)
            for w in range(4): a('ds_read_b96 %s, v11 offset:%d', V(76 + 4 * w, 3), 2048 * w) if 'b96' in dev else a('ds_read_b128 %s, v11 offset:%d', V(76 + 4 * w, 4), 2048 * w)
            warm('wb', TACC + 22)
            a('s_waitcnt lgkmcnt(2)')
            a('v_pk_add_f32 v[76:77], v[76:77], v[80:81]')
            a('v_add_f32 v78, v78, v82')
            a('s_waitcnt lgkmcnt(0)')
            a('v_pk_add_f32 v[84:85], v[84:85], v[88:89]')
            a('v_add_f32 v86, v86, v90')
            a('v_pk_add_f32 v[76:77], v[76:77], v[84:85]')
            a('v_add_f32 v78, v78, v86')
            DP = ('quad_perm:[1,0,3,2]', 'quad_perm:[2,3,0,1]', 'row_half_mirror', 'row_mirror')
            def dpp(op, d, s_, ctl): a('%s_dpp v%d, v%d, v%d %s row_mask:0xf bank_mask:0xf', op, d, s_, s_, ctl)
            a('v_max3_f32 v84, v76, v77, v78')
            a('v_sub_f32 v76, v76, v84')
            a('v_sub_f32 v77, v77, v84')
            dpp('v_max_f32', 85, 84, DP[0])
            a('v_sub_f32 v78, v78, v84')
            a('v_exp_f32 v76, v76')
            dpp('v_max_f32', 85, 85, DP[1])
            a('v_exp_f32 v77, v77')
            a('s_nop 0')
            dpp('v_max_f32', 85, 85, DP[2])
            a('v_exp_f32 v78, v78')
            a('v_add_f32 v86, v76, v77')
            dpp('v_max_f32', 85, 85, DP[3])
            a('v_sub_f32 v84, v84, v85')
            a('v_exp_f32 v84, v84')
            a('v_fmac_f32 v86, v78, v14')
            a('v_mul_f32 v86, v86, v84')
            a('v_mul_f32 v76, v76, v84')
            a('v_mul_f32 v77, v77, v84')
            dpp('v_add_f32', 86, 86, DP[0])
            a('v_mul_f32 v78, v78, v84')
            a('s_nop 0')
            for ctl in DP[1:]:
                dpp('v_add_f32', 86, 86, ctl)
                if ctl != DP[3]: a('s_nop 1')
            a('v_rcp_f32 v86, v86')
            a('s_nop 0')
            a('v_mul_f32 v76, v76, v86')
            a('v_mul_f32 v77, v77, v86')
            a('v_cvt_pk_bf16_f32 v88, |v76|, |v77|')
            a('buffer_store_dword v88, v12, s[8:11], s22 offen' + SC)
            a('v_mul_f32_dpp v79, v78, v86 row_shl:4 row_mask:0xf bank_mask:0xf bound_ctrl:0')
            a('v_mul_f32 v78, v78, v86')
            a('v_cvt_pk_bf16_f32 v90, |v78|, |v79|')
            a('buffer_store_dword v90, v13, s[8:11], s22 offen' + SC)
            stamp(3)
            a('s_waitcnt vmcnt(%d)', 3 + (7 if 'xt' in dev else 0))
            a.label(ljn)
            a('s_barrier')
            if 'xt' in dev:
                a('v_add_u32 v6, s50, v6')
                a('s_sub_u32 s50, 0, s50')
                a('s_add_u32 s34, s34, %d', XSEG)
            elif 'nox' not in dev: xdma()
            a('v_add_u32 v7, %d, v7', XSEG)
            a('s_mov_b64 exec, s[62:63]')
            a('v_add_u32 v7, %d, v7', DSEG - XSEG)
            a('s_mov_b64 exec, -1')
            a('s_add_u32 s31, s12, 3')
            fcheck(18, 3, 's31')
            a('s_cselect_b32 s38, 0x%x, 0', OOB)
            a('s_cmp_gt_u32 s31, 62')
            a('s_cselect_b32 s38, 0x%x, s38', OOB)
            for x in dev:
                if x.startswith('ds'): a('s_sleep %d', int(x[2:]))
        else:
            assert not any(gm[N:]) and not any(gv[N:])
            def pld1(k):
                a('buffer_load_dwordx4 %s, %s, s[8:11], s43 offen offset:%d sc1', V(PF + 4 * k, 4), 'v10' if k else 'v6', 1024 if k == 2 else 0)
            def pld():
                for k in range(3): pld1(k)
            for i in range(8): a('ds_read_b128 %s, v15 offset:%d', V(DB + 4 * i, 4), 1024 * (i & 3) + 16384 * (i >> 2))
            pld()
            for t in range(8):
                c = TACC + 4 * t
                a('v_add_f32 v%d, v%d, v%d', c, c, c + 2)
                a('v_add_f32 v%d, v%d, v%d', c + 1, c + 1, c + 3)
                a('v_cvt_pk_bf16_f32 v%d, v%d, v%d', c, c, c + 1)
                if t == 0:
                    bits(19, [(0, 4, 4), (4, 2, 2)])
                    a('v_add_u32 v19, s48, v19')
                else: a('ds_write_b32 v19, v%d offset:%d', c - 4, 256 * (t - 1))
            a('v_add_u32 v3, s48, v1')
            a('ds_write_b32 v19, v%d offset:%d', TACC + 28, 256 * 7)
            a('ds_read_b128 %s, v3', V(VB, 4))
            a('ds_read_b128 %s, v3 offset:1024', V(VB + 4, 4))
            a('v_add_u32 v15, 2048, v8')
            a('s_waitcnt vmcnt(3)')
            a('s_add_u32 s35, s35, %d', DSEG)
            a('s_add_u32 s31, s12, 2')
            fcheck(18, 3, 's31')
            a('s_cselect_b32 s13, 1, 0')
            a('s_add_u32 s6, s35, 16384')
            a('s_cmp_gt_u32 s31, 62')
            a('s_cselect_b32 s38, 0x%x, s35', OOB)
            a('s_cselect_b32 s6, 0x%x, s6', OOB)
            a('s_cselect_b32 s13, 0, s13')
            a('s_mov_b32 s14, 0')
            stamp(4)
            a('s_waitcnt lgkmcnt(0)')
            lr, lq = a.new('pr'), a.new('pq')
            def pchk():
                a('v_or3_b32 v3, v%d, v%d, v%d', PF, PF + 1, PF + 2)
                a('v_or3_b32 v19, v%d, v%d, v%d', PF + 3, PF + 4, PF + 5)
                a('v_or3_b32 v3, v%d, v%d, v3', PF + 6, PF + 7)
                a('v_or3_b32 v19, v%d, v%d, v19', PF + 8, PF + 9)
                a('v_or3_b32 v3, v%d, v%d, v3', PF + 10, PF + 11)
                a('v_or_b32 v3, v19, v3')
                a('v_cmp_gt_i32 vcc, 0, v3')
            if 'pone' not in dev:
                a.label(lr)
                pld()
                a('s_add_u32 s14, s14, 1')
                a('s_cmp_lt_u32 s14, %d', SPIN)
                a('s_cbranch_scc0 tdie')
                a('s_waitcnt vmcnt(3)')
                pchk()
                a('v_mfma_f32_16x16x32_bf16 %s, %s, %s, 0', V(CACC, 4), V(PF, 4), V(VB, 4))
                a('s_cmp_lt_u32 s3, 2')
                a('s_cbranch_vccnz %s', lr)
            else:
                PD = 3
                for x in dev:
                    if x.startswith('pq'): PD = int(x[2:])
                a('s_waitcnt vmcnt(0)')
                a.label(lr)
                for k in range(3):
                    pld1(k)
                    if k == 0:
                        a('s_add_u32 s14, s14, 1')
                        a('s_cmp_lt_u32 s14, %d', SPIN)
                        a('s_cbranch_scc0 tdie')
                    a('s_waitcnt vmcnt(%d)', PD)
                    pchk()
                    a('s_cbranch_vccz %s' % lq if k < 2 else 's_cbranch_vccnz %s' % lr)
                a.label(lq)
                a('v_mfma_f32_16x16x32_bf16 %s, %s, %s, 0', V(CACC, 4), V(PF, 4), V(VB, 4))
                a('s_cmp_lt_u32 s3, 2')
            a('v_smfmac_f32_16x16x64_bf16 %s, %s, %s, v2', V(CACC, 4), V(PF + 4, 4), V(DB, 8))
            a('v_smfmac_f32_16x16x64_bf16 %s, %s, %s, v2', V(CACC, 4), V(PF + 8, 4), V(DB + 8, 8))
            a('v_mfma_f32_16x16x32_bf16 %s, %s, %s, 0', V(CACC + 4, 4), V(PF, 4), V(VB + 4, 4))
            a('v_smfmac_f32_16x16x64_bf16 %s, %s, %s, v2', V(CACC + 4, 4), V(PF + 4, 4), V(DB + 16, 8))
            a('v_smfmac_f32_16x16x64_bf16 %s, %s, %s, v2', V(CACC + 4, 4), V(PF + 8, 4), V(DB + 24, 8))
            stamp(5)
            a('v_add_f32 v%d, v%d, v%d', CACC, CACC, CACC + 2)
            a('v_add_f32 v%d, v%d, v%d', CACC + 1, CACC + 1, CACC + 3)
            a('ds_write2_b32 v8, v%d, v%d offset0:0 offset1:16', CACC, CACC + 1)
            a('s_nop 4')
            a('v_add_f32 v%d, v%d, v%d', CACC + 4, CACC + 4, CACC + 6)
            a('v_add_f32 v%d, v%d, v%d', CACC + 5, CACC + 5, CACC + 7)
            a('ds_write2_b32 v15, v%d, v%d offset0:0 offset1:16', CACC + 4, CACC + 5)
            lnr, ljr = a.new('nr'), a.new('jr')
            a('s_cbranch_scc0 %s', lnr)
            tails.append(('ns', lnr, ljr))
            a('s_waitcnt lgkmcnt(0)')
            a('s_barrier')
            for w in range(4): a('ds_read_b64 %s, v9 offset:%d', V(RT + 2 * w, 2), 512 * w)
            a('s_waitcnt lgkmcnt(2)')
            a('v_pk_add_f32 %s, %s, %s', V(RT, 2), V(RT, 2), V(RT + 2, 2))
            a('s_waitcnt lgkmcnt(0)')
            a('v_pk_add_f32 %s, %s, %s', V(RT + 4, 2), V(RT + 4, 2), V(RT + 6, 2))
            a('v_pk_add_f32 %s, %s, %s', V(RT, 2), V(RT, 2), V(RT + 4, 2))
            a('v_cvt_pk_bf16_f32 v%d, v%d, v%d', RT, RT, RT + 1)
            a('v_min_u32 v%d, -2, v%d', RT, RT)
            a('buffer_store_dword v%d, v11, s[8:11], s42 offen%s', RT, SC)
            stamp(6)
            a('s_barrier')
            a('s_mov_b32 s40, 0x%x', MEME + 63 * UNIT)
            a.label(ljr)
            for x in dev:
                if x.startswith('dc'): a('s_sleep %d', int(x[2:]))
        if dev and role == 's':
            l = a.new('ts')
            a('s_lshl_b32 s30, s4, 2')
            a('s_add_u32 s30, s30, s3')
            a('s_cmp_eq_u32 s30, 63')
            a('s_cbranch_scc0 %s', l)
            a('s_memtime s[80:81]')
            a('s_lshl_b32 s30, s12, 2')
            a('s_add_u32 s30, s30, 0x3F30000')
            a('s_waitcnt lgkmcnt(0)')
            a('v_mov_b32 v99, s80')
            a('buffer_store_dword v99, off, s[8:11], s30')
            a.label(l)
        if dev:
            ld = a.new('dv')
            a('s_cmp_eq_u32 s12, 40')
            a('s_cbranch_scc0 %s', ld)
            a('s_memtime s[80:81]')
            a('s_memrealtime s[82:83]')
            a('s_waitcnt lgkmcnt(0)')
            a('s_sub_u32 s78, s80, s78')
            a('s_sub_u32 s88, s82, s88')
            a('s_lshl_b32 s30, s5, 4')
            a('s_add_u32 s30, s30, s4')
            a('s_lshl_b32 s30, s30, 2')
            a('s_add_u32 s30, s30, s3')
            a('s_lshl_b32 s30, s30, 6')
            a('s_add_u32 s30, s30, 0x3F00000')
            for kk in range(13):
                a('v_mov_b32 v99, s%d', 64 + 2 * kk)
                a('buffer_store_dword v99, off, s[8:11], s30 offset:%d', 4 * kk)
                a('s_nop 1')
            a.label(ld)
        a('s_add_u32 s12, s12, 1')
        a('s_cmp_lt_u32 s12, 63')
        a('s_cbranch_scc1 %sloop%s', role, mode)
        if role == 'c': a('buffer_store_dword v%d, v11, s[8:11], s40 offen sc1', RT)
        if dev:
            a('s_memrealtime s[82:83]')
            a('s_waitcnt lgkmcnt(0)')
            a('s_lshl_b32 s30, s2, 4')
            a('s_add_u32 s30, s30, 0x3F10000')
            for kk, r in enumerate((90, 84, 82)):
                a('v_mov_b32 v99, s%d', r)
                a('buffer_store_dword v99, off, s[8:11], s30 offset:%d', 4 * kk)
                a('s_nop 1')
            if 'dbgt' in dev:
                l = a.new('dt')
                a('s_cmp_eq_u32 s4, 5')
                a('s_cbranch_scc0 %s', l)
                a('s_lshl_b32 s30, s5, 4')
                for kk, r in enumerate((90, 84, 82, 78)):
                    if r != 78: a('s_sub_u32 s31, s%d, s92', r)
                    else: a('s_mov_b32 s31, s78')
                    a('v_mov_b32 v99, s31')
                    a('buffer_store_dword v99, off, s[44:47], s30 offset:%d', 4 * kk)
                    a('s_nop 1')
                a.label(l)
        a('s_endpgm')
        for p in tails:
            a.label(p[1])
            if p[0] == 'dw':
                a('s_add_u32 s31, s12, 1')
                dwait('s31')
                a('s_branch %s', p[2])
            elif p[0] == 'nv':
                for r in range(4): a('v_mov_b32 v%d, -1', 92 + r)
                a('s_waitcnt lgkmcnt(0)')
                a('s_barrier')
                a('buffer_store_dwordx4 v[92:95], v1, s[8:11], s24 offen' + SC)
                a('s_waitcnt vmcnt(%d)', 2 + (7 if 'xt' in dev else 0))
                a('s_branch %s', p[2])
            elif p[0] == 'ns':
                a('s_waitcnt lgkmcnt(0)')
                a('s_barrier')
                a('s_barrier')
                a('s_branch %s', p[2])
    for mode in 'FS':
        for role in 'sc': loop(role, mode)
```

```python
import sys
from common import *
import fold, team, workers

HEADER = open('cdna_kernels/%s.s.ref' % NAME).read().split('; Override launch geometry')[0]
MAIN_LDS = team.TEAM_LDS

def kd(name, vgpr, acc, sgpr):
    return '''.p2align 6
.amdhsa_kernel %s
  .amdhsa_next_free_vgpr %d
  .amdhsa_next_free_sgpr %d
  .amdhsa_accum_offset %d
  .amdhsa_group_segment_fixed_size 0
  .amdhsa_kernarg_size 120
  .amdhsa_user_sgpr_count 2
  .amdhsa_user_sgpr_kernarg_segment_ptr 1
  .amdhsa_system_sgpr_workgroup_id_x 1
.end_amdhsa_kernel
''' % (name, vgpr, sgpr, acc)

def build(mask, dev=False, aslist=False):
    a = Asm()
    workers.DEV = fold.DEV = bool(dev)
    fold.FINE = bool(dev) and 'fine' in dev
    fold.OVERLAP = bool(dev) and 'ov' in dev.split('+')
    for x in (dev or '').split('+'):
        if x.startswith('fd'): fold.DEPTH = int(x[2:])
        if x == 'wst01': fold.WST = 'sc0 sc1'
        if x == 'wstnt': fold.WST = 'nt sc1'
        if x.startswith('af'): fold.AFIRST = int(x[2:]); fold.BYK = False
    workers.DBGT = fold.DBGT = bool(dev) and 'dbgt' in dev
    nm = NAME + '_kernel'
    a.l.append('.globl %s\n.p2align 8\n.type %s,@function' % (nm, nm))
    a.label(nm)
    a('s_cmp_ge_u32 s2, 256')
    a('s_cbranch_scc1 quit')
    if dev: a('s_memrealtime s[92:93]')
    a('s_load_dwordx8 s[64:71], s[0:1], 0')
    a('s_load_dwordx4 s[72:75], s[0:1], 32')
    a('s_load_dwordx2 s[76:77], s[0:1], %d', KA['gw'])
    a('s_load_dwordx4 s[52:55], s[0:1], %d', KA['dbg'])
    a('v_lshrrev_b32 v1, 6, v0')
    a('v_and_b32 v0, 63, v0')
    a('v_readfirstlane_b32 s3, v1')
    if not (dev and 'nocw' in dev):
        a('s_getpc_b64 s[32:33]')
        a.label('pcref')
        a('s_lshr_b32 s31, s2, 3')
        a('s_lshl_b32 s31, s31, 2')
        a('s_add_u32 s31, s31, s3')
        a('s_and_b32 s31, s31, 7')
        a('s_lshl_b32 s31, s31, 13')
        a('v_lshl_add_u32 v252, v0, 7, s31')
        a('v_min_u32 v252, codeend-pcref-4, v252')
        a('global_load_dword v253, v252, s[32:33]')
    a('s_waitcnt lgkmcnt(0)')
    a.srd(8, 54, team.OOB)
    a.srd(44, 52, 256)
    a.srd(60, 72, WBYTES)
    a.srd(16, 74, WBYTES)
    a.srd(36, 68, WBYTES)
    a.srd(56, 70, WBYTES)
    a.srd(20, 64, XBYTES)
    a.srd(24, 76, 896)
    a.srd(40, 66, 7168)
    fold.tl(a, 0)
    a('s_and_b32 s31, s2, 7')
    a('s_lshr_b32 s53, s2, 3')
    a('s_cmp_eq_u32 s31, 0')
    a('s_cbranch_scc1 die0')
    a('s_sub_u32 s31, s31, 1')
    a('s_lshl_b32 s31, s31, 5')
    a('s_add_u32 s53, s53, s31')
    fold.gen_fold(a)
    a('s_mov_b32 s30, s53')
    for bit, n, lab in ((2, 56, 'role_d'), (4, 48, 'role_xs'), (8, 28, 'role_f1'), (16, 91, 'role_fin')):
        a('s_cmp_lt_u32 s30, %d', n)
        a('s_cbranch_scc1 %s', lab if mask & bit else 'quit')
        a('s_sub_u32 s30, s30, %d', n)
        if lab == 'role_d':
            fold.wait_all(a, FLG_M, 256)
            if not (dev and 'nogate' in dev): fold.wait_started(a)
    a.label('quit')
    a('s_endpgm')
    a.label('die0')
    l = a.new('nj')
    a('s_cmp_eq_u32 s53, 31')
    a('s_cbranch_scc0 %s', l)
    fold.janitor(a)
    a.label(l)
    fold.misc_loads(a)
    fold.unit_fill(a)
    a('s_waitcnt vmcnt(0)')
    fold.misc_rest(a)
    fold.wait_janitor(a)
    a('s_add_u32 s34, s53, 224')
    fold.set_flag(a, FLG_M, 's34')
    a('s_mov_b32 s30, s53')
    team.gen_team(a, dev)
    workers.gen_d(a, vtail=bool(mask & 16))
    workers.gen_xs(a)
    workers.gen_f1(a)
    workers.gen_fin(a)
    a.label('codeend')
    s = HEADER
    if aslist: s += '; @launch kernel=%s grid=(256,1,1) block=(256,1,1) lds=%d\n' % (nm, MAIN_LDS)
    else: s += '; @launch grid=(256,1,1) block=(256,1,1) lds=%d\n' % MAIN_LDS
    s += '.amdgcn_target "amdgcn-amd-amdhsa--gfx950"\n.text\n' + a.text()
    s += '.section .rodata,"a"\n' + kd(nm, 512, 256, 100)
    return s

if __name__ == '__main__':
    out = sys.argv[1]
    dev = sys.argv[3] if len(sys.argv) > 3 else False
    open(out, 'w').write(build(int(sys.argv[2]), dev, aslist='/bench/' in out and 'dbgt' not in (dev or '') and 'amp' not in (dev or '')))
```

```python
from common import *
import fold

L_MEM = 0
L_T = 7680
L_S = L_T + 8192
L_X = L_S + 12288
ZXS = 28672 + 512
L_C = 7680
L_V = L_C + 4096
L_D = 32768
L_W = 98304
TEAM_LDS = L_W + 57344
SPIN = 200000
OOB = 0x8000000
NTEAM = 32

ORD_S = ([(0, 0), (1, 0), (0, 1), (1, 1), (2, 0), (3, 0), (2, 1), (3, 1), (4, 0), (5, 0), (6, 0), (4, 1), (5, 1), (6, 1)]
         + [(t, 2) for t in range(7)] + [(t, l) for t in range(7) for l in range(3, 7)])
ORD_C = [(t, l) for l in range(7) for t in range(8)]
CSPILL = [80, 88, 96, 104, 112, 52, 60]
def Wreg(i, n=8, off=0):
    if i >= 49: return V(CSPILL[i - 49] + off, n)
    return A(8 * i + off, n) if i < 32 else V(120 + 8 * (i - 32) + off, n)

def gen_team(a, dev=False):
    dev = set(dev.split('+')) if dev else set()
    def stamp(k):
        if 'st%d' % k in dev or 'stall' in dev: a('s_memtime s[%d:%d]', 64 + 2 * k, 65 + 2 * k)
    def bits(dst, spec, first=True):
        for pos, w, sh in spec:
            a('v_bfe_u32 v3, v0, %d, %d', pos, w)
            if first: a('v_lshlrev_b32 v%d, %d, v3', dst, sh); first = False
            else: a('v_lshl_add_u32 v%d, v3, %d, v%d', dst, sh, dst)
    def spin(lp):
        a('s_add_u32 s14, s14, 1')
        a('s_cmp_lt_u32 s14, %d', SPIN)
        a('s_cbranch_scc1 %s', lp)
        a('s_endpgm')
    def xdma():
        a('s_mov_b32 m0, s36')
        a('s_add_u32 s30, s34, 4096')
        for i in range(4): a('buffer_load_dwordx4 v1, s[8:11], s34 offen offset:%d sc1 lds', 1024 * i)
        a('s_add_u32 m0, s36, 4096')
        a('s_add_u32 s34, s34, %d', XSEG)
        for i in range(3): a('buffer_load_dwordx4 v1, s[8:11], s30 offen offset:%d sc1 lds', 1024 * i)
    def ddma(src0, src1):
        r = [['buffer_load_dwordx4 v1, s[8:11], %s offen offset:%d sc1 lds' % (src0, 1024 * i)] for i in range(4)]
        r[3].append('s_add_u32 m0, s37, 16384')
        r += [['buffer_load_dwordx4 v1, s[8:11], %s offen offset:%d sc1 lds' % (src1, 1024 * i)] for i in range(4)]
        return r
    def fcheck(src, tmp, seg):
        a('v_readfirstlane_b32 s29, v%d', src)
        a('s_cmp_le_u32 s29, %s', seg)
    def dwait(seg):
        lp, ok = a.new('dw'), a.new('dk')
        a('s_mov_b32 s14, 0')
        a.label(lp)
        a('buffer_load_dword v18, off, s[8:11], s49 sc1')
        a('s_waitcnt vmcnt(0)')
        fcheck(18, 3, seg)
        a('s_cbranch_scc0 %s', ok)
        a('s_sleep 1')
        spin(lp)
        a.label(ok)
    def xcc_gather():
        lp, l2 = a.new('xc'), a.new('xo')
        a('v_min_u32 v20, %d, v0', NTEAM - 1)
        a('v_lshlrev_b32 v20, 2, v20')
        a('s_mov_b32 s14, 0')
        a.label(lp)
        a('buffer_load_dword v3, v20, s[44:47], 0 offen sc1')
        a('s_waitcnt vmcnt(0)')
        a('v_cmp_eq_u32 vcc, 0, v3')
        a('s_cbranch_vccz %s', l2)
        spin(lp)
        a.label(l2)
    def frag_offsets():
        a('s_lshl_b32 s33, s3, 1')
        for lam in range(7):
            a('s_lshl_b32 s%d, s33, 10', 15 + lam)
            if lam < 6:
                a('s_add_u32 s33, s33, 1')
                a('s_cmp_ge_u32 s33, 7')
                a('s_cselect_b32 s32, 7, 0')
                a('s_sub_u32 s33, s33, s32')
    def wload(order, tile_off, early_odd, between):
        if dev: a('s_memrealtime s[96:97]')
        for ps in range(2):
            for lam in range(7):
                l = a.new('wl')
                a('s_bitcmp1_b32 s%d, 10', 15 + lam)
                a('s_cbranch_scc%d %s', 0 if (early_odd ^ ps) else 1, l)
                a('s_waitcnt vmcnt(40)')
                a('s_lshl_b32 s33, s%d, 1', 15 + lam)
                a('s_add_u32 s33, s33, s30')
                for i, (t, lm) in enumerate(order):
                    if lm != lam: continue
                    a('s_add_u32 s32, s33, %d', tile_off(t))
                    if i >= 49:
                        a('s_add_u32 m0, s29, %d', 2048 * (i - 49))
                        a('s_nop 0')
                        a('buffer_load_dwordx4 v1, s[8:11], s32 offen sc1 lds')
                        a('buffer_load_dwordx4 v1, s[8:11], s32 offen offset:1024 sc1 lds')
                    else:
                        a('buffer_load_dwordx4 %s, v1, s[8:11], s32 offen sc1', Wreg(i, 4, 0))
                        a('buffer_load_dwordx4 %s, v1, s[8:11], s32 offen offset:1024 sc1', Wreg(i, 4, 4))
                a.label(l)
            if ps == 0: between()

    a.label('team')
    if dev: a('s_memrealtime s[90:91]')
    a('s_and_b32 s4, s30, 15')
    a('s_lshr_b32 s5, s30, 4')
    a('s_getreg_b32 s31, hwreg(HW_REG_XCC_ID)')
    a('s_and_b32 s31, s31, 15')
    a('s_add_u32 s31, s31, 1')
    a('v_mov_b32 v3, s31')
    a('s_lshl_b32 s32, s30, 2')
    a('buffer_store_dword v3, off, s[44:47], s32 sc1')
    a('v_lshlrev_b32 v1, 4, v0')
    frag_offsets()
    a('s_cmp_ge_u32 s30, 30')
    a('s_cbranch_scc1 export')
    for r in range(4, 16): a('v_mov_b32 v%d, 0', r)
    a('v_and_b32 v3, 2, v0')
    a('v_cmp_eq_u32 s[58:59], 0, v3')
    a('v_mov_b32 v2, 0xeeee')
    a('v_mov_b32 v18, 0x4444')
    a('v_cndmask_b32 v2, v2, v18, s[58:59]')
    a('v_add_u32 v16, s15, v1')
    a('v_add_u32 v17, s16, v1')
    a('s_mov_b32 s49, 0x%x', HZ)
    a('v_cmp_gt_u32 s[62:63], 56, v0')
    lv, lj = a.new('iv'), a.new('ij')
    a('s_cmp_eq_u32 s5, 1')
    a('s_cbranch_scc1 %s', lv)
    fold.wait_part(a, FLG_A, 's4', 1, True)
    a('s_mul_i32 s30, s4, 28')
    a('s_mul_i32 s32, s3, 7')
    a('s_add_u32 s30, s30, s32')
    a('s_mul_i32 s30, s30, 14336')
    wload(ORD_S, lambda t: t * 14336, 1, lambda: fold.wait_head_and_misc(a, FLG_A, 's4', 14, 24))
    a('v_and_b32 v3, 8, v0')
    a('v_cmp_eq_u32 vcc, 0, v3')
    a('s_nop 1')
    a('v_cndmask_b32 v14, 0, 1.0, vcc')
    bits(4, [(2, 2, 6), (0, 1, 5), (4, 2, 3), (1, 1, 2)])
    bits(5, [(4, 2, 8), (0, 4, 3)])
    a('s_lshl_b32 s30, s3, 11')
    a('s_add_u32 s30, s30, %d', L_T)
    a('v_add_u32 v4, s30, v4')
    a('v_add_u32 v5, s30, v5')
    a('s_mul_i32 s30, s3, 3584')
    a('s_add_u32 s30, s30, %d', L_X)
    a('v_add_u32 v6, s30, v1')
    bits(8, [(5, 1, 8), (1, 2, 6), (0, 1, 4), (4, 1, 3)])
    a('s_mul_i32 s30, s3, 1792')
    a('v_add_u32 v8, s30, v8')
    a('v_add_u32 v9, 1024, v8')
    bits(10, [(4, 2, 9), (1, 1, 6), (2, 2, 4), (0, 1, 2)])
    bits(15, [(4, 2, 9), (3, 1, 7), (0, 1, 6), (1, 2, 4)])
    a('s_lshl_b32 s31, s3, 11')
    a('s_add_u32 s31, s31, %d', L_S)
    a('v_add_u32 v10, s31, v10')
    a('v_add_u32 v15, s31, v15')
    a('s_lshl_b32 s31, s3, 10')
    a('s_add_u32 s31, s31, %d', L_S)
    a('v_add_u32 v11, s31, v1')
    a('s_lshl_b32 s30, s4, 9')
    a('s_lshl_b32 s31, s3, 8')
    a('s_add_u32 s30, s30, s31')
    a('v_lshl_add_u32 v12, v0, 2, s30')
    bits(13, [(4, 2, 4), (0, 2, 2)])
    a('s_lshl_b32 s30, s4, 7')
    a('s_lshl_b32 s31, s3, 6')
    a('s_add_u32 s30, s30, s31')
    a('s_add_u32 s30, s30, 8192')
    a('v_add_u32 v13, s30, v13')
    a('v_and_b32 v3, 12, v0')
    a('v_cmp_eq_u32 vcc, 0, v3')
    a('v_mov_b32 v18, 0x%x', OOB)
    a('s_nop 0')
    a('v_cndmask_b32 v13, v18, v13, vcc')
    a('v_mov_b32 v3, 0')
    a('v_lshlrev_b32 v18, 2, v0')
    a('ds_write_b32 v18, v3 offset:%d', L_MEM + 7168)
    for w in range(4): a('ds_write_b32 v18, v3 offset:%d', L_T + w * 2048 + 1792)
    a('v_add_u32 v18, %d, v18', L_X + 28672)
    for o in (0, 256, ZXS, ZXS + 256): a('ds_write_b32 v18, v3 offset:%d', o)
    a('s_mov_b32 s50, %d', ZXS)
    a('s_mul_i32 s30, s3, 7168')
    a('s_add_u32 s34, s30, 0x%x', XF)
    a('s_add_u32 s36, s30, %d', L_X)
    xdma()
    a('s_lshl_b32 s31, s4, 10')
    a('s_add_u32 s27, s31, 0x%x', PR)
    a('s_cmp_lt_u32 s4, 10')
    a('s_cselect_b32 s27, s27, 0x%x', OOB)
    a('s_cmp_eq_u32 s3, 2')
    a('s_cselect_b32 s27, s27, 0x%x', OOB)
    a('s_lshl_b32 s31, s4, 2')
    a('s_add_u32 s31, s31, s3')
    if 'thalf' in dev:
        a('s_mul_i32 s35, s31, 3584')
        a('v_lshl_add_u32 v7, v0, 7, s35')
        a('v_lshrrev_b32 v3, 14, v7')
        a('v_lshl_add_u32 v7, v3, 14, v7')
        a('v_add_u32 v7, 0x%x, v7', DD + 2 * DSEG + 16384)
        a('v_cmp_gt_u32 s[62:63], 28, v0')
    elif 't34' in dev:
        a('s_mul_i32 s35, s31, 42')
        a('v_add_u32 v7, s35, v0')
        a('s_movk_i32 s35, 2731')
        a('v_mul_u32_u24 v3, s35, v7')
        a('v_lshrrev_b32 v3, 16, v3')
        a('v_lshl_add_u32 v7, v3, 3, v7')
        a('v_lshlrev_b32 v7, 7, v7')
        a('v_add_u32 v7, 0x%x, v7', DD + 2 * DSEG + 1024)
        a('v_cmp_gt_u32 s[62:63], 42, v0')
    else:
        a('s_mul_i32 s35, s31, 7168')
        a('s_add_u32 s35, s35, 0x%x', DD + 2 * DSEG)
        a('v_lshl_add_u32 v7, v0, 7, s35')
    a('s_lshl_b32 s31, s31, 9')
    a('s_add_u32 s31, s31, 0x%x', XF + 2 * XSEG)
    a('v_and_b32 v3, 3, v0')
    a('v_lshl_add_u32 v3, v3, 7, s31')
    if 'tx' in dev: a('v_cmp_gt_u32 s[62:63], 0, v0'); a('s_nop 1')
    a('v_cndmask_b32 v7, v3, v7, s[62:63]')
    a('s_mov_b32 s38, 0x%x', OOB)
    a('s_branch %s', lj)
    a.label(lv)
    a('s_lshl_b32 s34, s3, 2')
    fold.wait_part(a, FLG_C, 's34', 4, False)
    a('s_mul_i32 s30, s3, 4*28')
    a('s_lshl_b32 s32, s4, 1')
    a('s_add_u32 s30, s30, s32')
    a('s_mul_i32 s30, s30, 14336')
    a('s_add_u32 s30, s30, 0x%x', WF_C)
    a('s_mul_i32 s29, s3, 14336')
    a('s_add_u32 s29, s29, %d', L_W)
    wload(ORD_C, lambda t: ((t & 3) * 28 + (t >> 2)) * 14336, 0, lambda: fold.wait_head_and_misc(a, FLG_C, 's34', 56, 24))
    a('v_add_u32 v14, s29, v1')
    for r, i in zip((4, 5, 7, 12, 13), range(5)): a('v_add_u32 v%d, s%d, v1', r, 17 + i)
    bits(6, [(4, 2, 7), (2, 2, 5), (0, 1, 4)])
    a('s_mul_i32 s30, s3, 1536')
    a('s_sub_u32 s30, 8192, s30')
    a('v_add_u32 v6, s30, v6')
    a('v_mov_b32 v18, 0x%x', OOB)
    a('v_cndmask_b32 v6, v18, v6, s[58:59]')
    bits(8, [(4, 2, 7), (0, 4, 2)])
    a('s_lshl_b32 s30, s3, 9')
    a('s_add_u32 s30, s30, %d', L_C)
    a('v_add_u32 v8, s30, v8')
    bits(10, [(5, 1, 9), (2, 2, 7), (0, 1, 6), (4, 1, 5), (1, 1, 4)])
    a('s_lshl_b32 s48, s3, 11')
    a('s_add_u32 s48, s48, %d', L_V)
    bits(9, [(4, 2, 7), (2, 1, 6), (0, 2, 4), (3, 1, 3)])
    a('s_and_b32 s31, s3, 1')
    a('s_lshl_b32 s30, s31, 11')
    a('s_add_u32 s30, s30, %d', L_C)
    a('v_add_u32 v9, s30, v9')
    a('s_lshl_b32 s30, s4, 9')
    a('s_lshl_b32 s31, s31, 8')
    a('s_add_u32 s30, s30, s31')
    a('v_lshl_add_u32 v11, v0, 2, s30')
    a('s_lshl_b32 s30, s3, 12')
    a('s_lshl_b32 s31, s4, 15')
    a('s_add_u32 s35, s30, s31')
    a('s_add_u32 s35, s35, 0x%x', DD)
    a('s_add_u32 s37, s30, %d', L_D)
    dwait('0')
    a('s_mov_b32 m0, s37')
    a('s_add_u32 s30, s35, 16384')
    for grp in ddma('s35', 's30'):
        for i in grp: a(i)
        a('s_nop 0')
    a('s_add_u32 s35, s35, %d', DSEG)
    a('s_mov_b32 s38, s35')
    a('s_add_u32 s6, s35, 16384')
    a('s_mov_b32 s40, 0x%x', OOB)
    a('s_mov_b32 s13, 1')
    a.label(lj)
    xcc_gather()
    a('v_readfirstlane_b32 s31, v3')
    a('s_mov_b32 s12, 0')
    a('s_add_u32 s32, s15, 0x%x', MEMX)
    a('s_add_u32 s33, s16, 0x%x', MEMX)
    a('v_cmp_ne_u32 vcc, s31, v3')
    a('s_waitcnt lgkmcnt(0)')
    if dev:
        lc = a.new('cal')
        a('s_memrealtime s[82:83]')
        a('s_waitcnt lgkmcnt(0)')
        a.label(lc)
        a('s_memrealtime s[84:85]')
        a('s_memtime s[86:87]')
        a('s_waitcnt lgkmcnt(0)')
        a('s_cmp_eq_u32 s84, s82')
        a('s_cbranch_scc1 %s', lc)
    if 'slow' in dev: a('s_branch tslow')
    a('s_cbranch_vccnz tslow')
    a('s_cmp_eq_u32 s5, 1')
    a('s_cbranch_scc1 cloopF')
    a('s_branch sloopF')
    a.label('tslow')
    a('s_cmp_eq_u32 s5, 1')
    a('s_cbranch_scc1 cloopS')
    a('s_branch sloopS')
    a.label('tdie')
    a('s_endpgm')
    a.label('export')
    fold.wait_all(a, FLG_M, 256)
    a('s_cmp_eq_u32 s30, 31')
    a('s_cbranch_scc1 relay')
    a('s_mov_b32 s12, 1')
    a('v_min_u32 v7, 55, v0')
    a('v_lshlrev_b32 v7, 7, v7')
    a('s_mul_i32 s31, s3, %d', UNIT)
    a('s_add_u32 s31, s31, 0x%x', MEMX)
    a('buffer_load_dword v9, v7, s[8:11], s31 offen sc1')
    a('s_lshl_b32 s31, s3, 13')
    a('s_add_u32 s31, s31, 0x%x', PR)
    a('v_lshlrev_b32 v8, 7, v0')
    a('buffer_load_dword v9, v8, s[8:11], s31 offen sc1')
    a('s_add_u32 s31, s31, 8192')
    a('buffer_load_dword v9, v8, s[8:11], s31 offen sc1')
    if 'xw' in dev:
        a('s_mul_i32 s31, s3, 7168')
        a('s_add_u32 s31, s31, 0x%x', XF)
        for k in range(1, 4):
            a('s_add_u32 s31, s31, %d', XSEG)
            a('buffer_load_dword v9, v7, s[8:11], s31 offen sc1')
    a.label('exloop')
    a('s_mul_i32 s30, s12, %d', UNIT)
    a('s_add_u32 s34, s30, 0x%x', MEMX)
    a('s_add_u32 s32, s34, s15')
    a('s_add_u32 s33, s34, s16')
    a('s_add_u32 s34, s34, %d', 3 * UNIT)
    a('s_cmp_eq_u32 s3, 0')
    a('s_cselect_b32 s34, s34, 0x%x', OOB)
    a('buffer_load_dword v9, v7, s[8:11], s34 offen sc1')
    if 'xw' in dev:
        a('s_lshl_b32 s34, s12, 2')
        a('s_add_u32 s34, s34, s3')
        a('s_mul_i32 s34, s34, 7168')
        a('s_add_u32 s34, s34, 0x%x', XF + 3 * XSEG)
        a('buffer_load_dword v9, v7, s[8:11], s34 offen sc1')
    a('s_mov_b32 s14, 0')
    lp = a.new('ex')
    a.label(lp)
    a('buffer_load_dwordx4 v[20:23], v1, s[8:11], s32 offen sc1')
    a('buffer_load_dwordx4 v[24:27], v1, s[8:11], s33 offen sc1')
    a('s_add_u32 s14, s14, 1')
    a('s_cmp_lt_u32 s14, %d', SPIN)
    a('s_cbranch_scc0 tdie')
    a('s_waitcnt vmcnt(0)')
    a('v_max3_u32 v3, v20, v21, v22')
    a('v_max3_u32 v4, v23, v24, v25')
    a('v_max3_u32 v3, v26, v27, v3')
    a('v_max_u32 v3, v4, v3')
    a('v_cmp_eq_u32 vcc, -1, v3')
    a('s_cbranch_vccnz %s', lp)
    a('s_sub_u32 s32, s32, %d', MEMX - MEME)
    a('s_sub_u32 s33, s33, %d', MEMX - MEME)
    a('s_barrier')
    a('buffer_store_dwordx4 v[20:23], v1, s[8:11], s32 offen sc1')
    a('buffer_store_dwordx4 v[24:27], v1, s[8:11], s33 offen sc1')
    a('s_add_u32 s12, s12, 1')
    a('s_cmp_lt_u32 s12, 63')
    a('s_cbranch_scc1 exloop')
    a('s_endpgm')
    a.label('relay')
    a('s_cmp_eq_u32 s3, 0')
    a('s_cbranch_scc0 tdie')
    xcc_gather()
    a('v_readfirstlane_b32 s31, v3')
    a('s_mov_b32 s12, 0')
    a('s_mov_b32 s14, 0')
    a('s_mov_b32 s49, 0x%x', DPROG)
    a('v_cmp_ne_u32 s[62:63], s31, v3')
    a('v_and_b32 v3, 31, v0')
    a('v_cmp_gt_u32 s[60:61], 28, v3')
    a('v_lshlrev_b32 v4, 2, v0')
    a('v_lshrrev_b32 v5, 5, v0')
    a('s_mov_b32 s48, 0x%x', HZ)
    if 'slow' in dev: a('s_mov_b64 s[62:63], -1')
    a.label('reloop')
    a('buffer_load_dword v6, v4, s[8:11], s49 offen sc1')
    a('s_add_u32 s14, s14, 1')
    a('s_cmp_lt_u32 s14, %d', SPIN)
    a('s_cbranch_scc0 tdie')
    a('s_mov_b32 s13, s12')
    a('s_waitcnt vmcnt(0)')
    a('v_lshl_add_u32 v6, v6, 1, v5')
    a.label('reinc')
    a('v_cmp_ge_u32 vcc, s12, v6')
    a('s_nop 1')
    a('s_and_b64 vcc, vcc, s[60:61]')
    a('s_cbranch_scc1 repub')
    a('s_add_u32 s12, s12, 1')
    a('s_cmp_lt_u32 s12, 64')
    a('s_cbranch_scc1 reinc')
    a.label('repub')
    a('s_cmp_eq_u32 s12, s13')
    a('s_cbranch_scc1 reloop')
    a('v_mov_b32 v7, s12')
    a('s_cmp_eq_u64 s[62:63], 0')
    a('s_cbranch_scc0 reslow')
    a('buffer_store_dword v7, off, s[8:11], s48')
    a('s_branch renext')
    a.label('reslow')
    a('buffer_store_dword v7, off, s[8:11], s48 sc1')
    a.label('renext')
    a('s_cmp_lt_u32 s12, 63')
    a('s_cbranch_scc1 reloop')
    a('s_endpgm')

    def loop(role, mode):
        SC = ' sc1' if mode == 'S' else ''
        ORDER = ORD_S if role == 's' else ORD_C
        TACC = 20
        MF = 48 if role == 's' else 52
        SB, TA, SACC = 76, 100, 108
        VB, PF, CACC, DB, RT = 52, 60, 72, 80, 112
        TMP = TA if role == 's' else 19
        tails = []
        a.l.append('.p2align 6')
        a.label(role + 'loop' + mode)
        if dev:
            l = a.new('pp')
            a('s_cmp_eq_u32 s12, 8')
            a('s_cbranch_scc0 %s', l)
            a('s_memtime s[78:79]')
            a('s_memrealtime s[88:89]')
            a.label(l)
        if 'stall' in dev and role == 'c':
            a('s_waitcnt lgkmcnt(0)')
            a('s_mov_b32 s70, s76')
        def mpoll():
            a('buffer_load_dwordx4 %s, v1, s[8:11], s32 offen sc1', V(MF, 4))
            a('buffer_load_dwordx4 %s, v1, s[8:11], s33 offen sc1', V(MF + 4, 4))
        NE = 0
        if role == 'c':
            for x in dev:
                if x.startswith('ne'): NE = int(x[2:])
            dd = ddma('s38', 's6') if 'nod' not in dev else []
            a('s_xor_b32 s37, s37, 0x18000')
            a('s_cmp_lg_u32 s13, 0')
            lslow, lback = a.new('dq'), a.new('db')
            a('s_cbranch_scc1 %s', lslow)
            a.label(lback)
            tails.append(('dw', lslow, lback))
            a('s_mov_b32 m0, s37')
            a('s_nop 0')
            for grp in dd[:NE]:
                for ins in grp: a(ins)
                if len(grp) > 1: a('s_nop 0')
        if role == 'c': mpoll()
        for r in range(MF - TACC): a('v_mov_b32 v%d, 0', TACC + r)
        if role == 'c': mpoll()
        sc = ['s_and_b32 s30, s12, 3', 's_mul_i32 s22, s30, %d' % PSLOT, 's_add_u32 s22, s22, 0x%x' % PR,
              's_add_u32 s32, s32, %d' % UNIT, 's_add_u32 s33, s33, %d' % UNIT]
        if role == 's':
            for r in range(12): a('v_mov_b32 v%d, 0', SACC + r)
            for i in range(5): a('v_add_u32 v%d, s%d, v1', TA + 2 + i, 17 + i)
            radr = [TA + 2 + i for i in range(5)]
            if 'xt' in dev:
                a('s_add_u32 s36, s36, s50')
                a('s_mov_b32 m0, s36')
            sc += ['s_add_u32 s31, s12, 3', 's_and_b32 s31, s31, 3', 's_mul_i32 s24, s31, %d' % PSLOT, 's_add_u32 s24, s24, s27',
                   's_min_u32 s24, s24, 0x%x' % OOB]
        else:
            radr = [4, 5, 7, 12, 13]
            sc += ['s_lshl_b32 s31, s3, 11', 's_add_u32 s43, s22, s31', 's_sub_u32 s42, s32, s15', 's_xor_b32 s30, s37, 0x18000']
        MD = 2
        if role == 's':
            MD = 3
            for x in dev:
                if x.startswith('md'): MD = int(x[2:])
            for r in range(8): a('v_mov_b32 v%d, -1', MF + r)
            if 'now' not in dev: a('s_waitcnt vmcnt(0)')
        a('s_mov_b32 s14, 0')
        def smf(i):
            t, lam = ORDER[i]
            if 'nomf' + role in dev: a('s_nop 3'); return
            if 'chalf' in dev and role == 'c' and i >= 42: return
            for x in dev:
                if x.startswith('cs') and role == 'c': a('s_nop %d', int(x[2:]))
            a('v_smfmac_f32_16x16x64_bf16 %s, %s, %s, v2', V(TACC + 4 * t, 4), V(MF + 4 * lam, 4), Wreg(i))
        lp, lf = a.new('mp'), a.new('mf')
        if role == 'c': a('s_branch %s', lp)
        a.label(lf)
        for x in dev:
            if x.startswith('ms' + role): a('s_sleep %d', int(x[3:]))
        mpoll()
        a('s_add_u32 s14, s14, 1')
        a('s_cmp_lt_u32 s14, %d', SPIN)
        a('s_cbranch_scc0 tdie')
        a.label(lp)
        a('s_waitcnt vmcnt(%d)', 2 * MD - 2)
        a('v_max3_u32 v3, v%d, v%d, v%d', MF, MF + 1, MF + 2)
        a('v_max3_u32 v%d, v%d, v%d, v%d', TMP, MF + 3, MF + 4, MF + 5)
        a('v_max3_u32 v3, v%d, v%d, v3', MF + 6, MF + 7)
        a('v_max_u32 v3, v%d, v3', TMP)
        a('v_cmp_eq_u32 vcc, -1, v3')
        if 'm0' in dev:
            a('ds_write_b128 v16, %s', V(MF, 4))
            a('ds_write_b128 v17, %s', V(MF + 4, 4))
        a('s_cbranch_vccnz %s', lf)
        stamp(0)
        N = len(ORDER)
        gm = [[] for _ in range(N + 8)]
        gv = [[] for _ in range(N + 8)]
        pre = [[] for _ in range(N + 8)]
        rd = ['ds_read_b128 %s, v%d' % (V(MF + 8 + 4 * i, 4), radr[i]) for i in range(5)]
        if 'm0' not in dev:
            gm[0].append('ds_write_b128 v16, %s' % V(MF, 4))
            gm[1].append('ds_write_b128 v17, %s' % V(MF + 4, 4))
        GB = 5
        for x in dev:
            if x.startswith('gb') and role == 's': GB = int(x[2:])
        gm[GB] += ['s_waitcnt lgkmcnt(0)', 's_barrier', rd[0]]
        for i in range(1, 5): gm[GB + i].append(rd[i])
        for k in range(0, len(sc), 2): gv[(8 if role == 'c' else 20) + k // 2] += sc[k:k + 2]
        def place(ins, lo):
            k = lo
            while gm[k]: k += 1
            gm[k] += ins if isinstance(ins, list) else [ins]
            return k
        if role == 's':
            B0 = 21
            def epi(t):
                c = TACC + 4 * t
                return (['v_add_f32 v%d, v%d, v%d' % (c, c, c + 2), 'v_add_f32 v%d, v%d, v%d' % (c + 1, c + 1, c + 3),
                         'v_cvt_pk_bf16_f32 v%d, v%d, v%d' % (c, c, c + 1)], ['ds_write_b32 v4, v%d offset:%d' % (c, 256 * t)])
            for t in range(6):
                v, m = epi(t)
                for i, ins in enumerate(v): gv[B0 + 4 * t + 7 + i].append(ins)
                gm[B0 + 4 * t + 10].append(m[0])
            place('ds_read_b64_tr_b16 %s, v5' % V(TA, 2), B0 + 23)
            place('ds_read_b64_tr_b16 %s, v5 offset:128' % V(TA + 2, 2), B0 + 24)
            def brd(step, xb0, xb1, mb):
                r = []
                for kt, b in ((0, xb0), (1, xb1)):
                    for hh in range(2):
                        r.append('ds_read_b128 %s, v6 offset:%d' % (V(b + 4 * hh, 4), kt * 14336 + (2 * step + hh) * 1024))
                ad = 'v8' if step == 0 else 'v9'
                for hh in range(2):
                    for qq in range(2):
                        r.append('ds_read2_b32 %s, %s offset0:%d offset1:%d' % (V(mb + 4 * hh + 2 * qq, 2), ad, 128 * hh + qq, 128 * hh + qq + 8))
                return r
            place('buffer_load_dword v18, off, s[8:11], s49 sc1', GB)
            place('buffer_load_dword v19, v7, s[8:11], s38 offen' if 'notouch' not in dev else 'buffer_load_dword v19, off, s[8:11], s49 sc1', GB)
            if 'xt' in dev:
                xl = [['buffer_load_dwordx4 v1, s[8:11], s34 offen offset:%d sc1 lds' % (1024 * i)] for i in range(4)]
                xl[3] += ['s_add_u32 m0, s36, 4096', 's_add_u32 s28, s34, 4096']
                xl += [['buffer_load_dwordx4 v1, s[8:11], s28 offen offset:%d sc1 lds' % (1024 * i)] for i in range(3)]
                k, xs = GB + 7, 4
                for x in dev:
                    if x.startswith('xs'): xs = int(x[2:])
                for grp in xl: k = place(grp, k) + xs
            BL = 12
            for x in dev:
                if x.startswith('bl'): BL = int(x[2:])
            for ins in brd(0, SB, SB + 8, SB + 16): place(ins, BL)
            b1 = brd(1, TACC, TACC + 8, MF)
            k = 20
            while gm[k]: k += 1
            yv = sum(1 for kk in range(k) for x in gm[kk] if x.startswith('buffer_'))
            k = place(['s_waitcnt vmcnt(%d)' % yv, b1[4]], 20)
            for ins in b1[5:]: place(ins, k)
            for ins in b1[0:2]: place(ins, B0 + 15)
            for ins in b1[2:4]: place(ins, B0 + 23)
            def younger_ds(k0, k1): return sum(1 for kk in range(k0, k1) for x in gm[kk] if x.startswith('ds_'))
            pre[14].append('s_waitcnt lgkmcnt(%d)' % younger_ds(GB + 1, 14))
            pre[B0].append('s_waitcnt lgkmcnt(%d)' % younger_ds(GB + 5, B0))
        else:
            pre[16].append('s_waitcnt lgkmcnt(4)')
            pre[24].append('s_waitcnt lgkmcnt(0)')
            sp = 4
            for x in dev:
                if x.startswith('sp'): sp = int(x[2:])
            rest = dd[NE:]
            for i, grp in enumerate(rest): gm[12 + sp * i] += grp
            gm[10].append('buffer_load_dword v18, off, s[8:11], s49 sc1')
            wr = ['ds_read_b128 %s, v14 offset:%d' % (V(CSPILL[i >> 1] + 4 * (i & 1), 4), 1024 * i) for i in range(14)]
            for ins in wr[:10]: place(ins, 24)
            k = 38
            while gm[k]: k += 1
            younger = sum(1 for kk in range(k) for x in gm[kk] if x.startswith('buffer_'))
            k = place(['s_waitcnt vmcnt(%d)' % younger, wr[10]], 38)
            for ins in wr[11:]: place(ins, k)
            pre[49].append('s_waitcnt lgkmcnt(0)')
            gv[20].append('v_add_u32 v15, s30, v1')
        for k in range(N):
            for ins in pre[k]: a(ins)
            smf(k)
            for ins in gm[k] + gv[k]: a(ins)
        stamp(1)
        if role == 's':
            for kk in range(N, N + 3):
                for ins in gm[kk] + gv[kk]: a(ins)
            assert not any(gm[N + 3:]) and not any(gv[N + 3:])
            a('s_cmp_lt_u32 s3, 2')
            a('s_nop 1')
            v, m = epi(6)
            for ins in v + m: a(ins)
            a('ds_read_b64_tr_b16 %s, v5 offset:1024', V(TA + 4, 2))
            a('ds_read_b64_tr_b16 %s, v5 offset:1152', V(TA + 6, 2))
            a('s_waitcnt lgkmcnt(7)')
            for kt in range(3):
                a('v_smfmac_f32_16x16x64_bf16 %s, %s, %s, v2', V(SACC + 4 * kt, 4), V(TA, 4), V(SB + 8 * kt, 8))
            a('s_waitcnt lgkmcnt(0)')
            for kt, b in enumerate((TACC, TACC + 8, MF)):
                a('v_smfmac_f32_16x16x64_bf16 %s, %s, %s, v2', V(SACC + 4 * kt, 4), V(TA + 4, 4), V(b, 8))
            a('s_nop %d', 5 if 'tight' not in dev else 1)
            def sadd(kt):
                c = SACC + 4 * kt
                if 'nopk' not in dev: a('v_pk_add_f32 %s, %s, %s', V(c, 2), V(c, 2), V(c + 2, 2))
                else:
                    a('v_add_f32 v%d, v%d, v%d', c, c, c + 2)
                    a('v_add_f32 v%d, v%d, v%d', c + 1, c + 1, c + 3)
            def swr(kt):
                c = SACC + 4 * kt
                if kt < 2: a('ds_write2_b32 v10, v%d, v%d offset0:%d offset1:%d', c, c + 1, 32 * kt, 32 * kt + 64)
                else: a('ds_write2_b32 v15, v%d, v%d offset0:2 offset1:66', c, c + 1)
            if 'so0' not in dev: sadd(0); sadd(1); swr(0); sadd(2); swr(1); swr(2)
            else:
                for kt in range(3): sadd(kt); swr(kt)
            lns, ljn = a.new('ns'), a.new('jn')
            a('s_cbranch_scc0 %s', lns)
            tails.append(('nv', lns, ljn))
            def warm(key, regs):
                n = 0
                for x in dev:
                    if x.startswith(key): n = int(x[len(key):])
                for i in range(n):
                    a('v_mov_b32 v%d, 0', regs + i)
                    a('s_nop 2')
            warm('wa', TACC + 16)
            a('s_waitcnt lgkmcnt(0)')
            a('s_barrier')
            stamp(2)
            for w in range(4): a('ds_read_b96 %s, v11 offset:%d', V(76 + 4 * w, 3), 2048 * w) if 'b96' in dev else a('ds_read_b128 %s, v11 offset:%d', V(76 + 4 * w, 4), 2048 * w)
            warm('wb', TACC + 22)
            a('s_waitcnt lgkmcnt(2)')
            a('v_pk_add_f32 v[76:77], v[76:77], v[80:81]')
            a('v_add_f32 v78, v78, v82')
            a('s_waitcnt lgkmcnt(0)')
            a('v_pk_add_f32 v[84:85], v[84:85], v[88:89]')
            a('v_add_f32 v86, v86, v90')
            a('v_pk_add_f32 v[76:77], v[76:77], v[84:85]')
            a('v_add_f32 v78, v78, v86')
            DP = ('quad_perm:[1,0,3,2]', 'quad_perm:[2,3,0,1]', 'row_half_mirror', 'row_mirror')
            def dpp(op, d, s_, ctl): a('%s_dpp v%d, v%d, v%d %s row_mask:0xf bank_mask:0xf', op, d, s_, s_, ctl)
            a('v_max3_f32 v84, v76, v77, v78')
            a('v_sub_f32 v76, v76, v84')
            a('v_sub_f32 v77, v77, v84')
            dpp('v_max_f32', 85, 84, DP[0])
            a('v_sub_f32 v78, v78, v84')
            a('v_exp_f32 v76, v76')
            dpp('v_max_f32', 85, 85, DP[1])
            a('v_exp_f32 v77, v77')
            a('s_nop 0')
            dpp('v_max_f32', 85, 85, DP[2])
            a('v_exp_f32 v78, v78')
            a('v_add_f32 v86, v76, v77')
            dpp('v_max_f32', 85, 85, DP[3])
            a('v_sub_f32 v84, v84, v85')
            a('v_exp_f32 v84, v84')
            a('v_fmac_f32 v86, v78, v14')
            a('v_mul_f32 v86, v86, v84')
            a('v_mul_f32 v76, v76, v84')
            a('v_mul_f32 v77, v77, v84')
            dpp('v_add_f32', 86, 86, DP[0])
            a('v_mul_f32 v78, v78, v84')
            a('s_nop 0')
            for ctl in DP[1:]:
                dpp('v_add_f32', 86, 86, ctl)
                if ctl != DP[3]: a('s_nop 1')
            a('v_rcp_f32 v86, v86')
            a('s_nop 0')
            a('v_mul_f32 v76, v76, v86')
            a('v_mul_f32 v77, v77, v86')
            a('v_cvt_pk_bf16_f32 v88, |v76|, |v77|')
            a('buffer_store_dword v88, v12, s[8:11], s22 offen' + SC)
            a('v_mul_f32_dpp v79, v78, v86 row_shl:4 row_mask:0xf bank_mask:0xf bound_ctrl:0')
            a('v_mul_f32 v78, v78, v86')
            a('v_cvt_pk_bf16_f32 v90, |v78|, |v79|')
            a('buffer_store_dword v90, v13, s[8:11], s22 offen' + SC)
            stamp(3)
            a('s_waitcnt vmcnt(%d)', 3 + (7 if 'xt' in dev else 0))
            a.label(ljn)
            a('s_barrier')
            if 'xt' in dev:
                a('v_add_u32 v6, s50, v6')
                a('s_sub_u32 s50, 0, s50')
                a('s_add_u32 s34, s34, %d', XSEG)
            elif 'nox' not in dev: xdma()
            a('v_add_u32 v7, %d, v7', XSEG)
            a('s_mov_b64 exec, s[62:63]')
            a('v_add_u32 v7, %d, v7', DSEG - XSEG)
            a('s_mov_b64 exec, -1')
            a('s_add_u32 s31, s12, 3')
            fcheck(18, 3, 's31')
            a('s_cselect_b32 s38, 0x%x, 0', OOB)
            a('s_cmp_gt_u32 s31, 62')
            a('s_cselect_b32 s38, 0x%x, s38', OOB)
            for x in dev:
                if x.startswith('ds'): a('s_sleep %d', int(x[2:]))
        else:
            assert not any(gm[N:]) and not any(gv[N:])
            def pld1(k):
                a('buffer_load_dwordx4 %s, %s, s[8:11], s43 offen offset:%d sc1', V(PF + 4 * k, 4), 'v10' if k else 'v6', 1024 if k == 2 else 0)
            def pld():
                for k in range(3): pld1(k)
            for i in range(8): a('ds_read_b128 %s, v15 offset:%d', V(DB + 4 * i, 4), 1024 * (i & 3) + 16384 * (i >> 2))
            pld()
            for t in range(8):
                c = TACC + 4 * t
                a('v_add_f32 v%d, v%d, v%d', c, c, c + 2)
                a('v_add_f32 v%d, v%d, v%d', c + 1, c + 1, c + 3)
                a('v_cvt_pk_bf16_f32 v%d, v%d, v%d', c, c, c + 1)
                if t == 0:
                    bits(19, [(0, 4, 4), (4, 2, 2)])
                    a('v_add_u32 v19, s48, v19')
                else: a('ds_write_b32 v19, v%d offset:%d', c - 4, 256 * (t - 1))
            a('v_add_u32 v3, s48, v1')
            a('ds_write_b32 v19, v%d offset:%d', TACC + 28, 256 * 7)
            a('ds_read_b128 %s, v3', V(VB, 4))
            a('ds_read_b128 %s, v3 offset:1024', V(VB + 4, 4))
            a('v_add_u32 v15, 2048, v8')
            a('s_waitcnt vmcnt(3)')
            a('s_add_u32 s35, s35, %d', DSEG)
            a('s_add_u32 s31, s12, 2')
            fcheck(18, 3, 's31')
            a('s_cselect_b32 s13, 1, 0')
            a('s_add_u32 s6, s35, 16384')
            a('s_cmp_gt_u32 s31, 62')
            a('s_cselect_b32 s38, 0x%x, s35', OOB)
            a('s_cselect_b32 s6, 0x%x, s6', OOB)
            a('s_cselect_b32 s13, 0, s13')
            a('s_mov_b32 s14, 0')
            stamp(4)
            a('s_waitcnt lgkmcnt(0)')
            lr, lq = a.new('pr'), a.new('pq')
            def pchk():
                a('v_or3_b32 v3, v%d, v%d, v%d', PF, PF + 1, PF + 2)
                a('v_or3_b32 v19, v%d, v%d, v%d', PF + 3, PF + 4, PF + 5)
                a('v_or3_b32 v3, v%d, v%d, v3', PF + 6, PF + 7)
                a('v_or3_b32 v19, v%d, v%d, v19', PF + 8, PF + 9)
                a('v_or3_b32 v3, v%d, v%d, v3', PF + 10, PF + 11)
                a('v_or_b32 v3, v19, v3')
                a('v_cmp_gt_i32 vcc, 0, v3')
            if 'pone' not in dev:
                a.label(lr)
                pld()
                a('s_add_u32 s14, s14, 1')
                a('s_cmp_lt_u32 s14, %d', SPIN)
                a('s_cbranch_scc0 tdie')
                a('s_waitcnt vmcnt(3)')
                pchk()
                a('v_mfma_f32_16x16x32_bf16 %s, %s, %s, 0', V(CACC, 4), V(PF, 4), V(VB, 4))
                a('s_cmp_lt_u32 s3, 2')
                a('s_cbranch_vccnz %s', lr)
            else:
                PD = 3
                for x in dev:
                    if x.startswith('pq'): PD = int(x[2:])
                a('s_waitcnt vmcnt(0)')
                a.label(lr)
                for k in range(3):
                    pld1(k)
                    if k == 0:
                        a('s_add_u32 s14, s14, 1')
                        a('s_cmp_lt_u32 s14, %d', SPIN)
                        a('s_cbranch_scc0 tdie')
                    a('s_waitcnt vmcnt(%d)', PD)
                    pchk()
                    a('s_cbranch_vccz %s' % lq if k < 2 else 's_cbranch_vccnz %s' % lr)
                a.label(lq)
                a('v_mfma_f32_16x16x32_bf16 %s, %s, %s, 0', V(CACC, 4), V(PF, 4), V(VB, 4))
                a('s_cmp_lt_u32 s3, 2')
            a('v_smfmac_f32_16x16x64_bf16 %s, %s, %s, v2', V(CACC, 4), V(PF + 4, 4), V(DB, 8))
            a('v_smfmac_f32_16x16x64_bf16 %s, %s, %s, v2', V(CACC, 4), V(PF + 8, 4), V(DB + 8, 8))
            a('v_mfma_f32_16x16x32_bf16 %s, %s, %s, 0', V(CACC + 4, 4), V(PF, 4), V(VB + 4, 4))
            a('v_smfmac_f32_16x16x64_bf16 %s, %s, %s, v2', V(CACC + 4, 4), V(PF + 4, 4), V(DB + 16, 8))
            a('v_smfmac_f32_16x16x64_bf16 %s, %s, %s, v2', V(CACC + 4, 4), V(PF + 8, 4), V(DB + 24, 8))
            stamp(5)
            a('v_add_f32 v%d, v%d, v%d', CACC, CACC, CACC + 2)
            a('v_add_f32 v%d, v%d, v%d', CACC + 1, CACC + 1, CACC + 3)
            a('ds_write2_b32 v8, v%d, v%d offset0:0 offset1:16', CACC, CACC + 1)
            a('s_nop 4')
            a('v_add_f32 v%d, v%d, v%d', CACC + 4, CACC + 4, CACC + 6)
            a('v_add_f32 v%d, v%d, v%d', CACC + 5, CACC + 5, CACC + 7)
            a('ds_write2_b32 v15, v%d, v%d offset0:0 offset1:16', CACC + 4, CACC + 5)
            lnr, ljr = a.new('nr'), a.new('jr')
            a('s_cbranch_scc0 %s', lnr)
            tails.append(('ns', lnr, ljr))
            a('s_waitcnt lgkmcnt(0)')
            a('s_barrier')
            for w in range(4): a('ds_read_b64 %s, v9 offset:%d', V(RT + 2 * w, 2), 512 * w)
            a('s_waitcnt lgkmcnt(2)')
            a('v_pk_add_f32 %s, %s, %s', V(RT, 2), V(RT, 2), V(RT + 2, 2))
            a('s_waitcnt lgkmcnt(0)')
            a('v_pk_add_f32 %s, %s, %s', V(RT + 4, 2), V(RT + 4, 2), V(RT + 6, 2))
            a('v_pk_add_f32 %s, %s, %s', V(RT, 2), V(RT, 2), V(RT + 4, 2))
            a('v_cvt_pk_bf16_f32 v%d, v%d, v%d', RT, RT, RT + 1)
            a('v_min_u32 v%d, -2, v%d', RT, RT)
            a('buffer_store_dword v%d, v11, s[8:11], s42 offen%s', RT, SC)
            stamp(6)
            a('s_barrier')
            a('s_mov_b32 s40, 0x%x', MEME + 63 * UNIT)
            a.label(ljr)
            for x in dev:
                if x.startswith('dc'): a('s_sleep %d', int(x[2:]))
        if dev and role == 's':
            l = a.new('ts')
            a('s_lshl_b32 s30, s4, 2')
            a('s_add_u32 s30, s30, s3')
            a('s_cmp_eq_u32 s30, 63')
            a('s_cbranch_scc0 %s', l)
            a('s_memtime s[80:81]')
            a('s_lshl_b32 s30, s12, 2')
            a('s_add_u32 s30, s30, 0x3F30000')
            a('s_waitcnt lgkmcnt(0)')
            a('v_mov_b32 v99, s80')
            a('buffer_store_dword v99, off, s[8:11], s30')
            a.label(l)
        if dev:
            ld = a.new('dv')
            a('s_cmp_eq_u32 s12, 40')
            a('s_cbranch_scc0 %s', ld)
            a('s_memtime s[80:81]')
            a('s_memrealtime s[82:83]')
            a('s_waitcnt lgkmcnt(0)')
            a('s_sub_u32 s78, s80, s78')
            a('s_sub_u32 s88, s82, s88')
            a('s_lshl_b32 s30, s5, 4')
            a('s_add_u32 s30, s30, s4')
            a('s_lshl_b32 s30, s30, 2')
            a('s_add_u32 s30, s30, s3')
            a('s_lshl_b32 s30, s30, 6')
            a('s_add_u32 s30, s30, 0x3F00000')
            for kk in range(13):
                a('v_mov_b32 v99, s%d', 64 + 2 * kk)
                a('buffer_store_dword v99, off, s[8:11], s30 offset:%d', 4 * kk)
                a('s_nop 1')
            a.label(ld)
        a('s_add_u32 s12, s12, 1')
        a('s_cmp_lt_u32 s12, 63')
        a('s_cbranch_scc1 %sloop%s', role, mode)
        if role == 'c': a('buffer_store_dword v%d, v11, s[8:11], s40 offen sc1', RT)
        if dev:
            a('s_memrealtime s[82:83]')
            a('s_waitcnt lgkmcnt(0)')
            a('s_lshl_b32 s30, s2, 4')
            a('s_add_u32 s30, s30, 0x3F10000')
            for kk, r in enumerate((90, 84, 82)):
                a('v_mov_b32 v99, s%d', r)
                a('buffer_store_dword v99, off, s[8:11], s30 offset:%d', 4 * kk)
                a('s_nop 1')
            amp = [x for x in dev if x.startswith('amp')]
            if amp and role == amp[0][3]:
                k = amp[0][4]
                if k == '1': a('s_sub_u32 s31, s84, s92'); a('s_mul_i32 s31, s31, 10')
                if k == '2': a('s_sub_u32 s31, s82, s84'); a('s_mul_i32 s31, s31, 2')
                if k == '3': a('s_sub_u32 s31, s90, s92'); a('s_mul_i32 s31, s31, 10')
                if k == '4': a('s_sub_u32 s31, s96, s92'); a('s_mul_i32 s31, s31, 10')
                if k == '0': a('s_mov_b32 s31, 2000')
                l = a.new('am')
                a.label(l)
                a('s_sleep 4')
                a('s_memrealtime s[80:81]')
                a('s_waitcnt lgkmcnt(0)')
                a('s_sub_u32 s30, s80, s82')
                a('s_cmp_lt_u32 s30, s31')
                a('s_cbranch_scc1 %s', l)
            if 'dbgt' in dev:
                l = a.new('dt')
                a('s_cmp_eq_u32 s4, 5')
                a('s_cbranch_scc0 %s', l)
                a('s_lshl_b32 s30, s5, 4')
                for kk, r in enumerate((90, 84, 82, 78)):
                    if r != 78: a('s_sub_u32 s31, s%d, s92', r)
                    else: a('s_mov_b32 s31, s78')
                    a('v_mov_b32 v99, s31')
                    a('buffer_store_dword v99, off, s[44:47], s30 offset:%d', 4 * kk)
                    a('s_nop 1')
                a.label(l)
        a('s_endpgm')
        for p in tails:
            a.label(p[1])
            if p[0] == 'dw':
                a('s_add_u32 s31, s12, 1')
                dwait('s31')
                a('s_branch %s', p[2])
            elif p[0] == 'nv':
                for r in range(4): a('v_mov_b32 v%d, -1', 92 + r)
                a('s_waitcnt lgkmcnt(0)')
                a('s_barrier')
                a('buffer_store_dwordx4 v[92:95], v1, s[8:11], s24 offen' + SC)
                a('s_waitcnt vmcnt(%d)', 2 + (7 if 'xt' in dev else 0))
                a('s_branch %s', p[2])
            elif p[0] == 'ns':
                a('s_waitcnt lgkmcnt(0)')
                a('s_barrier')
                a('s_barrier')
                a('s_branch %s', p[2])
    for mode in 'FS':
        for role in 'sc': loop(role, mode)
```

```python
from common import *
import fold

L_MEM = 0
L_T = 7680
L_S = L_T + 8192
L_X = L_S + 12288
ZXS = 28672 + 512
L_C = 7680
L_V = L_C + 4096
L_D = 32768
L_W = 98304
TEAM_LDS = L_W + 57344
SPIN = 200000
OOB = 0x8000000
NTEAM = 32

ORD_S = ([(0, 0), (1, 0), (0, 1), (1, 1), (2, 0), (3, 0), (2, 1), (3, 1), (4, 0), (5, 0), (6, 0), (4, 1), (5, 1), (6, 1)]
         + [(t, 2) for t in range(7)] + [(t, l) for t in range(7) for l in range(3, 7)])
ORD_C = [(t, l) for l in range(4) for t in range(8)] + [(t, l) for t in range(8) for l in range(4, 7)]
CSPILL = [80, 88, 96, 104, 112, 52, 60]
def Wreg(i, n=8, off=0):
    if i >= 49: return V(CSPILL[i - 49] + off, n)
    return A(8 * i + off, n) if i < 32 else V(120 + 8 * (i - 32) + off, n)

def gen_team(a, dev=False):
    dev = set(dev.split('+')) if dev else set()
    def stamp(k):
        if 'st%d' % k in dev or 'stall' in dev: a('s_memtime s[%d:%d]', 64 + 2 * k, 65 + 2 * k)
    def bits(dst, spec, first=True):
        for pos, w, sh in spec:
            a('v_bfe_u32 v3, v0, %d, %d', pos, w)
            if first: a('v_lshlrev_b32 v%d, %d, v3', dst, sh); first = False
            else: a('v_lshl_add_u32 v%d, v3, %d, v%d', dst, sh, dst)
    def spin(lp):
        a('s_add_u32 s14, s14, 1')
        a('s_cmp_lt_u32 s14, %d', SPIN)
        a('s_cbranch_scc1 %s', lp)
        a('s_endpgm')
    def xdma():
        a('s_mov_b32 m0, s36')
        a('s_add_u32 s30, s34, 4096')
        for i in range(4): a('buffer_load_dwordx4 v1, s[8:11], s34 offen offset:%d sc1 lds', 1024 * i)
        a('s_add_u32 m0, s36, 4096')
        a('s_add_u32 s34, s34, %d', XSEG)
        for i in range(3): a('buffer_load_dwordx4 v1, s[8:11], s30 offen offset:%d sc1 lds', 1024 * i)
    def ddma(src0, src1):
        r = [['buffer_load_dwordx4 v1, s[8:11], %s offen offset:%d sc1 lds' % (src0, 1024 * i)] for i in range(4)]
        r[3].append('s_add_u32 m0, s37, 16384')
        r += [['buffer_load_dwordx4 v1, s[8:11], %s offen offset:%d sc1 lds' % (src1, 1024 * i)] for i in range(4)]
        return r
    def fcheck(src, tmp, seg):
        a('v_readfirstlane_b32 s29, v%d', src)
        a('s_cmp_le_u32 s29, %s', seg)
    def dwait(seg):
        lp, ok = a.new('dw'), a.new('dk')
        a('s_mov_b32 s14, 0')
        a.label(lp)
        a('buffer_load_dword v18, off, s[8:11], s49 sc1')
        a('s_waitcnt vmcnt(0)')
        fcheck(18, 3, seg)
        a('s_cbranch_scc0 %s', ok)
        a('s_sleep 1')
        spin(lp)
        a.label(ok)
    def xcc_gather():
        lp, l2 = a.new('xc'), a.new('xo')
        a('v_min_u32 v20, %d, v0', NTEAM - 1)
        a('v_lshlrev_b32 v20, 2, v20')
        a('s_mov_b32 s14, 0')
        a.label(lp)
        a('buffer_load_dword v3, v20, s[44:47], 0 offen sc1')
        a('s_waitcnt vmcnt(0)')
        a('v_cmp_eq_u32 vcc, 0, v3')
        a('s_cbranch_vccz %s', l2)
        spin(lp)
        a.label(l2)
    def frag_offsets():
        a('s_lshl_b32 s33, s3, 1')
        for lam in range(7):
            a('s_lshl_b32 s%d, s33, 10', 15 + lam)
            if lam < 6:
                a('s_add_u32 s33, s33, 1')
                a('s_cmp_ge_u32 s33, 7')
                a('s_cselect_b32 s32, 7, 0')
                a('s_sub_u32 s33, s33, s32')
    def wload(order, tile_off, early_odd, between):
        if dev: a('s_memrealtime s[96:97]')
        for ps in range(2):
            for lam in range(7):
                l = a.new('wl')
                a('s_bitcmp1_b32 s%d, 10', 15 + lam)
                a('s_cbranch_scc%d %s', 0 if (early_odd ^ ps) else 1, l)
                a('s_waitcnt vmcnt(40)')
                a('s_lshl_b32 s33, s%d, 1', 15 + lam)
                a('s_add_u32 s33, s33, s30')
                for i, (t, lm) in enumerate(order):
                    if lm != lam: continue
                    a('s_add_u32 s32, s33, %d', tile_off(t))
                    if i >= 49:
                        a('s_add_u32 m0, s29, %d', 2048 * (i - 49))
                        a('s_nop 0')
                        a('buffer_load_dwordx4 v1, s[8:11], s32 offen sc1 lds')
                        a('buffer_load_dwordx4 v1, s[8:11], s32 offen offset:1024 sc1 lds')
                    else:
                        a('buffer_load_dwordx4 %s, v1, s[8:11], s32 offen sc1', Wreg(i, 4, 0))
                        a('buffer_load_dwordx4 %s, v1, s[8:11], s32 offen offset:1024 sc1', Wreg(i, 4, 4))
                a.label(l)
            if ps == 0: between()

    a.label('team')
    if dev: a('s_memrealtime s[90:91]')
    a('s_and_b32 s4, s30, 15')
    a('s_lshr_b32 s5, s30, 4')
    a('s_getreg_b32 s31, hwreg(HW_REG_XCC_ID)')
    a('s_and_b32 s31, s31, 15')
    a('s_add_u32 s31, s31, 1')
    a('v_mov_b32 v3, s31')
    a('s_lshl_b32 s32, s30, 2')
    a('buffer_store_dword v3, off, s[44:47], s32 sc1')
    a('v_lshlrev_b32 v1, 4, v0')
    frag_offsets()
    a('s_cmp_ge_u32 s30, 30')
    a('s_cbranch_scc1 export')
    for r in range(4, 16): a('v_mov_b32 v%d, 0', r)
    a('v_and_b32 v3, 2, v0')
    a('v_cmp_eq_u32 s[58:59], 0, v3')
    a('v_mov_b32 v2, 0xeeee')
    a('v_mov_b32 v18, 0x4444')
    a('v_cndmask_b32 v2, v2, v18, s[58:59]')
    a('v_add_u32 v16, s15, v1')
    a('v_add_u32 v17, s16, v1')
    a('s_mov_b32 s49, 0x%x', HZ)
    a('v_cmp_gt_u32 s[62:63], 56, v0')
    lv, lj = a.new('iv'), a.new('ij')
    a('s_cmp_eq_u32 s5, 1')
    a('s_cbranch_scc1 %s', lv)
    fold.wait_part(a, FLG_A, 's4', 1, True)
    a('s_mul_i32 s30, s4, 28')
    a('s_mul_i32 s32, s3, 7')
    a('s_add_u32 s30, s30, s32')
    a('s_mul_i32 s30, s30, 14336')
    wload(ORD_S, lambda t: t * 14336, 1, lambda: fold.wait_head_and_misc(a, FLG_A, 's4', 14, 24))
    a('v_and_b32 v3, 8, v0')
    a('v_cmp_eq_u32 vcc, 0, v3')
    a('s_nop 1')
    a('v_cndmask_b32 v14, 0, 1.0, vcc')
    bits(4, [(2, 2, 6), (0, 1, 5), (4, 2, 3), (1, 1, 2)])
    bits(5, [(4, 2, 8), (0, 4, 3)])
    a('s_lshl_b32 s30, s3, 11')
    a('s_add_u32 s30, s30, %d', L_T)
    a('v_add_u32 v4, s30, v4')
    a('v_add_u32 v5, s30, v5')
    a('s_mul_i32 s30, s3, 3584')
    a('s_add_u32 s30, s30, %d', L_X)
    a('v_add_u32 v6, s30, v1')
    bits(8, [(5, 1, 8), (1, 2, 6), (0, 1, 4), (4, 1, 3)])
    a('s_mul_i32 s30, s3, 1792')
    a('v_add_u32 v8, s30, v8')
    a('v_add_u32 v9, 1024, v8')
    bits(10, [(4, 2, 9), (1, 1, 6), (2, 2, 4), (0, 1, 2)])
    bits(15, [(4, 2, 9), (3, 1, 7), (0, 1, 6), (1, 2, 4)])
    a('s_lshl_b32 s31, s3, 11')
    a('s_add_u32 s31, s31, %d', L_S)
    a('v_add_u32 v10, s31, v10')
    a('v_add_u32 v15, s31, v15')
    a('s_lshl_b32 s31, s3, 10')
    a('s_add_u32 s31, s31, %d', L_S)
    a('v_add_u32 v11, s31, v1')
    a('s_lshl_b32 s30, s4, 9')
    a('s_lshl_b32 s31, s3, 8')
    a('s_add_u32 s30, s30, s31')
    a('v_lshl_add_u32 v12, v0, 2, s30')
    bits(13, [(4, 2, 4), (0, 2, 2)])
    a('s_lshl_b32 s30, s4, 7')
    a('s_lshl_b32 s31, s3, 6')
    a('s_add_u32 s30, s30, s31')
    a('s_add_u32 s30, s30, 8192')
    a('v_add_u32 v13, s30, v13')
    a('v_and_b32 v3, 12, v0')
    a('v_cmp_eq_u32 vcc, 0, v3')
    a('v_mov_b32 v18, 0x%x', OOB)
    a('s_nop 0')
    a('v_cndmask_b32 v13, v18, v13, vcc')
    a('v_mov_b32 v3, 0')
    a('v_lshlrev_b32 v18, 2, v0')
    a('ds_write_b32 v18, v3 offset:%d', L_MEM + 7168)
    for w in range(4): a('ds_write_b32 v18, v3 offset:%d', L_T + w * 2048 + 1792)
    a('v_add_u32 v18, %d, v18', L_X + 28672)
    for o in (0, 256, ZXS, ZXS + 256): a('ds_write_b32 v18, v3 offset:%d', o)
    a('s_mov_b32 s50, %d', ZXS)
    a('s_mul_i32 s30, s3, 7168')
    a('s_add_u32 s34, s30, 0x%x', XF)
    a('s_add_u32 s36, s30, %d', L_X)
    xdma()
    a('s_lshl_b32 s31, s4, 10')
    a('s_add_u32 s27, s31, 0x%x', PR)
    a('s_cmp_lt_u32 s4, 10')
    a('s_cselect_b32 s27, s27, 0x%x', OOB)
    a('s_cmp_eq_u32 s3, 2')
    a('s_cselect_b32 s27, s27, 0x%x', OOB)
    a('s_lshl_b32 s31, s4, 2')
    a('s_add_u32 s31, s31, s3')
    if 'thalf' in dev:
        a('s_mul_i32 s35, s31, 3584')
        a('v_lshl_add_u32 v7, v0, 7, s35')
        a('v_lshrrev_b32 v3, 14, v7')
        a('v_lshl_add_u32 v7, v3, 14, v7')
        a('v_add_u32 v7, 0x%x, v7', DD + 2 * DSEG + 16384)
        a('v_cmp_gt_u32 s[62:63], 28, v0')
    elif 't34' in dev:
        a('s_mul_i32 s35, s31, 42')
        a('v_add_u32 v7, s35, v0')
        a('s_movk_i32 s35, 2731')
        a('v_mul_u32_u24 v3, s35, v7')
        a('v_lshrrev_b32 v3, 16, v3')
        a('v_lshl_add_u32 v7, v3, 3, v7')
        a('v_lshlrev_b32 v7, 7, v7')
        a('v_add_u32 v7, 0x%x, v7', DD + 2 * DSEG + 1024)
        a('v_cmp_gt_u32 s[62:63], 42, v0')
    else:
        a('s_mul_i32 s35, s31, 7168')
        a('s_add_u32 s35, s35, 0x%x', DD + 2 * DSEG)
        a('v_lshl_add_u32 v7, v0, 7, s35')
    a('s_lshl_b32 s31, s31, 9')
    a('s_add_u32 s31, s31, 0x%x', XF + 2 * XSEG)
    a('v_and_b32 v3, 3, v0')
    a('v_lshl_add_u32 v3, v3, 7, s31')
    if 'tx' in dev: a('v_cmp_gt_u32 s[62:63], 0, v0'); a('s_nop 1')
    a('v_cndmask_b32 v7, v3, v7, s[62:63]')
    a('s_mov_b32 s38, 0x%x', OOB)
    a('s_branch %s', lj)
    a.label(lv)
    a('s_lshl_b32 s34, s3, 2')
    fold.wait_part(a, FLG_C, 's34', 4, False)
    a('s_mul_i32 s30, s3, 4*28')
    a('s_lshl_b32 s32, s4, 1')
    a('s_add_u32 s30, s30, s32')
    a('s_mul_i32 s30, s30, 14336')
    a('s_add_u32 s30, s30, 0x%x', WF_C)
    a('s_mul_i32 s29, s3, 14336')
    a('s_add_u32 s29, s29, %d', L_W)
    wload(ORD_C, lambda t: ((t & 3) * 28 + (t >> 2)) * 14336, 0, lambda: fold.wait_head_and_misc(a, FLG_C, 's34', 56, 24))
    a('v_add_u32 v14, s29, v1')
    for r, i in zip((4, 5, 7, 12, 13), range(5)): a('v_add_u32 v%d, s%d, v1', r, 17 + i)
    bits(6, [(4, 2, 7), (2, 2, 5), (0, 1, 4)])
    a('s_mul_i32 s30, s3, 1536')
    a('s_sub_u32 s30, 8192, s30')
    a('v_add_u32 v6, s30, v6')
    a('v_mov_b32 v18, 0x%x', OOB)
    a('v_cndmask_b32 v6, v18, v6, s[58:59]')
    bits(8, [(4, 2, 7), (0, 4, 2)])
    a('s_lshl_b32 s30, s3, 9')
    a('s_add_u32 s30, s30, %d', L_C)
    a('v_add_u32 v8, s30, v8')
    bits(10, [(5, 1, 9), (2, 2, 7), (0, 1, 6), (4, 1, 5), (1, 1, 4)])
    a('s_lshl_b32 s48, s3, 11')
    a('s_add_u32 s48, s48, %d', L_V)
    bits(9, [(4, 2, 7), (2, 1, 6), (0, 2, 4), (3, 1, 3)])
    a('s_and_b32 s31, s3, 1')
    a('s_lshl_b32 s30, s31, 11')
    a('s_add_u32 s30, s30, %d', L_C)
    a('v_add_u32 v9, s30, v9')
    a('s_lshl_b32 s30, s4, 9')
    a('s_lshl_b32 s31, s31, 8')
    a('s_add_u32 s30, s30, s31')
    a('v_lshl_add_u32 v11, v0, 2, s30')
    a('s_lshl_b32 s30, s3, 12')
    a('s_lshl_b32 s31, s4, 15')
    a('s_add_u32 s35, s30, s31')
    a('s_add_u32 s35, s35, 0x%x', DD)
    a('s_add_u32 s37, s30, %d', L_D)
    dwait('0')
    a('s_mov_b32 m0, s37')
    a('s_add_u32 s30, s35, 16384')
    for grp in ddma('s35', 's30'):
        for i in grp: a(i)
        a('s_nop 0')
    a('s_add_u32 s35, s35, %d', DSEG)
    a('s_mov_b32 s38, s35')
    a('s_add_u32 s6, s35, 16384')
    a('s_mov_b32 s40, 0x%x', OOB)
    a('s_mov_b32 s13, 1')
    a.label(lj)
    xcc_gather()
    a('v_readfirstlane_b32 s31, v3')
    a('s_mov_b32 s12, 0')
    a('s_add_u32 s32, s15, 0x%x', MEMX)
    a('s_add_u32 s33, s16, 0x%x', MEMX)
    a('v_cmp_ne_u32 vcc, s31, v3')
    for r in range(20, 48): a('v_mov_b32 v%d, 0', r)
    a('s_waitcnt lgkmcnt(0)')
    if dev:
        lc = a.new('cal')
        a('s_memrealtime s[82:83]')
        a('s_waitcnt lgkmcnt(0)')
        a.label(lc)
        a('s_memrealtime s[84:85]')
        a('s_memtime s[86:87]')
        a('s_waitcnt lgkmcnt(0)')
        a('s_cmp_eq_u32 s84, s82')
        a('s_cbranch_scc1 %s', lc)
    if 'slow' in dev: a('s_branch tslow')
    a('s_cbranch_vccnz tslow')
    a('s_cmp_eq_u32 s5, 1')
    a('s_cbranch_scc1 cloopF')
    a('s_branch sloopF')
    a.label('tslow')
    a('s_cmp_eq_u32 s5, 1')
    a('s_cbranch_scc1 cloopS')
    a('s_branch sloopS')
    a.label('tdie')
    a('s_endpgm')
    a.label('export')
    fold.wait_all(a, FLG_M, 256)
    a('s_cmp_eq_u32 s30, 31')
    a('s_cbranch_scc1 relay')
    a('s_mov_b32 s12, 1')
    a('v_min_u32 v7, 55, v0')
    a('v_lshlrev_b32 v7, 7, v7')
    a('s_mul_i32 s31, s3, %d', UNIT)
    a('s_add_u32 s31, s31, 0x%x', MEMX)
    a('buffer_load_dword v9, v7, s[8:11], s31 offen sc1')
    a('s_lshl_b32 s31, s3, 13')
    a('s_add_u32 s31, s31, 0x%x', PR)
    a('v_lshlrev_b32 v8, 7, v0')
    a('buffer_load_dword v9, v8, s[8:11], s31 offen sc1')
    a('s_add_u32 s31, s31, 8192')
    a('buffer_load_dword v9, v8, s[8:11], s31 offen sc1')
    if 'xw' in dev:
        a('s_mul_i32 s31, s3, 7168')
        a('s_add_u32 s31, s31, 0x%x', XF)
        for k in range(1, 4):
            a('s_add_u32 s31, s31, %d', XSEG)
            a('buffer_load_dword v9, v7, s[8:11], s31 offen sc1')
    a.label('exloop')
    a('s_mul_i32 s30, s12, %d', UNIT)
    a('s_add_u32 s34, s30, 0x%x', MEMX)
    a('s_add_u32 s32, s34, s15')
    a('s_add_u32 s33, s34, s16')
    a('s_add_u32 s34, s34, %d', 3 * UNIT)
    a('s_cmp_eq_u32 s3, 0')
    a('s_cselect_b32 s34, s34, 0x%x', OOB)
    a('buffer_load_dword v9, v7, s[8:11], s34 offen sc1')
    if 'xw' in dev:
        a('s_lshl_b32 s34, s12, 2')
        a('s_add_u32 s34, s34, s3')
        a('s_mul_i32 s34, s34, 7168')
        a('s_add_u32 s34, s34, 0x%x', XF + 3 * XSEG)
        a('buffer_load_dword v9, v7, s[8:11], s34 offen sc1')
    a('s_mov_b32 s14, 0')
    lp = a.new('ex')
    a.label(lp)
    if 'noes' not in dev: a('s_sleep 6')
    a('buffer_load_dwordx4 v[20:23], v1, s[8:11], s32 offen sc1')
    a('buffer_load_dwordx4 v[24:27], v1, s[8:11], s33 offen sc1')
    a('s_add_u32 s14, s14, 1')
    a('s_cmp_lt_u32 s14, %d', SPIN)
    a('s_cbranch_scc0 tdie')
    a('s_waitcnt vmcnt(0)')
    a('v_max3_u32 v3, v20, v21, v22')
    a('v_max3_u32 v4, v23, v24, v25')
    a('v_max3_u32 v3, v26, v27, v3')
    a('v_max_u32 v3, v4, v3')
    a('v_cmp_eq_u32 vcc, -1, v3')
    a('s_cbranch_vccnz %s', lp)
    a('s_sub_u32 s32, s32, %d', MEMX - MEME)
    a('s_sub_u32 s33, s33, %d', MEMX - MEME)
    a('s_barrier')
    a('buffer_store_dwordx4 v[20:23], v1, s[8:11], s32 offen sc1')
    a('buffer_store_dwordx4 v[24:27], v1, s[8:11], s33 offen sc1')
    a('s_add_u32 s12, s12, 1')
    a('s_cmp_lt_u32 s12, 63')
    a('s_cbranch_scc1 exloop')
    a('s_endpgm')
    a.label('relay')
    a('s_cmp_eq_u32 s3, 0')
    a('s_cbranch_scc0 tdie')
    xcc_gather()
    a('v_readfirstlane_b32 s31, v3')
    a('s_mov_b32 s12, 0')
    a('s_mov_b32 s14, 0')
    a('s_mov_b32 s49, 0x%x', DPROG)
    a('v_cmp_ne_u32 s[62:63], s31, v3')
    a('v_and_b32 v3, 31, v0')
    a('v_cmp_gt_u32 s[60:61], 28, v3')
    a('v_lshlrev_b32 v4, 2, v0')
    a('v_lshrrev_b32 v5, 5, v0')
    a('s_mov_b32 s48, 0x%x', HZ)
    if 'slow' in dev: a('s_mov_b64 s[62:63], -1')
    a.label('reloop')
    a('s_sleep 2')
    a('buffer_load_dword v6, v4, s[8:11], s49 offen sc1')
    a('s_add_u32 s14, s14, 1')
    a('s_cmp_lt_u32 s14, %d', SPIN)
    a('s_cbranch_scc0 tdie')
    a('s_mov_b32 s13, s12')
    a('s_waitcnt vmcnt(0)')
    a('v_lshl_add_u32 v6, v6, 1, v5')
    a.label('reinc')
    a('v_cmp_ge_u32 vcc, s12, v6')
    a('s_nop 1')
    a('s_and_b64 vcc, vcc, s[60:61]')
    a('s_cbranch_scc1 repub')
    a('s_add_u32 s12, s12, 1')
    a('s_cmp_lt_u32 s12, 64')
    a('s_cbranch_scc1 reinc')
    a.label('repub')
    a('s_cmp_eq_u32 s12, s13')
    a('s_cbranch_scc1 reloop')
    a('v_mov_b32 v7, s12')
    a('s_cmp_eq_u64 s[62:63], 0')
    a('s_cbranch_scc0 reslow')
    a('buffer_store_dword v7, off, s[8:11], s48')
    a('s_branch renext')
    a.label('reslow')
    a('buffer_store_dword v7, off, s[8:11], s48 sc1')
    a.label('renext')
    a('s_cmp_lt_u32 s12, 63')
    a('s_cbranch_scc1 reloop')
    a('s_endpgm')

    def loop(role, mode):
        SC = ' sc1' if mode == 'S' else ''
        ORDER = ORD_S if role == 's' else ORD_C
        TACC = 20
        MF = 48 if role == 's' else 52
        SB, TA, SACC = 76, 100, 108
        VB, PF, CACC, DB, RT = 52, 60, 72, 80, 112
        TMP = TA if role == 's' else 19
        tails = []
        a.l.append('.p2align 6')
        a.label(role + 'loop' + mode)
        if dev:
            l = a.new('pp')
            a('s_cmp_eq_u32 s12, 8')
            a('s_cbranch_scc0 %s', l)
            a('s_memtime s[78:79]')
            a('s_memrealtime s[88:89]')
            a.label(l)
        if 'stall' in dev and role == 'c':
            a('s_waitcnt lgkmcnt(0)')
            a('s_mov_b32 s70, s76')
        def mpoll():
            a('buffer_load_dwordx4 %s, v1, s[8:11], s32 offen sc1', V(MF, 4))
            a('buffer_load_dwordx4 %s, v1, s[8:11], s33 offen sc1', V(MF + 4, 4))
        NE = 0
        if role == 'c':
            for x in dev:
                if x.startswith('ne'): NE = int(x[2:])
            dd = ddma('s38', 's6') if 'nod' not in dev else []
            a('s_xor_b32 s37, s37, 0x18000')
            a('s_cmp_lg_u32 s13, 0')
            lslow, lback = a.new('dq'), a.new('db')
            a('s_cbranch_scc1 %s', lslow)
            a.label(lback)
            tails.append(('dw', lslow, lback))
            a('s_mov_b32 m0, s37')
            a('s_nop 0')
            for grp in dd[:NE]:
                for ins in grp: a(ins)
                if len(grp) > 1: a('s_nop 0')
        CL = 'cearly' not in dev
        if role == 'c' and not CL: mpoll()
        ZA, ZN = (10, 21) if 'noz' not in dev else (0, 0)
        for x in dev:
            if x.startswith('za'): ZA = int(x[2:]); ZN = ZA + 11
        for r in range(ZN if role == 's' else 0, MF - TACC): a('v_mov_b32 v%d, 0', TACC + r)
        if role == 'c' and not CL: mpoll()
        sc = ['s_and_b32 s30, s12, 3', 's_mul_i32 s22, s30, %d' % PSLOT, 's_add_u32 s22, s22, 0x%x' % PR,
              's_add_u32 s32, s32, %d' % UNIT, 's_add_u32 s33, s33, %d' % UNIT]
        if role == 's':
            for r in range(12): a('v_mov_b32 v%d, 0', SACC + r)
            for i in range(5): a('v_add_u32 v%d, s%d, v1', TA + 2 + i, 17 + i)
            radr = [TA + 2 + i for i in range(5)]
            if 'xt' in dev:
                a('s_add_u32 s36, s36, s50')
                a('s_mov_b32 m0, s36')
            sc += ['s_add_u32 s31, s12, 3', 's_and_b32 s31, s31, 3', 's_mul_i32 s24, s31, %d' % PSLOT, 's_add_u32 s24, s24, s27',
                   's_min_u32 s24, s24, 0x%x' % OOB]
        else:
            radr = [4, 5, 7, 12, 13]
            sc += ['s_lshl_b32 s31, s3, 11', 's_add_u32 s43, s22, s31', 's_sub_u32 s42, s32, s15', 's_xor_b32 s30, s37, 0x18000']
        MD = 2
        if role == 's':
            MD = 3
            for x in dev:
                if x.startswith('md'): MD = int(x[2:])
            for r in range(8): a('v_mov_b32 v%d, -1', MF + r)
            if 'now' not in dev: a('s_waitcnt vmcnt(0)')
        elif CL:
            MD = 1
            for x in dev:
                if x.startswith('cd'): MD = int(x[2:])
            for r in range(8): a('v_mov_b32 v%d, -1', MF + r)
            if 'cnw' not in dev: a('s_waitcnt vmcnt(0)')
        a('s_mov_b32 s14, 0')
        def smf(i):
            t, lam = ORDER[i]
            if 'nomf' + role in dev: a('s_nop 3'); return
            if 'chalf' in dev and role == 'c' and i >= 42: return
            for x in dev:
                if x.startswith('cs') and role == 'c': a('s_nop %d', int(x[2:]))
            a('v_smfmac_f32_16x16x64_bf16 %s, %s, %s, v2', V(TACC + 4 * t, 4), V(MF + 4 * lam, 4), Wreg(i))
        lp, lf = a.new('mp'), a.new('mf')
        if role == 'c' and not CL: a('s_branch %s', lp)
        a.label(lf)
        for x in dev:
            if x.startswith('ms' + role): a('s_sleep %d', int(x[3:]))
        mpoll()
        a('s_add_u32 s14, s14, 1')
        a('s_cmp_lt_u32 s14, %d', SPIN)
        a('s_cbranch_scc0 tdie')
        a.label(lp)
        a('s_waitcnt vmcnt(%d)', 2 * MD - 2)
        a('v_max3_u32 v3, v%d, v%d, v%d', MF, MF + 1, MF + 2)
        a('v_max3_u32 v%d, v%d, v%d, v%d', TMP, MF + 3, MF + 4, MF + 5)
        a('v_max3_u32 v3, v%d, v%d, v3', MF + 6, MF + 7)
        a('v_max_u32 v3, v%d, v3', TMP)
        a('v_cmp_eq_u32 vcc, -1, v3')
        if 'm0' in dev:
            a('ds_write_b128 v16, %s', V(MF, 4))
            a('ds_write_b128 v17, %s', V(MF + 4, 4))
        a('s_cbranch_vccnz %s', lf)
        stamp(0)
        N = len(ORDER)
        gm = [[] for _ in range(N + 12)]
        gv = [[] for _ in range(N + 12)]
        pre = [[] for _ in range(N + 12)]
        rd = ['ds_read_b128 %s, v%d' % (V(MF + 8 + 4 * i, 4), radr[i]) for i in range(5)]
        if 'm0' not in dev:
            gm[0].append('ds_write_b128 v16, %s' % V(MF, 4))
            gm[1].append('ds_write_b128 v17, %s' % V(MF + 4, 4))
        GB = 5
        for x in dev:
            if x.startswith('gb') and role == 's': GB = int(x[2:])
        gm[GB] += ['s_waitcnt lgkmcnt(0)', 's_barrier', rd[0]]
        for i in range(1, 5): gm[GB + i].append(rd[i])
        for k in range(0, len(sc), 2): gv[(8 if role == 'c' else 20) + k // 2] += sc[k:k + 2]
        def place(ins, lo):
            k = lo
            while gm[k]: k += 1
            gm[k] += ins if isinstance(ins, list) else [ins]
            return k
        if role == 's':
            B0 = 21
            def epi(t):
                c = TACC + 4 * t
                return (['v_add_f32 v%d, v%d, v%d' % (c, c, c + 2), 'v_add_f32 v%d, v%d, v%d' % (c + 1, c + 1, c + 3),
                         'v_cvt_pk_bf16_f32 v%d, v%d, v%d' % (c, c, c + 1)], ['ds_write_b32 v4, v%d offset:%d' % (c, 256 * t)])
            for t in range(6):
                v, m = epi(t)
                for i, ins in enumerate(v): gv[B0 + 4 * t + 7 + i].append(ins)
                gm[B0 + 4 * t + 10].append(m[0])
            place('ds_read_b64_tr_b16 %s, v5' % V(TA, 2), B0 + 23)
            place('ds_read_b64_tr_b16 %s, v5 offset:128' % V(TA + 2, 2), B0 + 24)
            def brd(step, xb0, xb1, mb):
                r = []
                for kt, b in ((0, xb0), (1, xb1)):
                    for hh in range(2):
                        r.append('ds_read_b128 %s, v6 offset:%d' % (V(b + 4 * hh, 4), kt * 14336 + (2 * step + hh) * 1024))
                ad = 'v8' if step == 0 else 'v9'
                for hh in range(2):
                    for qq in range(2):
                        r.append('ds_read2_b32 %s, %s offset0:%d offset1:%d' % (V(mb + 4 * hh + 2 * qq, 2), ad, 128 * hh + qq, 128 * hh + qq + 8))
                return r
            place('buffer_load_dword v18, off, s[8:11], s49 sc1', GB)
            place('buffer_load_dword v19, v7, s[8:11], s38 offen' if 'notouch' not in dev else 'buffer_load_dword v19, off, s[8:11], s49 sc1', GB)
            if 'xt' in dev:
                xl = [['buffer_load_dwordx4 v1, s[8:11], s34 offen offset:%d sc1 lds' % (1024 * i)] for i in range(4)]
                xl[3] += ['s_add_u32 m0, s36, 4096', 's_add_u32 s28, s34, 4096']
                xl += [['buffer_load_dwordx4 v1, s[8:11], s28 offen offset:%d sc1 lds' % (1024 * i)] for i in range(3)]
                k, xs = GB + 7, 4
                for x in dev:
                    if x.startswith('xs'): xs = int(x[2:])
                for grp in xl: k = place(grp, k) + xs
            BL = 12
            for x in dev:
                if x.startswith('bl'): BL = int(x[2:])
            for ins in brd(0, SB, SB + 8, SB + 16): place(ins, BL)
            b1 = brd(1, TACC, TACC + 8, MF)
            k = 20
            while gm[k]: k += 1
            yv = sum(1 for kk in range(k) for x in gm[kk] if x.startswith('buffer_'))
            k = place(['s_waitcnt vmcnt(%d)' % yv, b1[4]], 20)
            for ins in b1[5:]: place(ins, k)
            for ins in b1[0:2]: place(ins, B0 + 15)
            for ins in b1[2:4]: place(ins, B0 + 23)
            def younger_ds(k0, k1): return sum(1 for kk in range(k0, k1) for x in gm[kk] if x.startswith('ds_'))
            pre[14].append('s_waitcnt lgkmcnt(%d)' % younger_ds(GB + 1, 14))
            pre[B0].append('s_waitcnt lgkmcnt(%d)' % younger_ds(GB + 5, B0))
        else:
            pre[16].append('s_waitcnt lgkmcnt(4)')
            pre[24].append('s_waitcnt lgkmcnt(0)')
            sp = 4
            for x in dev:
                if x.startswith('sp'): sp = int(x[2:])
            rest = dd[NE:]
            for i, grp in enumerate(rest): gm[12 + sp * i] += grp
            gm[10].append('buffer_load_dword v18, off, s[8:11], s49 sc1')
            def cepi(t):
                c = TACC + 4 * t
                return (['v_add_f32 v%d, v%d, v%d' % (c, c, c + 2), 'v_add_f32 v%d, v%d, v%d' % (c + 1, c + 1, c + 3),
                         'v_cvt_pk_bf16_f32 v%d, v%d, v%d' % (c, c, c + 1)], 'ds_write_b32 v19, v%d offset:%d' % (c, 256 * t))
            for t in range(8):
                v, m = cepi(t)
                for i_, ins in enumerate(v): gv[32 + 3 * t + 6 + i_].append(ins)
                gm[32 + 3 * t + 9].insert(0, m)
            wr = ['ds_read_b128 %s, v14 offset:%d' % (V(CSPILL[i >> 1] + 4 * (i & 1), 4), 1024 * i) for i in range(14)]
            for ins in wr[:10]: place(ins, 17)
            k = 30
            while gm[k]: k += 1
            younger = sum(1 for kk in range(k) for x in gm[kk] if x.startswith('buffer_'))
            k = place(['s_waitcnt vmcnt(%d)' % younger, wr[10]], 30)
            place(wr[11], k)
            for ins in wr[12:]: kl = place(ins, 33)
            def yds(k0, k1): return sum(1 for kk in range(k0, k1) for x in gm[kk] if x.startswith('ds_'))
            pre[24] = ['s_waitcnt lgkmcnt(%d)' % yds(GB + 5, 24)]
            pre[49].append('s_waitcnt lgkmcnt(%d)' % yds(kl + 1, 49))
            gv[20].append('v_add_u32 v15, s30, v1')
            gv[21].append('v_lshrrev_b32 v3, 4, v0')
            gv[22].append('v_lshl_add_u32 v3, v3, 2, s48')
            gv[23].append('v_and_b32 v19, 15, v0')
            gv[24].append('v_lshl_add_u32 v19, v19, 4, v3')
            gv[25].append('v_add_u32 v3, s48, v1')
        for k in range(N):
            for ins in pre[k]: a(ins)
            smf(k)
            for ins in gm[k] + gv[k]: a(ins)
        stamp(1)
        if role == 's':
            for kk in range(N, N + 3):
                for ins in gm[kk] + gv[kk]: a(ins)
            assert not any(gm[N + 3:]) and not any(gv[N + 3:])
            a('s_cmp_lt_u32 s3, 2')
            a('s_nop 1')
            v, m = epi(6)
            a('v_pk_add_f32 %s, %s, %s', V(TACC + 24, 2), V(TACC + 24, 2), V(TACC + 26, 2))
            for ins in v[2:] + m: a(ins)
            a('ds_read_b64_tr_b16 %s, v5 offset:1024', V(TA + 4, 2))
            a('ds_read_b64_tr_b16 %s, v5 offset:1152', V(TA + 6, 2))
            a('s_waitcnt lgkmcnt(7)')
            for kt in range(3):
                a('v_smfmac_f32_16x16x64_bf16 %s, %s, %s, v2', V(SACC + 4 * kt, 4), V(TA, 4), V(SB + 8 * kt, 8))
            a('s_waitcnt lgkmcnt(0)')
            for kt, b in enumerate((TACC, TACC + 8, MF)):
                a('v_smfmac_f32_16x16x64_bf16 %s, %s, %s, v2', V(SACC + 4 * kt, 4), V(TA + 4, 4), V(b, 8))
            a('s_nop %d', 5 if 'tight' not in dev else 1)
            def sadd(kt):
                c = SACC + 4 * kt
                if 'nopk' not in dev: a('v_pk_add_f32 %s, %s, %s', V(c, 2), V(c, 2), V(c + 2, 2))
                else:
                    a('v_add_f32 v%d, v%d, v%d', c, c, c + 2)
                    a('v_add_f32 v%d, v%d, v%d', c + 1, c + 1, c + 3)
            def swr(kt):
                c = SACC + 4 * kt
                if kt < 2: a('ds_write2_b32 v10, v%d, v%d offset0:%d offset1:%d', c, c + 1, 32 * kt, 32 * kt + 64)
                else: a('ds_write2_b32 v15, v%d, v%d offset0:2 offset1:66', c, c + 1)
            if 'so0' not in dev: sadd(0); sadd(1); swr(0); sadd(2); swr(1); swr(2)
            else:
                for kt in range(3): sadd(kt); swr(kt)
            lns, ljn = a.new('ns'), a.new('jn')
            a('s_cbranch_scc0 %s', lns)
            tails.append(('nv', lns, ljn))
            for r in range(ZA): a('v_mov_b32 v%d, 0', TACC + r)
            a('s_waitcnt lgkmcnt(0)')
            if ZA: a('v_mov_b32 v%d, 0', TACC + ZA)
            a('s_barrier')
            stamp(2)
            for w in range(4): a('ds_read_b96 %s, v11 offset:%d', V(76 + 4 * w, 3), 2048 * w) if 'b96' in dev else a('ds_read_b128 %s, v11 offset:%d', V(76 + 4 * w, 4), 2048 * w)
            for r in range(ZA + 1, ZN): a('v_mov_b32 v%d, 0', TACC + r)
            a('s_waitcnt lgkmcnt(2)')
            a('v_pk_add_f32 v[76:77], v[76:77], v[80:81]')
            a('v_add_f32 v78, v78, v82')
            a('s_waitcnt lgkmcnt(0)')
            a('v_pk_add_f32 v[84:85], v[84:85], v[88:89]')
            a('v_add_f32 v86, v86, v90')
            a('v_pk_add_f32 v[76:77], v[76:77], v[84:85]')
            a('v_add_f32 v78, v78, v86')
            DP = ('quad_perm:[1,0,3,2]', 'quad_perm:[2,3,0,1]', 'row_half_mirror', 'row_mirror')
            def dpp(op, d, s_, ctl): a('%s_dpp v%d, v%d, v%d %s row_mask:0xf bank_mask:0xf', op, d, s_, s_, ctl)
            a('v_max3_f32 v84, v76, v77, v78')
            a('v_sub_f32 v76, v76, v84')
            a('v_sub_f32 v77, v77, v84')
            dpp('v_max_f32', 85, 84, DP[0])
            a('v_sub_f32 v78, v78, v84')
            a('v_exp_f32 v76, v76')
            dpp('v_max_f32', 85, 85, DP[1])
            a('v_exp_f32 v77, v77')
            a('s_nop 0')
            dpp('v_max_f32', 85, 85, DP[2])
            a('v_exp_f32 v78, v78')
            a('v_add_f32 v86, v76, v77')
            dpp('v_max_f32', 85, 85, DP[3])
            a('v_sub_f32 v84, v84, v85')
            a('v_exp_f32 v84, v84')
            a('v_fmac_f32 v86, v78, v14')
            a('v_mul_f32 v86, v86, v84')
            a('v_mul_f32 v76, v76, v84')
            a('v_mul_f32 v77, v77, v84')
            dpp('v_add_f32', 86, 86, DP[0])
            a('v_mul_f32 v78, v78, v84')
            a('s_nop 0')
            for ctl in DP[1:]:
                dpp('v_add_f32', 86, 86, ctl)
                if ctl != DP[3]: a('s_nop 1')
            a('v_rcp_f32 v86, v86')
            a('s_nop 0')
            a('v_mul_f32 v76, v76, v86')
            a('v_mul_f32 v77, v77, v86')
            a('v_cvt_pk_bf16_f32 v88, |v76|, |v77|')
            a('buffer_store_dword v88, v12, s[8:11], s22 offen' + SC)
            a('v_mul_f32_dpp v79, v78, v86 row_shl:4 row_mask:0xf bank_mask:0xf bound_ctrl:0')
            a('v_mul_f32 v78, v78, v86')
            a('v_cvt_pk_bf16_f32 v90, |v78|, |v79|')
            a('buffer_store_dword v90, v13, s[8:11], s22 offen' + SC)
            stamp(3)
            a('s_waitcnt vmcnt(%d)', 3 + (7 if 'xt' in dev else 0))
            a('s_barrier')
            a.label(ljn)
            if 'xt' in dev:
                a('v_add_u32 v6, s50, v6')
                a('s_sub_u32 s50, 0, s50')
                a('s_add_u32 s34, s34, %d', XSEG)
            elif 'nox' not in dev: xdma()
            a('v_add_u32 v7, %d, v7', XSEG)
            a('s_mov_b64 exec, s[62:63]')
            a('v_add_u32 v7, %d, v7', DSEG - XSEG)
            a('s_mov_b64 exec, -1')
            a('s_add_u32 s31, s12, 3')
            fcheck(18, 3, 's31')
            a('s_cselect_b32 s38, 0x%x, 0', OOB)
            a('s_cmp_gt_u32 s31, 62')
            a('s_cselect_b32 s38, 0x%x, s38', OOB)
            for x in dev:
                if x.startswith('ds'): a('s_sleep %d', int(x[2:]))
        else:
            def pld1(k):
                a('buffer_load_dwordx4 %s, %s, s[8:11], s43 offen offset:%d sc1', V(PF + 4 * k, 4), 'v10' if k else 'v6', 1024 if k == 2 else 0)
            def pld():
                for k in range(3): pld1(k)
            for i in range(8): a('ds_read_b128 %s, v15 offset:%d', V(DB + 4 * i, 4), 1024 * (i & 3) + 16384 * (i >> 2))
            pld()
            for kk in range(N, N + 12):
                for ins in gm[kk] + gv[kk]: a(ins)
            a('ds_read_b128 %s, v3', V(VB, 4))
            a('ds_read_b128 %s, v3 offset:1024', V(VB + 4, 4))
            a('v_add_u32 v15, 2048, v8')
            a('s_waitcnt vmcnt(3)')
            a('s_add_u32 s35, s35, %d', DSEG)
            a('s_add_u32 s31, s12, 2')
            fcheck(18, 3, 's31')
            a('s_cselect_b32 s13, 1, 0')
            a('s_add_u32 s6, s35, 16384')
            a('s_cmp_gt_u32 s31, 62')
            a('s_cselect_b32 s38, 0x%x, s35', OOB)
            a('s_cselect_b32 s6, 0x%x, s6', OOB)
            a('s_cselect_b32 s13, 0, s13')
            a('s_mov_b32 s14, 0')
            stamp(4)
            a('s_waitcnt lgkmcnt(0)')
            lr, lq = a.new('pr'), a.new('pq')
            def pchk():
                a('v_or3_b32 v3, v%d, v%d, v%d', PF, PF + 1, PF + 2)
                a('v_or3_b32 v19, v%d, v%d, v%d', PF + 3, PF + 4, PF + 5)
                a('v_or3_b32 v3, v%d, v%d, v3', PF + 6, PF + 7)
                a('v_or3_b32 v19, v%d, v%d, v19', PF + 8, PF + 9)
                a('v_or3_b32 v3, v%d, v%d, v3', PF + 10, PF + 11)
                a('v_or_b32 v3, v19, v3')
                a('v_cmp_gt_i32 vcc, 0, v3')
            def dn(tl): a('v_mfma_f32_16x16x32_bf16 %s, %s, %s, 0', V(CACC + 4 * tl, 4), V(PF, 4), V(VB + 4 * tl, 4))
            def sp_(tl, k): a('v_smfmac_f32_16x16x64_bf16 %s, %s, %s, v2', V(CACC + 4 * tl, 4), V(PF + 4 + 4 * k, 4), V(DB + 16 * tl + 8 * k, 8))
            for x in dev:
                if x.startswith('pw'): a('s_sleep %d', int(x[2:]))
            a.label(lr)
            pld()
            a('s_add_u32 s14, s14, 1')
            a('s_cmp_lt_u32 s14, %d', SPIN)
            a('s_cbranch_scc0 tdie')
            a('s_cmp_lt_u32 s3, 2')
            a('s_waitcnt vmcnt(3)')
            if 'cold' in dev:
                pchk()
                dn(0)
                a('s_cbranch_vccnz %s', lr)
                sp_(0, 0); sp_(0, 1); dn(1); sp_(1, 0); sp_(1, 1)
                stamp(5)
                n0, n1 = None, 4
            else:
                a('v_or3_b32 v3, v%d, v%d, v%d', PF, PF + 1, PF + 2)
                a('v_or3_b32 v3, v%d, v%d, v3', PF + 3, PF + 4)
                dn(0)
                a('v_or3_b32 v3, v%d, v%d, v3', PF + 5, PF + 6)
                dn(1)
                a('v_or3_b32 v3, v%d, v%d, v3', PF + 7, PF + 8)
                sp_(0, 0)
                a('v_or3_b32 v3, v%d, v%d, v3', PF + 9, PF + 10)
                sp_(1, 0)
                a('v_or_b32 v3, v%d, v3', PF + 11)
                sp_(0, 1)
                a('v_cmp_gt_i32 vcc, 0, v3')
                sp_(1, 1)
                a('s_cbranch_vccnz %s', lr)
                stamp(5)
                n0, n1 = 4, None
            if n0: a('s_nop %d', n0)
            a('v_pk_add_f32 %s, %s, %s', V(CACC, 2), V(CACC, 2), V(CACC + 2, 2))
            if n1: a('s_nop %d', n1 + 2)
            else: a('s_nop 0')
            a('v_pk_add_f32 %s, %s, %s', V(CACC + 4, 2), V(CACC + 4, 2), V(CACC + 6, 2))
            a('ds_write2_b32 v8, v%d, v%d offset0:0 offset1:16', CACC, CACC + 1)
            a('ds_write2_b32 v15, v%d, v%d offset0:0 offset1:16', CACC + 4, CACC + 5)
            lnr, ljr = a.new('nr'), a.new('jr')
            a('s_cbranch_scc0 %s', lnr)
            tails.append(('ns', lnr, ljr))
            a('s_waitcnt lgkmcnt(0)')
            a('s_barrier')
            for w in range(4): a('ds_read_b64 %s, v9 offset:%d', V(RT + 2 * w, 2), 512 * w)
            a('s_waitcnt lgkmcnt(2)')
            a('v_pk_add_f32 %s, %s, %s', V(RT, 2), V(RT, 2), V(RT + 2, 2))
            a('s_waitcnt lgkmcnt(0)')
            a('v_pk_add_f32 %s, %s, %s', V(RT + 4, 2), V(RT + 4, 2), V(RT + 6, 2))
            a('v_pk_add_f32 %s, %s, %s', V(RT, 2), V(RT, 2), V(RT + 4, 2))
            a('v_cvt_pk_bf16_f32 v%d, v%d, v%d', RT, RT, RT + 1)
            a('v_min_u32 v%d, -2, v%d', RT, RT)
            a('buffer_store_dword v%d, v11, s[8:11], s42 offen%s', RT, SC)
            stamp(6)
            a('s_barrier')
            a('s_mov_b32 s40, 0x%x', MEME + 63 * UNIT)
            a.label(ljr)
            for x in dev:
                if x.startswith('dc'): a('s_sleep %d', int(x[2:]))
        if dev and role == 's':
            l = a.new('ts')
            a('s_lshl_b32 s30, s4, 2')
            a('s_add_u32 s30, s30, s3')
            a('s_cmp_eq_u32 s30, 63')
            a('s_cbranch_scc0 %s', l)
            a('s_memtime s[80:81]')
            a('s_lshl_b32 s30, s12, 2')
            a('s_add_u32 s30, s30, 0x3F30000')
            a('s_waitcnt lgkmcnt(0)')
            a('v_mov_b32 v99, s80')
            a('buffer_store_dword v99, off, s[8:11], s30')
            a.label(l)
        if dev:
            ld = a.new('dv')
            a('s_cmp_eq_u32 s12, 40')
            a('s_cbranch_scc0 %s', ld)
            a('s_memtime s[80:81]')
            a('s_memrealtime s[82:83]')
            a('s_waitcnt lgkmcnt(0)')
            a('s_sub_u32 s78, s80, s78')
            a('s_sub_u32 s88, s82, s88')
            a('s_lshl_b32 s30, s5, 4')
            a('s_add_u32 s30, s30, s4')
            a('s_lshl_b32 s30, s30, 2')
            a('s_add_u32 s30, s30, s3')
            a('s_lshl_b32 s30, s30, 6')
            a('s_add_u32 s30, s30, 0x3F00000')
            for kk in range(13):
                a('v_mov_b32 v99, s%d', 64 + 2 * kk)
                a('buffer_store_dword v99, off, s[8:11], s30 offset:%d', 4 * kk)
                a('s_nop 1')
            a.label(ld)
        a('s_add_u32 s12, s12, 1')
        a('s_cmp_lt_u32 s12, 63')
        a('s_cbranch_scc1 %sloop%s', role, mode)
        if role == 'c': a('buffer_store_dword v%d, v11, s[8:11], s40 offen sc1', RT)
        if dev:
            a('s_memrealtime s[82:83]')
            a('s_waitcnt lgkmcnt(0)')
            a('s_lshl_b32 s30, s2, 4')
            a('s_add_u32 s30, s30, 0x3F10000')
            for kk, r in enumerate((90, 84, 82)):
                a('v_mov_b32 v99, s%d', r)
                a('buffer_store_dword v99, off, s[8:11], s30 offset:%d', 4 * kk)
                a('s_nop 1')
            amp = [x for x in dev if x.startswith('amp')]
            if amp and role == amp[0][3]:
                k = amp[0][4]
                if k == '1': a('s_sub_u32 s31, s84, s92'); a('s_mul_i32 s31, s31, 10')
                if k == '2': a('s_sub_u32 s31, s82, s84'); a('s_mul_i32 s31, s31, 2')
                if k == '3': a('s_sub_u32 s31, s90, s92'); a('s_mul_i32 s31, s31, 10')
                if k == '4': a('s_sub_u32 s31, s96, s92'); a('s_mul_i32 s31, s31, 10')
                if k == '0': a('s_mov_b32 s31, 2000')
                l = a.new('am')
                a.label(l)
                a('s_sleep 4')
                a('s_memrealtime s[80:81]')
                a('s_waitcnt lgkmcnt(0)')
                a('s_sub_u32 s30, s80, s82')
                a('s_cmp_lt_u32 s30, s31')
                a('s_cbranch_scc1 %s', l)
            if 'dbgt' in dev:
                l = a.new('dt')
                a('s_cmp_eq_u32 s4, 5')
                a('s_cbranch_scc0 %s', l)
                a('s_lshl_b32 s30, s5, 4')
                for kk, r in enumerate((90, 84, 82, 78)):
                    if r != 78: a('s_sub_u32 s31, s%d, s92', r)
                    else: a('s_mov_b32 s31, s78')
                    a('v_mov_b32 v99, s31')
                    a('buffer_store_dword v99, off, s[44:47], s30 offset:%d', 4 * kk)
                    a('s_nop 1')
                a.label(l)
        a('s_endpgm')
        for p in tails:
            a.label(p[1])
            if p[0] == 'dw':
                a('s_add_u32 s31, s12, 1')
                dwait('s31')
                a('s_branch %s', p[2])
            elif p[0] == 'nv':
                for r in range(4): a('v_mov_b32 v%d, -1', 92 + r)
                a('s_waitcnt lgkmcnt(0)')
                a('s_barrier')
                a('buffer_store_dwordx4 v[92:95], v1, s[8:11], s24 offen' + SC)
                a('s_waitcnt vmcnt(%d)', 2 + (7 if 'xt' in dev else 0))
                a('s_barrier')
                for r in range(ZN): a('v_mov_b32 v%d, 0', TACC + r)
                a('s_branch %s', p[2])
            elif p[0] == 'ns':
                a('s_waitcnt lgkmcnt(0)')
                a('s_barrier')
                a('s_barrier')
                a('s_branch %s', p[2])
    for mode in 'FS':
        for role in 'sc': loop(role, mode)
```

```python
from common import *
SPIN = 400000
DEV = False
ROT = True
DEPTH = 5
FINE = False
DBGT = False
OVERLAP = False
AFIRST = 16
BYK = True
WST = 'sc1'
LATEFLAG = False
LA, LB, LG = 0, 32768, 147456

def tl(a, k, base=0x3F20000):
    if DEV:
        a('s_memrealtime s[82:83]')
        a('s_waitcnt lgkmcnt(0)')
        a('s_lshl_b32 s84, s2, 4')
        a('s_add_u32 s84, s84, 0x%x', base)
        a('v_mov_b32 v250, s82')
        a('buffer_store_dword v250, off, s[8:11], s84 offset:%d', 4 * k)
        if DBGT and k:
            a('s_mov_b32 s%d, s82', 93 + k)

def rt(a, r):
    if FINE:
        a('s_memrealtime s[%d:%d]', r, r + 1)
        a('s_waitcnt lgkmcnt(0)')

def wait_words(a, voff, soff, width, wave0_only=True, R=244):
    lp, ok = a.new('ww'), a.new('wk')
    if wave0_only:
        a('s_cmp_eq_u32 s3, 0')
        a('s_cbranch_scc0 %s', ok)
    a('s_mov_b32 s14, 0')
    a.label(lp)
    srd = 's[44:47]' if soff is None else 's[8:11]'
    if width == 4:
        a('buffer_load_dwordx4 %s, %s, %s, %s offen sc1', V(R, 4), voff, srd, soff or '0')
        a('s_waitcnt vmcnt(0)')
        a('v_min3_u32 v%d, v%d, v%d, v%d', R, R, R + 1, R + 2)
        a('v_min_u32 v%d, v%d, v%d', R, R, R + 3)
    else:
        a('buffer_load_dword v%d, %s, %s, %s offen sc1', R, voff, srd, soff or '0')
        a('s_waitcnt vmcnt(0)')
    a('v_cmp_eq_u32 vcc, 0, v%d', R)
    a('s_cbranch_vccz %s', ok)
    a('s_sleep 3')
    a('s_add_u32 s14, s14, 1')
    a('s_cmp_lt_u32 s14, %d', SPIN)
    a('s_cbranch_scc1 %s', lp)
    a('s_endpgm')
    a.label(ok)
    if wave0_only: a('s_barrier')

def wait_all(a, base, n, R=244):
    a('v_min_u32 v%d, %d, v0', R - 1, n // 4 - 1)
    a('v_lshlrev_b32 v%d, 4, v%d', R - 1, R - 1)
    a('s_mov_b32 s31, 0x%x', base)
    wait_words(a, 'v%d' % (R - 1), 's31', 4, R=R)

def wait_head(a, base, hreg, n=14, R=244, w0=True):
    a('v_min_u32 v%d, %d, v0', R - 1, n - 1)
    a('v_lshlrev_b32 v%d, 2, v%d', R - 1, R - 1)
    a('s_mul_i32 s31, %s, 56', hreg)
    a('s_add_u32 s31, s31, 0x%x', base)
    wait_words(a, 'v%d' % (R - 1), 's31', 1, wave0_only=w0, R=R)

def set_flag(a, base, idx, younger=0, also=None):
    a('s_waitcnt vmcnt(%d)', younger)
    a('s_barrier')
    l = a.new('sf')
    a('s_cmp_eq_u32 s3, 0')
    a('s_cbranch_scc0 %s', l)
    a('s_lshl_b32 s31, %s, 2', idx)
    a('s_add_u32 s31, s31, 0x%x', base)
    a('v_mov_b32 v244, 1')
    a('buffer_store_dword v244, off, s[8:11], s31 sc1')
    if also:
        a('s_add_u32 s31, s31, %d', also - base)
        a('buffer_store_dword v244, off, s[8:11], s31 sc1')
    a.label(l)

def misc_loads(a):
    a('s_lshl_b32 s31, s3, 6')
    a('v_add_u32 v240, s31, v0')
    a('v_lshrrev_b32 v225, 3, v240')
    a('v_and_b32 v224, 7, v0')
    a('s_movk_i32 s31, 896')
    a('v_mul_u32_u24 v226, s31, v224')
    a('v_lshlrev_b32 v230, 4, v225')
    a('v_add_u32 v226, v226, v230')
    a('v_cmp_gt_u32 vcc, 192, v240')
    a('v_mov_b32 v227, 0x7000000')
    a('v_lshlrev_b32 v228, 4, v240')
    a('v_cndmask_b32 v227, v227, v226, vcc')
    a('s_mul_i32 s30, s2, 7168')
    a('buffer_load_dwordx4 v[208:211], v226, s[20:23], s30 offen')
    a('buffer_load_dwordx4 v[212:215], v227, s[20:23], s30 offen offset:512')
    a('buffer_load_dwordx4 v[216:219], v230, s[24:27], 0 offen')
    a('buffer_load_dwordx4 v[220:223], v230, s[24:27], 0 offen offset:512')
    return 4

def misc_rest(a):
    a('s_lshr_b32 s32, s2, 1')
    a('s_mul_i32 s32, s32, 14336')
    a('s_and_b32 s30, s2, 1')
    a('s_lshl_b32 s30, s30, 7')
    a('s_add_u32 s32, s32, s30')
    a('s_add_u32 s32, s32, 0x%x', XF)
    a('s_add_u32 s30, s32, 8192')
    a('v_cmp_gt_u32 vcc, 192, v240')
    a('v_lshlrev_b32 v233, 8, v225')
    a('v_lshl_add_u32 v233, v224, 4, v233')
    a('v_mov_b32 v232, 0x8000000')
    a('v_cndmask_b32 v232, v232, v233, vcc')
    a('buffer_store_dwordx4 v[208:211], v233, s[8:11], s32 offen sc1')
    a('buffer_store_dwordx4 v[212:215], v232, s[8:11], s30 offen sc1')
    a('v_mov_b32 v234, 0')
    for d in range(8): a('v_dot2_f32_bf16 v234, v%d, v%d, v234', 208 + d, 216 + d)
    a('v_lshlrev_b32 v232, 7, v224')
    a('v_lshl_add_u32 v232, v225, 2, v232')
    a('v_add_u32 v232, %d, v232', LG)
    a('s_nop 0')
    a('ds_write_b32 v232, v234')
    a('s_waitcnt lgkmcnt(0)')
    a('s_barrier')
    lg = a.new('ng')
    a('s_cmp_eq_u32 s3, 3')
    a('s_cbranch_scc0 %s', lg)
    a('v_lshlrev_b32 v232, 4, v0')
    a('v_add_u32 v232, %d, v232', LG)
    a('ds_read_b128 v[236:239], v232')
    a('s_waitcnt lgkmcnt(0)')
    a('v_add_f32 v233, v236, v237')
    a('v_add_f32 v238, v238, v239')
    a('v_add_f32 v233, v233, v238')
    for ctl in ('quad_perm:[1,0,3,2]', 'quad_perm:[2,3,0,1]', 'row_half_mirror'):
        a('s_nop 1')
        a('v_add_f32_dpp v233, v233, v233 %s row_mask:0xf bank_mask:0xf', ctl)
    a('v_mul_f32 v233, 0x%x, v233', fbits(-LOG2E))
    a('v_exp_f32 v233, v233')
    a('s_nop 0')
    a('v_add_f32 v233, 1.0, v233')
    a('v_rcp_f32 v233, v233')
    a('v_lshrrev_b32 v232, 3, v0')
    a('v_lshlrev_b32 v232, 2, v232')
    a('s_lshl_b32 s30, s2, 5')
    a('s_add_u32 s30, s30, 0x%x', GG)
    a('buffer_store_dword v233, v232, s[8:11], s30 offen sc1')
    a.label(lg)

def unit_fill(a):
    a('v_cmp_gt_u32 vcc, 192, v240')
    a('v_mov_b32 v229, 0x8000000')
    a('v_add_u32 v232, 4096, v228')
    a('v_cndmask_b32 v229, v229, v232, vcc')
    for r in range(8): a('v_mov_b32 v%d, -1', 200 + r)
    a('s_mul_i32 s30, s53, 7168')
    a('s_add_u32 s30, s30, 0x%x', U0)
    for k in (1, 3, 4):
        a('s_add_u32 s31, s30, %d', 32 * k * UNIT)
        if k == 4:
            a('s_cmp_lt_u32 s53, %d', NUNITS - 128)
            a('s_cselect_b32 s31, s31, 0x8000000')
        a('buffer_store_dwordx4 v[200:203], v228, s[8:11], s31 offen sc1')
        a('buffer_store_dwordx4 v[204:207], v229, s[8:11], s31 offen sc1')
    lm0, lst = a.new('m0'), a.new('fs')
    a('s_cmp_eq_u32 s53, 10')
    a('s_cbranch_scc0 %s', lst)
    a.label(lm0)
    a('v_bfe_u32 v232, v0, 2, 2')
    a('v_and_b32 v233, 1, v0')
    a('v_lshl_add_u32 v232, v232, 1, v233')
    a('s_movk_i32 s31, 896')
    a('v_mul_u32_u24 v232, s31, v232')
    a('v_lshrrev_b32 v233, 4, v240')
    a('v_lshl_add_u32 v232, v233, 5, v232')
    a('v_bfe_u32 v233, v0, 1, 1')
    a('v_lshl_add_u32 v232, v233, 2, v232')
    for r in range(2):
        for q in range(4): a('buffer_load_dword v%d, v232, s[40:43], 0 offen offset:%d', 200 + 4 * r + q, 8 * q + 512 * r)
    a('s_waitcnt vmcnt(0)')
    for r in range(8): a('v_min_u32 v%d, -2, v%d', 200 + r, 200 + r)
    a.label(lst)
    a('s_add_u32 s31, s30, %d', 64 * UNIT)
    for sr in (30, 31):
        a('buffer_store_dwordx4 v[200:203], v228, s[8:11], s%d offen sc1', sr)
        a('buffer_store_dwordx4 v[204:207], v229, s[8:11], s%d offen sc1', sr)

def wait_janitor(a):
    a('v_mov_b32 v243, 252')
    lp = a.new('wj')
    a('s_cmp_eq_u32 s3, 0')
    a('s_cbranch_scc0 %s', lp)
    wait_words(a, 'v243', None, 1, wave0_only=False)
    a.label(lp)

def janitor(a):
    for r in range(4): a('v_mov_b32 v%d, 0', 244 + r)
    a('v_lshlrev_b32 v243, 4, v0')
    a('s_mov_b32 s31, 0x%x', CNT)
    l = a.new('jn')
    a('s_cmp_eq_u32 s3, 0')
    a('s_cbranch_scc0 %s', l)
    for i in range(4): a('buffer_store_dwordx4 v[244:247], v243, s[8:11], s31 offen offset:%d sc1', 1024 * i)
    a('s_add_u32 s31, s31, 4096')
    a('buffer_store_dwordx4 v[244:247], v243, s[8:11], s31 offen sc1')
    a('s_waitcnt vmcnt(0)')
    a('v_mov_b32 v244, 1')
    a('buffer_store_dword v244, off, s[44:47], 0 offset:252 sc1')
    a.label(l)

def gen_fold(a):
    a('s_mul_i32 s4, s53, 4682')
    a('s_lshr_b32 s4, s4, 16')
    a('s_mul_i32 s31, s4, 14')
    a('s_sub_u32 s31, s53, s31')
    a('s_and_b32 s6, s31, 1')
    a('s_lshr_b32 s7, s31, 1')
    a('v_and_b32 v2, 15, v0')
    a('v_lshrrev_b32 v3, 4, v0')
    a('v_lshlrev_b32 v1, 4, v0')
    a('v_lshrrev_b32 v4, 5, v0')
    a('v_and_b32 v5, 31, v0')
    a('v_xor_b32 v5, v5, v4')
    a('s_and_b32 s31, s3, 1')
    a('s_lshl_b32 s30, s31, 3')
    a('v_xor_b32 v5, s30, v5')
    a('v_lshlrev_b32 v5, 4, v5')
    a('v_lshl_add_u32 v4, v4, 13, v5')
    a('s_lshl_b32 s28, s7, 2')
    a('s_add_u32 s28, s28, s3')
    a('s_lshl_b32 s28, s28, 17')
    a('s_lshl_b32 s29, s4, 9')
    a('s_add_u32 s28, s28, s29')
    a('s_lshl_b32 s48, s3, 13')
    a('s_lshl_b32 s31, s6, %d', 12)
    a('s_xor_b32 s54, s48, s31')
    a('s_lshl_b32 s31, s6, 16')
    a('s_xor_b32 s55, s28, s31')
    a('s_lshl_b32 s31, s6, 6')
    a('v_xor_b32 v17, s31, v4')
    def aside(srd, rng=range(8)):
        for ii in rng:
            a('v_xor_b32 v5, %d, v17', ((2 * (ii & 1)) ^ (4 * (ii >> 2))) << 4)
            a('s_xor_b32 m0, s54, %d', 1024 * ii)
            a('s_xor_b32 s33, s55, %d', 2 * ii * 8192)
            a('buffer_load_dwordx4 v5, %s, s33 offen lds', srd)
    a('s_mul_i32 s35, s4, 229376')
    a('s_mul_i32 s31, s3, 64*896')
    a('s_add_u32 s35, s35, s31')
    a('s_mul_i32 s31, s6, 448')
    a('s_add_u32 s35, s35, s31')
    a('s_mul_i32 s49, s3, 28672')
    a('s_add_u32 s49, s49, %d', LB)
    a('s_mul_i32 s50, s6, 224')
    a('s_mul_i32 s31, s3, 56')
    a('s_add_u32 s50, s50, s31')
    a('s_lshl_b32 s50, s50, 13')
    a('s_add_u32 s50, s50, s29')
    def issue(mat, mid):
        if mat:
            aside('s[60:63]', range(4))
            a('s_movk_i32 s31, 2341')
            a('s_movk_i32 s32, 896')
            for z in range(7):
                a('v_add_u32 v5, %d, v0', 64 * z)
                a('v_mul_u32_u24 v6, s31, v5')
                a('v_lshrrev_b32 v6, 16, v6')
                a('v_mul_u32_u24 v13, 28, v6')
                a('v_sub_u32 v13, v5, v13')
                a('v_mul_u32_u24 v6, s32, v6')
                a('v_lshl_add_u32 v%d, v13, 4, v6', 20 + z)
            for grp in range(4):
                a('s_lshr_b32 s31, s7, %d', 1 if BYK and ROT else 0)
                a('s_add_u32 s31, s31, %d', grp)
                a('s_and_b32 s31, s31, 3')
                a('s_mul_i32 s32, s31, 14336')
                a('s_add_u32 s32, s32, s35')
                a('s_mul_i32 s31, s31, 7168')
                a('s_add_u32 s31, s31, s49')
                for z in range(7):
                    a('s_add_u32 m0, s31, %d', z * 1024)
                    a('s_nop 0')
                    a('buffer_load_dwordx4 v%d, s[16:19], s32 offen lds', 20 + z)
                if grp == 0 and mid: mid()
            aside('s[60:63]', range(4, 8))
            return 21
        aside('s[36:39]', range(4))
        for q in range(7):
            a('s_add_u32 s31, s7, %d', q)
            a('s_cmp_ge_u32 s31, 7')
            a('s_cselect_b32 s32, 7, 0')
            a('s_sub_u32 s31, s31, s32')
            a('s_lshl_b32 s32, s31, 16')
            a('s_add_u32 s32, s32, s50')
            a('s_and_b32 s30, s31, 1')
            a('s_lshl_b32 s30, s30, 7')
            a('v_xor_b32 v6, s30, v4')
            a('s_lshl_b32 s31, s31, 12')
            a('s_add_u32 s31, s31, s49')
            for i in range(4):
                a('v_xor_b32 v5, %d, v6', (2 * i) << 4)
                a('s_add_u32 m0, s31, %d', 1024 * i)
                a('s_nop 0')
                a('buffer_load_dwordx4 v5, s[56:59], s32 offen lds')
                if i < 3: a('s_add_u32 s32, s32, 16384')
            if q == 0 and mid: mid()
        aside('s[36:39]', range(4, 8))
        return 24
    def raddr():
        a('s_lshr_b32 s51, s3, 1')
        a('s_and_b32 s52, s3, 1')
        a('v_xor_b32 v6, v3, v2')
        a('v_lshlrev_b32 v6, 4, v6')
        a('v_lshrrev_b32 v7, 2, v2')
        a('v_lshlrev_b32 v7, 3, v7')
        a('v_and_b32 v8, 3, v0')
        a('v_add_u32 v7, v7, v8')
        a('v_lshl_add_u32 v7, v7, 9, v6')
        a('s_lshl_b32 s30, s51, 14')
        a('v_add_u32 v7, s30, v7')
        a('v_lshl_add_u32 v9, v2, 9, v6')
        a('s_mul_i32 s30, s52, 57344')
        a('s_add_u32 s30, s30, %d', LB)
        a('v_add_u32 v9, s30, v9')
        a('v_lshrrev_b32 v10, 2, v2')
        a('v_lshl_add_u32 v10, v3, 3, v10')
        a('s_movk_i32 s30, 448')
        a('v_mul_u32_u24 v10, s30, v10')
        a('v_lshl_add_u32 v10, v8, 3, v10')
        a('s_mul_i32 s30, s52, 224')
        a('s_add_u32 s30, s30, %d', LB)
        a('v_add_u32 v10, s30, v10')
    def warm(mat):
        a('v_bfe_u32 v5, v0, 2, 3')
        a('v_lshlrev_b32 v5, 13, v5')
        a('v_lshl_add_u32 v5, v8, 7, v5')
        a('s_lshl_b32 s30, s6, 16')
        a('s_add_u32 s30, s30, s28')
        a('buffer_load_dword v14, v5, %s, s30 offen', 's[60:63]' if mat else 's[36:39]')
        if BYK and ROT: return
        if mat:
            a('v_lshrrev_b32 v5, 2, v0')
            a('v_min_u32 v5, 9, v5')
            a('s_movk_i32 s31, 896')
            a('v_mul_u32_u24 v5, s31, v5')
            a('v_lshl_add_u32 v5, v8, 7, v5')
            a('s_mul_i32 s31, s7, 9*896')
            a('s_add_u32 s31, s31, s35')
            a('buffer_load_dword v15, v5, s[16:19], s31 offen')
        else:
            a('s_lshl_b32 s31, s7, 16')
            a('s_add_u32 s31, s31, s50')
            a('buffer_load_dword v15, v5, s[56:59], s31 offen')
    ACC, AF, BF = 48, 104, 168
    PFD = DEPTH
    def gemm(mat):
        seq = [(es, t) for es in range(8) for t in range(7)]
        def rdA(es):
            a('v_xor_b32 v11, %d, v7', es << 6)
            for u in range(2): a('ds_read_b128 %s, v11 offset:%d', V(AF + 8 * (es & 1) + 4 * u, 4), LA + 2048 * u)
        def rdB(i):
            es, t = seq[i]
            b = BF + 4 * (i % 8)
            if t == 0:
                if mat == 0: a('v_xor_b32 v12, %d, v9', es << 6)
                else: a('v_add_u32 v12, %d, v10', es * 14336)
            if mat == 0: a('ds_read_b128 %s, v12 offset:%d', V(b, 4), t * 8192)
            else:
                a('ds_read_b64_tr_b16 %s, v12 offset:%d', V(b, 2), t * 32)
                a('ds_read_b64_tr_b16 %s, v12 offset:%d', V(b + 2, 2), t * 32 + 1792)
        per = 2 if mat else 1
        rdA(0)
        issued = []
        for i in range(PFD): rdB(i); issued.append(per)
        for i, (es, t) in enumerate(seq):
            n = 0
            if t == 0 and es < 7: rdA(es + 1); n += 2
            if i + PFD < len(seq): rdB(i + PFD); n += per
            issued.append(n)
            a('s_waitcnt lgkmcnt(%d)', sum(issued[i + 1:]))
            for u in range(2):
                c = ACC + (t * 2 + u) * 4
                a('v_mfma_f32_16x16x32_bf16 %s, %s, %s, %s', V(c, 4), V(AF + 8 * (es & 1) + 4 * u, 4), V(BF + 4 * (i % 8), 4), V(c, 4) if es else '0')
    def store(mat):
        a('s_mul_i32 s30, s4, 28')
        a('s_mul_i32 s31, s6, 14')
        a('s_add_u32 s30, s30, s31')
        a('s_mul_i32 s31, s52, 7')
        a('s_add_u32 s30, s30, s31')
        a('s_mul_i32 s30, s30, 14')
        a('s_lshl_b32 s31, s7, 1')
        a('s_add_u32 s30, s30, s31')
        a('s_add_u32 s30, s30, s51')
        a('s_lshl_b32 s30, s30, 10')
        if mat: a('s_add_u32 s30, s30, 0x%x', WF_C)
        a('s_mov_b32 s31, 0x%x', fbits(LOG2E / 16.0))
        for t in range(7):
            c = ACC + t * 8
            if mat == 0:
                for r in range(8): a('v_mul_f32 v%d, s31, v%d', c + r, c + r)
            o = 136 + 4 * t
            for d in range(4): a('v_cvt_pk_bf16_f32 v%d, v%d, v%d', o + d, c + 2 * d, c + 2 * d + 1)
            a('buffer_store_dwordx4 %s, v1, s[8:11], s30 offen %s', V(o, 4), WST)
            if t < 6: a('s_add_u32 s30, s30, 14336')
    def flow(m1):
        m2 = 1 - m1
        n = issue(m1, lambda: misc_loads(a))
        a('buffer_load_dword v16, off, s[44:47], 0 offset:252 sc1')
        raddr()
        rt(a, 86)
        a('s_waitcnt vmcnt(0)')
        a('s_barrier')
        rt(a, 90)
        tl(a, 2)
        warm(m2)
        gemm(m1)
        rt(a, 80)
        store(m1)
        misc_rest(a)
        rt(a, 94)
        lj = a.new('js')
        a('v_cmp_eq_u32 vcc, 0, v16')
        a('s_cbranch_vccz %s', lj)
        wait_janitor(a)
        a.label(lj)
        if OVERLAP: issue(m2, None)
        set_flag(a, FLG_C if m1 else FLG_A, 's53', 36 if OVERLAP else 0, also=FLG_M)
        tl(a, 3)
        if not OVERLAP: issue(m2, None)
        a('s_waitcnt vmcnt(0)')
        a('s_barrier')
        gemm(m2)
        store(m2)
        set_flag(a, FLG_C if m2 else FLG_A, 's53')
        tl(a, 1)
        if FINE:
            a('s_lshl_b32 s84, s2, 5')
            a('s_add_u32 s84, s84, 0x3F40000')
            a('s_cmp_eq_u32 s3, 0')
            a('s_cselect_b32 s84, s84, 0x8000000')
            for k, r in enumerate((92, 86, 88, 90, 78, 80, 94)):
                a('v_mov_b32 v250, s%d', r)
                a('buffer_store_dword v250, off, s[8:11], s84 offset:%d', 4 * k)
                a('s_nop 1')
    l1, l2 = a.new('fa'), a.new('fe')
    if BYK: a('s_bitcmp1_b32 s7, 0')
    else: a('s_cmp_ge_u32 s4, %d', AFIRST)
    a('s_cbranch_scc1 %s', l1)
    flow(1)
    a('s_branch %s', l2)
    a.label(l1)
    flow(0)
    a.label(l2)

def wait_started(a):
    lp, ok = a.new('ws'), a.new('wo')
    a('s_cmp_eq_u32 s3, 0')
    a('s_cbranch_scc0 %s', ok)
    a('s_mov_b32 s14, 0')
    a('s_mov_b32 s31, 0x%x', MEME + UNIT)
    a.label(lp)
    a('buffer_load_dword v244, off, s[8:11], s31 sc1')
    a('s_waitcnt vmcnt(0)')
    a('v_cmp_eq_u32 vcc, -1, v244')
    a('s_cbranch_vccz %s', ok)
    a('s_sleep 8')
    a('s_add_u32 s14, s14, 1')
    a('s_cmp_lt_u32 s14, %d', SPIN)
    a('s_cbranch_scc1 %s', lp)
    a('s_endpgm')
    a.label(ok)
    a('s_barrier')

def wait_wave_heads(a):
    a('v_min_u32 v243, 55, v0')
    a('v_lshlrev_b32 v243, 2, v243')
    a('s_mul_i32 s31, s3, 224')
    a('s_add_u32 s31, s31, 0x%x', FLG_C)
    wait_words(a, 'v243', 's31', 1, wave0_only=False)

def wait_part(a, base, hreg, nheads, odd):
    a('v_min_u32 v243, %d, v0', 14 * nheads - 1)
    a('s_movk_i32 s31, 4682')
    a('v_mul_u32_u24 v242, s31, v243')
    a('v_lshrrev_b32 v242, 16, v242')
    a('v_mul_u32_u24 v242, 14, v242')
    a('v_sub_u32 v241, v243, v242')
    a('v_and_b32 v241, 2, v241')
    a('v_cmp_eq_u32 vcc, %d, v241', 2 if odd else 0)
    a('v_add_u32 v242, %d, v242', 2 if odd else 0)
    a('s_nop 0')
    a('v_cndmask_b32 v243, v242, v243, vcc')
    a('v_lshlrev_b32 v243, 2, v243')
    a('s_mul_i32 s31, %s, 56', hreg)
    a('s_add_u32 s31, s31, 0x%x', base)
    wait_words(a, 'v243', 's31', 1, wave0_only=False)

def wait_head_and_misc(a, base, hreg, n, R):
    lp, ok = a.new('wh'), a.new('wi')
    a('v_min_u32 v%d, %d, v0', R - 1, n - 1)
    a('v_lshlrev_b32 v%d, 2, v%d', R - 1, R - 1)
    a('s_mul_i32 s31, %s, 56', hreg)
    a('s_add_u32 s31, s31, 0x%x', base)
    a('s_mov_b32 s32, 0x%x', FLG_M)
    a('s_mov_b32 s14, 0')
    a.label(lp)
    a('buffer_load_dwordx4 %s, v1, s[8:11], s32 offen sc1', V(R, 4))
    a('buffer_load_dword v%d, v%d, s[8:11], s31 offen sc1', R + 4, R - 1)
    a('s_waitcnt vmcnt(0)')
    a('v_min3_u32 v%d, v%d, v%d, v%d', R, R, R + 1, R + 2)
    a('v_min3_u32 v%d, v%d, v%d, v%d', R, R, R + 3, R + 4)
    a('v_cmp_eq_u32 vcc, 0, v%d', R)
    a('s_cbranch_vccz %s', ok)
    a('s_sleep 3')
    a('s_add_u32 s14, s14, 1')
    a('s_cmp_lt_u32 s14, %d', SPIN)
    a('s_cbranch_scc1 %s', lp)
    a('s_endpgm')
    a.label(ok)
```

```python
from common import *
import fold

L_MEM = 0
L_T = 7680
L_S = L_T + 8192
L_X = L_S + 12288
ZXS = 28672 + 512
L_C = 7680
L_V = L_C + 4096
L_D = 32768
L_W = 98304
TEAM_LDS = L_W + 57344
SPIN = 200000
OOB = 0x8000000
NTEAM = 32

ORD_S = ([(0, 0), (1, 0), (0, 1), (1, 1), (2, 0), (3, 0), (2, 1), (3, 1), (4, 0), (5, 0), (6, 0), (4, 1), (5, 1), (6, 1)]
         + [(t, 2) for t in range(7)] + [(t, l) for t in range(7) for l in range(3, 7)])
ORD_C = [(t, l) for l in range(4) for t in range(8)] + [(t, l) for t in range(8) for l in range(4, 7)]
CSPILL = [80, 88, 96, 104, 112, 52, 60]
def Wreg(i, n=8, off=0):
    if i >= 49: return V(CSPILL[i - 49] + off, n)
    return A(8 * i + off, n) if i < 32 else V(120 + 8 * (i - 32) + off, n)

def gen_team(a, dev=False):
    dev = set(dev.split('+')) if dev else set()
    def stamp(k):
        if 'st%d' % k in dev or 'stall' in dev: a('s_memtime s[%d:%d]', 64 + 2 * k, 65 + 2 * k)
    def bits(dst, spec, first=True):
        for pos, w, sh in spec:
            a('v_bfe_u32 v3, v0, %d, %d', pos, w)
            if first: a('v_lshlrev_b32 v%d, %d, v3', dst, sh); first = False
            else: a('v_lshl_add_u32 v%d, v3, %d, v%d', dst, sh, dst)
    def spin(lp):
        a('s_add_u32 s14, s14, 1')
        a('s_cmp_lt_u32 s14, %d', SPIN)
        a('s_cbranch_scc1 %s', lp)
        a('s_endpgm')
    def xdma():
        a('s_mov_b32 m0, s36')
        a('s_add_u32 s30, s34, 4096')
        for i in range(4): a('buffer_load_dwordx4 v1, s[8:11], s34 offen offset:%d sc1 lds', 1024 * i)
        a('s_add_u32 m0, s36, 4096')
        a('s_add_u32 s34, s34, %d', XSEG)
        for i in range(3): a('buffer_load_dwordx4 v1, s[8:11], s30 offen offset:%d sc1 lds', 1024 * i)
    def ddma(src0, src1):
        r = [['buffer_load_dwordx4 v1, s[8:11], %s offen offset:%d sc1 lds' % (src0, 1024 * i)] for i in range(4)]
        r[3].append('s_add_u32 m0, s37, 16384')
        r += [['buffer_load_dwordx4 v1, s[8:11], %s offen offset:%d sc1 lds' % (src1, 1024 * i)] for i in range(4)]
        return r
    def fcheck(src, tmp, seg):
        a('v_readfirstlane_b32 s29, v%d', src)
        a('s_cmp_le_u32 s29, %s', seg)
    def dwait(seg):
        lp, ok = a.new('dw'), a.new('dk')
        a('s_mov_b32 s14, 0')
        a.label(lp)
        a('buffer_load_dword v18, off, s[8:11], s49 sc1')
        a('s_waitcnt vmcnt(0)')
        fcheck(18, 3, seg)
        a('s_cbranch_scc0 %s', ok)
        a('s_sleep 1')
        spin(lp)
        a.label(ok)
    def xcc_gather():
        lp, l2 = a.new('xc'), a.new('xo')
        a('v_min_u32 v20, %d, v0', NTEAM - 1)
        a('v_lshlrev_b32 v20, 2, v20')
        a('s_mov_b32 s14, 0')
        a.label(lp)
        a('buffer_load_dword v3, v20, s[44:47], 0 offen sc1')
        a('s_waitcnt vmcnt(0)')
        a('v_cmp_eq_u32 vcc, 0, v3')
        a('s_cbranch_vccz %s', l2)
        spin(lp)
        a.label(l2)
    def frag_offsets():
        a('s_lshl_b32 s33, s3, 1')
        for lam in range(7):
            a('s_lshl_b32 s%d, s33, 10', 15 + lam)
            if lam < 6:
                a('s_add_u32 s33, s33, 1')
                a('s_cmp_ge_u32 s33, 7')
                a('s_cselect_b32 s32, 7, 0')
                a('s_sub_u32 s33, s33, s32')
    def wload(order, tile_off, early_odd, between):
        if dev: a('s_memrealtime s[96:97]')
        for ps in range(2):
            for lam in range(7):
                l = a.new('wl')
                a('s_bitcmp1_b32 s%d, 10', 15 + lam)
                a('s_cbranch_scc%d %s', 0 if (early_odd ^ ps) else 1, l)
                a('s_waitcnt vmcnt(40)')
                a('s_lshl_b32 s33, s%d, 1', 15 + lam)
                a('s_add_u32 s33, s33, s30')
                for i, (t, lm) in enumerate(order):
                    if lm != lam: continue
                    a('s_add_u32 s32, s33, %d', tile_off(t))
                    if i >= 49:
                        a('s_add_u32 m0, s29, %d', 2048 * (i - 49))
                        a('s_nop 0')
                        a('buffer_load_dwordx4 v1, s[8:11], s32 offen sc1 lds')
                        a('buffer_load_dwordx4 v1, s[8:11], s32 offen offset:1024 sc1 lds')
                    else:
                        a('buffer_load_dwordx4 %s, v1, s[8:11], s32 offen sc1', Wreg(i, 4, 0))
                        a('buffer_load_dwordx4 %s, v1, s[8:11], s32 offen offset:1024 sc1', Wreg(i, 4, 4))
                a.label(l)
            if ps == 0: between()

    a.label('team')
    if dev: a('s_memrealtime s[90:91]')
    a('s_and_b32 s4, s30, 15')
    a('s_lshr_b32 s5, s30, 4')
    a('s_getreg_b32 s31, hwreg(HW_REG_XCC_ID)')
    a('s_and_b32 s31, s31, 15')
    a('s_add_u32 s31, s31, 1')
    a('v_mov_b32 v3, s31')
    a('s_lshl_b32 s32, s30, 2')
    a('buffer_store_dword v3, off, s[44:47], s32 sc1')
    a('v_lshlrev_b32 v1, 4, v0')
    frag_offsets()
    a('s_cmp_ge_u32 s30, 30')
    a('s_cbranch_scc1 export')
    for r in range(4, 16): a('v_mov_b32 v%d, 0', r)
    a('v_and_b32 v3, 2, v0')
    a('v_cmp_eq_u32 s[58:59], 0, v3')
    a('v_mov_b32 v2, 0xeeee')
    a('v_mov_b32 v18, 0x4444')
    a('v_cndmask_b32 v2, v2, v18, s[58:59]')
    a('v_add_u32 v16, s15, v1')
    a('v_add_u32 v17, s16, v1')
    a('s_mov_b32 s49, 0x%x', HZ)
    a('v_cmp_gt_u32 s[62:63], 56, v0')
    lv, lj = a.new('iv'), a.new('ij')
    a('s_cmp_eq_u32 s5, 1')
    a('s_cbranch_scc1 %s', lv)
    fold.wait_part(a, FLG_A, 's4', 1, True)
    a('s_mul_i32 s30, s4, 28')
    a('s_mul_i32 s32, s3, 7')
    a('s_add_u32 s30, s30, s32')
    a('s_mul_i32 s30, s30, 14336')
    wload(ORD_S, lambda t: t * 14336, 1, lambda: fold.wait_head_and_misc(a, FLG_A, 's4', 14, 24))
    a('v_and_b32 v3, 8, v0')
    a('v_cmp_eq_u32 vcc, 0, v3')
    a('s_nop 1')
    a('v_cndmask_b32 v14, 0, 1.0, vcc')
    bits(4, [(2, 2, 6), (0, 1, 5), (4, 2, 3), (1, 1, 2)])
    bits(5, [(4, 2, 8), (0, 4, 3)])
    a('s_lshl_b32 s30, s3, 11')
    a('s_add_u32 s30, s30, %d', L_T)
    a('v_add_u32 v4, s30, v4')
    a('v_add_u32 v5, s30, v5')
    a('s_mul_i32 s30, s3, 3584')
    a('s_add_u32 s30, s30, %d', L_X)
    a('v_add_u32 v6, s30, v1')
    bits(8, [(5, 1, 8), (1, 2, 6), (0, 1, 4), (4, 1, 3)])
    a('s_mul_i32 s30, s3, 1792')
    a('v_add_u32 v8, s30, v8')
    a('v_add_u32 v9, 1024, v8')
    bits(10, [(4, 2, 9), (1, 1, 6), (2, 2, 4), (0, 1, 2)])
    bits(15, [(4, 2, 9), (3, 1, 7), (0, 1, 6), (1, 2, 4)])
    a('s_lshl_b32 s31, s3, 11')
    a('s_add_u32 s31, s31, %d', L_S)
    a('v_add_u32 v10, s31, v10')
    a('v_add_u32 v15, s31, v15')
    a('s_lshl_b32 s31, s3, 10')
    a('s_add_u32 s31, s31, %d', L_S)
    a('v_add_u32 v11, s31, v1')
    a('s_lshl_b32 s30, s4, 9')
    a('s_lshl_b32 s31, s3, 8')
    a('s_add_u32 s30, s30, s31')
    a('v_lshl_add_u32 v12, v0, 2, s30')
    bits(13, [(4, 2, 4), (0, 2, 2)])
    a('s_lshl_b32 s30, s4, 7')
    a('s_lshl_b32 s31, s3, 6')
    a('s_add_u32 s30, s30, s31')
    a('s_add_u32 s30, s30, 8192')
    a('v_add_u32 v13, s30, v13')
    a('v_and_b32 v3, 12, v0')
    a('v_cmp_eq_u32 vcc, 0, v3')
    a('v_mov_b32 v18, 0x%x', OOB)
    a('s_nop 0')
    a('v_cndmask_b32 v13, v18, v13, vcc')
    a('v_mov_b32 v3, 0')
    a('v_lshlrev_b32 v18, 2, v0')
    a('ds_write_b32 v18, v3 offset:%d', L_MEM + 7168)
    for w in range(4): a('ds_write_b32 v18, v3 offset:%d', L_T + w * 2048 + 1792)
    a('v_add_u32 v18, %d, v18', L_X + 28672)
    for o in (0, 256, ZXS, ZXS + 256): a('ds_write_b32 v18, v3 offset:%d', o)
    a('s_mov_b32 s50, %d', ZXS)
    a('s_mul_i32 s30, s3, 7168')
    a('s_add_u32 s34, s30, 0x%x', XF)
    a('s_add_u32 s36, s30, %d', L_X)
    xdma()
    a('s_lshl_b32 s31, s4, 10')
    a('s_add_u32 s27, s31, 0x%x', PR)
    a('s_cmp_lt_u32 s4, 10')
    a('s_cselect_b32 s27, s27, 0x%x', OOB)
    a('s_cmp_eq_u32 s3, 2')
    a('s_cselect_b32 s27, s27, 0x%x', OOB)
    a('s_lshl_b32 s31, s4, 2')
    a('s_add_u32 s31, s31, s3')
    if 'thalf' in dev:
        a('s_mul_i32 s35, s31, 3584')
        a('v_lshl_add_u32 v7, v0, 7, s35')
        a('v_lshrrev_b32 v3, 14, v7')
        a('v_lshl_add_u32 v7, v3, 14, v7')
        a('v_add_u32 v7, 0x%x, v7', DD + 2 * DSEG + 16384)
        a('v_cmp_gt_u32 s[62:63], 28, v0')
    elif 't34' in dev:
        a('s_mul_i32 s35, s31, 42')
        a('v_add_u32 v7, s35, v0')
        a('s_movk_i32 s35, 2731')
        a('v_mul_u32_u24 v3, s35, v7')
        a('v_lshrrev_b32 v3, 16, v3')
        a('v_lshl_add_u32 v7, v3, 3, v7')
        a('v_lshlrev_b32 v7, 7, v7')
        a('v_add_u32 v7, 0x%x, v7', DD + 2 * DSEG + 1024)
        a('v_cmp_gt_u32 s[62:63], 42, v0')
    else:
        a('s_mul_i32 s35, s31, 7168')
        a('s_add_u32 s35, s35, 0x%x', DD + 2 * DSEG)
        a('v_lshl_add_u32 v7, v0, 7, s35')
    a('s_lshl_b32 s31, s31, 9')
    a('s_add_u32 s31, s31, 0x%x', XF + 2 * XSEG)
    a('v_and_b32 v3, 3, v0')
    a('v_lshl_add_u32 v3, v3, 7, s31')
    if 'tx' in dev: a('v_cmp_gt_u32 s[62:63], 0, v0'); a('s_nop 1')
    a('v_cndmask_b32 v7, v3, v7, s[62:63]')
    a('s_mov_b32 s38, 0x%x', OOB)
    a('s_branch %s', lj)
    a.label(lv)
    a('s_lshl_b32 s34, s3, 2')
    fold.wait_part(a, FLG_C, 's34', 4, False)
    a('s_mul_i32 s30, s3, 4*28')
    a('s_lshl_b32 s32, s4, 1')
    a('s_add_u32 s30, s30, s32')
    a('s_mul_i32 s30, s30, 14336')
    a('s_add_u32 s30, s30, 0x%x', WF_C)
    a('s_mul_i32 s29, s3, 14336')
    a('s_add_u32 s29, s29, %d', L_W)
    wload(ORD_C, lambda t: ((t & 3) * 28 + (t >> 2)) * 14336, 0, lambda: fold.wait_head_and_misc(a, FLG_C, 's34', 56, 24))
    a('v_add_u32 v14, s29, v1')
    for r, i in zip((4, 5, 7, 12, 13), range(5)): a('v_add_u32 v%d, s%d, v1', r, 17 + i)
    bits(6, [(4, 2, 7), (2, 2, 5), (0, 1, 4)])
    a('s_mul_i32 s30, s3, 1536')
    a('s_sub_u32 s30, 8192, s30')
    a('v_add_u32 v6, s30, v6')
    a('v_mov_b32 v18, 0x%x', OOB)
    a('v_cndmask_b32 v6, v18, v6, s[58:59]')
    bits(8, [(4, 2, 7), (0, 4, 2)])
    a('s_lshl_b32 s30, s3, 9')
    a('s_add_u32 s30, s30, %d', L_C)
    a('v_add_u32 v8, s30, v8')
    bits(10, [(5, 1, 9), (2, 2, 7), (0, 1, 6), (4, 1, 5), (1, 1, 4)])
    a('s_lshl_b32 s48, s3, 11')
    a('s_add_u32 s48, s48, %d', L_V)
    bits(9, [(4, 2, 7), (2, 1, 6), (0, 2, 4), (3, 1, 3)])
    a('s_and_b32 s31, s3, 1')
    a('s_lshl_b32 s30, s31, 11')
    a('s_add_u32 s30, s30, %d', L_C)
    a('v_add_u32 v9, s30, v9')
    a('s_lshl_b32 s30, s4, 9')
    a('s_lshl_b32 s31, s31, 8')
    a('s_add_u32 s30, s30, s31')
    a('v_lshl_add_u32 v11, v0, 2, s30')
    a('s_lshl_b32 s30, s3, 12')
    a('s_lshl_b32 s31, s4, 15')
    a('s_add_u32 s35, s30, s31')
    a('s_add_u32 s35, s35, 0x%x', DD)
    a('s_add_u32 s37, s30, %d', L_D)
    dwait('0')
    a('s_mov_b32 m0, s37')
    a('s_add_u32 s30, s35, 16384')
    for grp in ddma('s35', 's30'):
        for i in grp: a(i)
        a('s_nop 0')
    a('s_add_u32 s35, s35, %d', DSEG)
    a('s_mov_b32 s38, s35')
    a('s_add_u32 s6, s35, 16384')
    a('s_mov_b32 s40, 0x%x', OOB)
    a('s_mov_b32 s13, 1')
    a.label(lj)
    xcc_gather()
    a('v_readfirstlane_b32 s31, v3')
    a('s_mov_b32 s12, 0')
    a('s_add_u32 s32, s15, 0x%x', MEMX)
    a('s_add_u32 s33, s16, 0x%x', MEMX)
    a('v_cmp_ne_u32 vcc, s31, v3')
    for r in range(20, 48): a('v_mov_b32 v%d, 0', r)
    a('s_waitcnt lgkmcnt(0)')
    if dev:
        lc = a.new('cal')
        a('s_memrealtime s[82:83]')
        a('s_waitcnt lgkmcnt(0)')
        a.label(lc)
        a('s_memrealtime s[84:85]')
        a('s_memtime s[86:87]')
        a('s_waitcnt lgkmcnt(0)')
        a('s_cmp_eq_u32 s84, s82')
        a('s_cbranch_scc1 %s', lc)
    if 'slow' in dev: a('s_branch tslow')
    a('s_cbranch_vccnz tslow')
    a('s_cmp_eq_u32 s5, 1')
    a('s_cbranch_scc1 cloopF')
    a('s_branch sloopF')
    a.label('tslow')
    a('s_cmp_eq_u32 s5, 1')
    a('s_cbranch_scc1 cloopS')
    a('s_branch sloopS')
    a.label('tdie')
    a('s_endpgm')
    a.label('export')
    fold.wait_all(a, FLG_M, 256)
    a('s_cmp_eq_u32 s30, 31')
    a('s_cbranch_scc1 relay')
    a('s_mov_b32 s12, 1')
    a('v_min_u32 v7, 55, v0')
    a('v_lshlrev_b32 v7, 7, v7')
    a('s_mul_i32 s31, s3, %d', UNIT)
    a('s_add_u32 s31, s31, 0x%x', MEMX)
    a('buffer_load_dword v9, v7, s[8:11], s31 offen sc1')
    a('s_lshl_b32 s31, s3, 13')
    a('s_add_u32 s31, s31, 0x%x', PR)
    a('v_lshlrev_b32 v8, 7, v0')
    a('buffer_load_dword v9, v8, s[8:11], s31 offen sc1')
    a('s_add_u32 s31, s31, 8192')
    a('buffer_load_dword v9, v8, s[8:11], s31 offen sc1')
    if 'xw' in dev:
        a('s_mul_i32 s31, s3, 7168')
        a('s_add_u32 s31, s31, 0x%x', XF)
        for k in range(1, 4):
            a('s_add_u32 s31, s31, %d', XSEG)
            a('buffer_load_dword v9, v7, s[8:11], s31 offen sc1')
    a.label('exloop')
    a('s_mul_i32 s30, s12, %d', UNIT)
    a('s_add_u32 s34, s30, 0x%x', MEMX)
    a('s_add_u32 s32, s34, s15')
    a('s_add_u32 s33, s34, s16')
    a('s_add_u32 s34, s34, %d', 3 * UNIT)
    a('s_cmp_eq_u32 s3, 0')
    a('s_cselect_b32 s34, s34, 0x%x', OOB)
    a('buffer_load_dword v9, v7, s[8:11], s34 offen sc1')
    if 'xw' in dev:
        a('s_lshl_b32 s34, s12, 2')
        a('s_add_u32 s34, s34, s3')
        a('s_mul_i32 s34, s34, 7168')
        a('s_add_u32 s34, s34, 0x%x', XF + 3 * XSEG)
        a('buffer_load_dword v9, v7, s[8:11], s34 offen sc1')
    a('s_mov_b32 s14, 0')
    lp = a.new('ex')
    a.label(lp)
    if 'noes' not in dev: a('s_sleep 6')
    a('buffer_load_dwordx4 v[20:23], v1, s[8:11], s32 offen sc1')
    a('buffer_load_dwordx4 v[24:27], v1, s[8:11], s33 offen sc1')
    a('s_add_u32 s14, s14, 1')
    a('s_cmp_lt_u32 s14, %d', SPIN)
    a('s_cbranch_scc0 tdie')
    a('s_waitcnt vmcnt(0)')
    a('v_max3_u32 v3, v20, v21, v22')
    a('v_max3_u32 v4, v23, v24, v25')
    a('v_max3_u32 v3, v26, v27, v3')
    a('v_max_u32 v3, v4, v3')
    a('v_cmp_eq_u32 vcc, -1, v3')
    a('s_cbranch_vccnz %s', lp)
    a('s_sub_u32 s32, s32, %d', MEMX - MEME)
    a('s_sub_u32 s33, s33, %d', MEMX - MEME)
    a('s_barrier')
    a('buffer_store_dwordx4 v[20:23], v1, s[8:11], s32 offen sc1')
    a('buffer_store_dwordx4 v[24:27], v1, s[8:11], s33 offen sc1')
    a('s_add_u32 s12, s12, 1')
    a('s_cmp_lt_u32 s12, 63')
    a('s_cbranch_scc1 exloop')
    a('s_endpgm')
    a.label('relay')
    a('s_cmp_eq_u32 s3, 0')
    a('s_cbranch_scc0 tdie')
    xcc_gather()
    a('v_readfirstlane_b32 s31, v3')
    a('s_mov_b32 s12, 0')
    a('s_mov_b32 s14, 0')
    a('s_mov_b32 s49, 0x%x', DPROG)
    a('v_cmp_ne_u32 s[62:63], s31, v3')
    a('v_and_b32 v3, 31, v0')
    a('v_cmp_gt_u32 s[60:61], 28, v3')
    a('v_lshlrev_b32 v4, 2, v0')
    a('v_lshrrev_b32 v5, 5, v0')
    a('s_mov_b32 s48, 0x%x', HZ)
    if 'slow' in dev: a('s_mov_b64 s[62:63], -1')
    a.label('reloop')
    a('s_sleep 2')
    a('buffer_load_dword v6, v4, s[8:11], s49 offen sc1')
    a('s_add_u32 s14, s14, 1')
    a('s_cmp_lt_u32 s14, %d', SPIN)
    a('s_cbranch_scc0 tdie')
    a('s_mov_b32 s13, s12')
    a('s_waitcnt vmcnt(0)')
    a('v_lshl_add_u32 v6, v6, 1, v5')
    a.label('reinc')
    a('v_cmp_ge_u32 vcc, s12, v6')
    a('s_nop 1')
    a('s_and_b64 vcc, vcc, s[60:61]')
    a('s_cbranch_scc1 repub')
    a('s_add_u32 s12, s12, 1')
    a('s_cmp_lt_u32 s12, 64')
    a('s_cbranch_scc1 reinc')
    a.label('repub')
    a('s_cmp_eq_u32 s12, s13')
    a('s_cbranch_scc1 reloop')
    a('v_mov_b32 v7, s12')
    a('s_cmp_eq_u64 s[62:63], 0')
    a('s_cbranch_scc0 reslow')
    a('buffer_store_dword v7, off, s[8:11], s48')
    a('s_branch renext')
    a.label('reslow')
    a('buffer_store_dword v7, off, s[8:11], s48 sc1')
    a.label('renext')
    a('s_cmp_lt_u32 s12, 63')
    a('s_cbranch_scc1 reloop')
    a('s_endpgm')

    def loop(role, mode):
        SC = ' sc1' if mode == 'S' else ''
        ORDER = ORD_S if role == 's' else ORD_C
        TACC = 20
        MF = 48 if role == 's' else 52
        SB, TA, SACC = 76, 100, 108
        VB, PF, CACC, DB, RT = 52, 60, 72, 80, 112
        TMP = TA if role == 's' else 19
        tails = []
        a.l.append('.p2align 6')
        a.label(role + 'loop' + mode)
        if dev:
            l = a.new('pp')
            a('s_cmp_eq_u32 s12, 8')
            a('s_cbranch_scc0 %s', l)
            a('s_memtime s[78:79]')
            a('s_memrealtime s[88:89]')
            a.label(l)
        if 'stall' in dev and role == 'c':
            a('s_waitcnt lgkmcnt(0)')
            a('s_mov_b32 s70, s76')
        def mpoll():
            a('buffer_load_dwordx4 %s, v1, s[8:11], s32 offen sc1', V(MF, 4))
            a('buffer_load_dwordx4 %s, v1, s[8:11], s33 offen sc1', V(MF + 4, 4))
        NE = 0
        if role == 'c':
            for x in dev:
                if x.startswith('ne'): NE = int(x[2:])
            dd = ddma('s38', 's6') if 'nod' not in dev else []
            a('s_xor_b32 s37, s37, 0x18000')
            a('s_cmp_lg_u32 s13, 0')
            lslow, lback = a.new('dq'), a.new('db')
            a('s_cbranch_scc1 %s', lslow)
            a.label(lback)
            tails.append(('dw', lslow, lback))
            a('s_mov_b32 m0, s37')
            a('s_nop 0')
            for grp in dd[:NE]:
                for ins in grp: a(ins)
                if len(grp) > 1: a('s_nop 0')
        CL = 'cearly' not in dev
        if role == 'c' and not CL: mpoll()
        ZA, ZN = (10, 21) if 'noz' not in dev else (0, 0)
        for x in dev:
            if x.startswith('za'): ZA = int(x[2:]); ZN = ZA + 11
        for r in range(ZN if role == 's' else 0, MF - TACC): a('v_mov_b32 v%d, 0', TACC + r)
        if role == 'c' and not CL: mpoll()
        sc = ['s_and_b32 s30, s12, 3', 's_mul_i32 s22, s30, %d' % PSLOT, 's_add_u32 s22, s22, 0x%x' % PR,
              's_add_u32 s32, s32, %d' % UNIT, 's_add_u32 s33, s33, %d' % UNIT]
        if role == 's':
            for r in range(12): a('v_mov_b32 v%d, 0', SACC + r)
            for i in range(5): a('v_add_u32 v%d, s%d, v1', TA + 2 + i, 17 + i)
            radr = [TA + 2 + i for i in range(5)]
            if 'xt' in dev:
                a('s_add_u32 s36, s36, s50')
                a('s_mov_b32 m0, s36')
            sc += ['s_add_u32 s31, s12, 3', 's_and_b32 s31, s31, 3', 's_mul_i32 s24, s31, %d' % PSLOT, 's_add_u32 s24, s24, s27',
                   's_min_u32 s24, s24, 0x%x' % OOB]
        else:
            radr = [4, 5, 7, 12, 13]
            sc += ['s_lshl_b32 s31, s3, 11', 's_add_u32 s43, s22, s31', 's_sub_u32 s42, s32, s15', 's_xor_b32 s30, s37, 0x18000']
        MD = 2
        if role == 's':
            MD = 3
            for x in dev:
                if x.startswith('md'): MD = int(x[2:])
            for r in range(8): a('v_mov_b32 v%d, -1', MF + r)
            if 'now' not in dev: a('s_waitcnt vmcnt(0)')
        elif CL:
            MD = 1
            for x in dev:
                if x.startswith('cd'): MD = int(x[2:])
            for r in range(8): a('v_mov_b32 v%d, -1', MF + r)
            if 'cnw' not in dev: a('s_waitcnt vmcnt(0)')
        a('s_mov_b32 s14, 0')
        def smf(i):
            t, lam = ORDER[i]
            if 'nomf' + role in dev: a('s_nop 3'); return
            if 'chalf' in dev and role == 'c' and i >= 42: return
            for x in dev:
                if x.startswith('cs') and role == 'c': a('s_nop %d', int(x[2:]))
            a('v_smfmac_f32_16x16x64_bf16 %s, %s, %s, v2', V(TACC + 4 * t, 4), V(MF + 4 * lam, 4), Wreg(i))
        lp, lf = a.new('mp'), a.new('mf')
        if role == 'c' and not CL: a('s_branch %s', lp)
        a.label(lf)
        for x in dev:
            if x.startswith('ms' + role): a('s_sleep %d', int(x[3:]))
        mpoll()
        a('s_add_u32 s14, s14, 1')
        a('s_cmp_lt_u32 s14, %d', SPIN)
        a('s_cbranch_scc0 tdie')
        for x in dev:
            if x.startswith('spec') and role == 's':
                a('s_nop 1')
                for r in range(4 * int(x[4:])): a('v_mov_b32 v%d, 0', TACC + r)
        a.label(lp)
        a('s_waitcnt vmcnt(%d)', 2 * MD - 2)
        if 'lite' in dev: a('v_max_u32 v3, v%d, v%d', MF + 3, MF + 7)
        else:
            a('v_max3_u32 v3, v%d, v%d, v%d', MF, MF + 1, MF + 2)
            a('v_max3_u32 v%d, v%d, v%d, v%d', TMP, MF + 3, MF + 4, MF + 5)
            a('v_max3_u32 v3, v%d, v%d, v3', MF + 6, MF + 7)
            a('v_max_u32 v3, v%d, v3', TMP)
        a('v_cmp_eq_u32 vcc, -1, v3')
        if 'm0' in dev:
            a('ds_write_b128 v16, %s', V(MF, 4))
            a('ds_write_b128 v17, %s', V(MF + 4, 4))
        NSP = 0
        for x in dev:
            if x.startswith('spec') and role == 's': NSP = int(x[4:])
        for k in range(NSP):
            smf(k)
            if k == 0: a('ds_write_b128 v16, %s', V(MF, 4))
        a('s_cbranch_vccnz %s', lf)
        stamp(0)
        N = len(ORDER)
        gm = [[] for _ in range(N + 12)]
        gv = [[] for _ in range(N + 12)]
        pre = [[] for _ in range(N + 12)]
        rd = ['ds_read_b128 %s, v%d' % (V(MF + 8 + 4 * i, 4), radr[i]) for i in range(5)]
        if 'm0' not in dev:
            gm[0].append('ds_write_b128 v16, %s' % V(MF, 4))
            gm[1].append('ds_write_b128 v17, %s' % V(MF + 4, 4))
        GB = 5
        for x in dev:
            if x.startswith('gb') and role == 's': GB = int(x[2:])
        gm[GB] += ['s_waitcnt lgkmcnt(0)', 's_barrier', rd[0]]
        for i in range(1, 5): gm[GB + i].append(rd[i])
        for k in range(0, len(sc), 2): gv[(8 if role == 'c' else 20) + k // 2] += sc[k:k + 2]
        def place(ins, lo):
            k = lo
            while gm[k]: k += 1
            gm[k] += ins if isinstance(ins, list) else [ins]
            return k
        if role == 's':
            B0 = 21
            def epi(t):
                c = TACC + 4 * t
                return (['v_add_f32 v%d, v%d, v%d' % (c, c, c + 2), 'v_add_f32 v%d, v%d, v%d' % (c + 1, c + 1, c + 3),
                         'v_cvt_pk_bf16_f32 v%d, v%d, v%d' % (c, c, c + 1)], ['ds_write_b32 v4, v%d offset:%d' % (c, 256 * t)])
            for t in range(6):
                v, m = epi(t)
                for i, ins in enumerate(v): gv[B0 + 4 * t + 7 + i].append(ins)
                gm[B0 + 4 * t + 10].append(m[0])
            place('ds_read_b64_tr_b16 %s, v5' % V(TA, 2), B0 + 23)
            place('ds_read_b64_tr_b16 %s, v5 offset:128' % V(TA + 2, 2), B0 + 24)
            def brd(step, xb0, xb1, mb):
                r = []
                for kt, b in ((0, xb0), (1, xb1)):
                    for hh in range(2):
                        r.append('ds_read_b128 %s, v6 offset:%d' % (V(b + 4 * hh, 4), kt * 14336 + (2 * step + hh) * 1024))
                ad = 'v8' if step == 0 else 'v9'
                for hh in range(2):
                    for qq in range(2):
                        r.append('ds_read2_b32 %s, %s offset0:%d offset1:%d' % (V(mb + 4 * hh + 2 * qq, 2), ad, 128 * hh + qq, 128 * hh + qq + 8))
                return r
            place('buffer_load_dword v18, off, s[8:11], s49 sc1', GB)
            place('buffer_load_dword v19, v7, s[8:11], s38 offen' if 'notouch' not in dev else 'buffer_load_dword v19, off, s[8:11], s49 sc1', GB)
            if 'xt' in dev:
                xl = [['buffer_load_dwordx4 v1, s[8:11], s34 offen offset:%d sc1 lds' % (1024 * i)] for i in range(4)]
                xl[3] += ['s_add_u32 m0, s36, 4096', 's_add_u32 s28, s34, 4096']
                xl += [['buffer_load_dwordx4 v1, s[8:11], s28 offen offset:%d sc1 lds' % (1024 * i)] for i in range(3)]
                k, xs = GB + 7, 4
                for x in dev:
                    if x.startswith('xs'): xs = int(x[2:])
                for grp in xl: k = place(grp, k) + xs
            BL = 12
            for x in dev:
                if x.startswith('bl'): BL = int(x[2:])
            for ins in brd(0, SB, SB + 8, SB + 16): place(ins, BL)
            b1 = brd(1, TACC, TACC + 8, MF)
            k = 20
            while gm[k]: k += 1
            yv = sum(1 for kk in range(k) for x in gm[kk] if x.startswith('buffer_'))
            k = place(['s_waitcnt vmcnt(%d)' % yv, b1[4]], 20)
            for ins in b1[5:]: place(ins, k)
            for ins in b1[0:2]: place(ins, B0 + 15)
            for ins in b1[2:4]: place(ins, B0 + 23)
            def younger_ds(k0, k1): return sum(1 for kk in range(k0, k1) for x in gm[kk] if x.startswith('ds_'))
            pre[14].append('s_waitcnt lgkmcnt(%d)' % younger_ds(GB + 1, 14))
            pre[B0].append('s_waitcnt lgkmcnt(%d)' % younger_ds(GB + 5, B0))
        else:
            pre[16].append('s_waitcnt lgkmcnt(4)')
            pre[24].append('s_waitcnt lgkmcnt(0)')
            sp = 4
            for x in dev:
                if x.startswith('sp') and x[2:].isdigit(): sp = int(x[2:])
            rest = dd[NE:]
            for i, grp in enumerate(rest): gm[12 + sp * i] += grp
            gm[10].append('buffer_load_dword v18, off, s[8:11], s49 sc1')
            def cepi(t):
                c = TACC + 4 * t
                return (['v_add_f32 v%d, v%d, v%d' % (c, c, c + 2), 'v_add_f32 v%d, v%d, v%d' % (c + 1, c + 1, c + 3),
                         'v_cvt_pk_bf16_f32 v%d, v%d, v%d' % (c, c, c + 1)], 'ds_write_b32 v19, v%d offset:%d' % (c, 256 * t))
            for t in range(8):
                v, m = cepi(t)
                for i_, ins in enumerate(v): gv[32 + 3 * t + 6 + i_].append(ins)
                gm[32 + 3 * t + 9].insert(0, m)
            wr = ['ds_read_b128 %s, v14 offset:%d' % (V(CSPILL[i >> 1] + 4 * (i & 1), 4), 1024 * i) for i in range(14)]
            for ins in wr[:10]: place(ins, 17)
            k = 30
            while gm[k]: k += 1
            younger = sum(1 for kk in range(k) for x in gm[kk] if x.startswith('buffer_'))
            k = place(['s_waitcnt vmcnt(%d)' % younger, wr[10]], 30)
            place(wr[11], k)
            for ins in wr[12:]: kl = place(ins, 33)
            def yds(k0, k1): return sum(1 for kk in range(k0, k1) for x in gm[kk] if x.startswith('ds_'))
            pre[24] = ['s_waitcnt lgkmcnt(%d)' % yds(GB + 5, 24)]
            pre[49].append('s_waitcnt lgkmcnt(%d)' % yds(kl + 1, 49))
            gv[20].append('v_add_u32 v15, s30, v1')
            gv[21].append('v_lshrrev_b32 v3, 4, v0')
            gv[22].append('v_lshl_add_u32 v3, v3, 2, s48')
            gv[23].append('v_and_b32 v19, 15, v0')
            gv[24].append('v_lshl_add_u32 v19, v19, 4, v3')
            gv[25].append('v_add_u32 v3, s48, v1')
        for k in range(N):
            for ins in pre[k]: a(ins)
            if k >= NSP: smf(k)
            if k == 0 and NSP: continue
            for ins in gm[k] + gv[k]: a(ins)
        stamp(1)
        if role == 's':
            for kk in range(N, N + 3):
                for ins in gm[kk] + gv[kk]: a(ins)
            assert not any(gm[N + 3:]) and not any(gv[N + 3:])
            a('s_cmp_lt_u32 s3, 2')
            a('s_nop 1')
            v, m = epi(6)
            a('v_pk_add_f32 %s, %s, %s', V(TACC + 24, 2), V(TACC + 24, 2), V(TACC + 26, 2))
            for ins in v[2:] + m: a(ins)
            a('ds_read_b64_tr_b16 %s, v5 offset:1024', V(TA + 4, 2))
            a('ds_read_b64_tr_b16 %s, v5 offset:1152', V(TA + 6, 2))
            a('s_waitcnt lgkmcnt(7)')
            for kt in range(3):
                a('v_smfmac_f32_16x16x64_bf16 %s, %s, %s, v2', V(SACC + 4 * kt, 4), V(TA, 4), V(SB + 8 * kt, 8))
            a('s_waitcnt lgkmcnt(0)')
            for kt, b in enumerate((TACC, TACC + 8, MF)):
                a('v_smfmac_f32_16x16x64_bf16 %s, %s, %s, v2', V(SACC + 4 * kt, 4), V(TA + 4, 4), V(b, 8))
            a('s_nop %d', 5 if 'tight' not in dev else 1)
            def sadd(kt):
                c = SACC + 4 * kt
                if 'nopk' not in dev: a('v_pk_add_f32 %s, %s, %s', V(c, 2), V(c, 2), V(c + 2, 2))
                else:
                    a('v_add_f32 v%d, v%d, v%d', c, c, c + 2)
                    a('v_add_f32 v%d, v%d, v%d', c + 1, c + 1, c + 3)
            def swr(kt):
                c = SACC + 4 * kt
                if kt < 2: a('ds_write2_b32 v10, v%d, v%d offset0:%d offset1:%d', c, c + 1, 32 * kt, 32 * kt + 64)
                else: a('ds_write2_b32 v15, v%d, v%d offset0:2 offset1:66', c, c + 1)
            if 'so0' not in dev: sadd(0); sadd(1); swr(0); sadd(2); swr(1); swr(2)
            else:
                for kt in range(3): sadd(kt); swr(kt)
            lns, ljn = a.new('ns'), a.new('jn')
            a('s_cbranch_scc0 %s', lns)
            tails.append(('nv', lns, ljn))
            for r in range(ZA): a('v_mov_b32 v%d, 0', TACC + r)
            a('s_waitcnt lgkmcnt(0)')
            if ZA: a('v_mov_b32 v%d, 0', TACC + ZA)
            a('s_barrier')
            stamp(2)
            for w in range(4): a('ds_read_b96 %s, v11 offset:%d', V(76 + 4 * w, 3), 2048 * w) if 'b96' in dev else a('ds_read_b128 %s, v11 offset:%d', V(76 + 4 * w, 4), 2048 * w)
            for r in range(ZA + 1, ZN): a('v_mov_b32 v%d, 0', TACC + r)
            a('s_waitcnt lgkmcnt(2)')
            a('v_pk_add_f32 v[76:77], v[76:77], v[80:81]')
            a('v_add_f32 v78, v78, v82')
            a('s_waitcnt lgkmcnt(0)')
            a('v_pk_add_f32 v[84:85], v[84:85], v[88:89]')
            a('v_add_f32 v86, v86, v90')
            a('v_pk_add_f32 v[76:77], v[76:77], v[84:85]')
            a('v_add_f32 v78, v78, v86')
            DP = ('quad_perm:[1,0,3,2]', 'quad_perm:[2,3,0,1]', 'row_half_mirror', 'row_mirror')
            def dpp(op, d, s_, ctl): a('%s_dpp v%d, v%d, v%d %s row_mask:0xf bank_mask:0xf', op, d, s_, s_, ctl)
            a('v_max3_f32 v84, v76, v77, v78')
            a('v_sub_f32 v76, v76, v84')
            a('v_sub_f32 v77, v77, v84')
            dpp('v_max_f32', 85, 84, DP[0])
            a('v_sub_f32 v78, v78, v84')
            a('v_exp_f32 v76, v76')
            dpp('v_max_f32', 85, 85, DP[1])
            a('v_exp_f32 v77, v77')
            a('s_nop 0')
            dpp('v_max_f32', 85, 85, DP[2])
            a('v_exp_f32 v78, v78')
            a('v_add_f32 v86, v76, v77')
            dpp('v_max_f32', 85, 85, DP[3])
            a('v_sub_f32 v84, v84, v85')
            a('v_exp_f32 v84, v84')
            a('v_fmac_f32 v86, v78, v14')
            a('v_mul_f32 v86, v86, v84')
            a('v_mul_f32 v76, v76, v84')
            a('v_mul_f32 v77, v77, v84')
            dpp('v_add_f32', 86, 86, DP[0])
            a('v_mul_f32 v78, v78, v84')
            a('s_nop 0')
            for ctl in DP[1:]:
                dpp('v_add_f32', 86, 86, ctl)
                if ctl != DP[3]: a('s_nop 1')
            a('v_rcp_f32 v86, v86')
            a('s_nop 0')
            a('v_mul_f32 v76, v76, v86')
            a('v_mul_f32 v77, v77, v86')
            a('v_cvt_pk_bf16_f32 v88, |v76|, |v77|')
            a('buffer_store_dword v88, v12, s[8:11], s22 offen' + SC)
            a('v_mul_f32_dpp v79, v78, v86 row_shl:4 row_mask:0xf bank_mask:0xf bound_ctrl:0')
            a('v_mul_f32 v78, v78, v86')
            a('v_cvt_pk_bf16_f32 v90, |v78|, |v79|')
            a('buffer_store_dword v90, v13, s[8:11], s22 offen' + SC)
            stamp(3)
            a('s_waitcnt vmcnt(%d)', 3 + (7 if 'xt' in dev else 0))
            a('s_barrier')
            if 'nox' not in dev: xdma()
            a.label(ljn)
            a('v_add_u32 v7, %d, v7', XSEG)
            a('s_mov_b64 exec, s[62:63]')
            a('v_add_u32 v7, %d, v7', DSEG - XSEG)
            a('s_mov_b64 exec, -1')
            a('s_add_u32 s31, s12, 3')
            fcheck(18, 3, 's31')
            a('s_cselect_b32 s38, 0x%x, 0', OOB)
            a('s_cmp_gt_u32 s31, 62')
            a('s_cselect_b32 s38, 0x%x, s38', OOB)
            for x in dev:
                if x.startswith('ds'): a('s_sleep %d', int(x[2:]))
        else:
            def pld1(k):
                a('buffer_load_dwordx4 %s, %s, s[8:11], s43 offen offset:%d sc1', V(PF + 4 * k, 4), 'v10' if k else 'v6', 1024 if k == 2 else 0)
            def pld():
                for k in range(3): pld1(k)
            for i in range(8): a('ds_read_b128 %s, v15 offset:%d', V(DB + 4 * i, 4), 1024 * (i & 3) + 16384 * (i >> 2))
            pld()
            for kk in range(N, N + 12):
                for ins in gm[kk] + gv[kk]: a(ins)
            a('ds_read_b128 %s, v3', V(VB, 4))
            a('ds_read_b128 %s, v3 offset:1024', V(VB + 4, 4))
            a('v_add_u32 v15, 2048, v8')
            a('s_waitcnt vmcnt(3)')
            a('s_add_u32 s35, s35, %d', DSEG)
            a('s_add_u32 s31, s12, 2')
            fcheck(18, 3, 's31')
            a('s_cselect_b32 s13, 1, 0')
            a('s_add_u32 s6, s35, 16384')
            a('s_cmp_gt_u32 s31, 62')
            a('s_cselect_b32 s38, 0x%x, s35', OOB)
            a('s_cselect_b32 s6, 0x%x, s6', OOB)
            a('s_cselect_b32 s13, 0, s13')
            a('s_mov_b32 s14, 0')
            stamp(4)
            a('s_waitcnt lgkmcnt(0)')
            lr, lq = a.new('pr'), a.new('pq')
            def pchk():
                a('v_or3_b32 v3, v%d, v%d, v%d', PF, PF + 1, PF + 2)
                a('v_or3_b32 v19, v%d, v%d, v%d', PF + 3, PF + 4, PF + 5)
                a('v_or3_b32 v3, v%d, v%d, v3', PF + 6, PF + 7)
                a('v_or3_b32 v19, v%d, v%d, v19', PF + 8, PF + 9)
                a('v_or3_b32 v3, v%d, v%d, v3', PF + 10, PF + 11)
                a('v_or_b32 v3, v19, v3')
                a('v_cmp_gt_i32 vcc, 0, v3')
            def dn(tl): a('v_mfma_f32_16x16x32_bf16 %s, %s, %s, 0', V(CACC + 4 * tl, 4), V(PF, 4), V(VB + 4 * tl, 4))
            def sp_(tl, k): a('v_smfmac_f32_16x16x64_bf16 %s, %s, %s, v2', V(CACC + 4 * tl, 4), V(PF + 4 + 4 * k, 4), V(DB + 16 * tl + 8 * k, 8))
            for x in dev:
                if x.startswith('pw'): a('s_sleep %d', int(x[2:]))
            a.label(lr)
            pld()
            a('s_add_u32 s14, s14, 1')
            a('s_cmp_lt_u32 s14, %d', SPIN)
            a('s_cbranch_scc0 tdie')
            a('s_cmp_lt_u32 s3, 2')
            a('s_waitcnt vmcnt(3)')
            if 'cold' in dev:
                pchk()
                dn(0)
                a('s_cbranch_vccnz %s', lr)
                sp_(0, 0); sp_(0, 1); dn(1); sp_(1, 0); sp_(1, 1)
                stamp(5)
                n0, n1 = None, 4
            else:
                a('v_or3_b32 v3, v%d, v%d, v%d', PF, PF + 1, PF + 2)
                a('v_or3_b32 v3, v%d, v%d, v3', PF + 3, PF + 4)
                dn(0)
                a('v_or3_b32 v3, v%d, v%d, v3', PF + 5, PF + 6)
                dn(1)
                a('v_or3_b32 v3, v%d, v%d, v3', PF + 7, PF + 8)
                sp_(0, 0)
                a('v_or3_b32 v3, v%d, v%d, v3', PF + 9, PF + 10)
                sp_(1, 0)
                a('v_or_b32 v3, v%d, v3', PF + 11)
                sp_(0, 1)
                a('v_cmp_gt_i32 vcc, 0, v3')
                sp_(1, 1)
                a('s_cbranch_vccnz %s', lr)
                stamp(5)
                n0, n1 = 4, None
            if n0: a('s_nop %d', n0)
            a('v_pk_add_f32 %s, %s, %s', V(CACC, 2), V(CACC, 2), V(CACC + 2, 2))
            if n1: a('s_nop %d', n1 + 2)
            else: a('s_nop 0')
            a('v_pk_add_f32 %s, %s, %s', V(CACC + 4, 2), V(CACC + 4, 2), V(CACC + 6, 2))
            a('ds_write2_b32 v8, v%d, v%d offset0:0 offset1:16', CACC, CACC + 1)
            a('ds_write2_b32 v15, v%d, v%d offset0:0 offset1:16', CACC + 4, CACC + 5)
            lnr, ljr = a.new('nr'), a.new('jr')
            a('s_cbranch_scc0 %s', lnr)
            tails.append(('ns', lnr, ljr))
            a('s_waitcnt lgkmcnt(0)')
            a('s_barrier')
            for w in range(4): a('ds_read_b64 %s, v9 offset:%d', V(RT + 2 * w, 2), 512 * w)
            a('s_waitcnt lgkmcnt(2)')
            a('v_pk_add_f32 %s, %s, %s', V(RT, 2), V(RT, 2), V(RT + 2, 2))
            a('s_waitcnt lgkmcnt(0)')
            a('v_pk_add_f32 %s, %s, %s', V(RT + 4, 2), V(RT + 4, 2), V(RT + 6, 2))
            a('v_pk_add_f32 %s, %s, %s', V(RT, 2), V(RT, 2), V(RT + 4, 2))
            a('v_cvt_pk_bf16_f32 v%d, v%d, v%d', RT, RT, RT + 1)
            a('v_min_u32 v%d, -2, v%d', RT, RT)
            a('buffer_store_dword v%d, v11, s[8:11], s42 offen%s', RT, SC)
            stamp(6)
            a('s_barrier')
            a('s_mov_b32 s40, 0x%x', MEME + 63 * UNIT)
            a.label(ljr)
            for x in dev:
                if x.startswith('dc'): a('s_sleep %d', int(x[2:]))
        if dev and role == 's':
            l = a.new('ts')
            a('s_lshl_b32 s30, s4, 2')
            a('s_add_u32 s30, s30, s3')
            a('s_cmp_eq_u32 s30, 63')
            a('s_cbranch_scc0 %s', l)
            a('s_memtime s[80:81]')
            a('s_lshl_b32 s30, s12, 2')
            a('s_add_u32 s30, s30, 0x3F30000')
            a('s_waitcnt lgkmcnt(0)')
            a('v_mov_b32 v99, s80')
            a('buffer_store_dword v99, off, s[8:11], s30')
            a.label(l)
        if dev:
            ld = a.new('dv')
            a('s_cmp_eq_u32 s12, 40')
            a('s_cbranch_scc0 %s', ld)
            a('s_memtime s[80:81]')
            a('s_memrealtime s[82:83]')
            a('s_waitcnt lgkmcnt(0)')
            a('s_sub_u32 s78, s80, s78')
            a('s_sub_u32 s88, s82, s88')
            a('s_lshl_b32 s30, s5, 4')
            a('s_add_u32 s30, s30, s4')
            a('s_lshl_b32 s30, s30, 2')
            a('s_add_u32 s30, s30, s3')
            a('s_lshl_b32 s30, s30, 6')
            a('s_add_u32 s30, s30, 0x3F00000')
            for kk in range(13):
                a('v_mov_b32 v99, s%d', 64 + 2 * kk)
                a('buffer_store_dword v99, off, s[8:11], s30 offset:%d', 4 * kk)
                a('s_nop 1')
            a.label(ld)
        a('s_add_u32 s12, s12, 1')
        a('s_cmp_lt_u32 s12, 63')
        a('s_cbranch_scc1 %sloop%s', role, mode)
        if role == 'c': a('buffer_store_dword v%d, v11, s[8:11], s40 offen sc1', RT)
        if dev:
            a('s_memrealtime s[82:83]')
            a('s_waitcnt lgkmcnt(0)')
            a('s_lshl_b32 s30, s2, 4')
            a('s_add_u32 s30, s30, 0x3F10000')
            for kk, r in enumerate((90, 84, 82)):
                a('v_mov_b32 v99, s%d', r)
                a('buffer_store_dword v99, off, s[8:11], s30 offset:%d', 4 * kk)
                a('s_nop 1')
            amp = [x for x in dev if x.startswith('amp')]
            if amp and role == amp[0][3]:
                k = amp[0][4]
                if k == '1': a('s_sub_u32 s31, s84, s92'); a('s_mul_i32 s31, s31, 10')
                if k == '2': a('s_sub_u32 s31, s82, s84'); a('s_mul_i32 s31, s31, 2')
                if k == '3': a('s_sub_u32 s31, s90, s92'); a('s_mul_i32 s31, s31, 10')
                if k == '4': a('s_sub_u32 s31, s96, s92'); a('s_mul_i32 s31, s31, 10')
                if k == '0': a('s_mov_b32 s31, 2000')
                l = a.new('am')
                a.label(l)
                a('s_sleep 4')
                a('s_memrealtime s[80:81]')
                a('s_waitcnt lgkmcnt(0)')
                a('s_sub_u32 s30, s80, s82')
                a('s_cmp_lt_u32 s30, s31')
                a('s_cbranch_scc1 %s', l)
            if 'dbgt' in dev:
                l = a.new('dt')
                a('s_cmp_eq_u32 s4, 5')
                a('s_cbranch_scc0 %s', l)
                a('s_lshl_b32 s30, s5, 4')
                for kk, r in enumerate((90, 84, 82, 78)):
                    if r != 78: a('s_sub_u32 s31, s%d, s92', r)
                    else: a('s_mov_b32 s31, s78')
                    a('v_mov_b32 v99, s31')
                    a('buffer_store_dword v99, off, s[44:47], s30 offset:%d', 4 * kk)
                    a('s_nop 1')
                a.label(l)
        a('s_endpgm')
        for p in tails:
            a.label(p[1])
            if p[0] == 'dw':
                a('s_add_u32 s31, s12, 1')
                dwait('s31')
                a('s_branch %s', p[2])
            elif p[0] == 'nv':
                for r in range(4): a('v_mov_b32 v%d, -1', 92 + r)
                a('s_waitcnt lgkmcnt(0)')
                a('s_barrier')
                a('buffer_store_dwordx4 v[92:95], v1, s[8:11], s24 offen' + SC)
                if 'xe' in dev: xdma()
                a('s_waitcnt vmcnt(%d)', 2 + (7 if 'xe' in dev else 0))
                a('s_barrier')
                if 'xe' not in dev and 'nox' not in dev: xdma()
                for r in range(ZN): a('v_mov_b32 v%d, 0', TACC + r)
                a('s_branch %s', p[2])
            elif p[0] == 'ns':
                a('s_waitcnt lgkmcnt(0)')
                a('s_barrier')
                a('s_barrier')
                a('s_branch %s', p[2])
    for mode in 'FS':
        for role in 'sc': loop(role, mode)
```

```python
from common import *
import fold
SPIN = 400000
XB = 28672 + 128
KT1 = 14336 + 64
DST = 'sc1'
DEV = False
BACKOFF = 24
MSLEEP = 2
DBGT = False
def tl(a, k):
    if DEV:
        a('s_memrealtime s[82:83]')
        a('s_waitcnt lgkmcnt(0)')
        a('s_lshl_b32 s84, s2, 4')
        a('s_add_u32 s84, s84, 0x3F10000')
        a('v_mov_b32 v4, s82')
        a('buffer_store_dword v4, off, s[8:11], s84 offset:%d', 4 * k)
        a('s_nop 1')

NSET_D, NSET_F, NSET_X, NSET_O = 2, 2, 4, 10

def lane_consts(a):
    a('v_lshlrev_b32 v1, 4, v0')
    a('v_and_b32 v2, 15, v0')
    a('v_lshrrev_b32 v3, 4, v0')

def x_setup(a, lx):
    a('s_mul_i32 s30, s3, 7168')
    a('s_mul_i32 s34, s12, %d', XSEG)
    a('s_add_u32 s34, s34, s30')
    a('s_add_u32 s34, s34, 0x%x', XF)
    a('s_lshr_b32 s31, s3, 1')
    a('s_lshl_b32 s31, s31, 6')
    a('s_add_u32 s36, s30, s31')
    a('s_add_u32 s36, s36, %d', lx)
    a('s_mov_b32 s50, %d', XB)

def x_dma(a):
    a('s_mov_b32 m0, s36')
    a('s_add_u32 s30, s34, 4096')
    for i in range(4): a('buffer_load_dwordx4 v1, s[8:11], s34 offen offset:%d sc1 lds', 1024 * i)
    a('s_add_u32 m0, s36, 4096')
    a('s_nop 0')
    for i in range(3): a('buffer_load_dwordx4 v1, s[8:11], s30 offen offset:%d sc1 lds', 1024 * i)

def x_next(a, nset):
    a('s_add_u32 s34, s34, %d', XSEG * nset)
    a('s_add_u32 s36, s36, s50')

def perm_rows_addr(a, dst, lx, gmul_shift, tmp):
    a('v_lshrrev_b32 v%d, 3, v2', tmp)
    a('s_movk_i32 s30, %d', KT1)
    a('v_mul_u32_u24 v%d, s30, v%d', dst, tmp)
    a('v_bfe_u32 v%d, v0, 2, 1', tmp)
    a('v_lshl_add_u32 v%d, v%d, 7, v%d', dst, tmp, dst)
    a('v_and_b32 v%d, 3, v0', tmp)
    a('v_lshl_add_u32 v%d, v%d, 4, v%d', dst, tmp, dst)
    a('v_add_u32 v%d, %d, v%d', dst, lx, dst)

def publish(a, word_sgpr_off, val):
    l = a.new('pb')
    a('s_cmp_eq_u32 s3, 0')
    a('s_cbranch_scc0 %s', l)
    a('v_mov_b32 v4, %s', val)
    a('v_mov_b32 v5, 0')
    a('buffer_store_dword v4, v5, s[8:11], %s offen sc1', word_sgpr_off)
    a.label(l)

def sg_loop(a, name, nset, nst, mfma_fn, epi_fn, rd_fn, tail_fn=None):
    XR = 64
    x_dma(a)
    a('s_mov_b32 s13, 0')
    a('s_waitcnt vmcnt(0)')
    tl(a, 1)
    a('s_branch %s_in', name)
    a.label(name + '_loop')
    a('s_waitcnt vmcnt(%d)', nst)
    a.label(name + '_in')
    a('s_barrier')
    x_next(a, nset)
    x_dma(a)
    def rd(j):
        for mt in range(2): rd_fn(XR + 8 * (j % 4) + 4 * mt, j, mt)
    for j in range(3): rd(j)
    for j in range(14):
        if j + 3 < 14: rd(j + 3)
        a('s_waitcnt lgkmcnt(%d)', 2 * min(3, 13 - j))
        mfma_fn(j, XR + 8 * (j % 4))
        if j == 8:
            a('s_waitcnt vmcnt(7)')
            a('s_barrier')
            publish(a, 's35', 's13')
    a('v_add_u32 v6, s50, v6')
    a('s_sub_u32 s50, 0, s50')
    a('s_nop 6')
    epi_fn()
    a('s_add_u32 s13, s13, 1')
    a('s_add_u32 s12, s12, %d', nset)
    a('s_cmp_lt_u32 s12, 64')
    a('s_cbranch_scc1 %s_loop', name)
    a('s_waitcnt vmcnt(0)')
    a('s_barrier')
    publish(a, 's35', 's13')
    tl(a, 2)
    if tail_fn is None: a('s_endpgm')
    else: tail_fn()

def mem_fetch(a, KO, va0, va1):
    lp, ok = a.new('xm'), a.new('xk')
    a('s_mov_b32 s14, 0')
    a.label(lp)
    a('buffer_load_dwordx4 %s, v1, s[8:11], s32 offen sc1', V(KO, 4))
    a('buffer_load_dwordx4 %s, v1, s[8:11], s33 offen sc1', V(KO + 4, 4))
    a('s_waitcnt vmcnt(0)')
    a('v_max3_u32 v4, v%d, v%d, v%d', KO, KO + 1, KO + 2)
    a('v_max3_u32 v5, v%d, v%d, v%d', KO + 3, KO + 4, KO + 5)
    a('v_max3_u32 v4, v%d, v%d, v4', KO + 6, KO + 7)
    a('v_max_u32 v4, v4, v5')
    a('v_cmp_eq_u32 vcc, -1, v4')
    a('s_cbranch_vccz %s', ok)
    if MSLEEP: a('s_sleep %d', MSLEEP)
    a('s_add_u32 s14, s14, 1')
    a('s_cmp_lt_u32 s14, %d', SPIN)
    a('s_cbranch_scc1 %s', lp)
    a('s_endpgm')
    a.label(ok)
    a('ds_write_b128 v%d, %s', va0, V(KO, 4))
    a('ds_write_b128 v%d, %s', va1, V(KO + 4, 4))

def own_frags(a, lm, va0, va1):
    a('s_lshl_b32 s15, s3, 11')
    a('s_add_u32 s16, s15, 1024')
    a('s_cmp_eq_u32 s3, 3')
    a('s_cselect_b32 s16, 0, s16')
    a('s_add_u32 s31, s15, %d', lm)
    a('v_add_u32 v%d, s31, v1', va0)
    a('s_add_u32 s31, s16, %d', lm)
    a('v_add_u32 v%d, s31, v1', va1)

def gen_d(a, vtail=True):
    a.label('role_d')
    tl(a, 0)
    a('s_lshr_b32 s6, s30, 1')
    a('s_and_b32 s12, s30, 1')
    lane_consts(a)
    a('s_lshl_b32 s34, s3, 2')
    fold.wait_part(a, FLG_C, 's34', 4, False)
    a('s_mul_i32 s33, s34, 28')
    a('s_add_u32 s33, s33, s6')
    a('s_mul_i32 s33, s33, 14336')
    a('s_add_u32 s33, s33, 0x%x', WF_C)
    for ps in range(2):
        for hh in range(4):
            for j in range(14):
                if (j >> 1) & 1 != ps: continue
                if j % 2 == 0: a('s_add_u32 s32, s33, %d', hh * 28 * 14336 + j * 1024)
                a('buffer_load_dwordx4 %s, v1, s[8:11], s32 offen offset:%d sc1', A((hh * 14 + j) * 4, 4), (j % 2) * 1024)
        if ps == 0: fold.wait_head_and_misc(a, FLG_C, 's34', 56, 24)
    x_setup(a, 0)
    perm_rows_addr(a, 6, 0, 0, 7)
    a('v_lshl_add_u32 v6, v3, 8, v6')
    a('s_lshl_b32 s35, s12, 7')
    a('s_lshl_b32 s31, s6, 2')
    a('s_add_u32 s35, s35, s31')
    a('s_add_u32 s35, s35, 0x%x', DPROG)
    ACC = 32
    def rd(b, j, mt): a('ds_read_b128 %s, v6 offset:%d', V(b, 4), j * 1024 + mt * 64)
    def mf(j, xb):
        for hh in range(4):
            for mt in range(2):
                c = ACC + (hh * 2 + mt) * 4
                a('v_mfma_f32_16x16x32_bf16 %s, %s, %s, %s', V(c, 4), V(xb + 4 * mt, 4), A((hh * 14 + j) * 4, 4), V(c, 4) if j else '0')
    def epi():
        a('s_mul_i32 s30, s12, %d', DSEG)
        a('s_lshl_b32 s31, s6, 14')
        a('s_add_u32 s30, s30, s31')
        a('s_lshl_b32 s31, s3, 12')
        a('s_add_u32 s30, s30, s31')
        a('s_add_u32 s30, s30, 0x%x', DD)
        for hh in range(4):
            c = ACC + hh * 8
            o = 96 + 4 * hh
            for d in range(4): a('v_cvt_pk_bf16_f32 v%d, v%d, v%d', o + d, c + 2 * d, c + 2 * d + 1)
            a('buffer_store_dwordx4 %s, v1, s[8:11], s30 offen offset:%d %s', V(o, 4), 1024 * hh, DST)
    def tail():
        LM = 65536
        own_frags(a, LM, 9, 10)
        a('v_lshrrev_b32 v4, 1, v3')
        a('v_lshlrev_b32 v8, 8, v4')
        a('v_bfe_u32 v4, v0, 1, 2')
        a('v_lshl_add_u32 v8, v4, 6, v8')
        a('v_and_b32 v4, 1, v0')
        a('v_lshl_add_u32 v8, v4, 4, v8')
        a('v_and_b32 v4, 1, v3')
        a('v_lshl_add_u32 v8, v4, 3, v8')
        a('v_add_u32 v8, %d, v8', LM)
        a('v_lshlrev_b32 v11, 4, v2')
        a('v_lshl_add_u32 v11, v4, 3, v11')
        a('v_lshrrev_b32 v4, 1, v3')
        a('v_lshl_add_u32 v11, v4, 8, v11')
        a('v_cmp_gt_u32 s[60:61], 32, v0')
        a('s_and_b32 s12, s12, 1')
        a('s_lshl_b32 s35, s12, 9')
        a('s_lshl_b32 s31, s6, 4')
        a('s_add_u32 s35, s35, s31')
        a('s_lshl_b32 s31, s3, 2')
        a('s_add_u32 s35, s35, s31')
        a('s_add_u32 s35, s35, 0x%x', VPROG)
        a('s_mov_b32 s13, 0')
        a.label('rv_loop')
        a('s_mul_i32 s39, s12, %d', UNIT)
        a('s_add_u32 s39, s39, 0x%x', MEME)
        a('s_add_u32 s32, s39, s15')
        a('s_add_u32 s33, s39, s16')
        mem_fetch(a, 64, 9, 10)
        a('s_waitcnt lgkmcnt(0)')
        a('s_barrier')
        AF = 120
        def ard(j):
            if j % 2 == 0 and j: a('v_add_u32 v8, 1024, v8')
            for qq in range(2):
                o = 128 * (j & 1) + qq
                a('ds_read2_b32 %s, v8 offset0:%d offset1:%d', V(AF + 4 * j + 2 * qq, 2), o, o + 8)
        for j in range(3): ard(j)
        for j in range(14):
            if j + 3 < 14: ard(j + 3)
            a('s_waitcnt lgkmcnt(%d)', 2 * min(3, 13 - j))
            for hh in range(4):
                c = ACC + hh * 4
                a('v_mfma_f32_16x16x32_bf16 %s, %s, %s, %s', V(c, 4), V(AF + 4 * j, 4), A((hh * 14 + j) * 4, 4), V(c, 4) if j else '0')
        a('v_subrev_u32 v8, 6144, v8')
        for r in (8, 9, 10): a('v_xor_b32 v%d, 0x2000, v%d', r, r)
        a('s_mul_i32 s30, s12, %d', VSLOT)
        a('s_lshl_b32 s31, s6, 12')
        a('s_add_u32 s30, s30, s31')
        a('s_lshl_b32 s31, s3, 10')
        a('s_add_u32 s30, s30, s31')
        a('s_add_u32 s30, s30, 0x%x', VE)
        a('s_add_u32 s13, s13, 1')
        a('s_nop 1')
        for hp in range(2):
            c = ACC + hp * 8
            for r in range(4): a('v_cndmask_b32 v%d, v%d, v%d, s[60:61]', c + r, c + 4 + r, c + r)
            a('v_cvt_pk_bf16_f32 v%d, v%d, v%d', 96 + 2 * hp, c, c + 1)
            a('v_cvt_pk_bf16_f32 v%d, v%d, v%d', 97 + 2 * hp, c + 2, c + 3)
            a('buffer_store_dwordx2 %s, v11, s[8:11], s30 offen offset:%d sc1', V(96 + 2 * hp, 2), 512 * hp)
        a('v_mov_b32 v4, s13')
        a('s_waitcnt vmcnt(0)')
        a('buffer_store_dword v4, off, s[8:11], s35 sc1')
        a('s_add_u32 s12, s12, %d', NSET_D)
        a('s_cmp_lt_u32 s12, 64')
        a('s_cbranch_scc1 rv_loop')
        tl(a, 3)
        a('s_endpgm')
    sg_loop(a, 'rd', NSET_D, 4, mf, epi, rd, tail if vtail else None)

def gen_f1(a):
    a.label('role_f1')
    tl(a, 0)
    a('s_lshr_b32 s6, s30, 1')
    a('s_and_b32 s12, s30, 1')
    a('s_load_dwordx4 s[56:59], s[0:1], %d', KA['wg'])
    lane_consts(a)
    RS = 272
    a('s_lshl_b32 s31, s3, 2')
    a('v_add_u32 v4, s31, v3')
    a('s_movk_i32 s30, 3584')
    a('v_mul_u32_u24 v5, s30, v4')
    a('v_lshl_add_u32 v5, v2, 4, v5')
    a('s_movk_i32 s30, %d', RS)
    a('v_mul_u32_u24 v7, s30, v4')
    a('v_lshl_add_u32 v7, v2, 4, v7')
    a('v_add_u32 v8, %d, v7', 14 * 16 * RS)
    a('v_lshrrev_b32 v9, 2, v2')
    a('v_lshl_add_u32 v9, v3, 3, v9')
    a('v_mul_u32_u24 v9, s30, v9')
    a('v_and_b32 v4, 3, v0')
    a('v_lshl_add_u32 v9, v4, 4, v9')
    a('s_lshl_b32 s31, s3, 6')
    a('v_add_u32 v9, s31, v9')
    a('v_add_u32 v10, %d, v9', 7 * 32 * RS)
    a('s_waitcnt lgkmcnt(0)')
    a.srd(16, 56, FBYTES)
    a.srd(20, 58, FBYTES)
    ST = 16
    for mat in range(2):
        a('s_lshl_b32 s31, s6, 8')
        for p in range(28):
            a('buffer_load_dwordx4 %s, v5, s[%d:%d], s31 offen', V(ST + (mat * 28 + p) * 4, 4), 16 + 4 * mat, 19 + 4 * mat)
            if p < 27: a('s_add_u32 s31, s31, %d', 16 * 3584)
    for mat in range(2):
        a('s_waitcnt vmcnt(%d)', 28 if mat == 0 else 0)
        for p in range(28):
            a('ds_write_b128 v%d, %s offset:%d', 7 if p < 14 else 8, V(ST + (mat * 28 + p) * 4, 4), (p % 14) * 16 * RS)
        a('s_waitcnt lgkmcnt(0)')
        a('s_barrier')
        for u in range(2):
            for j in range(14):
                b = ((mat * 2 + u) * 14 + j) * 4
                o = (j % 7) * 32 * RS + u * 8
                a('ds_read_b64_tr_b16 %s, v%d offset:%d', A(b, 2), 9 if j < 7 else 10, o)
                a('ds_read_b64_tr_b16 %s, v%d offset:%d', A(b + 2, 2), 9 if j < 7 else 10, o + 4 * RS)
        a('s_waitcnt lgkmcnt(0)')
        a('s_barrier')
    x_setup(a, 0)
    a('v_mov_b32 v6, v1')
    a('s_lshl_b32 s35, s12, 7')
    a('s_lshl_b32 s31, s6, 2')
    a('s_add_u32 s35, s35, s31')
    a('s_add_u32 s35, s35, 0x%x', HPROG)
    ACC = 32
    def rd(b, j, tt): a('ds_read_b128 %s, v6 offset:%d', V(b, 4), j * 1024 + tt * KT1)
    def mf(j, xb):
        for q in range(4):
            for tt in range(2):
                c = ACC + (tt * 4 + q) * 4
                a('v_mfma_f32_16x16x32_bf16 %s, %s, %s, %s', V(c, 4), A((q * 14 + j) * 4, 4), V(xb + 4 * tt, 4), V(c, 4) if j else '0')
    def epi():
        a('s_mul_i32 s30, s12, %d', VSLOT)
        a('s_lshl_b32 s31, s6, 12')
        a('s_add_u32 s30, s30, s31')
        a('s_lshl_b32 s31, s3, 10')
        a('s_add_u32 s30, s30, s31')
        a('s_add_u32 s30, s30, 0x%x', H1)
        a('s_add_u32 s31, s30, 57344')
        for tt in range(2):
            g = ACC + tt * 16
            u = g + 8
            t = 104
            for i in range(8): a('v_mul_f32 v%d, 0x%x, v%d', t + i, fbits(-LOG2E), g + i)
            for i in range(8): a('v_exp_f32 v%d, v%d', t + i, t + i)
            for i in range(8): a('v_mul_f32 v%d, v%d, v%d', u + i, u + i, g + i)
            for i in range(8): a('v_add_f32 v%d, 1.0, v%d', t + i, t + i)
            for i in range(8): a('v_rcp_f32 v%d, v%d', t + i, t + i)
            a('s_nop 0')
            for i in range(8): a('v_mul_f32 v%d, v%d, v%d', u + i, u + i, t + i)
            o = 96 + 4 * tt
            for d in range(4): a('v_cvt_pk_bf16_f32 v%d, v%d, v%d', o + d, u + 2 * d, u + 2 * d + 1)
            a('buffer_store_dwordx4 %s, v1, s[8:11], s%d offen sc1', V(o, 4), 30 + tt)
    sg_loop(a, 'rf', NSET_F, 2, mf, epi, rd)

def poll_ge(a, voff, soff, vthr, tmp):
    lp, ok, near = a.new('pl'), a.new('pk'), a.new('pn')
    a('s_mov_b32 s14, 0')
    a.label(lp)
    a('buffer_load_dword v%d, v%d, s[8:11], %s offen sc1', tmp, voff, soff)
    a('s_waitcnt vmcnt(0)')
    a('v_cmp_lt_u32 vcc, v%d, v%d', tmp, vthr)
    a('s_cbranch_vccz %s', ok)
    if BACKOFF:
        a('v_add_u32 v%d, 1, v%d', tmp, tmp)
        a('v_cmp_lt_u32 vcc, v%d, v%d', tmp, vthr)
        a('s_cbranch_vccz %s', near)
        a('s_sleep %d', BACKOFF)
        a.label(near)
        a('s_sleep 1')
    else: a('s_sleep 4')
    a('s_add_u32 s14, s14, 1')
    a('s_cmp_lt_u32 s14, %d', SPIN)
    a('s_cbranch_scc1 %s', lp)
    a('s_endpgm')
    a.label(ok)

def gen_xs(a):
    LX, LM, LP = 0, 2 * XB, 2 * XB + 7168
    a.label('role_xs')
    tl(a, 0)
    a('s_mul_i32 s4, s30, %d', 65536 // NSET_X + 1)
    a('s_lshr_b32 s4, s4, 16')
    a('s_mul_i32 s31, s4, %d', NSET_X)
    a('s_sub_u32 s12, s30, s31')
    lane_consts(a)
    fold.wait_head(a, FLG_A, 's4')
    def W(t, j):
        i = t * 14 + j
        return A(4 * i, 4) if i < 64 else V(120 + 4 * (i - 64), 4)
    a('s_mul_i32 s31, s4, 28')
    a('s_mul_i32 s32, s3, 7')
    a('s_add_u32 s31, s31, s32')
    a('s_mul_i32 s31, s31, 14336')
    if WF_A: a('s_add_u32 s31, s31, 0x%x', WF_A)
    for i in range(98):
        if i % 4 == 0 and i: a('s_add_u32 s31, s31, 4096')
        a('buffer_load_dwordx4 %s, v1, s[8:11], s31 offen offset:%d sc1', W(i // 14, i % 14), (i % 4) * 1024)
        if i >= 48 and i % 8 == 0: a('s_waitcnt vmcnt(40)')
    x_setup(a, LX)
    a('v_add_u32 v6, %d, v1', LX) if LX else a('v_mov_b32 v6, v1')
    perm_rows_addr(a, 7, LX, 0, 4)
    a('v_lshrrev_b32 v4, 1, v3')
    a('s_mul_i32 s31, s3, 14')
    a('v_add_u32 v4, s31, v4')
    a('v_lshl_add_u32 v7, v4, 8, v7')
    a('v_and_b32 v4, 1, v3')
    a('v_lshl_add_u32 v7, v4, 3, v7')
    a('v_bfe_u32 v4, v0, 1, 2')
    a('v_lshlrev_b32 v8, 6, v4')
    a('v_and_b32 v4, 1, v0')
    a('v_lshl_add_u32 v8, v4, 4, v8')
    a('v_lshl_add_u32 v8, v3, 2, v8')
    a('s_mul_i32 s31, s3, 1792')
    a('s_add_u32 s31, s31, %d', LM)
    a('v_add_u32 v8, s31, v8')
    own_frags(a, LM, 9, 10)
    a('s_mul_i32 s31, s3, 6144')
    a('s_add_u32 s31, s31, %d', LP)
    a('v_add_u32 v11, s31, v1')
    a('s_lshl_b32 s31, s3, 10')
    a('s_add_u32 s31, s31, %d', LP)
    a('v_add_u32 v12, s31, v1')
    a('s_lshl_b32 s31, s3, 4')
    a('v_add_u32 v4, s31, v2')
    a('v_lshlrev_b32 v5, 3, v3')
    a('v_sub_u32 v4, v4, v5')
    for i in range(8): a('v_cmp_gt_i32 s[%d:%d], %d, v4', 64 + 2 * i, 65 + 2 * i, i)
    a('v_cmp_gt_u32 vcc, 2, v3')
    a('v_mov_b32 v13, 0xff800000')
    a('s_nop 0')
    a('v_cndmask_b32 v14, 0, 1.0, vcc')
    a('s_lshl_b32 s31, s4, 11')
    a('s_lshl_b32 s32, s3, 10')
    a('s_add_u32 s31, s31, s32')
    a('v_add_u32 v15, s31, v1')
    a('s_lshr_b32 s31, s4, 2')
    a('s_lshl_b32 s31, s31, 11')
    a('s_add_u32 s31, s31, s32')
    a('s_and_b32 s32, s4, 3')
    a('s_lshl_b32 s32, s32, 8')
    a('s_add_u32 s31, s31, s32')
    a('s_add_u32 s31, s31, 32768')
    a('v_and_b32 v4, 1, v3')
    a('v_lshlrev_b32 v16, 4, v2')
    a('v_lshl_add_u32 v16, v4, 3, v16')
    a('v_add_u32 v16, s31, v16')
    a('s_lshl_b32 s35, s12, 7')
    a('s_lshl_b32 s31, s4, 3')
    a('s_add_u32 s35, s35, s31')
    a('s_lshl_b32 s31, s3, 2')
    a('s_add_u32 s35, s35, s31')
    a('s_add_u32 s35, s35, 0x%x', XPROG)
    a('v_mov_b32 v17, 0')
    a('s_mov_b32 s13, 0')
    x_dma(a)
    ACC, XR, SA, KO = 20, 76, 92, 76
    if DEV: a('s_waitcnt vmcnt(0)')
    tl(a, 1)
    a.label('rx_loop')
    a('s_waitcnt vmcnt(0)')
    a('s_barrier')
    x_next(a, NSET_X)
    x_dma(a)
    def rd(j):
        for tt in range(2): a('ds_read_b128 %s, v6 offset:%d', V(XR + 8 * (j & 1) + 4 * tt, 4), j * 1024 + tt * KT1)
    rd(0)
    for j in range(14):
        if j + 1 < 14: rd(j + 1)
        a('s_waitcnt lgkmcnt(%d)', 2 if j < 13 else 0)
        for t in range(7):
            for tt in range(2):
                c = ACC + (t * 2 + tt) * 4
                a('v_mfma_f32_16x16x32_bf16 %s, %s, %s, %s', V(c, 4), W(t, j), V(XR + 8 * (j & 1) + 4 * tt, 4), V(c, 4) if j else '0')
    a('s_mul_i32 s39, s12, %d', UNIT)
    a('s_add_u32 s39, s39, 0x%x', MEME)
    a('s_add_u32 s32, s39, s15')
    a('s_add_u32 s33, s39, s16')
    def krd(t):
        for ku in range(2): a('ds_read_b64 %s, v7 offset:%d', V(KO + 4 * (t % 4) + 2 * ku, 2), t * 512 + ku * 64)
    for t in range(3): krd(t)
    a('s_nop 2')
    for i in range(14):
        c = ACC + 4 * i
        a('v_cvt_pk_bf16_f32 v%d, v%d, v%d', c, c, c + 1)
        a('v_cvt_pk_bf16_f32 v%d, v%d, v%d', c + 1, c + 2, c + 3)
    a('s_nop 1')
    for t in range(7):
        if t + 3 < 7: krd(t + 3)
        a('s_waitcnt lgkmcnt(%d)', 2 * min(3, 6 - t))
        for ku in range(2):
            for tt in range(2):
                c = SA + (ku * 2 + tt) * 4
                a('v_mfma_f32_16x16x16_bf16 %s, %s, %s, %s', V(c, 4), V(KO + 4 * (t % 4) + 2 * ku, 2), V(ACC + (t * 2 + tt) * 4, 2), V(c, 4) if t else '0')
    a('v_add_u32 v6, s50, v6')
    a('v_add_u32 v7, s50, v7')
    a('s_sub_u32 s50, 0, s50')
    mem_fetch(a, KO, 9, 10)
    for b in range(4): a('ds_write_b128 v11, %s offset:%d', V(SA + 4 * b, 4), 1024 * b)
    a('s_waitcnt lgkmcnt(0)')
    a('s_barrier')
    for t in range(7):
        a('ds_read_b32 v%d, v8 offset:%d', KO + 2 * t, 256 * t)
        a('ds_read_b32 v%d, v8 offset:%d', KO + 2 * t + 1, 256 * t + 32)
    for t in range(7):
        a('s_waitcnt lgkmcnt(%d)', 2 * (6 - t))
        for tt in range(2):
            c = SA + 16 + tt * 4
            a('v_mfma_f32_16x16x16_bf16 %s, %s, %s, %s', V(c, 4), V(KO + 2 * t, 2), V(ACC + (t * 2 + tt) * 4, 2), V(c, 4) if t else '0')
    a('s_nop 7')
    for b in (4, 5): a('ds_write_b128 v11, %s offset:%d', V(SA + 4 * b, 4), 1024 * b)
    a('s_waitcnt lgkmcnt(0)')
    a('s_barrier')
    lsk = a.new('xs')
    a('s_add_u32 s13, s13, 1')
    a('s_cmp_lt_u32 s3, 2')
    a('s_cbranch_scc0 %s', lsk)
    R = 20
    for w in range(4):
        for b in range(3): a('ds_read_b128 %s, v12 offset:%d', V(R + 12 * w + 4 * b, 4), 6144 * w + 2048 * b)
    a('s_mul_i32 s30, s12, %d', PXSEG)
    a('s_add_u32 s30, s30, 0x%x', PX)
    for w in range(1, 4):
        a('s_waitcnt lgkmcnt(%d)', 3 * (3 - w))
        for i in range(6): a('v_pk_add_f32 %s, %s, %s', V(R + 2 * i, 2), V(R + 2 * i, 2), V(R + 12 * w + 2 * i, 2))
    for i in range(8): a('v_cndmask_b32 v%d, v%d, v13, s[%d:%d]', R + i, R + i, 64 + 2 * i, 65 + 2 * i)
    a('v_max3_f32 v4, v%d, v%d, v%d', R, R + 1, R + 2)
    for i in range(3, 11, 2): a('v_max3_f32 v4, v%d, v%d, v4', R + i, R + i + 1)
    a('v_max_f32 v4, v%d, v4', R + 11)
    def xred(op):
        for sw in ('v_permlane32_swap_b32', 'v_permlane16_swap_b32'):
            a('v_mov_b32 v5, v4')
            a('s_nop 1')
            a('%s v4, v5', sw)
            a('%s v4, v4, v5', op)
    xred('v_max_f32')
    for i in range(12): a('v_sub_f32 v%d, v%d, v4', R + i, R + i)
    for i in range(12): a('v_exp_f32 v%d, v%d', R + i, R + i)
    a('v_add_f32 v4, v%d, v%d', R, R + 1)
    for i in range(2, 8): a('v_add_f32 v4, v%d, v4', R + i)
    for i in range(8, 12): a('v_fmac_f32 v4, v%d, v14', R + i)
    xred('v_add_f32')
    a('v_rcp_f32 v4, v4')
    a('s_nop 0')
    for i in range(12): a('v_mul_f32 v%d, v%d, v4', R + i, R + i)
    for d in range(6): a('v_cvt_pk_bf16_f32 v%d, v%d, v%d', 40 + d, R + 2 * d, R + 2 * d + 1)
    a('buffer_store_dwordx4 v[40:43], v15, s[8:11], s30 offen sc1')
    a('buffer_store_dwordx2 v[44:45], v16, s[8:11], s30 offen sc1')
    a('v_mov_b32 v4, s13')
    a('s_waitcnt vmcnt(0)')
    a('buffer_store_dword v4, v17, s[8:11], s35 offen sc1')
    a.label(lsk)
    a('s_add_u32 s12, s12, %d', NSET_X)
    a('s_cmp_lt_u32 s12, 64')
    a('s_cbranch_scc1 rx_loop')
    tl(a, 2)
    a('s_endpgm')

def gen_fin(a):
    a.label('role_fin')
    tl(a, 0)
    a('s_mul_i32 s12, s30, 9363')
    a('s_lshr_b32 s12, s12, 16')
    a('s_mul_i32 s31, s12, 7')
    a('s_sub_u32 s6, s30, s31')
    a('s_load_dwordx2 s[56:57], s[0:1], %d', KA['wd'])
    a('s_load_dwordx2 s[58:59], s[0:1], %d', KA['out'])
    lane_consts(a)
    RS = 144
    a('v_lshrrev_b32 v4, 3, v0')
    a('v_and_b32 v5, 7, v0')
    a('s_movk_i32 s30, 896')
    a('v_mul_u32_u24 v6, s30, v4')
    a('v_lshl_add_u32 v6, v5, 4, v6')
    a('s_movk_i32 s30, %d', RS)
    a('v_mul_u32_u24 v7, s30, v4')
    a('v_lshl_add_u32 v7, v5, 4, v7')
    a('s_mul_i32 s31, s3, %d', 224 * RS)
    a('v_add_u32 v7, s31, v7')
    a('v_lshrrev_b32 v8, 2, v2')
    a('v_lshl_add_u32 v8, v3, 3, v8')
    a('v_mul_u32_u24 v8, s30, v8')
    a('v_and_b32 v4, 3, v0')
    a('v_lshl_add_u32 v8, v4, 3, v8')
    a('v_add_u32 v8, s31, v8')
    a('s_waitcnt lgkmcnt(0)')
    a.srd(16, 56, FBYTES)
    a.srd(20, 58, XBYTES)
    ST = 16
    a('s_mul_i32 s31, s3, %d', 448 * 896)
    a('s_lshl_b32 s32, s6, 7')
    a('s_add_u32 s31, s31, s32')
    for p in range(56):
        a('buffer_load_dwordx4 %s, v6, s[16:19], s31 offen', V(ST + 4 * p, 4))
        if p < 55: a('s_add_u32 s31, s31, %d', 8 * 896)
    for rnd in range(2):
        a('s_waitcnt vmcnt(%d)', 28 if rnd == 0 else 0)
        for p in range(28): a('ds_write_b128 v7, %s offset:%d', V(ST + 4 * (rnd * 28 + p), 4), p * 8 * RS)
        for jj in range(7):
            for t in range(4):
                b = ((rnd * 7 + jj) * 4 + t) * 4
                a('ds_read_b64_tr_b16 %s, v8 offset:%d', A(b, 2), jj * 32 * RS + t * 32)
                a('ds_read_b64_tr_b16 %s, v8 offset:%d', A(b + 2, 2), jj * 32 * RS + t * 32 + 4 * RS)
            a('s_waitcnt lgkmcnt(0)')
    a('s_barrier')
    tl(a, 1)
    a('v_lshlrev_b32 v4, 2, v0')
    a('s_lshl_b32 s31, s6, 4')
    a('s_sub_u32 s31, s31, 56')
    a('v_add_u32 v5, s31, v4')
    a('v_add_u32 v4, %d, v4', HPROG - CNT)
    a('v_cmp_gt_u32 vcc, 14, v0')
    a('s_nop 1')
    a('v_cndmask_b32 v4, v5, v4, vcc')
    a('v_cmp_gt_u32 vcc, 18, v0')
    a('v_mov_b32 v5, %d', HPROG - CNT)
    a('s_nop 0')
    a('v_cndmask_b32 v4, v5, v4, vcc')
    a('v_and_b32 v5, 7, v0')
    a('v_lshlrev_b32 v5, 2, v5')
    a('s_lshl_b32 s31, s3, 5')
    a('s_add_u32 s31, s31, %d', XPROG - CNT)
    a('v_add_u32 v5, s31, v5')
    a('v_and_b32 v6, 3, v0')
    a('v_lshlrev_b32 v6, 4, v6')
    a('s_lshl_b32 s31, s3, 2')
    a('s_lshl_b32 s32, s6, 6')
    a('s_add_u32 s31, s31, s32')
    a('s_add_u32 s31, s31, %d', VPROG - CNT)
    a('v_add_u32 v6, s31, v6')
    a('v_cmp_gt_u32 s[60:61], 8, v2')
    a('v_lshlrev_b32 v8, 2, v2')
    RO = 272
    a('s_lshl_b32 s31, s3, 5')
    a('v_add_u32 v9, s31, v2')
    a('s_movk_i32 s30, %d', RO)
    a('v_mul_u32_u24 v9, s30, v9')
    a('v_lshl_add_u32 v9, v3, 4, v9')
    a('v_lshrrev_b32 v12, 3, v0')
    a('s_lshl_b32 s31, s3, 3')
    a('v_add_u32 v12, s31, v12')
    a('v_mul_u32_u24 v10, s30, v12')
    a('v_and_b32 v13, 7, v0')
    a('v_lshl_add_u32 v10, v13, 5, v10')
    a('s_movk_i32 s30, 896')
    a('v_mul_u32_u24 v11, s30, v12')
    a('v_lshl_add_u32 v11, v13, 4, v11')
    a('s_mov_b32 s50, %d', 128 * RO)
    HF, DF, AB, AA, GR = 16, 128, 192, 224, 14
    a.label('ro_loop')
    a('s_and_b32 s30, s12, 1')
    a('s_lshl_b32 s30, s30, 7')
    a('s_add_u32 s30, s30, 0x%x', CNT)
    a('s_lshr_b32 s31, s12, 1')
    a('s_add_u32 s31, s31, 1')
    a('v_mov_b32 v12, s31')
    poll_ge(a, 4, 's30', 12, 13)
    a('s_mul_i32 s30, s12, %d', VSLOT)
    a('s_mul_i32 s31, s3, 14336')
    a('s_add_u32 s30, s30, s31')
    a('s_add_u32 s30, s30, 0x%x', H1)
    for jj in range(14):
        if jj % 4 == 0:
            a('s_add_u32 s32, s30, %d', jj * 1024)
            a('s_add_u32 s33, s30, %d', jj * 1024 + 57344)
        for tt in range(2):
            a('buffer_load_dwordx4 %s, v1, s[8:11], s%d offen offset:%d sc1', V(HF + (jj * 2 + tt) * 4, 4), 32 + tt, (jj % 4) * 1024)
    a('s_mul_i32 s30, s12, %d', DSEG)
    a('s_lshl_b32 s31, s6, 16')
    a('s_add_u32 s30, s30, s31')
    a('s_lshl_b32 s31, s3, 12')
    a('s_add_u32 s30, s30, s31')
    a('s_add_u32 s30, s30, 0x%x', DD)
    for t in range(4):
        for hh in range(4):
            a('buffer_load_dwordx4 %s, v1, s[8:11], s30 offen offset:%d sc1', V(DF + (t * 4 + hh) * 4, 4), hh * 1024)
        if t < 3: a('s_add_u32 s30, s30, 16384')
    a('s_lshl_b32 s30, s12, 7')
    a('s_add_u32 s30, s30, 0x%x', GG)
    for tt in range(2): a('buffer_load_dword v%d, v8, s[8:11], s30 offen offset:%d sc1', GR + tt, 64 * tt)
    for jj in range(14):
        a('s_waitcnt vmcnt(%d)', 18 + 2 * (13 - jj))
        for tt in range(2):
            for t in range(4):
                c = AB + (t * 2 + tt) * 4
                a('v_mfma_f32_16x16x32_bf16 %s, %s, %s, %s', V(c, 4), A((jj * 4 + t) * 4, 4), V(HF + (jj * 2 + tt) * 4, 4), V(c, 4) if jj else '0')
    a('s_mul_i32 s31, s12, %d', 65536 // NSET_X + 1)
    a('s_lshr_b32 s31, s31, 16')
    a('s_mul_i32 s32, s31, %d', NSET_X)
    a('s_sub_u32 s32, s12, s32')
    a('s_lshl_b32 s32, s32, 7')
    a('v_add_u32 v12, s32, v5')
    a('s_and_b32 s32, s12, 1')
    a('s_lshl_b32 s32, s32, 9')
    a('v_add_u32 v13, s32, v6')
    a('v_cndmask_b32 v%d, v13, v12, s[60:61]', HF)
    a('s_add_u32 s31, s31, 1')
    a('s_lshr_b32 s32, s12, 1')
    a('s_add_u32 s32, s32, 1')
    a('v_mov_b32 v12, s31')
    a('v_mov_b32 v13, s32')
    a('v_cndmask_b32 v12, v13, v12, s[60:61]')
    a('s_mov_b32 s30, 0x%x', CNT)
    poll_ge(a, HF, 's30', 12, 13)
    PF, PM, VF = 20, 52, 60
    a('s_mul_i32 s30, s12, %d', PXSEG)
    a('s_add_u32 s30, s30, 0x%x', PX)
    a('s_lshl_b32 s31, s3, 13')
    a('s_add_u32 s31, s31, s30')
    a('s_add_u32 s32, s31, 4096')
    for i in range(8):
        a('buffer_load_dwordx4 %s, v1, s[8:11], s%d offen offset:%d sc1', V(PF + 4 * i, 4), 31 + (i >> 2), (i & 3) * 1024)
    a('s_lshl_b32 s31, s3, 11')
    a('s_add_u32 s31, s31, s30')
    a('s_add_u32 s31, s31, 32768')
    for tt in range(2): a('buffer_load_dwordx4 %s, v1, s[8:11], s31 offen offset:%d sc1', V(PM + 4 * tt, 4), 1024 * tt)
    a('s_mul_i32 s30, s12, %d', VSLOT)
    a('s_lshl_b32 s31, s3, 10')
    a('s_add_u32 s30, s30, s31')
    a('s_lshl_b32 s31, s6, 14')
    a('s_add_u32 s30, s30, s31')
    a('s_add_u32 s30, s30, 0x%x', VE)
    for t in range(4):
        a('buffer_load_dwordx4 %s, v1, s[8:11], s30 offen sc1', V(VF + 4 * t, 4))
        if t < 3: a('s_add_u32 s30, s30, 4096')
    for hh in range(4):
        a('s_waitcnt vmcnt(%d)', 6 + 2 * (3 - hh))
        for tt in range(2):
            for t in range(4):
                c = AA + (t * 2 + tt) * 4
                a('v_mfma_f32_16x16x32_bf16 %s, %s, %s, %s', V(c, 4), V(DF + (t * 4 + hh) * 4, 4), V(PF + (hh * 2 + tt) * 4, 4), V(c, 4) if hh else '0')
    a('s_waitcnt vmcnt(0)')
    for t in range(4):
        for tt in range(2):
            c = AA + (t * 2 + tt) * 4
            a('v_mfma_f32_16x16x32_bf16 %s, %s, %s, %s', V(c, 4), V(VF + 4 * t, 4), V(PM + 4 * tt, 4), V(c, 4))
    a('s_mul_i32 s30, s12, %d', 32 * 896)
    a('s_lshl_b32 s31, s6, 7')
    a('s_add_u32 s30, s30, s31')
    for t in range(4):
        for tt in range(2):
            i = (t * 2 + tt) * 4
            for r in range(4): a('v_sub_f32 v%d, v%d, v%d', AA + i + r, AA + i + r, AB + i + r)
            for r in range(4): a('v_fmac_f32 v%d, v%d, v%d', AB + i + r, GR + tt, AA + i + r)
            a('ds_write_b128 v9, %s offset:%d', V(AB + i, 4), tt * 16 * RO + t * 64)
    a('s_waitcnt lgkmcnt(0)')
    a('s_barrier')
    for w in range(4):
        for hf in range(2): a('ds_read_b128 %s, v10 offset:%d', V(20 + 8 * w + 4 * hf, 4), w * 32 * RO + 16 * hf)
    a('v_add_u32 v9, s50, v9')
    a('v_add_u32 v10, s50, v10')
    a('s_sub_u32 s50, 0, s50')
    for w in range(1, 4):
        a('s_waitcnt lgkmcnt(%d)', 2 * (3 - w))
        for i in range(4): a('v_pk_add_f32 %s, %s, %s', V(20 + 2 * i, 2), V(20 + 2 * i, 2), V(20 + 8 * w + 2 * i, 2))
    for d in range(4): a('v_cvt_pk_bf16_f32 v%d, v%d, v%d', 56 + d, 20 + 2 * d, 21 + 2 * d)
    a('buffer_store_dwordx4 v[56:59], v11, s[20:23], s30 offen sc1')
    a('s_add_u32 s12, s12, %d', NSET_O)
    a('s_cmp_lt_u32 s12, 64')
    a('s_cbranch_scc1 ro_loop')
    if DEV: a('s_waitcnt vmcnt(0)')
    tl(a, 2)
    if DBGT:
        a('s_sub_u32 s82, s82, s92')
        a('v_mov_b32 v4, s82')
        a('v_mov_b32 v5, 32')
        a('buffer_atomic_umax v4, v5, s[44:47], 0 offen')
        for k in (1, 2, 3):
            a('s_sub_u32 s82, s%d, s92', 93 + k)
            a('v_mov_b32 v%d, s82', 6 + k)
            a('buffer_atomic_umax v%d, v5, s[44:47], 0 offen offset:%d', 6 + k, 4 * k)
    a('s_endpgm')
```

```python
import sys
from common import *
import fold, team, workers

HEADER = open('cdna_kernels/%s.s.ref' % NAME).read().split('; Override launch geometry')[0]
MAIN_LDS = team.TEAM_LDS

def kd(name, vgpr, acc, sgpr):
    return '''.p2align 6
.amdhsa_kernel %s
  .amdhsa_next_free_vgpr %d
  .amdhsa_next_free_sgpr %d
  .amdhsa_accum_offset %d
  .amdhsa_group_segment_fixed_size 0
  .amdhsa_kernarg_size 120
  .amdhsa_user_sgpr_count 2
  .amdhsa_user_sgpr_kernarg_segment_ptr 1
  .amdhsa_system_sgpr_workgroup_id_x 1
.end_amdhsa_kernel
''' % (name, vgpr, sgpr, acc)

def build(mask, dev=False, aslist=False):
    a = Asm()
    workers.DEV = fold.DEV = bool(dev)
    fold.FINE = bool(dev) and 'fine' in dev
    fold.OVERLAP = bool(dev) and 'ov' in dev.split('+')
    for x in (dev or '').split('+'):
        if x.startswith('fd'): fold.DEPTH = int(x[2:])
        if x.startswith('bo'): workers.BACKOFF = int(x[2:])
        if x.startswith('msl'): workers.MSLEEP = int(x[3:])
        if x == 'norot': fold.ROT = False
        if x == 'x3': workers.NSET_X, workers.NSET_O = 3, 13
        if x == 'wst01': fold.WST = 'sc0 sc1'
        if x == 'wstnt': fold.WST = 'nt sc1'
        if x.startswith('af'): fold.AFIRST = int(x[2:]); fold.BYK = False
    workers.DBGT = fold.DBGT = bool(dev) and 'dbgt' in dev
    nm = NAME + '_kernel'
    a.l.append('.globl %s\n.p2align 8\n.type %s,@function' % (nm, nm))
    a.label(nm)
    a('s_cmp_ge_u32 s2, 256')
    a('s_cbranch_scc1 quit')
    if dev: a('s_memrealtime s[92:93]')
    a('s_load_dwordx8 s[64:71], s[0:1], 0')
    a('s_load_dwordx4 s[72:75], s[0:1], 32')
    a('s_load_dwordx2 s[76:77], s[0:1], %d', KA['gw'])
    a('s_load_dwordx4 s[52:55], s[0:1], %d', KA['dbg'])
    a('v_lshrrev_b32 v1, 6, v0')
    a('v_and_b32 v0, 63, v0')
    a('v_readfirstlane_b32 s3, v1')
    if not (dev and 'nocw' in dev):
        a('s_getpc_b64 s[32:33]')
        a.label('pcref')
        a('s_lshr_b32 s31, s2, 3')
        a('s_lshl_b32 s31, s31, 2')
        a('s_add_u32 s31, s31, s3')
        a('s_and_b32 s31, s31, 7')
        a('s_lshl_b32 s31, s31, 13')
        a('v_lshl_add_u32 v252, v0, 7, s31')
        a('v_min_u32 v252, codeend-pcref-4, v252')
        a('global_load_dword v253, v252, s[32:33]')
    a('s_waitcnt lgkmcnt(0)')
    a.srd(8, 54, team.OOB)
    a.srd(44, 52, 256)
    a.srd(60, 72, WBYTES)
    a.srd(16, 74, WBYTES)
    a.srd(36, 68, WBYTES)
    a.srd(56, 70, WBYTES)
    a.srd(20, 64, XBYTES)
    a.srd(24, 76, 896)
    a.srd(40, 66, 7168)
    fold.tl(a, 0)
    a('s_and_b32 s31, s2, 7')
    a('s_lshr_b32 s53, s2, 3')
    a('s_cmp_eq_u32 s31, 0')
    a('s_cbranch_scc1 die0')
    a('s_sub_u32 s31, s31, 1')
    a('s_lshl_b32 s31, s31, 5')
    a('s_add_u32 s53, s53, s31')
    fold.gen_fold(a)
    a('s_mov_b32 s30, s53')
    for bit, n, lab in ((2, 56, 'role_d'), (4, 16 * workers.NSET_X, 'role_xs'), (8, 28, 'role_f1'), (16, 7 * workers.NSET_O, 'role_fin')):
        a('s_cmp_lt_u32 s30, %d', n)
        a('s_cbranch_scc1 %s', lab if mask & bit else 'quit')
        a('s_sub_u32 s30, s30, %d', n)
        if lab == 'role_d':
            fold.wait_all(a, FLG_M, 256)
            if not (dev and ('nogate' in dev or 'xung' in dev)): fold.wait_started(a)
        if lab == 'role_xs' and dev and 'xung' in dev: fold.wait_started(a)
    a.label('quit')
    a('s_endpgm')
    a.label('die0')
    l = a.new('nj')
    a('s_cmp_eq_u32 s53, 31')
    a('s_cbranch_scc0 %s', l)
    fold.janitor(a)
    a.label(l)
    fold.misc_loads(a)
    fold.unit_fill(a)
    a('s_waitcnt vmcnt(0)')
    fold.misc_rest(a)
    fold.wait_janitor(a)
    a('s_add_u32 s34, s53, 224')
    fold.set_flag(a, FLG_M, 's34')
    a('s_mov_b32 s30, s53')
    team.gen_team(a, dev)
    workers.gen_d(a, vtail=bool(mask & 16))
    workers.gen_xs(a)
    workers.gen_f1(a)
    workers.gen_fin(a)
    a.label('codeend')
    s = HEADER
    if aslist: s += '; @launch kernel=%s grid=(256,1,1) block=(256,1,1) lds=%d\n' % (nm, MAIN_LDS)
    else: s += '; @launch grid=(256,1,1) block=(256,1,1) lds=%d\n' % MAIN_LDS
    s += '.amdgcn_target "amdgcn-amd-amdhsa--gfx950"\n.text\n' + a.text()
    s += '.section .rodata,"a"\n' + kd(nm, 512, 256, 100)
    return s

if __name__ == '__main__':
    out = sys.argv[1]
    dev = sys.argv[3] if len(sys.argv) > 3 else False
    open(out, 'w').write(build(int(sys.argv[2]), dev, aslist='/bench/' in out and 'dbgt' not in (dev or '') and 'amp' not in (dev or '')))
```

```python
from common import *
import fold

L_MEM = 0
L_T = 7680
L_S = L_T + 8192
L_X = L_S + 12288
ZXS = 28672 + 512
L_C = 7680
L_V = L_C + 4096
L_D = 32768
L_W = 98304
TEAM_LDS = L_W + 57344
SPIN = 200000
OOB = 0x8000000
NTEAM = 32
WB = False

ORD_S = ([(0, 0), (1, 0), (0, 1), (1, 1), (2, 0), (3, 0), (2, 1), (3, 1), (4, 0), (5, 0), (6, 0), (4, 1), (5, 1), (6, 1)]
         + [(t, 2) for t in range(7)] + [(t, l) for t in range(7) for l in range(3, 7)])
ORD_C = [(t, l) for l in range(4) for t in range(8)] + [(t, l) for t in range(8) for l in range(4, 7)]
CSPILL = [80, 88, 96, 104, 112, 52, 60]
def Wreg(i, n=8, off=0):
    if i >= 49: return V(CSPILL[i - 49] + off, n)
    return A(8 * i + off, n) if i < 32 else V(120 + 8 * (i - 32) + off, n)

def gen_team(a, dev=False):
    dev = set(dev.split('+')) if dev else set()
    def stamp(k):
        if 'st%d' % k in dev or 'stall' in dev: a('s_memtime s[%d:%d]', 64 + 2 * k, 65 + 2 * k)
    def bits(dst, spec, first=True):
        for pos, w, sh in spec:
            a('v_bfe_u32 v3, v0, %d, %d', pos, w)
            if first: a('v_lshlrev_b32 v%d, %d, v3', dst, sh); first = False
            else: a('v_lshl_add_u32 v%d, v3, %d, v%d', dst, sh, dst)
    def spin(lp):
        a('s_add_u32 s14, s14, 1')
        a('s_cmp_lt_u32 s14, %d', SPIN)
        a('s_cbranch_scc1 %s', lp)
        a('s_endpgm')
    def xdma():
        a('s_mov_b32 m0, s36')
        a('s_add_u32 s30, s34, 4096')
        for i in range(4): a('buffer_load_dwordx4 v1, s[8:11], s34 offen offset:%d sc1 lds', 1024 * i)
        a('s_add_u32 m0, s36, 4096')
        a('s_add_u32 s34, s34, %d', XSEG)
        for i in range(3): a('buffer_load_dwordx4 v1, s[8:11], s30 offen offset:%d sc1 lds', 1024 * i)
    def ddma(src0, src1):
        r = [['buffer_load_dwordx4 v1, s[8:11], %s offen offset:%d sc1 lds' % (src0, 1024 * i)] for i in range(4)]
        r[3].append('s_add_u32 m0, s37, 16384')
        r += [['buffer_load_dwordx4 v1, s[8:11], %s offen offset:%d sc1 lds' % (src1, 1024 * i)] for i in range(4)]
        return r
    def fcheck(src, tmp, seg):
        a('v_readfirstlane_b32 s29, v%d', src)
        a('s_cmp_le_u32 s29, %s', seg)
    def dwait(seg):
        lp, ok = a.new('dw'), a.new('dk')
        a('s_mov_b32 s14, 0')
        a.label(lp)
        a('buffer_load_dword v18, off, s[8:11], s49 sc1')
        a('s_waitcnt vmcnt(0)')
        fcheck(18, 3, seg)
        a('s_cbranch_scc0 %s', ok)
        a('s_sleep 1')
        spin(lp)
        a.label(ok)
    def xcc_gather():
        lp, l2 = a.new('xc'), a.new('xo')
        a('v_min_u32 v20, %d, v0', NTEAM - 1)
        a('v_lshlrev_b32 v20, 2, v20')
        a('s_mov_b32 s14, 0')
        a.label(lp)
        a('buffer_load_dword v3, v20, s[44:47], 0 offen sc1')
        a('s_waitcnt vmcnt(0)')
        a('v_cmp_eq_u32 vcc, 0, v3')
        a('s_cbranch_vccz %s', l2)
        spin(lp)
        a.label(l2)
    def frag_offsets():
        a('s_lshl_b32 s33, s3, 1')
        for lam in range(7):
            a('s_lshl_b32 s%d, s33, 10', 15 + lam)
            if lam < 6:
                a('s_add_u32 s33, s33, 1')
                a('s_cmp_ge_u32 s33, 7')
                a('s_cselect_b32 s32, 7, 0')
                a('s_sub_u32 s33, s33, s32')
    def wload(order, tile_off, early_odd, between):
        if dev: a('s_memrealtime s[96:97]')
        for ps in range(2):
            for lam in range(7):
                l = a.new('wl')
                a('s_bitcmp1_b32 s%d, 10', 15 + lam)
                a('s_cbranch_scc%d %s', 0 if (early_odd ^ ps) else 1, l)
                a('s_waitcnt vmcnt(40)')
                a('s_lshl_b32 s33, s%d, 1', 15 + lam)
                a('s_add_u32 s33, s33, s30')
                for i, (t, lm) in enumerate(order):
                    if lm != lam: continue
                    a('s_add_u32 s32, s33, %d', tile_off(t))
                    if i >= 49:
                        a('s_add_u32 m0, s29, %d', 2048 * (i - 49))
                        a('s_nop 0')
                        a('buffer_load_dwordx4 v1, s[8:11], s32 offen sc1 lds')
                        a('buffer_load_dwordx4 v1, s[8:11], s32 offen offset:1024 sc1 lds')
                    else:
                        a('buffer_load_dwordx4 %s, v1, s[8:11], s32 offen sc1', Wreg(i, 4, 0))
                        a('buffer_load_dwordx4 %s, v1, s[8:11], s32 offen offset:1024 sc1', Wreg(i, 4, 4))
                a.label(l)
            if ps == 0: between()

    a.label('team')
    if dev: a('s_memrealtime s[90:91]')
    a('s_and_b32 s4, s30, 15')
    a('s_lshr_b32 s5, s30, 4')
    a('s_getreg_b32 s31, hwreg(HW_REG_XCC_ID)')
    a('s_and_b32 s31, s31, 15')
    a('s_add_u32 s31, s31, 1')
    a('v_mov_b32 v3, s31')
    a('s_lshl_b32 s32, s30, 2')
    a('buffer_store_dword v3, off, s[44:47], s32 sc1')
    a('v_lshlrev_b32 v1, 4, v0')
    frag_offsets()
    a('s_cmp_ge_u32 s30, 30')
    a('s_cbranch_scc1 export')
    for r in range(4, 16): a('v_mov_b32 v%d, 0', r)
    a('v_and_b32 v3, 2, v0')
    a('v_cmp_eq_u32 s[58:59], 0, v3')
    a('v_mov_b32 v2, 0xeeee')
    a('v_mov_b32 v18, 0x4444')
    a('v_cndmask_b32 v2, v2, v18, s[58:59]')
    a('v_add_u32 v16, s15, v1')
    a('v_add_u32 v17, s16, v1')
    a('s_mov_b32 s49, 0x%x', HZ)
    a('v_cmp_gt_u32 s[62:63], 56, v0')
    lv, lj = a.new('iv'), a.new('ij')
    a('s_cmp_eq_u32 s5, 1')
    a('s_cbranch_scc1 %s', lv)
    fold.wait_part(a, FLG_A, 's4', 1, True)
    a('s_mul_i32 s30, s4, 28')
    a('s_mul_i32 s32, s3, 7')
    a('s_add_u32 s30, s30, s32')
    a('s_mul_i32 s30, s30, 14336')
    wload(ORD_S, lambda t: t * 14336, 1, lambda: fold.wait_head_and_misc(a, FLG_A, 's4', 14, 24))
    a('v_and_b32 v3, 8, v0')
    a('v_cmp_eq_u32 vcc, 0, v3')
    a('s_nop 1')
    a('v_cndmask_b32 v14, 0, 1.0, vcc')
    bits(4, [(2, 2, 6), (0, 1, 5), (4, 2, 3), (1, 1, 2)])
    bits(5, [(4, 2, 8), (0, 4, 3)])
    a('s_lshl_b32 s30, s3, 11')
    a('s_add_u32 s30, s30, %d', L_T)
    a('v_add_u32 v4, s30, v4')
    a('v_add_u32 v5, s30, v5')
    a('s_mul_i32 s30, s3, 3584')
    a('s_add_u32 s30, s30, %d', L_X)
    a('v_add_u32 v6, s30, v1')
    bits(8, [(5, 1, 8), (1, 2, 6), (0, 1, 4), (4, 1, 3)])
    a('s_mul_i32 s30, s3, 1792')
    a('v_add_u32 v8, s30, v8')
    a('v_add_u32 v9, 1024, v8')
    bits(10, [(4, 2, 9), (1, 1, 6), (2, 2, 4), (0, 1, 2)])
    bits(15, [(4, 2, 9), (3, 1, 7), (0, 1, 6), (1, 2, 4)])
    a('s_lshl_b32 s31, s3, 11')
    a('s_add_u32 s31, s31, %d', L_S)
    a('v_add_u32 v10, s31, v10')
    a('v_add_u32 v15, s31, v15')
    a('s_lshl_b32 s31, s3, 10')
    a('s_add_u32 s31, s31, %d', L_S)
    a('v_add_u32 v11, s31, v1')
    a('s_lshl_b32 s30, s4, 9')
    a('s_lshl_b32 s31, s3, 8')
    a('s_add_u32 s30, s30, s31')
    a('v_lshl_add_u32 v12, v0, 2, s30')
    bits(13, [(4, 2, 4), (0, 2, 2)])
    a('s_lshl_b32 s30, s4, 7')
    a('s_lshl_b32 s31, s3, 6')
    a('s_add_u32 s30, s30, s31')
    a('s_add_u32 s30, s30, 8192')
    a('v_add_u32 v13, s30, v13')
    a('v_and_b32 v3, 12, v0')
    a('v_cmp_eq_u32 vcc, 0, v3')
    a('v_mov_b32 v18, 0x%x', OOB)
    a('s_nop 0')
    a('v_cndmask_b32 v13, v18, v13, vcc')
    a('v_mov_b32 v3, 0')
    a('v_lshlrev_b32 v18, 2, v0')
    a('ds_write_b32 v18, v3 offset:%d', L_MEM + 7168)
    for w in range(4): a('ds_write_b32 v18, v3 offset:%d', L_T + w * 2048 + 1792)
    a('v_add_u32 v18, %d, v18', L_X + 28672)
    for o in (0, 256, ZXS, ZXS + 256): a('ds_write_b32 v18, v3 offset:%d', o)
    a('s_mov_b32 s50, %d', ZXS)
    a('s_mul_i32 s30, s3, 7168')
    a('s_add_u32 s34, s30, 0x%x', XF)
    a('s_add_u32 s36, s30, %d', L_X)
    xdma()
    a('s_lshl_b32 s31, s4, 10')
    a('s_add_u32 s27, s31, 0x%x', PR)
    a('s_cmp_lt_u32 s4, 10')
    a('s_cselect_b32 s27, s27, 0x%x', OOB)
    a('s_cmp_eq_u32 s3, 2')
    a('s_cselect_b32 s27, s27, 0x%x', OOB)
    a('s_lshl_b32 s31, s4, 2')
    a('s_add_u32 s31, s31, s3')
    if 'thalf' in dev:
        a('s_mul_i32 s35, s31, 3584')
        a('v_lshl_add_u32 v7, v0, 7, s35')
        a('v_lshrrev_b32 v3, 14, v7')
        a('v_lshl_add_u32 v7, v3, 14, v7')
        a('v_add_u32 v7, 0x%x, v7', DD + 2 * DSEG + 16384)
        a('v_cmp_gt_u32 s[62:63], 28, v0')
    elif 't34' in dev:
        a('s_mul_i32 s35, s31, 42')
        a('v_add_u32 v7, s35, v0')
        a('s_movk_i32 s35, 2731')
        a('v_mul_u32_u24 v3, s35, v7')
        a('v_lshrrev_b32 v3, 16, v3')
        a('v_lshl_add_u32 v7, v3, 3, v7')
        a('v_lshlrev_b32 v7, 7, v7')
        a('v_add_u32 v7, 0x%x, v7', DD + 2 * DSEG + 1024)
        a('v_cmp_gt_u32 s[62:63], 42, v0')
    else:
        a('s_mul_i32 s35, s31, 7168')
        a('s_add_u32 s35, s35, 0x%x', DD + 2 * DSEG)
        a('v_lshl_add_u32 v7, v0, 7, s35')
    a('s_lshl_b32 s31, s31, 9')
    a('s_add_u32 s31, s31, 0x%x', XF + 2 * XSEG)
    a('v_and_b32 v3, 3, v0')
    a('v_lshl_add_u32 v3, v3, 7, s31')
    if 'tx' in dev: a('v_cmp_gt_u32 s[62:63], 0, v0'); a('s_nop 1')
    a('v_cndmask_b32 v7, v3, v7, s[62:63]')
    a('s_mov_b32 s38, 0x%x', OOB)
    a('s_branch %s', lj)
    a.label(lv)
    a('s_lshl_b32 s34, s3, 2')
    fold.wait_part(a, FLG_C, 's34', 4, False)
    a('s_mul_i32 s30, s3, 4*28')
    a('s_lshl_b32 s32, s4, 1')
    a('s_add_u32 s30, s30, s32')
    a('s_mul_i32 s30, s30, 14336')
    a('s_add_u32 s30, s30, 0x%x', WF_C)
    a('s_mul_i32 s29, s3, 14336')
    a('s_add_u32 s29, s29, %d', L_W)
    wload(ORD_C, lambda t: ((t & 3) * 28 + (t >> 2)) * 14336, 0, lambda: fold.wait_head_and_misc(a, FLG_C, 's34', 56, 24))
    a('v_add_u32 v14, s29, v1')
    for r, i in zip((4, 5, 7, 12, 13), range(5)): a('v_add_u32 v%d, s%d, v1', r, 17 + i)
    bits(6, [(4, 2, 7), (2, 2, 5), (0, 1, 4)])
    a('s_mul_i32 s30, s3, 1536')
    a('s_sub_u32 s30, 8192, s30')
    a('v_add_u32 v6, s30, v6')
    a('v_mov_b32 v18, 0x%x', OOB)
    a('v_cndmask_b32 v6, v18, v6, s[58:59]')
    bits(8, [(4, 2, 7), (0, 4, 2)])
    a('s_lshl_b32 s30, s3, 9')
    a('s_add_u32 s30, s30, %d', L_C)
    a('v_add_u32 v8, s30, v8')
    bits(10, [(5, 1, 9), (2, 2, 7), (0, 1, 6), (4, 1, 5), (1, 1, 4)])
    a('s_lshl_b32 s48, s3, 11')
    a('s_add_u32 s48, s48, %d', L_V)
    bits(9, [(4, 2, 7), (2, 1, 6), (0, 2, 4), (3, 1, 3)])
    a('s_and_b32 s31, s3, 1')
    a('s_lshl_b32 s30, s31, 11')
    a('s_add_u32 s30, s30, %d', L_C)
    a('v_add_u32 v9, s30, v9')
    a('s_lshl_b32 s30, s4, 9')
    a('s_lshl_b32 s31, s31, 8')
    a('s_add_u32 s30, s30, s31')
    a('v_lshl_add_u32 v11, v0, 2, s30')
    a('s_lshl_b32 s30, s3, 12')
    a('s_lshl_b32 s31, s4, 15')
    a('s_add_u32 s35, s30, s31')
    a('s_add_u32 s35, s35, 0x%x', DD)
    a('s_add_u32 s37, s30, %d', L_D)
    dwait('0')
    a('s_mov_b32 m0, s37')
    a('s_add_u32 s30, s35, 16384')
    for grp in ddma('s35', 's30'):
        for i in grp: a(i)
        a('s_nop 0')
    a('s_add_u32 s35, s35, %d', DSEG)
    a('s_mov_b32 s38, s35')
    a('s_add_u32 s6, s35, 16384')
    a('s_mov_b32 s40, 0x%x', OOB)
    a('s_mov_b32 s13, 1')
    a.label(lj)
    xcc_gather()
    a('v_readfirstlane_b32 s31, v3')
    a('s_mov_b32 s12, 0')
    a('s_add_u32 s32, s15, 0x%x', MEMX)
    a('s_add_u32 s33, s16, 0x%x', MEMX)
    a('v_cmp_ne_u32 vcc, s31, v3')
    for r in range(20, 48): a('v_mov_b32 v%d, 0', r)
    a('s_waitcnt lgkmcnt(0)')
    if dev:
        lc = a.new('cal')
        a('s_memrealtime s[82:83]')
        a('s_waitcnt lgkmcnt(0)')
        a.label(lc)
        a('s_memrealtime s[84:85]')
        a('s_memtime s[86:87]')
        a('s_waitcnt lgkmcnt(0)')
        a('s_cmp_eq_u32 s84, s82')
        a('s_cbranch_scc1 %s', lc)
    if 'slow' in dev: a('s_branch tslow')
    a('s_cbranch_vccnz tslow')
    a('s_cmp_eq_u32 s5, 1')
    a('s_cbranch_scc1 cloopF')
    a('s_branch sloopF')
    a.label('tslow')
    a('s_cmp_eq_u32 s5, 1')
    a('s_cbranch_scc1 cloopS')
    a('s_branch sloopS')
    a.label('tdie')
    a('s_endpgm')
    a.label('export')
    fold.wait_all(a, FLG_M, 256)
    a('s_cmp_eq_u32 s30, 31')
    a('s_cbranch_scc1 relay')
    a('s_mov_b32 s12, 1')
    a('v_min_u32 v7, 55, v0')
    a('v_lshlrev_b32 v7, 7, v7')
    a('s_mul_i32 s31, s3, %d', UNIT)
    a('s_add_u32 s31, s31, 0x%x', MEMX)
    a('buffer_load_dword v9, v7, s[8:11], s31 offen sc1')
    a('s_lshl_b32 s31, s3, 13')
    a('s_add_u32 s31, s31, 0x%x', PR)
    a('v_lshlrev_b32 v8, 7, v0')
    a('buffer_load_dword v9, v8, s[8:11], s31 offen sc1')
    a('s_add_u32 s31, s31, 8192')
    a('buffer_load_dword v9, v8, s[8:11], s31 offen sc1')
    if 'xw' in dev:
        a('s_mul_i32 s31, s3, 7168')
        a('s_add_u32 s31, s31, 0x%x', XF)
        for k in range(1, 4):
            a('s_add_u32 s31, s31, %d', XSEG)
            a('buffer_load_dword v9, v7, s[8:11], s31 offen sc1')
    a.label('exloop')
    a('s_mul_i32 s30, s12, %d', UNIT)
    a('s_add_u32 s34, s30, 0x%x', MEMX)
    a('s_add_u32 s32, s34, s15')
    a('s_add_u32 s33, s34, s16')
    a('s_add_u32 s34, s34, %d', 3 * UNIT)
    a('s_cmp_eq_u32 s3, 0')
    a('s_cselect_b32 s34, s34, 0x%x', OOB)
    a('buffer_load_dword v9, v7, s[8:11], s34 offen sc1')
    if 'xw' in dev:
        a('s_lshl_b32 s34, s12, 2')
        a('s_add_u32 s34, s34, s3')
        a('s_mul_i32 s34, s34, 7168')
        a('s_add_u32 s34, s34, 0x%x', XF + 3 * XSEG)
        a('buffer_load_dword v9, v7, s[8:11], s34 offen sc1')
    a('s_mov_b32 s14, 0')
    lp = a.new('ex')
    a.label(lp)
    if 'noes' not in dev: a('s_sleep 6')
    a('buffer_load_dwordx4 v[20:23], v1, s[8:11], s32 offen sc1')
    a('buffer_load_dwordx4 v[24:27], v1, s[8:11], s33 offen sc1')
    a('s_add_u32 s14, s14, 1')
    a('s_cmp_lt_u32 s14, %d', SPIN)
    a('s_cbranch_scc0 tdie')
    a('s_waitcnt vmcnt(0)')
    a('v_max3_u32 v3, v20, v21, v22')
    a('v_max3_u32 v4, v23, v24, v25')
    a('v_max3_u32 v3, v26, v27, v3')
    a('v_max_u32 v3, v4, v3')
    a('v_cmp_eq_u32 vcc, -1, v3')
    a('s_cbranch_vccnz %s', lp)
    a('s_sub_u32 s32, s32, %d', MEMX - MEME)
    a('s_sub_u32 s33, s33, %d', MEMX - MEME)
    a('s_barrier')
    a('buffer_store_dwordx4 v[20:23], v1, s[8:11], s32 offen sc1')
    a('buffer_store_dwordx4 v[24:27], v1, s[8:11], s33 offen sc1')
    a('s_add_u32 s12, s12, 1')
    a('s_cmp_lt_u32 s12, 63')
    a('s_cbranch_scc1 exloop')
    a('s_endpgm')
    a.label('relay')
    a('s_cmp_eq_u32 s3, 0')
    a('s_cbranch_scc0 tdie')
    xcc_gather()
    a('v_readfirstlane_b32 s31, v3')
    a('s_mov_b32 s12, 0')
    a('s_mov_b32 s14, 0')
    a('s_mov_b32 s49, 0x%x', DPROG)
    a('v_cmp_ne_u32 s[62:63], s31, v3')
    a('v_and_b32 v3, 31, v0')
    a('v_cmp_gt_u32 s[60:61], 28, v3')
    a('v_lshlrev_b32 v4, 2, v0')
    a('v_lshrrev_b32 v5, 5, v0')
    a('s_mov_b32 s48, 0x%x', HZ)
    if 'slow' in dev: a('s_mov_b64 s[62:63], -1')
    a.label('reloop')
    a('s_sleep 2')
    a('buffer_load_dword v6, v4, s[8:11], s49 offen sc1')
    a('s_add_u32 s14, s14, 1')
    a('s_cmp_lt_u32 s14, %d', SPIN)
    a('s_cbranch_scc0 tdie')
    a('s_mov_b32 s13, s12')
    a('s_waitcnt vmcnt(0)')
    a('v_lshl_add_u32 v6, v6, 1, v5')
    a.label('reinc')
    a('v_cmp_ge_u32 vcc, s12, v6')
    a('s_nop 1')
    a('s_and_b64 vcc, vcc, s[60:61]')
    a('s_cbranch_scc1 repub')
    a('s_add_u32 s12, s12, 1')
    a('s_cmp_lt_u32 s12, 64')
    a('s_cbranch_scc1 reinc')
    a.label('repub')
    a('s_cmp_eq_u32 s12, s13')
    a('s_cbranch_scc1 reloop')
    a('v_mov_b32 v7, s12')
    a('s_cmp_eq_u64 s[62:63], 0')
    a('s_cbranch_scc0 reslow')
    a('buffer_store_dword v7, off, s[8:11], s48')
    a('s_branch renext')
    a.label('reslow')
    a('buffer_store_dword v7, off, s[8:11], s48 sc1')
    a.label('renext')
    a('s_cmp_lt_u32 s12, 63')
    a('s_cbranch_scc1 reloop')
    a('s_endpgm')

    def loop(role, mode):
        SC = ' sc1' if mode == 'S' else ''
        ORDER = ORD_S if role == 's' else ORD_C
        TACC = 20
        MF = 48 if role == 's' else 52
        SB, TA, SACC = 76, 100, 108
        VB, PF, CACC, DB, RT = 52, 60, 72, 80, 112
        TMP = TA if role == 's' else 19
        tails = []
        a.l.append('.p2align 6')
        a.label(role + 'loop' + mode)
        if dev:
            l = a.new('pp')
            a('s_cmp_eq_u32 s12, 8')
            a('s_cbranch_scc0 %s', l)
            a('s_memtime s[78:79]')
            a('s_memrealtime s[88:89]')
            a.label(l)
        if 'stall' in dev and role == 'c':
            a('s_waitcnt lgkmcnt(0)')
            a('s_mov_b32 s70, s76')
        def mpoll():
            a('buffer_load_dwordx4 %s, v1, s[8:11], s32 offen sc1', V(MF, 4))
            a('buffer_load_dwordx4 %s, v1, s[8:11], s33 offen sc1', V(MF + 4, 4))
        NE = 0
        if role == 'c':
            for x in dev:
                if x.startswith('ne'): NE = int(x[2:])
            dd = ddma('s38', 's6') if 'nod' not in dev else []
            a('s_xor_b32 s37, s37, 0x18000')
            a('s_cmp_lg_u32 s13, 0')
            lslow, lback = a.new('dq'), a.new('db')
            a('s_cbranch_scc1 %s', lslow)
            a.label(lback)
            tails.append(('dw', lslow, lback))
            a('s_mov_b32 m0, s37')
            a('s_nop 0')
            for grp in dd[:NE]:
                for ins in grp: a(ins)
                if len(grp) > 1: a('s_nop 0')
        CL = 'cearly' not in dev
        if role == 'c' and not CL: mpoll()
        ZA, ZN = (10, 21) if 'noz' not in dev else (0, 0)
        for x in dev:
            if x.startswith('za'): ZA = int(x[2:]); ZN = ZA + 11
        for r in range(ZN if role == 's' else 0, MF - TACC): a('v_mov_b32 v%d, 0', TACC + r)
        if role == 'c' and not CL: mpoll()
        sc = ['s_and_b32 s30, s12, 3', 's_mul_i32 s22, s30, %d' % PSLOT, 's_add_u32 s22, s22, 0x%x' % PR,
              's_add_u32 s32, s32, %d' % UNIT, 's_add_u32 s33, s33, %d' % UNIT]
        if role == 's':
            for r in range(12): a('v_mov_b32 v%d, 0', SACC + r)
            for i in range(5): a('v_add_u32 v%d, s%d, v1', TA + 2 + i, 17 + i)
            radr = [TA + 2 + i for i in range(5)]
            if 'xt' in dev:
                a('s_add_u32 s36, s36, s50')
                a('s_mov_b32 m0, s36')
            sc += ['s_add_u32 s31, s12, 3', 's_and_b32 s31, s31, 3', 's_mul_i32 s24, s31, %d' % PSLOT, 's_add_u32 s24, s24, s27',
                   's_min_u32 s24, s24, 0x%x' % OOB]
        else:
            radr = [4, 5, 7, 12, 13]
            sc += ['s_lshl_b32 s31, s3, 11', 's_add_u32 s43, s22, s31', 's_sub_u32 s42, s32, s15', 's_xor_b32 s30, s37, 0x18000']
        MD = 2
        if role == 's':
            MD = 3
            for x in dev:
                if x.startswith('md'): MD = int(x[2:])
            for r in range(8): a('v_mov_b32 v%d, -1', MF + r)
            if 'now' not in dev: a('s_waitcnt vmcnt(0)')
        elif CL:
            MD = 1
            for x in dev:
                if x.startswith('cd'): MD = int(x[2:])
            for r in range(8): a('v_mov_b32 v%d, -1', MF + r)
            if 'cnw' not in dev: a('s_waitcnt vmcnt(0)')
        a('s_mov_b32 s14, 0')
        def smf(i):
            t, lam = ORDER[i]
            if 'nomf' + role in dev: a('s_nop 3'); return
            if 'chalf' in dev and role == 'c' and i >= 42: return
            for x in dev:
                if x.startswith('cs') and role == 'c': a('s_nop %d', int(x[2:]))
            a('v_smfmac_f32_16x16x64_bf16 %s, %s, %s, v2', V(TACC + 4 * t, 4), V(MF + 4 * lam, 4), Wreg(i))
        lp, lf = a.new('mp'), a.new('mf')
        if role == 'c' and not CL: a('s_branch %s', lp)
        a.label(lf)
        for x in dev:
            if x.startswith('ms' + role): a('s_sleep %d', int(x[3:]))
        mpoll()
        a('s_add_u32 s14, s14, 1')
        a('s_cmp_lt_u32 s14, %d', SPIN)
        a('s_cbranch_scc0 tdie')
        for x in dev:
            if x.startswith('spec') and role == 's':
                a('s_nop 1')
                for r in range(4 * int(x[4:])): a('v_mov_b32 v%d, 0', TACC + r)
        a.label(lp)
        a('s_waitcnt vmcnt(%d)', 2 * MD - 2)
        if 'lite' in dev: a('v_max_u32 v3, v%d, v%d', MF + 3, MF + 7)
        else:
            a('v_max3_u32 v3, v%d, v%d, v%d', MF, MF + 1, MF + 2)
            a('v_max3_u32 v%d, v%d, v%d, v%d', TMP, MF + 3, MF + 4, MF + 5)
            a('v_max3_u32 v3, v%d, v%d, v3', MF + 6, MF + 7)
            a('v_max_u32 v3, v%d, v3', TMP)
        a('v_cmp_eq_u32 vcc, -1, v3')
        if 'm0' in dev:
            a('ds_write_b128 v16, %s', V(MF, 4))
            a('ds_write_b128 v17, %s', V(MF + 4, 4))
        NSP = 0
        for x in dev:
            if x.startswith('spec') and role == 's': NSP = int(x[4:])
        for k in range(NSP):
            smf(k)
            if k == 0: a('ds_write_b128 v16, %s', V(MF, 4))
        a('s_cbranch_vccnz %s', lf)
        stamp(0)
        N = len(ORDER)
        gm = [[] for _ in range(N + 12)]
        gv = [[] for _ in range(N + 12)]
        pre = [[] for _ in range(N + 12)]
        rd = ['ds_read_b128 %s, v%d' % (V(MF + 8 + 4 * i, 4), radr[i]) for i in range(5)]
        if 'm0' not in dev:
            gm[0].append('ds_write_b128 v16, %s' % V(MF, 4))
            gm[1].append('ds_write_b128 v17, %s' % V(MF + 4, 4))
        GB = 5
        for x in dev:
            if x.startswith('gb') and role == 's': GB = int(x[2:])
        gm[GB] += ['s_waitcnt lgkmcnt(0)', 's_barrier', rd[0]]
        for i in range(1, 5): gm[GB + i].append(rd[i])
        for k in range(0, len(sc), 2): gv[(8 if role == 'c' else 20) + k // 2] += sc[k:k + 2]
        def place(ins, lo):
            k = lo
            while gm[k]: k += 1
            gm[k] += ins if isinstance(ins, list) else [ins]
            return k
        if role == 's':
            B0 = 21
            def epi(t):
                c = TACC + 4 * t
                return (['v_add_f32 v%d, v%d, v%d' % (c, c, c + 2), 'v_add_f32 v%d, v%d, v%d' % (c + 1, c + 1, c + 3),
                         'v_cvt_pk_bf16_f32 v%d, v%d, v%d' % (c, c, c + 1)], ['ds_write_b32 v4, v%d offset:%d' % (c, 256 * t)])
            for t in range(6):
                v, m = epi(t)
                for i, ins in enumerate(v): gv[B0 + 4 * t + 7 + i].append(ins)
                gm[B0 + 4 * t + 10].append(m[0])
            place('ds_read_b64_tr_b16 %s, v5' % V(TA, 2), B0 + 23)
            place('ds_read_b64_tr_b16 %s, v5 offset:128' % V(TA + 2, 2), B0 + 24)
            def brd(step, xb0, xb1, mb):
                r = []
                for kt, b in ((0, xb0), (1, xb1)):
                    for hh in range(2):
                        r.append('ds_read_b128 %s, v6 offset:%d' % (V(b + 4 * hh, 4), kt * 14336 + (2 * step + hh) * 1024))
                ad = 'v8' if step == 0 else 'v9'
                for hh in range(2):
                    for qq in range(2):
                        r.append('ds_read2_b32 %s, %s offset0:%d offset1:%d' % (V(mb + 4 * hh + 2 * qq, 2), ad, 128 * hh + qq, 128 * hh + qq + 8))
                return r
            place('buffer_load_dword v18, off, s[8:11], s49 sc1', GB)
            place('buffer_load_dword v19, v7, s[8:11], s38 offen' if 'notouch' not in dev else 'buffer_load_dword v19, off, s[8:11], s49 sc1', GB)
            if 'xt' in dev:
                xl = [['buffer_load_dwordx4 v1, s[8:11], s34 offen offset:%d sc1 lds' % (1024 * i)] for i in range(4)]
                xl[3] += ['s_add_u32 m0, s36, 4096', 's_add_u32 s28, s34, 4096']
                xl += [['buffer_load_dwordx4 v1, s[8:11], s28 offen offset:%d sc1 lds' % (1024 * i)] for i in range(3)]
                k, xs = GB + 7, 4
                for x in dev:
                    if x.startswith('xs'): xs = int(x[2:])
                for grp in xl: k = place(grp, k) + xs
            BL = 12
            for x in dev:
                if x.startswith('bl'): BL = int(x[2:])
            for ins in brd(0, SB, SB + 8, SB + 16): place(ins, BL)
            b1 = brd(1, TACC, TACC + 8, MF)
            k = 20
            while gm[k]: k += 1
            yv = sum(1 for kk in range(k) for x in gm[kk] if x.startswith('buffer_'))
            k = place(['s_waitcnt vmcnt(%d)' % yv, b1[4]], 20)
            for ins in b1[5:]: place(ins, k)
            for ins in b1[0:2]: place(ins, B0 + 15)
            for ins in b1[2:4]: place(ins, B0 + 23)
            def younger_ds(k0, k1): return sum(1 for kk in range(k0, k1) for x in gm[kk] if x.startswith('ds_'))
            pre[14].append('s_waitcnt lgkmcnt(%d)' % younger_ds(GB + 1, 14))
            pre[B0].append('s_waitcnt lgkmcnt(%d)' % younger_ds(GB + 5, B0))
        else:
            pre[16].append('s_waitcnt lgkmcnt(4)')
            pre[24].append('s_waitcnt lgkmcnt(0)')
            sp = 4
            for x in dev:
                if x.startswith('sp') and x[2:].isdigit(): sp = int(x[2:])
            rest = dd[NE:]
            for i, grp in enumerate(rest): gm[12 + sp * i] += grp
            gm[10].append('buffer_load_dword v18, off, s[8:11], s49 sc1')
            def cepi(t):
                c = TACC + 4 * t
                return (['v_add_f32 v%d, v%d, v%d' % (c, c, c + 2), 'v_add_f32 v%d, v%d, v%d' % (c + 1, c + 1, c + 3),
                         'v_cvt_pk_bf16_f32 v%d, v%d, v%d' % (c, c, c + 1)], 'ds_write_b32 v19, v%d offset:%d' % (c, 256 * t))
            for t in range(8):
                v, m = cepi(t)
                for i_, ins in enumerate(v): gv[32 + 3 * t + 6 + i_].append(ins)
                gm[32 + 3 * t + 9].insert(0, m)
            wr = ['ds_read_b128 %s, v14 offset:%d' % (V(CSPILL[i >> 1] + 4 * (i & 1), 4), 1024 * i) for i in range(14)]
            for ins in wr[:10]: place(ins, 17)
            k = 30
            while gm[k]: k += 1
            younger = sum(1 for kk in range(k) for x in gm[kk] if x.startswith('buffer_'))
            k = place(['s_waitcnt vmcnt(%d)' % younger, wr[10]], 30)
            place(wr[11], k)
            for ins in wr[12:]: kl = place(ins, 33)
            def yds(k0, k1): return sum(1 for kk in range(k0, k1) for x in gm[kk] if x.startswith('ds_'))
            pre[24] = ['s_waitcnt lgkmcnt(%d)' % yds(GB + 5, 24)]
            pre[49].append('s_waitcnt lgkmcnt(%d)' % yds(kl + 1, 49))
            gv[20].append('v_add_u32 v15, s30, v1')
            gv[21].append('v_lshrrev_b32 v3, 4, v0')
            gv[22].append('v_lshl_add_u32 v3, v3, 2, s48')
            gv[23].append('v_and_b32 v19, 15, v0')
            gv[24].append('v_lshl_add_u32 v19, v19, 4, v3')
            gv[25].append('v_add_u32 v3, s48, v1')
        for k in range(N):
            for ins in pre[k]: a(ins)
            if k >= NSP: smf(k)
            if k == 0 and NSP: continue
            for ins in gm[k] + gv[k]: a(ins)
        stamp(1)
        if role == 's':
            for kk in range(N, N + 3):
                for ins in gm[kk] + gv[kk]: a(ins)
            assert not any(gm[N + 3:]) and not any(gv[N + 3:])
            a('s_cmp_lt_u32 s3, 2')
            a('s_nop 1')
            v, m = epi(6)
            a('v_pk_add_f32 %s, %s, %s', V(TACC + 24, 2), V(TACC + 24, 2), V(TACC + 26, 2))
            for ins in v[2:] + m: a(ins)
            a('ds_read_b64_tr_b16 %s, v5 offset:1024', V(TA + 4, 2))
            a('ds_read_b64_tr_b16 %s, v5 offset:1152', V(TA + 6, 2))
            a('s_waitcnt lgkmcnt(7)')
            for kt in range(3):
                a('v_smfmac_f32_16x16x64_bf16 %s, %s, %s, v2', V(SACC + 4 * kt, 4), V(TA, 4), V(SB + 8 * kt, 8))
            a('s_waitcnt lgkmcnt(0)')
            for kt, b in enumerate((TACC, TACC + 8, MF)):
                a('v_smfmac_f32_16x16x64_bf16 %s, %s, %s, v2', V(SACC + 4 * kt, 4), V(TA + 4, 4), V(b, 8))
            a('s_nop %d', 5 if 'tight' not in dev else 1)
            def sadd(kt):
                c = SACC + 4 * kt
                if 'nopk' not in dev: a('v_pk_add_f32 %s, %s, %s', V(c, 2), V(c, 2), V(c + 2, 2))
                else:
                    a('v_add_f32 v%d, v%d, v%d', c, c, c + 2)
                    a('v_add_f32 v%d, v%d, v%d', c + 1, c + 1, c + 3)
            def swr(kt):
                c = SACC + 4 * kt
                if kt < 2: a('ds_write2_b32 v10, v%d, v%d offset0:%d offset1:%d', c, c + 1, 32 * kt, 32 * kt + 64)
                else: a('ds_write2_b32 v15, v%d, v%d offset0:2 offset1:66', c, c + 1)
            if 'so0' not in dev: sadd(0); sadd(1); swr(0); sadd(2); swr(1); swr(2)
            else:
                for kt in range(3): sadd(kt); swr(kt)
            lns, ljn = a.new('ns'), a.new('jn')
            a('s_cbranch_scc0 %s', lns)
            tails.append(('nv', lns, ljn))
            for r in range(ZA): a('v_mov_b32 v%d, 0', TACC + r)
            a('s_waitcnt lgkmcnt(0)')
            if ZA: a('v_mov_b32 v%d, 0', TACC + ZA)
            a('s_barrier')
            stamp(2)
            for w in range(4): a('ds_read_b96 %s, v11 offset:%d', V(76 + 4 * w, 3), 2048 * w) if 'b96' in dev else a('ds_read_b128 %s, v11 offset:%d', V(76 + 4 * w, 4), 2048 * w)
            for r in range(ZA + 1, ZN): a('v_mov_b32 v%d, 0', TACC + r)
            a('s_waitcnt lgkmcnt(2)')
            a('v_pk_add_f32 v[76:77], v[76:77], v[80:81]')
            a('v_add_f32 v78, v78, v82')
            a('s_waitcnt lgkmcnt(0)')
            a('v_pk_add_f32 v[84:85], v[84:85], v[88:89]')
            a('v_add_f32 v86, v86, v90')
            a('v_pk_add_f32 v[76:77], v[76:77], v[84:85]')
            a('v_add_f32 v78, v78, v86')
            DP = ('quad_perm:[1,0,3,2]', 'quad_perm:[2,3,0,1]', 'row_half_mirror', 'row_mirror')
            def dpp(op, d, s_, ctl): a('%s_dpp v%d, v%d, v%d %s row_mask:0xf bank_mask:0xf', op, d, s_, s_, ctl)
            a('v_max3_f32 v84, v76, v77, v78')
            a('v_sub_f32 v76, v76, v84')
            a('v_sub_f32 v77, v77, v84')
            dpp('v_max_f32', 85, 84, DP[0])
            a('v_sub_f32 v78, v78, v84')
            a('v_exp_f32 v76, v76')
            dpp('v_max_f32', 85, 85, DP[1])
            a('v_exp_f32 v77, v77')
            a('s_nop 0')
            dpp('v_max_f32', 85, 85, DP[2])
            a('v_exp_f32 v78, v78')
            a('v_add_f32 v86, v76, v77')
            dpp('v_max_f32', 85, 85, DP[3])
            a('v_sub_f32 v84, v84, v85')
            a('v_exp_f32 v84, v84')
            a('v_fmac_f32 v86, v78, v14')
            a('v_mul_f32 v86, v86, v84')
            a('v_mul_f32 v76, v76, v84')
            a('v_mul_f32 v77, v77, v84')
            dpp('v_add_f32', 86, 86, DP[0])
            a('v_mul_f32 v78, v78, v84')
            a('s_nop 0')
            for ctl in DP[1:]:
                dpp('v_add_f32', 86, 86, ctl)
                if ctl != DP[3]: a('s_nop 1')
            a('v_rcp_f32 v86, v86')
            a('s_nop 0')
            a('v_mul_f32 v76, v76, v86')
            a('v_mul_f32 v77, v77, v86')
            a('v_cvt_pk_bf16_f32 v88, |v76|, |v77|')
            a('buffer_store_dword v88, v12, s[8:11], s22 offen' + SC)
            a('v_mul_f32_dpp v79, v78, v86 row_shl:4 row_mask:0xf bank_mask:0xf bound_ctrl:0')
            a('v_mul_f32 v78, v78, v86')
            a('v_cvt_pk_bf16_f32 v90, |v78|, |v79|')
            a('buffer_store_dword v90, v13, s[8:11], s22 offen' + SC)
            stamp(3)
            a('s_waitcnt vmcnt(%d)', 3 + (7 if 'xt' in dev else 0))
            a('s_barrier')
            if 'nox' not in dev: xdma()
            a.label(ljn)
            a('v_add_u32 v7, %d, v7', XSEG)
            a('s_mov_b64 exec, s[62:63]')
            a('v_add_u32 v7, %d, v7', DSEG - XSEG)
            a('s_mov_b64 exec, -1')
            a('s_add_u32 s31, s12, 3')
            fcheck(18, 3, 's31')
            a('s_cselect_b32 s38, 0x%x, 0', OOB)
            a('s_cmp_gt_u32 s31, 62')
            a('s_cselect_b32 s38, 0x%x, s38', OOB)
            for x in dev:
                if x.startswith('ds'): a('s_sleep %d', int(x[2:]))
        else:
            def pld1(k):
                a('buffer_load_dwordx4 %s, %s, s[8:11], s43 offen offset:%d sc1', V(PF + 4 * k, 4), 'v10' if k else 'v6', 1024 if k == 2 else 0)
            def pld():
                for k in range(3): pld1(k)
            for i in range(8): a('ds_read_b128 %s, v15 offset:%d', V(DB + 4 * i, 4), 1024 * (i & 3) + 16384 * (i >> 2))
            pld()
            for kk in range(N, N + 12):
                for ins in gm[kk] + gv[kk]: a(ins)
            a('ds_read_b128 %s, v3', V(VB, 4))
            a('ds_read_b128 %s, v3 offset:1024', V(VB + 4, 4))
            a('v_add_u32 v15, 2048, v8')
            a('s_waitcnt vmcnt(3)')
            a('s_add_u32 s35, s35, %d', DSEG)
            a('s_add_u32 s31, s12, 2')
            fcheck(18, 3, 's31')
            a('s_cselect_b32 s13, 1, 0')
            a('s_add_u32 s6, s35, 16384')
            a('s_cmp_gt_u32 s31, 62')
            a('s_cselect_b32 s38, 0x%x, s35', OOB)
            a('s_cselect_b32 s6, 0x%x, s6', OOB)
            a('s_cselect_b32 s13, 0, s13')
            a('s_mov_b32 s14, 0')
            stamp(4)
            a('s_waitcnt lgkmcnt(0)')
            lr, lq = a.new('pr'), a.new('pq')
            def pchk():
                a('v_or3_b32 v3, v%d, v%d, v%d', PF, PF + 1, PF + 2)
                a('v_or3_b32 v19, v%d, v%d, v%d', PF + 3, PF + 4, PF + 5)
                a('v_or3_b32 v3, v%d, v%d, v3', PF + 6, PF + 7)
                a('v_or3_b32 v19, v%d, v%d, v19', PF + 8, PF + 9)
                a('v_or3_b32 v3, v%d, v%d, v3', PF + 10, PF + 11)
                a('v_or_b32 v3, v19, v3')
                a('v_cmp_gt_i32 vcc, 0, v3')
            def dn(tl): a('v_mfma_f32_16x16x32_bf16 %s, %s, %s, 0', V(CACC + 4 * tl, 4), V(PF, 4), V(VB + 4 * tl, 4))
            def sp_(tl, k): a('v_smfmac_f32_16x16x64_bf16 %s, %s, %s, v2', V(CACC + 4 * tl, 4), V(PF + 4 + 4 * k, 4), V(DB + 16 * tl + 8 * k, 8))
            for x in dev:
                if x.startswith('pw'): a('s_sleep %d', int(x[2:]))
            a.label(lr)
            pld()
            a('s_add_u32 s14, s14, 1')
            a('s_cmp_lt_u32 s14, %d', SPIN)
            a('s_cbranch_scc0 tdie')
            a('s_cmp_lt_u32 s3, 2')
            a('s_waitcnt vmcnt(3)')
            if 'cold' in dev:
                pchk()
                dn(0)
                a('s_cbranch_vccnz %s', lr)
                sp_(0, 0); sp_(0, 1); dn(1); sp_(1, 0); sp_(1, 1)
                stamp(5)
                n0, n1 = None, 4
            else:
                a('v_or3_b32 v3, v%d, v%d, v%d', PF, PF + 1, PF + 2)
                a('v_or3_b32 v3, v%d, v%d, v3', PF + 3, PF + 4)
                dn(0)
                a('v_or3_b32 v3, v%d, v%d, v3', PF + 5, PF + 6)
                dn(1)
                a('v_or3_b32 v3, v%d, v%d, v3', PF + 7, PF + 8)
                sp_(0, 0)
                a('v_or3_b32 v3, v%d, v%d, v3', PF + 9, PF + 10)
                sp_(1, 0)
                a('v_or_b32 v3, v%d, v3', PF + 11)
                sp_(0, 1)
                a('v_cmp_gt_i32 vcc, 0, v3')
                sp_(1, 1)
                a('s_cbranch_vccnz %s', lr)
                stamp(5)
                n0, n1 = 4, None
            if n0: a('s_nop %d', n0)
            a('v_pk_add_f32 %s, %s, %s', V(CACC, 2), V(CACC, 2), V(CACC + 2, 2))
            if n1: a('s_nop %d', n1 + 2)
            else: a('s_nop 0')
            a('v_pk_add_f32 %s, %s, %s', V(CACC + 4, 2), V(CACC + 4, 2), V(CACC + 6, 2))
            a('ds_write2_b32 v8, v%d, v%d offset0:0 offset1:16', CACC, CACC + 1)
            a('ds_write2_b32 v15, v%d, v%d offset0:0 offset1:16', CACC + 4, CACC + 5)
            lnr, ljr = a.new('nr'), a.new('jr')
            a('s_cbranch_scc0 %s', lnr)
            tails.append(('ns', lnr, ljr))
            a('s_waitcnt lgkmcnt(0)')
            a('s_barrier')
            for w in range(4): a('ds_read_b64 %s, v9 offset:%d', V(RT + 2 * w, 2), 512 * w)
            a('s_waitcnt lgkmcnt(2)')
            a('v_pk_add_f32 %s, %s, %s', V(RT, 2), V(RT, 2), V(RT + 2, 2))
            a('s_waitcnt lgkmcnt(0)')
            a('v_pk_add_f32 %s, %s, %s', V(RT + 4, 2), V(RT + 4, 2), V(RT + 6, 2))
            a('v_pk_add_f32 %s, %s, %s', V(RT, 2), V(RT, 2), V(RT + 4, 2))
            a('v_cvt_pk_bf16_f32 v%d, v%d, v%d', RT, RT, RT + 1)
            a('v_min_u32 v%d, -2, v%d', RT, RT)
            a('buffer_store_dword v%d, v11, s[8:11], s42 offen%s', RT, SC)
            stamp(6)
            a('s_barrier')
            a('s_mov_b32 s40, 0x%x', MEME + 63 * UNIT)
            a.label(ljr)
            for x in dev:
                if x.startswith('dc'): a('s_sleep %d', int(x[2:]))
        if dev and role == 's':
            l = a.new('ts')
            a('s_lshl_b32 s30, s4, 2')
            a('s_add_u32 s30, s30, s3')
            a('s_cmp_eq_u32 s30, 63')
            a('s_cbranch_scc0 %s', l)
            a('s_memtime s[80:81]')
            a('s_memrealtime s[82:83]')
            a('s_lshl_b32 s30, s12, 2')
            a('s_add_u32 s30, s30, 0x3F30000')
            a('s_waitcnt lgkmcnt(0)')
            a('v_mov_b32 v99, s80')
            a('v_mov_b32 v98, s82')
            a('buffer_store_dword v99, off, s[8:11], s30')
            a('buffer_store_dword v98, off, s[8:11], s30 offset:256')
            a.label(l)
        if dev:
            ld = a.new('dv')
            a('s_cmp_eq_u32 s12, 40')
            a('s_cbranch_scc0 %s', ld)
            a('s_memtime s[80:81]')
            a('s_memrealtime s[82:83]')
            a('s_waitcnt lgkmcnt(0)')
            a('s_sub_u32 s78, s80, s78')
            a('s_sub_u32 s88, s82, s88')
            a('s_lshl_b32 s30, s5, 4')
            a('s_add_u32 s30, s30, s4')
            a('s_lshl_b32 s30, s30, 2')
            a('s_add_u32 s30, s30, s3')
            a('s_lshl_b32 s30, s30, 6')
            a('s_add_u32 s30, s30, 0x3F00000')
            for kk in range(13):
                a('v_mov_b32 v99, s%d', 64 + 2 * kk)
                a('buffer_store_dword v99, off, s[8:11], s30 offset:%d', 4 * kk)
                a('s_nop 1')
            a.label(ld)
        a('s_add_u32 s12, s12, 1')
        a('s_cmp_lt_u32 s12, 63')
        a('s_cbranch_scc1 %sloop%s', role, mode)
        if role == 'c':
            a('buffer_store_dword v%d, v11, s[8:11], s40 offen sc1', RT)
            if mode == 'F' and WB:
                l = a.new('wb')
                a('s_or_b32 s30, s3, s4')
                a('s_cbranch_scc1 %s', l)
                a('s_waitcnt vmcnt(0)')
                a('buffer_wbl2 sc1')
                a('s_waitcnt vmcnt(0)')
                a.label(l)
        if dev:
            a('s_memrealtime s[82:83]')
            a('s_waitcnt lgkmcnt(0)')
            a('s_lshl_b32 s30, s2, 4')
            a('s_add_u32 s30, s30, 0x3F10000')
            for kk, r in enumerate((90, 84, 82)):
                a('v_mov_b32 v99, s%d', r)
                a('buffer_store_dword v99, off, s[8:11], s30 offset:%d', 4 * kk)
                a('s_nop 1')
            amp = [x for x in dev if x.startswith('amp')]
            if amp and role == amp[0][3]:
                k = amp[0][4]
                if k == '1': a('s_sub_u32 s31, s84, s92'); a('s_mul_i32 s31, s31, 10')
                if k == '2': a('s_sub_u32 s31, s82, s84'); a('s_mul_i32 s31, s31, 2')
                if k == '3': a('s_sub_u32 s31, s90, s92'); a('s_mul_i32 s31, s31, 10')
                if k == '4': a('s_sub_u32 s31, s96, s92'); a('s_mul_i32 s31, s31, 10')
                if k == '0': a('s_mov_b32 s31, 2000')
                l = a.new('am')
                a.label(l)
                a('s_sleep 4')
                a('s_memrealtime s[80:81]')
                a('s_waitcnt lgkmcnt(0)')
                a('s_sub_u32 s30, s80, s82')
                a('s_cmp_lt_u32 s30, s31')
                a('s_cbranch_scc1 %s', l)
            if 'dbgt' in dev:
                l = a.new('dt')
                a('s_cmp_eq_u32 s4, 5')
                a('s_cbranch_scc0 %s', l)
                a('s_lshl_b32 s30, s5, 4')
                for kk, r in enumerate((90, 84, 82, 78)):
                    if r != 78: a('s_sub_u32 s31, s%d, s92', r)
                    else: a('s_mov_b32 s31, s78')
                    a('v_mov_b32 v99, s31')
                    a('buffer_store_dword v99, off, s[44:47], s30 offset:%d', 4 * kk)
                    a('s_nop 1')
                a.label(l)
        a('s_endpgm')
        for p in tails:
            a.label(p[1])
            if p[0] == 'dw':
                a('s_add_u32 s31, s12, 1')
                dwait('s31')
                a('s_branch %s', p[2])
            elif p[0] == 'nv':
                for r in range(4): a('v_mov_b32 v%d, -1', 92 + r)
                a('s_waitcnt lgkmcnt(0)')
                a('s_barrier')
                a('buffer_store_dwordx4 v[92:95], v1, s[8:11], s24 offen' + SC)
                if 'xe' in dev: xdma()
                a('s_waitcnt vmcnt(%d)', 2 + (7 if 'xe' in dev else 0))
                a('s_barrier')
                if 'xe' not in dev and 'nox' not in dev: xdma()
                for r in range(ZN): a('v_mov_b32 v%d, 0', TACC + r)
                a('s_branch %s', p[2])
            elif p[0] == 'ns':
                a('s_waitcnt lgkmcnt(0)')
                a('s_barrier')
                a('s_barrier')
                a('s_branch %s', p[2])
    for mode in 'FS':
        for role in 'sc': loop(role, mode)
```

```python
import sys
from common import *
import fold, team, workers

HEADER = open('cdna_kernels/%s.s.ref' % NAME).read().split('; Override launch geometry')[0]
MAIN_LDS = team.TEAM_LDS

def kd(name, vgpr, acc, sgpr):
    return '''.p2align 6
.amdhsa_kernel %s
  .amdhsa_next_free_vgpr %d
  .amdhsa_next_free_sgpr %d
  .amdhsa_accum_offset %d
  .amdhsa_group_segment_fixed_size 0
  .amdhsa_kernarg_size 120
  .amdhsa_user_sgpr_count 2
  .amdhsa_user_sgpr_kernarg_segment_ptr 1
  .amdhsa_system_sgpr_workgroup_id_x 1
.end_amdhsa_kernel
''' % (name, vgpr, sgpr, acc)

def build(mask, dev=False, aslist=False):
    a = Asm()
    workers.DEV = fold.DEV = bool(dev)
    fold.FINE = bool(dev) and 'fine' in dev
    fold.OVERLAP = bool(dev) and 'ov' in dev.split('+')
    for x in (dev or '').split('+'):
        if x.startswith('fd'): fold.DEPTH = int(x[2:])
        if x.startswith('bo'): workers.BACKOFF = int(x[2:])
        if x.startswith('msl'): workers.MSLEEP = int(x[3:])
        if x == 'norot': fold.ROT = False
        if x == 'x3': workers.NSET_X, workers.NSET_O = 3, 13
        if x == 'wst01': fold.WST = 'sc0 sc1'
        if x == 'wstnt': fold.WST = 'nt sc1'
        if x.startswith('af'): fold.AFIRST = int(x[2:]); fold.BYK = False
    workers.DBGT = fold.DBGT = bool(dev) and 'dbgt' in dev
    nm = NAME + '_kernel'
    a.l.append('.globl %s\n.p2align 8\n.type %s,@function' % (nm, nm))
    a.label(nm)
    a('s_cmp_ge_u32 s2, 256')
    a('s_cbranch_scc1 quit')
    if dev: a('s_memrealtime s[92:93]')
    a('s_load_dwordx8 s[64:71], s[0:1], 0')
    a('s_load_dwordx4 s[72:75], s[0:1], 32')
    a('s_load_dwordx2 s[76:77], s[0:1], %d', KA['gw'])
    a('s_load_dwordx4 s[52:55], s[0:1], %d', KA['dbg'])
    a('v_lshrrev_b32 v1, 6, v0')
    a('v_and_b32 v0, 63, v0')
    a('v_readfirstlane_b32 s3, v1')
    if not (dev and 'nocw' in dev):
        a('s_getpc_b64 s[32:33]')
        a.label('pcref')
        a('s_lshr_b32 s31, s2, 3')
        a('s_lshl_b32 s31, s31, 2')
        a('s_add_u32 s31, s31, s3')
        a('s_and_b32 s31, s31, 7')
        a('s_lshl_b32 s31, s31, 13')
        a('v_lshl_add_u32 v252, v0, 7, s31')
        a('v_min_u32 v252, codeend-pcref-4, v252')
        a('global_load_dword v253, v252, s[32:33]')
    a('s_waitcnt lgkmcnt(0)')
    a.srd(8, 54, team.OOB)
    a.srd(44, 52, 256)
    a.srd(60, 72, WBYTES)
    a.srd(16, 74, WBYTES)
    a.srd(36, 68, WBYTES)
    a.srd(56, 70, WBYTES)
    a.srd(20, 64, XBYTES)
    a.srd(24, 76, 896)
    a.srd(40, 66, 7168)
    fold.tl(a, 0)
    a('s_and_b32 s31, s2, 7')
    a('s_lshr_b32 s53, s2, 3')
    a('s_cmp_eq_u32 s31, 0')
    a('s_cbranch_scc1 die0')
    a('s_sub_u32 s31, s31, 1')
    a('s_lshl_b32 s31, s31, 5')
    a('s_add_u32 s53, s53, s31')
    fold.gen_fold(a)
    RS = 32
    for x in (dev or '').split('+'):
        if x.startswith('rs'): RS = int(x[2:])
    a('s_add_u32 s30, s53, %d', 224 - RS)
    a('s_cmp_ge_u32 s30, 224')
    a('s_cselect_b32 s31, 224, 0')
    a('s_sub_u32 s30, s30, s31')
    for bit, n, lab in ((2, 56, 'role_d'), (4, 16 * workers.NSET_X, 'role_xs'), (8, 28, 'role_f1'), (16, 7 * workers.NSET_O, 'role_fin')):
        a('s_cmp_lt_u32 s30, %d', n)
        a('s_cbranch_scc1 %s', lab if mask & bit else 'quit')
        a('s_sub_u32 s30, s30, %d', n)
        if lab == 'role_d':
            fold.wait_all(a, FLG_M, 256)
            if not (dev and ('nogate' in dev or 'xung' in dev)): fold.wait_started(a)
        if lab == 'role_xs' and dev and 'xung' in dev: fold.wait_started(a)
    a.label('quit')
    a('s_endpgm')
    a.label('die0')
    l = a.new('nj')
    a('s_cmp_eq_u32 s53, 31')
    a('s_cbranch_scc0 %s', l)
    fold.janitor(a)
    a.label(l)
    fold.misc_loads(a)
    fold.unit_fill(a)
    a('s_waitcnt vmcnt(0)')
    fold.misc_rest(a)
    fold.wait_janitor(a)
    a('s_add_u32 s34, s53, 224')
    fold.set_flag(a, FLG_M, 's34')
    a('s_mov_b32 s30, s53')
    team.gen_team(a, dev)
    workers.gen_d(a, vtail=bool(mask & 16))
    workers.gen_xs(a)
    workers.gen_f1(a)
    workers.gen_fin(a)
    a.label('codeend')
    s = HEADER
    if aslist: s += '; @launch kernel=%s grid=(256,1,1) block=(256,1,1) lds=%d\n' % (nm, MAIN_LDS)
    else: s += '; @launch grid=(256,1,1) block=(256,1,1) lds=%d\n' % MAIN_LDS
    s += '.amdgcn_target "amdgcn-amd-amdhsa--gfx950"\n.text\n' + a.text()
    s += '.section .rodata,"a"\n' + kd(nm, 512, 256, 100)
    return s

if __name__ == '__main__':
    out = sys.argv[1]
    dev = sys.argv[3] if len(sys.argv) > 3 else False
    open(out, 'w').write(build(int(sys.argv[2]), dev, aslist='/bench/' in out and 'dbgt' not in (dev or '') and 'amp' not in (dev or '')))
```

```python
from common import *
SPIN = 400000
DEV = False
ROT = True
DEPTH = 5
FINE = False
DBGT = False
OVERLAP = False
AFIRST = 16
BYK = True
WST = 'sc1'
LATEFLAG = False
LA, LB, LG = 0, 32768, 147456

def tl(a, k, base=0x3F20000):
    if DEV:
        a('s_memrealtime s[82:83]')
        a('s_waitcnt lgkmcnt(0)')
        a('s_lshl_b32 s84, s2, 4')
        a('s_add_u32 s84, s84, 0x%x', base)
        a('v_mov_b32 v250, s82')
        a('buffer_store_dword v250, off, s[8:11], s84 offset:%d', 4 * k)
        if DBGT and k:
            a('s_mov_b32 s%d, s82', 93 + k)

def rt(a, r):
    if FINE:
        a('s_memrealtime s[%d:%d]', r, r + 1)
        a('s_waitcnt lgkmcnt(0)')

def wait_words(a, voff, soff, width, wave0_only=True, R=244):
    lp, ok = a.new('ww'), a.new('wk')
    if wave0_only:
        a('s_cmp_eq_u32 s3, 0')
        a('s_cbranch_scc0 %s', ok)
    a('s_mov_b32 s14, 0')
    a.label(lp)
    srd = 's[44:47]' if soff is None else 's[8:11]'
    if width == 4:
        a('buffer_load_dwordx4 %s, %s, %s, %s offen sc1', V(R, 4), voff, srd, soff or '0')
        a('s_waitcnt vmcnt(0)')
        a('v_min3_u32 v%d, v%d, v%d, v%d', R, R, R + 1, R + 2)
        a('v_min_u32 v%d, v%d, v%d', R, R, R + 3)
    else:
        a('buffer_load_dword v%d, %s, %s, %s offen sc1', R, voff, srd, soff or '0')
        a('s_waitcnt vmcnt(0)')
    a('v_cmp_eq_u32 vcc, 0, v%d', R)
    a('s_cbranch_vccz %s', ok)
    a('s_sleep 3')
    a('s_add_u32 s14, s14, 1')
    a('s_cmp_lt_u32 s14, %d', SPIN)
    a('s_cbranch_scc1 %s', lp)
    a('s_endpgm')
    a.label(ok)
    if wave0_only: a('s_barrier')

def wait_all(a, base, n, R=244):
    a('v_min_u32 v%d, %d, v0', R - 1, n // 4 - 1)
    a('v_lshlrev_b32 v%d, 4, v%d', R - 1, R - 1)
    a('s_mov_b32 s31, 0x%x', base)
    wait_words(a, 'v%d' % (R - 1), 's31', 4, R=R)

def wait_head(a, base, hreg, n=14, R=244, w0=True):
    a('v_min_u32 v%d, %d, v0', R - 1, n - 1)
    a('v_lshlrev_b32 v%d, 2, v%d', R - 1, R - 1)
    a('s_mul_i32 s31, %s, 56', hreg)
    a('s_add_u32 s31, s31, 0x%x', base)
    wait_words(a, 'v%d' % (R - 1), 's31', 1, wave0_only=w0, R=R)

def set_flag(a, base, idx, younger=0, also=None):
    a('s_waitcnt vmcnt(%d)', younger)
    a('s_barrier')
    l = a.new('sf')
    a('s_cmp_eq_u32 s3, 0')
    a('s_cbranch_scc0 %s', l)
    a('s_lshl_b32 s31, %s, 2', idx)
    a('s_add_u32 s31, s31, 0x%x', base)
    a('v_mov_b32 v244, 1')
    a('buffer_store_dword v244, off, s[8:11], s31 sc1')
    if also:
        a('s_add_u32 s31, s31, %d', also - base)
        a('buffer_store_dword v244, off, s[8:11], s31 sc1')
    a.label(l)

def misc_loads(a):
    a('s_lshl_b32 s31, s3, 6')
    a('v_add_u32 v240, s31, v0')
    a('v_lshrrev_b32 v225, 3, v240')
    a('v_and_b32 v224, 7, v0')
    a('s_movk_i32 s31, 896')
    a('v_mul_u32_u24 v226, s31, v224')
    a('v_lshlrev_b32 v230, 4, v225')
    a('v_add_u32 v226, v226, v230')
    a('v_cmp_gt_u32 vcc, 192, v240')
    a('v_mov_b32 v227, 0x7000000')
    a('v_lshlrev_b32 v228, 4, v240')
    a('v_cndmask_b32 v227, v227, v226, vcc')
    a('s_mul_i32 s30, s2, 7168')
    a('buffer_load_dwordx4 v[208:211], v226, s[20:23], s30 offen')
    a('buffer_load_dwordx4 v[212:215], v227, s[20:23], s30 offen offset:512')
    a('buffer_load_dwordx4 v[216:219], v230, s[24:27], 0 offen')
    a('buffer_load_dwordx4 v[220:223], v230, s[24:27], 0 offen offset:512')
    return 4

def misc_rest(a):
    a('s_lshr_b32 s32, s2, 1')
    a('s_mul_i32 s32, s32, 14336')
    a('s_and_b32 s30, s2, 1')
    a('s_lshl_b32 s30, s30, 7')
    a('s_add_u32 s32, s32, s30')
    a('s_add_u32 s32, s32, 0x%x', XF)
    a('s_add_u32 s30, s32, 8192')
    a('v_cmp_gt_u32 vcc, 192, v240')
    a('v_lshlrev_b32 v233, 8, v225')
    a('v_lshl_add_u32 v233, v224, 4, v233')
    a('v_mov_b32 v232, 0x8000000')
    a('v_cndmask_b32 v232, v232, v233, vcc')
    a('buffer_store_dwordx4 v[208:211], v233, s[8:11], s32 offen sc1')
    a('buffer_store_dwordx4 v[212:215], v232, s[8:11], s30 offen sc1')
    a('v_mov_b32 v234, 0')
    for d in range(8): a('v_dot2_f32_bf16 v234, v%d, v%d, v234', 208 + d, 216 + d)
    a('v_lshlrev_b32 v232, 7, v224')
    a('v_lshl_add_u32 v232, v225, 2, v232')
    a('v_add_u32 v232, %d, v232', LG)
    a('s_nop 0')
    a('ds_write_b32 v232, v234')
    a('s_waitcnt lgkmcnt(0)')
    a('s_barrier')
    lg = a.new('ng')
    a('s_cmp_eq_u32 s3, 3')
    a('s_cbranch_scc0 %s', lg)
    a('v_lshlrev_b32 v232, 4, v0')
    a('v_add_u32 v232, %d, v232', LG)
    a('ds_read_b128 v[236:239], v232')
    a('s_waitcnt lgkmcnt(0)')
    a('v_add_f32 v233, v236, v237')
    a('v_add_f32 v238, v238, v239')
    a('v_add_f32 v233, v233, v238')
    for ctl in ('quad_perm:[1,0,3,2]', 'quad_perm:[2,3,0,1]', 'row_half_mirror'):
        a('s_nop 1')
        a('v_add_f32_dpp v233, v233, v233 %s row_mask:0xf bank_mask:0xf', ctl)
    a('v_mul_f32 v233, 0x%x, v233', fbits(-LOG2E))
    a('v_exp_f32 v233, v233')
    a('s_nop 0')
    a('v_add_f32 v233, 1.0, v233')
    a('v_rcp_f32 v233, v233')
    a('v_lshrrev_b32 v232, 3, v0')
    a('v_lshlrev_b32 v232, 2, v232')
    a('s_lshl_b32 s30, s2, 5')
    a('s_add_u32 s30, s30, 0x%x', GG)
    a('buffer_store_dword v233, v232, s[8:11], s30 offen sc1')
    a.label(lg)

def unit_fill(a):
    a('v_cmp_gt_u32 vcc, 192, v240')
    a('v_mov_b32 v229, 0x8000000')
    a('v_add_u32 v232, 4096, v228')
    a('v_cndmask_b32 v229, v229, v232, vcc')
    for r in range(8): a('v_mov_b32 v%d, -1', 200 + r)
    a('s_mul_i32 s30, s53, 7168')
    a('s_add_u32 s30, s30, 0x%x', U0)
    for k in (1, 3, 4):
        a('s_add_u32 s31, s30, %d', 32 * k * UNIT)
        if k == 4:
            a('s_cmp_lt_u32 s53, %d', NUNITS - 128)
            a('s_cselect_b32 s31, s31, 0x8000000')
        a('buffer_store_dwordx4 v[200:203], v228, s[8:11], s31 offen sc1')
        a('buffer_store_dwordx4 v[204:207], v229, s[8:11], s31 offen sc1')
    lm0, lst = a.new('m0'), a.new('fs')
    a('s_cmp_eq_u32 s53, 10')
    a('s_cbranch_scc0 %s', lst)
    a.label(lm0)
    a('v_bfe_u32 v232, v0, 2, 2')
    a('v_and_b32 v233, 1, v0')
    a('v_lshl_add_u32 v232, v232, 1, v233')
    a('s_movk_i32 s31, 896')
    a('v_mul_u32_u24 v232, s31, v232')
    a('v_lshrrev_b32 v233, 4, v240')
    a('v_lshl_add_u32 v232, v233, 5, v232')
    a('v_bfe_u32 v233, v0, 1, 1')
    a('v_lshl_add_u32 v232, v233, 2, v232')
    for r in range(2):
        for q in range(4): a('buffer_load_dword v%d, v232, s[40:43], 0 offen offset:%d', 200 + 4 * r + q, 8 * q + 512 * r)
    a('s_waitcnt vmcnt(0)')
    for r in range(8): a('v_min_u32 v%d, -2, v%d', 200 + r, 200 + r)
    a.label(lst)
    a('s_add_u32 s31, s30, %d', 64 * UNIT)
    for sr in (30, 31):
        a('buffer_store_dwordx4 v[200:203], v228, s[8:11], s%d offen sc1', sr)
        a('buffer_store_dwordx4 v[204:207], v229, s[8:11], s%d offen sc1', sr)

def wait_janitor(a):
    a('v_mov_b32 v243, 252')
    lp = a.new('wj')
    a('s_cmp_eq_u32 s3, 0')
    a('s_cbranch_scc0 %s', lp)
    wait_words(a, 'v243', None, 1, wave0_only=False)
    a.label(lp)

def janitor(a):
    for r in range(4): a('v_mov_b32 v%d, 0', 244 + r)
    a('v_lshlrev_b32 v243, 4, v0')
    a('s_mov_b32 s31, 0x%x', CNT)
    l = a.new('jn')
    a('s_cmp_eq_u32 s3, 0')
    a('s_cbranch_scc0 %s', l)
    for i in range(4): a('buffer_store_dwordx4 v[244:247], v243, s[8:11], s31 offen offset:%d sc1', 1024 * i)
    a('s_add_u32 s31, s31, 4096')
    a('buffer_store_dwordx4 v[244:247], v243, s[8:11], s31 offen sc1')
    a('s_waitcnt vmcnt(0)')
    a('s_getreg_b32 s31, hwreg(HW_REG_XCC_ID)')
    a('s_and_b32 s31, s31, 1')
    a('s_add_u32 s31, s31, 1')
    a('v_mov_b32 v244, s31')
    a('buffer_store_dword v244, off, s[44:47], 0 offset:252 sc1')
    a.label(l)

def gen_fold(a):
    a('s_mul_i32 s4, s53, 4682')
    a('s_lshr_b32 s4, s4, 16')
    a('s_mul_i32 s31, s4, 14')
    a('s_sub_u32 s31, s53, s31')
    a('s_and_b32 s6, s31, 1')
    a('s_lshr_b32 s7, s31, 1')
    a('v_and_b32 v2, 15, v0')
    a('v_lshrrev_b32 v3, 4, v0')
    a('v_lshlrev_b32 v1, 4, v0')
    a('v_lshrrev_b32 v4, 5, v0')
    a('v_and_b32 v5, 31, v0')
    a('v_xor_b32 v5, v5, v4')
    a('s_and_b32 s31, s3, 1')
    a('s_lshl_b32 s30, s31, 3')
    a('v_xor_b32 v5, s30, v5')
    a('v_lshlrev_b32 v5, 4, v5')
    a('v_lshl_add_u32 v4, v4, 13, v5')
    a('s_lshl_b32 s28, s7, 2')
    a('s_add_u32 s28, s28, s3')
    a('s_lshl_b32 s28, s28, 17')
    a('s_lshl_b32 s29, s4, 9')
    a('s_add_u32 s28, s28, s29')
    a('s_lshl_b32 s48, s3, 13')
    a('s_lshl_b32 s31, s6, %d', 12)
    a('s_xor_b32 s54, s48, s31')
    a('s_lshl_b32 s31, s6, 16')
    a('s_xor_b32 s55, s28, s31')
    a('s_lshl_b32 s31, s6, 6')
    a('v_xor_b32 v17, s31, v4')
    def aside(srd, rng=range(8)):
        for ii in rng:
            a('v_xor_b32 v5, %d, v17', ((2 * (ii & 1)) ^ (4 * (ii >> 2))) << 4)
            a('s_xor_b32 m0, s54, %d', 1024 * ii)
            a('s_xor_b32 s33, s55, %d', 2 * ii * 8192)
            a('buffer_load_dwordx4 v5, %s, s33 offen lds', srd)
    a('s_mul_i32 s35, s4, 229376')
    a('s_mul_i32 s31, s3, 64*896')
    a('s_add_u32 s35, s35, s31')
    a('s_mul_i32 s31, s6, 448')
    a('s_add_u32 s35, s35, s31')
    a('s_mul_i32 s49, s3, 28672')
    a('s_add_u32 s49, s49, %d', LB)
    a('s_mul_i32 s50, s6, 224')
    a('s_mul_i32 s31, s3, 56')
    a('s_add_u32 s50, s50, s31')
    a('s_lshl_b32 s50, s50, 13')
    a('s_add_u32 s50, s50, s29')
    def issue(mat, mid):
        if mat:
            aside('s[60:63]', range(4))
            a('s_movk_i32 s31, 2341')
            a('s_movk_i32 s32, 896')
            for z in range(7):
                a('v_add_u32 v5, %d, v0', 64 * z)
                a('v_mul_u32_u24 v6, s31, v5')
                a('v_lshrrev_b32 v6, 16, v6')
                a('v_mul_u32_u24 v13, 28, v6')
                a('v_sub_u32 v13, v5, v13')
                a('v_mul_u32_u24 v6, s32, v6')
                a('v_lshl_add_u32 v%d, v13, 4, v6', 20 + z)
            for grp in range(4):
                a('s_lshr_b32 s31, s7, %d', 1 if BYK and ROT else 0)
                a('s_add_u32 s31, s31, %d', grp)
                a('s_and_b32 s31, s31, 3')
                a('s_mul_i32 s32, s31, 14336')
                a('s_add_u32 s32, s32, s35')
                a('s_mul_i32 s31, s31, 7168')
                a('s_add_u32 s31, s31, s49')
                for z in range(7):
                    a('s_add_u32 m0, s31, %d', z * 1024)
                    a('s_nop 0')
                    a('buffer_load_dwordx4 v%d, s[16:19], s32 offen lds', 20 + z)
                if grp == 0 and mid: mid()
            aside('s[60:63]', range(4, 8))
            return 21
        aside('s[36:39]', range(4))
        for q in range(7):
            a('s_add_u32 s31, s7, %d', q)
            a('s_cmp_ge_u32 s31, 7')
            a('s_cselect_b32 s32, 7, 0')
            a('s_sub_u32 s31, s31, s32')
            a('s_lshl_b32 s32, s31, 16')
            a('s_add_u32 s32, s32, s50')
            a('s_and_b32 s30, s31, 1')
            a('s_lshl_b32 s30, s30, 7')
            a('v_xor_b32 v6, s30, v4')
            a('s_lshl_b32 s31, s31, 12')
            a('s_add_u32 s31, s31, s49')
            for i in range(4):
                a('v_xor_b32 v5, %d, v6', (2 * i) << 4)
                a('s_add_u32 m0, s31, %d', 1024 * i)
                a('s_nop 0')
                a('buffer_load_dwordx4 v5, s[56:59], s32 offen lds')
                if i < 3: a('s_add_u32 s32, s32, 16384')
            if q == 0 and mid: mid()
        aside('s[36:39]', range(4, 8))
        return 24
    def raddr():
        a('s_lshr_b32 s51, s3, 1')
        a('s_and_b32 s52, s3, 1')
        a('v_xor_b32 v6, v3, v2')
        a('v_lshlrev_b32 v6, 4, v6')
        a('v_lshrrev_b32 v7, 2, v2')
        a('v_lshlrev_b32 v7, 3, v7')
        a('v_and_b32 v8, 3, v0')
        a('v_add_u32 v7, v7, v8')
        a('v_lshl_add_u32 v7, v7, 9, v6')
        a('s_lshl_b32 s30, s51, 14')
        a('v_add_u32 v7, s30, v7')
        a('v_lshl_add_u32 v9, v2, 9, v6')
        a('s_mul_i32 s30, s52, 57344')
        a('s_add_u32 s30, s30, %d', LB)
        a('v_add_u32 v9, s30, v9')
        a('v_lshrrev_b32 v10, 2, v2')
        a('v_lshl_add_u32 v10, v3, 3, v10')
        a('s_movk_i32 s30, 448')
        a('v_mul_u32_u24 v10, s30, v10')
        a('v_lshl_add_u32 v10, v8, 3, v10')
        a('s_mul_i32 s30, s52, 224')
        a('s_add_u32 s30, s30, %d', LB)
        a('v_add_u32 v10, s30, v10')
    def warm(mat):
        a('v_bfe_u32 v5, v0, 2, 3')
        a('v_lshlrev_b32 v5, 13, v5')
        a('v_lshl_add_u32 v5, v8, 7, v5')
        a('s_lshl_b32 s30, s6, 16')
        a('s_add_u32 s30, s30, s28')
        a('buffer_load_dword v14, v5, %s, s30 offen', 's[60:63]' if mat else 's[36:39]')
        if BYK and ROT: return
        if mat:
            a('v_lshrrev_b32 v5, 2, v0')
            a('v_min_u32 v5, 9, v5')
            a('s_movk_i32 s31, 896')
            a('v_mul_u32_u24 v5, s31, v5')
            a('v_lshl_add_u32 v5, v8, 7, v5')
            a('s_mul_i32 s31, s7, 9*896')
            a('s_add_u32 s31, s31, s35')
            a('buffer_load_dword v15, v5, s[16:19], s31 offen')
        else:
            a('s_lshl_b32 s31, s7, 16')
            a('s_add_u32 s31, s31, s50')
            a('buffer_load_dword v15, v5, s[56:59], s31 offen')
    ACC, AF, BF = 48, 104, 168
    PFD = DEPTH
    def gemm(mat):
        seq = [(es, t) for es in range(8) for t in range(7)]
        def rdA(es):
            a('v_xor_b32 v11, %d, v7', es << 6)
            for u in range(2): a('ds_read_b128 %s, v11 offset:%d', V(AF + 8 * (es & 1) + 4 * u, 4), LA + 2048 * u)
        def rdB(i):
            es, t = seq[i]
            b = BF + 4 * (i % 8)
            if t == 0:
                if mat == 0: a('v_xor_b32 v12, %d, v9', es << 6)
                else: a('v_add_u32 v12, %d, v10', es * 14336)
            if mat == 0: a('ds_read_b128 %s, v12 offset:%d', V(b, 4), t * 8192)
            else:
                a('ds_read_b64_tr_b16 %s, v12 offset:%d', V(b, 2), t * 32)
                a('ds_read_b64_tr_b16 %s, v12 offset:%d', V(b + 2, 2), t * 32 + 1792)
        per = 2 if mat else 1
        rdA(0)
        issued = []
        for i in range(PFD): rdB(i); issued.append(per)
        for i, (es, t) in enumerate(seq):
            n = 0
            if t == 0 and es < 7: rdA(es + 1); n += 2
            if i + PFD < len(seq): rdB(i + PFD); n += per
            issued.append(n)
            a('s_waitcnt lgkmcnt(%d)', sum(issued[i + 1:]))
            for u in range(2):
                c = ACC + (t * 2 + u) * 4
                a('v_mfma_f32_16x16x32_bf16 %s, %s, %s, %s', V(c, 4), V(AF + 8 * (es & 1) + 4 * u, 4), V(BF + 4 * (i % 8), 4), V(c, 4) if es else '0')
    def store(mat):
        a('s_mul_i32 s30, s4, 28')
        a('s_mul_i32 s31, s6, 14')
        a('s_add_u32 s30, s30, s31')
        a('s_mul_i32 s31, s52, 7')
        a('s_add_u32 s30, s30, s31')
        a('s_mul_i32 s30, s30, 14')
        a('s_lshl_b32 s31, s7, 1')
        a('s_add_u32 s30, s30, s31')
        a('s_add_u32 s30, s30, s51')
        a('s_lshl_b32 s30, s30, 10')
        if mat: a('s_add_u32 s30, s30, 0x%x', WF_C)
        a('s_mov_b32 s31, 0x%x', fbits(LOG2E / 16.0))
        for t in range(7):
            c = ACC + t * 8
            if mat == 0:
                for r in range(8): a('v_mul_f32 v%d, s31, v%d', c + r, c + r)
            o = 136 + 4 * t
            for d in range(4): a('v_cvt_pk_bf16_f32 v%d, v%d, v%d', o + d, c + 2 * d, c + 2 * d + 1)
            a('buffer_store_dwordx4 %s, v1, s[8:11], s30 offen %s', V(o, 4), WST)
            if t < 6: a('s_add_u32 s30, s30, 14336')
    def flow(m1):
        m2 = 1 - m1
        n = issue(m1, lambda: misc_loads(a))
        a('buffer_load_dword v16, off, s[44:47], 0 offset:252 sc1')
        raddr()
        rt(a, 86)
        a('s_waitcnt vmcnt(0)')
        a('s_barrier')
        rt(a, 90)
        tl(a, 2)
        warm(m2)
        gemm(m1)
        rt(a, 80)
        store(m1)
        misc_rest(a)
        rt(a, 94)
        lj = a.new('js')
        a('v_cmp_eq_u32 vcc, 0, v16')
        a('s_cbranch_vccz %s', lj)
        a('v_mov_b32 v243, 252')
        wait_words(a, 'v243', None, 1, wave0_only=False, R=16)
        a.label(lj)
        a('v_readfirstlane_b32 s5, v16')
        if OVERLAP: issue(m2, None)
        set_flag(a, FLG_C if m1 else FLG_A, 's53', 36 if OVERLAP else 0, also=FLG_M)
        tl(a, 3)
        if not OVERLAP: issue(m2, None)
        a('s_waitcnt vmcnt(0)')
        a('s_barrier')
        gemm(m2)
        store(m2)
        set_flag(a, FLG_C if m2 else FLG_A, 's53')
        tl(a, 1)
        if FINE:
            a('s_lshl_b32 s84, s2, 5')
            a('s_add_u32 s84, s84, 0x3F40000')
            a('s_cmp_eq_u32 s3, 0')
            a('s_cselect_b32 s84, s84, 0x8000000')
            for k, r in enumerate((92, 86, 88, 90, 78, 80, 94)):
                a('v_mov_b32 v250, s%d', r)
                a('buffer_store_dword v250, off, s[8:11], s84 offset:%d', 4 * k)
                a('s_nop 1')
    l1, l2 = a.new('fa'), a.new('fe')
    if BYK: a('s_bitcmp1_b32 s7, 0')
    else: a('s_cmp_ge_u32 s4, %d', AFIRST)
    a('s_cbranch_scc1 %s', l1)
    flow(1)
    a('s_branch %s', l2)
    a.label(l1)
    flow(0)
    a.label(l2)

def wait_started(a):
    lp, ok = a.new('ws'), a.new('wo')
    a('s_cmp_eq_u32 s3, 0')
    a('s_cbranch_scc0 %s', ok)
    a('s_mov_b32 s14, 0')
    a('s_mov_b32 s31, 0x%x', MEME + UNIT)
    a.label(lp)
    a('buffer_load_dword v244, off, s[8:11], s31 sc1')
    a('s_waitcnt vmcnt(0)')
    a('v_cmp_eq_u32 vcc, -1, v244')
    a('s_cbranch_vccz %s', ok)
    a('s_sleep 8')
    a('s_add_u32 s14, s14, 1')
    a('s_cmp_lt_u32 s14, %d', SPIN)
    a('s_cbranch_scc1 %s', lp)
    a('s_endpgm')
    a.label(ok)
    a('s_barrier')

def wait_wave_heads(a):
    a('v_min_u32 v243, 55, v0')
    a('v_lshlrev_b32 v243, 2, v243')
    a('s_mul_i32 s31, s3, 224')
    a('s_add_u32 s31, s31, 0x%x', FLG_C)
    wait_words(a, 'v243', 's31', 1, wave0_only=False)

def wait_part(a, base, hreg, nheads, odd):
    a('v_min_u32 v243, %d, v0', 14 * nheads - 1)
    a('s_movk_i32 s31, 4682')
    a('v_mul_u32_u24 v242, s31, v243')
    a('v_lshrrev_b32 v242, 16, v242')
    a('v_mul_u32_u24 v242, 14, v242')
    a('v_sub_u32 v241, v243, v242')
    a('v_and_b32 v241, 2, v241')
    a('v_cmp_eq_u32 vcc, %d, v241', 2 if odd else 0)
    a('v_add_u32 v242, %d, v242', 2 if odd else 0)
    a('s_nop 0')
    a('v_cndmask_b32 v243, v242, v243, vcc')
    a('v_lshlrev_b32 v243, 2, v243')
    a('s_mul_i32 s31, %s, 56', hreg)
    a('s_add_u32 s31, s31, 0x%x', base)
    wait_words(a, 'v243', 's31', 1, wave0_only=False)

def wait_head_and_misc(a, base, hreg, n, R):
    lp, ok = a.new('wh'), a.new('wi')
    a('v_min_u32 v%d, %d, v0', R - 1, n - 1)
    a('v_lshlrev_b32 v%d, 2, v%d', R - 1, R - 1)
    a('s_mul_i32 s31, %s, 56', hreg)
    a('s_add_u32 s31, s31, 0x%x', base)
    a('s_mov_b32 s32, 0x%x', FLG_M)
    a('s_mov_b32 s14, 0')
    a.label(lp)
    a('buffer_load_dwordx4 %s, v1, s[8:11], s32 offen sc1', V(R, 4))
    a('buffer_load_dword v%d, v%d, s[8:11], s31 offen sc1', R + 4, R - 1)
    a('s_waitcnt vmcnt(0)')
    a('v_min3_u32 v%d, v%d, v%d, v%d', R, R, R + 1, R + 2)
    a('v_min3_u32 v%d, v%d, v%d, v%d', R, R, R + 3, R + 4)
    a('v_cmp_eq_u32 vcc, 0, v%d', R)
    a('s_cbranch_vccz %s', ok)
    a('s_sleep 3')
    a('s_add_u32 s14, s14, 1')
    a('s_cmp_lt_u32 s14, %d', SPIN)
    a('s_cbranch_scc1 %s', lp)
    a('s_endpgm')
    a.label(ok)
```

```python
from common import *
import fold
SPIN = 400000
XB = 28672 + 128
KT1 = 14336 + 64
DST = 'sc1'
DEV = False
LEAD = 6
BACKOFF = 24
MSLEEP = 2
DBGT = False
def tl(a, k):
    if DEV:
        a('s_memrealtime s[82:83]')
        a('s_waitcnt lgkmcnt(0)')
        a('s_lshl_b32 s84, s2, 4')
        a('s_add_u32 s84, s84, 0x3F10000')
        a('v_mov_b32 v4, s82')
        a('buffer_store_dword v4, off, s[8:11], s84 offset:%d', 4 * k)
        a('s_nop 1')

NSET_D, NSET_F, NSET_X, NSET_O = 2, 2, 4, 6

def lane_consts(a):
    a('v_lshlrev_b32 v1, 4, v0')
    a('v_and_b32 v2, 15, v0')
    a('v_lshrrev_b32 v3, 4, v0')

def x_setup(a, lx):
    a('s_mul_i32 s30, s3, 7168')
    a('s_mul_i32 s34, s12, %d', XSEG)
    a('s_add_u32 s34, s34, s30')
    a('s_add_u32 s34, s34, 0x%x', XF)
    a('s_lshr_b32 s31, s3, 1')
    a('s_lshl_b32 s31, s31, 6')
    a('s_add_u32 s36, s30, s31')
    a('s_add_u32 s36, s36, %d', lx)
    a('s_mov_b32 s50, %d', XB)

def x_dma(a):
    a('s_mov_b32 m0, s36')
    a('s_add_u32 s30, s34, 4096')
    for i in range(4): a('buffer_load_dwordx4 v1, s[8:11], s34 offen offset:%d sc1 lds', 1024 * i)
    a('s_add_u32 m0, s36, 4096')
    a('s_nop 0')
    for i in range(3): a('buffer_load_dwordx4 v1, s[8:11], s30 offen offset:%d sc1 lds', 1024 * i)

def x_next(a, nset):
    a('s_add_u32 s34, s34, %d', XSEG * nset)
    a('s_add_u32 s36, s36, s50')

def perm_rows_addr(a, dst, lx, gmul_shift, tmp):
    a('v_lshrrev_b32 v%d, 3, v2', tmp)
    a('s_movk_i32 s30, %d', KT1)
    a('v_mul_u32_u24 v%d, s30, v%d', dst, tmp)
    a('v_bfe_u32 v%d, v0, 2, 1', tmp)
    a('v_lshl_add_u32 v%d, v%d, 7, v%d', dst, tmp, dst)
    a('v_and_b32 v%d, 3, v0', tmp)
    a('v_lshl_add_u32 v%d, v%d, 4, v%d', dst, tmp, dst)
    a('v_add_u32 v%d, %d, v%d', dst, lx, dst)

def publish(a, word_sgpr_off, val):
    l = a.new('pb')
    a('s_cmp_eq_u32 s3, 0')
    a('s_cbranch_scc0 %s', l)
    a('v_mov_b32 v4, %s', val)
    a('v_mov_b32 v5, 0')
    a('buffer_store_dword v4, v5, s[8:11], %s offen sc1', word_sgpr_off)
    a.label(l)

def sg_loop(a, name, nset, nst, mfma_fn, epi_fn, rd_fn, tail_fn=None):
    XR = 64
    x_dma(a)
    a('s_mov_b32 s13, 0')
    a('s_waitcnt vmcnt(0)')
    tl(a, 1)
    a('s_branch %s_in', name)
    a.label(name + '_loop')
    a('s_waitcnt vmcnt(%d)', nst)
    a.label(name + '_in')
    a('s_barrier')
    x_next(a, nset)
    x_dma(a)
    def rd(j):
        for mt in range(2): rd_fn(XR + 8 * (j % 4) + 4 * mt, j, mt)
    for j in range(3): rd(j)
    for j in range(14):
        if j + 3 < 14: rd(j + 3)
        a('s_waitcnt lgkmcnt(%d)', 2 * min(3, 13 - j))
        mfma_fn(j, XR + 8 * (j % 4))
        if j == 8:
            a('s_waitcnt vmcnt(7)')
            a('s_barrier')
            publish(a, 's35', 's13')
    a('v_add_u32 v6, s50, v6')
    a('s_sub_u32 s50, 0, s50')
    a('s_nop 6')
    epi_fn()
    a('s_add_u32 s13, s13, 1')
    a('s_add_u32 s12, s12, %d', nset)
    if tail_fn is not None:
        tail_fn()
        return
    a('s_cmp_lt_u32 s12, 64')
    a('s_cbranch_scc1 %s_loop', name)
    a('s_waitcnt vmcnt(0)')
    a('s_barrier')
    publish(a, 's35', 's13')
    tl(a, 2)
    a('s_endpgm')

def mem_fetch(a, KO, va0, va1):
    lp, ok = a.new('xm'), a.new('xk')
    a('s_mov_b32 s14, 0')
    a.label(lp)
    a('buffer_load_dwordx4 %s, v1, s[8:11], s32 offen sc1', V(KO, 4))
    a('buffer_load_dwordx4 %s, v1, s[8:11], s33 offen sc1', V(KO + 4, 4))
    a('s_waitcnt vmcnt(0)')
    a('v_max3_u32 v4, v%d, v%d, v%d', KO, KO + 1, KO + 2)
    a('v_max3_u32 v5, v%d, v%d, v%d', KO + 3, KO + 4, KO + 5)
    a('v_max3_u32 v4, v%d, v%d, v4', KO + 6, KO + 7)
    a('v_max_u32 v4, v4, v5')
    a('v_cmp_eq_u32 vcc, -1, v4')
    a('s_cbranch_vccz %s', ok)
    if MSLEEP: a('s_sleep %d', MSLEEP)
    a('s_add_u32 s14, s14, 1')
    a('s_cmp_lt_u32 s14, %d', SPIN)
    a('s_cbranch_scc1 %s', lp)
    a('s_endpgm')
    a.label(ok)
    a('ds_write_b128 v%d, %s', va0, V(KO, 4))
    a('ds_write_b128 v%d, %s', va1, V(KO + 4, 4))

def own_frags(a, lm, va0, va1):
    a('s_lshl_b32 s15, s3, 11')
    a('s_add_u32 s16, s15, 1024')
    a('s_cmp_eq_u32 s3, 3')
    a('s_cselect_b32 s16, 0, s16')
    a('s_add_u32 s31, s15, %d', lm)
    a('v_add_u32 v%d, s31, v1', va0)
    a('s_add_u32 s31, s16, %d', lm)
    a('v_add_u32 v%d, s31, v1', va1)

def gen_d(a, vtail=True):
    a.label('role_d')
    tl(a, 0)
    a('s_lshr_b32 s6, s30, 1')
    a('s_and_b32 s12, s30, 1')
    lane_consts(a)
    a('s_lshl_b32 s34, s3, 2')
    fold.wait_part(a, FLG_C, 's34', 4, False)
    a('s_mul_i32 s33, s34, 28')
    a('s_add_u32 s33, s33, s6')
    a('s_mul_i32 s33, s33, 14336')
    a('s_add_u32 s33, s33, 0x%x', WF_C)
    for ps in range(2):
        for hh in range(4):
            for j in range(14):
                if (j >> 1) & 1 != ps: continue
                if j % 2 == 0: a('s_add_u32 s32, s33, %d', hh * 28 * 14336 + j * 1024)
                a('buffer_load_dwordx4 %s, v1, s[8:11], s32 offen offset:%d sc1', A((hh * 14 + j) * 4, 4), (j % 2) * 1024)
        if ps == 0: fold.wait_head_and_misc(a, FLG_C, 's34', 56, 24)
    x_setup(a, 0)
    perm_rows_addr(a, 6, 0, 0, 7)
    a('v_lshl_add_u32 v6, v3, 8, v6')
    a('s_lshl_b32 s35, s12, 7')
    a('s_lshl_b32 s31, s6, 2')
    a('s_add_u32 s35, s35, s31')
    a('s_add_u32 s35, s35, 0x%x', DPROG)
    ACC = 32
    def rd(b, j, mt): a('ds_read_b128 %s, v6 offset:%d', V(b, 4), j * 1024 + mt * 64)
    def mf(j, xb):
        for hh in range(4):
            for mt in range(2):
                c = ACC + (hh * 2 + mt) * 4
                a('v_mfma_f32_16x16x32_bf16 %s, %s, %s, %s', V(c, 4), V(xb + 4 * mt, 4), A((hh * 14 + j) * 4, 4), V(c, 4) if j else '0')
    def epi():
        a('s_mul_i32 s30, s12, %d', DSEG)
        a('s_lshl_b32 s31, s6, 14')
        a('s_add_u32 s30, s30, s31')
        a('s_lshl_b32 s31, s3, 12')
        a('s_add_u32 s30, s30, s31')
        a('s_add_u32 s30, s30, 0x%x', DD)
        for hh in range(4):
            c = ACC + hh * 8
            o = 96 + 4 * hh
            for d in range(4): a('v_cvt_pk_bf16_f32 v%d, v%d, v%d', o + d, c + 2 * d, c + 2 * d + 1)
            a('buffer_store_dwordx4 %s, v1, s[8:11], s30 offen offset:%d %s', V(o, 4), 1024 * hh, DST)
    def vsetup():
        LM = 65536
        own_frags(a, LM, 9, 10)
        a('v_lshrrev_b32 v4, 1, v3')
        a('v_lshlrev_b32 v8, 8, v4')
        a('v_bfe_u32 v4, v0, 1, 2')
        a('v_lshl_add_u32 v8, v4, 6, v8')
        a('v_and_b32 v4, 1, v0')
        a('v_lshl_add_u32 v8, v4, 4, v8')
        a('v_and_b32 v4, 1, v3')
        a('v_lshl_add_u32 v8, v4, 3, v8')
        a('v_add_u32 v8, %d, v8', LM)
        a('v_lshlrev_b32 v11, 4, v2')
        a('v_lshl_add_u32 v11, v4, 3, v11')
        a('v_lshrrev_b32 v4, 1, v3')
        a('v_lshl_add_u32 v11, v4, 8, v11')
        a('v_cmp_gt_u32 s[60:61], 32, v0')
        a('s_mov_b32 s17, s12')
        a('s_lshl_b32 s19, s12, 9')
        a('s_lshl_b32 s31, s6, 4')
        a('s_add_u32 s19, s19, s31')
        a('s_lshl_b32 s31, s3, 2')
        a('s_add_u32 s19, s19, s31')
        a('s_add_u32 s19, s19, 0x%x', VPROG)
        a('s_mov_b32 s18, 0')
    def tail():
        a('s_cmp_le_u32 s13, %d', LEAD)
        a('s_cbranch_scc1 rd_loop')
        a.label('rv_loop')
        a('s_mul_i32 s39, s17, %d', UNIT)
        a('s_add_u32 s39, s39, 0x%x', MEME)
        a('s_add_u32 s32, s39, s15')
        a('s_add_u32 s33, s39, s16')
        mem_fetch(a, 64, 9, 10)
        a('s_waitcnt lgkmcnt(0)')
        a('s_barrier')
        publish(a, 's35', 's13')
        AF = 120
        def ard(j):
            if j % 2 == 0 and j: a('v_add_u32 v8, 1024, v8')
            for qq in range(2):
                o = 128 * (j & 1) + qq
                a('ds_read2_b32 %s, v8 offset0:%d offset1:%d', V(AF + 4 * j + 2 * qq, 2), o, o + 8)
        for j in range(3): ard(j)
        for j in range(14):
            if j + 3 < 14: ard(j + 3)
            a('s_waitcnt lgkmcnt(%d)', 2 * min(3, 13 - j))
            for hh in range(4):
                c = ACC + hh * 4
                a('v_mfma_f32_16x16x32_bf16 %s, %s, %s, %s', V(c, 4), V(AF + 4 * j, 4), A((hh * 14 + j) * 4, 4), V(c, 4) if j else '0')
        a('v_subrev_u32 v8, 6144, v8')
        for r in (8, 9, 10): a('v_xor_b32 v%d, 0x2000, v%d', r, r)
        a('s_mul_i32 s30, s17, %d', VSLOT)
        a('s_lshl_b32 s31, s6, 12')
        a('s_add_u32 s30, s30, s31')
        a('s_lshl_b32 s31, s3, 10')
        a('s_add_u32 s30, s30, s31')
        a('s_add_u32 s30, s30, 0x%x', VE)
        a('s_add_u32 s18, s18, 1')
        a('s_nop 1')
        for hp in range(2):
            c = ACC + hp * 8
            for r in range(4): a('v_cndmask_b32 v%d, v%d, v%d, s[60:61]', c + r, c + 4 + r, c + r)
            a('v_cvt_pk_bf16_f32 v%d, v%d, v%d', 96 + 2 * hp, c, c + 1)
            a('v_cvt_pk_bf16_f32 v%d, v%d, v%d', 97 + 2 * hp, c + 2, c + 3)
            a('buffer_store_dwordx2 %s, v11, s[8:11], s30 offen offset:%d sc1', V(96 + 2 * hp, 2), 512 * hp)
        a('v_mov_b32 v4, s18')
        a('s_waitcnt vmcnt(0)')
        a('buffer_store_dword v4, off, s[8:11], s19 sc1')
        a('s_add_u32 s17, s17, %d', NSET_D)
        a('s_cmp_lt_u32 s12, 64')
        a('s_cbranch_scc1 rd_loop')
        a('s_cmp_lt_u32 s17, 64')
        a('s_cbranch_scc1 rv_loop')
        tl(a, 3)
        a('s_endpgm')
    vsetup()
    sg_loop(a, 'rd', NSET_D, 4, mf, epi, rd, tail if vtail else None)

def gen_f1(a):
    a.label('role_f1')
    tl(a, 0)
    a('s_lshr_b32 s6, s30, 1')
    a('s_and_b32 s12, s30, 1')
    a('s_load_dwordx4 s[56:59], s[0:1], %d', KA['wg'])
    lane_consts(a)
    RS = 272
    a('s_lshl_b32 s31, s3, 2')
    a('v_add_u32 v4, s31, v3')
    a('s_movk_i32 s30, 3584')
    a('v_mul_u32_u24 v5, s30, v4')
    a('v_lshl_add_u32 v5, v2, 4, v5')
    a('s_movk_i32 s30, %d', RS)
    a('v_mul_u32_u24 v7, s30, v4')
    a('v_lshl_add_u32 v7, v2, 4, v7')
    a('v_add_u32 v8, %d, v7', 14 * 16 * RS)
    a('v_lshrrev_b32 v9, 2, v2')
    a('v_lshl_add_u32 v9, v3, 3, v9')
    a('v_mul_u32_u24 v9, s30, v9')
    a('v_and_b32 v4, 3, v0')
    a('v_lshl_add_u32 v9, v4, 4, v9')
    a('s_lshl_b32 s31, s3, 6')
    a('v_add_u32 v9, s31, v9')
    a('v_add_u32 v10, %d, v9', 7 * 32 * RS)
    a('s_waitcnt lgkmcnt(0)')
    a.srd(16, 56, FBYTES)
    a.srd(20, 58, FBYTES)
    ST = 16
    for mat in range(2):
        a('s_lshl_b32 s31, s6, 8')
        for p in range(28):
            a('buffer_load_dwordx4 %s, v5, s[%d:%d], s31 offen', V(ST + (mat * 28 + p) * 4, 4), 16 + 4 * mat, 19 + 4 * mat)
            if p < 27: a('s_add_u32 s31, s31, %d', 16 * 3584)
    for mat in range(2):
        a('s_waitcnt vmcnt(%d)', 28 if mat == 0 else 0)
        for p in range(28):
            a('ds_write_b128 v%d, %s offset:%d', 7 if p < 14 else 8, V(ST + (mat * 28 + p) * 4, 4), (p % 14) * 16 * RS)
        a('s_waitcnt lgkmcnt(0)')
        a('s_barrier')
        for u in range(2):
            for j in range(14):
                b = ((mat * 2 + u) * 14 + j) * 4
                o = (j % 7) * 32 * RS + u * 8
                a('ds_read_b64_tr_b16 %s, v%d offset:%d', A(b, 2), 9 if j < 7 else 10, o)
                a('ds_read_b64_tr_b16 %s, v%d offset:%d', A(b + 2, 2), 9 if j < 7 else 10, o + 4 * RS)
        a('s_waitcnt lgkmcnt(0)')
        a('s_barrier')
    x_setup(a, 0)
    a('v_mov_b32 v6, v1')
    a('s_lshl_b32 s35, s12, 7')
    a('s_lshl_b32 s31, s6, 2')
    a('s_add_u32 s35, s35, s31')
    a('s_add_u32 s35, s35, 0x%x', HPROG)
    ACC = 32
    def rd(b, j, tt): a('ds_read_b128 %s, v6 offset:%d', V(b, 4), j * 1024 + tt * KT1)
    def mf(j, xb):
        for q in range(4):
            for tt in range(2):
                c = ACC + (tt * 4 + q) * 4
                a('v_mfma_f32_16x16x32_bf16 %s, %s, %s, %s', V(c, 4), A((q * 14 + j) * 4, 4), V(xb + 4 * tt, 4), V(c, 4) if j else '0')
    def epi():
        a('s_mul_i32 s30, s12, %d', VSLOT)
        a('s_lshl_b32 s31, s6, 12')
        a('s_add_u32 s30, s30, s31')
        a('s_lshl_b32 s31, s3, 10')
        a('s_add_u32 s30, s30, s31')
        a('s_add_u32 s30, s30, 0x%x', H1)
        a('s_add_u32 s31, s30, 57344')
        for tt in range(2):
            g = ACC + tt * 16
            u = g + 8
            t = 104
            for i in range(8): a('v_mul_f32 v%d, 0x%x, v%d', t + i, fbits(-LOG2E), g + i)
            for i in range(8): a('v_exp_f32 v%d, v%d', t + i, t + i)
            for i in range(8): a('v_mul_f32 v%d, v%d, v%d', u + i, u + i, g + i)
            for i in range(8): a('v_add_f32 v%d, 1.0, v%d', t + i, t + i)
            for i in range(8): a('v_rcp_f32 v%d, v%d', t + i, t + i)
            a('s_nop 0')
            for i in range(8): a('v_mul_f32 v%d, v%d, v%d', u + i, u + i, t + i)
            o = 96 + 4 * tt
            for d in range(4): a('v_cvt_pk_bf16_f32 v%d, v%d, v%d', o + d, u + 2 * d, u + 2 * d + 1)
            a('buffer_store_dwordx4 %s, v1, s[8:11], s%d offen sc1', V(o, 4), 30 + tt)
    sg_loop(a, 'rf', NSET_F, 2, mf, epi, rd)

def poll_ge(a, voff, soff, vthr, tmp):
    lp, ok, near = a.new('pl'), a.new('pk'), a.new('pn')
    a('s_mov_b32 s14, 0')
    a.label(lp)
    a('buffer_load_dword v%d, v%d, s[8:11], %s offen sc1', tmp, voff, soff)
    a('s_waitcnt vmcnt(0)')
    a('v_cmp_lt_u32 vcc, v%d, v%d', tmp, vthr)
    a('s_cbranch_vccz %s', ok)
    if BACKOFF:
        a('v_add_u32 v%d, 1, v%d', tmp, tmp)
        a('v_cmp_lt_u32 vcc, v%d, v%d', tmp, vthr)
        a('s_cbranch_vccz %s', near)
        a('s_sleep %d', BACKOFF)
        a.label(near)
        a('s_sleep 1')
    else: a('s_sleep 4')
    a('s_add_u32 s14, s14, 1')
    a('s_cmp_lt_u32 s14, %d', SPIN)
    a('s_cbranch_scc1 %s', lp)
    a('s_endpgm')
    a.label(ok)

def gen_xs(a):
    LX, LM, LP = 0, 2 * XB, 2 * XB + 7168
    a.label('role_xs')
    tl(a, 0)
    a('s_mul_i32 s4, s30, %d', 65536 // NSET_X + 1)
    a('s_lshr_b32 s4, s4, 16')
    a('s_mul_i32 s31, s4, %d', NSET_X)
    a('s_sub_u32 s12, s30, s31')
    lane_consts(a)
    fold.wait_head(a, FLG_A, 's4')
    def W(t, j):
        i = t * 14 + j
        return A(4 * i, 4) if i < 64 else V(120 + 4 * (i - 64), 4)
    a('s_mul_i32 s31, s4, 28')
    a('s_mul_i32 s32, s3, 7')
    a('s_add_u32 s31, s31, s32')
    a('s_mul_i32 s31, s31, 14336')
    if WF_A: a('s_add_u32 s31, s31, 0x%x', WF_A)
    for i in range(98):
        if i % 4 == 0 and i: a('s_add_u32 s31, s31, 4096')
        a('buffer_load_dwordx4 %s, v1, s[8:11], s31 offen offset:%d sc1', W(i // 14, i % 14), (i % 4) * 1024)
        if i >= 48 and i % 8 == 0: a('s_waitcnt vmcnt(40)')
    x_setup(a, LX)
    a('v_add_u32 v6, %d, v1', LX) if LX else a('v_mov_b32 v6, v1')
    perm_rows_addr(a, 7, LX, 0, 4)
    a('v_lshrrev_b32 v4, 1, v3')
    a('s_mul_i32 s31, s3, 14')
    a('v_add_u32 v4, s31, v4')
    a('v_lshl_add_u32 v7, v4, 8, v7')
    a('v_and_b32 v4, 1, v3')
    a('v_lshl_add_u32 v7, v4, 3, v7')
    a('v_bfe_u32 v4, v0, 1, 2')
    a('v_lshlrev_b32 v8, 6, v4')
    a('v_and_b32 v4, 1, v0')
    a('v_lshl_add_u32 v8, v4, 4, v8')
    a('v_lshl_add_u32 v8, v3, 2, v8')
    a('s_mul_i32 s31, s3, 1792')
    a('s_add_u32 s31, s31, %d', LM)
    a('v_add_u32 v8, s31, v8')
    own_frags(a, LM, 9, 10)
    a('s_mul_i32 s31, s3, 6144')
    a('s_add_u32 s31, s31, %d', LP)
    a('v_add_u32 v11, s31, v1')
    a('s_lshl_b32 s31, s3, 10')
    a('s_add_u32 s31, s31, %d', LP)
    a('v_add_u32 v12, s31, v1')
    a('s_lshl_b32 s31, s3, 4')
    a('v_add_u32 v4, s31, v2')
    a('v_lshlrev_b32 v5, 3, v3')
    a('v_sub_u32 v4, v4, v5')
    for i in range(8): a('v_cmp_gt_i32 s[%d:%d], %d, v4', 64 + 2 * i, 65 + 2 * i, i)
    a('v_cmp_gt_u32 vcc, 2, v3')
    a('v_mov_b32 v13, 0xff800000')
    a('s_nop 0')
    a('v_cndmask_b32 v14, 0, 1.0, vcc')
    a('s_lshl_b32 s31, s4, 11')
    a('s_lshl_b32 s32, s3, 10')
    a('s_add_u32 s31, s31, s32')
    a('v_add_u32 v15, s31, v1')
    a('s_lshr_b32 s31, s4, 2')
    a('s_lshl_b32 s31, s31, 11')
    a('s_add_u32 s31, s31, s32')
    a('s_and_b32 s32, s4, 3')
    a('s_lshl_b32 s32, s32, 8')
    a('s_add_u32 s31, s31, s32')
    a('s_add_u32 s31, s31, 32768')
    a('v_and_b32 v4, 1, v3')
    a('v_lshlrev_b32 v16, 4, v2')
    a('v_lshl_add_u32 v16, v4, 3, v16')
    a('v_add_u32 v16, s31, v16')
    a('s_lshl_b32 s35, s12, 7')
    a('s_lshl_b32 s31, s4, 3')
    a('s_add_u32 s35, s35, s31')
    a('s_lshl_b32 s31, s3, 2')
    a('s_add_u32 s35, s35, s31')
    a('s_add_u32 s35, s35, 0x%x', XPROG)
    a('v_mov_b32 v17, 0')
    a('s_mov_b32 s13, 0')
    x_dma(a)
    ACC, XR, SA, KO = 20, 76, 92, 76
    if DEV: a('s_waitcnt vmcnt(0)')
    tl(a, 1)
    a.label('rx_loop')
    a('s_waitcnt vmcnt(0)')
    a('s_barrier')
    x_next(a, NSET_X)
    x_dma(a)
    def rd(j):
        for tt in range(2): a('ds_read_b128 %s, v6 offset:%d', V(XR + 8 * (j & 1) + 4 * tt, 4), j * 1024 + tt * KT1)
    rd(0)
    for j in range(14):
        if j + 1 < 14: rd(j + 1)
        a('s_waitcnt lgkmcnt(%d)', 2 if j < 13 else 0)
        for t in range(7):
            for tt in range(2):
                c = ACC + (t * 2 + tt) * 4
                a('v_mfma_f32_16x16x32_bf16 %s, %s, %s, %s', V(c, 4), W(t, j), V(XR + 8 * (j & 1) + 4 * tt, 4), V(c, 4) if j else '0')
    a('s_mul_i32 s39, s12, %d', UNIT)
    a('s_add_u32 s39, s39, 0x%x', MEME)
    a('s_add_u32 s32, s39, s15')
    a('s_add_u32 s33, s39, s16')
    def krd(t):
        for ku in range(2): a('ds_read_b64 %s, v7 offset:%d', V(KO + 4 * (t % 4) + 2 * ku, 2), t * 512 + ku * 64)
    for t in range(3): krd(t)
    a('s_nop 2')
    for i in range(14):
        c = ACC + 4 * i
        a('v_cvt_pk_bf16_f32 v%d, v%d, v%d', c, c, c + 1)
        a('v_cvt_pk_bf16_f32 v%d, v%d, v%d', c + 1, c + 2, c + 3)
    a('s_nop 1')
    for t in range(7):
        if t + 3 < 7: krd(t + 3)
        a('s_waitcnt lgkmcnt(%d)', 2 * min(3, 6 - t))
        for ku in range(2):
            for tt in range(2):
                c = SA + (ku * 2 + tt) * 4
                a('v_mfma_f32_16x16x16_bf16 %s, %s, %s, %s', V(c, 4), V(KO + 4 * (t % 4) + 2 * ku, 2), V(ACC + (t * 2 + tt) * 4, 2), V(c, 4) if t else '0')
    a('v_add_u32 v6, s50, v6')
    a('v_add_u32 v7, s50, v7')
    a('s_sub_u32 s50, 0, s50')
    mem_fetch(a, KO, 9, 10)
    for b in range(4): a('ds_write_b128 v11, %s offset:%d', V(SA + 4 * b, 4), 1024 * b)
    a('s_waitcnt lgkmcnt(0)')
    a('s_barrier')
    for t in range(7):
        a('ds_read_b32 v%d, v8 offset:%d', KO + 2 * t, 256 * t)
        a('ds_read_b32 v%d, v8 offset:%d', KO + 2 * t + 1, 256 * t + 32)
    for t in range(7):
        a('s_waitcnt lgkmcnt(%d)', 2 * (6 - t))
        for tt in range(2):
            c = SA + 16 + tt * 4
            a('v_mfma_f32_16x16x16_bf16 %s, %s, %s, %s', V(c, 4), V(KO + 2 * t, 2), V(ACC + (t * 2 + tt) * 4, 2), V(c, 4) if t else '0')
    a('s_nop 7')
    for b in (4, 5): a('ds_write_b128 v11, %s offset:%d', V(SA + 4 * b, 4), 1024 * b)
    a('s_waitcnt lgkmcnt(0)')
    a('s_barrier')
    lsk = a.new('xs')
    a('s_add_u32 s13, s13, 1')
    a('s_cmp_lt_u32 s3, 2')
    a('s_cbranch_scc0 %s', lsk)
    R = 20
    for w in range(4):
        for b in range(3): a('ds_read_b128 %s, v12 offset:%d', V(R + 12 * w + 4 * b, 4), 6144 * w + 2048 * b)
    a('s_mul_i32 s30, s12, %d', PXSEG)
    a('s_add_u32 s30, s30, 0x%x', PX)
    for w in range(1, 4):
        a('s_waitcnt lgkmcnt(%d)', 3 * (3 - w))
        for i in range(6): a('v_pk_add_f32 %s, %s, %s', V(R + 2 * i, 2), V(R + 2 * i, 2), V(R + 12 * w + 2 * i, 2))
    for i in range(8): a('v_cndmask_b32 v%d, v%d, v13, s[%d:%d]', R + i, R + i, 64 + 2 * i, 65 + 2 * i)
    a('v_max3_f32 v4, v%d, v%d, v%d', R, R + 1, R + 2)
    for i in range(3, 11, 2): a('v_max3_f32 v4, v%d, v%d, v4', R + i, R + i + 1)
    a('v_max_f32 v4, v%d, v4', R + 11)
    def xred(op):
        for sw in ('v_permlane32_swap_b32', 'v_permlane16_swap_b32'):
            a('v_mov_b32 v5, v4')
            a('s_nop 1')
            a('%s v4, v5', sw)
            a('%s v4, v4, v5', op)
    xred('v_max_f32')
    for i in range(12): a('v_sub_f32 v%d, v%d, v4', R + i, R + i)
    for i in range(12): a('v_exp_f32 v%d, v%d', R + i, R + i)
    a('v_add_f32 v4, v%d, v%d', R, R + 1)
    for i in range(2, 8): a('v_add_f32 v4, v%d, v4', R + i)
    for i in range(8, 12): a('v_fmac_f32 v4, v%d, v14', R + i)
    xred('v_add_f32')
    a('v_rcp_f32 v4, v4')
    a('s_nop 0')
    for i in range(12): a('v_mul_f32 v%d, v%d, v4', R + i, R + i)
    for d in range(6): a('v_cvt_pk_bf16_f32 v%d, v%d, v%d', 40 + d, R + 2 * d, R + 2 * d + 1)
    a('buffer_store_dwordx4 v[40:43], v15, s[8:11], s30 offen sc1')
    a('buffer_store_dwordx2 v[44:45], v16, s[8:11], s30 offen sc1')
    a('v_mov_b32 v4, s13')
    a('s_waitcnt vmcnt(0)')
    a('buffer_store_dword v4, v17, s[8:11], s35 offen sc1')
    a.label(lsk)
    a('s_add_u32 s12, s12, %d', NSET_X)
    a('s_cmp_lt_u32 s12, 64')
    a('s_cbranch_scc1 rx_loop')
    tl(a, 2)
    a('s_endpgm')

def gen_fin(a):
    a.label('role_fin')
    tl(a, 0)
    a('s_mul_i32 s12, s30, 9363')
    a('s_lshr_b32 s12, s12, 16')
    a('s_mul_i32 s31, s12, 7')
    a('s_sub_u32 s6, s30, s31')
    a('s_load_dwordx2 s[56:57], s[0:1], %d', KA['wd'])
    a('s_load_dwordx2 s[58:59], s[0:1], %d', KA['out'])
    lane_consts(a)
    RS = 144
    a('v_lshrrev_b32 v4, 3, v0')
    a('v_and_b32 v5, 7, v0')
    a('s_movk_i32 s30, 896')
    a('v_mul_u32_u24 v6, s30, v4')
    a('v_lshl_add_u32 v6, v5, 4, v6')
    a('s_movk_i32 s30, %d', RS)
    a('v_mul_u32_u24 v7, s30, v4')
    a('v_lshl_add_u32 v7, v5, 4, v7')
    a('s_mul_i32 s31, s3, %d', 224 * RS)
    a('v_add_u32 v7, s31, v7')
    a('v_lshrrev_b32 v8, 2, v2')
    a('v_lshl_add_u32 v8, v3, 3, v8')
    a('v_mul_u32_u24 v8, s30, v8')
    a('v_and_b32 v4, 3, v0')
    a('v_lshl_add_u32 v8, v4, 3, v8')
    a('v_add_u32 v8, s31, v8')
    a('s_waitcnt lgkmcnt(0)')
    a.srd(16, 56, FBYTES)
    a.srd(20, 58, XBYTES)
    ST = 16
    a('s_mul_i32 s31, s3, %d', 448 * 896)
    a('s_lshl_b32 s32, s6, 7')
    a('s_add_u32 s31, s31, s32')
    for p in range(56):
        a('buffer_load_dwordx4 %s, v6, s[16:19], s31 offen', V(ST + 4 * p, 4))
        if p < 55: a('s_add_u32 s31, s31, %d', 8 * 896)
    for rnd in range(2):
        a('s_waitcnt vmcnt(%d)', 28 if rnd == 0 else 0)
        for p in range(28): a('ds_write_b128 v7, %s offset:%d', V(ST + 4 * (rnd * 28 + p), 4), p * 8 * RS)
        for jj in range(7):
            for t in range(4):
                b = ((rnd * 7 + jj) * 4 + t) * 4
                a('ds_read_b64_tr_b16 %s, v8 offset:%d', A(b, 2), jj * 32 * RS + t * 32)
                a('ds_read_b64_tr_b16 %s, v8 offset:%d', A(b + 2, 2), jj * 32 * RS + t * 32 + 4 * RS)
            a('s_waitcnt lgkmcnt(0)')
    a('s_barrier')
    tl(a, 1)
    a('v_lshlrev_b32 v4, 2, v0')
    a('s_lshl_b32 s31, s6, 4')
    a('s_sub_u32 s31, s31, 56')
    a('v_add_u32 v5, s31, v4')
    a('v_add_u32 v4, %d, v4', HPROG - CNT)
    a('v_cmp_gt_u32 vcc, 14, v0')
    a('s_nop 1')
    a('v_cndmask_b32 v4, v5, v4, vcc')
    a('v_cmp_gt_u32 vcc, 18, v0')
    a('v_mov_b32 v5, %d', HPROG - CNT)
    a('s_nop 0')
    a('v_cndmask_b32 v4, v5, v4, vcc')
    a('v_and_b32 v5, 7, v0')
    a('v_lshlrev_b32 v5, 2, v5')
    a('s_lshl_b32 s31, s3, 5')
    a('s_add_u32 s31, s31, %d', XPROG - CNT)
    a('v_add_u32 v5, s31, v5')
    a('v_and_b32 v6, 3, v0')
    a('v_lshlrev_b32 v6, 4, v6')
    a('s_lshl_b32 s31, s3, 2')
    a('s_lshl_b32 s32, s6, 6')
    a('s_add_u32 s31, s31, s32')
    a('s_add_u32 s31, s31, %d', VPROG - CNT)
    a('v_add_u32 v6, s31, v6')
    a('v_cmp_gt_u32 s[60:61], 8, v2')
    a('v_lshlrev_b32 v8, 2, v2')
    RO = 272
    a('s_lshl_b32 s31, s3, 5')
    a('v_add_u32 v9, s31, v2')
    a('s_movk_i32 s30, %d', RO)
    a('v_mul_u32_u24 v9, s30, v9')
    a('v_lshl_add_u32 v9, v3, 4, v9')
    a('v_lshrrev_b32 v12, 3, v0')
    a('s_lshl_b32 s31, s3, 3')
    a('v_add_u32 v12, s31, v12')
    a('v_mul_u32_u24 v10, s30, v12')
    a('v_and_b32 v13, 7, v0')
    a('v_lshl_add_u32 v10, v13, 5, v10')
    a('s_movk_i32 s30, 896')
    a('v_mul_u32_u24 v11, s30, v12')
    a('v_lshl_add_u32 v11, v13, 4, v11')
    a('s_mov_b32 s50, %d', 128 * RO)
    HF, DF, AB, AA, GR = 16, 128, 192, 224, 14
    a.label('ro_loop')
    a('s_and_b32 s30, s12, 1')
    a('s_lshl_b32 s30, s30, 7')
    a('s_add_u32 s30, s30, 0x%x', CNT)
    a('s_lshr_b32 s31, s12, 1')
    a('s_add_u32 s31, s31, 1')
    a('v_mov_b32 v12, s31')
    poll_ge(a, 4, 's30', 12, 13)
    a('s_mul_i32 s30, s12, %d', VSLOT)
    a('s_mul_i32 s31, s3, 14336')
    a('s_add_u32 s30, s30, s31')
    a('s_add_u32 s30, s30, 0x%x', H1)
    for jj in range(14):
        if jj % 4 == 0:
            a('s_add_u32 s32, s30, %d', jj * 1024)
            a('s_add_u32 s33, s30, %d', jj * 1024 + 57344)
        for tt in range(2):
            a('buffer_load_dwordx4 %s, v1, s[8:11], s%d offen offset:%d sc1', V(HF + (jj * 2 + tt) * 4, 4), 32 + tt, (jj % 4) * 1024)
    a('s_mul_i32 s30, s12, %d', DSEG)
    a('s_lshl_b32 s31, s6, 16')
    a('s_add_u32 s30, s30, s31')
    a('s_lshl_b32 s31, s3, 12')
    a('s_add_u32 s30, s30, s31')
    a('s_add_u32 s30, s30, 0x%x', DD)
    for t in range(4):
        for hh in range(4):
            a('buffer_load_dwordx4 %s, v1, s[8:11], s30 offen offset:%d sc1', V(DF + (t * 4 + hh) * 4, 4), hh * 1024)
        if t < 3: a('s_add_u32 s30, s30, 16384')
    a('s_lshl_b32 s30, s12, 7')
    a('s_add_u32 s30, s30, 0x%x', GG)
    for tt in range(2): a('buffer_load_dword v%d, v8, s[8:11], s30 offen offset:%d sc1', GR + tt, 64 * tt)
    for jj in range(14):
        a('s_waitcnt vmcnt(%d)', 18 + 2 * (13 - jj))
        for tt in range(2):
            for t in range(4):
                c = AB + (t * 2 + tt) * 4
                a('v_mfma_f32_16x16x32_bf16 %s, %s, %s, %s', V(c, 4), A((jj * 4 + t) * 4, 4), V(HF + (jj * 2 + tt) * 4, 4), V(c, 4) if jj else '0')
    a('s_mul_i32 s31, s12, %d', 65536 // NSET_X + 1)
    a('s_lshr_b32 s31, s31, 16')
    a('s_mul_i32 s32, s31, %d', NSET_X)
    a('s_sub_u32 s32, s12, s32')
    a('s_lshl_b32 s32, s32, 7')
    a('v_add_u32 v12, s32, v5')
    a('s_and_b32 s32, s12, 1')
    a('s_lshl_b32 s32, s32, 9')
    a('v_add_u32 v13, s32, v6')
    a('v_cndmask_b32 v%d, v13, v12, s[60:61]', HF)
    a('s_add_u32 s31, s31, 1')
    a('s_lshr_b32 s32, s12, 1')
    a('s_add_u32 s32, s32, 1')
    a('v_mov_b32 v12, s31')
    a('v_mov_b32 v13, s32')
    a('v_cndmask_b32 v12, v13, v12, s[60:61]')
    a('s_mov_b32 s30, 0x%x', CNT)
    poll_ge(a, HF, 's30', 12, 13)
    PF, PM, VF = 20, 52, 60
    a('s_mul_i32 s30, s12, %d', PXSEG)
    a('s_add_u32 s30, s30, 0x%x', PX)
    a('s_lshl_b32 s31, s3, 13')
    a('s_add_u32 s31, s31, s30')
    a('s_add_u32 s32, s31, 4096')
    for i in range(8):
        a('buffer_load_dwordx4 %s, v1, s[8:11], s%d offen offset:%d sc1', V(PF + 4 * i, 4), 31 + (i >> 2), (i & 3) * 1024)
    a('s_lshl_b32 s31, s3, 11')
    a('s_add_u32 s31, s31, s30')
    a('s_add_u32 s31, s31, 32768')
    for tt in range(2): a('buffer_load_dwordx4 %s, v1, s[8:11], s31 offen offset:%d sc1', V(PM + 4 * tt, 4), 1024 * tt)
    a('s_mul_i32 s30, s12, %d', VSLOT)
    a('s_lshl_b32 s31, s3, 10')
    a('s_add_u32 s30, s30, s31')
    a('s_lshl_b32 s31, s6, 14')
    a('s_add_u32 s30, s30, s31')
    a('s_add_u32 s30, s30, 0x%x', VE)
    for t in range(4):
        a('buffer_load_dwordx4 %s, v1, s[8:11], s30 offen sc1', V(VF + 4 * t, 4))
        if t < 3: a('s_add_u32 s30, s30, 4096')
    for hh in range(4):
        a('s_waitcnt vmcnt(%d)', 6 + 2 * (3 - hh))
        for tt in range(2):
            for t in range(4):
                c = AA + (t * 2 + tt) * 4
                a('v_mfma_f32_16x16x32_bf16 %s, %s, %s, %s', V(c, 4), V(DF + (t * 4 + hh) * 4, 4), V(PF + (hh * 2 + tt) * 4, 4), V(c, 4) if hh else '0')
    a('s_waitcnt vmcnt(0)')
    for t in range(4):
        for tt in range(2):
            c = AA + (t * 2 + tt) * 4
            a('v_mfma_f32_16x16x32_bf16 %s, %s, %s, %s', V(c, 4), V(VF + 4 * t, 4), V(PM + 4 * tt, 4), V(c, 4))
    a('s_mul_i32 s30, s12, %d', 32 * 896)
    a('s_lshl_b32 s31, s6, 7')
    a('s_add_u32 s30, s30, s31')
    for t in range(4):
        for tt in range(2):
            i = (t * 2 + tt) * 4
            for r in range(4): a('v_sub_f32 v%d, v%d, v%d', AA + i + r, AA + i + r, AB + i + r)
            for r in range(4): a('v_fmac_f32 v%d, v%d, v%d', AB + i + r, GR + tt, AA + i + r)
            a('ds_write_b128 v9, %s offset:%d', V(AB + i, 4), tt * 16 * RO + t * 64)
    a('s_waitcnt lgkmcnt(0)')
    a('s_barrier')
    for w in range(4):
        for hf in range(2): a('ds_read_b128 %s, v10 offset:%d', V(20 + 8 * w + 4 * hf, 4), w * 32 * RO + 16 * hf)
    a('v_add_u32 v9, s50, v9')
    a('v_add_u32 v10, s50, v10')
    a('s_sub_u32 s50, 0, s50')
    for w in range(1, 4):
        a('s_waitcnt lgkmcnt(%d)', 2 * (3 - w))
        for i in range(4): a('v_pk_add_f32 %s, %s, %s', V(20 + 2 * i, 2), V(20 + 2 * i, 2), V(20 + 8 * w + 2 * i, 2))
    for d in range(4): a('v_cvt_pk_bf16_f32 v%d, v%d, v%d', 56 + d, 20 + 2 * d, 21 + 2 * d)
    a('buffer_store_dwordx4 v[56:59], v11, s[20:23], s30 offen sc1')
    a('s_add_u32 s12, s12, %d', NSET_O)
    a('s_cmp_lt_u32 s12, 64')
    a('s_cbranch_scc1 ro_loop')
    if DEV: a('s_waitcnt vmcnt(0)')
    tl(a, 2)
    if DBGT:
        a('s_sub_u32 s82, s82, s92')
        a('v_mov_b32 v4, s82')
        a('v_mov_b32 v5, 32')
        a('buffer_atomic_umax v4, v5, s[44:47], 0 offen')
        for k in (1, 2, 3):
            a('s_sub_u32 s82, s%d, s92', 93 + k)
            a('v_mov_b32 v%d, s82', 6 + k)
            a('buffer_atomic_umax v%d, v5, s[44:47], 0 offen offset:%d', 6 + k, 4 * k)
    a('s_endpgm')
```

```python
import sys
from common import *
import fold, team, workers

HEADER = open('cdna_kernels/%s.s.ref' % NAME).read().split('; Override launch geometry')[0]
MAIN_LDS = team.TEAM_LDS

def kd(name, vgpr, acc, sgpr):
    return '''.p2align 6
.amdhsa_kernel %s
  .amdhsa_next_free_vgpr %d
  .amdhsa_next_free_sgpr %d
  .amdhsa_accum_offset %d
  .amdhsa_group_segment_fixed_size 0
  .amdhsa_kernarg_size 120
  .amdhsa_user_sgpr_count 2
  .amdhsa_user_sgpr_kernarg_segment_ptr 1
  .amdhsa_system_sgpr_workgroup_id_x 1
.end_amdhsa_kernel
''' % (name, vgpr, sgpr, acc)

def build(mask, dev=False, aslist=False):
    a = Asm()
    workers.DEV = fold.DEV = bool(dev)
    fold.FINE = bool(dev) and 'fine' in dev
    fold.OVERLAP = bool(dev) and 'ov' in dev.split('+')
    for x in (dev or '').split('+'):
        if x.startswith('fd'): fold.DEPTH = int(x[2:])
        if x.startswith('bo'): workers.BACKOFF = int(x[2:])
        if x.startswith('msl'): workers.MSLEEP = int(x[3:])
        if x == 'norot': fold.ROT = False
        if x == 'x3': workers.NSET_X, workers.NSET_O = 3, 13
        if x.startswith('fo'): workers.NSET_O = int(x[2:])
        if x.startswith('lead'): workers.LEAD = int(x[4:])
        if x == 'wst01': fold.WST = 'sc0 sc1'
        if x == 'wstnt': fold.WST = 'nt sc1'
        if x.startswith('af'): fold.AFIRST = int(x[2:]); fold.BYK = False
    workers.DBGT = fold.DBGT = bool(dev) and 'dbgt' in dev
    nm = NAME + '_kernel'
    a.l.append('.globl %s\n.p2align 8\n.type %s,@function' % (nm, nm))
    a.label(nm)
    a('s_cmp_ge_u32 s2, 256')
    a('s_cbranch_scc1 quit')
    if dev: a('s_memrealtime s[92:93]')
    a('s_load_dwordx8 s[64:71], s[0:1], 0')
    a('s_load_dwordx4 s[72:75], s[0:1], 32')
    a('s_load_dwordx2 s[76:77], s[0:1], %d', KA['gw'])
    a('s_load_dwordx4 s[52:55], s[0:1], %d', KA['dbg'])
    a('v_lshrrev_b32 v1, 6, v0')
    a('v_and_b32 v0, 63, v0')
    a('v_readfirstlane_b32 s3, v1')
    if not (dev and 'nocw' in dev):
        a('s_getpc_b64 s[32:33]')
        a.label('pcref')
        a('s_lshr_b32 s31, s2, 3')
        a('s_lshl_b32 s31, s31, 2')
        a('s_add_u32 s31, s31, s3')
        a('s_and_b32 s31, s31, 7')
        a('s_lshl_b32 s31, s31, 13')
        a('v_lshl_add_u32 v252, v0, 7, s31')
        a('v_min_u32 v252, codeend-pcref-4, v252')
        a('global_load_dword v253, v252, s[32:33]')
    a('s_waitcnt lgkmcnt(0)')
    a.srd(8, 54, team.OOB)
    a.srd(44, 52, 256)
    a.srd(60, 72, WBYTES)
    a.srd(16, 74, WBYTES)
    a.srd(36, 68, WBYTES)
    a.srd(56, 70, WBYTES)
    a.srd(20, 64, XBYTES)
    a.srd(24, 76, 896)
    a.srd(40, 66, 7168)
    fold.tl(a, 0)
    a('s_and_b32 s31, s2, 7')
    a('s_lshr_b32 s53, s2, 3')
    a('s_cmp_eq_u32 s31, 0')
    a('s_cbranch_scc1 die0')
    a('s_sub_u32 s31, s31, 1')
    a('s_lshl_b32 s31, s31, 5')
    a('s_add_u32 s53, s53, s31')
    fold.gen_fold(a)
    a('s_cmp_eq_u32 s5, 1')
    a('s_cselect_b32 s31, 192, 0')
    for x in (dev or '').split('+'):
        if x.startswith('rs'): a('s_mov_b32 s31, %d', 224 - int(x[2:]))
    a('s_add_u32 s30, s53, s31')
    a('s_cmp_ge_u32 s30, 224')
    a('s_cselect_b32 s31, 224, 0')
    a('s_sub_u32 s30, s30, s31')
    a('s_cmp_ge_u32 s30, %d', 56 + 16 * workers.NSET_X + 28 + 7 * workers.NSET_O)
    a('s_cbranch_scc1 quit')
    for bit, n, lab in ((2, 56, 'role_d'), (4, 16 * workers.NSET_X, 'role_xs'), (8, 28, 'role_f1'), (16, 7 * workers.NSET_O, 'role_fin')):
        a('s_cmp_lt_u32 s30, %d', n)
        a('s_cbranch_scc1 %s', lab if mask & bit else 'quit')
        a('s_sub_u32 s30, s30, %d', n)
        if lab == 'role_d':
            fold.wait_all(a, FLG_M, 256)
            if not (dev and ('nogate' in dev or 'xung' in dev)): fold.wait_started(a)
        if lab == 'role_xs' and dev and 'xung' in dev: fold.wait_started(a)
    a.label('quit')
    a('s_endpgm')
    a.label('die0')
    l = a.new('nj')
    a('s_cmp_eq_u32 s53, 31')
    a('s_cbranch_scc0 %s', l)
    fold.janitor(a)
    a.label(l)
    fold.misc_loads(a)
    fold.unit_fill(a)
    a('s_waitcnt vmcnt(0)')
    fold.misc_rest(a)
    fold.wait_janitor(a)
    a('s_add_u32 s34, s53, 224')
    fold.set_flag(a, FLG_M, 's34')
    a('s_mov_b32 s30, s53')
    team.gen_team(a, dev)
    workers.gen_d(a, vtail=bool(mask & 16))
    workers.gen_xs(a)
    workers.gen_f1(a)
    workers.gen_fin(a)
    a.label('codeend')
    s = HEADER
    if aslist: s += '; @launch kernel=%s grid=(256,1,1) block=(256,1,1) lds=%d\n' % (nm, MAIN_LDS)
    else: s += '; @launch grid=(256,1,1) block=(256,1,1) lds=%d\n' % MAIN_LDS
    s += '.amdgcn_target "amdgcn-amd-amdhsa--gfx950"\n.text\n' + a.text()
    s += '.section .rodata,"a"\n' + kd(nm, 512, 256, 100)
    return s

if __name__ == '__main__':
    out = sys.argv[1]
    dev = sys.argv[3] if len(sys.argv) > 3 else False
    open(out, 'w').write(build(int(sys.argv[2]), dev, aslist='/bench/' in out and 'dbgt' not in (dev or '') and 'amp' not in (dev or '')))
```

```python
from common import *
import fold

L_MEM = 0
L_T = 7680
L_S = L_T + 8192
L_X = L_S + 12288
ZXS = 28672 + 512
L_C = 7680
L_V = L_C + 4096
L_D = 32768
L_W = 98304
TEAM_LDS = L_W + 57344
SPIN = 200000
OOB = 0x8000000
NTEAM = 32
WB = False

ORD_S = ([(0, 0), (1, 0), (0, 1), (1, 1), (2, 0), (3, 0), (2, 1), (3, 1), (4, 0), (5, 0), (6, 0), (4, 1), (5, 1), (6, 1)]
         + [(t, 2) for t in range(7)] + [(t, l) for t in range(7) for l in range(3, 7)])
ORD_C = [(t, l) for l in range(4) for t in range(8)] + [(t, l) for t in range(8) for l in range(4, 7)]
CSPILL = [80, 88, 96, 104, 112, 52, 60]
def Wreg(i, n=8, off=0):
    if i >= 49: return V(CSPILL[i - 49] + off, n)
    return A(8 * i + off, n) if i < 32 else V(120 + 8 * (i - 32) + off, n)

def gen_team(a, dev=False):
    dev = set(dev.split('+')) if dev else set()
    def stamp(k):
        if 'st%d' % k in dev or 'stall' in dev: a('s_memtime s[%d:%d]', 64 + 2 * k, 65 + 2 * k)
    def bits(dst, spec, first=True):
        for pos, w, sh in spec:
            a('v_bfe_u32 v3, v0, %d, %d', pos, w)
            if first: a('v_lshlrev_b32 v%d, %d, v3', dst, sh); first = False
            else: a('v_lshl_add_u32 v%d, v3, %d, v%d', dst, sh, dst)
    def spin(lp):
        a('s_add_u32 s14, s14, 1')
        a('s_cmp_lt_u32 s14, %d', SPIN)
        a('s_cbranch_scc1 %s', lp)
        a('s_endpgm')
    def xdma():
        a('s_mov_b32 m0, s36')
        a('s_add_u32 s30, s34, 4096')
        for i in range(4): a('buffer_load_dwordx4 v1, s[8:11], s34 offen offset:%d sc1 lds', 1024 * i)
        a('s_add_u32 m0, s36, 4096')
        a('s_add_u32 s34, s34, %d', XSEG)
        for i in range(3): a('buffer_load_dwordx4 v1, s[8:11], s30 offen offset:%d sc1 lds', 1024 * i)
    def ddma(src0, src1):
        r = [['buffer_load_dwordx4 v1, s[8:11], %s offen offset:%d sc1 lds' % (src0, 1024 * i)] for i in range(4)]
        r[3].append('s_add_u32 m0, s37, 16384')
        r += [['buffer_load_dwordx4 v1, s[8:11], %s offen offset:%d sc1 lds' % (src1, 1024 * i)] for i in range(4)]
        return r
    def fcheck(src, tmp, seg):
        a('v_readfirstlane_b32 s29, v%d', src)
        a('s_cmp_le_u32 s29, %s', seg)
    def dwait(seg):
        lp, ok = a.new('dw'), a.new('dk')
        a('s_mov_b32 s14, 0')
        a.label(lp)
        a('buffer_load_dword v18, off, s[8:11], s49 sc1')
        a('s_waitcnt vmcnt(0)')
        fcheck(18, 3, seg)
        a('s_cbranch_scc0 %s', ok)
        a('s_sleep 1')
        spin(lp)
        a.label(ok)
    def xcc_gather():
        lp, l2 = a.new('xc'), a.new('xo')
        a('v_min_u32 v20, %d, v0', NTEAM - 1)
        a('v_lshlrev_b32 v20, 2, v20')
        a('s_mov_b32 s14, 0')
        a.label(lp)
        a('buffer_load_dword v3, v20, s[44:47], 0 offen sc1')
        a('s_waitcnt vmcnt(0)')
        a('v_cmp_eq_u32 vcc, 0, v3')
        a('s_cbranch_vccz %s', l2)
        spin(lp)
        a.label(l2)
    def frag_offsets():
        a('s_lshl_b32 s33, s3, 1')
        for lam in range(7):
            a('s_lshl_b32 s%d, s33, 10', 15 + lam)
            if lam < 6:
                a('s_add_u32 s33, s33, 1')
                a('s_cmp_ge_u32 s33, 7')
                a('s_cselect_b32 s32, 7, 0')
                a('s_sub_u32 s33, s33, s32')
    def wload(order, tile_off, early_odd, between):
        if dev: a('s_memrealtime s[96:97]')
        for ps in range(2):
            for lam in range(7):
                l = a.new('wl')
                a('s_bitcmp1_b32 s%d, 10', 15 + lam)
                a('s_cbranch_scc%d %s', 0 if (early_odd ^ ps) else 1, l)
                a('s_waitcnt vmcnt(40)')
                a('s_lshl_b32 s33, s%d, 1', 15 + lam)
                a('s_add_u32 s33, s33, s30')
                for i, (t, lm) in enumerate(order):
                    if lm != lam: continue
                    a('s_add_u32 s32, s33, %d', tile_off(t))
                    if i >= 49:
                        a('s_add_u32 m0, s29, %d', 2048 * (i - 49))
                        a('s_nop 0')
                        a('buffer_load_dwordx4 v1, s[8:11], s32 offen sc1 lds')
                        a('buffer_load_dwordx4 v1, s[8:11], s32 offen offset:1024 sc1 lds')
                    else:
                        a('buffer_load_dwordx4 %s, v1, s[8:11], s32 offen sc1', Wreg(i, 4, 0))
                        a('buffer_load_dwordx4 %s, v1, s[8:11], s32 offen offset:1024 sc1', Wreg(i, 4, 4))
                a.label(l)
            if ps == 0: between()

    a.label('team')
    if dev: a('s_memrealtime s[90:91]')
    a('s_and_b32 s4, s30, 15')
    a('s_lshr_b32 s5, s30, 4')
    a('s_getreg_b32 s31, hwreg(HW_REG_XCC_ID)')
    a('s_and_b32 s31, s31, 15')
    a('s_add_u32 s31, s31, 1')
    a('v_mov_b32 v3, s31')
    a('s_lshl_b32 s32, s30, 2')
    a('buffer_store_dword v3, off, s[44:47], s32 sc1')
    a('v_lshlrev_b32 v1, 4, v0')
    frag_offsets()
    a('s_cmp_ge_u32 s30, 30')
    a('s_cbranch_scc1 export')
    for r in range(4, 16): a('v_mov_b32 v%d, 0', r)
    a('v_and_b32 v3, 2, v0')
    a('v_cmp_eq_u32 s[58:59], 0, v3')
    a('v_mov_b32 v2, 0xeeee')
    a('v_mov_b32 v18, 0x4444')
    a('v_cndmask_b32 v2, v2, v18, s[58:59]')
    a('v_add_u32 v16, s15, v1')
    a('v_add_u32 v17, s16, v1')
    a('s_mov_b32 s49, 0x%x', HZ)
    a('v_cmp_gt_u32 s[62:63], 56, v0')
    lv, lj = a.new('iv'), a.new('ij')
    a('s_cmp_eq_u32 s5, 1')
    a('s_cbranch_scc1 %s', lv)
    fold.wait_part(a, FLG_A, 's4', 1, True)
    a('s_mul_i32 s30, s4, 28')
    a('s_mul_i32 s32, s3, 7')
    a('s_add_u32 s30, s30, s32')
    a('s_mul_i32 s30, s30, 14336')
    wload(ORD_S, lambda t: t * 14336, 1, lambda: fold.wait_head_and_misc(a, FLG_A, 's4', 14, 24))
    a('v_and_b32 v3, 8, v0')
    a('v_cmp_eq_u32 vcc, 0, v3')
    a('s_nop 1')
    a('v_cndmask_b32 v14, 0, 1.0, vcc')
    bits(4, [(2, 2, 6), (0, 1, 5), (4, 2, 3), (1, 1, 2)])
    bits(5, [(4, 2, 8), (0, 4, 3)])
    a('s_lshl_b32 s30, s3, 11')
    a('s_add_u32 s30, s30, %d', L_T)
    a('v_add_u32 v4, s30, v4')
    a('v_add_u32 v5, s30, v5')
    a('s_mul_i32 s30, s3, 3584')
    a('s_add_u32 s30, s30, %d', L_X)
    a('v_add_u32 v6, s30, v1')
    bits(8, [(5, 1, 8), (1, 2, 6), (0, 1, 4), (4, 1, 3)])
    a('s_mul_i32 s30, s3, 1792')
    a('v_add_u32 v8, s30, v8')
    a('v_add_u32 v9, 1024, v8')
    bits(10, [(4, 2, 9), (1, 1, 6), (2, 2, 4), (0, 1, 2)])
    bits(15, [(4, 2, 9), (3, 1, 7), (0, 1, 6), (1, 2, 4)])
    a('s_lshl_b32 s31, s3, 11')
    a('s_add_u32 s31, s31, %d', L_S)
    a('v_add_u32 v10, s31, v10')
    a('v_add_u32 v15, s31, v15')
    a('s_lshl_b32 s31, s3, 10')
    a('s_add_u32 s31, s31, %d', L_S)
    a('v_add_u32 v11, s31, v1')
    a('s_lshl_b32 s30, s4, 9')
    a('s_lshl_b32 s31, s3, 8')
    a('s_add_u32 s30, s30, s31')
    a('v_lshl_add_u32 v12, v0, 2, s30')
    bits(13, [(4, 2, 4), (0, 2, 2)])
    a('s_lshl_b32 s30, s4, 7')
    a('s_lshl_b32 s31, s3, 6')
    a('s_add_u32 s30, s30, s31')
    a('s_add_u32 s30, s30, 8192')
    a('v_add_u32 v13, s30, v13')
    a('v_and_b32 v3, 12, v0')
    a('v_cmp_eq_u32 vcc, 0, v3')
    a('v_mov_b32 v18, 0x%x', OOB)
    a('s_nop 0')
    a('v_cndmask_b32 v13, v18, v13, vcc')
    a('v_mov_b32 v3, 0')
    a('v_lshlrev_b32 v18, 2, v0')
    a('ds_write_b32 v18, v3 offset:%d', L_MEM + 7168)
    for w in range(4): a('ds_write_b32 v18, v3 offset:%d', L_T + w * 2048 + 1792)
    a('v_add_u32 v18, %d, v18', L_X + 28672)
    for o in (0, 256, ZXS, ZXS + 256): a('ds_write_b32 v18, v3 offset:%d', o)
    a('s_mov_b32 s50, %d', ZXS)
    a('s_mul_i32 s30, s3, 7168')
    a('s_add_u32 s34, s30, 0x%x', XF)
    a('s_add_u32 s36, s30, %d', L_X)
    xdma()
    a('s_lshl_b32 s31, s4, 10')
    a('s_add_u32 s27, s31, 0x%x', PR)
    a('s_cmp_lt_u32 s4, 10')
    a('s_cselect_b32 s27, s27, 0x%x', OOB)
    a('s_cmp_eq_u32 s3, 2')
    a('s_cselect_b32 s27, s27, 0x%x', OOB)
    a('s_lshl_b32 s31, s4, 2')
    a('s_add_u32 s31, s31, s3')
    if 'thalf' in dev:
        a('s_mul_i32 s35, s31, 3584')
        a('v_lshl_add_u32 v7, v0, 7, s35')
        a('v_lshrrev_b32 v3, 14, v7')
        a('v_lshl_add_u32 v7, v3, 14, v7')
        a('v_add_u32 v7, 0x%x, v7', DD + 2 * DSEG + 16384)
        a('v_cmp_gt_u32 s[62:63], 28, v0')
    elif 't34' in dev:
        a('s_mul_i32 s35, s31, 42')
        a('v_add_u32 v7, s35, v0')
        a('s_movk_i32 s35, 2731')
        a('v_mul_u32_u24 v3, s35, v7')
        a('v_lshrrev_b32 v3, 16, v3')
        a('v_lshl_add_u32 v7, v3, 3, v7')
        a('v_lshlrev_b32 v7, 7, v7')
        a('v_add_u32 v7, 0x%x, v7', DD + 2 * DSEG + 1024)
        a('v_cmp_gt_u32 s[62:63], 42, v0')
    else:
        a('s_mul_i32 s35, s31, 7168')
        a('s_add_u32 s35, s35, 0x%x', DD + 2 * DSEG)
        a('v_lshl_add_u32 v7, v0, 7, s35')
    a('s_lshl_b32 s31, s31, 9')
    a('s_add_u32 s31, s31, 0x%x', XF + 2 * XSEG)
    a('v_and_b32 v3, 3, v0')
    a('v_lshl_add_u32 v3, v3, 7, s31')
    if 'tx' in dev: a('v_cmp_gt_u32 s[62:63], 0, v0'); a('s_nop 1')
    a('v_cndmask_b32 v7, v3, v7, s[62:63]')
    a('s_mov_b32 s38, 0x%x', OOB)
    a('s_branch %s', lj)
    a.label(lv)
    a('s_lshl_b32 s34, s3, 2')
    fold.wait_part(a, FLG_C, 's34', 4, False)
    a('s_mul_i32 s30, s3, 4*28')
    a('s_lshl_b32 s32, s4, 1')
    a('s_add_u32 s30, s30, s32')
    a('s_mul_i32 s30, s30, 14336')
    a('s_add_u32 s30, s30, 0x%x', WF_C)
    a('s_mul_i32 s29, s3, 14336')
    a('s_add_u32 s29, s29, %d', L_W)
    wload(ORD_C, lambda t: ((t & 3) * 28 + (t >> 2)) * 14336, 0, lambda: fold.wait_head_and_misc(a, FLG_C, 's34', 56, 24))
    a('v_add_u32 v14, s29, v1')
    for r, i in zip((4, 5, 7, 12, 13), range(5)): a('v_add_u32 v%d, s%d, v1', r, 17 + i)
    bits(6, [(4, 2, 7), (2, 2, 5), (0, 1, 4)])
    a('s_mul_i32 s30, s3, 1536')
    a('s_sub_u32 s30, 8192, s30')
    a('v_add_u32 v6, s30, v6')
    a('v_mov_b32 v18, 0x%x', OOB)
    a('v_cndmask_b32 v6, v18, v6, s[58:59]')
    bits(8, [(4, 2, 7), (0, 4, 2)])
    a('s_lshl_b32 s30, s3, 9')
    a('s_add_u32 s30, s30, %d', L_C)
    a('v_add_u32 v8, s30, v8')
    bits(10, [(5, 1, 9), (2, 2, 7), (0, 1, 6), (4, 1, 5), (1, 1, 4)])
    a('s_lshl_b32 s48, s3, 11')
    a('s_add_u32 s48, s48, %d', L_V)
    bits(9, [(4, 2, 7), (2, 1, 6), (0, 2, 4), (3, 1, 3)])
    a('s_and_b32 s31, s3, 1')
    a('s_lshl_b32 s30, s31, 11')
    a('s_add_u32 s30, s30, %d', L_C)
    a('v_add_u32 v9, s30, v9')
    a('s_lshl_b32 s30, s4, 9')
    a('s_lshl_b32 s31, s31, 8')
    a('s_add_u32 s30, s30, s31')
    a('v_lshl_add_u32 v11, v0, 2, s30')
    a('s_lshl_b32 s30, s3, 12')
    a('s_lshl_b32 s31, s4, 15')
    a('s_add_u32 s35, s30, s31')
    a('s_add_u32 s35, s35, 0x%x', DD)
    a('s_add_u32 s37, s30, %d', L_D)
    a('s_add_u32 s35, s35, %d', DSEG)
    a('s_mov_b32 s38, 0x%x', OOB)
    a('s_mov_b32 s6, 0x%x', OOB)
    a('s_mov_b32 s40, 0x%x', OOB)
    a('s_mov_b32 s13, 0')
    a.label(lj)
    xcc_gather()
    a('v_readfirstlane_b32 s31, v3')
    a('s_mov_b32 s12, 0')
    a('s_add_u32 s32, s15, 0x%x', MEMX)
    a('s_add_u32 s33, s16, 0x%x', MEMX)
    a('v_cmp_ne_u32 vcc, s31, v3')
    for r in range(20, 48): a('v_mov_b32 v%d, 0', r)
    a('s_waitcnt lgkmcnt(0)')
    if dev:
        lc = a.new('cal')
        a('s_memrealtime s[82:83]')
        a('s_waitcnt lgkmcnt(0)')
        a.label(lc)
        a('s_memrealtime s[84:85]')
        a('s_memtime s[86:87]')
        a('s_waitcnt lgkmcnt(0)')
        a('s_cmp_eq_u32 s84, s82')
        a('s_cbranch_scc1 %s', lc)
    if 'slow' in dev: a('s_branch tslow')
    a('s_cbranch_vccnz tslow')
    a('s_cmp_eq_u32 s5, 1')
    a('s_cbranch_scc1 cloopF')
    a('s_branch sloopF')
    a.label('tslow')
    a('s_cmp_eq_u32 s5, 1')
    a('s_cbranch_scc1 cloopS')
    a('s_branch sloopS')
    a.label('tdie')
    a('s_endpgm')
    a.label('export')
    fold.wait_all(a, FLG_M, 256)
    a('s_cmp_eq_u32 s30, 31')
    a('s_cbranch_scc1 relay')
    a('s_mov_b32 s12, 1')
    a('v_min_u32 v7, 55, v0')
    a('v_lshlrev_b32 v7, 7, v7')
    a('s_mul_i32 s31, s3, %d', UNIT)
    a('s_add_u32 s31, s31, 0x%x', MEMX)
    a('buffer_load_dword v9, v7, s[8:11], s31 offen sc1')
    a('s_lshl_b32 s31, s3, 13')
    a('s_add_u32 s31, s31, 0x%x', PR)
    a('v_lshlrev_b32 v8, 7, v0')
    a('buffer_load_dword v9, v8, s[8:11], s31 offen sc1')
    a('s_add_u32 s31, s31, 8192')
    a('buffer_load_dword v9, v8, s[8:11], s31 offen sc1')
    if 'xw' in dev:
        a('s_mul_i32 s31, s3, 7168')
        a('s_add_u32 s31, s31, 0x%x', XF)
        for k in range(1, 4):
            a('s_add_u32 s31, s31, %d', XSEG)
            a('buffer_load_dword v9, v7, s[8:11], s31 offen sc1')
    a.label('exloop')
    a('s_mul_i32 s30, s12, %d', UNIT)
    a('s_add_u32 s34, s30, 0x%x', MEMX)
    a('s_add_u32 s32, s34, s15')
    a('s_add_u32 s33, s34, s16')
    a('s_add_u32 s34, s34, %d', 3 * UNIT)
    a('s_cmp_eq_u32 s3, 0')
    a('s_cselect_b32 s34, s34, 0x%x', OOB)
    a('buffer_load_dword v9, v7, s[8:11], s34 offen sc1')
    if 'xw' in dev:
        a('s_lshl_b32 s34, s12, 2')
        a('s_add_u32 s34, s34, s3')
        a('s_mul_i32 s34, s34, 7168')
        a('s_add_u32 s34, s34, 0x%x', XF + 3 * XSEG)
        a('buffer_load_dword v9, v7, s[8:11], s34 offen sc1')
    a('s_mov_b32 s14, 0')
    lp = a.new('ex')
    a.label(lp)
    if 'noes' not in dev: a('s_sleep 6')
    a('buffer_load_dwordx4 v[20:23], v1, s[8:11], s32 offen sc1')
    a('buffer_load_dwordx4 v[24:27], v1, s[8:11], s33 offen sc1')
    a('s_add_u32 s14, s14, 1')
    a('s_cmp_lt_u32 s14, %d', SPIN)
    a('s_cbranch_scc0 tdie')
    a('s_waitcnt vmcnt(0)')
    a('v_max3_u32 v3, v20, v21, v22')
    a('v_max3_u32 v4, v23, v24, v25')
    a('v_max3_u32 v3, v26, v27, v3')
    a('v_max_u32 v3, v4, v3')
    a('v_cmp_eq_u32 vcc, -1, v3')
    a('s_cbranch_vccnz %s', lp)
    a('s_sub_u32 s32, s32, %d', MEMX - MEME)
    a('s_sub_u32 s33, s33, %d', MEMX - MEME)
    a('s_barrier')
    a('buffer_store_dwordx4 v[20:23], v1, s[8:11], s32 offen sc1')
    a('buffer_store_dwordx4 v[24:27], v1, s[8:11], s33 offen sc1')
    a('s_add_u32 s12, s12, 1')
    a('s_cmp_lt_u32 s12, 63')
    a('s_cbranch_scc1 exloop')
    a('s_endpgm')
    a.label('relay')
    a('s_cmp_eq_u32 s3, 0')
    a('s_cbranch_scc0 tdie')
    xcc_gather()
    a('v_readfirstlane_b32 s31, v3')
    a('s_mov_b32 s12, 0')
    a('s_mov_b32 s14, 0')
    a('s_mov_b32 s49, 0x%x', DPROG)
    a('v_cmp_ne_u32 s[62:63], s31, v3')
    a('v_and_b32 v3, 31, v0')
    a('v_cmp_gt_u32 s[60:61], 28, v3')
    a('v_lshlrev_b32 v4, 2, v0')
    a('v_lshrrev_b32 v5, 5, v0')
    a('s_mov_b32 s48, 0x%x', HZ)
    if 'slow' in dev: a('s_mov_b64 s[62:63], -1')
    a.label('reloop')
    a('s_sleep 2')
    a('buffer_load_dword v6, v4, s[8:11], s49 offen sc1')
    a('s_add_u32 s14, s14, 1')
    a('s_cmp_lt_u32 s14, %d', SPIN)
    a('s_cbranch_scc0 tdie')
    a('s_mov_b32 s13, s12')
    a('s_waitcnt vmcnt(0)')
    a('v_lshl_add_u32 v6, v6, 1, v5')
    a.label('reinc')
    a('v_cmp_ge_u32 vcc, s12, v6')
    a('s_nop 1')
    a('s_and_b64 vcc, vcc, s[60:61]')
    a('s_cbranch_scc1 repub')
    a('s_add_u32 s12, s12, 1')
    a('s_cmp_lt_u32 s12, 64')
    a('s_cbranch_scc1 reinc')
    a.label('repub')
    a('s_cmp_eq_u32 s12, s13')
    a('s_cbranch_scc1 reloop')
    a('v_mov_b32 v7, s12')
    a('s_cmp_eq_u64 s[62:63], 0')
    a('s_cbranch_scc0 reslow')
    a('buffer_store_dword v7, off, s[8:11], s48')
    a('s_branch renext')
    a.label('reslow')
    a('buffer_store_dword v7, off, s[8:11], s48 sc1')
    a.label('renext')
    a('s_cmp_lt_u32 s12, 63')
    a('s_cbranch_scc1 reloop')
    a('s_endpgm')

    def loop(role, mode):
        SC = ' sc1' if mode == 'S' else ''
        ORDER = ORD_S if role == 's' else ORD_C
        TACC = 20
        MF = 48 if role == 's' else 52
        SB, TA, SACC = 76, 100, 108
        VB, PF, CACC, DB, RT = 52, 60, 72, 80, 112
        TMP = TA if role == 's' else 19
        tails = []
        a.l.append('.p2align 6')
        a.label(role + 'loop' + mode)
        if dev:
            l = a.new('pp')
            a('s_cmp_eq_u32 s12, 8')
            a('s_cbranch_scc0 %s', l)
            a('s_memtime s[78:79]')
            a('s_memrealtime s[88:89]')
            a.label(l)
        if 'stall' in dev and role == 'c':
            a('s_waitcnt lgkmcnt(0)')
            a('s_mov_b32 s70, s76')
        def mpoll():
            a('buffer_load_dwordx4 %s, v1, s[8:11], s32 offen sc1', V(MF, 4))
            a('buffer_load_dwordx4 %s, v1, s[8:11], s33 offen sc1', V(MF + 4, 4))
        NE = 0
        if role == 'c':
            for x in dev:
                if x.startswith('ne'): NE = int(x[2:])
            dd = ddma('s38', 's6') if 'nod' not in dev else []
            a('s_xor_b32 s37, s37, 0x18000')
            a('s_cmp_lg_u32 s13, 0')
            lslow, lback = a.new('dq'), a.new('db')
            a('s_cbranch_scc1 %s', lslow)
            a.label(lback)
            tails.append(('dw', lslow, lback))
            a('s_mov_b32 m0, s37')
            a('s_nop 0')
            for grp in dd[:NE]:
                for ins in grp: a(ins)
                if len(grp) > 1: a('s_nop 0')
        CL = 'cearly' not in dev
        if role == 'c' and not CL: mpoll()
        ZA, ZN = (10, 21) if 'noz' not in dev else (0, 0)
        for x in dev:
            if x.startswith('za'): ZA = int(x[2:]); ZN = ZA + 11
        for r in range(ZN if role == 's' else 0, MF - TACC): a('v_mov_b32 v%d, 0', TACC + r)
        if role == 'c' and not CL: mpoll()
        sc = ['s_and_b32 s30, s12, 3', 's_mul_i32 s22, s30, %d' % PSLOT, 's_add_u32 s22, s22, 0x%x' % PR,
              's_add_u32 s32, s32, %d' % UNIT, 's_add_u32 s33, s33, %d' % UNIT]
        if role == 's':
            for r in range(12): a('v_mov_b32 v%d, 0', SACC + r)
            for i in range(5): a('v_add_u32 v%d, s%d, v1', TA + 2 + i, 17 + i)
            radr = [TA + 2 + i for i in range(5)]
            if 'xt' in dev:
                a('s_add_u32 s36, s36, s50')
                a('s_mov_b32 m0, s36')
            sc += ['s_add_u32 s31, s12, 3', 's_and_b32 s31, s31, 3', 's_mul_i32 s24, s31, %d' % PSLOT, 's_add_u32 s24, s24, s27',
                   's_min_u32 s24, s24, 0x%x' % OOB]
        else:
            radr = [4, 5, 7, 12, 13]
            sc += ['s_lshl_b32 s31, s3, 11', 's_add_u32 s43, s22, s31', 's_sub_u32 s42, s32, s15', 's_xor_b32 s30, s37, 0x18000']
        MD = 2
        if role == 's':
            MD = 3
            for x in dev:
                if x.startswith('md'): MD = int(x[2:])
            for r in range(8): a('v_mov_b32 v%d, -1', MF + r)
            if 'now' not in dev: a('s_waitcnt vmcnt(0)')
        elif CL:
            MD = 1
            for x in dev:
                if x.startswith('cd'): MD = int(x[2:])
            for r in range(8): a('v_mov_b32 v%d, -1', MF + r)
            if 'cnw' not in dev: a('s_waitcnt vmcnt(0)')
        a('s_mov_b32 s14, 0')
        def smf(i):
            t, lam = ORDER[i]
            if 'nomf' + role in dev: a('s_nop 3'); return
            if 'chalf' in dev and role == 'c' and i >= 42: return
            for x in dev:
                if x.startswith('cs') and role == 'c': a('s_nop %d', int(x[2:]))
            a('v_smfmac_f32_16x16x64_bf16 %s, %s, %s, v2', V(TACC + 4 * t, 4), V(MF + 4 * lam, 4), Wreg(i))
        lp, lf = a.new('mp'), a.new('mf')
        if role == 'c' and not CL: a('s_branch %s', lp)
        a.label(lf)
        for x in dev:
            if x.startswith('ms' + role): a('s_sleep %d', int(x[3:]))
        mpoll()
        a('s_add_u32 s14, s14, 1')
        a('s_cmp_lt_u32 s14, %d', SPIN)
        a('s_cbranch_scc0 tdie')
        for x in dev:
            if x.startswith('spec') and role == 's':
                a('s_nop 1')
                for r in range(4 * int(x[4:])): a('v_mov_b32 v%d, 0', TACC + r)
        a.label(lp)
        a('s_waitcnt vmcnt(%d)', 2 * MD - 2)
        if 'lite' in dev: a('v_max_u32 v3, v%d, v%d', MF + 3, MF + 7)
        else:
            a('v_max3_u32 v3, v%d, v%d, v%d', MF, MF + 1, MF + 2)
            a('v_max3_u32 v%d, v%d, v%d, v%d', TMP, MF + 3, MF + 4, MF + 5)
            a('v_max3_u32 v3, v%d, v%d, v3', MF + 6, MF + 7)
            a('v_max_u32 v3, v%d, v3', TMP)
        a('v_cmp_eq_u32 vcc, -1, v3')
        if 'm0' in dev:
            a('ds_write_b128 v16, %s', V(MF, 4))
            a('ds_write_b128 v17, %s', V(MF + 4, 4))
        NSP = 0
        for x in dev:
            if x.startswith('spec') and role == 's': NSP = int(x[4:])
        for k in range(NSP):
            smf(k)
            if k == 0: a('ds_write_b128 v16, %s', V(MF, 4))
        a('s_cbranch_vccnz %s', lf)
        stamp(0)
        N = len(ORDER)
        gm = [[] for _ in range(N + 12)]
        gv = [[] for _ in range(N + 12)]
        pre = [[] for _ in range(N + 12)]
        rd = ['ds_read_b128 %s, v%d' % (V(MF + 8 + 4 * i, 4), radr[i]) for i in range(5)]
        if 'm0' not in dev:
            gm[0].append('ds_write_b128 v16, %s' % V(MF, 4))
            gm[1].append('ds_write_b128 v17, %s' % V(MF + 4, 4))
        GB = 5
        for x in dev:
            if x.startswith('gb') and role == 's': GB = int(x[2:])
        gm[GB] += ['s_waitcnt lgkmcnt(0)', 's_barrier', rd[0]]
        for i in range(1, 5): gm[GB + i].append(rd[i])
        for k in range(0, len(sc), 2): gv[(8 if role == 'c' else 20) + k // 2] += sc[k:k + 2]
        def place(ins, lo):
            k = lo
            while gm[k]: k += 1
            gm[k] += ins if isinstance(ins, list) else [ins]
            return k
        if role == 's':
            B0 = 21
            def epi(t):
                c = TACC + 4 * t
                return (['v_add_f32 v%d, v%d, v%d' % (c, c, c + 2), 'v_add_f32 v%d, v%d, v%d' % (c + 1, c + 1, c + 3),
                         'v_cvt_pk_bf16_f32 v%d, v%d, v%d' % (c, c, c + 1)], ['ds_write_b32 v4, v%d offset:%d' % (c, 256 * t)])
            for t in range(6):
                v, m = epi(t)
                for i, ins in enumerate(v): gv[B0 + 4 * t + 7 + i].append(ins)
                gm[B0 + 4 * t + 10].append(m[0])
            place('ds_read_b64_tr_b16 %s, v5' % V(TA, 2), B0 + 23)
            place('ds_read_b64_tr_b16 %s, v5 offset:128' % V(TA + 2, 2), B0 + 24)
            def brd(step, xb0, xb1, mb):
                r = []
                for kt, b in ((0, xb0), (1, xb1)):
                    for hh in range(2):
                        r.append('ds_read_b128 %s, v6 offset:%d' % (V(b + 4 * hh, 4), kt * 14336 + (2 * step + hh) * 1024))
                ad = 'v8' if step == 0 else 'v9'
                for hh in range(2):
                    for qq in range(2):
                        r.append('ds_read2_b32 %s, %s offset0:%d offset1:%d' % (V(mb + 4 * hh + 2 * qq, 2), ad, 128 * hh + qq, 128 * hh + qq + 8))
                return r
            place('buffer_load_dword v18, off, s[8:11], s49 sc1', GB)
            place('buffer_load_dword v19, v7, s[8:11], s38 offen' if 'notouch' not in dev else 'buffer_load_dword v19, off, s[8:11], s49 sc1', GB)
            if 'xt' in dev:
                xl = [['buffer_load_dwordx4 v1, s[8:11], s34 offen offset:%d sc1 lds' % (1024 * i)] for i in range(4)]
                xl[3] += ['s_add_u32 m0, s36, 4096', 's_add_u32 s28, s34, 4096']
                xl += [['buffer_load_dwordx4 v1, s[8:11], s28 offen offset:%d sc1 lds' % (1024 * i)] for i in range(3)]
                k, xs = GB + 7, 4
                for x in dev:
                    if x.startswith('xs'): xs = int(x[2:])
                for grp in xl: k = place(grp, k) + xs
            BL = 12
            for x in dev:
                if x.startswith('bl'): BL = int(x[2:])
            for ins in brd(0, SB, SB + 8, SB + 16): place(ins, BL)
            b1 = brd(1, TACC, TACC + 8, MF)
            k = 20
            while gm[k]: k += 1
            yv = sum(1 for kk in range(k) for x in gm[kk] if x.startswith('buffer_'))
            k = place(['s_waitcnt vmcnt(%d)' % yv, b1[4]], 20)
            for ins in b1[5:]: place(ins, k)
            for ins in b1[0:2]: place(ins, B0 + 15)
            for ins in b1[2:4]: place(ins, B0 + 23)
            def younger_ds(k0, k1): return sum(1 for kk in range(k0, k1) for x in gm[kk] if x.startswith('ds_'))
            pre[14].append('s_waitcnt lgkmcnt(%d)' % younger_ds(GB + 1, 14))
            pre[B0].append('s_waitcnt lgkmcnt(%d)' % younger_ds(GB + 5, B0))
        else:
            pre[16].append('s_waitcnt lgkmcnt(4)')
            pre[24].append('s_waitcnt lgkmcnt(0)')
            sp = 4
            for x in dev:
                if x.startswith('sp') and x[2:].isdigit(): sp = int(x[2:])
            rest = dd[NE:]
            for i, grp in enumerate(rest): gm[12 + sp * i] += grp
            gm[10].append('buffer_load_dword v18, off, s[8:11], s49 sc1')
            def cepi(t):
                c = TACC + 4 * t
                return (['v_add_f32 v%d, v%d, v%d' % (c, c, c + 2), 'v_add_f32 v%d, v%d, v%d' % (c + 1, c + 1, c + 3),
                         'v_cvt_pk_bf16_f32 v%d, v%d, v%d' % (c, c, c + 1)], 'ds_write_b32 v19, v%d offset:%d' % (c, 256 * t))
            for t in range(8):
                v, m = cepi(t)
                for i_, ins in enumerate(v): gv[32 + 3 * t + 6 + i_].append(ins)
                gm[32 + 3 * t + 9].insert(0, m)
            wr = ['ds_read_b128 %s, v14 offset:%d' % (V(CSPILL[i >> 1] + 4 * (i & 1), 4), 1024 * i) for i in range(14)]
            for ins in wr[:10]: place(ins, 17)
            k = 30
            while gm[k]: k += 1
            younger = sum(1 for kk in range(k) for x in gm[kk] if x.startswith('buffer_'))
            k = place(['s_waitcnt vmcnt(%d)' % younger, wr[10]], 30)
            place(wr[11], k)
            for ins in wr[12:]: kl = place(ins, 33)
            def yds(k0, k1): return sum(1 for kk in range(k0, k1) for x in gm[kk] if x.startswith('ds_'))
            pre[24] = ['s_waitcnt lgkmcnt(%d)' % yds(GB + 5, 24)]
            pre[49].append('s_waitcnt lgkmcnt(%d)' % yds(kl + 1, 49))
            gv[20].append('v_add_u32 v15, s30, v1')
            gv[21].append('v_lshrrev_b32 v3, 4, v0')
            gv[22].append('v_lshl_add_u32 v3, v3, 2, s48')
            gv[23].append('v_and_b32 v19, 15, v0')
            gv[24].append('v_lshl_add_u32 v19, v19, 4, v3')
            gv[25].append('v_add_u32 v3, s48, v1')
        for k in range(N):
            for ins in pre[k]: a(ins)
            if k >= NSP: smf(k)
            if k == 0 and NSP: continue
            for ins in gm[k] + gv[k]: a(ins)
        stamp(1)
        if role == 's':
            for kk in range(N, N + 3):
                for ins in gm[kk] + gv[kk]: a(ins)
            assert not any(gm[N + 3:]) and not any(gv[N + 3:])
            a('s_cmp_lt_u32 s3, 2')
            a('s_nop 1')
            v, m = epi(6)
            a('v_pk_add_f32 %s, %s, %s', V(TACC + 24, 2), V(TACC + 24, 2), V(TACC + 26, 2))
            for ins in v[2:] + m: a(ins)
            a('ds_read_b64_tr_b16 %s, v5 offset:1024', V(TA + 4, 2))
            a('ds_read_b64_tr_b16 %s, v5 offset:1152', V(TA + 6, 2))
            a('s_waitcnt lgkmcnt(7)')
            for kt in range(3):
                a('v_smfmac_f32_16x16x64_bf16 %s, %s, %s, v2', V(SACC + 4 * kt, 4), V(TA, 4), V(SB + 8 * kt, 8))
            a('s_waitcnt lgkmcnt(0)')
            for kt, b in enumerate((TACC, TACC + 8, MF)):
                a('v_smfmac_f32_16x16x64_bf16 %s, %s, %s, v2', V(SACC + 4 * kt, 4), V(TA + 4, 4), V(b, 8))
            a('s_nop %d', 5 if 'tight' not in dev else 1)
            def sadd(kt):
                c = SACC + 4 * kt
                if 'nopk' not in dev: a('v_pk_add_f32 %s, %s, %s', V(c, 2), V(c, 2), V(c + 2, 2))
                else:
                    a('v_add_f32 v%d, v%d, v%d', c, c, c + 2)
                    a('v_add_f32 v%d, v%d, v%d', c + 1, c + 1, c + 3)
            def swr(kt):
                c = SACC + 4 * kt
                if kt < 2: a('ds_write2_b32 v10, v%d, v%d offset0:%d offset1:%d', c, c + 1, 32 * kt, 32 * kt + 64)
                else: a('ds_write2_b32 v15, v%d, v%d offset0:2 offset1:66', c, c + 1)
            if 'so0' not in dev: sadd(0); sadd(1); swr(0); sadd(2); swr(1); swr(2)
            else:
                for kt in range(3): sadd(kt); swr(kt)
            lns, ljn = a.new('ns'), a.new('jn')
            a('s_cbranch_scc0 %s', lns)
            tails.append(('nv', lns, ljn))
            for r in range(ZA): a('v_mov_b32 v%d, 0', TACC + r)
            a('s_waitcnt lgkmcnt(0)')
            if ZA: a('v_mov_b32 v%d, 0', TACC + ZA)
            a('s_barrier')
            stamp(2)
            for w in range(4): a('ds_read_b96 %s, v11 offset:%d', V(76 + 4 * w, 3), 2048 * w) if 'b96' in dev else a('ds_read_b128 %s, v11 offset:%d', V(76 + 4 * w, 4), 2048 * w)
            for r in range(ZA + 1, ZN): a('v_mov_b32 v%d, 0', TACC + r)
            a('s_waitcnt lgkmcnt(2)')
            a('v_pk_add_f32 v[76:77], v[76:77], v[80:81]')
            a('v_add_f32 v78, v78, v82')
            a('s_waitcnt lgkmcnt(0)')
            a('v_pk_add_f32 v[84:85], v[84:85], v[88:89]')
            a('v_add_f32 v86, v86, v90')
            a('v_pk_add_f32 v[76:77], v[76:77], v[84:85]')
            a('v_add_f32 v78, v78, v86')
            DP = ('quad_perm:[1,0,3,2]', 'quad_perm:[2,3,0,1]', 'row_half_mirror', 'row_mirror')
            def dpp(op, d, s_, ctl): a('%s_dpp v%d, v%d, v%d %s row_mask:0xf bank_mask:0xf', op, d, s_, s_, ctl)
            a('v_max3_f32 v84, v76, v77, v78')
            a('v_sub_f32 v76, v76, v84')
            a('v_sub_f32 v77, v77, v84')
            dpp('v_max_f32', 85, 84, DP[0])
            a('v_sub_f32 v78, v78, v84')
            a('v_exp_f32 v76, v76')
            dpp('v_max_f32', 85, 85, DP[1])
            a('v_exp_f32 v77, v77')
            a('s_nop 0')
            dpp('v_max_f32', 85, 85, DP[2])
            a('v_exp_f32 v78, v78')
            a('v_add_f32 v86, v76, v77')
            dpp('v_max_f32', 85, 85, DP[3])
            a('v_sub_f32 v84, v84, v85')
            a('v_exp_f32 v84, v84')
            a('v_fmac_f32 v86, v78, v14')
            a('v_mul_f32 v86, v86, v84')
            a('v_mul_f32 v76, v76, v84')
            a('v_mul_f32 v77, v77, v84')
            dpp('v_add_f32', 86, 86, DP[0])
            a('v_mul_f32 v78, v78, v84')
            a('s_nop 0')
            for ctl in DP[1:]:
                dpp('v_add_f32', 86, 86, ctl)
                if ctl != DP[3]: a('s_nop 1')
            a('v_rcp_f32 v86, v86')
            a('s_nop 0')
            a('v_mul_f32 v76, v76, v86')
            a('v_mul_f32 v77, v77, v86')
            a('v_cvt_pk_bf16_f32 v88, |v76|, |v77|')
            a('buffer_store_dword v88, v12, s[8:11], s22 offen' + SC)
            a('v_mul_f32_dpp v79, v78, v86 row_shl:4 row_mask:0xf bank_mask:0xf bound_ctrl:0')
            a('v_mul_f32 v78, v78, v86')
            a('v_cvt_pk_bf16_f32 v90, |v78|, |v79|')
            a('buffer_store_dword v90, v13, s[8:11], s22 offen' + SC)
            stamp(3)
            a('s_waitcnt vmcnt(%d)', 3 + (7 if 'xt' in dev else 0))
            a('s_barrier')
            if 'nox' not in dev: xdma()
            a.label(ljn)
            a('v_add_u32 v7, %d, v7', XSEG)
            a('s_mov_b64 exec, s[62:63]')
            a('v_add_u32 v7, %d, v7', DSEG - XSEG)
            a('s_mov_b64 exec, -1')
            a('s_add_u32 s31, s12, 3')
            fcheck(18, 3, 's31')
            a('s_cselect_b32 s38, 0x%x, 0', OOB)
            a('s_cmp_gt_u32 s31, 62')
            a('s_cselect_b32 s38, 0x%x, s38', OOB)
            for x in dev:
                if x.startswith('ds'): a('s_sleep %d', int(x[2:]))
        else:
            def pld1(k):
                a('buffer_load_dwordx4 %s, %s, s[8:11], s43 offen offset:%d sc1', V(PF + 4 * k, 4), 'v10' if k else 'v6', 1024 if k == 2 else 0)
            def pld():
                for k in range(3): pld1(k)
            l0, l1 = a.new('d0'), a.new('d1')
            a('s_cmp_eq_u32 s12, 0')
            a('s_cbranch_scc1 %s', l0)
            a.label(l1)
            tails.append(('d0', l0, l1))
            for i in range(8): a('ds_read_b128 %s, v15 offset:%d', V(DB + 4 * i, 4), 1024 * (i & 3) + 16384 * (i >> 2))
            pld()
            for kk in range(N, N + 12):
                for ins in gm[kk] + gv[kk]: a(ins)
            a('ds_read_b128 %s, v3', V(VB, 4))
            a('ds_read_b128 %s, v3 offset:1024', V(VB + 4, 4))
            a('v_add_u32 v15, 2048, v8')
            a('s_waitcnt vmcnt(3)')
            a('s_add_u32 s35, s35, %d', DSEG)
            a('s_add_u32 s31, s12, 2')
            fcheck(18, 3, 's31')
            a('s_cselect_b32 s13, 1, 0')
            a('s_add_u32 s6, s35, 16384')
            a('s_cmp_gt_u32 s31, 62')
            a('s_cselect_b32 s38, 0x%x, s35', OOB)
            a('s_cselect_b32 s6, 0x%x, s6', OOB)
            a('s_cselect_b32 s13, 0, s13')
            a('s_mov_b32 s14, 0')
            stamp(4)
            a('s_waitcnt lgkmcnt(0)')
            lr, lq = a.new('pr'), a.new('pq')
            def pchk():
                a('v_or3_b32 v3, v%d, v%d, v%d', PF, PF + 1, PF + 2)
                a('v_or3_b32 v19, v%d, v%d, v%d', PF + 3, PF + 4, PF + 5)
                a('v_or3_b32 v3, v%d, v%d, v3', PF + 6, PF + 7)
                a('v_or3_b32 v19, v%d, v%d, v19', PF + 8, PF + 9)
                a('v_or3_b32 v3, v%d, v%d, v3', PF + 10, PF + 11)
                a('v_or_b32 v3, v19, v3')
                a('v_cmp_gt_i32 vcc, 0, v3')
            def dn(tl): a('v_mfma_f32_16x16x32_bf16 %s, %s, %s, 0', V(CACC + 4 * tl, 4), V(PF, 4), V(VB + 4 * tl, 4))
            def sp_(tl, k): a('v_smfmac_f32_16x16x64_bf16 %s, %s, %s, v2', V(CACC + 4 * tl, 4), V(PF + 4 + 4 * k, 4), V(DB + 16 * tl + 8 * k, 8))
            for x in dev:
                if x.startswith('pw'): a('s_sleep %d', int(x[2:]))
            a.label(lr)
            pld()
            a('s_add_u32 s14, s14, 1')
            a('s_cmp_lt_u32 s14, %d', SPIN)
            a('s_cbranch_scc0 tdie')
            a('s_cmp_lt_u32 s3, 2')
            a('s_waitcnt vmcnt(3)')
            if 'cold' in dev:
                pchk()
                dn(0)
                a('s_cbranch_vccnz %s', lr)
                sp_(0, 0); sp_(0, 1); dn(1); sp_(1, 0); sp_(1, 1)
                stamp(5)
                n0, n1 = None, 4
            else:
                a('v_or3_b32 v3, v%d, v%d, v%d', PF, PF + 1, PF + 2)
                a('v_or3_b32 v3, v%d, v%d, v3', PF + 3, PF + 4)
                dn(0)
                a('v_or3_b32 v3, v%d, v%d, v3', PF + 5, PF + 6)
                dn(1)
                a('v_or3_b32 v3, v%d, v%d, v3', PF + 7, PF + 8)
                sp_(0, 0)
                a('v_or3_b32 v3, v%d, v%d, v3', PF + 9, PF + 10)
                sp_(1, 0)
                a('v_or_b32 v3, v%d, v3', PF + 11)
                sp_(0, 1)
                a('v_cmp_gt_i32 vcc, 0, v3')
                sp_(1, 1)
                a('s_cbranch_vccnz %s', lr)
                stamp(5)
                n0, n1 = 4, None
            if n0: a('s_nop %d', n0)
            a('v_pk_add_f32 %s, %s, %s', V(CACC, 2), V(CACC, 2), V(CACC + 2, 2))
            if n1: a('s_nop %d', n1 + 2)
            else: a('s_nop 0')
            a('v_pk_add_f32 %s, %s, %s', V(CACC + 4, 2), V(CACC + 4, 2), V(CACC + 6, 2))
            a('ds_write2_b32 v8, v%d, v%d offset0:0 offset1:16', CACC, CACC + 1)
            a('ds_write2_b32 v15, v%d, v%d offset0:0 offset1:16', CACC + 4, CACC + 5)
            lnr, ljr = a.new('nr'), a.new('jr')
            a('s_cbranch_scc0 %s', lnr)
            tails.append(('ns', lnr, ljr))
            a('s_waitcnt lgkmcnt(0)')
            a('s_barrier')
            for w in range(4): a('ds_read_b64 %s, v9 offset:%d', V(RT + 2 * w, 2), 512 * w)
            a('s_waitcnt lgkmcnt(2)')
            a('v_pk_add_f32 %s, %s, %s', V(RT, 2), V(RT, 2), V(RT + 2, 2))
            a('s_waitcnt lgkmcnt(0)')
            a('v_pk_add_f32 %s, %s, %s', V(RT + 4, 2), V(RT + 4, 2), V(RT + 6, 2))
            a('v_pk_add_f32 %s, %s, %s', V(RT, 2), V(RT, 2), V(RT + 4, 2))
            a('v_cvt_pk_bf16_f32 v%d, v%d, v%d', RT, RT, RT + 1)
            a('v_min_u32 v%d, -2, v%d', RT, RT)
            a('buffer_store_dword v%d, v11, s[8:11], s42 offen%s', RT, SC)
            stamp(6)
            a('s_barrier')
            a('s_mov_b32 s40, 0x%x', MEME + 63 * UNIT)
            a.label(ljr)
            for x in dev:
                if x.startswith('dc'): a('s_sleep %d', int(x[2:]))
        if dev and role == 's':
            l = a.new('ts')
            a('s_lshl_b32 s30, s4, 2')
            a('s_add_u32 s30, s30, s3')
            a('s_cmp_eq_u32 s30, 63')
            a('s_cbranch_scc0 %s', l)
            a('s_memtime s[80:81]')
            a('s_memrealtime s[82:83]')
            a('s_lshl_b32 s30, s12, 2')
            a('s_add_u32 s30, s30, 0x3F30000')
            a('s_waitcnt lgkmcnt(0)')
            a('v_mov_b32 v99, s80')
            a('v_mov_b32 v98, s82')
            a('buffer_store_dword v99, off, s[8:11], s30')
            a('buffer_store_dword v98, off, s[8:11], s30 offset:256')
            a.label(l)
        if dev:
            ld = a.new('dv')
            a('s_cmp_eq_u32 s12, 40')
            a('s_cbranch_scc0 %s', ld)
            a('s_memtime s[80:81]')
            a('s_memrealtime s[82:83]')
            a('s_waitcnt lgkmcnt(0)')
            a('s_sub_u32 s78, s80, s78')
            a('s_sub_u32 s88, s82, s88')
            a('s_lshl_b32 s30, s5, 4')
            a('s_add_u32 s30, s30, s4')
            a('s_lshl_b32 s30, s30, 2')
            a('s_add_u32 s30, s30, s3')
            a('s_lshl_b32 s30, s30, 6')
            a('s_add_u32 s30, s30, 0x3F00000')
            for kk in range(13):
                a('v_mov_b32 v99, s%d', 64 + 2 * kk)
                a('buffer_store_dword v99, off, s[8:11], s30 offset:%d', 4 * kk)
                a('s_nop 1')
            a.label(ld)
        a('s_add_u32 s12, s12, 1')
        a('s_cmp_lt_u32 s12, 63')
        a('s_cbranch_scc1 %sloop%s', role, mode)
        if role == 'c':
            a('buffer_store_dword v%d, v11, s[8:11], s40 offen sc1', RT)
            if mode == 'F' and WB:
                l = a.new('wb')
                a('s_or_b32 s30, s3, s4')
                a('s_cbranch_scc1 %s', l)
                a('s_waitcnt vmcnt(0)')
                a('buffer_wbl2 sc1')
                a('s_waitcnt vmcnt(0)')
                a.label(l)
        if dev:
            a('s_memrealtime s[82:83]')
            a('s_waitcnt lgkmcnt(0)')
            a('s_lshl_b32 s30, s2, 4')
            a('s_add_u32 s30, s30, 0x3F10000')
            for kk, r in enumerate((90, 84, 82)):
                a('v_mov_b32 v99, s%d', r)
                a('buffer_store_dword v99, off, s[8:11], s30 offset:%d', 4 * kk)
                a('s_nop 1')
            amp = [x for x in dev if x.startswith('amp')]
            if amp and role == amp[0][3]:
                k = amp[0][4]
                if k == '1': a('s_sub_u32 s31, s84, s92'); a('s_mul_i32 s31, s31, 10')
                if k == '2': a('s_sub_u32 s31, s82, s84'); a('s_mul_i32 s31, s31, 2')
                if k == '3': a('s_sub_u32 s31, s90, s92'); a('s_mul_i32 s31, s31, 10')
                if k == '4': a('s_sub_u32 s31, s96, s92'); a('s_mul_i32 s31, s31, 10')
                if k == '0': a('s_mov_b32 s31, 2000')
                l = a.new('am')
                a.label(l)
                a('s_sleep 4')
                a('s_memrealtime s[80:81]')
                a('s_waitcnt lgkmcnt(0)')
                a('s_sub_u32 s30, s80, s82')
                a('s_cmp_lt_u32 s30, s31')
                a('s_cbranch_scc1 %s', l)
            if 'dbgt' in dev:
                l = a.new('dt')
                a('s_cmp_eq_u32 s4, 5')
                a('s_cbranch_scc0 %s', l)
                a('s_lshl_b32 s30, s5, 4')
                for kk, r in enumerate((90, 84, 82, 78)):
                    if r != 78: a('s_sub_u32 s31, s%d, s92', r)
                    else: a('s_mov_b32 s31, s78')
                    a('v_mov_b32 v99, s31')
                    a('buffer_store_dword v99, off, s[44:47], s30 offset:%d', 4 * kk)
                    a('s_nop 1')
                a.label(l)
        a('s_endpgm')
        for p in tails:
            a.label(p[1])
            if p[0] == 'dw':
                a('s_add_u32 s31, s12, 1')
                dwait('s31')
                a('s_branch %s', p[2])
            elif p[0] == 'd0':
                lp = a.new('dz')
                a('s_waitcnt vmcnt(0)')
                a('v_and_b32 v18, 1, v0')
                a('v_lshlrev_b32 v18, 2, v18')
                a('v_bfe_u32 v%d, v0, 1, 1', DB)
                a('v_lshl_add_u32 v%d, v%d, 7, v18', DB, DB)
                a('s_lshl_b32 s31, s4, 3')
                a('s_add_u32 s31, s31, 0x%x', DPROG)
                a('s_mov_b32 s14, 0')
                a.label(lp)
                a('buffer_load_dword v18, v%d, s[8:11], s31 offen sc1', DB)
                a('s_add_u32 s14, s14, 1')
                a('s_cmp_lt_u32 s14, %d', SPIN)
                a('s_cbranch_scc0 tdie')
                a('s_waitcnt vmcnt(0)')
                a('v_cmp_eq_u32 vcc, 0, v18')
                a('s_cbranch_vccnz %s', lp)
                for seg in range(2):
                    for tl in range(2):
                        if seg == 0: a('s_xor_b32 s31, s37, 0x18000')
                        else: a('s_mov_b32 s31, s37')
                        a('s_add_u32 m0, s31, %d', 16384 * tl)
                        a('s_add_u32 s31, s35, %d', 16384 * tl - (DSEG if seg == 0 else 0))
                        for i in range(4): a('buffer_load_dwordx4 v1, s[8:11], s31 offen offset:%d sc1 lds', 1024 * i)
                a('buffer_load_dword v18, off, s[8:11], s49 sc1')
                a('s_waitcnt vmcnt(9)')
                a('s_branch %s', p[2])
            elif p[0] == 'nv':
                for r in range(4): a('v_mov_b32 v%d, -1', 92 + r)
                a('s_waitcnt lgkmcnt(0)')
                a('s_barrier')
                a('buffer_store_dwordx4 v[92:95], v1, s[8:11], s24 offen' + SC)
                if 'xe' in dev: xdma()
                a('s_waitcnt vmcnt(%d)', 2 + (7 if 'xe' in dev else 0))
                a('s_barrier')
                if 'xe' not in dev and 'nox' not in dev: xdma()
                for r in range(ZN): a('v_mov_b32 v%d, 0', TACC + r)
                a('s_branch %s', p[2])
            elif p[0] == 'ns':
                a('s_waitcnt lgkmcnt(0)')
                a('s_barrier')
                a('s_barrier')
                a('s_branch %s', p[2])
    for mode in 'FS':
        for role in 'sc': loop(role, mode)
```

```python
from common import *
import fold
SPIN = 400000
XB = 28672 + 128
KT1 = 14336 + 64
DST = 'sc1'
DEV = False
W0 = True
IMM = True
LEAD = 6
BACKOFF = 24
MSLEEP = 2
DBGT = False
def tl(a, k):
    if DEV:
        a('s_memrealtime s[82:83]')
        a('s_waitcnt lgkmcnt(0)')
        a('s_lshl_b32 s84, s2, 4')
        a('s_add_u32 s84, s84, 0x3F10000')
        a('v_mov_b32 v4, s82')
        a('buffer_store_dword v4, off, s[8:11], s84 offset:%d', 4 * k)
        a('s_nop 1')

NSET_D, NSET_F, NSET_X, NSET_O = 2, 2, 4, 6

def lane_consts(a):
    a('v_lshlrev_b32 v1, 4, v0')
    a('v_and_b32 v2, 15, v0')
    a('v_lshrrev_b32 v3, 4, v0')

def x_setup(a, lx):
    a('s_mul_i32 s30, s3, 7168')
    a('s_mul_i32 s34, s12, %d', XSEG)
    a('s_add_u32 s34, s34, s30')
    a('s_add_u32 s34, s34, 0x%x', XF)
    a('s_lshr_b32 s31, s3, 1')
    a('s_lshl_b32 s31, s31, 6')
    a('s_add_u32 s36, s30, s31')
    a('s_add_u32 s36, s36, %d', lx)
    a('s_mov_b32 s50, %d', XB)

def x_dma(a):
    a('s_mov_b32 m0, s36')
    a('s_add_u32 s30, s34, 4096')
    for i in range(4): a('buffer_load_dwordx4 v1, s[8:11], s34 offen offset:%d sc1 lds', 1024 * i)
    a('s_add_u32 m0, s36, 4096')
    a('s_nop 0')
    for i in range(3): a('buffer_load_dwordx4 v1, s[8:11], s30 offen offset:%d sc1 lds', 1024 * i)

def x_next(a, nset):
    a('s_add_u32 s34, s34, %d', XSEG * nset)
    a('s_add_u32 s36, s36, s50')

def perm_rows_addr(a, dst, lx, gmul_shift, tmp):
    a('v_lshrrev_b32 v%d, 3, v2', tmp)
    a('s_movk_i32 s30, %d', KT1)
    a('v_mul_u32_u24 v%d, s30, v%d', dst, tmp)
    a('v_bfe_u32 v%d, v0, 2, 1', tmp)
    a('v_lshl_add_u32 v%d, v%d, 7, v%d', dst, tmp, dst)
    a('v_and_b32 v%d, 3, v0', tmp)
    a('v_lshl_add_u32 v%d, v%d, 4, v%d', dst, tmp, dst)
    a('v_add_u32 v%d, %d, v%d', dst, lx, dst)

def publish(a, word_sgpr_off, val):
    l = a.new('pb')
    a('s_cmp_eq_u32 s3, 0')
    a('s_cbranch_scc0 %s', l)
    a('v_mov_b32 v4, %s', val)
    a('v_mov_b32 v5, 0')
    a('buffer_store_dword v4, v5, s[8:11], %s offen sc1', word_sgpr_off)
    a.label(l)

def sg_loop(a, name, nset, nst, mfma_fn, epi_fn, rd_fn, tail_fn=None, jord=None, mid_fn=None):
    XR = 64
    x_dma(a)
    a('s_mov_b32 s13, 0')
    a('s_waitcnt vmcnt(0)')
    tl(a, 1)
    a('s_branch %s_in', name)
    a.label(name + '_loop')
    a('s_waitcnt vmcnt(%d)', nst)
    a.label(name + '_in')
    a('s_barrier')
    x_next(a, nset)
    x_dma(a)
    jord = jord or list(range(14))
    def rd(j):
        for mt in range(2): rd_fn(XR + 8 * (j % 4) + 4 * mt, jord[j], mt)
    for j in range(3): rd(j)
    for j in range(14):
        if j + 3 < 14: rd(j + 3)
        a('s_waitcnt lgkmcnt(%d)', 2 * min(3, 13 - j))
        mfma_fn(jord[j], XR + 8 * (j % 4))
        if j == 7 and mid_fn: mid_fn()
        if j == 8:
            a('s_waitcnt vmcnt(7)')
            a('s_barrier')
            publish(a, 's35', 's13')
    a('v_add_u32 v6, s50, v6')
    a('s_sub_u32 s50, 0, s50')
    a('s_nop 6')
    epi_fn()
    a('s_add_u32 s13, s13, 1')
    a('s_add_u32 s12, s12, %d', nset)
    if tail_fn is not None:
        tail_fn()
        return
    a('s_cmp_lt_u32 s12, 64')
    a('s_cbranch_scc1 %s_loop', name)
    a('s_waitcnt vmcnt(0)')
    a('s_barrier')
    publish(a, 's35', 's13')
    tl(a, 2)
    a('s_endpgm')

def mem_fetch(a, KO, va0, va1):
    lp, ok = a.new('xm'), a.new('xk')
    a('s_mov_b32 s14, 0')
    a.label(lp)
    a('buffer_load_dwordx4 %s, v1, s[8:11], s32 offen sc1', V(KO, 4))
    a('buffer_load_dwordx4 %s, v1, s[8:11], s33 offen sc1', V(KO + 4, 4))
    a('s_waitcnt vmcnt(0)')
    a('v_max3_u32 v4, v%d, v%d, v%d', KO, KO + 1, KO + 2)
    a('v_max3_u32 v5, v%d, v%d, v%d', KO + 3, KO + 4, KO + 5)
    a('v_max3_u32 v4, v%d, v%d, v4', KO + 6, KO + 7)
    a('v_max_u32 v4, v4, v5')
    a('v_cmp_eq_u32 vcc, -1, v4')
    a('s_cbranch_vccz %s', ok)
    if MSLEEP: a('s_sleep %d', MSLEEP)
    a('s_add_u32 s14, s14, 1')
    a('s_cmp_lt_u32 s14, %d', SPIN)
    a('s_cbranch_scc1 %s', lp)
    a('s_endpgm')
    a.label(ok)
    a('ds_write_b128 v%d, %s', va0, V(KO, 4))
    a('ds_write_b128 v%d, %s', va1, V(KO + 4, 4))

def own_frags(a, lm, va0, va1):
    a('s_lshl_b32 s15, s3, 11')
    a('s_add_u32 s16, s15, 1024')
    a('s_cmp_eq_u32 s3, 3')
    a('s_cselect_b32 s16, 0, s16')
    a('s_add_u32 s31, s15, %d', lm)
    a('v_add_u32 v%d, s31, v1', va0)
    a('s_add_u32 s31, s16, %d', lm)
    a('v_add_u32 v%d, s31, v1', va1)

def gen_d(a, vtail=True):
    a.label('role_d')
    tl(a, 0)
    a('s_lshr_b32 s6, s30, 1')
    a('s_and_b32 s12, s30, 1')
    lane_consts(a)
    a('s_lshl_b32 s34, s3, 2')
    fold.wait_c_misc_w0(a, True) if W0 else fold.wait_part(a, FLG_C, 's34', 4, False)
    a('s_mul_i32 s33, s34, 28')
    a('s_add_u32 s33, s33, s6')
    a('s_mul_i32 s33, s33, 14336')
    a('s_add_u32 s33, s33, 0x%x', WF_C)
    a('s_mov_b32 s20, s33')
    a('s_mov_b32 s21, s34')
    def wpass(ps):
        for hh in range(4):
            for j in range(14):
                if (j >> 1) & 1 != ps: continue
                if j % 2 == 0: a('s_add_u32 s32, s20, %d', hh * 28 * 14336 + j * 1024)
                a('buffer_load_dwordx4 %s, v1, s[8:11], s32 offen offset:%d sc1', A((hh * 14 + j) * 4, 4), (j % 2) * 1024)
    wpass(0)
    fold.wait_c_misc_w0(a, False) if W0 else fold.wait_head_and_misc(a, FLG_C, 's21', 56, 24)
    wpass(1)
    def mid():
        l = a.new('md')
        a('s_cmp_eq_u32 s13, 0')
        a('s_cbranch_scc0 %s', l)
        fold.wait_head(a, FLG_C, 's21', 56, w0=False)
        wpass(1)
        a('s_waitcnt vmcnt(0)')
        a.label(l)
    x_setup(a, 0)
    perm_rows_addr(a, 6, 0, 0, 7)
    a('v_lshl_add_u32 v6, v3, 8, v6')
    a('s_lshl_b32 s35, s12, 7')
    a('s_lshl_b32 s31, s6, 2')
    a('s_add_u32 s35, s35, s31')
    a('s_add_u32 s35, s35, 0x%x', DPROG)
    ACC = 32
    def rd(b, j, mt): a('ds_read_b128 %s, v6 offset:%d', V(b, 4), j * 1024 + mt * 64)
    def mf(j, xb):
        for hh in range(4):
            for mt in range(2):
                c = ACC + (hh * 2 + mt) * 4
                a('v_mfma_f32_16x16x32_bf16 %s, %s, %s, %s', V(c, 4), V(xb + 4 * mt, 4), A((hh * 14 + j) * 4, 4), V(c, 4) if j else '0')
    def epi():
        a('s_mul_i32 s30, s12, %d', DSEG)
        a('s_lshl_b32 s31, s6, 14')
        a('s_add_u32 s30, s30, s31')
        a('s_lshl_b32 s31, s3, 12')
        a('s_add_u32 s30, s30, s31')
        a('s_add_u32 s30, s30, 0x%x', DD)
        for hh in range(4):
            c = ACC + hh * 8
            o = 96 + 4 * hh
            for d in range(4): a('v_cvt_pk_bf16_f32 v%d, v%d, v%d', o + d, c + 2 * d, c + 2 * d + 1)
            a('buffer_store_dwordx4 %s, v1, s[8:11], s30 offen offset:%d %s', V(o, 4), 1024 * hh, DST)
    def vsetup():
        LM = 65536
        own_frags(a, LM, 9, 10)
        a('v_lshrrev_b32 v4, 1, v3')
        a('v_lshlrev_b32 v8, 8, v4')
        a('v_bfe_u32 v4, v0, 1, 2')
        a('v_lshl_add_u32 v8, v4, 6, v8')
        a('v_and_b32 v4, 1, v0')
        a('v_lshl_add_u32 v8, v4, 4, v8')
        a('v_and_b32 v4, 1, v3')
        a('v_lshl_add_u32 v8, v4, 3, v8')
        a('v_add_u32 v8, %d, v8', LM)
        a('v_lshlrev_b32 v11, 4, v2')
        a('v_lshl_add_u32 v11, v4, 3, v11')
        a('v_lshrrev_b32 v4, 1, v3')
        a('v_lshl_add_u32 v11, v4, 8, v11')
        a('v_cmp_gt_u32 s[60:61], 32, v0')
        a('s_mov_b32 s17, s12')
        a('s_lshl_b32 s19, s12, 9')
        a('s_lshl_b32 s31, s6, 4')
        a('s_add_u32 s19, s19, s31')
        a('s_lshl_b32 s31, s3, 2')
        a('s_add_u32 s19, s19, s31')
        a('s_add_u32 s19, s19, 0x%x', VPROG)
        a('s_mov_b32 s18, 0')
    def tail():
        if IMM:
            l = a.new('fp')
            a('s_cmp_eq_u32 s13, 1')
            a('s_cbranch_scc0 %s', l)
            a('s_waitcnt vmcnt(0)')
            a('s_barrier')
            publish(a, 's35', 's13')
            tl(a, 2)
            a.label(l)
        a('s_cmp_le_u32 s13, %d', LEAD)
        a('s_cbranch_scc1 rd_loop')
        a.label('rv_loop')
        a('s_mul_i32 s39, s17, %d', UNIT)
        a('s_add_u32 s39, s39, 0x%x', MEME)
        a('s_add_u32 s32, s39, s15')
        a('s_add_u32 s33, s39, s16')
        mem_fetch(a, 64, 9, 10)
        a('s_waitcnt lgkmcnt(0)')
        a('s_barrier')
        publish(a, 's35', 's13')
        AF = 120
        def ard(j):
            if j % 2 == 0 and j: a('v_add_u32 v8, 1024, v8')
            for qq in range(2):
                o = 128 * (j & 1) + qq
                a('ds_read2_b32 %s, v8 offset0:%d offset1:%d', V(AF + 4 * j + 2 * qq, 2), o, o + 8)
        for j in range(3): ard(j)
        for j in range(14):
            if j + 3 < 14: ard(j + 3)
            a('s_waitcnt lgkmcnt(%d)', 2 * min(3, 13 - j))
            for hh in range(4):
                c = ACC + hh * 4
                a('v_mfma_f32_16x16x32_bf16 %s, %s, %s, %s', V(c, 4), V(AF + 4 * j, 4), A((hh * 14 + j) * 4, 4), V(c, 4) if j else '0')
        a('v_subrev_u32 v8, 6144, v8')
        for r in (8, 9, 10): a('v_xor_b32 v%d, 0x2000, v%d', r, r)
        a('s_mul_i32 s30, s17, %d', VSLOT)
        a('s_lshl_b32 s31, s6, 12')
        a('s_add_u32 s30, s30, s31')
        a('s_lshl_b32 s31, s3, 10')
        a('s_add_u32 s30, s30, s31')
        a('s_add_u32 s30, s30, 0x%x', VE)
        a('s_add_u32 s18, s18, 1')
        a('s_nop 1')
        for hp in range(2):
            c = ACC + hp * 8
            for r in range(4): a('v_cndmask_b32 v%d, v%d, v%d, s[60:61]', c + r, c + 4 + r, c + r)
            a('v_cvt_pk_bf16_f32 v%d, v%d, v%d', 96 + 2 * hp, c, c + 1)
            a('v_cvt_pk_bf16_f32 v%d, v%d, v%d', 97 + 2 * hp, c + 2, c + 3)
            a('buffer_store_dwordx2 %s, v11, s[8:11], s30 offen offset:%d sc1', V(96 + 2 * hp, 2), 512 * hp)
        a('v_mov_b32 v4, s18')
        a('s_waitcnt vmcnt(0)')
        a('buffer_store_dword v4, off, s[8:11], s19 sc1')
        a('s_add_u32 s17, s17, %d', NSET_D)
        a('s_cmp_lt_u32 s12, 64')
        a('s_cbranch_scc1 rd_loop')
        a('s_cmp_lt_u32 s17, 64')
        a('s_cbranch_scc1 rv_loop')
        tl(a, 3)
        a('s_endpgm')
    vsetup()
    sg_loop(a, 'rd', NSET_D, 4, mf, epi, rd, tail if vtail else None)

def gen_f1(a):
    a.label('role_f1')
    tl(a, 0)
    a('s_lshr_b32 s6, s30, 1')
    a('s_and_b32 s12, s30, 1')
    a('s_load_dwordx4 s[56:59], s[0:1], %d', KA['wg'])
    lane_consts(a)
    RS = 272
    a('s_lshl_b32 s31, s3, 2')
    a('v_add_u32 v4, s31, v3')
    a('s_movk_i32 s30, 3584')
    a('v_mul_u32_u24 v5, s30, v4')
    a('v_lshl_add_u32 v5, v2, 4, v5')
    a('s_movk_i32 s30, %d', RS)
    a('v_mul_u32_u24 v7, s30, v4')
    a('v_lshl_add_u32 v7, v2, 4, v7')
    a('v_add_u32 v8, %d, v7', 14 * 16 * RS)
    a('v_lshrrev_b32 v9, 2, v2')
    a('v_lshl_add_u32 v9, v3, 3, v9')
    a('v_mul_u32_u24 v9, s30, v9')
    a('v_and_b32 v4, 3, v0')
    a('v_lshl_add_u32 v9, v4, 4, v9')
    a('s_lshl_b32 s31, s3, 6')
    a('v_add_u32 v9, s31, v9')
    a('v_add_u32 v10, %d, v9', 7 * 32 * RS)
    a('s_waitcnt lgkmcnt(0)')
    a.srd(16, 56, FBYTES)
    a.srd(20, 58, FBYTES)
    ST = 16
    for mat in range(2):
        a('s_lshl_b32 s31, s6, 8')
        for p in range(28):
            a('buffer_load_dwordx4 %s, v5, s[%d:%d], s31 offen', V(ST + (mat * 28 + p) * 4, 4), 16 + 4 * mat, 19 + 4 * mat)
            if p < 27: a('s_add_u32 s31, s31, %d', 16 * 3584)
    for mat in range(2):
        a('s_waitcnt vmcnt(%d)', 28 if mat == 0 else 0)
        for p in range(28):
            a('ds_write_b128 v%d, %s offset:%d', 7 if p < 14 else 8, V(ST + (mat * 28 + p) * 4, 4), (p % 14) * 16 * RS)
        a('s_waitcnt lgkmcnt(0)')
        a('s_barrier')
        for u in range(2):
            for j in range(14):
                b = ((mat * 2 + u) * 14 + j) * 4
                o = (j % 7) * 32 * RS + u * 8
                a('ds_read_b64_tr_b16 %s, v%d offset:%d', A(b, 2), 9 if j < 7 else 10, o)
                a('ds_read_b64_tr_b16 %s, v%d offset:%d', A(b + 2, 2), 9 if j < 7 else 10, o + 4 * RS)
        a('s_waitcnt lgkmcnt(0)')
        a('s_barrier')
    x_setup(a, 0)
    a('v_mov_b32 v6, v1')
    a('s_lshl_b32 s35, s12, 7')
    a('s_lshl_b32 s31, s6, 2')
    a('s_add_u32 s35, s35, s31')
    a('s_add_u32 s35, s35, 0x%x', HPROG)
    ACC = 32
    def rd(b, j, tt): a('ds_read_b128 %s, v6 offset:%d', V(b, 4), j * 1024 + tt * KT1)
    def mf(j, xb):
        for q in range(4):
            for tt in range(2):
                c = ACC + (tt * 4 + q) * 4
                a('v_mfma_f32_16x16x32_bf16 %s, %s, %s, %s', V(c, 4), A((q * 14 + j) * 4, 4), V(xb + 4 * tt, 4), V(c, 4) if j else '0')
    def epi():
        a('s_mul_i32 s30, s12, %d', VSLOT)
        a('s_lshl_b32 s31, s6, 12')
        a('s_add_u32 s30, s30, s31')
        a('s_lshl_b32 s31, s3, 10')
        a('s_add_u32 s30, s30, s31')
        a('s_add_u32 s30, s30, 0x%x', H1)
        a('s_add_u32 s31, s30, 57344')
        for tt in range(2):
            g = ACC + tt * 16
            u = g + 8
            t = 104
            for i in range(8): a('v_mul_f32 v%d, 0x%x, v%d', t + i, fbits(-LOG2E), g + i)
            for i in range(8): a('v_exp_f32 v%d, v%d', t + i, t + i)
            for i in range(8): a('v_mul_f32 v%d, v%d, v%d', u + i, u + i, g + i)
            for i in range(8): a('v_add_f32 v%d, 1.0, v%d', t + i, t + i)
            for i in range(8): a('v_rcp_f32 v%d, v%d', t + i, t + i)
            a('s_nop 0')
            for i in range(8): a('v_mul_f32 v%d, v%d, v%d', u + i, u + i, t + i)
            o = 96 + 4 * tt
            for d in range(4): a('v_cvt_pk_bf16_f32 v%d, v%d, v%d', o + d, u + 2 * d, u + 2 * d + 1)
            a('buffer_store_dwordx4 %s, v1, s[8:11], s%d offen sc1', V(o, 4), 30 + tt)
    sg_loop(a, 'rf', NSET_F, 2, mf, epi, rd)

def poll_ge(a, voff, soff, vthr, tmp):
    lp, ok, near = a.new('pl'), a.new('pk'), a.new('pn')
    a('s_mov_b32 s14, 0')
    a.label(lp)
    a('buffer_load_dword v%d, v%d, s[8:11], %s offen sc1', tmp, voff, soff)
    a('s_waitcnt vmcnt(0)')
    a('v_cmp_lt_u32 vcc, v%d, v%d', tmp, vthr)
    a('s_cbranch_vccz %s', ok)
    if BACKOFF:
        a('v_add_u32 v%d, 1, v%d', tmp, tmp)
        a('v_cmp_lt_u32 vcc, v%d, v%d', tmp, vthr)
        a('s_cbranch_vccz %s', near)
        a('s_sleep %d', BACKOFF)
        a.label(near)
        a('s_sleep 1')
    else: a('s_sleep 4')
    a('s_add_u32 s14, s14, 1')
    a('s_cmp_lt_u32 s14, %d', SPIN)
    a('s_cbranch_scc1 %s', lp)
    a('s_endpgm')
    a.label(ok)

def gen_xs(a):
    LX, LM, LP = 0, 2 * XB, 2 * XB + 7168
    a.label('role_xs')
    tl(a, 0)
    a('s_mul_i32 s4, s30, %d', 65536 // NSET_X + 1)
    a('s_lshr_b32 s4, s4, 16')
    a('s_mul_i32 s31, s4, %d', NSET_X)
    a('s_sub_u32 s12, s30, s31')
    lane_consts(a)
    def W(t, j):
        i = t * 14 + j
        return A(4 * i, 4) if i < 64 else V(120 + 4 * (i - 64), 4)
    a('s_mul_i32 s31, s4, 28')
    a('s_mul_i32 s32, s3, 7')
    a('s_add_u32 s31, s31, s32')
    a('s_mul_i32 s31, s31, 14336')
    if WF_A: a('s_add_u32 s31, s31, 0x%x', WF_A)
    for i in range(98):
        if i % 4 == 0 and i: a('s_add_u32 s31, s31, 4096')
        a('buffer_load_dwordx4 %s, v1, s[8:11], s31 offen offset:%d sc1', W(i // 14, i % 14), (i % 4) * 1024)
        if i >= 48 and i % 8 == 0: a('s_waitcnt vmcnt(40)')
    x_setup(a, LX)
    a('v_add_u32 v6, %d, v1', LX) if LX else a('v_mov_b32 v6, v1')
    perm_rows_addr(a, 7, LX, 0, 4)
    a('v_lshrrev_b32 v4, 1, v3')
    a('s_mul_i32 s31, s3, 14')
    a('v_add_u32 v4, s31, v4')
    a('v_lshl_add_u32 v7, v4, 8, v7')
    a('v_and_b32 v4, 1, v3')
    a('v_lshl_add_u32 v7, v4, 3, v7')
    a('v_bfe_u32 v4, v0, 1, 2')
    a('v_lshlrev_b32 v8, 6, v4')
    a('v_and_b32 v4, 1, v0')
    a('v_lshl_add_u32 v8, v4, 4, v8')
    a('v_lshl_add_u32 v8, v3, 2, v8')
    a('s_mul_i32 s31, s3, 1792')
    a('s_add_u32 s31, s31, %d', LM)
    a('v_add_u32 v8, s31, v8')
    own_frags(a, LM, 9, 10)
    a('s_mul_i32 s31, s3, 6144')
    a('s_add_u32 s31, s31, %d', LP)
    a('v_add_u32 v11, s31, v1')
    a('s_lshl_b32 s31, s3, 10')
    a('s_add_u32 s31, s31, %d', LP)
    a('v_add_u32 v12, s31, v1')
    a('s_lshl_b32 s31, s3, 4')
    a('v_add_u32 v4, s31, v2')
    a('v_lshlrev_b32 v5, 3, v3')
    a('v_sub_u32 v4, v4, v5')
    for i in range(8): a('v_cmp_gt_i32 s[%d:%d], %d, v4', 64 + 2 * i, 65 + 2 * i, i)
    a('v_cmp_gt_u32 vcc, 2, v3')
    a('v_mov_b32 v13, 0xff800000')
    a('s_nop 0')
    a('v_cndmask_b32 v14, 0, 1.0, vcc')
    a('s_lshl_b32 s31, s4, 11')
    a('s_lshl_b32 s32, s3, 10')
    a('s_add_u32 s31, s31, s32')
    a('v_add_u32 v15, s31, v1')
    a('s_lshr_b32 s31, s4, 2')
    a('s_lshl_b32 s31, s31, 11')
    a('s_add_u32 s31, s31, s32')
    a('s_and_b32 s32, s4, 3')
    a('s_lshl_b32 s32, s32, 8')
    a('s_add_u32 s31, s31, s32')
    a('s_add_u32 s31, s31, 32768')
    a('v_and_b32 v4, 1, v3')
    a('v_lshlrev_b32 v16, 4, v2')
    a('v_lshl_add_u32 v16, v4, 3, v16')
    a('v_add_u32 v16, s31, v16')
    a('s_lshl_b32 s35, s12, 7')
    a('s_lshl_b32 s31, s4, 3')
    a('s_add_u32 s35, s35, s31')
    a('s_lshl_b32 s31, s3, 2')
    a('s_add_u32 s35, s35, s31')
    a('s_add_u32 s35, s35, 0x%x', XPROG)
    a('v_mov_b32 v17, 0')
    a('s_mov_b32 s13, 0')
    x_dma(a)
    ACC, XR, SA, KO = 20, 76, 92, 76
    if DEV: a('s_waitcnt vmcnt(0)')
    tl(a, 1)
    a.label('rx_loop')
    a('s_waitcnt vmcnt(0)')
    a('s_barrier')
    x_next(a, NSET_X)
    x_dma(a)
    def rd(j):
        for tt in range(2): a('ds_read_b128 %s, v6 offset:%d', V(XR + 8 * (j & 1) + 4 * tt, 4), j * 1024 + tt * KT1)
    rd(0)
    for j in range(14):
        if j + 1 < 14: rd(j + 1)
        a('s_waitcnt lgkmcnt(%d)', 2 if j < 13 else 0)
        for t in range(7):
            for tt in range(2):
                c = ACC + (t * 2 + tt) * 4
                a('v_mfma_f32_16x16x32_bf16 %s, %s, %s, %s', V(c, 4), W(t, j), V(XR + 8 * (j & 1) + 4 * tt, 4), V(c, 4) if j else '0')
    a('s_mul_i32 s39, s12, %d', UNIT)
    a('s_add_u32 s39, s39, 0x%x', MEME)
    a('s_add_u32 s32, s39, s15')
    a('s_add_u32 s33, s39, s16')
    def krd(t):
        for ku in range(2): a('ds_read_b64 %s, v7 offset:%d', V(KO + 4 * (t % 4) + 2 * ku, 2), t * 512 + ku * 64)
    for t in range(3): krd(t)
    a('s_nop 2')
    for i in range(14):
        c = ACC + 4 * i
        a('v_cvt_pk_bf16_f32 v%d, v%d, v%d', c, c, c + 1)
        a('v_cvt_pk_bf16_f32 v%d, v%d, v%d', c + 1, c + 2, c + 3)
    a('s_nop 1')
    for t in range(7):
        if t + 3 < 7: krd(t + 3)
        a('s_waitcnt lgkmcnt(%d)', 2 * min(3, 6 - t))
        for ku in range(2):
            for tt in range(2):
                c = SA + (ku * 2 + tt) * 4
                a('v_mfma_f32_16x16x16_bf16 %s, %s, %s, %s', V(c, 4), V(KO + 4 * (t % 4) + 2 * ku, 2), V(ACC + (t * 2 + tt) * 4, 2), V(c, 4) if t else '0')
    a('v_add_u32 v6, s50, v6')
    a('v_add_u32 v7, s50, v7')
    a('s_sub_u32 s50, 0, s50')
    mem_fetch(a, KO, 9, 10)
    for b in range(4): a('ds_write_b128 v11, %s offset:%d', V(SA + 4 * b, 4), 1024 * b)
    a('s_waitcnt lgkmcnt(0)')
    a('s_barrier')
    for t in range(7):
        a('ds_read_b32 v%d, v8 offset:%d', KO + 2 * t, 256 * t)
        a('ds_read_b32 v%d, v8 offset:%d', KO + 2 * t + 1, 256 * t + 32)
    for t in range(7):
        a('s_waitcnt lgkmcnt(%d)', 2 * (6 - t))
        for tt in range(2):
            c = SA + 16 + tt * 4
            a('v_mfma_f32_16x16x16_bf16 %s, %s, %s, %s', V(c, 4), V(KO + 2 * t, 2), V(ACC + (t * 2 + tt) * 4, 2), V(c, 4) if t else '0')
    a('s_nop 7')
    for b in (4, 5): a('ds_write_b128 v11, %s offset:%d', V(SA + 4 * b, 4), 1024 * b)
    a('s_waitcnt lgkmcnt(0)')
    a('s_barrier')
    lsk = a.new('xs')
    a('s_add_u32 s13, s13, 1')
    a('s_cmp_lt_u32 s3, 2')
    a('s_cbranch_scc0 %s', lsk)
    R = 20
    for w in range(4):
        for b in range(3): a('ds_read_b128 %s, v12 offset:%d', V(R + 12 * w + 4 * b, 4), 6144 * w + 2048 * b)
    a('s_mul_i32 s30, s12, %d', PXSEG)
    a('s_add_u32 s30, s30, 0x%x', PX)
    for w in range(1, 4):
        a('s_waitcnt lgkmcnt(%d)', 3 * (3 - w))
        for i in range(6): a('v_pk_add_f32 %s, %s, %s', V(R + 2 * i, 2), V(R + 2 * i, 2), V(R + 12 * w + 2 * i, 2))
    for i in range(8): a('v_cndmask_b32 v%d, v%d, v13, s[%d:%d]', R + i, R + i, 64 + 2 * i, 65 + 2 * i)
    a('v_max3_f32 v4, v%d, v%d, v%d', R, R + 1, R + 2)
    for i in range(3, 11, 2): a('v_max3_f32 v4, v%d, v%d, v4', R + i, R + i + 1)
    a('v_max_f32 v4, v%d, v4', R + 11)
    def xred(op):
        for sw in ('v_permlane32_swap_b32', 'v_permlane16_swap_b32'):
            a('v_mov_b32 v5, v4')
            a('s_nop 1')
            a('%s v4, v5', sw)
            a('%s v4, v4, v5', op)
    xred('v_max_f32')
    for i in range(12): a('v_sub_f32 v%d, v%d, v4', R + i, R + i)
    for i in range(12): a('v_exp_f32 v%d, v%d', R + i, R + i)
    a('v_add_f32 v4, v%d, v%d', R, R + 1)
    for i in range(2, 8): a('v_add_f32 v4, v%d, v4', R + i)
    for i in range(8, 12): a('v_fmac_f32 v4, v%d, v14', R + i)
    xred('v_add_f32')
    a('v_rcp_f32 v4, v4')
    a('s_nop 0')
    for i in range(12): a('v_mul_f32 v%d, v%d, v4', R + i, R + i)
    for d in range(6): a('v_cvt_pk_bf16_f32 v%d, v%d, v%d', 40 + d, R + 2 * d, R + 2 * d + 1)
    a('buffer_store_dwordx4 v[40:43], v15, s[8:11], s30 offen sc1')
    a('buffer_store_dwordx2 v[44:45], v16, s[8:11], s30 offen sc1')
    a('v_mov_b32 v4, s13')
    a('s_waitcnt vmcnt(0)')
    a('buffer_store_dword v4, v17, s[8:11], s35 offen sc1')
    a.label(lsk)
    a('s_add_u32 s12, s12, %d', NSET_X)
    a('s_cmp_lt_u32 s12, 64')
    a('s_cbranch_scc1 rx_loop')
    tl(a, 2)
    a('s_endpgm')

def gen_fin(a):
    a.label('role_fin')
    tl(a, 0)
    a('s_mul_i32 s12, s30, 9363')
    a('s_lshr_b32 s12, s12, 16')
    a('s_mul_i32 s31, s12, 7')
    a('s_sub_u32 s6, s30, s31')
    a('s_load_dwordx2 s[56:57], s[0:1], %d', KA['wd'])
    a('s_load_dwordx2 s[58:59], s[0:1], %d', KA['out'])
    lane_consts(a)
    RS = 144
    a('v_lshrrev_b32 v4, 3, v0')
    a('v_and_b32 v5, 7, v0')
    a('s_movk_i32 s30, 896')
    a('v_mul_u32_u24 v6, s30, v4')
    a('v_lshl_add_u32 v6, v5, 4, v6')
    a('s_movk_i32 s30, %d', RS)
    a('v_mul_u32_u24 v7, s30, v4')
    a('v_lshl_add_u32 v7, v5, 4, v7')
    a('s_mul_i32 s31, s3, %d', 224 * RS)
    a('v_add_u32 v7, s31, v7')
    a('v_lshrrev_b32 v8, 2, v2')
    a('v_lshl_add_u32 v8, v3, 3, v8')
    a('v_mul_u32_u24 v8, s30, v8')
    a('v_and_b32 v4, 3, v0')
    a('v_lshl_add_u32 v8, v4, 3, v8')
    a('v_add_u32 v8, s31, v8')
    a('s_waitcnt lgkmcnt(0)')
    a.srd(16, 56, FBYTES)
    a.srd(20, 58, XBYTES)
    ST = 16
    a('s_mul_i32 s31, s3, %d', 448 * 896)
    a('s_lshl_b32 s32, s6, 7')
    a('s_add_u32 s31, s31, s32')
    for p in range(56):
        a('buffer_load_dwordx4 %s, v6, s[16:19], s31 offen', V(ST + 4 * p, 4))
        if p < 55: a('s_add_u32 s31, s31, %d', 8 * 896)
    for rnd in range(2):
        a('s_waitcnt vmcnt(%d)', 28 if rnd == 0 else 0)
        for p in range(28): a('ds_write_b128 v7, %s offset:%d', V(ST + 4 * (rnd * 28 + p), 4), p * 8 * RS)
        for jj in range(7):
            for t in range(4):
                b = ((rnd * 7 + jj) * 4 + t) * 4
                a('ds_read_b64_tr_b16 %s, v8 offset:%d', A(b, 2), jj * 32 * RS + t * 32)
                a('ds_read_b64_tr_b16 %s, v8 offset:%d', A(b + 2, 2), jj * 32 * RS + t * 32 + 4 * RS)
            a('s_waitcnt lgkmcnt(0)')
    a('s_barrier')
    tl(a, 1)
    a('v_lshlrev_b32 v4, 2, v0')
    a('s_lshl_b32 s31, s6, 4')
    a('s_sub_u32 s31, s31, 56')
    a('v_add_u32 v5, s31, v4')
    a('v_add_u32 v4, %d, v4', HPROG - CNT)
    a('v_cmp_gt_u32 vcc, 14, v0')
    a('s_nop 1')
    a('v_cndmask_b32 v4, v5, v4, vcc')
    a('v_cmp_gt_u32 vcc, 18, v0')
    a('v_mov_b32 v5, %d', HPROG - CNT)
    a('s_nop 0')
    a('v_cndmask_b32 v4, v5, v4, vcc')
    a('v_and_b32 v5, 7, v0')
    a('v_lshlrev_b32 v5, 2, v5')
    a('s_lshl_b32 s31, s3, 5')
    a('s_add_u32 s31, s31, %d', XPROG - CNT)
    a('v_add_u32 v5, s31, v5')
    a('v_and_b32 v6, 3, v0')
    a('v_lshlrev_b32 v6, 4, v6')
    a('s_lshl_b32 s31, s3, 2')
    a('s_lshl_b32 s32, s6, 6')
    a('s_add_u32 s31, s31, s32')
    a('s_add_u32 s31, s31, %d', VPROG - CNT)
    a('v_add_u32 v6, s31, v6')
    a('v_cmp_gt_u32 s[60:61], 8, v2')
    a('v_lshlrev_b32 v8, 2, v2')
    RO = 272
    a('s_lshl_b32 s31, s3, 5')
    a('v_add_u32 v9, s31, v2')
    a('s_movk_i32 s30, %d', RO)
    a('v_mul_u32_u24 v9, s30, v9')
    a('v_lshl_add_u32 v9, v3, 4, v9')
    a('v_lshrrev_b32 v12, 3, v0')
    a('s_lshl_b32 s31, s3, 3')
    a('v_add_u32 v12, s31, v12')
    a('v_mul_u32_u24 v10, s30, v12')
    a('v_and_b32 v13, 7, v0')
    a('v_lshl_add_u32 v10, v13, 5, v10')
    a('s_movk_i32 s30, 896')
    a('v_mul_u32_u24 v11, s30, v12')
    a('v_lshl_add_u32 v11, v13, 4, v11')
    a('s_mov_b32 s50, %d', 128 * RO)
    HF, DF, AB, AA, GR = 16, 128, 192, 224, 14
    a.label('ro_loop')
    a('s_and_b32 s30, s12, 1')
    a('s_lshl_b32 s30, s30, 7')
    a('s_add_u32 s30, s30, 0x%x', CNT)
    a('s_lshr_b32 s31, s12, 1')
    a('s_add_u32 s31, s31, 1')
    a('v_mov_b32 v12, s31')
    poll_ge(a, 4, 's30', 12, 13)
    a('s_mul_i32 s30, s12, %d', VSLOT)
    a('s_mul_i32 s31, s3, 14336')
    a('s_add_u32 s30, s30, s31')
    a('s_add_u32 s30, s30, 0x%x', H1)
    for jj in range(14):
        if jj % 4 == 0:
            a('s_add_u32 s32, s30, %d', jj * 1024)
            a('s_add_u32 s33, s30, %d', jj * 1024 + 57344)
        for tt in range(2):
            a('buffer_load_dwordx4 %s, v1, s[8:11], s%d offen offset:%d sc1', V(HF + (jj * 2 + tt) * 4, 4), 32 + tt, (jj % 4) * 1024)
    a('s_mul_i32 s30, s12, %d', DSEG)
    a('s_lshl_b32 s31, s6, 16')
    a('s_add_u32 s30, s30, s31')
    a('s_lshl_b32 s31, s3, 12')
    a('s_add_u32 s30, s30, s31')
    a('s_add_u32 s30, s30, 0x%x', DD)
    for t in range(4):
        for hh in range(4):
            a('buffer_load_dwordx4 %s, v1, s[8:11], s30 offen offset:%d sc1', V(DF + (t * 4 + hh) * 4, 4), hh * 1024)
        if t < 3: a('s_add_u32 s30, s30, 16384')
    a('s_lshl_b32 s30, s12, 7')
    a('s_add_u32 s30, s30, 0x%x', GG)
    for tt in range(2): a('buffer_load_dword v%d, v8, s[8:11], s30 offen offset:%d sc1', GR + tt, 64 * tt)
    for jj in range(14):
        a('s_waitcnt vmcnt(%d)', 18 + 2 * (13 - jj))
        for tt in range(2):
            for t in range(4):
                c = AB + (t * 2 + tt) * 4
                a('v_mfma_f32_16x16x32_bf16 %s, %s, %s, %s', V(c, 4), A((jj * 4 + t) * 4, 4), V(HF + (jj * 2 + tt) * 4, 4), V(c, 4) if jj else '0')
    a('s_mul_i32 s31, s12, %d', 65536 // NSET_X + 1)
    a('s_lshr_b32 s31, s31, 16')
    a('s_mul_i32 s32, s31, %d', NSET_X)
    a('s_sub_u32 s32, s12, s32')
    a('s_lshl_b32 s32, s32, 7')
    a('v_add_u32 v12, s32, v5')
    a('s_and_b32 s32, s12, 1')
    a('s_lshl_b32 s32, s32, 9')
    a('v_add_u32 v13, s32, v6')
    a('v_cndmask_b32 v%d, v13, v12, s[60:61]', HF)
    a('s_add_u32 s31, s31, 1')
    a('s_lshr_b32 s32, s12, 1')
    a('s_add_u32 s32, s32, 1')
    a('v_mov_b32 v12, s31')
    a('v_mov_b32 v13, s32')
    a('v_cndmask_b32 v12, v13, v12, s[60:61]')
    a('s_mov_b32 s30, 0x%x', CNT)
    poll_ge(a, HF, 's30', 12, 13)
    PF, PM, VF = 20, 52, 60
    a('s_mul_i32 s30, s12, %d', PXSEG)
    a('s_add_u32 s30, s30, 0x%x', PX)
    a('s_lshl_b32 s31, s3, 13')
    a('s_add_u32 s31, s31, s30')
    a('s_add_u32 s32, s31, 4096')
    for i in range(8):
        a('buffer_load_dwordx4 %s, v1, s[8:11], s%d offen offset:%d sc1', V(PF + 4 * i, 4), 31 + (i >> 2), (i & 3) * 1024)
    a('s_lshl_b32 s31, s3, 11')
    a('s_add_u32 s31, s31, s30')
    a('s_add_u32 s31, s31, 32768')
    for tt in range(2): a('buffer_load_dwordx4 %s, v1, s[8:11], s31 offen offset:%d sc1', V(PM + 4 * tt, 4), 1024 * tt)
    a('s_mul_i32 s30, s12, %d', VSLOT)
    a('s_lshl_b32 s31, s3, 10')
    a('s_add_u32 s30, s30, s31')
    a('s_lshl_b32 s31, s6, 14')
    a('s_add_u32 s30, s30, s31')
    a('s_add_u32 s30, s30, 0x%x', VE)
    for t in range(4):
        a('buffer_load_dwordx4 %s, v1, s[8:11], s30 offen sc1', V(VF + 4 * t, 4))
        if t < 3: a('s_add_u32 s30, s30, 4096')
    for hh in range(4):
        a('s_waitcnt vmcnt(%d)', 6 + 2 * (3 - hh))
        for tt in range(2):
            for t in range(4):
                c = AA + (t * 2 + tt) * 4
                a('v_mfma_f32_16x16x32_bf16 %s, %s, %s, %s', V(c, 4), V(DF + (t * 4 + hh) * 4, 4), V(PF + (hh * 2 + tt) * 4, 4), V(c, 4) if hh else '0')
    a('s_waitcnt vmcnt(0)')
    for t in range(4):
        for tt in range(2):
            c = AA + (t * 2 + tt) * 4
            a('v_mfma_f32_16x16x32_bf16 %s, %s, %s, %s', V(c, 4), V(VF + 4 * t, 4), V(PM + 4 * tt, 4), V(c, 4))
    a('s_mul_i32 s30, s12, %d', 32 * 896)
    a('s_lshl_b32 s31, s6, 7')
    a('s_add_u32 s30, s30, s31')
    for t in range(4):
        for tt in range(2):
            i = (t * 2 + tt) * 4
            for r in range(4): a('v_sub_f32 v%d, v%d, v%d', AA + i + r, AA + i + r, AB + i + r)
            for r in range(4): a('v_fmac_f32 v%d, v%d, v%d', AB + i + r, GR + tt, AA + i + r)
            a('ds_write_b128 v9, %s offset:%d', V(AB + i, 4), tt * 16 * RO + t * 64)
    a('s_waitcnt lgkmcnt(0)')
    a('s_barrier')
    for w in range(4):
        for hf in range(2): a('ds_read_b128 %s, v10 offset:%d', V(20 + 8 * w + 4 * hf, 4), w * 32 * RO + 16 * hf)
    a('v_add_u32 v9, s50, v9')
    a('v_add_u32 v10, s50, v10')
    a('s_sub_u32 s50, 0, s50')
    for w in range(1, 4):
        a('s_waitcnt lgkmcnt(%d)', 2 * (3 - w))
        for i in range(4): a('v_pk_add_f32 %s, %s, %s', V(20 + 2 * i, 2), V(20 + 2 * i, 2), V(20 + 8 * w + 2 * i, 2))
    for d in range(4): a('v_cvt_pk_bf16_f32 v%d, v%d, v%d', 56 + d, 20 + 2 * d, 21 + 2 * d)
    a('buffer_store_dwordx4 v[56:59], v11, s[20:23], s30 offen sc1')
    a('s_add_u32 s12, s12, %d', NSET_O)
    a('s_cmp_lt_u32 s12, 64')
    a('s_cbranch_scc1 ro_loop')
    if DEV: a('s_waitcnt vmcnt(0)')
    tl(a, 2)
    if DBGT:
        a('s_sub_u32 s82, s82, s92')
        a('v_mov_b32 v4, s82')
        a('v_mov_b32 v5, 32')
        a('buffer_atomic_umax v4, v5, s[44:47], 0 offen')
        for k in (1, 2, 3):
            a('s_sub_u32 s82, s%d, s92', 93 + k)
            a('v_mov_b32 v%d, s82', 6 + k)
            a('buffer_atomic_umax v%d, v5, s[44:47], 0 offen offset:%d', 6 + k, 4 * k)
    a('s_endpgm')
```

```python
from common import *
SPIN = 400000
DEV = False
ROT = True
DEPTH = 5
FINE = False
DBGT = False
OVERLAP = False
AFIRST = 16
BYK = True
WST = 'sc1'
LATEFLAG = False
LA, LB, LG = 0, 32768, 147456

def tl(a, k, base=0x3F20000):
    if DEV:
        a('s_memrealtime s[82:83]')
        a('s_waitcnt lgkmcnt(0)')
        a('s_lshl_b32 s84, s2, 4')
        a('s_add_u32 s84, s84, 0x%x', base)
        a('v_mov_b32 v250, s82')
        a('buffer_store_dword v250, off, s[8:11], s84 offset:%d', 4 * k)
        if DBGT and k:
            a('s_mov_b32 s%d, s82', 93 + k)

def rt(a, r):
    if FINE:
        a('s_memrealtime s[%d:%d]', r, r + 1)
        a('s_waitcnt lgkmcnt(0)')

def wait_words(a, voff, soff, width, wave0_only=True, R=244):
    lp, ok = a.new('ww'), a.new('wk')
    if wave0_only:
        a('s_cmp_eq_u32 s3, 0')
        a('s_cbranch_scc0 %s', ok)
    a('s_mov_b32 s14, 0')
    a.label(lp)
    srd = 's[44:47]' if soff is None else 's[8:11]'
    if width == 4:
        a('buffer_load_dwordx4 %s, %s, %s, %s offen sc1', V(R, 4), voff, srd, soff or '0')
        a('s_waitcnt vmcnt(0)')
        a('v_min3_u32 v%d, v%d, v%d, v%d', R, R, R + 1, R + 2)
        a('v_min_u32 v%d, v%d, v%d', R, R, R + 3)
    else:
        a('buffer_load_dword v%d, %s, %s, %s offen sc1', R, voff, srd, soff or '0')
        a('s_waitcnt vmcnt(0)')
    a('v_cmp_eq_u32 vcc, 0, v%d', R)
    a('s_cbranch_vccz %s', ok)
    a('s_sleep 3')
    a('s_add_u32 s14, s14, 1')
    a('s_cmp_lt_u32 s14, %d', SPIN)
    a('s_cbranch_scc1 %s', lp)
    a('s_endpgm')
    a.label(ok)
    if wave0_only: a('s_barrier')

def wait_all(a, base, n, R=244):
    a('v_min_u32 v%d, %d, v0', R - 1, n // 4 - 1)
    a('v_lshlrev_b32 v%d, 4, v%d', R - 1, R - 1)
    a('s_mov_b32 s31, 0x%x', base)
    wait_words(a, 'v%d' % (R - 1), 's31', 4, R=R)

def wait_head(a, base, hreg, n=14, R=244, w0=True):
    a('v_min_u32 v%d, %d, v0', R - 1, n - 1)
    a('v_lshlrev_b32 v%d, 2, v%d', R - 1, R - 1)
    a('s_mul_i32 s31, %s, 56', hreg)
    a('s_add_u32 s31, s31, 0x%x', base)
    wait_words(a, 'v%d' % (R - 1), 's31', 1, wave0_only=w0, R=R)

def set_flag(a, base, idx, younger=0, also=None):
    a('s_waitcnt vmcnt(%d)', younger)
    a('s_barrier')
    l = a.new('sf')
    a('s_cmp_eq_u32 s3, 0')
    a('s_cbranch_scc0 %s', l)
    a('s_lshl_b32 s31, %s, 2', idx)
    a('s_add_u32 s31, s31, 0x%x', base)
    a('v_mov_b32 v244, 1')
    a('buffer_store_dword v244, off, s[8:11], s31 sc1')
    if also:
        a('s_add_u32 s31, s31, %d', also - base)
        a('buffer_store_dword v244, off, s[8:11], s31 sc1')
    a.label(l)

def misc_loads(a):
    a('s_lshl_b32 s31, s3, 6')
    a('v_add_u32 v240, s31, v0')
    a('v_lshrrev_b32 v225, 3, v240')
    a('v_and_b32 v224, 7, v0')
    a('s_movk_i32 s31, 896')
    a('v_mul_u32_u24 v226, s31, v224')
    a('v_lshlrev_b32 v230, 4, v225')
    a('v_add_u32 v226, v226, v230')
    a('v_cmp_gt_u32 vcc, 192, v240')
    a('v_mov_b32 v227, 0x7000000')
    a('v_lshlrev_b32 v228, 4, v240')
    a('v_cndmask_b32 v227, v227, v226, vcc')
    a('s_mul_i32 s30, s2, 7168')
    a('buffer_load_dwordx4 v[208:211], v226, s[20:23], s30 offen')
    a('buffer_load_dwordx4 v[212:215], v227, s[20:23], s30 offen offset:512')
    a('buffer_load_dwordx4 v[216:219], v230, s[24:27], 0 offen')
    a('buffer_load_dwordx4 v[220:223], v230, s[24:27], 0 offen offset:512')
    return 4

def misc_rest(a):
    a('s_lshr_b32 s32, s2, 1')
    a('s_mul_i32 s32, s32, 14336')
    a('s_and_b32 s30, s2, 1')
    a('s_lshl_b32 s30, s30, 7')
    a('s_add_u32 s32, s32, s30')
    a('s_add_u32 s32, s32, 0x%x', XF)
    a('s_add_u32 s30, s32, 8192')
    a('v_cmp_gt_u32 vcc, 192, v240')
    a('v_lshlrev_b32 v233, 8, v225')
    a('v_lshl_add_u32 v233, v224, 4, v233')
    a('v_mov_b32 v232, 0x8000000')
    a('v_cndmask_b32 v232, v232, v233, vcc')
    a('buffer_store_dwordx4 v[208:211], v233, s[8:11], s32 offen sc1')
    a('buffer_store_dwordx4 v[212:215], v232, s[8:11], s30 offen sc1')
    a('v_mov_b32 v234, 0')
    for d in range(8): a('v_dot2_f32_bf16 v234, v%d, v%d, v234', 208 + d, 216 + d)
    a('v_lshlrev_b32 v232, 7, v224')
    a('v_lshl_add_u32 v232, v225, 2, v232')
    a('v_add_u32 v232, %d, v232', LG)
    a('s_nop 0')
    a('ds_write_b32 v232, v234')
    a('s_waitcnt lgkmcnt(0)')
    a('s_barrier')
    lg = a.new('ng')
    a('s_cmp_eq_u32 s3, 3')
    a('s_cbranch_scc0 %s', lg)
    a('v_lshlrev_b32 v232, 4, v0')
    a('v_add_u32 v232, %d, v232', LG)
    a('ds_read_b128 v[236:239], v232')
    a('s_waitcnt lgkmcnt(0)')
    a('v_add_f32 v233, v236, v237')
    a('v_add_f32 v238, v238, v239')
    a('v_add_f32 v233, v233, v238')
    for ctl in ('quad_perm:[1,0,3,2]', 'quad_perm:[2,3,0,1]', 'row_half_mirror'):
        a('s_nop 1')
        a('v_add_f32_dpp v233, v233, v233 %s row_mask:0xf bank_mask:0xf', ctl)
    a('v_mul_f32 v233, 0x%x, v233', fbits(-LOG2E))
    a('v_exp_f32 v233, v233')
    a('s_nop 0')
    a('v_add_f32 v233, 1.0, v233')
    a('v_rcp_f32 v233, v233')
    a('v_lshrrev_b32 v232, 3, v0')
    a('v_lshlrev_b32 v232, 2, v232')
    a('s_lshl_b32 s30, s2, 5')
    a('s_add_u32 s30, s30, 0x%x', GG)
    a('buffer_store_dword v233, v232, s[8:11], s30 offen sc1')
    a.label(lg)

def unit_fill(a):
    a('v_cmp_gt_u32 vcc, 192, v240')
    a('v_mov_b32 v229, 0x8000000')
    a('v_add_u32 v232, 4096, v228')
    a('v_cndmask_b32 v229, v229, v232, vcc')
    for r in range(8): a('v_mov_b32 v%d, -1', 200 + r)
    a('s_mul_i32 s30, s53, 7168')
    a('s_add_u32 s30, s30, 0x%x', U0)
    for k in (1, 3, 4):
        a('s_add_u32 s31, s30, %d', 32 * k * UNIT)
        if k == 4:
            a('s_cmp_lt_u32 s53, %d', NUNITS - 128)
            a('s_cselect_b32 s31, s31, 0x8000000')
        a('buffer_store_dwordx4 v[200:203], v228, s[8:11], s31 offen sc1')
        a('buffer_store_dwordx4 v[204:207], v229, s[8:11], s31 offen sc1')
    lm0, lst = a.new('m0'), a.new('fs')
    a('s_cmp_eq_u32 s53, 10')
    a('s_cbranch_scc0 %s', lst)
    a.label(lm0)
    a('v_bfe_u32 v232, v0, 2, 2')
    a('v_and_b32 v233, 1, v0')
    a('v_lshl_add_u32 v232, v232, 1, v233')
    a('s_movk_i32 s31, 896')
    a('v_mul_u32_u24 v232, s31, v232')
    a('v_lshrrev_b32 v233, 4, v240')
    a('v_lshl_add_u32 v232, v233, 5, v232')
    a('v_bfe_u32 v233, v0, 1, 1')
    a('v_lshl_add_u32 v232, v233, 2, v232')
    for r in range(2):
        for q in range(4): a('buffer_load_dword v%d, v232, s[40:43], 0 offen offset:%d', 200 + 4 * r + q, 8 * q + 512 * r)
    a('s_waitcnt vmcnt(0)')
    for r in range(8): a('v_min_u32 v%d, -2, v%d', 200 + r, 200 + r)
    a.label(lst)
    a('s_add_u32 s31, s30, %d', 64 * UNIT)
    for sr in (30, 31):
        a('buffer_store_dwordx4 v[200:203], v228, s[8:11], s%d offen sc1', sr)
        a('buffer_store_dwordx4 v[204:207], v229, s[8:11], s%d offen sc1', sr)

def wait_janitor(a):
    a('v_mov_b32 v243, 252')
    lp = a.new('wj')
    a('s_cmp_eq_u32 s3, 0')
    a('s_cbranch_scc0 %s', lp)
    wait_words(a, 'v243', None, 1, wave0_only=False)
    a.label(lp)

def janitor(a):
    for r in range(4): a('v_mov_b32 v%d, 0', 244 + r)
    a('v_lshlrev_b32 v243, 4, v0')
    a('s_mov_b32 s31, 0x%x', CNT)
    l = a.new('jn')
    a('s_cmp_eq_u32 s3, 0')
    a('s_cbranch_scc0 %s', l)
    for i in range(4): a('buffer_store_dwordx4 v[244:247], v243, s[8:11], s31 offen offset:%d sc1', 1024 * i)
    a('s_add_u32 s31, s31, 4096')
    a('buffer_store_dwordx4 v[244:247], v243, s[8:11], s31 offen sc1')
    a('buffer_store_dwordx4 v[244:247], v243, s[8:11], s31 offen offset:1024 sc1')
    a('s_waitcnt vmcnt(0)')
    a('s_getreg_b32 s31, hwreg(HW_REG_XCC_ID)')
    a('s_and_b32 s31, s31, 1')
    a('s_add_u32 s31, s31, 1')
    a('v_mov_b32 v244, s31')
    a('buffer_store_dword v244, off, s[44:47], 0 offset:252 sc1')
    a.label(l)

def gen_fold(a):
    a('s_mul_i32 s4, s53, 4682')
    a('s_lshr_b32 s4, s4, 16')
    a('s_mul_i32 s31, s4, 14')
    a('s_sub_u32 s31, s53, s31')
    a('s_and_b32 s6, s31, 1')
    a('s_lshr_b32 s7, s31, 1')
    a('v_and_b32 v2, 15, v0')
    a('v_lshrrev_b32 v3, 4, v0')
    a('v_lshlrev_b32 v1, 4, v0')
    a('v_lshrrev_b32 v4, 5, v0')
    a('v_and_b32 v5, 31, v0')
    a('v_xor_b32 v5, v5, v4')
    a('s_and_b32 s31, s3, 1')
    a('s_lshl_b32 s30, s31, 3')
    a('v_xor_b32 v5, s30, v5')
    a('v_lshlrev_b32 v5, 4, v5')
    a('v_lshl_add_u32 v4, v4, 13, v5')
    a('s_lshl_b32 s28, s7, 2')
    a('s_add_u32 s28, s28, s3')
    a('s_lshl_b32 s28, s28, 17')
    a('s_lshl_b32 s29, s4, 9')
    a('s_add_u32 s28, s28, s29')
    a('s_lshl_b32 s48, s3, 13')
    a('s_lshl_b32 s31, s6, %d', 12)
    a('s_xor_b32 s54, s48, s31')
    a('s_lshl_b32 s31, s6, 16')
    a('s_xor_b32 s55, s28, s31')
    a('s_lshl_b32 s31, s6, 6')
    a('v_xor_b32 v17, s31, v4')
    def aside(srd, rng=range(8)):
        for ii in rng:
            a('v_xor_b32 v5, %d, v17', ((2 * (ii & 1)) ^ (4 * (ii >> 2))) << 4)
            a('s_xor_b32 m0, s54, %d', 1024 * ii)
            a('s_xor_b32 s33, s55, %d', 2 * ii * 8192)
            a('buffer_load_dwordx4 v5, %s, s33 offen lds', srd)
    a('s_mul_i32 s35, s4, 229376')
    a('s_mul_i32 s31, s3, 64*896')
    a('s_add_u32 s35, s35, s31')
    a('s_mul_i32 s31, s6, 448')
    a('s_add_u32 s35, s35, s31')
    a('s_mul_i32 s49, s3, 28672')
    a('s_add_u32 s49, s49, %d', LB)
    a('s_mul_i32 s50, s6, 224')
    a('s_mul_i32 s31, s3, 56')
    a('s_add_u32 s50, s50, s31')
    a('s_lshl_b32 s50, s50, 13')
    a('s_add_u32 s50, s50, s29')
    def issue(mat, mid):
        if mat:
            aside('s[60:63]', range(4))
            a('s_movk_i32 s31, 2341')
            a('s_movk_i32 s32, 896')
            for z in range(7):
                a('v_add_u32 v5, %d, v0', 64 * z)
                a('v_mul_u32_u24 v6, s31, v5')
                a('v_lshrrev_b32 v6, 16, v6')
                a('v_mul_u32_u24 v13, 28, v6')
                a('v_sub_u32 v13, v5, v13')
                a('v_mul_u32_u24 v6, s32, v6')
                a('v_lshl_add_u32 v%d, v13, 4, v6', 20 + z)
            for grp in range(4):
                a('s_lshr_b32 s31, s7, %d', 1 if BYK and ROT else 0)
                a('s_add_u32 s31, s31, %d', grp)
                a('s_and_b32 s31, s31, 3')
                a('s_mul_i32 s32, s31, 14336')
                a('s_add_u32 s32, s32, s35')
                a('s_mul_i32 s31, s31, 7168')
                a('s_add_u32 s31, s31, s49')
                for z in range(7):
                    a('s_add_u32 m0, s31, %d', z * 1024)
                    a('s_nop 0')
                    a('buffer_load_dwordx4 v%d, s[16:19], s32 offen lds', 20 + z)
                if grp == 0 and mid: mid()
            aside('s[60:63]', range(4, 8))
            return 21
        aside('s[36:39]', range(4))
        for q in range(7):
            a('s_add_u32 s31, s7, %d', q)
            a('s_cmp_ge_u32 s31, 7')
            a('s_cselect_b32 s32, 7, 0')
            a('s_sub_u32 s31, s31, s32')
            a('s_lshl_b32 s32, s31, 16')
            a('s_add_u32 s32, s32, s50')
            a('s_and_b32 s30, s31, 1')
            a('s_lshl_b32 s30, s30, 7')
            a('v_xor_b32 v6, s30, v4')
            a('s_lshl_b32 s31, s31, 12')
            a('s_add_u32 s31, s31, s49')
            for i in range(4):
                a('v_xor_b32 v5, %d, v6', (2 * i) << 4)
                a('s_add_u32 m0, s31, %d', 1024 * i)
                a('s_nop 0')
                a('buffer_load_dwordx4 v5, s[56:59], s32 offen lds')
                if i < 3: a('s_add_u32 s32, s32, 16384')
            if q == 0 and mid: mid()
        aside('s[36:39]', range(4, 8))
        return 24
    def raddr():
        a('s_lshr_b32 s51, s3, 1')
        a('s_and_b32 s52, s3, 1')
        a('v_xor_b32 v6, v3, v2')
        a('v_lshlrev_b32 v6, 4, v6')
        a('v_lshrrev_b32 v7, 2, v2')
        a('v_lshlrev_b32 v7, 3, v7')
        a('v_and_b32 v8, 3, v0')
        a('v_add_u32 v7, v7, v8')
        a('v_lshl_add_u32 v7, v7, 9, v6')
        a('s_lshl_b32 s30, s51, 14')
        a('v_add_u32 v7, s30, v7')
        a('v_lshl_add_u32 v9, v2, 9, v6')
        a('s_mul_i32 s30, s52, 57344')
        a('s_add_u32 s30, s30, %d', LB)
        a('v_add_u32 v9, s30, v9')
        a('v_lshrrev_b32 v10, 2, v2')
        a('v_lshl_add_u32 v10, v3, 3, v10')
        a('s_movk_i32 s30, 448')
        a('v_mul_u32_u24 v10, s30, v10')
        a('v_lshl_add_u32 v10, v8, 3, v10')
        a('s_mul_i32 s30, s52, 224')
        a('s_add_u32 s30, s30, %d', LB)
        a('v_add_u32 v10, s30, v10')
    def warm(mat):
        a('v_bfe_u32 v5, v0, 2, 3')
        a('v_lshlrev_b32 v5, 13, v5')
        a('v_lshl_add_u32 v5, v8, 7, v5')
        a('s_lshl_b32 s30, s6, 16')
        a('s_add_u32 s30, s30, s28')
        a('buffer_load_dword v14, v5, %s, s30 offen', 's[60:63]' if mat else 's[36:39]')
        if BYK and ROT: return
        if mat:
            a('v_lshrrev_b32 v5, 2, v0')
            a('v_min_u32 v5, 9, v5')
            a('s_movk_i32 s31, 896')
            a('v_mul_u32_u24 v5, s31, v5')
            a('v_lshl_add_u32 v5, v8, 7, v5')
            a('s_mul_i32 s31, s7, 9*896')
            a('s_add_u32 s31, s31, s35')
            a('buffer_load_dword v15, v5, s[16:19], s31 offen')
        else:
            a('s_lshl_b32 s31, s7, 16')
            a('s_add_u32 s31, s31, s50')
            a('buffer_load_dword v15, v5, s[56:59], s31 offen')
    ACC, AF, BF = 48, 104, 168
    PFD = DEPTH
    def gemm(mat):
        seq = [(es, t) for es in range(8) for t in range(7)]
        def rdA(es):
            a('v_xor_b32 v11, %d, v7', es << 6)
            for u in range(2): a('ds_read_b128 %s, v11 offset:%d', V(AF + 8 * (es & 1) + 4 * u, 4), LA + 2048 * u)
        def rdB(i):
            es, t = seq[i]
            b = BF + 4 * (i % 8)
            if t == 0:
                if mat == 0: a('v_xor_b32 v12, %d, v9', es << 6)
                else: a('v_add_u32 v12, %d, v10', es * 14336)
            if mat == 0: a('ds_read_b128 %s, v12 offset:%d', V(b, 4), t * 8192)
            else:
                a('ds_read_b64_tr_b16 %s, v12 offset:%d', V(b, 2), t * 32)
                a('ds_read_b64_tr_b16 %s, v12 offset:%d', V(b + 2, 2), t * 32 + 1792)
        per = 2 if mat else 1
        rdA(0)
        issued = []
        for i in range(PFD): rdB(i); issued.append(per)
        for i, (es, t) in enumerate(seq):
            n = 0
            if t == 0 and es < 7: rdA(es + 1); n += 2
            if i + PFD < len(seq): rdB(i + PFD); n += per
            issued.append(n)
            a('s_waitcnt lgkmcnt(%d)', sum(issued[i + 1:]))
            for u in range(2):
                c = ACC + (t * 2 + u) * 4
                a('v_mfma_f32_16x16x32_bf16 %s, %s, %s, %s', V(c, 4), V(AF + 8 * (es & 1) + 4 * u, 4), V(BF + 4 * (i % 8), 4), V(c, 4) if es else '0')
    def store(mat):
        a('s_mul_i32 s30, s4, 28')
        a('s_mul_i32 s31, s6, 14')
        a('s_add_u32 s30, s30, s31')
        a('s_mul_i32 s31, s52, 7')
        a('s_add_u32 s30, s30, s31')
        a('s_mul_i32 s30, s30, 14')
        a('s_lshl_b32 s31, s7, 1')
        a('s_add_u32 s30, s30, s31')
        a('s_add_u32 s30, s30, s51')
        a('s_lshl_b32 s30, s30, 10')
        if mat: a('s_add_u32 s30, s30, 0x%x', WF_C)
        a('s_mov_b32 s31, 0x%x', fbits(LOG2E / 16.0))
        for t in range(7):
            c = ACC + t * 8
            if mat == 0:
                for r in range(8): a('v_mul_f32 v%d, s31, v%d', c + r, c + r)
            o = 136 + 4 * t
            for d in range(4): a('v_cvt_pk_bf16_f32 v%d, v%d, v%d', o + d, c + 2 * d, c + 2 * d + 1)
            a('buffer_store_dwordx4 %s, v1, s[8:11], s30 offen %s', V(o, 4), WST)
            if t < 6: a('s_add_u32 s30, s30, 14336')
    def flow(m1):
        m2 = 1 - m1
        n = issue(m1, lambda: misc_loads(a))
        a('buffer_load_dword v16, off, s[44:47], 0 offset:252 sc1')
        raddr()
        rt(a, 86)
        a('s_waitcnt vmcnt(0)')
        a('s_barrier')
        rt(a, 90)
        tl(a, 2)
        warm(m2)
        gemm(m1)
        rt(a, 80)
        store(m1)
        misc_rest(a)
        rt(a, 94)
        lj = a.new('js')
        a('v_cmp_eq_u32 vcc, 0, v16')
        a('s_cbranch_vccz %s', lj)
        a('v_mov_b32 v243, 252')
        wait_words(a, 'v243', None, 1, wave0_only=False, R=16)
        a.label(lj)
        a('v_readfirstlane_b32 s5, v16')
        if OVERLAP: issue(m2, None)
        set_flag(a, FLG_C if m1 else FLG_A, 's53', 36 if OVERLAP else 0, also=FLG_M)
        tl(a, 3)
        if not OVERLAP: issue(m2, None)
        a('s_waitcnt vmcnt(0)')
        a('s_barrier')
        gemm(m2)
        store(m2)
        set_flag(a, FLG_C if m2 else FLG_A, 's53')
        tl(a, 1)
        if FINE:
            a('s_lshl_b32 s84, s2, 5')
            a('s_add_u32 s84, s84, 0x3F40000')
            a('s_cmp_eq_u32 s3, 0')
            a('s_cselect_b32 s84, s84, 0x8000000')
            for k, r in enumerate((92, 86, 88, 90, 78, 80, 94)):
                a('v_mov_b32 v250, s%d', r)
                a('buffer_store_dword v250, off, s[8:11], s84 offset:%d', 4 * k)
                a('s_nop 1')
    l1, l2 = a.new('fa'), a.new('fe')
    if BYK: a('s_bitcmp1_b32 s7, 0')
    else: a('s_cmp_ge_u32 s4, %d', AFIRST)
    a('s_cbranch_scc1 %s', l1)
    flow(1)
    a('s_branch %s', l2)
    a.label(l1)
    flow(0)
    a.label(l2)

def wait_started(a):
    lp, ok = a.new('ws'), a.new('wo')
    a('s_cmp_eq_u32 s3, 0')
    a('s_cbranch_scc0 %s', ok)
    a('s_mov_b32 s14, 0')
    a('s_mov_b32 s31, 0x%x', GO)
    a.label(lp)
    a('buffer_load_dword v244, off, s[8:11], s31 sc1')
    a('s_waitcnt vmcnt(0)')
    a('v_cmp_eq_u32 vcc, 0, v244')
    a('s_cbranch_vccz %s', ok)
    a('s_sleep 16')
    a('s_add_u32 s14, s14, 1')
    a('s_cmp_lt_u32 s14, %d', SPIN)
    a('s_cbranch_scc1 %s', lp)
    a('s_endpgm')
    a.label(ok)
    a('s_barrier')

def wait_wave_heads(a):
    a('v_min_u32 v243, 55, v0')
    a('v_lshlrev_b32 v243, 2, v243')
    a('s_mul_i32 s31, s3, 224')
    a('s_add_u32 s31, s31, 0x%x', FLG_C)
    wait_words(a, 'v243', 's31', 1, wave0_only=False)

def wait_part(a, base, hreg, nheads, odd):
    a('v_min_u32 v243, %d, v0', 14 * nheads - 1)
    a('s_movk_i32 s31, 4682')
    a('v_mul_u32_u24 v242, s31, v243')
    a('v_lshrrev_b32 v242, 16, v242')
    a('v_mul_u32_u24 v242, 14, v242')
    a('v_sub_u32 v241, v243, v242')
    a('v_and_b32 v241, 2, v241')
    a('v_cmp_eq_u32 vcc, %d, v241', 2 if odd else 0)
    a('v_add_u32 v242, %d, v242', 2 if odd else 0)
    a('s_nop 0')
    a('v_cndmask_b32 v243, v242, v243, vcc')
    a('v_lshlrev_b32 v243, 2, v243')
    a('s_mul_i32 s31, %s, 56', hreg)
    a('s_add_u32 s31, s31, 0x%x', base)
    wait_words(a, 'v243', 's31', 1, wave0_only=False)

def wait_head_and_misc(a, base, hreg, n, R):
    lp, ok = a.new('wh'), a.new('wi')
    a('v_min_u32 v%d, %d, v0', R - 1, n - 1)
    a('v_lshlrev_b32 v%d, 2, v%d', R - 1, R - 1)
    a('s_mul_i32 s31, %s, 56', hreg)
    a('s_add_u32 s31, s31, 0x%x', base)
    a('s_mov_b32 s32, 0x%x', FLG_M)
    a('s_mov_b32 s14, 0')
    a.label(lp)
    a('buffer_load_dwordx4 %s, v1, s[8:11], s32 offen sc1', V(R, 4))
    a('buffer_load_dword v%d, v%d, s[8:11], s31 offen sc1', R + 4, R - 1)
    a('s_waitcnt vmcnt(0)')
    a('v_min3_u32 v%d, v%d, v%d, v%d', R, R, R + 1, R + 2)
    a('v_min3_u32 v%d, v%d, v%d, v%d', R, R, R + 3, R + 4)
    a('v_cmp_eq_u32 vcc, 0, v%d', R)
    a('s_cbranch_vccz %s', ok)
    a('s_sleep 3')
    a('s_add_u32 s14, s14, 1')
    a('s_cmp_lt_u32 s14, %d', SPIN)
    a('s_cbranch_scc1 %s', lp)
    a('s_endpgm')
    a.label(ok)

def wait_stat(a, word, mask_sgpr, tmp):
    lp = a.new('wt')
    a('s_mov_b32 s31, 0x%x', STAT + 4 * word)
    a('s_mov_b32 s14, 0')
    a.label(lp)
    a('buffer_load_dword v%d, off, s[8:11], s31 sc1', tmp)
    a('s_add_u32 s14, s14, 1')
    a('s_cmp_lt_u32 s14, %d', SPIN)
    a('s_cbranch_scc0 tdie')
    a('s_waitcnt vmcnt(0)')
    a('v_readfirstlane_b32 s32, v%d', tmp)
    a('s_and_b32 s32, s32, %s', mask_sgpr)
    a('s_cmp_eq_u32 s32, %s', mask_sgpr)
    a('s_cbranch_scc0 %s', lp)

def wait_c_misc_w0(a, early_only):
    lp, ok = a.new('wc'), a.new('wd')
    a('s_cmp_eq_u32 s3, 0')
    a('s_cbranch_scc0 %s', ok)
    a('v_min_u32 v23, 55, v0')
    a('v_lshlrev_b32 v23, 4, v23')
    a('s_mov_b32 s31, 0x%x', FLG_C)
    a('s_mov_b32 s32, 0x%x', FLG_M)
    a('s_mov_b32 s14, 0')
    a.label(lp)
    if early_only: a('buffer_load_dwordx4 v[24:27], v1, s[8:11], s32 offen sc1')
    else: a('buffer_load_dwordx4 v[24:27], v23, s[8:11], s31 offen sc1')
    a('s_waitcnt vmcnt(0)')
    a('v_min3_u32 v24, v24, v25, v26')
    a('v_min_u32 v24, v24, v27')
    a('v_cmp_eq_u32 vcc, 0, v24')
    a('s_cbranch_vccz %s', ok)
    a('s_sleep 4')
    a('s_add_u32 s14, s14, 1')
    a('s_cmp_lt_u32 s14, %d', SPIN)
    a('s_cbranch_scc1 %s', lp)
    a('s_endpgm')
    a.label(ok)
    a('s_barrier')
```

```python
from common import *
import fold

L_MEM = 0
L_T = 7680
L_S = L_T + 8192
L_X = L_S + 12288
ZXS = 28672 + 512
L_C = 7680
L_V = L_C + 4096
L_D = 32768
L_W = 98304
TEAM_LDS = L_W + 57344
SPIN = 200000
OOB = 0x8000000
NTEAM = 32
WB = False

ORD_S = ([(0, 0), (1, 0), (0, 1), (1, 1), (2, 0), (3, 0), (2, 1), (3, 1), (4, 0), (5, 0), (6, 0), (4, 1), (5, 1), (6, 1)]
         + [(t, 2) for t in range(7)] + [(t, l) for t in range(7) for l in range(3, 7)])
ORD_C = [(t, l) for l in range(4) for t in range(8)] + [(t, l) for t in range(8) for l in range(4, 7)]
CSPILL = [80, 88, 96, 104, 112, 52, 60]
def Wreg(i, n=8, off=0):
    if i >= 49: return V(CSPILL[i - 49] + off, n)
    return A(8 * i + off, n) if i < 32 else V(120 + 8 * (i - 32) + off, n)

def gen_team(a, dev=False):
    dev = set(dev.split('+')) if dev else set()
    RELAY = 'relay' in dev
    def stamp(k):
        if 'st%d' % k in dev or 'stall' in dev: a('s_memtime s[%d:%d]', 64 + 2 * k, 65 + 2 * k)
    def bits(dst, spec, first=True):
        for pos, w, sh in spec:
            a('v_bfe_u32 v3, v0, %d, %d', pos, w)
            if first: a('v_lshlrev_b32 v%d, %d, v3', dst, sh); first = False
            else: a('v_lshl_add_u32 v%d, v3, %d, v%d', dst, sh, dst)
    def spin(lp):
        a('s_add_u32 s14, s14, 1')
        a('s_cmp_lt_u32 s14, %d', SPIN)
        a('s_cbranch_scc1 %s', lp)
        a('s_endpgm')
    def xdma():
        a('s_mov_b32 m0, s36')
        a('s_add_u32 s30, s34, 4096')
        for i in range(4): a('buffer_load_dwordx4 v1, s[8:11], s34 offen offset:%d sc1 lds', 1024 * i)
        a('s_add_u32 m0, s36, 4096')
        a('s_add_u32 s34, s34, %d', XSEG)
        for i in range(3): a('buffer_load_dwordx4 v1, s[8:11], s30 offen offset:%d sc1 lds', 1024 * i)
    def ddma(src0, src1):
        r = [['buffer_load_dwordx4 v1, s[8:11], %s offen offset:%d sc1 lds' % (src0, 1024 * i)] for i in range(4)]
        r[3].append('s_add_u32 m0, s37, 16384')
        r += [['buffer_load_dwordx4 v1, s[8:11], %s offen offset:%d sc1 lds' % (src1, 1024 * i)] for i in range(4)]
        return r
    def fcheck(src, tmp, seg):
        a('v_readfirstlane_b32 s29, v%d', src)
        a('s_cmp_le_u32 s29, %s', seg)
    def dwait(seg):
        lp, ok = a.new('dw'), a.new('dk')
        a('s_mov_b32 s14, 0')
        a.label(lp)
        a('buffer_load_dword v18, off, s[8:11], s49 sc1')
        a('s_waitcnt vmcnt(0)')
        fcheck(18, 3, seg)
        a('s_cbranch_scc0 %s', ok)
        a('s_sleep 1')
        spin(lp)
        a.label(ok)
    def xcc_gather():
        lp, l2 = a.new('xc'), a.new('xo')
        a('v_min_u32 v20, %d, v0', NTEAM - 1)
        a('v_lshlrev_b32 v20, 2, v20')
        a('s_mov_b32 s14, 0')
        a.label(lp)
        a('buffer_load_dword v3, v20, s[44:47], 0 offen sc1')
        a('s_waitcnt vmcnt(0)')
        a('v_cmp_eq_u32 vcc, 0, v3')
        a('s_cbranch_vccz %s', l2)
        a('s_sleep 4')
        spin(lp)
        a.label(l2)
    def frag_offsets():
        a('s_lshl_b32 s33, s3, 1')
        for lam in range(7):
            a('s_lshl_b32 s%d, s33, 10', 15 + lam)
            if lam < 6:
                a('s_add_u32 s33, s33, 1')
                a('s_cmp_ge_u32 s33, 7')
                a('s_cselect_b32 s32, 7, 0')
                a('s_sub_u32 s33, s33, s32')
    def wload(order, tile_off, early_odd, between):
        if dev: a('s_memrealtime s[96:97]')
        for ps in range(2):
            for lam in range(7):
                l = a.new('wl')
                a('s_bitcmp1_b32 s%d, 10', 15 + lam)
                a('s_cbranch_scc%d %s', 0 if (early_odd ^ ps) else 1, l)
                a('s_waitcnt vmcnt(40)')
                a('s_lshl_b32 s33, s%d, 1', 15 + lam)
                a('s_add_u32 s33, s33, s30')
                for i, (t, lm) in enumerate(order):
                    if lm != lam: continue
                    a('s_add_u32 s32, s33, %d', tile_off(t))
                    if i >= 49:
                        a('s_add_u32 m0, s29, %d', 2048 * (i - 49))
                        a('s_nop 0')
                        a('buffer_load_dwordx4 v1, s[8:11], s32 offen sc1 lds')
                        a('buffer_load_dwordx4 v1, s[8:11], s32 offen offset:1024 sc1 lds')
                    else:
                        a('buffer_load_dwordx4 %s, v1, s[8:11], s32 offen sc1', Wreg(i, 4, 0))
                        a('buffer_load_dwordx4 %s, v1, s[8:11], s32 offen offset:1024 sc1', Wreg(i, 4, 4))
                a.label(l)
            if ps == 0: between()

    a.label('team')
    if dev: a('s_memrealtime s[90:91]')
    a('s_and_b32 s4, s30, 15')
    a('s_lshr_b32 s5, s30, 4')
    a('v_lshlrev_b32 v1, 4, v0')
    frag_offsets()
    a('s_cmp_ge_u32 s30, 30')
    a('s_cbranch_scc1 export')
    for r in range(4, 16): a('v_mov_b32 v%d, 0', r)
    a('v_and_b32 v3, 2, v0')
    a('v_cmp_eq_u32 s[58:59], 0, v3')
    a('v_mov_b32 v2, 0xeeee')
    a('v_mov_b32 v18, 0x4444')
    a('v_cndmask_b32 v2, v2, v18, s[58:59]')
    a('v_add_u32 v16, s15, v1')
    a('v_add_u32 v17, s16, v1')
    a('s_mov_b32 s49, 0x%x', HZ)
    a('v_cmp_gt_u32 s[62:63], 56, v0')
    xcc_gather()
    a('v_readfirstlane_b32 s31, v3')
    a('s_nop 1')
    a('v_cmp_ne_u32 vcc, s31, v3')
    a('s_nop 1')
    a('s_cmp_lg_u64 vcc, 0')
    a('s_cselect_b32 s51, 1, 0')
    lv, lj = a.new('iv'), a.new('ij')
    a('s_cmp_eq_u32 s5, 1')
    a('s_cbranch_scc1 %s', lv)
    if RELAY:
        a('s_lshl_b32 s34, 1, s4')
        fold.wait_stat(a, 0, 's34', 24)
    else: fold.wait_part(a, FLG_A, 's4', 1, True)
    a('s_mul_i32 s30, s4, 28')
    a('s_mul_i32 s32, s3, 7')
    a('s_add_u32 s30, s30, s32')
    a('s_mul_i32 s30, s30, 14336')
    wload(ORD_S, lambda t: t * 14336, 1, (lambda: fold.wait_stat(a, 1, 's34', 24)) if RELAY else (lambda: fold.wait_head_and_misc(a, FLG_A, 's4', 14, 24)))
    a('v_and_b32 v3, 8, v0')
    a('v_cmp_eq_u32 vcc, 0, v3')
    a('s_nop 1')
    a('v_cndmask_b32 v14, 0, 1.0, vcc')
    bits(4, [(2, 2, 6), (0, 1, 5), (4, 2, 3), (1, 1, 2)])
    bits(5, [(4, 2, 8), (0, 4, 3)])
    a('s_lshl_b32 s30, s3, 11')
    a('s_add_u32 s30, s30, %d', L_T)
    a('v_add_u32 v4, s30, v4')
    a('v_add_u32 v5, s30, v5')
    a('s_mul_i32 s30, s3, 3584')
    a('s_add_u32 s30, s30, %d', L_X)
    a('v_add_u32 v6, s30, v1')
    bits(8, [(5, 1, 8), (1, 2, 6), (0, 1, 4), (4, 1, 3)])
    a('s_mul_i32 s30, s3, 1792')
    a('v_add_u32 v8, s30, v8')
    a('v_add_u32 v9, 1024, v8')
    bits(10, [(4, 2, 9), (1, 1, 6), (2, 2, 4), (0, 1, 2)])
    bits(15, [(4, 2, 9), (3, 1, 7), (0, 1, 6), (1, 2, 4)])
    a('s_lshl_b32 s31, s3, 11')
    a('s_add_u32 s31, s31, %d', L_S)
    a('v_add_u32 v10, s31, v10')
    a('v_add_u32 v15, s31, v15')
    a('s_lshl_b32 s31, s3, 10')
    a('s_add_u32 s31, s31, %d', L_S)
    a('v_add_u32 v11, s31, v1')
    a('s_lshl_b32 s30, s4, 9')
    a('s_lshl_b32 s31, s3, 8')
    a('s_add_u32 s30, s30, s31')
    a('v_lshl_add_u32 v12, v0, 2, s30')
    bits(13, [(4, 2, 4), (0, 2, 2)])
    a('s_lshl_b32 s30, s4, 7')
    a('s_lshl_b32 s31, s3, 6')
    a('s_add_u32 s30, s30, s31')
    a('s_add_u32 s30, s30, 8192')
    a('v_add_u32 v13, s30, v13')
    a('v_and_b32 v3, 12, v0')
    a('v_cmp_eq_u32 vcc, 0, v3')
    a('v_mov_b32 v18, 0x%x', OOB)
    a('s_nop 0')
    a('v_cndmask_b32 v13, v18, v13, vcc')
    a('v_mov_b32 v3, 0')
    a('v_lshlrev_b32 v18, 2, v0')
    a('ds_write_b32 v18, v3 offset:%d', L_MEM + 7168)
    for w in range(4): a('ds_write_b32 v18, v3 offset:%d', L_T + w * 2048 + 1792)
    a('v_add_u32 v18, %d, v18', L_X + 28672)
    for o in (0, 256, ZXS, ZXS + 256): a('ds_write_b32 v18, v3 offset:%d', o)
    a('s_mov_b32 s50, %d', ZXS)
    a('s_mul_i32 s30, s3, 7168')
    a('s_add_u32 s34, s30, 0x%x', XF)
    a('s_add_u32 s36, s30, %d', L_X)
    xdma()
    a('s_lshl_b32 s31, s4, 10')
    a('s_add_u32 s27, s31, 0x%x', PR)
    a('s_cmp_lt_u32 s4, 10')
    a('s_cselect_b32 s27, s27, 0x%x', OOB)
    a('s_cmp_eq_u32 s3, 2')
    a('s_cselect_b32 s27, s27, 0x%x', OOB)
    a('s_lshl_b32 s31, s4, 2')
    a('s_add_u32 s31, s31, s3')
    if 'thalf' in dev:
        a('s_mul_i32 s35, s31, 3584')
        a('v_lshl_add_u32 v7, v0, 7, s35')
        a('v_lshrrev_b32 v3, 14, v7')
        a('v_lshl_add_u32 v7, v3, 14, v7')
        a('v_add_u32 v7, 0x%x, v7', DD + 2 * DSEG + 16384)
        a('v_cmp_gt_u32 s[62:63], 28, v0')
    elif 't34' in dev:
        a('s_mul_i32 s35, s31, 42')
        a('v_add_u32 v7, s35, v0')
        a('s_movk_i32 s35, 2731')
        a('v_mul_u32_u24 v3, s35, v7')
        a('v_lshrrev_b32 v3, 16, v3')
        a('v_lshl_add_u32 v7, v3, 3, v7')
        a('v_lshlrev_b32 v7, 7, v7')
        a('v_add_u32 v7, 0x%x, v7', DD + 2 * DSEG + 1024)
        a('v_cmp_gt_u32 s[62:63], 42, v0')
    else:
        a('s_mul_i32 s35, s31, 7168')
        a('s_add_u32 s35, s35, 0x%x', DD + 2 * DSEG)
        a('v_lshl_add_u32 v7, v0, 7, s35')
    a('s_lshl_b32 s31, s31, 9')
    a('s_add_u32 s31, s31, 0x%x', XF + 2 * XSEG)
    a('v_and_b32 v3, 3, v0')
    a('v_lshl_add_u32 v3, v3, 7, s31')
    if 'tx' in dev: a('v_cmp_gt_u32 s[62:63], 0, v0'); a('s_nop 1')
    a('v_cndmask_b32 v7, v3, v7, s[62:63]')
    a('s_mov_b32 s38, 0x%x', OOB)
    if 'not0' not in dev:
        a('buffer_load_dword v18, off, s[8:11], s49 sc1')
        a('s_waitcnt vmcnt(0)')
        fcheck(18, 3, '2')
        a('s_cselect_b32 s38, 0x%x, 0', OOB)
    a('s_branch %s', lj)
    a.label(lv)
    a('s_lshl_b32 s34, s3, 2')
    if RELAY:
        a('s_lshl_b32 s34, 0xf0000, s34')
        fold.wait_stat(a, 0, 's34', 24)
    else: fold.wait_part(a, FLG_C, 's34', 4, False)
    a('s_mul_i32 s30, s3, 4*28')
    a('s_lshl_b32 s32, s4, 1')
    a('s_add_u32 s30, s30, s32')
    a('s_mul_i32 s30, s30, 14336')
    a('s_add_u32 s30, s30, 0x%x', WF_C)
    a('s_mul_i32 s29, s3, 14336')
    a('s_add_u32 s29, s29, %d', L_W)
    wload(ORD_C, lambda t: ((t & 3) * 28 + (t >> 2)) * 14336, 0, (lambda: fold.wait_stat(a, 1, 's34', 24)) if RELAY else (lambda: fold.wait_head_and_misc(a, FLG_C, 's34', 56, 24)))
    a('v_add_u32 v14, s29, v1')
    for r, i in zip((4, 5, 7, 12, 13), range(5)): a('v_add_u32 v%d, s%d, v1', r, 17 + i)
    bits(6, [(4, 2, 7), (2, 2, 5), (0, 1, 4)])
    a('s_mul_i32 s30, s3, 1536')
    a('s_sub_u32 s30, 8192, s30')
    a('v_add_u32 v6, s30, v6')
    a('v_mov_b32 v18, 0x%x', OOB)
    a('v_cndmask_b32 v6, v18, v6, s[58:59]')
    bits(8, [(4, 2, 7), (0, 4, 2)])
    a('s_lshl_b32 s30, s3, 9')
    a('s_add_u32 s30, s30, %d', L_C)
    a('v_add_u32 v8, s30, v8')
    bits(10, [(5, 1, 9), (2, 2, 7), (0, 1, 6), (4, 1, 5), (1, 1, 4)])
    a('s_lshl_b32 s48, s3, 11')
    a('s_add_u32 s48, s48, %d', L_V)
    bits(9, [(4, 2, 7), (2, 1, 6), (0, 2, 4), (3, 1, 3)])
    a('s_and_b32 s31, s3, 1')
    a('s_lshl_b32 s30, s31, 11')
    a('s_add_u32 s30, s30, %d', L_C)
    a('v_add_u32 v9, s30, v9')
    a('s_lshl_b32 s30, s4, 9')
    a('s_lshl_b32 s31, s31, 8')
    a('s_add_u32 s30, s30, s31')
    a('v_lshl_add_u32 v11, v0, 2, s30')
    a('s_lshl_b32 s30, s3, 12')
    a('s_lshl_b32 s31, s4, 15')
    a('s_add_u32 s35, s30, s31')
    a('s_add_u32 s35, s35, 0x%x', DD)
    a('s_add_u32 s37, s30, %d', L_D)
    a('s_add_u32 s35, s35, %d', DSEG)
    a('s_mov_b32 s38, 0x%x', OOB)
    a('s_mov_b32 s6, 0x%x', OOB)
    a('s_mov_b32 s7, 1')
    if 'nohy' not in dev:
        lsk = a.new('ds')
        a('buffer_load_dword v18, off, s[8:11], s49 sc1')
        a('s_waitcnt vmcnt(0)')
        fcheck(18, 3, '1')
        a('s_cbranch_scc1 %s', lsk)
        for tl in range(2):
            a('s_add_u32 m0, s37, %d', 16384 * tl)
            a('s_add_u32 s31, s35, %d', 16384 * tl - DSEG)
            for i in range(4): a('buffer_load_dwordx4 v1, s[8:11], s31 offen offset:%d sc1 lds', 1024 * i)
        a('s_mov_b32 s38, s35')
        a('s_add_u32 s6, s35, 16384')
        a('s_mov_b32 s7, 0')
        a.label(lsk)
    a('s_mov_b32 s40, 0x%x', OOB)
    a('s_mov_b32 s13, 0')
    a.label(lj)
    a('s_mov_b32 s12, 0')
    a('s_add_u32 s32, s15, 0x%x', MEMX)
    a('s_add_u32 s33, s16, 0x%x', MEMX)
    for r in range(20, 48): a('v_mov_b32 v%d, 0', r)
    a('s_waitcnt lgkmcnt(0)')
    if dev: a('s_waitcnt vmcnt(0)')
    if dev:
        lc = a.new('cal')
        a('s_memrealtime s[82:83]')
        a('s_waitcnt lgkmcnt(0)')
        a.label(lc)
        a('s_memrealtime s[84:85]')
        a('s_memtime s[86:87]')
        a('s_waitcnt lgkmcnt(0)')
        a('s_cmp_eq_u32 s84, s82')
        a('s_cbranch_scc1 %s', lc)
    if 'slow' in dev: a('s_branch tslow')
    a('s_cmp_eq_u32 s51, 1')
    a('s_cbranch_scc1 tslow')
    a('s_cmp_eq_u32 s5, 1')
    a('s_cbranch_scc1 cloopF')
    a('s_branch sloopF')
    a.label('tslow')
    a('s_cmp_eq_u32 s5, 1')
    a('s_cbranch_scc1 cloopS')
    a('s_branch sloopS')
    a.label('tdie')
    a('s_endpgm')
    a.label('export')
    a('s_cmp_eq_u32 s30, 31')
    a('s_cbranch_scc1 relay')
    if RELAY:
        a('s_mov_b32 s34, 1')
        fold.wait_stat(a, 1, 's34', 24)
    else: fold.wait_all(a, FLG_M, 256)
    a('s_mov_b32 s12, 1')
    a('v_mov_b32 v10, 1')
    a('s_mov_b32 s35, 0x%x', OOB)
    a('v_min_u32 v7, 55, v0')
    a('v_lshlrev_b32 v7, 7, v7')
    a('s_mul_i32 s31, s3, %d', UNIT)
    a('s_add_u32 s31, s31, 0x%x', MEMX)
    a('buffer_load_dword v9, v7, s[8:11], s31 offen sc1')
    a('s_lshl_b32 s31, s3, 13')
    a('s_add_u32 s31, s31, 0x%x', PR)
    a('v_lshlrev_b32 v8, 7, v0')
    a('buffer_load_dword v9, v8, s[8:11], s31 offen sc1')
    a('s_add_u32 s31, s31, 8192')
    a('buffer_load_dword v9, v8, s[8:11], s31 offen sc1')
    if 'xw' in dev:
        a('s_mul_i32 s31, s3, 7168')
        a('s_add_u32 s31, s31, 0x%x', XF)
        for k in range(1, 4):
            a('s_add_u32 s31, s31, %d', XSEG)
            a('buffer_load_dword v9, v7, s[8:11], s31 offen sc1')
    a.label('exloop')
    a('s_mul_i32 s30, s12, %d', UNIT)
    a('s_add_u32 s34, s30, 0x%x', MEMX)
    a('s_add_u32 s32, s34, s15')
    a('s_add_u32 s33, s34, s16')
    a('s_add_u32 s34, s34, %d', 3 * UNIT)
    a('s_cmp_eq_u32 s3, 0')
    a('s_cselect_b32 s34, s34, 0x%x', OOB)
    a('buffer_load_dword v9, v7, s[8:11], s34 offen sc1')
    if 'xw' in dev:
        a('s_lshl_b32 s34, s12, 2')
        a('s_add_u32 s34, s34, s3')
        a('s_mul_i32 s34, s34, 7168')
        a('s_add_u32 s34, s34, 0x%x', XF + 3 * XSEG)
        a('buffer_load_dword v9, v7, s[8:11], s34 offen sc1')
    a('s_mov_b32 s14, 0')
    lp = a.new('ex')
    a.label(lp)
    if 'noes' not in dev: a('s_sleep 6')
    a('buffer_load_dwordx4 v[20:23], v1, s[8:11], s32 offen sc1')
    a('buffer_load_dwordx4 v[24:27], v1, s[8:11], s33 offen sc1')
    a('s_add_u32 s14, s14, 1')
    a('s_cmp_lt_u32 s14, %d', SPIN)
    a('s_cbranch_scc0 tdie')
    a('s_waitcnt vmcnt(0)')
    a('v_max3_u32 v3, v20, v21, v22')
    a('v_max3_u32 v4, v23, v24, v25')
    a('v_max3_u32 v3, v26, v27, v3')
    a('v_max_u32 v3, v4, v3')
    a('v_cmp_eq_u32 vcc, -1, v3')
    a('s_cbranch_vccnz %s', lp)
    a('s_sub_u32 s32, s32, %d', MEMX - MEME)
    a('s_sub_u32 s33, s33, %d', MEMX - MEME)
    a('s_barrier')
    a('buffer_store_dwordx4 v[20:23], v1, s[8:11], s32 offen sc1')
    a('buffer_store_dwordx4 v[24:27], v1, s[8:11], s33 offen sc1')
    a('s_lshl_b32 s31, s3, 8')
    a('s_add_u32 s31, s31, s12')
    a('s_cmp_eq_u32 s31, 1')
    a('s_cselect_b32 s31, 0x%x, s35', GO)
    a('buffer_store_dword v10, off, s[8:11], s31 sc1')
    a('s_add_u32 s12, s12, 1')
    a('s_cmp_lt_u32 s12, 63')
    a('s_cbranch_scc1 exloop')
    a('s_endpgm')
    a.label('relay')
    a('s_cmp_eq_u32 s3, 0')
    a('s_cbranch_scc0 tdie')
    xcc_gather()
    a('v_readfirstlane_b32 s31, v3')
    a('s_mov_b32 s12, 0')
    a('s_mov_b32 s14, 0')
    a('s_mov_b32 s49, 0x%x', DPROG)
    a('v_cmp_ne_u32 s[62:63], s31, v3')
    a('v_and_b32 v3, 31, v0')
    a('v_cmp_gt_u32 s[60:61], 28, v3')
    a('v_lshlrev_b32 v4, 2, v0')
    a('v_lshrrev_b32 v5, 5, v0')
    a('s_mov_b32 s48, 0x%x', HZ)
    if 'slow' in dev: a('s_mov_b64 s[62:63], -1')
    if RELAY:
        a('v_and_b32 v8, 15, v0')
        a('v_mul_u32_u24 v8, 56, v8')
        a('v_bfe_u32 v9, v0, 4, 1')
        a('v_lshl_add_u32 v8, v9, 10, v8')
        a('v_cmp_eq_u32 s[58:59], 0, v9')
        a('s_mov_b32 s32, 0x%x', FLG_A)
        a('s_mov_b32 s33, 0x%x', FLG_M)
        a('s_mov_b32 s34, 0x%x', STAT)
        a.label('stloop')
        for k in range(7): a('buffer_load_dwordx2 %s, v8, s[8:11], s32 offen offset:%d sc1', V(20 + 2 * k, 2), 8 * k)
        a('buffer_load_dwordx4 v[36:39], v1, s[8:11], s33 offen sc1')
        a('s_add_u32 s14, s14, 1')
        a('s_cmp_lt_u32 s14, %d', SPIN)
        a('s_cbranch_scc0 tdie')
        a('s_waitcnt vmcnt(0)')
        a('v_min3_u32 v40, v20, v21, v24')
        a('v_min3_u32 v40, v25, v28, v40')
        a('v_min3_u32 v40, v29, v32, v40')
        a('v_min_u32 v40, v33, v40')
        a('v_min3_u32 v41, v22, v23, v26')
        a('v_min3_u32 v41, v27, v30, v41')
        a('v_min_u32 v41, v31, v41')
        a('v_cndmask_b32 v42, v40, v41, s[58:59]')
        a('v_min_u32 v40, v40, v41')
        a('v_min3_u32 v36, v36, v37, v38')
        a('v_min_u32 v36, v36, v39')
        a('v_cmp_ne_u32 s[36:37], 0, v42')
        a('v_cmp_ne_u32 s[38:39], 0, v40')
        a('v_cmp_eq_u32 vcc, 0, v36')
        a('s_nop 1')
        a('s_cmp_eq_u64 vcc, 0')
        a('s_cselect_b32 s38, s38, 0')
        a('v_mov_b32 v44, s36')
        a('v_mov_b32 v45, s38')
        a('s_cmp_eq_u64 s[62:63], 0')
        a('s_cbranch_scc0 stslow')
        a('buffer_store_dwordx2 v[44:45], off, s[8:11], s34')
        a('s_branch stnext')
        a.label('stslow')
        a('buffer_store_dwordx2 v[44:45], off, s[8:11], s34 sc1')
        a.label('stnext')
        a('s_cmp_eq_u32 s38, -1')
        a('s_cbranch_scc0 stloop')
        a('s_mov_b32 s14, 0')
    a.label('reloop')
    a('s_sleep 2')
    a('buffer_load_dword v6, v4, s[8:11], s49 offen sc1')
    a('s_add_u32 s14, s14, 1')
    a('s_cmp_lt_u32 s14, %d', SPIN)
    a('s_cbranch_scc0 tdie')
    a('s_mov_b32 s13, s12')
    a('s_waitcnt vmcnt(0)')
    a('v_lshl_add_u32 v6, v6, 1, v5')
    a.label('reinc')
    a('v_cmp_ge_u32 vcc, s12, v6')
    a('s_nop 1')
    a('s_and_b64 vcc, vcc, s[60:61]')
    a('s_cbranch_scc1 repub')
    a('s_add_u32 s12, s12, 1')
    a('s_cmp_lt_u32 s12, 64')
    a('s_cbranch_scc1 reinc')
    a.label('repub')
    a('s_cmp_eq_u32 s12, s13')
    a('s_cbranch_scc1 reloop')
    a('v_mov_b32 v7, s12')
    a('s_cmp_eq_u64 s[62:63], 0')
    a('s_cbranch_scc0 reslow')
    a('buffer_store_dword v7, off, s[8:11], s48')
    a('s_branch renext')
    a.label('reslow')
    a('buffer_store_dword v7, off, s[8:11], s48 sc1')
    a.label('renext')
    a('s_cmp_lt_u32 s12, 63')
    a('s_cbranch_scc1 reloop')
    a('s_endpgm')

    def loop(role, mode):
        SC = ' sc1' if mode == 'S' else ''
        ORDER = ORD_S if role == 's' else ORD_C
        TACC = 20
        MF = 48 if role == 's' else 52
        SB, TA, SACC = 76, 100, 108
        VB, PF, CACC, DB, RT = 52, 60, 72, 80, 112
        TMP = TA if role == 's' else 19
        tails = []
        a.l.append('.p2align 6')
        a.label(role + 'loop' + mode)
        if dev:
            l = a.new('p4')
            a('s_cmp_eq_u32 s12, 4')
            a('s_cbranch_scc0 %s', l)
            a('s_memrealtime s[98:99]')
            a.label(l)
            l = a.new('pp')
            a('s_cmp_eq_u32 s12, 8')
            a('s_cbranch_scc0 %s', l)
            a('s_memtime s[78:79]')
            a('s_memrealtime s[88:89]')
            a.label(l)
        if 'stall' in dev and role == 'c':
            a('s_waitcnt lgkmcnt(0)')
            a('s_mov_b32 s70, s76')
        def mpoll():
            a('buffer_load_dwordx4 %s, v1, s[8:11], s32 offen sc1', V(MF, 4))
            a('buffer_load_dwordx4 %s, v1, s[8:11], s33 offen sc1', V(MF + 4, 4))
        NE = 0
        if role == 'c':
            for x in dev:
                if x.startswith('ne'): NE = int(x[2:])
            dd = ddma('s38', 's6') if 'nod' not in dev else []
            a('s_xor_b32 s37, s37, 0x18000')
            a('s_cmp_lg_u32 s13, 0')
            lslow, lback = a.new('dq'), a.new('db')
            a('s_cbranch_scc1 %s', lslow)
            a.label(lback)
            tails.append(('dw', lslow, lback))
            a('s_mov_b32 m0, s37')
            a('s_nop 0')
            for grp in dd[:NE]:
                for ins in grp: a(ins)
                if len(grp) > 1: a('s_nop 0')
        CL = 'cearly' not in dev
        if role == 'c' and not CL: mpoll()
        ZA, ZN = (10, 21) if 'noz' not in dev else (0, 0)
        for x in dev:
            if x.startswith('za'): ZA = int(x[2:]); ZN = ZA + 11
        for r in range(ZN if role == 's' else 0, MF - TACC): a('v_mov_b32 v%d, 0', TACC + r)
        if role == 'c' and not CL: mpoll()
        sc = ['s_and_b32 s30, s12, 3', 's_mul_i32 s22, s30, %d' % PSLOT, 's_add_u32 s22, s22, 0x%x' % PR,
              's_add_u32 s32, s32, %d' % UNIT, 's_add_u32 s33, s33, %d' % UNIT]
        if role == 's':
            for r in range(12): a('v_mov_b32 v%d, 0', SACC + r)
            for i in range(5): a('v_add_u32 v%d, s%d, v1', TA + 2 + i, 17 + i)
            radr = [TA + 2 + i for i in range(5)]
            if 'xt' in dev:
                a('s_add_u32 s36, s36, s50')
                a('s_mov_b32 m0, s36')
            sc += ['s_add_u32 s31, s12, 3', 's_and_b32 s31, s31, 3', 's_mul_i32 s24, s31, %d' % PSLOT, 's_add_u32 s24, s24, s27',
                   's_min_u32 s24, s24, 0x%x' % OOB]
        else:
            radr = [4, 5, 7, 12, 13]
            sc += ['s_lshl_b32 s31, s3, 11', 's_add_u32 s43, s22, s31', 's_sub_u32 s42, s32, s15', 's_xor_b32 s30, s37, 0x18000']
        MD = 2
        if role == 's':
            MD = 3
            for x in dev:
                if x.startswith('md'): MD = int(x[2:])
            for r in range(8): a('v_mov_b32 v%d, -1', MF + r)
            if 'now' not in dev: a('s_waitcnt vmcnt(0)')
        elif CL:
            MD = 1
            for x in dev:
                if x.startswith('cd'): MD = int(x[2:])
            for r in range(8): a('v_mov_b32 v%d, -1', MF + r)
            if 'cnw' not in dev: a('s_waitcnt vmcnt(0)')
        a('s_mov_b32 s14, 0')
        def smf(i):
            t, lam = ORDER[i]
            if 'nomf' + role in dev: a('s_nop 3'); return
            if 'chalf' in dev and role == 'c' and i >= 42: return
            for x in dev:
                if x.startswith('cs') and role == 'c': a('s_nop %d', int(x[2:]))
            a('v_smfmac_f32_16x16x64_bf16 %s, %s, %s, v2', V(TACC + 4 * t, 4), V(MF + 4 * lam, 4), Wreg(i))
        lp, lf = a.new('mp'), a.new('mf')
        if role == 'c' and not CL: a('s_branch %s', lp)
        a.label(lf)
        for x in dev:
            if x.startswith('ms' + role): a('s_sleep %d', int(x[3:]))
        mpoll()
        a('s_add_u32 s14, s14, 1')
        a('s_cmp_lt_u32 s14, %d', SPIN)
        a('s_cbranch_scc0 tdie')
        for x in dev:
            if x.startswith('spec') and role == 's':
                a('s_nop 1')
                for r in range(4 * int(x[4:])): a('v_mov_b32 v%d, 0', TACC + r)
        a.label(lp)
        a('s_waitcnt vmcnt(%d)', 2 * MD - 2)
        if 'lite' in dev: a('v_max_u32 v3, v%d, v%d', MF + 3, MF + 7)
        else:
            a('v_max3_u32 v3, v%d, v%d, v%d', MF, MF + 1, MF + 2)
            a('v_max3_u32 v%d, v%d, v%d, v%d', TMP, MF + 3, MF + 4, MF + 5)
            a('v_max3_u32 v3, v%d, v%d, v3', MF + 6, MF + 7)
            a('v_max_u32 v3, v%d, v3', TMP)
        a('v_cmp_eq_u32 vcc, -1, v3')
        if 'm0' in dev:
            a('ds_write_b128 v16, %s', V(MF, 4))
            a('ds_write_b128 v17, %s', V(MF + 4, 4))
        NSP = 0
        for x in dev:
            if x.startswith('spec') and role == 's': NSP = int(x[4:])
        for k in range(NSP):
            smf(k)
            if k == 0: a('ds_write_b128 v16, %s', V(MF, 4))
        a('s_cbranch_vccnz %s', lf)
        stamp(0)
        N = len(ORDER)
        gm = [[] for _ in range(N + 12)]
        gv = [[] for _ in range(N + 12)]
        pre = [[] for _ in range(N + 12)]
        rd = ['ds_read_b128 %s, v%d' % (V(MF + 8 + 4 * i, 4), radr[i]) for i in range(5)]
        if 'm0' not in dev:
            gm[0].append('ds_write_b128 v16, %s' % V(MF, 4))
            gm[1].append('ds_write_b128 v17, %s' % V(MF + 4, 4))
        GB = 5
        for x in dev:
            if x.startswith('gb') and role == 's': GB = int(x[2:])
        gm[GB] += ['s_waitcnt lgkmcnt(0)', 's_barrier', rd[0]]
        for i in range(1, 5): gm[GB + i].append(rd[i])
        for k in range(0, len(sc), 2): gv[(8 if role == 'c' else 20) + k // 2] += sc[k:k + 2]
        def place(ins, lo):
            k = lo
            while gm[k]: k += 1
            gm[k] += ins if isinstance(ins, list) else [ins]
            return k
        if role == 's':
            B0 = 21
            def epi(t):
                c = TACC + 4 * t
                return (['v_add_f32 v%d, v%d, v%d' % (c, c, c + 2), 'v_add_f32 v%d, v%d, v%d' % (c + 1, c + 1, c + 3),
                         'v_cvt_pk_bf16_f32 v%d, v%d, v%d' % (c, c, c + 1)], ['ds_write_b32 v4, v%d offset:%d' % (c, 256 * t)])
            for t in range(6):
                v, m = epi(t)
                for i, ins in enumerate(v): gv[B0 + 4 * t + 7 + i].append(ins)
                gm[B0 + 4 * t + 10].append(m[0])
            place('ds_read_b64_tr_b16 %s, v5' % V(TA, 2), B0 + 23)
            place('ds_read_b64_tr_b16 %s, v5 offset:128' % V(TA + 2, 2), B0 + 24)
            def brd(step, xb0, xb1, mb):
                r = []
                for kt, b in ((0, xb0), (1, xb1)):
                    for hh in range(2):
                        r.append('ds_read_b128 %s, v6 offset:%d' % (V(b + 4 * hh, 4), kt * 14336 + (2 * step + hh) * 1024))
                ad = 'v8' if step == 0 else 'v9'
                for hh in range(2):
                    for qq in range(2):
                        r.append('ds_read2_b32 %s, %s offset0:%d offset1:%d' % (V(mb + 4 * hh + 2 * qq, 2), ad, 128 * hh + qq, 128 * hh + qq + 8))
                return r
            place('buffer_load_dword v18, off, s[8:11], s49 sc1', GB)
            place('buffer_load_dword v19, v7, s[8:11], s38 offen' if 'notouch' not in dev else 'buffer_load_dword v19, off, s[8:11], s49 sc1', GB)
            if 'xt' in dev:
                xl = [['buffer_load_dwordx4 v1, s[8:11], s34 offen offset:%d sc1 lds' % (1024 * i)] for i in range(4)]
                xl[3] += ['s_add_u32 m0, s36, 4096', 's_add_u32 s28, s34, 4096']
                xl += [['buffer_load_dwordx4 v1, s[8:11], s28 offen offset:%d sc1 lds' % (1024 * i)] for i in range(3)]
                k, xs = GB + 7, 4
                for x in dev:
                    if x.startswith('xs'): xs = int(x[2:])
                for grp in xl: k = place(grp, k) + xs
            BL = 12
            for x in dev:
                if x.startswith('bl'): BL = int(x[2:])
            for ins in brd(0, SB, SB + 8, SB + 16): place(ins, BL)
            b1 = brd(1, TACC, TACC + 8, MF)
            k = 20
            while gm[k]: k += 1
            yv = sum(1 for kk in range(k) for x in gm[kk] if x.startswith('buffer_'))
            k = place(['s_waitcnt vmcnt(%d)' % yv, b1[4]], 20)
            for ins in b1[5:]: place(ins, k)
            for ins in b1[0:2]: place(ins, B0 + 15)
            for ins in b1[2:4]: place(ins, B0 + 23)
            def younger_ds(k0, k1): return sum(1 for kk in range(k0, k1) for x in gm[kk] if x.startswith('ds_'))
            pre[14].append('s_waitcnt lgkmcnt(%d)' % younger_ds(GB + 1, 14))
            pre[B0].append('s_waitcnt lgkmcnt(%d)' % younger_ds(GB + 5, B0))
        else:
            pre[16].append('s_waitcnt lgkmcnt(4)')
            pre[24].append('s_waitcnt lgkmcnt(0)')
            sp = 4
            for x in dev:
                if x.startswith('sp') and x[2:].isdigit(): sp = int(x[2:])
            rest = dd[NE:]
            for i, grp in enumerate(rest): gm[12 + sp * i] += grp
            gm[10].append('buffer_load_dword v18, off, s[8:11], s49 sc1')
            def cepi(t):
                c = TACC + 4 * t
                return (['v_add_f32 v%d, v%d, v%d' % (c, c, c + 2), 'v_add_f32 v%d, v%d, v%d' % (c + 1, c + 1, c + 3),
                         'v_cvt_pk_bf16_f32 v%d, v%d, v%d' % (c, c, c + 1)], 'ds_write_b32 v19, v%d offset:%d' % (c, 256 * t))
            for t in range(8):
                v, m = cepi(t)
                for i_, ins in enumerate(v): gv[32 + 3 * t + 6 + i_].append(ins)
                gm[32 + 3 * t + 9].insert(0, m)
            wr = ['ds_read_b128 %s, v14 offset:%d' % (V(CSPILL[i >> 1] + 4 * (i & 1), 4), 1024 * i) for i in range(14)]
            for ins in wr[:10]: place(ins, 17)
            k = 30
            while gm[k]: k += 1
            younger = sum(1 for kk in range(k) for x in gm[kk] if x.startswith('buffer_'))
            k = place(['s_waitcnt vmcnt(%d)' % younger, wr[10]], 30)
            place(wr[11], k)
            for ins in wr[12:]: kl = place(ins, 33)
            def yds(k0, k1): return sum(1 for kk in range(k0, k1) for x in gm[kk] if x.startswith('ds_'))
            pre[24] = ['s_waitcnt lgkmcnt(%d)' % yds(GB + 5, 24)]
            pre[49].append('s_waitcnt lgkmcnt(%d)' % yds(kl + 1, 49))
            gv[20].append('v_add_u32 v15, s30, v1')
            gv[21].append('v_lshrrev_b32 v3, 4, v0')
            gv[22].append('v_lshl_add_u32 v3, v3, 2, s48')
            gv[23].append('v_and_b32 v19, 15, v0')
            gv[24].append('v_lshl_add_u32 v19, v19, 4, v3')
            gv[25].append('v_add_u32 v3, s48, v1')
        for k in range(N):
            for ins in pre[k]: a(ins)
            if k >= NSP: smf(k)
            if k == 0 and NSP: continue
            for ins in gm[k] + gv[k]: a(ins)
        stamp(1)
        if role == 's':
            for kk in range(N, N + 3):
                for ins in gm[kk] + gv[kk]: a(ins)
            assert not any(gm[N + 3:]) and not any(gv[N + 3:])
            a('s_cmp_lt_u32 s3, 2')
            a('s_nop 1')
            v, m = epi(6)
            a('v_pk_add_f32 %s, %s, %s', V(TACC + 24, 2), V(TACC + 24, 2), V(TACC + 26, 2))
            for ins in v[2:] + m: a(ins)
            a('ds_read_b64_tr_b16 %s, v5 offset:1024', V(TA + 4, 2))
            a('ds_read_b64_tr_b16 %s, v5 offset:1152', V(TA + 6, 2))
            a('s_waitcnt lgkmcnt(7)')
            for kt in range(3):
                a('v_smfmac_f32_16x16x64_bf16 %s, %s, %s, v2', V(SACC + 4 * kt, 4), V(TA, 4), V(SB + 8 * kt, 8))
            a('s_waitcnt lgkmcnt(0)')
            for kt, b in enumerate((TACC, TACC + 8, MF)):
                a('v_smfmac_f32_16x16x64_bf16 %s, %s, %s, v2', V(SACC + 4 * kt, 4), V(TA + 4, 4), V(b, 8))
            a('s_nop %d', 5 if 'tight' not in dev else 1)
            def sadd(kt):
                c = SACC + 4 * kt
                if 'nopk' not in dev: a('v_pk_add_f32 %s, %s, %s', V(c, 2), V(c, 2), V(c + 2, 2))
                else:
                    a('v_add_f32 v%d, v%d, v%d', c, c, c + 2)
                    a('v_add_f32 v%d, v%d, v%d', c + 1, c + 1, c + 3)
            def swr(kt):
                c = SACC + 4 * kt
                if kt < 2: a('ds_write2_b32 v10, v%d, v%d offset0:%d offset1:%d', c, c + 1, 32 * kt, 32 * kt + 64)
                else: a('ds_write2_b32 v15, v%d, v%d offset0:2 offset1:66', c, c + 1)
            if 'so0' not in dev: sadd(0); sadd(1); swr(0); sadd(2); swr(1); swr(2)
            else:
                for kt in range(3): sadd(kt); swr(kt)
            lns, ljn = a.new('ns'), a.new('jn')
            a('s_cbranch_scc0 %s', lns)
            tails.append(('nv', lns, ljn))
            for r in range(ZA): a('v_mov_b32 v%d, 0', TACC + r)
            a('s_waitcnt lgkmcnt(0)')
            if ZA: a('v_mov_b32 v%d, 0', TACC + ZA)
            a('s_barrier')
            stamp(2)
            for w in range(4): a('ds_read_b96 %s, v11 offset:%d', V(76 + 4 * w, 3), 2048 * w) if 'b96' in dev else a('ds_read_b128 %s, v11 offset:%d', V(76 + 4 * w, 4), 2048 * w)
            for r in range(ZA + 1, ZN): a('v_mov_b32 v%d, 0', TACC + r)
            a('s_waitcnt lgkmcnt(2)')
            a('v_pk_add_f32 v[76:77], v[76:77], v[80:81]')
            a('v_add_f32 v78, v78, v82')
            a('s_waitcnt lgkmcnt(0)')
            a('v_pk_add_f32 v[84:85], v[84:85], v[88:89]')
            a('v_add_f32 v86, v86, v90')
            a('v_pk_add_f32 v[76:77], v[76:77], v[84:85]')
            a('v_add_f32 v78, v78, v86')
            DP = ('quad_perm:[1,0,3,2]', 'quad_perm:[2,3,0,1]', 'row_half_mirror', 'row_mirror')
            def dpp(op, d, s_, ctl): a('%s_dpp v%d, v%d, v%d %s row_mask:0xf bank_mask:0xf', op, d, s_, s_, ctl)
            a('v_max3_f32 v84, v76, v77, v78')
            a('v_sub_f32 v76, v76, v84')
            a('v_sub_f32 v77, v77, v84')
            dpp('v_max_f32', 85, 84, DP[0])
            a('v_sub_f32 v78, v78, v84')
            a('v_exp_f32 v76, v76')
            dpp('v_max_f32', 85, 85, DP[1])
            a('v_exp_f32 v77, v77')
            a('s_nop 0')
            dpp('v_max_f32', 85, 85, DP[2])
            a('v_exp_f32 v78, v78')
            a('v_add_f32 v86, v76, v77')
            dpp('v_max_f32', 85, 85, DP[3])
            a('v_sub_f32 v84, v84, v85')
            a('v_exp_f32 v84, v84')
            a('v_fmac_f32 v86, v78, v14')
            a('v_mul_f32 v86, v86, v84')
            a('v_mul_f32 v76, v76, v84')
            a('v_mul_f32 v77, v77, v84')
            dpp('v_add_f32', 86, 86, DP[0])
            a('v_mul_f32 v78, v78, v84')
            a('s_nop 0')
            for ctl in DP[1:]:
                dpp('v_add_f32', 86, 86, ctl)
                if ctl != DP[3]: a('s_nop 1')
            a('v_rcp_f32 v86, v86')
            a('s_nop 0')
            a('v_mul_f32 v76, v76, v86')
            a('v_mul_f32 v77, v77, v86')
            a('v_cvt_pk_bf16_f32 v88, |v76|, |v77|')
            a('buffer_store_dword v88, v12, s[8:11], s22 offen' + SC)
            a('v_mul_f32_dpp v79, v78, v86 row_shl:4 row_mask:0xf bank_mask:0xf bound_ctrl:0')
            a('v_mul_f32 v78, v78, v86')
            a('v_cvt_pk_bf16_f32 v90, |v78|, |v79|')
            a('buffer_store_dword v90, v13, s[8:11], s22 offen' + SC)
            stamp(3)
            a('s_waitcnt vmcnt(%d)', 3 + (7 if 'xt' in dev else 0))
            a('s_barrier')
            if 'nox' not in dev: xdma()
            a.label(ljn)
            a('v_add_u32 v7, %d, v7', XSEG)
            a('s_mov_b64 exec, s[62:63]')
            a('v_add_u32 v7, %d, v7', DSEG - XSEG)
            a('s_mov_b64 exec, -1')
            a('s_add_u32 s31, s12, 3')
            fcheck(18, 3, 's31')
            a('s_cselect_b32 s38, 0x%x, 0', OOB)
            a('s_cmp_gt_u32 s31, 62')
            a('s_cselect_b32 s38, 0x%x, s38', OOB)
            for x in dev:
                if x.startswith('ds'): a('s_sleep %d', int(x[2:]))
        else:
            def pld1(k):
                a('buffer_load_dwordx4 %s, %s, s[8:11], s43 offen offset:%d sc1', V(PF + 4 * k, 4), 'v10' if k else 'v6', 1024 if k == 2 else 0)
            def pld():
                for k in range(3): pld1(k)
            l0, l1 = a.new('d0'), a.new('d1')
            a('s_cmp_eq_u32 s7, 1')
            a('s_cbranch_scc1 %s', l0)
            a.label(l1)
            tails.append(('d0', l0, l1))
            for i in range(8): a('ds_read_b128 %s, v15 offset:%d', V(DB + 4 * i, 4), 1024 * (i & 3) + 16384 * (i >> 2))
            pld()
            for kk in range(N, N + 12):
                for ins in gm[kk] + gv[kk]: a(ins)
            a('ds_read_b128 %s, v3', V(VB, 4))
            a('ds_read_b128 %s, v3 offset:1024', V(VB + 4, 4))
            a('v_add_u32 v15, 2048, v8')
            a('s_waitcnt vmcnt(3)')
            a('s_add_u32 s35, s35, %d', DSEG)
            a('s_add_u32 s31, s12, 2')
            fcheck(18, 3, 's31')
            a('s_cselect_b32 s13, 1, 0')
            a('s_add_u32 s6, s35, 16384')
            a('s_cmp_gt_u32 s31, 62')
            a('s_cselect_b32 s38, 0x%x, s35', OOB)
            a('s_cselect_b32 s6, 0x%x, s6', OOB)
            a('s_cselect_b32 s13, 0, s13')
            a('s_mov_b32 s14, 0')
            stamp(4)
            a('s_waitcnt lgkmcnt(0)')
            lr, lq = a.new('pr'), a.new('pq')
            def pchk():
                a('v_or3_b32 v3, v%d, v%d, v%d', PF, PF + 1, PF + 2)
                a('v_or3_b32 v19, v%d, v%d, v%d', PF + 3, PF + 4, PF + 5)
                a('v_or3_b32 v3, v%d, v%d, v3', PF + 6, PF + 7)
                a('v_or3_b32 v19, v%d, v%d, v19', PF + 8, PF + 9)
                a('v_or3_b32 v3, v%d, v%d, v3', PF + 10, PF + 11)
                a('v_or_b32 v3, v19, v3')
                a('v_cmp_gt_i32 vcc, 0, v3')
            def dn(tl): a('v_mfma_f32_16x16x32_bf16 %s, %s, %s, 0', V(CACC + 4 * tl, 4), V(PF, 4), V(VB + 4 * tl, 4))
            def sp_(tl, k): a('v_smfmac_f32_16x16x64_bf16 %s, %s, %s, v2', V(CACC + 4 * tl, 4), V(PF + 4 + 4 * k, 4), V(DB + 16 * tl + 8 * k, 8))
            for x in dev:
                if x.startswith('pw'): a('s_sleep %d', int(x[2:]))
            a.label(lr)
            pld()
            a('s_add_u32 s14, s14, 1')
            a('s_cmp_lt_u32 s14, %d', SPIN)
            a('s_cbranch_scc0 tdie')
            a('s_cmp_lt_u32 s3, 2')
            a('s_waitcnt vmcnt(3)')
            if 'cold' in dev:
                pchk()
                dn(0)
                a('s_cbranch_vccnz %s', lr)
                sp_(0, 0); sp_(0, 1); dn(1); sp_(1, 0); sp_(1, 1)
                stamp(5)
                n0, n1 = None, 4
            else:
                a('v_or3_b32 v3, v%d, v%d, v%d', PF, PF + 1, PF + 2)
                a('v_or3_b32 v3, v%d, v%d, v3', PF + 3, PF + 4)
                dn(0)
                a('v_or3_b32 v3, v%d, v%d, v3', PF + 5, PF + 6)
                dn(1)
                a('v_or3_b32 v3, v%d, v%d, v3', PF + 7, PF + 8)
                sp_(0, 0)
                a('v_or3_b32 v3, v%d, v%d, v3', PF + 9, PF + 10)
                sp_(1, 0)
                a('v_or_b32 v3, v%d, v3', PF + 11)
                sp_(0, 1)
                a('v_cmp_gt_i32 vcc, 0, v3')
                sp_(1, 1)
                a('s_cbranch_vccnz %s', lr)
                stamp(5)
                n0, n1 = 4, None
            if n0: a('s_nop %d', n0)
            a('v_pk_add_f32 %s, %s, %s', V(CACC, 2), V(CACC, 2), V(CACC + 2, 2))
            if n1: a('s_nop %d', n1 + 2)
            else: a('s_nop 0')
            a('v_pk_add_f32 %s, %s, %s', V(CACC + 4, 2), V(CACC + 4, 2), V(CACC + 6, 2))
            a('ds_write2_b32 v8, v%d, v%d offset0:0 offset1:16', CACC, CACC + 1)
            a('ds_write2_b32 v15, v%d, v%d offset0:0 offset1:16', CACC + 4, CACC + 5)
            lnr, ljr = a.new('nr'), a.new('jr')
            a('s_cbranch_scc0 %s', lnr)
            tails.append(('ns', lnr, ljr))
            a('s_waitcnt lgkmcnt(0)')
            a('s_barrier')
            for w in range(4): a('ds_read_b64 %s, v9 offset:%d', V(RT + 2 * w, 2), 512 * w)
            a('s_waitcnt lgkmcnt(2)')
            a('v_pk_add_f32 %s, %s, %s', V(RT, 2), V(RT, 2), V(RT + 2, 2))
            a('s_waitcnt lgkmcnt(0)')
            a('v_pk_add_f32 %s, %s, %s', V(RT + 4, 2), V(RT + 4, 2), V(RT + 6, 2))
            a('v_pk_add_f32 %s, %s, %s', V(RT, 2), V(RT, 2), V(RT + 4, 2))
            a('v_cvt_pk_bf16_f32 v%d, v%d, v%d', RT, RT, RT + 1)
            a('v_min_u32 v%d, -2, v%d', RT, RT)
            a('buffer_store_dword v%d, v11, s[8:11], s42 offen%s', RT, SC)
            stamp(6)
            a('s_barrier')
            a('s_mov_b32 s40, 0x%x', MEME + 63 * UNIT)
            a.label(ljr)
            for x in dev:
                if x.startswith('dc'): a('s_sleep %d', int(x[2:]))
        if dev and role == 's':
            l = a.new('ts')
            a('s_lshl_b32 s30, s4, 2')
            a('s_add_u32 s30, s30, s3')
            a('s_cmp_eq_u32 s30, 63')
            a('s_cbranch_scc0 %s', l)
            a('s_memtime s[80:81]')
            a('s_memrealtime s[82:83]')
            a('s_lshl_b32 s30, s12, 2')
            a('s_add_u32 s30, s30, 0x3F30000')
            a('s_waitcnt lgkmcnt(0)')
            a('v_mov_b32 v99, s80')
            a('v_mov_b32 v98, s82')
            a('buffer_store_dword v99, off, s[8:11], s30')
            a('buffer_store_dword v98, off, s[8:11], s30 offset:256')
            a.label(l)
        if dev:
            ld = a.new('dv')
            a('s_cmp_eq_u32 s12, 40')
            a('s_cbranch_scc0 %s', ld)
            a('s_memtime s[80:81]')
            a('s_memrealtime s[82:83]')
            a('s_waitcnt lgkmcnt(0)')
            a('s_sub_u32 s78, s80, s78')
            a('s_sub_u32 s88, s82, s88')
            a('s_lshl_b32 s30, s5, 4')
            a('s_add_u32 s30, s30, s4')
            a('s_lshl_b32 s30, s30, 2')
            a('s_add_u32 s30, s30, s3')
            a('s_lshl_b32 s30, s30, 6')
            a('s_add_u32 s30, s30, 0x3F00000')
            for kk in range(13):
                a('v_mov_b32 v99, s%d', 64 + 2 * kk)
                a('buffer_store_dword v99, off, s[8:11], s30 offset:%d', 4 * kk)
                a('s_nop 1')
            a.label(ld)
        a('s_add_u32 s12, s12, 1')
        a('s_cmp_lt_u32 s12, 63')
        a('s_cbranch_scc1 %sloop%s', role, mode)
        if role == 'c':
            a('buffer_store_dword v%d, v11, s[8:11], s40 offen sc1', RT)
            if mode == 'F' and WB:
                l = a.new('wb')
                a('s_or_b32 s30, s3, s4')
                a('s_cbranch_scc1 %s', l)
                a('s_waitcnt vmcnt(0)')
                a('buffer_wbl2 sc1')
                a('s_waitcnt vmcnt(0)')
                a.label(l)
        if dev:
            a('s_memrealtime s[82:83]')
            a('s_waitcnt lgkmcnt(0)')
            a('s_lshl_b32 s30, s2, 4')
            a('s_add_u32 s30, s30, 0x3F10000')
            for kk, r in enumerate((90, 84, 82)):
                a('v_mov_b32 v99, s%d', r)
                a('buffer_store_dword v99, off, s[8:11], s30 offset:%d', 4 * kk)
                a('s_nop 1')
            amp = [x for x in dev if x.startswith('amp')]
            if amp and role == amp[0][3]:
                k = amp[0][4]
                if k == '1': a('s_sub_u32 s31, s84, s92'); a('s_mul_i32 s31, s31, 10')
                if k == '2': a('s_sub_u32 s31, s82, s84'); a('s_mul_i32 s31, s31, 2')
                if k == '3': a('s_sub_u32 s31, s90, s92'); a('s_mul_i32 s31, s31, 10')
                if k == '4': a('s_sub_u32 s31, s96, s92'); a('s_mul_i32 s31, s31, 10')
                if k == '5': a('s_sub_u32 s31, s98, s92'); a('s_mul_i32 s31, s31, 10')
                if k == '0': a('s_mov_b32 s31, 2000')
                l = a.new('am')
                a.label(l)
                a('s_sleep 4')
                a('s_memrealtime s[80:81]')
                a('s_waitcnt lgkmcnt(0)')
                a('s_sub_u32 s30, s80, s82')
                a('s_cmp_lt_u32 s30, s31')
                a('s_cbranch_scc1 %s', l)
            if 'dbgt' in dev:
                l = a.new('dt')
                a('s_cmp_eq_u32 s4, 5')
                a('s_cbranch_scc0 %s', l)
                a('s_lshl_b32 s30, s5, 4')
                for kk, r in enumerate((90, 84, 82, 78)):
                    if r != 78: a('s_sub_u32 s31, s%d, s92', r)
                    else: a('s_mov_b32 s31, s78')
                    a('v_mov_b32 v99, s31')
                    a('buffer_store_dword v99, off, s[44:47], s30 offset:%d', 4 * kk)
                    a('s_nop 1')
                a.label(l)
        a('s_endpgm')
        for p in tails:
            a.label(p[1])
            if p[0] == 'dw':
                a('s_add_u32 s31, s12, 1')
                dwait('s31')
                a('s_branch %s', p[2])
            elif p[0] == 'd0':
                lp = a.new('dz')
                a('s_waitcnt vmcnt(0)')
                a('v_and_b32 v18, 1, v0')
                a('v_lshlrev_b32 v18, 2, v18')
                a('v_bfe_u32 v%d, v0, 1, 1', DB)
                a('v_lshl_add_u32 v%d, v%d, 7, v18', DB, DB)
                a('s_lshl_b32 s31, s4, 3')
                a('s_add_u32 s31, s31, 0x%x', DPROG)
                a('s_mov_b32 s14, 0')
                a.label(lp)
                a('buffer_load_dword v18, v%d, s[8:11], s31 offen sc1', DB)
                a('s_add_u32 s14, s14, 1')
                a('s_cmp_lt_u32 s14, %d', SPIN)
                a('s_cbranch_scc0 tdie')
                a('s_waitcnt vmcnt(0)')
                a('v_cmp_eq_u32 vcc, 0, v18')
                a('s_cbranch_vccnz %s', lp)
                for seg in range(2):
                    for tl in range(2):
                        if seg == 0: a('s_xor_b32 s31, s37, 0x18000')
                        else: a('s_mov_b32 s31, s37')
                        a('s_add_u32 m0, s31, %d', 16384 * tl)
                        a('s_add_u32 s31, s35, %d', 16384 * tl - (DSEG if seg == 0 else 0))
                        for i in range(4): a('buffer_load_dwordx4 v1, s[8:11], s31 offen offset:%d sc1 lds', 1024 * i)
                a('buffer_load_dword v18, off, s[8:11], s49 sc1')
                a('s_waitcnt vmcnt(9)')
                a('s_mov_b32 s7, 0')
                a('s_branch %s', p[2])
            elif p[0] == 'nv':
                for r in range(4): a('v_mov_b32 v%d, -1', 92 + r)
                a('s_waitcnt lgkmcnt(0)')
                a('s_barrier')
                a('buffer_store_dwordx4 v[92:95], v1, s[8:11], s24 offen' + SC)
                if 'xe' in dev: xdma()
                a('s_waitcnt vmcnt(%d)', 2 + (7 if 'xe' in dev else 0))
                a('s_barrier')
                if 'xe' not in dev and 'nox' not in dev: xdma()
                for r in range(ZN): a('v_mov_b32 v%d, 0', TACC + r)
                a('s_branch %s', p[2])
            elif p[0] == 'ns':
                a('s_waitcnt lgkmcnt(0)')
                a('s_barrier')
                a('s_barrier')
                a('s_branch %s', p[2])
    for mode in 'FS':
        for role in 'sc': loop(role, mode)
```

```python
import sys
from common import *
import fold, team, workers

HEADER = open('cdna_kernels/%s.s.ref' % NAME).read().split('; Override launch geometry')[0]
MAIN_LDS = team.TEAM_LDS

def kd(name, vgpr, acc, sgpr):
    return '''.p2align 6
.amdhsa_kernel %s
  .amdhsa_next_free_vgpr %d
  .amdhsa_next_free_sgpr %d
  .amdhsa_accum_offset %d
  .amdhsa_group_segment_fixed_size 0
  .amdhsa_kernarg_size 120
  .amdhsa_user_sgpr_count 2
  .amdhsa_user_sgpr_kernarg_segment_ptr 1
  .amdhsa_system_sgpr_workgroup_id_x 1
.end_amdhsa_kernel
''' % (name, vgpr, sgpr, acc)

def build(mask, dev=False, aslist=False):
    a = Asm()
    workers.DEV = fold.DEV = bool(dev)
    fold.FINE = bool(dev) and 'fine' in dev
    if dev and 'ov' in dev.split('+'): fold.OVERLAP = True
    for x in (dev or '').split('+'):
        if x.startswith('fd'): fold.DEPTH = int(x[2:])
        if x.startswith('bo'): workers.BACKOFF = int(x[2:])
        if x.startswith('msl'): workers.MSLEEP = int(x[3:])
        if x == 'norot': fold.ROT = False
        if x == 'x3': workers.NSET_X, workers.NSET_O = 3, 13
        if x.startswith('fo'): workers.NSET_O = int(x[2:])
        if x.startswith('lead'): workers.LEAD = int(x[4:])
        if x == 'imm': workers.IMM = True
        if x == 'now0': workers.W0 = False
        if x == 'wst01': fold.WST = 'sc0 sc1'
        if x == 'wstnt': fold.WST = 'nt sc1'
        if x.startswith('af'): fold.AFIRST = int(x[2:]); fold.BYK = False
    workers.DBGT = fold.DBGT = bool(dev) and 'dbgt' in dev
    nm = NAME + '_kernel'
    a.l.append('.globl %s\n.p2align 8\n.type %s,@function' % (nm, nm))
    a.label(nm)
    a('s_cmp_ge_u32 s2, 256')
    a('s_cbranch_scc1 quit')
    if dev: a('s_memrealtime s[92:93]')
    a('s_load_dwordx8 s[64:71], s[0:1], 0')
    a('s_load_dwordx4 s[72:75], s[0:1], 32')
    a('s_load_dwordx2 s[76:77], s[0:1], %d', KA['gw'])
    a('s_load_dwordx4 s[52:55], s[0:1], %d', KA['dbg'])
    a('v_lshrrev_b32 v1, 6, v0')
    a('v_and_b32 v0, 63, v0')
    a('v_readfirstlane_b32 s3, v1')
    if not (dev and 'nocw' in dev):
        a('s_getpc_b64 s[32:33]')
        a.label('pcref')
        a('s_lshr_b32 s31, s2, 3')
        a('s_lshl_b32 s31, s31, 2')
        a('s_add_u32 s31, s31, s3')
        a('s_and_b32 s31, s31, 7')
        a('s_lshl_b32 s31, s31, 13')
        a('v_lshl_add_u32 v252, v0, 7, s31')
        a('v_min_u32 v252, codeend-pcref-4, v252')
        a('global_load_dword v253, v252, s[32:33]')
    a('s_waitcnt lgkmcnt(0)')
    a.srd(8, 54, team.OOB)
    a.srd(44, 52, 256)
    a.srd(60, 72, WBYTES)
    a.srd(16, 74, WBYTES)
    a.srd(36, 68, WBYTES)
    a.srd(56, 70, WBYTES)
    a.srd(20, 64, XBYTES)
    a.srd(24, 76, 896)
    a.srd(40, 66, 7168)
    fold.tl(a, 0)
    a('s_and_b32 s31, s2, 7')
    a('s_lshr_b32 s53, s2, 3')
    a('s_cmp_eq_u32 s31, 0')
    a('s_cbranch_scc1 die0')
    a('s_sub_u32 s31, s31, 1')
    a('s_lshl_b32 s31, s31, 5')
    a('s_add_u32 s53, s53, s31')
    fold.gen_fold(a)
    a('s_cmp_eq_u32 s5, 1')
    a('s_cselect_b32 s31, 192, 0')
    for x in (dev or '').split('+'):
        if x.startswith('rs'): a('s_mov_b32 s31, %d', 224 - int(x[2:]))
    a('s_add_u32 s30, s53, s31')
    a('s_cmp_ge_u32 s30, 224')
    a('s_cselect_b32 s31, 224, 0')
    a('s_sub_u32 s30, s30, s31')
    a('s_cmp_ge_u32 s30, %d', 56 + 16 * workers.NSET_X + 28 + 7 * workers.NSET_O)
    a('s_cbranch_scc1 quit')
    for bit, n, lab in ((2, 56, 'role_d'), (4, 16 * workers.NSET_X, 'role_xs'), (8, 28, 'role_f1'), (16, 7 * workers.NSET_O, 'role_fin')):
        a('s_cmp_lt_u32 s30, %d', n)
        a('s_cbranch_scc1 %s', lab if mask & bit else 'quit')
        a('s_sub_u32 s30, s30, %d', n)
        if lab == 'role_d':
            fold.wait_started(a)
    a.label('quit')
    a('s_endpgm')
    a.label('die0')
    l = a.new('nj')
    a('s_cmp_eq_u32 s53, 31')
    a('s_cbranch_scc0 %s', l)
    fold.janitor(a)
    a.label(l)
    fold.misc_loads(a)
    a('s_getreg_b32 s31, hwreg(HW_REG_XCC_ID)')
    a('s_and_b32 s31, s31, 15')
    a('s_add_u32 s31, s31, 1')
    a('v_mov_b32 v3, s31')
    a('s_lshl_b32 s32, s53, 2')
    a('s_cmp_eq_u32 s3, 0')
    a('s_cselect_b32 s32, s32, 256')
    a('buffer_store_dword v3, off, s[44:47], s32 sc1')
    fold.unit_fill(a)
    a('s_waitcnt vmcnt(0)')
    fold.misc_rest(a)
    fold.wait_janitor(a)
    a('s_add_u32 s34, s53, 224')
    fold.set_flag(a, FLG_M, 's34')
    a('s_mov_b32 s30, s53')
    team.gen_team(a, dev)
    workers.gen_d(a, vtail=bool(mask & 16))
    workers.gen_xs(a)
    workers.gen_f1(a)
    workers.gen_fin(a)
    a.label('codeend')
    s = HEADER
    if aslist: s += '; @launch kernel=%s grid=(256,1,1) block=(256,1,1) lds=%d\n' % (nm, MAIN_LDS)
    else: s += '; @launch grid=(256,1,1) block=(256,1,1) lds=%d\n' % MAIN_LDS
    s += '.amdgcn_target "amdgcn-amd-amdhsa--gfx950"\n.text\n' + a.text()
    s += '.section .rodata,"a"\n' + kd(nm, 512, 256, 100)
    return s

if __name__ == '__main__':
    out = sys.argv[1]
    dev = sys.argv[3] if len(sys.argv) > 3 else False
    open(out, 'w').write(build(int(sys.argv[2]), dev, aslist='/bench/' in out and 'dbgt' not in (dev or '') and 'amp' not in (dev or '')))
```

```python
from common import *
import fold

L_MEM = 0
L_T = 7680
L_S = L_T + 8192
L_X = L_S + 12288
ZXS = 28672 + 512
L_C = 7680
L_V = L_C + 4096
L_D = 32768
L_W = 98304
TEAM_LDS = L_W + 57344
SPIN = 200000
OOB = 0x8000000
NTEAM = 32
WB = False

ORD_S = ([(0, 0), (1, 0), (0, 1), (1, 1), (2, 0), (3, 0), (2, 1), (3, 1), (4, 0), (5, 0), (6, 0), (4, 1), (5, 1), (6, 1)]
         + [(t, 2) for t in range(7)] + [(t, l) for t in range(7) for l in range(3, 7)])
ORD_C = [(t, l) for l in range(4) for t in range(8)] + [(t, l) for t in range(8) for l in range(4, 7)]
CSPILL = [80, 88, 96, 104, 112, 52, 60]
def Wreg(i, n=8, off=0):
    if i >= 49: return V(CSPILL[i - 49] + off, n)
    return A(8 * i + off, n) if i < 32 else V(120 + 8 * (i - 32) + off, n)

def gen_team(a, dev=False):
    dev = set(dev.split('+')) if dev else set()
    def stamp(k):
        if 'st%d' % k in dev or 'stall' in dev: a('s_memtime s[%d:%d]', 64 + 2 * k, 65 + 2 * k)
    def bits(dst, spec, first=True):
        for pos, w, sh in spec:
            a('v_bfe_u32 v3, v0, %d, %d', pos, w)
            if first: a('v_lshlrev_b32 v%d, %d, v3', dst, sh); first = False
            else: a('v_lshl_add_u32 v%d, v3, %d, v%d', dst, sh, dst)
    def spin(lp):
        a('s_add_u32 s14, s14, 1')
        a('s_cmp_lt_u32 s14, %d', SPIN)
        a('s_cbranch_scc1 %s', lp)
        a('s_endpgm')
    def xdma():
        a('s_mov_b32 m0, s36')
        a('s_add_u32 s30, s34, 4096')
        for i in range(4): a('buffer_load_dwordx4 v1, s[8:11], s34 offen offset:%d sc1 lds', 1024 * i)
        a('s_add_u32 m0, s36, 4096')
        a('s_add_u32 s34, s34, %d', XSEG)
        for i in range(3): a('buffer_load_dwordx4 v1, s[8:11], s30 offen offset:%d sc1 lds', 1024 * i)
    def ddma(src0, src1):
        r = [['buffer_load_dwordx4 v1, s[8:11], %s offen offset:%d sc1 lds' % (src0, 1024 * i)] for i in range(4)]
        r[3].append('s_add_u32 m0, s37, 16384')
        r += [['buffer_load_dwordx4 v1, s[8:11], %s offen offset:%d sc1 lds' % (src1, 1024 * i)] for i in range(4)]
        return r
    def fcheck(src, tmp, seg):
        a('v_readfirstlane_b32 s29, v%d', src)
        a('s_cmp_le_u32 s29, %s', seg)
    def dwait(seg):
        lp, ok = a.new('dw'), a.new('dk')
        a('s_mov_b32 s14, 0')
        a.label(lp)
        a('buffer_load_dword v18, off, s[8:11], s49 sc1')
        a('s_waitcnt vmcnt(0)')
        fcheck(18, 3, seg)
        a('s_cbranch_scc0 %s', ok)
        a('s_sleep 1')
        spin(lp)
        a.label(ok)
    def xcc_gather():
        lp, l2 = a.new('xc'), a.new('xo')
        a('v_min_u32 v20, %d, v0', NTEAM - 1)
        a('v_lshlrev_b32 v20, 2, v20')
        a('s_mov_b32 s14, 0')
        a.label(lp)
        a('buffer_load_dword v3, v20, s[44:47], 0 offen sc1')
        a('s_waitcnt vmcnt(0)')
        a('v_cmp_eq_u32 vcc, 0, v3')
        a('s_cbranch_vccz %s', l2)
        spin(lp)
        a.label(l2)
    def frag_offsets():
        a('s_lshl_b32 s33, s3, 1')
        for lam in range(7):
            a('s_lshl_b32 s%d, s33, 10', 15 + lam)
            if lam < 6:
                a('s_add_u32 s33, s33, 1')
                a('s_cmp_ge_u32 s33, 7')
                a('s_cselect_b32 s32, 7, 0')
                a('s_sub_u32 s33, s33, s32')
    def wload(order, tile_off, early_odd, between):
        if dev: a('s_memrealtime s[96:97]')
        for ps in range(2):
            for lam in range(7):
                l = a.new('wl')
                a('s_bitcmp1_b32 s%d, 10', 15 + lam)
                a('s_cbranch_scc%d %s', 0 if (early_odd ^ ps) else 1, l)
                a('s_waitcnt vmcnt(40)')
                a('s_lshl_b32 s33, s%d, 1', 15 + lam)
                a('s_add_u32 s33, s33, s30')
                for i, (t, lm) in enumerate(order):
                    if lm != lam: continue
                    a('s_add_u32 s32, s33, %d', tile_off(t))
                    if i >= 49:
                        a('s_add_u32 m0, s29, %d', 2048 * (i - 49))
                        a('s_nop 0')
                        a('buffer_load_dwordx4 v1, s[8:11], s32 offen sc1 lds')
                        a('buffer_load_dwordx4 v1, s[8:11], s32 offen offset:1024 sc1 lds')
                    else:
                        a('buffer_load_dwordx4 %s, v1, s[8:11], s32 offen sc1', Wreg(i, 4, 0))
                        a('buffer_load_dwordx4 %s, v1, s[8:11], s32 offen offset:1024 sc1', Wreg(i, 4, 4))
                a.label(l)
            if ps == 0: between()

    a.label('team')
    if dev: a('s_memrealtime s[90:91]')
    a('s_and_b32 s4, s30, 15')
    a('s_lshr_b32 s5, s30, 4')
    a('s_getreg_b32 s31, hwreg(HW_REG_XCC_ID)')
    a('s_and_b32 s31, s31, 15')
    a('s_add_u32 s31, s31, 1')
    a('v_mov_b32 v3, s31')
    a('s_lshl_b32 s32, s30, 2')
    a('buffer_store_dword v3, off, s[44:47], s32 sc1')
    a('v_lshlrev_b32 v1, 4, v0')
    frag_offsets()
    a('s_cmp_ge_u32 s30, 30')
    a('s_cbranch_scc1 export')
    for r in range(4, 16): a('v_mov_b32 v%d, 0', r)
    a('v_and_b32 v3, 2, v0')
    a('v_cmp_eq_u32 s[58:59], 0, v3')
    a('v_mov_b32 v2, 0xeeee')
    a('v_mov_b32 v18, 0x4444')
    a('v_cndmask_b32 v2, v2, v18, s[58:59]')
    a('v_add_u32 v16, s15, v1')
    a('v_add_u32 v17, s16, v1')
    a('s_mov_b32 s49, 0x%x', HZ)
    a('v_cmp_gt_u32 s[62:63], 56, v0')
    lv, lj = a.new('iv'), a.new('ij')
    a('s_cmp_eq_u32 s5, 1')
    a('s_cbranch_scc1 %s', lv)
    fold.wait_part(a, FLG_A, 's4', 1, True)
    a('s_mul_i32 s30, s4, 28')
    a('s_mul_i32 s32, s3, 7')
    a('s_add_u32 s30, s30, s32')
    a('s_mul_i32 s30, s30, 14336')
    wload(ORD_S, lambda t: t * 14336, 1, lambda: fold.wait_head_and_misc(a, FLG_A, 's4', 14, 24))
    a('v_and_b32 v3, 8, v0')
    a('v_cmp_eq_u32 vcc, 0, v3')
    a('s_nop 1')
    a('v_cndmask_b32 v14, 0, 1.0, vcc')
    bits(4, [(2, 2, 6), (0, 1, 5), (4, 2, 3), (1, 1, 2)])
    bits(5, [(4, 2, 8), (0, 4, 3)])
    a('s_lshl_b32 s30, s3, 11')
    a('s_add_u32 s30, s30, %d', L_T)
    a('v_add_u32 v4, s30, v4')
    a('v_add_u32 v5, s30, v5')
    a('s_mul_i32 s30, s3, 3584')
    a('s_add_u32 s30, s30, %d', L_X)
    a('v_add_u32 v6, s30, v1')
    bits(8, [(5, 1, 8), (1, 2, 6), (0, 1, 4), (4, 1, 3)])
    a('s_mul_i32 s30, s3, 1792')
    a('v_add_u32 v8, s30, v8')
    a('v_add_u32 v9, 1024, v8')
    bits(10, [(4, 2, 9), (1, 1, 6), (2, 2, 4), (0, 1, 2)])
    bits(15, [(4, 2, 9), (3, 1, 7), (0, 1, 6), (1, 2, 4)])
    a('s_lshl_b32 s31, s3, 11')
    a('s_add_u32 s31, s31, %d', L_S)
    a('v_add_u32 v10, s31, v10')
    a('v_add_u32 v15, s31, v15')
    a('s_lshl_b32 s31, s3, 10')
    a('s_add_u32 s31, s31, %d', L_S)
    a('v_add_u32 v11, s31, v1')
    a('s_lshl_b32 s30, s4, 9')
    a('s_lshl_b32 s31, s3, 8')
    a('s_add_u32 s30, s30, s31')
    a('v_lshl_add_u32 v12, v0, 2, s30')
    bits(13, [(4, 2, 4), (0, 2, 2)])
    a('s_lshl_b32 s30, s4, 7')
    a('s_lshl_b32 s31, s3, 6')
    a('s_add_u32 s30, s30, s31')
    a('s_add_u32 s30, s30, 8192')
    a('v_add_u32 v13, s30, v13')
    a('v_and_b32 v3, 12, v0')
    a('v_cmp_eq_u32 vcc, 0, v3')
    a('v_mov_b32 v18, 0x%x', OOB)
    a('s_nop 0')
    a('v_cndmask_b32 v13, v18, v13, vcc')
    a('v_mov_b32 v3, 0')
    a('v_lshlrev_b32 v18, 2, v0')
    a('ds_write_b32 v18, v3 offset:%d', L_MEM + 7168)
    for w in range(4): a('ds_write_b32 v18, v3 offset:%d', L_T + w * 2048 + 1792)
    a('v_add_u32 v18, %d, v18', L_X + 28672)
    for o in (0, 256, ZXS, ZXS + 256): a('ds_write_b32 v18, v3 offset:%d', o)
    a('s_mov_b32 s50, %d', ZXS)
    a('s_mul_i32 s30, s3, 7168')
    a('s_add_u32 s34, s30, 0x%x', XF)
    a('s_add_u32 s36, s30, %d', L_X)
    xdma()
    a('s_lshl_b32 s31, s4, 10')
    a('s_add_u32 s27, s31, 0x%x', PR)
    a('s_cmp_lt_u32 s4, 10')
    a('s_cselect_b32 s27, s27, 0x%x', OOB)
    a('s_cmp_eq_u32 s3, 2')
    a('s_cselect_b32 s27, s27, 0x%x', OOB)
    a('s_lshl_b32 s31, s4, 2')
    a('s_add_u32 s31, s31, s3')
    if 'thalf' in dev:
        a('s_mul_i32 s35, s31, 3584')
        a('v_lshl_add_u32 v7, v0, 7, s35')
        a('v_lshrrev_b32 v3, 14, v7')
        a('v_lshl_add_u32 v7, v3, 14, v7')
        a('v_add_u32 v7, 0x%x, v7', DD + 2 * DSEG + 16384)
        a('v_cmp_gt_u32 s[62:63], 28, v0')
    elif 't34' in dev:
        a('s_mul_i32 s35, s31, 42')
        a('v_add_u32 v7, s35, v0')
        a('s_movk_i32 s35, 2731')
        a('v_mul_u32_u24 v3, s35, v7')
        a('v_lshrrev_b32 v3, 16, v3')
        a('v_lshl_add_u32 v7, v3, 3, v7')
        a('v_lshlrev_b32 v7, 7, v7')
        a('v_add_u32 v7, 0x%x, v7', DD + 2 * DSEG + 1024)
        a('v_cmp_gt_u32 s[62:63], 42, v0')
    else:
        a('s_mul_i32 s35, s31, 7168')
        a('s_add_u32 s35, s35, 0x%x', DD + 2 * DSEG)
        a('v_lshl_add_u32 v7, v0, 7, s35')
    a('s_lshl_b32 s31, s31, 9')
    a('s_add_u32 s31, s31, 0x%x', XF + 2 * XSEG)
    a('v_and_b32 v3, 3, v0')
    a('v_lshl_add_u32 v3, v3, 7, s31')
    if 'tx' in dev: a('v_cmp_gt_u32 s[62:63], 0, v0'); a('s_nop 1')
    a('v_cndmask_b32 v7, v3, v7, s[62:63]')
    a('s_mov_b32 s38, 0x%x', OOB)
    a('s_branch %s', lj)
    a.label(lv)
    a('s_lshl_b32 s34, s3, 2')
    fold.wait_part(a, FLG_C, 's34', 4, False)
    a('s_mul_i32 s30, s3, 4*28')
    a('s_lshl_b32 s32, s4, 1')
    a('s_add_u32 s30, s30, s32')
    a('s_mul_i32 s30, s30, 14336')
    a('s_add_u32 s30, s30, 0x%x', WF_C)
    a('s_mul_i32 s29, s3, 14336')
    a('s_add_u32 s29, s29, %d', L_W)
    wload(ORD_C, lambda t: ((t & 3) * 28 + (t >> 2)) * 14336, 0, lambda: fold.wait_head_and_misc(a, FLG_C, 's34', 56, 24))
    a('v_add_u32 v14, s29, v1')
    for r, i in zip((4, 5, 7, 12, 13), range(5)): a('v_add_u32 v%d, s%d, v1', r, 17 + i)
    bits(6, [(4, 2, 7), (2, 2, 5), (0, 1, 4)])
    a('s_mul_i32 s30, s3, 1536')
    a('s_sub_u32 s30, 8192, s30')
    a('v_add_u32 v6, s30, v6')
    a('v_mov_b32 v18, 0x%x', OOB)
    a('v_cndmask_b32 v6, v18, v6, s[58:59]')
    bits(8, [(4, 2, 7), (0, 4, 2)])
    a('s_lshl_b32 s30, s3, 9')
    a('s_add_u32 s30, s30, %d', L_C)
    a('v_add_u32 v8, s30, v8')
    bits(10, [(5, 1, 9), (2, 2, 7), (0, 1, 6), (4, 1, 5), (1, 1, 4)])
    a('s_lshl_b32 s48, s3, 11')
    a('s_add_u32 s48, s48, %d', L_V)
    bits(9, [(4, 2, 7), (2, 1, 6), (0, 2, 4), (3, 1, 3)])
    a('s_and_b32 s31, s3, 1')
    a('s_lshl_b32 s30, s31, 11')
    a('s_add_u32 s30, s30, %d', L_C)
    a('v_add_u32 v9, s30, v9')
    a('s_lshl_b32 s30, s4, 9')
    a('s_lshl_b32 s31, s31, 8')
    a('s_add_u32 s30, s30, s31')
    a('v_lshl_add_u32 v11, v0, 2, s30')
    a('s_lshl_b32 s30, s3, 12')
    a('s_lshl_b32 s31, s4, 15')
    a('s_add_u32 s35, s30, s31')
    a('s_add_u32 s35, s35, 0x%x', DD)
    a('s_add_u32 s37, s30, %d', L_D)
    a('s_add_u32 s35, s35, %d', DSEG)
    a('s_mov_b32 s38, 0x%x', OOB)
    a('s_mov_b32 s6, 0x%x', OOB)
    a('s_mov_b32 s40, 0x%x', OOB)
    a('s_mov_b32 s13, 0')
    a.label(lj)
    xcc_gather()
    a('v_readfirstlane_b32 s31, v3')
    a('s_mov_b32 s12, 0')
    a('s_add_u32 s32, s15, 0x%x', MEMX)
    a('s_add_u32 s33, s16, 0x%x', MEMX)
    a('v_cmp_ne_u32 vcc, s31, v3')
    for r in range(20, 48): a('v_mov_b32 v%d, 0', r)
    a('s_waitcnt lgkmcnt(0)')
    if dev:
        lc = a.new('cal')
        a('s_memrealtime s[82:83]')
        a('s_waitcnt lgkmcnt(0)')
        a.label(lc)
        a('s_memrealtime s[84:85]')
        a('s_memtime s[86:87]')
        a('s_waitcnt lgkmcnt(0)')
        a('s_cmp_eq_u32 s84, s82')
        a('s_cbranch_scc1 %s', lc)
    if 'slow' in dev: a('s_branch tslow')
    a('s_cbranch_vccnz tslow')
    a('s_cmp_eq_u32 s5, 1')
    a('s_cbranch_scc1 cloopF')
    a('s_branch sloopF')
    a.label('tslow')
    a('s_cmp_eq_u32 s5, 1')
    a('s_cbranch_scc1 cloopS')
    a('s_branch sloopS')
    a.label('tdie')
    a('s_endpgm')
    a.label('export')
    fold.wait_all(a, FLG_M, 256)
    a('s_cmp_eq_u32 s30, 31')
    a('s_cbranch_scc1 relay')
    a('s_mov_b32 s12, 1')
    a('v_min_u32 v7, 55, v0')
    a('v_lshlrev_b32 v7, 7, v7')
    a('s_mul_i32 s31, s3, %d', UNIT)
    a('s_add_u32 s31, s31, 0x%x', MEMX)
    a('buffer_load_dword v9, v7, s[8:11], s31 offen sc1')
    a('s_lshl_b32 s31, s3, 13')
    a('s_add_u32 s31, s31, 0x%x', PR)
    a('v_lshlrev_b32 v8, 7, v0')
    a('buffer_load_dword v9, v8, s[8:11], s31 offen sc1')
    a('s_add_u32 s31, s31, 8192')
    a('buffer_load_dword v9, v8, s[8:11], s31 offen sc1')
    if 'xw' in dev:
        a('s_mul_i32 s31, s3, 7168')
        a('s_add_u32 s31, s31, 0x%x', XF)
        for k in range(1, 4):
            a('s_add_u32 s31, s31, %d', XSEG)
            a('buffer_load_dword v9, v7, s[8:11], s31 offen sc1')
    a.label('exloop')
    a('s_mul_i32 s30, s12, %d', UNIT)
    a('s_add_u32 s34, s30, 0x%x', MEMX)
    a('s_add_u32 s32, s34, s15')
    a('s_add_u32 s33, s34, s16')
    a('s_add_u32 s34, s34, %d', 3 * UNIT)
    a('s_cmp_eq_u32 s3, 0')
    a('s_cselect_b32 s34, s34, 0x%x', OOB)
    a('buffer_load_dword v9, v7, s[8:11], s34 offen sc1')
    if 'xw' in dev:
        a('s_lshl_b32 s34, s12, 2')
        a('s_add_u32 s34, s34, s3')
        a('s_mul_i32 s34, s34, 7168')
        a('s_add_u32 s34, s34, 0x%x', XF + 3 * XSEG)
        a('buffer_load_dword v9, v7, s[8:11], s34 offen sc1')
    a('s_mov_b32 s14, 0')
    lp = a.new('ex')
    a.label(lp)
    if 'noes' not in dev: a('s_sleep 6')
    a('buffer_load_dwordx4 v[20:23], v1, s[8:11], s32 offen sc1')
    a('buffer_load_dwordx4 v[24:27], v1, s[8:11], s33 offen sc1')
    a('s_add_u32 s14, s14, 1')
    a('s_cmp_lt_u32 s14, %d', SPIN)
    a('s_cbranch_scc0 tdie')
    a('s_waitcnt vmcnt(0)')
    a('v_max3_u32 v3, v20, v21, v22')
    a('v_max3_u32 v4, v23, v24, v25')
    a('v_max3_u32 v3, v26, v27, v3')
    a('v_max_u32 v3, v4, v3')
    a('v_cmp_eq_u32 vcc, -1, v3')
    a('s_cbranch_vccnz %s', lp)
    a('s_sub_u32 s32, s32, %d', MEMX - MEME)
    a('s_sub_u32 s33, s33, %d', MEMX - MEME)
    a('s_barrier')
    a('buffer_store_dwordx4 v[20:23], v1, s[8:11], s32 offen sc1')
    a('buffer_store_dwordx4 v[24:27], v1, s[8:11], s33 offen sc1')
    a('s_add_u32 s12, s12, 1')
    a('s_cmp_lt_u32 s12, 63')
    a('s_cbranch_scc1 exloop')
    a('s_endpgm')
    a.label('relay')
    a('s_cmp_eq_u32 s3, 0')
    a('s_cbranch_scc0 tdie')
    xcc_gather()
    a('v_readfirstlane_b32 s31, v3')
    a('s_mov_b32 s12, 0')
    a('s_mov_b32 s14, 0')
    a('s_mov_b32 s49, 0x%x', DPROG)
    a('v_cmp_ne_u32 s[62:63], s31, v3')
    a('v_and_b32 v3, 31, v0')
    a('v_cmp_gt_u32 s[60:61], 28, v3')
    a('v_lshlrev_b32 v4, 2, v0')
    a('v_lshrrev_b32 v5, 5, v0')
    a('s_mov_b32 s48, 0x%x', HZ)
    if 'slow' in dev: a('s_mov_b64 s[62:63], -1')
    a.label('reloop')
    a('s_sleep 2')
    a('buffer_load_dword v6, v4, s[8:11], s49 offen sc1')
    a('s_add_u32 s14, s14, 1')
    a('s_cmp_lt_u32 s14, %d', SPIN)
    a('s_cbranch_scc0 tdie')
    a('s_mov_b32 s13, s12')
    a('s_waitcnt vmcnt(0)')
    a('v_lshl_add_u32 v6, v6, 1, v5')
    a.label('reinc')
    a('v_cmp_ge_u32 vcc, s12, v6')
    a('s_nop 1')
    a('s_and_b64 vcc, vcc, s[60:61]')
    a('s_cbranch_scc1 repub')
    a('s_add_u32 s12, s12, 1')
    a('s_cmp_lt_u32 s12, 64')
    a('s_cbranch_scc1 reinc')
    a.label('repub')
    a('s_cmp_eq_u32 s12, s13')
    a('s_cbranch_scc1 reloop')
    a('v_mov_b32 v7, s12')
    a('s_cmp_eq_u64 s[62:63], 0')
    a('s_cbranch_scc0 reslow')
    a('buffer_store_dword v7, off, s[8:11], s48')
    a('s_branch renext')
    a.label('reslow')
    a('buffer_store_dword v7, off, s[8:11], s48 sc1')
    a.label('renext')
    a('s_cmp_lt_u32 s12, 63')
    a('s_cbranch_scc1 reloop')
    a('s_endpgm')

    def loop(role, mode):
        SC = ' sc1' if mode == 'S' else ''
        ORDER = ORD_S if role == 's' else ORD_C
        TACC = 20
        MF = 48 if role == 's' else 52
        SB, TA, SACC = 76, 100, 108
        VB, PF, CACC, DB, RT = 52, 60, 72, 80, 112
        TMP = TA if role == 's' else 19
        tails = []
        a.l.append('.p2align 6')
        a.label(role + 'loop' + mode)
        if dev:
            l = a.new('p4')
            a('s_cmp_eq_u32 s12, 4')
            a('s_cbranch_scc0 %s', l)
            a('s_memrealtime s[98:99]')
            a.label(l)
            l = a.new('pp')
            a('s_cmp_eq_u32 s12, 8')
            a('s_cbranch_scc0 %s', l)
            a('s_memtime s[78:79]')
            a('s_memrealtime s[88:89]')
            a.label(l)
        if 'stall' in dev and role == 'c':
            a('s_waitcnt lgkmcnt(0)')
            a('s_mov_b32 s70, s76')
        def mpoll():
            a('buffer_load_dwordx4 %s, v1, s[8:11], s32 offen sc1', V(MF, 4))
            a('buffer_load_dwordx4 %s, v1, s[8:11], s33 offen sc1', V(MF + 4, 4))
        NE = 0
        if role == 'c':
            for x in dev:
                if x.startswith('ne'): NE = int(x[2:])
            dd = ddma('s38', 's6') if 'nod' not in dev else []
            a('s_xor_b32 s37, s37, 0x18000')
            a('s_cmp_lg_u32 s13, 0')
            lslow, lback = a.new('dq'), a.new('db')
            a('s_cbranch_scc1 %s', lslow)
            a.label(lback)
            tails.append(('dw', lslow, lback))
            a('s_mov_b32 m0, s37')
            a('s_nop 0')
            for grp in dd[:NE]:
                for ins in grp: a(ins)
                if len(grp) > 1: a('s_nop 0')
        CL = 'cearly' not in dev
        if role == 'c' and not CL: mpoll()
        ZA, ZN = (10, 21) if 'noz' not in dev else (0, 0)
        for x in dev:
            if x.startswith('za'): ZA = int(x[2:]); ZN = ZA + 11
        for r in range(ZN if role == 's' else 0, MF - TACC): a('v_mov_b32 v%d, 0', TACC + r)
        if role == 'c' and not CL: mpoll()
        sc = ['s_and_b32 s30, s12, 3', 's_mul_i32 s22, s30, %d' % PSLOT, 's_add_u32 s22, s22, 0x%x' % PR,
              's_add_u32 s32, s32, %d' % UNIT, 's_add_u32 s33, s33, %d' % UNIT]
        if role == 's':
            for r in range(12): a('v_mov_b32 v%d, 0', SACC + r)
            for i in range(5): a('v_add_u32 v%d, s%d, v1', TA + 2 + i, 17 + i)
            radr = [TA + 2 + i for i in range(5)]
            if 'xt' in dev:
                a('s_add_u32 s36, s36, s50')
                a('s_mov_b32 m0, s36')
            sc += ['s_add_u32 s31, s12, 3', 's_and_b32 s31, s31, 3', 's_mul_i32 s24, s31, %d' % PSLOT, 's_add_u32 s24, s24, s27',
                   's_min_u32 s24, s24, 0x%x' % OOB]
        else:
            radr = [4, 5, 7, 12, 13]
            sc += ['s_lshl_b32 s31, s3, 11', 's_add_u32 s43, s22, s31', 's_sub_u32 s42, s32, s15', 's_xor_b32 s30, s37, 0x18000']
        MD = 2
        if role == 's':
            MD = 3
            for x in dev:
                if x.startswith('md'): MD = int(x[2:])
            for r in range(8): a('v_mov_b32 v%d, -1', MF + r)
            if 'now' not in dev: a('s_waitcnt vmcnt(0)')
        elif CL:
            MD = 1
            for x in dev:
                if x.startswith('cd'): MD = int(x[2:])
            for r in range(8): a('v_mov_b32 v%d, -1', MF + r)
            if 'cnw' not in dev: a('s_waitcnt vmcnt(0)')
        a('s_mov_b32 s14, 0')
        def smf(i):
            t, lam = ORDER[i]
            if 'nomf' + role in dev: a('s_nop 3'); return
            if 'chalf' in dev and role == 'c' and i >= 42: return
            for x in dev:
                if x.startswith('cs') and role == 'c': a('s_nop %d', int(x[2:]))
            a('v_smfmac_f32_16x16x64_bf16 %s, %s, %s, v2', V(TACC + 4 * t, 4), V(MF + 4 * lam, 4), Wreg(i))
        lp, lf = a.new('mp'), a.new('mf')
        if role == 'c' and not CL: a('s_branch %s', lp)
        a.label(lf)
        for x in dev:
            if x.startswith('ms' + role): a('s_sleep %d', int(x[3:]))
        mpoll()
        a('s_add_u32 s14, s14, 1')
        a('s_cmp_lt_u32 s14, %d', SPIN)
        a('s_cbranch_scc0 tdie')
        for x in dev:
            if x.startswith('spec') and role == 's':
                a('s_nop 1')
                for r in range(4 * int(x[4:])): a('v_mov_b32 v%d, 0', TACC + r)
        a.label(lp)
        a('s_waitcnt vmcnt(%d)', 2 * MD - 2)
        if 'lite' in dev: a('v_max_u32 v3, v%d, v%d', MF + 3, MF + 7)
        else:
            a('v_max3_u32 v3, v%d, v%d, v%d', MF, MF + 1, MF + 2)
            a('v_max3_u32 v%d, v%d, v%d, v%d', TMP, MF + 3, MF + 4, MF + 5)
            a('v_max3_u32 v3, v%d, v%d, v3', MF + 6, MF + 7)
            a('v_max_u32 v3, v%d, v3', TMP)
        a('v_cmp_eq_u32 vcc, -1, v3')
        if 'm0' in dev:
            a('ds_write_b128 v16, %s', V(MF, 4))
            a('ds_write_b128 v17, %s', V(MF + 4, 4))
        NSP = 0
        for x in dev:
            if x.startswith('spec') and role == 's': NSP = int(x[4:])
        for k in range(NSP):
            smf(k)
            if k == 0: a('ds_write_b128 v16, %s', V(MF, 4))
        a('s_cbranch_vccnz %s', lf)
        stamp(0)
        N = len(ORDER)
        gm = [[] for _ in range(N + 12)]
        gv = [[] for _ in range(N + 12)]
        pre = [[] for _ in range(N + 12)]
        rd = ['ds_read_b128 %s, v%d' % (V(MF + 8 + 4 * i, 4), radr[i]) for i in range(5)]
        if 'm0' not in dev:
            gm[0].append('ds_write_b128 v16, %s' % V(MF, 4))
            gm[1].append('ds_write_b128 v17, %s' % V(MF + 4, 4))
        GB = 5
        for x in dev:
            if x.startswith('gb') and role == 's': GB = int(x[2:])
        gm[GB] += ['s_waitcnt lgkmcnt(0)', 's_barrier', rd[0]]
        for i in range(1, 5): gm[GB + i].append(rd[i])
        for k in range(0, len(sc), 2): gv[(8 if role == 'c' else 20) + k // 2] += sc[k:k + 2]
        def place(ins, lo):
            k = lo
            while gm[k]: k += 1
            gm[k] += ins if isinstance(ins, list) else [ins]
            return k
        if role == 's':
            B0 = 21
            def epi(t):
                c = TACC + 4 * t
                return (['v_add_f32 v%d, v%d, v%d' % (c, c, c + 2), 'v_add_f32 v%d, v%d, v%d' % (c + 1, c + 1, c + 3),
                         'v_cvt_pk_bf16_f32 v%d, v%d, v%d' % (c, c, c + 1)], ['ds_write_b32 v4, v%d offset:%d' % (c, 256 * t)])
            for t in range(6):
                v, m = epi(t)
                for i, ins in enumerate(v): gv[B0 + 4 * t + 7 + i].append(ins)
                gm[B0 + 4 * t + 10].append(m[0])
            place('ds_read_b64_tr_b16 %s, v5' % V(TA, 2), B0 + 23)
            place('ds_read_b64_tr_b16 %s, v5 offset:128' % V(TA + 2, 2), B0 + 24)
            def brd(step, xb0, xb1, mb):
                r = []
                for kt, b in ((0, xb0), (1, xb1)):
                    for hh in range(2):
                        r.append('ds_read_b128 %s, v6 offset:%d' % (V(b + 4 * hh, 4), kt * 14336 + (2 * step + hh) * 1024))
                ad = 'v8' if step == 0 else 'v9'
                for hh in range(2):
                    for qq in range(2):
                        r.append('ds_read2_b32 %s, %s offset0:%d offset1:%d' % (V(mb + 4 * hh + 2 * qq, 2), ad, 128 * hh + qq, 128 * hh + qq + 8))
                return r
            place('buffer_load_dword v18, off, s[8:11], s49 sc1', GB)
            place('buffer_load_dword v19, v7, s[8:11], s38 offen' if 'notouch' not in dev else 'buffer_load_dword v19, off, s[8:11], s49 sc1', GB)
            if 'xt' in dev:
                xl = [['buffer_load_dwordx4 v1, s[8:11], s34 offen offset:%d sc1 lds' % (1024 * i)] for i in range(4)]
                xl[3] += ['s_add_u32 m0, s36, 4096', 's_add_u32 s28, s34, 4096']
                xl += [['buffer_load_dwordx4 v1, s[8:11], s28 offen offset:%d sc1 lds' % (1024 * i)] for i in range(3)]
                k, xs = GB + 7, 4
                for x in dev:
                    if x.startswith('xs'): xs = int(x[2:])
                for grp in xl: k = place(grp, k) + xs
            BL = 12
            for x in dev:
                if x.startswith('bl'): BL = int(x[2:])
            for ins in brd(0, SB, SB + 8, SB + 16): place(ins, BL)
            b1 = brd(1, TACC, TACC + 8, MF)
            k = 20
            while gm[k]: k += 1
            yv = sum(1 for kk in range(k) for x in gm[kk] if x.startswith('buffer_'))
            k = place(['s_waitcnt vmcnt(%d)' % yv, b1[4]], 20)
            for ins in b1[5:]: place(ins, k)
            for ins in b1[0:2]: place(ins, B0 + 15)
            for ins in b1[2:4]: place(ins, B0 + 23)
            def younger_ds(k0, k1): return sum(1 for kk in range(k0, k1) for x in gm[kk] if x.startswith('ds_'))
            pre[14].append('s_waitcnt lgkmcnt(%d)' % younger_ds(GB + 1, 14))
            pre[B0].append('s_waitcnt lgkmcnt(%d)' % younger_ds(GB + 5, B0))
        else:
            pre[16].append('s_waitcnt lgkmcnt(4)')
            pre[24].append('s_waitcnt lgkmcnt(0)')
            sp = 4
            for x in dev:
                if x.startswith('sp') and x[2:].isdigit(): sp = int(x[2:])
            rest = dd[NE:]
            for i, grp in enumerate(rest): gm[12 + sp * i] += grp
            gm[10].append('buffer_load_dword v18, off, s[8:11], s49 sc1')
            def cepi(t):
                c = TACC + 4 * t
                return (['v_add_f32 v%d, v%d, v%d' % (c, c, c + 2), 'v_add_f32 v%d, v%d, v%d' % (c + 1, c + 1, c + 3),
                         'v_cvt_pk_bf16_f32 v%d, v%d, v%d' % (c, c, c + 1)], 'ds_write_b32 v19, v%d offset:%d' % (c, 256 * t))
            for t in range(8):
                v, m = cepi(t)
                for i_, ins in enumerate(v): gv[32 + 3 * t + 6 + i_].append(ins)
                gm[32 + 3 * t + 9].insert(0, m)
            wr = ['ds_read_b128 %s, v14 offset:%d' % (V(CSPILL[i >> 1] + 4 * (i & 1), 4), 1024 * i) for i in range(14)]
            for ins in wr[:10]: place(ins, 17)
            k = 30
            while gm[k]: k += 1
            younger = sum(1 for kk in range(k) for x in gm[kk] if x.startswith('buffer_'))
            k = place(['s_waitcnt vmcnt(%d)' % younger, wr[10]], 30)
            place(wr[11], k)
            for ins in wr[12:]: kl = place(ins, 33)
            def yds(k0, k1): return sum(1 for kk in range(k0, k1) for x in gm[kk] if x.startswith('ds_'))
            pre[24] = ['s_waitcnt lgkmcnt(%d)' % yds(GB + 5, 24)]
            pre[49].append('s_waitcnt lgkmcnt(%d)' % yds(kl + 1, 49))
            gv[20].append('v_add_u32 v15, s30, v1')
            gv[21].append('v_lshrrev_b32 v3, 4, v0')
            gv[22].append('v_lshl_add_u32 v3, v3, 2, s48')
            gv[23].append('v_and_b32 v19, 15, v0')
            gv[24].append('v_lshl_add_u32 v19, v19, 4, v3')
            gv[25].append('v_add_u32 v3, s48, v1')
        for k in range(N):
            for ins in pre[k]: a(ins)
            if k >= NSP: smf(k)
            if k == 0 and NSP: continue
            for ins in gm[k] + gv[k]: a(ins)
        stamp(1)
        if role == 's':
            for kk in range(N, N + 3):
                for ins in gm[kk] + gv[kk]: a(ins)
            assert not any(gm[N + 3:]) and not any(gv[N + 3:])
            a('s_cmp_lt_u32 s3, 2')
            a('s_nop 1')
            v, m = epi(6)
            a('v_pk_add_f32 %s, %s, %s', V(TACC + 24, 2), V(TACC + 24, 2), V(TACC + 26, 2))
            for ins in v[2:] + m: a(ins)
            a('ds_read_b64_tr_b16 %s, v5 offset:1024', V(TA + 4, 2))
            a('ds_read_b64_tr_b16 %s, v5 offset:1152', V(TA + 6, 2))
            a('s_waitcnt lgkmcnt(7)')
            for kt in range(3):
                a('v_smfmac_f32_16x16x64_bf16 %s, %s, %s, v2', V(SACC + 4 * kt, 4), V(TA, 4), V(SB + 8 * kt, 8))
            a('s_waitcnt lgkmcnt(0)')
            for kt, b in enumerate((TACC, TACC + 8, MF)):
                a('v_smfmac_f32_16x16x64_bf16 %s, %s, %s, v2', V(SACC + 4 * kt, 4), V(TA + 4, 4), V(b, 8))
            a('s_nop %d', 5 if 'tight' not in dev else 1)
            def sadd(kt):
                c = SACC + 4 * kt
                if 'nopk' not in dev: a('v_pk_add_f32 %s, %s, %s', V(c, 2), V(c, 2), V(c + 2, 2))
                else:
                    a('v_add_f32 v%d, v%d, v%d', c, c, c + 2)
                    a('v_add_f32 v%d, v%d, v%d', c + 1, c + 1, c + 3)
            def swr(kt):
                c = SACC + 4 * kt
                if kt < 2: a('ds_write2_b32 v10, v%d, v%d offset0:%d offset1:%d', c, c + 1, 32 * kt, 32 * kt + 64)
                else: a('ds_write2_b32 v15, v%d, v%d offset0:2 offset1:66', c, c + 1)
            if 'so0' not in dev: sadd(0); sadd(1); swr(0); sadd(2); swr(1); swr(2)
            else:
                for kt in range(3): sadd(kt); swr(kt)
            lns, ljn = a.new('ns'), a.new('jn')
            a('s_cbranch_scc0 %s', lns)
            tails.append(('nv', lns, ljn))
            for r in range(ZA): a('v_mov_b32 v%d, 0', TACC + r)
            a('s_waitcnt lgkmcnt(0)')
            if ZA: a('v_mov_b32 v%d, 0', TACC + ZA)
            a('s_barrier')
            stamp(2)
            for w in range(4): a('ds_read_b96 %s, v11 offset:%d', V(76 + 4 * w, 3), 2048 * w) if 'b96' in dev else a('ds_read_b128 %s, v11 offset:%d', V(76 + 4 * w, 4), 2048 * w)
            for r in range(ZA + 1, ZN): a('v_mov_b32 v%d, 0', TACC + r)
            a('s_waitcnt lgkmcnt(2)')
            a('v_pk_add_f32 v[76:77], v[76:77], v[80:81]')
            a('v_add_f32 v78, v78, v82')
            a('s_waitcnt lgkmcnt(0)')
            a('v_pk_add_f32 v[84:85], v[84:85], v[88:89]')
            a('v_add_f32 v86, v86, v90')
            a('v_pk_add_f32 v[76:77], v[76:77], v[84:85]')
            a('v_add_f32 v78, v78, v86')
            DP = ('quad_perm:[1,0,3,2]', 'quad_perm:[2,3,0,1]', 'row_half_mirror', 'row_mirror')
            def dpp(op, d, s_, ctl): a('%s_dpp v%d, v%d, v%d %s row_mask:0xf bank_mask:0xf', op, d, s_, s_, ctl)
            a('v_max3_f32 v84, v76, v77, v78')
            a('v_sub_f32 v76, v76, v84')
            a('v_sub_f32 v77, v77, v84')
            dpp('v_max_f32', 85, 84, DP[0])
            a('v_sub_f32 v78, v78, v84')
            a('v_exp_f32 v76, v76')
            dpp('v_max_f32', 85, 85, DP[1])
            a('v_exp_f32 v77, v77')
            a('s_nop 0')
            dpp('v_max_f32', 85, 85, DP[2])
            a('v_exp_f32 v78, v78')
            a('v_add_f32 v86, v76, v77')
            dpp('v_max_f32', 85, 85, DP[3])
            a('v_sub_f32 v84, v84, v85')
            a('v_exp_f32 v84, v84')
            a('v_fmac_f32 v86, v78, v14')
            a('v_mul_f32 v86, v86, v84')
            a('v_mul_f32 v76, v76, v84')
            a('v_mul_f32 v77, v77, v84')
            dpp('v_add_f32', 86, 86, DP[0])
            a('v_mul_f32 v78, v78, v84')
            a('s_nop 0')
            for ctl in DP[1:]:
                dpp('v_add_f32', 86, 86, ctl)
                if ctl != DP[3]: a('s_nop 1')
            a('v_rcp_f32 v86, v86')
            a('s_nop 0')
            a('v_mul_f32 v76, v76, v86')
            a('v_mul_f32 v77, v77, v86')
            a('v_cvt_pk_bf16_f32 v88, |v76|, |v77|')
            a('buffer_store_dword v88, v12, s[8:11], s22 offen' + SC)
            a('v_mul_f32_dpp v79, v78, v86 row_shl:4 row_mask:0xf bank_mask:0xf bound_ctrl:0')
            a('v_mul_f32 v78, v78, v86')
            a('v_cvt_pk_bf16_f32 v90, |v78|, |v79|')
            a('buffer_store_dword v90, v13, s[8:11], s22 offen' + SC)
            stamp(3)
            a('s_waitcnt vmcnt(%d)', 3 + (7 if 'xt' in dev else 0))
            a('s_barrier')
            if 'nox' not in dev: xdma()
            a.label(ljn)
            a('v_add_u32 v7, %d, v7', XSEG)
            a('s_mov_b64 exec, s[62:63]')
            a('v_add_u32 v7, %d, v7', DSEG - XSEG)
            a('s_mov_b64 exec, -1')
            a('s_add_u32 s31, s12, 3')
            fcheck(18, 3, 's31')
            a('s_cselect_b32 s38, 0x%x, 0', OOB)
            a('s_cmp_gt_u32 s31, 62')
            a('s_cselect_b32 s38, 0x%x, s38', OOB)
            for x in dev:
                if x.startswith('ds'): a('s_sleep %d', int(x[2:]))
        else:
            def pld1(k):
                a('buffer_load_dwordx4 %s, %s, s[8:11], s43 offen offset:%d sc1', V(PF + 4 * k, 4), 'v10' if k else 'v6', 1024 if k == 2 else 0)
            def pld():
                for k in range(3): pld1(k)
            l0, l1 = a.new('d0'), a.new('d1')
            a('s_cmp_eq_u32 s12, 0')
            a('s_cbranch_scc1 %s', l0)
            a.label(l1)
            tails.append(('d0', l0, l1))
            for i in range(8): a('ds_read_b128 %s, v15 offset:%d', V(DB + 4 * i, 4), 1024 * (i & 3) + 16384 * (i >> 2))
            pld()
            for kk in range(N, N + 12):
                for ins in gm[kk] + gv[kk]: a(ins)
            a('ds_read_b128 %s, v3', V(VB, 4))
            a('ds_read_b128 %s, v3 offset:1024', V(VB + 4, 4))
            a('v_add_u32 v15, 2048, v8')
            a('s_waitcnt vmcnt(3)')
            a('s_add_u32 s35, s35, %d', DSEG)
            a('s_add_u32 s31, s12, 2')
            fcheck(18, 3, 's31')
            a('s_cselect_b32 s13, 1, 0')
            a('s_add_u32 s6, s35, 16384')
            a('s_cmp_gt_u32 s31, 62')
            a('s_cselect_b32 s38, 0x%x, s35', OOB)
            a('s_cselect_b32 s6, 0x%x, s6', OOB)
            a('s_cselect_b32 s13, 0, s13')
            a('s_mov_b32 s14, 0')
            stamp(4)
            a('s_waitcnt lgkmcnt(0)')
            lr, lq = a.new('pr'), a.new('pq')
            def pchk():
                a('v_or3_b32 v3, v%d, v%d, v%d', PF, PF + 1, PF + 2)
                a('v_or3_b32 v19, v%d, v%d, v%d', PF + 3, PF + 4, PF + 5)
                a('v_or3_b32 v3, v%d, v%d, v3', PF + 6, PF + 7)
                a('v_or3_b32 v19, v%d, v%d, v19', PF + 8, PF + 9)
                a('v_or3_b32 v3, v%d, v%d, v3', PF + 10, PF + 11)
                a('v_or_b32 v3, v19, v3')
                a('v_cmp_gt_i32 vcc, 0, v3')
            def dn(tl): a('v_mfma_f32_16x16x32_bf16 %s, %s, %s, 0', V(CACC + 4 * tl, 4), V(PF, 4), V(VB + 4 * tl, 4))
            def sp_(tl, k): a('v_smfmac_f32_16x16x64_bf16 %s, %s, %s, v2', V(CACC + 4 * tl, 4), V(PF + 4 + 4 * k, 4), V(DB + 16 * tl + 8 * k, 8))
            for x in dev:
                if x.startswith('pw'): a('s_sleep %d', int(x[2:]))
            a.label(lr)
            pld()
            a('s_add_u32 s14, s14, 1')
            a('s_cmp_lt_u32 s14, %d', SPIN)
            a('s_cbranch_scc0 tdie')
            a('s_cmp_lt_u32 s3, 2')
            a('s_waitcnt vmcnt(3)')
            if 'cold' in dev:
                pchk()
                dn(0)
                a('s_cbranch_vccnz %s', lr)
                sp_(0, 0); sp_(0, 1); dn(1); sp_(1, 0); sp_(1, 1)
                stamp(5)
                n0, n1 = None, 4
            else:
                a('v_or3_b32 v3, v%d, v%d, v%d', PF, PF + 1, PF + 2)
                a('v_or3_b32 v3, v%d, v%d, v3', PF + 3, PF + 4)
                dn(0)
                a('v_or3_b32 v3, v%d, v%d, v3', PF + 5, PF + 6)
                dn(1)
                a('v_or3_b32 v3, v%d, v%d, v3', PF + 7, PF + 8)
                sp_(0, 0)
                a('v_or3_b32 v3, v%d, v%d, v3', PF + 9, PF + 10)
                sp_(1, 0)
                a('v_or_b32 v3, v%d, v3', PF + 11)
                sp_(0, 1)
                a('v_cmp_gt_i32 vcc, 0, v3')
                sp_(1, 1)
                a('s_cbranch_vccnz %s', lr)
                stamp(5)
                n0, n1 = 4, None
            if n0: a('s_nop %d', n0)
            a('v_pk_add_f32 %s, %s, %s', V(CACC, 2), V(CACC, 2), V(CACC + 2, 2))
            if n1: a('s_nop %d', n1 + 2)
            else: a('s_nop 0')
            a('v_pk_add_f32 %s, %s, %s', V(CACC + 4, 2), V(CACC + 4, 2), V(CACC + 6, 2))
            a('ds_write2_b32 v8, v%d, v%d offset0:0 offset1:16', CACC, CACC + 1)
            a('ds_write2_b32 v15, v%d, v%d offset0:0 offset1:16', CACC + 4, CACC + 5)
            lnr, ljr = a.new('nr'), a.new('jr')
            a('s_cbranch_scc0 %s', lnr)
            tails.append(('ns', lnr, ljr))
            a('s_waitcnt lgkmcnt(0)')
            a('s_barrier')
            for w in range(4): a('ds_read_b64 %s, v9 offset:%d', V(RT + 2 * w, 2), 512 * w)
            a('s_waitcnt lgkmcnt(2)')
            a('v_pk_add_f32 %s, %s, %s', V(RT, 2), V(RT, 2), V(RT + 2, 2))
            a('s_waitcnt lgkmcnt(0)')
            a('v_pk_add_f32 %s, %s, %s', V(RT + 4, 2), V(RT + 4, 2), V(RT + 6, 2))
            a('v_pk_add_f32 %s, %s, %s', V(RT, 2), V(RT, 2), V(RT + 4, 2))
            a('v_cvt_pk_bf16_f32 v%d, v%d, v%d', RT, RT, RT + 1)
            a('v_min_u32 v%d, -2, v%d', RT, RT)
            a('buffer_store_dword v%d, v11, s[8:11], s42 offen%s', RT, SC)
            stamp(6)
            a('s_barrier')
            a('s_mov_b32 s40, 0x%x', MEME + 63 * UNIT)
            a.label(ljr)
            for x in dev:
                if x.startswith('dc'): a('s_sleep %d', int(x[2:]))
        if dev and role == 's':
            l = a.new('ts')
            a('s_lshl_b32 s30, s4, 2')
            a('s_add_u32 s30, s30, s3')
            a('s_cmp_eq_u32 s30, 63')
            a('s_cbranch_scc0 %s', l)
            a('s_memtime s[80:81]')
            a('s_memrealtime s[82:83]')
            a('s_lshl_b32 s30, s12, 2')
            a('s_add_u32 s30, s30, 0x3F30000')
            a('s_waitcnt lgkmcnt(0)')
            a('v_mov_b32 v99, s80')
            a('v_mov_b32 v98, s82')
            a('buffer_store_dword v99, off, s[8:11], s30')
            a('buffer_store_dword v98, off, s[8:11], s30 offset:256')
            a.label(l)
        if dev:
            ld = a.new('dv')
            a('s_cmp_eq_u32 s12, 40')
            a('s_cbranch_scc0 %s', ld)
            a('s_memtime s[80:81]')
            a('s_memrealtime s[82:83]')
            a('s_waitcnt lgkmcnt(0)')
            a('s_sub_u32 s78, s80, s78')
            a('s_sub_u32 s88, s82, s88')
            a('s_lshl_b32 s30, s5, 4')
            a('s_add_u32 s30, s30, s4')
            a('s_lshl_b32 s30, s30, 2')
            a('s_add_u32 s30, s30, s3')
            a('s_lshl_b32 s30, s30, 6')
            a('s_add_u32 s30, s30, 0x3F00000')
            for kk in range(13):
                a('v_mov_b32 v99, s%d', 64 + 2 * kk)
                a('buffer_store_dword v99, off, s[8:11], s30 offset:%d', 4 * kk)
                a('s_nop 1')
            a.label(ld)
        a('s_add_u32 s12, s12, 1')
        a('s_cmp_lt_u32 s12, 63')
        a('s_cbranch_scc1 %sloop%s', role, mode)
        if role == 'c':
            a('buffer_store_dword v%d, v11, s[8:11], s40 offen sc1', RT)
            if mode == 'F' and WB:
                l = a.new('wb')
                a('s_or_b32 s30, s3, s4')
                a('s_cbranch_scc1 %s', l)
                a('s_waitcnt vmcnt(0)')
                a('buffer_wbl2 sc1')
                a('s_waitcnt vmcnt(0)')
                a.label(l)
        if dev:
            a('s_memrealtime s[82:83]')
            a('s_waitcnt lgkmcnt(0)')
            a('s_lshl_b32 s30, s2, 4')
            a('s_add_u32 s30, s30, 0x3F10000')
            for kk, r in enumerate((90, 84, 82)):
                a('v_mov_b32 v99, s%d', r)
                a('buffer_store_dword v99, off, s[8:11], s30 offset:%d', 4 * kk)
                a('s_nop 1')
            amp = [x for x in dev if x.startswith('amp')]
            if amp and role == amp[0][3]:
                k = amp[0][4]
                if k == '1': a('s_sub_u32 s31, s84, s92'); a('s_mul_i32 s31, s31, 10')
                if k == '2': a('s_sub_u32 s31, s82, s84'); a('s_mul_i32 s31, s31, 2')
                if k == '3': a('s_sub_u32 s31, s90, s92'); a('s_mul_i32 s31, s31, 10')
                if k == '4': a('s_sub_u32 s31, s96, s92'); a('s_mul_i32 s31, s31, 10')
                if k == '5': a('s_sub_u32 s31, s98, s92'); a('s_mul_i32 s31, s31, 10')
                if k == '0': a('s_mov_b32 s31, 2000')
                l = a.new('am')
                a.label(l)
                a('s_sleep 4')
                a('s_memrealtime s[80:81]')
                a('s_waitcnt lgkmcnt(0)')
                a('s_sub_u32 s30, s80, s82')
                a('s_cmp_lt_u32 s30, s31')
                a('s_cbranch_scc1 %s', l)
            if 'dbgt' in dev:
                l = a.new('dt')
                a('s_cmp_eq_u32 s4, 5')
                a('s_cbranch_scc0 %s', l)
                a('s_lshl_b32 s30, s5, 4')
                for kk, r in enumerate((90, 84, 82, 78)):
                    if r != 78: a('s_sub_u32 s31, s%d, s92', r)
                    else: a('s_mov_b32 s31, s78')
                    a('v_mov_b32 v99, s31')
                    a('buffer_store_dword v99, off, s[44:47], s30 offset:%d', 4 * kk)
                    a('s_nop 1')
                a.label(l)
        a('s_endpgm')
        for p in tails:
            a.label(p[1])
            if p[0] == 'dw':
                a('s_add_u32 s31, s12, 1')
                dwait('s31')
                a('s_branch %s', p[2])
            elif p[0] == 'd0':
                lp = a.new('dz')
                a('s_waitcnt vmcnt(0)')
                a('v_and_b32 v18, 1, v0')
                a('v_lshlrev_b32 v18, 2, v18')
                a('v_bfe_u32 v%d, v0, 1, 1', DB)
                a('v_lshl_add_u32 v%d, v%d, 7, v18', DB, DB)
                a('s_lshl_b32 s31, s4, 3')
                a('s_add_u32 s31, s31, 0x%x', DPROG)
                a('s_mov_b32 s14, 0')
                a.label(lp)
                a('buffer_load_dword v18, v%d, s[8:11], s31 offen sc1', DB)
                a('s_add_u32 s14, s14, 1')
                a('s_cmp_lt_u32 s14, %d', SPIN)
                a('s_cbranch_scc0 tdie')
                a('s_waitcnt vmcnt(0)')
                a('v_cmp_eq_u32 vcc, 0, v18')
                a('s_cbranch_vccnz %s', lp)
                for seg in range(2):
                    for tl in range(2):
                        if seg == 0: a('s_xor_b32 s31, s37, 0x18000')
                        else: a('s_mov_b32 s31, s37')
                        a('s_add_u32 m0, s31, %d', 16384 * tl)
                        a('s_add_u32 s31, s35, %d', 16384 * tl - (DSEG if seg == 0 else 0))
                        for i in range(4): a('buffer_load_dwordx4 v1, s[8:11], s31 offen offset:%d sc1 lds', 1024 * i)
                a('buffer_load_dword v18, off, s[8:11], s49 sc1')
                a('s_waitcnt vmcnt(9)')
                a('s_branch %s', p[2])
            elif p[0] == 'nv':
                for r in range(4): a('v_mov_b32 v%d, -1', 92 + r)
                a('s_waitcnt lgkmcnt(0)')
                a('s_barrier')
                a('buffer_store_dwordx4 v[92:95], v1, s[8:11], s24 offen' + SC)
                if 'xe' in dev: xdma()
                a('s_waitcnt vmcnt(%d)', 2 + (7 if 'xe' in dev else 0))
                a('s_barrier')
                if 'xe' not in dev and 'nox' not in dev: xdma()
                for r in range(ZN): a('v_mov_b32 v%d, 0', TACC + r)
                a('s_branch %s', p[2])
            elif p[0] == 'ns':
                a('s_waitcnt lgkmcnt(0)')
                a('s_barrier')
                a('s_barrier')
                a('s_branch %s', p[2])
    for mode in 'FS':
        for role in 'sc': loop(role, mode)
```

```python
import sys
from common import *
import fold, team, workers

HEADER = open('cdna_kernels/%s.s.ref' % NAME).read().split('; Override launch geometry')[0]
MAIN_LDS = team.TEAM_LDS

def kd(name, vgpr, acc, sgpr):
    return '''.p2align 6
.amdhsa_kernel %s
  .amdhsa_next_free_vgpr %d
  .amdhsa_next_free_sgpr %d
  .amdhsa_accum_offset %d
  .amdhsa_group_segment_fixed_size 0
  .amdhsa_kernarg_size 120
  .amdhsa_user_sgpr_count 2
  .amdhsa_user_sgpr_kernarg_segment_ptr 1
  .amdhsa_system_sgpr_workgroup_id_x 1
.end_amdhsa_kernel
''' % (name, vgpr, sgpr, acc)

def build(mask, dev=False, aslist=False):
    a = Asm()
    workers.DEV = fold.DEV = bool(dev)
    fold.FINE = bool(dev) and 'fine' in dev
    if dev and 'ov' in dev.split('+'): fold.OVERLAP = True
    for x in (dev or '').split('+'):
        if x.startswith('fd'): fold.DEPTH = int(x[2:])
        if x.startswith('bo'): workers.BACKOFF = int(x[2:])
        if x.startswith('msl'): workers.MSLEEP = int(x[3:])
        if x == 'norot': fold.ROT = False
        if x == 'x3': workers.NSET_X, workers.NSET_O = 3, 13
        if x.startswith('fo'): workers.NSET_O = int(x[2:])
        if x.startswith('lead'): workers.LEAD = int(x[4:])
        if x == 'imm': workers.IMM = True
        if x == 'wst01': fold.WST = 'sc0 sc1'
        if x == 'wstnt': fold.WST = 'nt sc1'
        if x.startswith('af'): fold.AFIRST = int(x[2:]); fold.BYK = False
    workers.DBGT = fold.DBGT = bool(dev) and 'dbgt' in dev
    nm = NAME + '_kernel'
    a.l.append('.globl %s\n.p2align 8\n.type %s,@function' % (nm, nm))
    a.label(nm)
    a('s_cmp_ge_u32 s2, 256')
    a('s_cbranch_scc1 quit')
    if dev: a('s_memrealtime s[92:93]')
    a('s_load_dwordx8 s[64:71], s[0:1], 0')
    a('s_load_dwordx4 s[72:75], s[0:1], 32')
    a('s_load_dwordx2 s[76:77], s[0:1], %d', KA['gw'])
    a('s_load_dwordx4 s[52:55], s[0:1], %d', KA['dbg'])
    a('v_lshrrev_b32 v1, 6, v0')
    a('v_and_b32 v0, 63, v0')
    a('v_readfirstlane_b32 s3, v1')
    if not (dev and 'nocw' in dev):
        a('s_getpc_b64 s[32:33]')
        a.label('pcref')
        a('s_lshr_b32 s31, s2, 3')
        a('s_lshl_b32 s31, s31, 2')
        a('s_add_u32 s31, s31, s3')
        a('s_and_b32 s31, s31, 7')
        a('s_lshl_b32 s31, s31, 13')
        a('v_lshl_add_u32 v252, v0, 7, s31')
        a('v_min_u32 v252, codeend-pcref-4, v252')
        a('global_load_dword v253, v252, s[32:33]')
    a('s_waitcnt lgkmcnt(0)')
    a.srd(8, 54, team.OOB)
    a.srd(44, 52, 256)
    a.srd(60, 72, WBYTES)
    a.srd(16, 74, WBYTES)
    a.srd(36, 68, WBYTES)
    a.srd(56, 70, WBYTES)
    a.srd(20, 64, XBYTES)
    a.srd(24, 76, 896)
    a.srd(40, 66, 7168)
    fold.tl(a, 0)
    a('s_and_b32 s31, s2, 7')
    a('s_lshr_b32 s53, s2, 3')
    a('s_cmp_eq_u32 s31, 0')
    a('s_cbranch_scc1 die0')
    a('s_sub_u32 s31, s31, 1')
    a('s_lshl_b32 s31, s31, 5')
    a('s_add_u32 s53, s53, s31')
    fold.gen_fold(a)
    a('s_cmp_eq_u32 s5, 1')
    a('s_cselect_b32 s31, 192, 0')
    for x in (dev or '').split('+'):
        if x.startswith('rs'): a('s_mov_b32 s31, %d', 224 - int(x[2:]))
    a('s_add_u32 s30, s53, s31')
    a('s_cmp_ge_u32 s30, 224')
    a('s_cselect_b32 s31, 224, 0')
    a('s_sub_u32 s30, s30, s31')
    a('s_cmp_ge_u32 s30, %d', 56 + 16 * workers.NSET_X + 28 + 7 * workers.NSET_O)
    a('s_cbranch_scc1 quit')
    for bit, n, lab in ((2, 56, 'role_d'), (4, 16 * workers.NSET_X, 'role_xs'), (8, 28, 'role_f1'), (16, 7 * workers.NSET_O, 'role_fin')):
        a('s_cmp_lt_u32 s30, %d', n)
        a('s_cbranch_scc1 %s', lab if mask & bit else 'quit')
        a('s_sub_u32 s30, s30, %d', n)
        if lab == 'role_d':
            fold.wait_all(a, FLG_M, 256)
            if not (dev and ('nogate' in dev or 'xung' in dev)): fold.wait_started(a)
        if lab == 'role_xs' and dev and 'xung' in dev: fold.wait_started(a)
    a.label('quit')
    a('s_endpgm')
    a.label('die0')
    l = a.new('nj')
    a('s_cmp_eq_u32 s53, 31')
    a('s_cbranch_scc0 %s', l)
    fold.janitor(a)
    a.label(l)
    fold.misc_loads(a)
    fold.unit_fill(a)
    a('s_waitcnt vmcnt(0)')
    fold.misc_rest(a)
    fold.wait_janitor(a)
    a('s_add_u32 s34, s53, 224')
    fold.set_flag(a, FLG_M, 's34')
    a('s_mov_b32 s30, s53')
    team.gen_team(a, dev)
    workers.gen_d(a, vtail=bool(mask & 16))
    workers.gen_xs(a)
    workers.gen_f1(a)
    workers.gen_fin(a)
    a.label('codeend')
    s = HEADER
    if aslist: s += '; @launch kernel=%s grid=(256,1,1) block=(256,1,1) lds=%d\n' % (nm, MAIN_LDS)
    else: s += '; @launch grid=(256,1,1) block=(256,1,1) lds=%d\n' % MAIN_LDS
    s += '.amdgcn_target "amdgcn-amd-amdhsa--gfx950"\n.text\n' + a.text()
    s += '.section .rodata,"a"\n' + kd(nm, 512, 256, 100)
    return s

if __name__ == '__main__':
    out = sys.argv[1]
    dev = sys.argv[3] if len(sys.argv) > 3 else False
    open(out, 'w').write(build(int(sys.argv[2]), dev, aslist='/bench/' in out and 'dbgt' not in (dev or '') and 'amp' not in (dev or '')))
```

```python
from common import *
import fold

L_MEM = 0
L_T = 7680
L_S = L_T + 8192
L_X = L_S + 12288
ZXS = 28672 + 512
L_C = 7680
L_V = L_C + 4096
L_D = 32768
L_W = 98304
TEAM_LDS = L_W + 57344
SPIN = 200000
OOB = 0x8000000
NTEAM = 32
WB = False

ORD_S = ([(0, 0), (1, 0), (0, 1), (1, 1), (2, 0), (3, 0), (2, 1), (3, 1), (4, 0), (5, 0), (6, 0), (4, 1), (5, 1), (6, 1)]
         + [(t, 2) for t in range(7)] + [(t, l) for t in range(7) for l in range(3, 7)])
ORD_C = [(t, l) for l in range(4) for t in range(8)] + [(t, l) for t in range(8) for l in range(4, 7)]
CSPILL = [80, 88, 96, 104, 112, 52, 60]
def Wreg(i, n=8, off=0):
    if i >= 49: return V(CSPILL[i - 49] + off, n)
    return A(8 * i + off, n) if i < 32 else V(120 + 8 * (i - 32) + off, n)

def gen_team(a, dev=False):
    dev = set(dev.split('+')) if dev else set()
    RELAY = 'relay' in dev
    def stamp(k):
        if 'st%d' % k in dev or 'stall' in dev: a('s_memtime s[%d:%d]', 64 + 2 * k, 65 + 2 * k)
    def bits(dst, spec, first=True):
        for pos, w, sh in spec:
            a('v_bfe_u32 v3, v0, %d, %d', pos, w)
            if first: a('v_lshlrev_b32 v%d, %d, v3', dst, sh); first = False
            else: a('v_lshl_add_u32 v%d, v3, %d, v%d', dst, sh, dst)
    def spin(lp):
        a('s_add_u32 s14, s14, 1')
        a('s_cmp_lt_u32 s14, %d', SPIN)
        a('s_cbranch_scc1 %s', lp)
        a('s_endpgm')
    def xdma():
        a('s_mov_b32 m0, s36')
        a('s_add_u32 s30, s34, 4096')
        for i in range(4): a('buffer_load_dwordx4 v1, s[8:11], s34 offen offset:%d sc1 lds', 1024 * i)
        a('s_add_u32 m0, s36, 4096')
        a('s_add_u32 s34, s34, %d', XSEG)
        for i in range(3): a('buffer_load_dwordx4 v1, s[8:11], s30 offen offset:%d sc1 lds', 1024 * i)
    def ddma(src0, src1):
        r = [['buffer_load_dwordx4 v1, s[8:11], %s offen offset:%d sc1 lds' % (src0, 1024 * i)] for i in range(4)]
        r[3].append('s_add_u32 m0, s37, 16384')
        r += [['buffer_load_dwordx4 v1, s[8:11], %s offen offset:%d sc1 lds' % (src1, 1024 * i)] for i in range(4)]
        return r
    def fcheck(src, tmp, seg):
        a('v_readfirstlane_b32 s29, v%d', src)
        a('s_cmp_le_u32 s29, %s', seg)
    def dwait(seg):
        lp, ok = a.new('dw'), a.new('dk')
        a('s_mov_b32 s14, 0')
        a.label(lp)
        a('buffer_load_dword v18, off, s[8:11], s49 sc1')
        a('s_waitcnt vmcnt(0)')
        fcheck(18, 3, seg)
        a('s_cbranch_scc0 %s', ok)
        a('s_sleep 1')
        spin(lp)
        a.label(ok)
    def xcc_gather():
        lp, l2 = a.new('xc'), a.new('xo')
        a('v_min_u32 v20, %d, v0', NTEAM - 1)
        a('v_lshlrev_b32 v20, 2, v20')
        a('s_mov_b32 s14, 0')
        a.label(lp)
        a('buffer_load_dword v3, v20, s[44:47], 0 offen sc1')
        a('s_waitcnt vmcnt(0)')
        a('v_cmp_eq_u32 vcc, 0, v3')
        a('s_cbranch_vccz %s', l2)
        a('s_sleep 4')
        spin(lp)
        a.label(l2)
    def frag_offsets():
        a('s_lshl_b32 s33, s3, 1')
        for lam in range(7):
            a('s_lshl_b32 s%d, s33, 10', 15 + lam)
            if lam < 6:
                a('s_add_u32 s33, s33, 1')
                a('s_cmp_ge_u32 s33, 7')
                a('s_cselect_b32 s32, 7, 0')
                a('s_sub_u32 s33, s33, s32')
    def wload(order, tile_off, early_odd, between):
        if dev: a('s_memrealtime s[96:97]')
        for ps in range(2):
            for lam in range(7):
                l = a.new('wl')
                a('s_bitcmp1_b32 s%d, 10', 15 + lam)
                a('s_cbranch_scc%d %s', 0 if (early_odd ^ ps) else 1, l)
                a('s_waitcnt vmcnt(40)')
                a('s_lshl_b32 s33, s%d, 1', 15 + lam)
                a('s_add_u32 s33, s33, s30')
                for i, (t, lm) in enumerate(order):
                    if lm != lam: continue
                    a('s_add_u32 s32, s33, %d', tile_off(t))
                    if i >= 49:
                        a('s_add_u32 m0, s29, %d', 2048 * (i - 49))
                        a('s_nop 0')
                        a('buffer_load_dwordx4 v1, s[8:11], s32 offen sc1 lds')
                        a('buffer_load_dwordx4 v1, s[8:11], s32 offen offset:1024 sc1 lds')
                    else:
                        a('buffer_load_dwordx4 %s, v1, s[8:11], s32 offen sc1', Wreg(i, 4, 0))
                        a('buffer_load_dwordx4 %s, v1, s[8:11], s32 offen offset:1024 sc1', Wreg(i, 4, 4))
                a.label(l)
            if ps == 0: between()

    a.label('team')
    if dev: a('s_memrealtime s[90:91]')
    a('s_and_b32 s4, s30, 15')
    a('s_lshr_b32 s5, s30, 4')
    a('v_lshlrev_b32 v1, 4, v0')
    frag_offsets()
    a('s_cmp_ge_u32 s30, 30')
    a('s_cbranch_scc1 export')
    for r in range(4, 16): a('v_mov_b32 v%d, 0', r)
    a('v_and_b32 v3, 2, v0')
    a('v_cmp_eq_u32 s[58:59], 0, v3')
    a('v_mov_b32 v2, 0xeeee')
    a('v_mov_b32 v18, 0x4444')
    a('v_cndmask_b32 v2, v2, v18, s[58:59]')
    a('v_add_u32 v16, s15, v1')
    a('v_add_u32 v17, s16, v1')
    a('s_mov_b32 s49, 0x%x', HZ)
    a('v_cmp_gt_u32 s[62:63], 56, v0')
    xcc_gather()
    a('v_readfirstlane_b32 s31, v3')
    a('s_nop 1')
    a('v_cmp_ne_u32 vcc, s31, v3')
    a('s_nop 1')
    a('s_cmp_lg_u64 vcc, 0')
    a('s_cselect_b32 s51, 1, 0')
    lv, lj = a.new('iv'), a.new('ij')
    a('s_cmp_eq_u32 s5, 1')
    a('s_cbranch_scc1 %s', lv)
    if RELAY:
        a('s_lshl_b32 s34, 1, s4')
        fold.wait_stat(a, 0, 's34', 24)
    else: fold.wait_part(a, FLG_A, 's4', 1, True)
    a('s_mul_i32 s30, s4, 28')
    a('s_mul_i32 s32, s3, 7')
    a('s_add_u32 s30, s30, s32')
    a('s_mul_i32 s30, s30, 14336')
    wload(ORD_S, lambda t: t * 14336, 1, (lambda: fold.wait_stat(a, 1, 's34', 24)) if RELAY else (lambda: fold.wait_head_and_misc(a, FLG_A, 's4', 14, 24)))
    a('v_and_b32 v3, 8, v0')
    a('v_cmp_eq_u32 vcc, 0, v3')
    a('s_nop 1')
    a('v_cndmask_b32 v14, 0, 1.0, vcc')
    bits(4, [(2, 2, 6), (0, 1, 5), (4, 2, 3), (1, 1, 2)])
    bits(5, [(4, 2, 8), (0, 4, 3)])
    a('s_lshl_b32 s30, s3, 11')
    a('s_add_u32 s30, s30, %d', L_T)
    a('v_add_u32 v4, s30, v4')
    a('v_add_u32 v5, s30, v5')
    a('s_mul_i32 s30, s3, 3584')
    a('s_add_u32 s30, s30, %d', L_X)
    a('v_add_u32 v6, s30, v1')
    bits(8, [(5, 1, 8), (1, 2, 6), (0, 1, 4), (4, 1, 3)])
    a('s_mul_i32 s30, s3, 1792')
    a('v_add_u32 v8, s30, v8')
    a('v_add_u32 v9, 1024, v8')
    bits(10, [(4, 2, 9), (1, 1, 6), (2, 2, 4), (0, 1, 2)])
    bits(15, [(4, 2, 9), (3, 1, 7), (0, 1, 6), (1, 2, 4)])
    a('s_lshl_b32 s31, s3, 11')
    a('s_add_u32 s31, s31, %d', L_S)
    a('v_add_u32 v10, s31, v10')
    a('v_add_u32 v15, s31, v15')
    a('s_lshl_b32 s31, s3, 10')
    a('s_add_u32 s31, s31, %d', L_S)
    a('v_add_u32 v11, s31, v1')
    a('s_lshl_b32 s30, s4, 9')
    a('s_lshl_b32 s31, s3, 8')
    a('s_add_u32 s30, s30, s31')
    a('v_lshl_add_u32 v12, v0, 2, s30')
    bits(13, [(4, 2, 4), (0, 2, 2)])
    a('s_lshl_b32 s30, s4, 7')
    a('s_lshl_b32 s31, s3, 6')
    a('s_add_u32 s30, s30, s31')
    a('s_add_u32 s30, s30, 8192')
    a('v_add_u32 v13, s30, v13')
    a('v_and_b32 v3, 12, v0')
    a('v_cmp_eq_u32 vcc, 0, v3')
    a('v_mov_b32 v18, 0x%x', OOB)
    a('s_nop 0')
    a('v_cndmask_b32 v13, v18, v13, vcc')
    a('v_mov_b32 v3, 0')
    a('v_lshlrev_b32 v18, 2, v0')
    a('ds_write_b32 v18, v3 offset:%d', L_MEM + 7168)
    for w in range(4): a('ds_write_b32 v18, v3 offset:%d', L_T + w * 2048 + 1792)
    a('v_add_u32 v18, %d, v18', L_X + 28672)
    for o in (0, 256, ZXS, ZXS + 256): a('ds_write_b32 v18, v3 offset:%d', o)
    a('s_mov_b32 s50, %d', ZXS)
    a('s_mul_i32 s30, s3, 7168')
    a('s_add_u32 s34, s30, 0x%x', XF)
    a('s_add_u32 s36, s30, %d', L_X)
    xdma()
    a('s_lshl_b32 s31, s4, 10')
    a('s_add_u32 s27, s31, 0x%x', PR)
    a('s_cmp_lt_u32 s4, 10')
    a('s_cselect_b32 s27, s27, 0x%x', OOB)
    a('s_cmp_eq_u32 s3, 2')
    a('s_cselect_b32 s27, s27, 0x%x', OOB)
    a('s_lshl_b32 s31, s4, 2')
    a('s_add_u32 s31, s31, s3')
    if 'thalf' in dev:
        a('s_mul_i32 s35, s31, 3584')
        a('v_lshl_add_u32 v7, v0, 7, s35')
        a('v_lshrrev_b32 v3, 14, v7')
        a('v_lshl_add_u32 v7, v3, 14, v7')
        a('v_add_u32 v7, 0x%x, v7', DD + 2 * DSEG + 16384)
        a('v_cmp_gt_u32 s[62:63], 28, v0')
    elif 't34' in dev:
        a('s_mul_i32 s35, s31, 42')
        a('v_add_u32 v7, s35, v0')
        a('s_movk_i32 s35, 2731')
        a('v_mul_u32_u24 v3, s35, v7')
        a('v_lshrrev_b32 v3, 16, v3')
        a('v_lshl_add_u32 v7, v3, 3, v7')
        a('v_lshlrev_b32 v7, 7, v7')
        a('v_add_u32 v7, 0x%x, v7', DD + 2 * DSEG + 1024)
        a('v_cmp_gt_u32 s[62:63], 42, v0')
    else:
        a('s_mul_i32 s35, s31, 7168')
        a('s_add_u32 s35, s35, 0x%x', DD + 2 * DSEG)
        a('v_lshl_add_u32 v7, v0, 7, s35')
    a('s_lshl_b32 s31, s31, 9')
    a('s_add_u32 s31, s31, 0x%x', XF + 2 * XSEG)
    a('v_and_b32 v3, 3, v0')
    a('v_lshl_add_u32 v3, v3, 7, s31')
    if 'tx' in dev: a('v_cmp_gt_u32 s[62:63], 0, v0'); a('s_nop 1')
    a('v_cndmask_b32 v7, v3, v7, s[62:63]')
    a('s_mov_b32 s38, 0x%x', OOB)
    if 'not0' not in dev:
        a('buffer_load_dword v18, off, s[8:11], s49 sc1')
        a('s_waitcnt vmcnt(0)')
        fcheck(18, 3, '2')
        a('s_cselect_b32 s38, 0x%x, 0', OOB)
    a('s_branch %s', lj)
    a.label(lv)
    a('s_lshl_b32 s34, s3, 2')
    if RELAY:
        a('s_lshl_b32 s34, 0xf0000, s34')
        fold.wait_stat(a, 0, 's34', 24)
    else: fold.wait_part(a, FLG_C, 's34', 4, False)
    a('s_mul_i32 s30, s3, 4*28')
    a('s_lshl_b32 s32, s4, 1')
    a('s_add_u32 s30, s30, s32')
    a('s_mul_i32 s30, s30, 14336')
    a('s_add_u32 s30, s30, 0x%x', WF_C)
    a('s_mul_i32 s29, s3, 14336')
    a('s_add_u32 s29, s29, %d', L_W)
    wload(ORD_C, lambda t: ((t & 3) * 28 + (t >> 2)) * 14336, 0, (lambda: fold.wait_stat(a, 1, 's34', 24)) if RELAY else (lambda: fold.wait_head_and_misc(a, FLG_C, 's34', 56, 24)))
    a('v_add_u32 v14, s29, v1')
    for r, i in zip((4, 5, 7, 12, 13), range(5)): a('v_add_u32 v%d, s%d, v1', r, 17 + i)
    bits(6, [(4, 2, 7), (2, 2, 5), (0, 1, 4)])
    a('s_mul_i32 s30, s3, 1536')
    a('s_sub_u32 s30, 8192, s30')
    a('v_add_u32 v6, s30, v6')
    a('v_mov_b32 v18, 0x%x', OOB)
    a('v_cndmask_b32 v6, v18, v6, s[58:59]')
    bits(8, [(4, 2, 7), (0, 4, 2)])
    a('s_lshl_b32 s30, s3, 9')
    a('s_add_u32 s30, s30, %d', L_C)
    a('v_add_u32 v8, s30, v8')
    bits(10, [(5, 1, 9), (2, 2, 7), (0, 1, 6), (4, 1, 5), (1, 1, 4)])
    a('s_lshl_b32 s48, s3, 11')
    a('s_add_u32 s48, s48, %d', L_V)
    bits(9, [(4, 2, 7), (2, 1, 6), (0, 2, 4), (3, 1, 3)])
    a('s_and_b32 s31, s3, 1')
    a('s_lshl_b32 s30, s31, 11')
    a('s_add_u32 s30, s30, %d', L_C)
    a('v_add_u32 v9, s30, v9')
    a('s_lshl_b32 s30, s4, 9')
    a('s_lshl_b32 s31, s31, 8')
    a('s_add_u32 s30, s30, s31')
    a('v_lshl_add_u32 v11, v0, 2, s30')
    a('s_lshl_b32 s30, s3, 12')
    a('s_lshl_b32 s31, s4, 15')
    a('s_add_u32 s35, s30, s31')
    a('s_add_u32 s35, s35, 0x%x', DD)
    a('s_add_u32 s37, s30, %d', L_D)
    a('s_add_u32 s35, s35, %d', DSEG)
    a('s_mov_b32 s38, 0x%x', OOB)
    a('s_mov_b32 s6, 0x%x', OOB)
    a('s_mov_b32 s7, 1')
    if 'nohy' not in dev:
        lsk = a.new('ds')
        a('buffer_load_dword v18, off, s[8:11], s49 sc1')
        a('s_waitcnt vmcnt(0)')
        fcheck(18, 3, '1')
        a('s_cbranch_scc1 %s', lsk)
        for tl in range(2):
            a('s_add_u32 m0, s37, %d', 16384 * tl)
            a('s_add_u32 s31, s35, %d', 16384 * tl - DSEG)
            for i in range(4): a('buffer_load_dwordx4 v1, s[8:11], s31 offen offset:%d sc1 lds', 1024 * i)
        a('s_mov_b32 s38, s35')
        a('s_add_u32 s6, s35, 16384')
        a('s_mov_b32 s7, 0')
        a.label(lsk)
    a('s_mov_b32 s40, 0x%x', OOB)
    a('s_mov_b32 s13, 0')
    a.label(lj)
    a('s_mov_b32 s12, 0')
    a('s_add_u32 s32, s15, 0x%x', MEMX)
    a('s_add_u32 s33, s16, 0x%x', MEMX)
    for r in range(20, 48): a('v_mov_b32 v%d, 0', r)
    a('s_waitcnt lgkmcnt(0)')
    if dev: a('s_waitcnt vmcnt(0)')
    if dev:
        lc = a.new('cal')
        a('s_memrealtime s[82:83]')
        a('s_waitcnt lgkmcnt(0)')
        a.label(lc)
        a('s_memrealtime s[84:85]')
        a('s_memtime s[86:87]')
        a('s_waitcnt lgkmcnt(0)')
        a('s_cmp_eq_u32 s84, s82')
        a('s_cbranch_scc1 %s', lc)
    if 'slow' in dev: a('s_branch tslow')
    a('s_cmp_eq_u32 s51, 1')
    a('s_cbranch_scc1 tslow')
    a('s_cmp_eq_u32 s5, 1')
    a('s_cbranch_scc1 cloopF')
    a('s_branch sloopF')
    a.label('tslow')
    a('s_cmp_eq_u32 s5, 1')
    a('s_cbranch_scc1 cloopS')
    a('s_branch sloopS')
    a.label('tdie')
    a('s_endpgm')
    a.label('export')
    a('s_cmp_eq_u32 s30, 31')
    a('s_cbranch_scc1 relay')
    if RELAY:
        a('s_mov_b32 s34, 1')
        fold.wait_stat(a, 1, 's34', 24)
    else: fold.wait_all(a, FLG_M, 256)
    a('s_mov_b32 s12, 1')
    a('v_mov_b32 v10, 1')
    a('s_mov_b32 s35, 0x%x', OOB)
    a('v_min_u32 v7, 55, v0')
    a('v_lshlrev_b32 v7, 7, v7')
    a('s_mul_i32 s31, s3, %d', UNIT)
    a('s_add_u32 s31, s31, 0x%x', MEMX)
    a('buffer_load_dword v9, v7, s[8:11], s31 offen sc1')
    a('s_lshl_b32 s31, s3, 13')
    a('s_add_u32 s31, s31, 0x%x', PR)
    a('v_lshlrev_b32 v8, 7, v0')
    a('buffer_load_dword v9, v8, s[8:11], s31 offen sc1')
    a('s_add_u32 s31, s31, 8192')
    a('buffer_load_dword v9, v8, s[8:11], s31 offen sc1')
    if 'xw' in dev:
        a('s_mul_i32 s31, s3, 7168')
        a('s_add_u32 s31, s31, 0x%x', XF)
        for k in range(1, 4):
            a('s_add_u32 s31, s31, %d', XSEG)
            a('buffer_load_dword v9, v7, s[8:11], s31 offen sc1')
    a.label('exloop')
    a('s_mul_i32 s30, s12, %d', UNIT)
    a('s_add_u32 s34, s30, 0x%x', MEMX)
    a('s_add_u32 s32, s34, s15')
    a('s_add_u32 s33, s34, s16')
    a('s_add_u32 s34, s34, %d', 3 * UNIT)
    a('s_cmp_eq_u32 s3, 0')
    a('s_cselect_b32 s34, s34, 0x%x', OOB)
    a('buffer_load_dword v9, v7, s[8:11], s34 offen sc1')
    if 'xw' in dev:
        a('s_lshl_b32 s34, s12, 2')
        a('s_add_u32 s34, s34, s3')
        a('s_mul_i32 s34, s34, 7168')
        a('s_add_u32 s34, s34, 0x%x', XF + 3 * XSEG)
        a('buffer_load_dword v9, v7, s[8:11], s34 offen sc1')
    a('s_mov_b32 s14, 0')
    lp = a.new('ex')
    a.label(lp)
    if 'noes' not in dev: a('s_sleep 6')
    a('buffer_load_dwordx4 v[20:23], v1, s[8:11], s32 offen sc1')
    a('buffer_load_dwordx4 v[24:27], v1, s[8:11], s33 offen sc1')
    a('s_add_u32 s14, s14, 1')
    a('s_cmp_lt_u32 s14, %d', SPIN)
    a('s_cbranch_scc0 tdie')
    a('s_waitcnt vmcnt(0)')
    a('v_max3_u32 v3, v20, v21, v22')
    a('v_max3_u32 v4, v23, v24, v25')
    a('v_max3_u32 v3, v26, v27, v3')
    a('v_max_u32 v3, v4, v3')
    a('v_cmp_eq_u32 vcc, -1, v3')
    a('s_cbranch_vccnz %s', lp)
    a('s_sub_u32 s32, s32, %d', MEMX - MEME)
    a('s_sub_u32 s33, s33, %d', MEMX - MEME)
    a('s_barrier')
    a('buffer_store_dwordx4 v[20:23], v1, s[8:11], s32 offen sc1')
    a('buffer_store_dwordx4 v[24:27], v1, s[8:11], s33 offen sc1')
    a('s_lshl_b32 s31, s3, 8')
    a('s_add_u32 s31, s31, s12')
    a('s_cmp_eq_u32 s31, 1')
    a('s_cselect_b32 s31, 0x%x, s35', GO)
    a('buffer_store_dword v10, off, s[8:11], s31 sc1')
    a('s_add_u32 s12, s12, 1')
    a('s_cmp_lt_u32 s12, 63')
    a('s_cbranch_scc1 exloop')
    a('s_endpgm')
    a.label('relay')
    a('s_cmp_eq_u32 s3, 0')
    a('s_cbranch_scc0 tdie')
    xcc_gather()
    a('v_readfirstlane_b32 s31, v3')
    a('s_mov_b32 s12, 0')
    a('s_mov_b32 s14, 0')
    a('s_mov_b32 s49, 0x%x', DPROG)
    a('v_cmp_ne_u32 s[62:63], s31, v3')
    a('v_and_b32 v3, 31, v0')
    a('v_cmp_gt_u32 s[60:61], 28, v3')
    a('v_lshlrev_b32 v4, 2, v0')
    a('v_lshrrev_b32 v5, 5, v0')
    a('s_mov_b32 s48, 0x%x', HZ)
    if 'slow' in dev: a('s_mov_b64 s[62:63], -1')
    if RELAY:
        a('v_and_b32 v8, 15, v0')
        a('v_mul_u32_u24 v8, 56, v8')
        a('v_bfe_u32 v9, v0, 4, 1')
        a('v_lshl_add_u32 v8, v9, 10, v8')
        a('v_cmp_eq_u32 s[58:59], 0, v9')
        a('s_mov_b32 s32, 0x%x', FLG_A)
        a('s_mov_b32 s33, 0x%x', FLG_M)
        a('s_mov_b32 s34, 0x%x', STAT)
        a.label('stloop')
        for k in range(7): a('buffer_load_dwordx2 %s, v8, s[8:11], s32 offen offset:%d sc1', V(20 + 2 * k, 2), 8 * k)
        a('buffer_load_dwordx4 v[36:39], v1, s[8:11], s33 offen sc1')
        a('s_add_u32 s14, s14, 1')
        a('s_cmp_lt_u32 s14, %d', SPIN)
        a('s_cbranch_scc0 tdie')
        a('s_waitcnt vmcnt(0)')
        a('v_min3_u32 v40, v20, v21, v24')
        a('v_min3_u32 v40, v25, v28, v40')
        a('v_min3_u32 v40, v29, v32, v40')
        a('v_min_u32 v40, v33, v40')
        a('v_min3_u32 v41, v22, v23, v26')
        a('v_min3_u32 v41, v27, v30, v41')
        a('v_min_u32 v41, v31, v41')
        a('v_cndmask_b32 v42, v40, v41, s[58:59]')
        a('v_min_u32 v40, v40, v41')
        a('v_min3_u32 v36, v36, v37, v38')
        a('v_min_u32 v36, v36, v39')
        a('v_cmp_ne_u32 s[36:37], 0, v42')
        a('v_cmp_ne_u32 s[38:39], 0, v40')
        a('v_cmp_eq_u32 vcc, 0, v36')
        a('s_nop 1')
        a('s_cmp_eq_u64 vcc, 0')
        a('s_cselect_b32 s38, s38, 0')
        a('v_mov_b32 v44, s36')
        a('v_mov_b32 v45, s38')
        a('s_cmp_eq_u64 s[62:63], 0')
        a('s_cbranch_scc0 stslow')
        a('buffer_store_dwordx2 v[44:45], off, s[8:11], s34')
        a('s_branch stnext')
        a.label('stslow')
        a('buffer_store_dwordx2 v[44:45], off, s[8:11], s34 sc1')
        a.label('stnext')
        a('s_cmp_eq_u32 s38, -1')
        a('s_cbranch_scc0 stloop')
        a('s_mov_b32 s14, 0')
    a.label('reloop')
    a('s_sleep 2')
    a('buffer_load_dword v6, v4, s[8:11], s49 offen sc1')
    a('s_add_u32 s14, s14, 1')
    a('s_cmp_lt_u32 s14, %d', SPIN)
    a('s_cbranch_scc0 tdie')
    a('s_mov_b32 s13, s12')
    a('s_waitcnt vmcnt(0)')
    a('v_lshl_add_u32 v6, v6, 1, v5')
    a.label('reinc')
    a('v_cmp_ge_u32 vcc, s12, v6')
    a('s_nop 1')
    a('s_and_b64 vcc, vcc, s[60:61]')
    a('s_cbranch_scc1 repub')
    a('s_add_u32 s12, s12, 1')
    a('s_cmp_lt_u32 s12, 64')
    a('s_cbranch_scc1 reinc')
    a.label('repub')
    a('s_cmp_eq_u32 s12, s13')
    a('s_cbranch_scc1 reloop')
    a('v_mov_b32 v7, s12')
    a('s_cmp_eq_u64 s[62:63], 0')
    a('s_cbranch_scc0 reslow')
    a('buffer_store_dword v7, off, s[8:11], s48')
    a('s_branch renext')
    a.label('reslow')
    a('buffer_store_dword v7, off, s[8:11], s48 sc1')
    a.label('renext')
    a('s_cmp_lt_u32 s12, 63')
    a('s_cbranch_scc1 reloop')
    a('s_endpgm')

    def loop(role, mode):
        SC = ' sc1' if mode == 'S' else ''
        ORDER = ORD_S if role == 's' else ORD_C
        TACC = 20
        MF = 48 if role == 's' else 52
        SB, TA, SACC = 76, 100, 108
        VB, PF, CACC, DB, RT = 52, 60, 72, 80, 112
        TMP = TA if role == 's' else 19
        tails = []
        a.l.append('.p2align 6')
        a.label(role + 'loop' + mode)
        if dev:
            l = a.new('p4')
            a('s_cmp_eq_u32 s12, 4')
            a('s_cbranch_scc0 %s', l)
            a('s_memrealtime s[98:99]')
            a.label(l)
            l = a.new('pp')
            a('s_cmp_eq_u32 s12, 8')
            a('s_cbranch_scc0 %s', l)
            a('s_memtime s[78:79]')
            a('s_memrealtime s[88:89]')
            a.label(l)
        if 'stall' in dev and role == 'c':
            a('s_waitcnt lgkmcnt(0)')
            a('s_mov_b32 s70, s76')
        def mpoll():
            a('buffer_load_dwordx4 %s, v1, s[8:11], s32 offen sc1', V(MF, 4))
            a('buffer_load_dwordx4 %s, v1, s[8:11], s33 offen sc1', V(MF + 4, 4))
        NE = 0
        if role == 'c':
            for x in dev:
                if x.startswith('ne'): NE = int(x[2:])
            dd = ddma('s38', 's6') if 'nod' not in dev else []
            a('s_xor_b32 s37, s37, 0x18000')
            a('s_cmp_lg_u32 s13, 0')
            lslow, lback = a.new('dq'), a.new('db')
            a('s_cbranch_scc1 %s', lslow)
            a.label(lback)
            tails.append(('dw', lslow, lback))
            a('s_mov_b32 m0, s37')
            a('s_nop 0')
            for grp in dd[:NE]:
                for ins in grp: a(ins)
                if len(grp) > 1: a('s_nop 0')
        CL = 'cearly' not in dev
        if role == 'c' and not CL: mpoll()
        ZA, ZN = (10, 21) if 'noz' not in dev else (0, 0)
        for x in dev:
            if x.startswith('za'): ZA = int(x[2:]); ZN = ZA + 11
        for r in range(ZN if role == 's' else 0, MF - TACC): a('v_mov_b32 v%d, 0', TACC + r)
        if role == 'c' and not CL: mpoll()
        sc = ['s_and_b32 s30, s12, 3', 's_mul_i32 s22, s30, %d' % PSLOT, 's_add_u32 s22, s22, 0x%x' % PR,
              's_add_u32 s32, s32, %d' % UNIT, 's_add_u32 s33, s33, %d' % UNIT]
        if role == 's':
            for r in range(12): a('v_mov_b32 v%d, 0', SACC + r)
            for i in range(5): a('v_add_u32 v%d, s%d, v1', TA + 2 + i, 17 + i)
            radr = [TA + 2 + i for i in range(5)]
            if 'xt' in dev:
                a('s_add_u32 s36, s36, s50')
                a('s_mov_b32 m0, s36')
            sc += ['s_add_u32 s31, s12, 3', 's_and_b32 s31, s31, 3', 's_mul_i32 s24, s31, %d' % PSLOT, 's_add_u32 s24, s24, s27',
                   's_min_u32 s24, s24, 0x%x' % OOB]
        else:
            radr = [4, 5, 7, 12, 13]
            sc += ['s_lshl_b32 s31, s3, 11', 's_add_u32 s43, s22, s31', 's_sub_u32 s42, s32, s15', 's_xor_b32 s30, s37, 0x18000']
        MD = 2
        if role == 's':
            MD = 3
            for x in dev:
                if x.startswith('md'): MD = int(x[2:])
            for r in range(8): a('v_mov_b32 v%d, -1', MF + r)
            if 'now' not in dev: a('s_waitcnt vmcnt(0)')
        elif CL:
            MD = 1
            for x in dev:
                if x.startswith('cd'): MD = int(x[2:])
            for r in range(8): a('v_mov_b32 v%d, -1', MF + r)
            if 'cnw' not in dev: a('s_waitcnt vmcnt(0)')
        a('s_mov_b32 s14, 0')
        def smf(i):
            t, lam = ORDER[i]
            if 'nomf' + role in dev: a('s_nop 3'); return
            if 'chalf' in dev and role == 'c' and i >= 42: return
            for x in dev:
                if x.startswith('cs') and role == 'c': a('s_nop %d', int(x[2:]))
            a('v_smfmac_f32_16x16x64_bf16 %s, %s, %s, v2', V(TACC + 4 * t, 4), V(MF + 4 * lam, 4), Wreg(i))
        lp, lf = a.new('mp'), a.new('mf')
        if role == 'c' and not CL: a('s_branch %s', lp)
        a.label(lf)
        for x in dev:
            if x.startswith('ms' + role): a('s_sleep %d', int(x[3:]))
        mpoll()
        a('s_add_u32 s14, s14, 1')
        a('s_cmp_lt_u32 s14, %d', SPIN)
        a('s_cbranch_scc0 tdie')
        for x in dev:
            if x.startswith('spec') and role == 's':
                a('s_nop 1')
                for r in range(4 * int(x[4:])): a('v_mov_b32 v%d, 0', TACC + r)
        a.label(lp)
        a('s_waitcnt vmcnt(%d)', 2 * MD - 2)
        if 'lite' in dev: a('v_max_u32 v3, v%d, v%d', MF + 3, MF + 7)
        else:
            a('v_max3_u32 v3, v%d, v%d, v%d', MF, MF + 1, MF + 2)
            a('v_max3_u32 v%d, v%d, v%d, v%d', TMP, MF + 3, MF + 4, MF + 5)
            a('v_max3_u32 v3, v%d, v%d, v3', MF + 6, MF + 7)
            a('v_max_u32 v3, v%d, v3', TMP)
        a('v_cmp_eq_u32 vcc, -1, v3')
        if 'm0' in dev:
            a('ds_write_b128 v16, %s', V(MF, 4))
            a('ds_write_b128 v17, %s', V(MF + 4, 4))
        NSP = 0
        for x in dev:
            if x.startswith('spec') and role == 's': NSP = int(x[4:])
        for k in range(NSP):
            smf(k)
            if k == 0: a('ds_write_b128 v16, %s', V(MF, 4))
        a('s_cbranch_vccnz %s', lf)
        stamp(0)
        N = len(ORDER)
        gm = [[] for _ in range(N + 12)]
        gv = [[] for _ in range(N + 12)]
        pre = [[] for _ in range(N + 12)]
        rd = ['ds_read_b128 %s, v%d' % (V(MF + 8 + 4 * i, 4), radr[i]) for i in range(5)]
        if 'm0' not in dev:
            gm[0].append('ds_write_b128 v16, %s' % V(MF, 4))
            gm[1].append('ds_write_b128 v17, %s' % V(MF + 4, 4))
        GB = 5
        for x in dev:
            if x.startswith('gb') and role == 's': GB = int(x[2:])
        gm[GB] += ['s_waitcnt lgkmcnt(0)', 's_barrier', rd[0]]
        for i in range(1, 5): gm[GB + i].append(rd[i])
        for k in range(0, len(sc), 2): gv[(8 if role == 'c' else 20) + k // 2] += sc[k:k + 2]
        def place(ins, lo):
            k = lo
            while gm[k]: k += 1
            gm[k] += ins if isinstance(ins, list) else [ins]
            return k
        if role == 's':
            B0 = 21
            def epi(t):
                c = TACC + 4 * t
                return (['v_add_f32 v%d, v%d, v%d' % (c, c, c + 2), 'v_add_f32 v%d, v%d, v%d' % (c + 1, c + 1, c + 3),
                         'v_cvt_pk_bf16_f32 v%d, v%d, v%d' % (c, c, c + 1)], ['ds_write_b32 v4, v%d offset:%d' % (c, 256 * t)])
            for t in range(6):
                v, m = epi(t)
                for i, ins in enumerate(v): gv[B0 + 4 * t + 7 + i].append(ins)
                gm[B0 + 4 * t + 10].append(m[0])
            place('ds_read_b64_tr_b16 %s, v5' % V(TA, 2), B0 + 23)
            place('ds_read_b64_tr_b16 %s, v5 offset:128' % V(TA + 2, 2), B0 + 24)
            def brd(step, xb0, xb1, mb):
                r = []
                for kt, b in ((0, xb0), (1, xb1)):
                    for hh in range(2):
                        r.append('ds_read_b128 %s, v6 offset:%d' % (V(b + 4 * hh, 4), kt * 14336 + (2 * step + hh) * 1024))
                ad = 'v8' if step == 0 else 'v9'
                for hh in range(2):
                    for qq in range(2):
                        r.append('ds_read2_b32 %s, %s offset0:%d offset1:%d' % (V(mb + 4 * hh + 2 * qq, 2), ad, 128 * hh + qq, 128 * hh + qq + 8))
                return r
            place('buffer_load_dword v18, off, s[8:11], s49 sc1', GB)
            place('buffer_load_dword v19, v7, s[8:11], s38 offen' if 'notouch' not in dev else 'buffer_load_dword v19, off, s[8:11], s49 sc1', GB)
            if 'xt' in dev:
                xl = [['buffer_load_dwordx4 v1, s[8:11], s34 offen offset:%d sc1 lds' % (1024 * i)] for i in range(4)]
                xl[3] += ['s_add_u32 m0, s36, 4096', 's_add_u32 s28, s34, 4096']
                xl += [['buffer_load_dwordx4 v1, s[8:11], s28 offen offset:%d sc1 lds' % (1024 * i)] for i in range(3)]
                k, xs = GB + 7, 4
                for x in dev:
                    if x.startswith('xs'): xs = int(x[2:])
                for grp in xl: k = place(grp, k) + xs
            BL = 12
            for x in dev:
                if x.startswith('bl'): BL = int(x[2:])
            for ins in brd(0, SB, SB + 8, SB + 16): place(ins, BL)
            b1 = brd(1, TACC, TACC + 8, MF)
            k = 20
            while gm[k]: k += 1
            yv = sum(1 for kk in range(k) for x in gm[kk] if x.startswith('buffer_'))
            k = place(['s_waitcnt vmcnt(%d)' % yv, b1[4]], 20)
            for ins in b1[5:]: place(ins, k)
            for ins in b1[0:2]: place(ins, B0 + 15)
            for ins in b1[2:4]: place(ins, B0 + 23)
            def younger_ds(k0, k1): return sum(1 for kk in range(k0, k1) for x in gm[kk] if x.startswith('ds_'))
            pre[14].append('s_waitcnt lgkmcnt(%d)' % younger_ds(GB + 1, 14))
            pre[B0].append('s_waitcnt lgkmcnt(%d)' % younger_ds(GB + 5, B0))
        else:
            pre[16].append('s_waitcnt lgkmcnt(4)')
            pre[24].append('s_waitcnt lgkmcnt(0)')
            sp = 4
            for x in dev:
                if x.startswith('sp') and x[2:].isdigit(): sp = int(x[2:])
            rest = dd[NE:]
            for i, grp in enumerate(rest): gm[12 + sp * i] += grp
            gm[10].append('buffer_load_dword v18, off, s[8:11], s49 sc1')
            def cepi(t):
                c = TACC + 4 * t
                return (['v_add_f32 v%d, v%d, v%d' % (c, c, c + 2), 'v_add_f32 v%d, v%d, v%d' % (c + 1, c + 1, c + 3),
                         'v_cvt_pk_bf16_f32 v%d, v%d, v%d' % (c, c, c + 1)], 'ds_write_b32 v19, v%d offset:%d' % (c, 256 * t))
            for t in range(8):
                v, m = cepi(t)
                for i_, ins in enumerate(v): gv[32 + 3 * t + 6 + i_].append(ins)
                gm[32 + 3 * t + 9].insert(0, m)
            wr = ['ds_read_b128 %s, v14 offset:%d' % (V(CSPILL[i >> 1] + 4 * (i & 1), 4), 1024 * i) for i in range(14)]
            for ins in wr[:10]: place(ins, 17)
            k = 30
            while gm[k]: k += 1
            younger = sum(1 for kk in range(k) for x in gm[kk] if x.startswith('buffer_'))
            k = place(['s_waitcnt vmcnt(%d)' % younger, wr[10]], 30)
            place(wr[11], k)
            for ins in wr[12:]: kl = place(ins, 33)
            def yds(k0, k1): return sum(1 for kk in range(k0, k1) for x in gm[kk] if x.startswith('ds_'))
            pre[24] = ['s_waitcnt lgkmcnt(%d)' % yds(GB + 5, 24)]
            pre[49].append('s_waitcnt lgkmcnt(%d)' % yds(kl + 1, 49))
            gv[20].append('v_add_u32 v15, s30, v1')
            gv[21].append('v_lshrrev_b32 v3, 4, v0')
            gv[22].append('v_lshl_add_u32 v3, v3, 2, s48')
            gv[23].append('v_and_b32 v19, 15, v0')
            gv[24].append('v_lshl_add_u32 v19, v19, 4, v3')
            gv[25].append('v_add_u32 v3, s48, v1')
        for k in range(N):
            for ins in pre[k]: a(ins)
            if k >= NSP: smf(k)
            if k == 0 and NSP: continue
            for ins in gm[k] + gv[k]: a(ins)
        stamp(1)
        if role == 's':
            for kk in range(N, N + 3):
                for ins in gm[kk] + gv[kk]: a(ins)
            assert not any(gm[N + 3:]) and not any(gv[N + 3:])
            a('s_cmp_lt_u32 s3, 2')
            a('s_nop 1')
            v, m = epi(6)
            a('v_pk_add_f32 %s, %s, %s', V(TACC + 24, 2), V(TACC + 24, 2), V(TACC + 26, 2))
            for ins in v[2:] + m: a(ins)
            a('ds_read_b64_tr_b16 %s, v5 offset:1024', V(TA + 4, 2))
            a('ds_read_b64_tr_b16 %s, v5 offset:1152', V(TA + 6, 2))
            a('s_waitcnt lgkmcnt(7)')
            for kt in range(3):
                a('v_smfmac_f32_16x16x64_bf16 %s, %s, %s, v2', V(SACC + 4 * kt, 4), V(TA, 4), V(SB + 8 * kt, 8))
            a('s_waitcnt lgkmcnt(0)')
            for kt, b in enumerate((TACC, TACC + 8, MF)):
                a('v_smfmac_f32_16x16x64_bf16 %s, %s, %s, v2', V(SACC + 4 * kt, 4), V(TA + 4, 4), V(b, 8))
            a('s_nop %d', 5 if 'tight' not in dev else 1)
            def sadd(kt):
                c = SACC + 4 * kt
                if 'nopk' not in dev: a('v_pk_add_f32 %s, %s, %s', V(c, 2), V(c, 2), V(c + 2, 2))
                else:
                    a('v_add_f32 v%d, v%d, v%d', c, c, c + 2)
                    a('v_add_f32 v%d, v%d, v%d', c + 1, c + 1, c + 3)
            def swr(kt):
                c = SACC + 4 * kt
                if kt < 2: a('ds_write2_b32 v10, v%d, v%d offset0:%d offset1:%d', c, c + 1, 32 * kt, 32 * kt + 64)
                else: a('ds_write2_b32 v15, v%d, v%d offset0:2 offset1:66', c, c + 1)
            if 'so0' not in dev: sadd(0); sadd(1); swr(0); sadd(2); swr(1); swr(2)
            else:
                for kt in range(3): sadd(kt); swr(kt)
            lns, ljn = a.new('ns'), a.new('jn')
            a('s_cbranch_scc0 %s', lns)
            tails.append(('nv', lns, ljn))
            for r in range(ZA): a('v_mov_b32 v%d, 0', TACC + r)
            a('s_waitcnt lgkmcnt(0)')
            if ZA: a('v_mov_b32 v%d, 0', TACC + ZA)
            a('s_barrier')
            stamp(2)
            for w in range(4): a('ds_read_b96 %s, v11 offset:%d', V(76 + 4 * w, 3), 2048 * w) if 'b96' in dev else a('ds_read_b128 %s, v11 offset:%d', V(76 + 4 * w, 4), 2048 * w)
            for r in range(ZA + 1, ZN): a('v_mov_b32 v%d, 0', TACC + r)
            a('s_waitcnt lgkmcnt(2)')
            a('v_pk_add_f32 v[76:77], v[76:77], v[80:81]')
            a('v_add_f32 v78, v78, v82')
            a('s_waitcnt lgkmcnt(0)')
            a('v_pk_add_f32 v[84:85], v[84:85], v[88:89]')
            a('v_add_f32 v86, v86, v90')
            a('v_pk_add_f32 v[76:77], v[76:77], v[84:85]')
            a('v_add_f32 v78, v78, v86')
            DP = ('quad_perm:[1,0,3,2]', 'quad_perm:[2,3,0,1]', 'row_half_mirror', 'row_mirror')
            def dpp(op, d, s_, ctl): a('%s_dpp v%d, v%d, v%d %s row_mask:0xf bank_mask:0xf', op, d, s_, s_, ctl)
            a('v_max3_f32 v84, v76, v77, v78')
            a('v_sub_f32 v76, v76, v84')
            a('v_sub_f32 v77, v77, v84')
            dpp('v_max_f32', 85, 84, DP[0])
            a('v_sub_f32 v78, v78, v84')
            a('v_exp_f32 v76, v76')
            dpp('v_max_f32', 85, 85, DP[1])
            a('v_exp_f32 v77, v77')
            a('s_nop 0')
            dpp('v_max_f32', 85, 85, DP[2])
            a('v_exp_f32 v78, v78')
            a('v_add_f32 v86, v76, v77')
            dpp('v_max_f32', 85, 85, DP[3])
            a('v_sub_f32 v84, v84, v85')
            a('v_exp_f32 v84, v84')
            a('v_fmac_f32 v86, v78, v14')
            a('v_mul_f32 v86, v86, v84')
            a('v_mul_f32 v76, v76, v84')
            a('v_mul_f32 v77, v77, v84')
            dpp('v_add_f32', 86, 86, DP[0])
            a('v_mul_f32 v78, v78, v84')
            a('s_nop 0')
            for ctl in DP[1:]:
                dpp('v_add_f32', 86, 86, ctl)
                if ctl != DP[3]: a('s_nop 1')
            a('v_rcp_f32 v86, v86')
            a('s_nop 0')
            a('v_mul_f32 v76, v76, v86')
            a('v_mul_f32 v77, v77, v86')
            a('v_cvt_pk_bf16_f32 v88, |v76|, |v77|')
            a('buffer_store_dword v88, v12, s[8:11], s22 offen' + SC)
            a('v_mul_f32_dpp v79, v78, v86 row_shl:4 row_mask:0xf bank_mask:0xf bound_ctrl:0')
            a('v_mul_f32 v78, v78, v86')
            a('v_cvt_pk_bf16_f32 v90, |v78|, |v79|')
            a('buffer_store_dword v90, v13, s[8:11], s22 offen' + SC)
            stamp(3)
            a('s_waitcnt vmcnt(%d)', 3 + (7 if 'xt' in dev else 0))
            a('s_barrier')
            if 'nox' not in dev: xdma()
            a.label(ljn)
            a('v_add_u32 v7, %d, v7', XSEG)
            a('s_mov_b64 exec, s[62:63]')
            a('v_add_u32 v7, %d, v7', DSEG - XSEG)
            a('s_mov_b64 exec, -1')
            a('s_add_u32 s31, s12, 3')
            fcheck(18, 3, 's31')
            a('s_cselect_b32 s38, 0x%x, 0', OOB)
            a('s_cmp_gt_u32 s31, 62')
            a('s_cselect_b32 s38, 0x%x, s38', OOB)
            for x in dev:
                if x.startswith('ds'): a('s_sleep %d', int(x[2:]))
        else:
            def pld1(k):
                a('buffer_load_dwordx4 %s, %s, s[8:11], s43 offen offset:%d sc1', V(PF + 4 * k, 4), 'v10' if k else 'v6', 1024 if k == 2 else 0)
            def pld():
                for k in range(3): pld1(k)
            l0, l1 = a.new('d0'), a.new('d1')
            a('s_cmp_eq_u32 s7, 1')
            a('s_cbranch_scc1 %s', l0)
            a.label(l1)
            tails.append(('d0', l0, l1))
            for i in range(8): a('ds_read_b128 %s, v15 offset:%d', V(DB + 4 * i, 4), 1024 * (i & 3) + 16384 * (i >> 2))
            pld()
            for kk in range(N, N + 12):
                for ins in gm[kk] + gv[kk]: a(ins)
            a('ds_read_b128 %s, v3', V(VB, 4))
            a('ds_read_b128 %s, v3 offset:1024', V(VB + 4, 4))
            a('v_add_u32 v15, 2048, v8')
            a('s_waitcnt vmcnt(3)')
            a('s_add_u32 s35, s35, %d', DSEG)
            a('s_add_u32 s31, s12, 2')
            fcheck(18, 3, 's31')
            a('s_cselect_b32 s13, 1, 0')
            a('s_add_u32 s6, s35, 16384')
            a('s_cmp_gt_u32 s31, 62')
            a('s_cselect_b32 s38, 0x%x, s35', OOB)
            a('s_cselect_b32 s6, 0x%x, s6', OOB)
            a('s_cselect_b32 s13, 0, s13')
            a('s_mov_b32 s14, 0')
            stamp(4)
            if dev:
                l = a.new('z0')
                a('s_cmp_eq_u32 s12, 0')
                a('s_cbranch_scc0 %s', l)
                a('s_memrealtime s[94:95]')
                a.label(l)
            a('s_waitcnt lgkmcnt(0)')
            lr, lq = a.new('pr'), a.new('pq')
            def pchk():
                a('v_or3_b32 v3, v%d, v%d, v%d', PF, PF + 1, PF + 2)
                a('v_or3_b32 v19, v%d, v%d, v%d', PF + 3, PF + 4, PF + 5)
                a('v_or3_b32 v3, v%d, v%d, v3', PF + 6, PF + 7)
                a('v_or3_b32 v19, v%d, v%d, v19', PF + 8, PF + 9)
                a('v_or3_b32 v3, v%d, v%d, v3', PF + 10, PF + 11)
                a('v_or_b32 v3, v19, v3')
                a('v_cmp_gt_i32 vcc, 0, v3')
            def dn(tl): a('v_mfma_f32_16x16x32_bf16 %s, %s, %s, 0', V(CACC + 4 * tl, 4), V(PF, 4), V(VB + 4 * tl, 4))
            def sp_(tl, k): a('v_smfmac_f32_16x16x64_bf16 %s, %s, %s, v2', V(CACC + 4 * tl, 4), V(PF + 4 + 4 * k, 4), V(DB + 16 * tl + 8 * k, 8))
            for x in dev:
                if x.startswith('pw'): a('s_sleep %d', int(x[2:]))
            a.label(lr)
            pld()
            a('s_add_u32 s14, s14, 1')
            a('s_cmp_lt_u32 s14, %d', SPIN)
            a('s_cbranch_scc0 tdie')
            a('s_cmp_lt_u32 s3, 2')
            a('s_waitcnt vmcnt(3)')
            if 'cold' in dev:
                pchk()
                dn(0)
                a('s_cbranch_vccnz %s', lr)
                sp_(0, 0); sp_(0, 1); dn(1); sp_(1, 0); sp_(1, 1)
                stamp(5)
                n0, n1 = None, 4
            else:
                a('v_or3_b32 v3, v%d, v%d, v%d', PF, PF + 1, PF + 2)
                a('v_or3_b32 v3, v%d, v%d, v3', PF + 3, PF + 4)
                dn(0)
                a('v_or3_b32 v3, v%d, v%d, v3', PF + 5, PF + 6)
                dn(1)
                a('v_or3_b32 v3, v%d, v%d, v3', PF + 7, PF + 8)
                sp_(0, 0)
                a('v_or3_b32 v3, v%d, v%d, v3', PF + 9, PF + 10)
                sp_(1, 0)
                a('v_or_b32 v3, v%d, v3', PF + 11)
                sp_(0, 1)
                a('v_cmp_gt_i32 vcc, 0, v3')
                sp_(1, 1)
                a('s_cbranch_vccnz %s', lr)
                stamp(5)
                n0, n1 = 4, None
            if n0: a('s_nop %d', n0)
            a('v_pk_add_f32 %s, %s, %s', V(CACC, 2), V(CACC, 2), V(CACC + 2, 2))
            if n1: a('s_nop %d', n1 + 2)
            else: a('s_nop 0')
            a('v_pk_add_f32 %s, %s, %s', V(CACC + 4, 2), V(CACC + 4, 2), V(CACC + 6, 2))
            a('ds_write2_b32 v8, v%d, v%d offset0:0 offset1:16', CACC, CACC + 1)
            a('ds_write2_b32 v15, v%d, v%d offset0:0 offset1:16', CACC + 4, CACC + 5)
            lnr, ljr = a.new('nr'), a.new('jr')
            a('s_cbranch_scc0 %s', lnr)
            tails.append(('ns', lnr, ljr))
            a('s_waitcnt lgkmcnt(0)')
            a('s_barrier')
            for w in range(4): a('ds_read_b64 %s, v9 offset:%d', V(RT + 2 * w, 2), 512 * w)
            a('s_waitcnt lgkmcnt(2)')
            a('v_pk_add_f32 %s, %s, %s', V(RT, 2), V(RT, 2), V(RT + 2, 2))
            a('s_waitcnt lgkmcnt(0)')
            a('v_pk_add_f32 %s, %s, %s', V(RT + 4, 2), V(RT + 4, 2), V(RT + 6, 2))
            a('v_pk_add_f32 %s, %s, %s', V(RT, 2), V(RT, 2), V(RT + 4, 2))
            a('v_cvt_pk_bf16_f32 v%d, v%d, v%d', RT, RT, RT + 1)
            a('v_min_u32 v%d, -2, v%d', RT, RT)
            a('buffer_store_dword v%d, v11, s[8:11], s42 offen%s', RT, SC)
            stamp(6)
            a('s_barrier')
            a('s_mov_b32 s40, 0x%x', MEME + 63 * UNIT)
            a.label(ljr)
            for x in dev:
                if x.startswith('dc'): a('s_sleep %d', int(x[2:]))
        if dev and role == 's':
            l = a.new('ts')
            a('s_lshl_b32 s30, s4, 2')
            a('s_add_u32 s30, s30, s3')
            a('s_cmp_eq_u32 s30, 63')
            a('s_cbranch_scc0 %s', l)
            a('s_memtime s[80:81]')
            a('s_memrealtime s[82:83]')
            a('s_lshl_b32 s30, s12, 2')
            a('s_add_u32 s30, s30, 0x3F30000')
            a('s_waitcnt lgkmcnt(0)')
            a('v_mov_b32 v99, s80')
            a('v_mov_b32 v98, s82')
            a('buffer_store_dword v99, off, s[8:11], s30')
            a('buffer_store_dword v98, off, s[8:11], s30 offset:256')
            a.label(l)
        if dev:
            ld = a.new('dv')
            a('s_cmp_eq_u32 s12, 40')
            a('s_cbranch_scc0 %s', ld)
            a('s_memtime s[80:81]')
            a('s_memrealtime s[82:83]')
            a('s_waitcnt lgkmcnt(0)')
            a('s_sub_u32 s78, s80, s78')
            a('s_sub_u32 s88, s82, s88')
            a('s_lshl_b32 s30, s5, 4')
            a('s_add_u32 s30, s30, s4')
            a('s_lshl_b32 s30, s30, 2')
            a('s_add_u32 s30, s30, s3')
            a('s_lshl_b32 s30, s30, 6')
            a('s_add_u32 s30, s30, 0x3F00000')
            for kk in range(13):
                a('v_mov_b32 v99, s%d', 64 + 2 * kk)
                a('buffer_store_dword v99, off, s[8:11], s30 offset:%d', 4 * kk)
                a('s_nop 1')
            a.label(ld)
        a('s_add_u32 s12, s12, 1')
        a('s_cmp_lt_u32 s12, 63')
        a('s_cbranch_scc1 %sloop%s', role, mode)
        if role == 'c':
            a('buffer_store_dword v%d, v11, s[8:11], s40 offen sc1', RT)
            if mode == 'F' and WB:
                l = a.new('wb')
                a('s_or_b32 s30, s3, s4')
                a('s_cbranch_scc1 %s', l)
                a('s_waitcnt vmcnt(0)')
                a('buffer_wbl2 sc1')
                a('s_waitcnt vmcnt(0)')
                a.label(l)
        if dev:
            a('s_memrealtime s[82:83]')
            a('s_waitcnt lgkmcnt(0)')
            a('s_lshl_b32 s30, s2, 4')
            a('s_add_u32 s30, s30, 0x3F10000')
            for kk, r in enumerate((90, 84, 82, 94)):
                a('v_mov_b32 v99, s%d', r)
                a('buffer_store_dword v99, off, s[8:11], s30 offset:%d', 4 * kk)
                a('s_nop 1')
            amp = [x for x in dev if x.startswith('amp')]
            if amp and role == amp[0][3]:
                k = amp[0][4]
                if k == '1': a('s_sub_u32 s31, s84, s92'); a('s_mul_i32 s31, s31, 10')
                if k == '2': a('s_sub_u32 s31, s82, s84'); a('s_mul_i32 s31, s31, 2')
                if k == '3': a('s_sub_u32 s31, s90, s92'); a('s_mul_i32 s31, s31, 10')
                if k == '4': a('s_sub_u32 s31, s96, s92'); a('s_mul_i32 s31, s31, 10')
                if k == '5': a('s_sub_u32 s31, s98, s92'); a('s_mul_i32 s31, s31, 10')
                if k == '0': a('s_mov_b32 s31, 2000')
                l = a.new('am')
                a.label(l)
                a('s_sleep 4')
                a('s_memrealtime s[80:81]')
                a('s_waitcnt lgkmcnt(0)')
                a('s_sub_u32 s30, s80, s82')
                a('s_cmp_lt_u32 s30, s31')
                a('s_cbranch_scc1 %s', l)
            if 'dbgt' in dev:
                l = a.new('dt')
                a('s_cmp_eq_u32 s4, 5')
                a('s_cbranch_scc0 %s', l)
                a('s_lshl_b32 s30, s5, 4')
                for kk, r in enumerate((90, 84, 82, 78)):
                    if r != 78: a('s_sub_u32 s31, s%d, s92', r)
                    else: a('s_mov_b32 s31, s78')
                    a('v_mov_b32 v99, s31')
                    a('buffer_store_dword v99, off, s[44:47], s30 offset:%d', 4 * kk)
                    a('s_nop 1')
                a.label(l)
        a('s_endpgm')
        for p in tails:
            a.label(p[1])
            if p[0] == 'dw':
                a('s_add_u32 s31, s12, 1')
                dwait('s31')
                a('s_branch %s', p[2])
            elif p[0] == 'd0':
                lp = a.new('dz')
                a('s_waitcnt vmcnt(0)')
                a('v_and_b32 v18, 1, v0')
                a('v_lshlrev_b32 v18, 2, v18')
                a('v_bfe_u32 v%d, v0, 1, 1', DB)
                a('v_lshl_add_u32 v%d, v%d, 7, v18', DB, DB)
                a('s_lshl_b32 s31, s4, 3')
                a('s_add_u32 s31, s31, 0x%x', DPROG)
                a('s_mov_b32 s14, 0')
                a.label(lp)
                a('buffer_load_dword v18, v%d, s[8:11], s31 offen sc1', DB)
                a('s_add_u32 s14, s14, 1')
                a('s_cmp_lt_u32 s14, %d', SPIN)
                a('s_cbranch_scc0 tdie')
                a('s_waitcnt vmcnt(0)')
                a('v_cmp_eq_u32 vcc, 0, v18')
                a('s_cbranch_vccnz %s', lp)
                for seg in range(2):
                    for tl in range(2):
                        if seg == 0: a('s_xor_b32 s31, s37, 0x18000')
                        else: a('s_mov_b32 s31, s37')
                        a('s_add_u32 m0, s31, %d', 16384 * tl)
                        a('s_add_u32 s31, s35, %d', 16384 * tl - (DSEG if seg == 0 else 0))
                        for i in range(4): a('buffer_load_dwordx4 v1, s[8:11], s31 offen offset:%d sc1 lds', 1024 * i)
                a('buffer_load_dword v18, off, s[8:11], s49 sc1')
                a('s_waitcnt vmcnt(9)')
                a('s_mov_b32 s7, 0')
                a('s_branch %s', p[2])
            elif p[0] == 'nv':
                for r in range(4): a('v_mov_b32 v%d, -1', 92 + r)
                a('s_waitcnt lgkmcnt(0)')
                a('s_barrier')
                a('buffer_store_dwordx4 v[92:95], v1, s[8:11], s24 offen' + SC)
                if 'xe' in dev: xdma()
                a('s_waitcnt vmcnt(%d)', 2 + (7 if 'xe' in dev else 0))
                a('s_barrier')
                if 'xe' not in dev and 'nox' not in dev: xdma()
                for r in range(ZN): a('v_mov_b32 v%d, 0', TACC + r)
                a('s_branch %s', p[2])
            elif p[0] == 'ns':
                a('s_waitcnt lgkmcnt(0)')
                a('s_barrier')
                a('s_barrier')
                a('s_branch %s', p[2])
    for mode in 'FS':
        for role in 'sc': loop(role, mode)
```

```python
from common import *
import fold

L_MEM = 0
L_T = 7680
L_S = L_T + 8192
L_X = L_S + 12288
ZXS = 28672 + 512
L_C = 7680
L_V = L_C + 4096
L_D = 32768
L_W = 98304
TEAM_LDS = L_W + 57344
SPIN = 200000
OOB = 0x8000000
NTEAM = 32
WB = False

ORD_S = ([(0, 0), (1, 0), (0, 1), (1, 1), (2, 0), (3, 0), (2, 1), (3, 1), (4, 0), (5, 0), (6, 0), (4, 1), (5, 1), (6, 1)]
         + [(t, 2) for t in range(7)] + [(t, l) for t in range(7) for l in range(3, 7)])
ORD_C = [(t, l) for l in range(4) for t in range(8)] + [(t, l) for t in range(8) for l in range(4, 7)]
CSPILL = [80, 88, 96, 104, 112, 52, 60]
def Wreg(i, n=8, off=0):
    if i >= 49: return V(CSPILL[i - 49] + off, n)
    return A(8 * i + off, n) if i < 32 else V(120 + 8 * (i - 32) + off, n)

def gen_team(a, dev=False):
    dev = set(dev.split('+')) if dev else set()
    RELAY = 'relay' in dev
    opt = set(dev)
    HZQ = 8
    for x in dev:
        if x.startswith('hq'): HZQ = int(x[2:])
    EX = 'ex' in dev
    inst = bool(dev) and not EX
    if 'xnew' in dev: opt |= {'xe', 'xl'}
    def stamp(k):
        if 'st%d' % k in dev or 'stall' in dev: a('s_memtime s[%d:%d]', 64 + 2 * k, 65 + 2 * k)
    def bits(dst, spec, first=True):
        for pos, w, sh in spec:
            a('v_bfe_u32 v3, v0, %d, %d', pos, w)
            if first: a('v_lshlrev_b32 v%d, %d, v3', dst, sh); first = False
            else: a('v_lshl_add_u32 v%d, v3, %d, v%d', dst, sh, dst)
    def spin(lp):
        a('s_add_u32 s14, s14, 1')
        a('s_cmp_lt_u32 s14, %d', SPIN)
        a('s_cbranch_scc1 %s', lp)
        a('s_endpgm')
    def xdma():
        a('s_mov_b32 m0, s36')
        a('s_add_u32 s30, s34, 4096')
        for i in range(4): a('buffer_load_dwordx4 v1, s[8:11], s34 offen offset:%d sc1 lds', 1024 * i)
        a('s_add_u32 m0, s36, 4096')
        a('s_add_u32 s34, s34, %d', XSEG)
        for i in range(3): a('buffer_load_dwordx4 v1, s[8:11], s30 offen offset:%d sc1 lds', 1024 * i)
    def ddma(src0, src1):
        r = [['buffer_load_dwordx4 v1, s[8:11], %s offen offset:%d sc1 lds' % (src0, 1024 * i)] for i in range(4)]
        r[3].append('s_add_u32 m0, s37, 16384')
        r += [['buffer_load_dwordx4 v1, s[8:11], %s offen offset:%d sc1 lds' % (src1, 1024 * i)] for i in range(4)]
        return r
    def fcheck(src, tmp, seg):
        a('v_readfirstlane_b32 s29, v%d', src)
        a('s_cmp_le_u32 s29, %s', seg)
    def dwait(seg):
        lp, ok = a.new('dw'), a.new('dk')
        a('s_mov_b32 s14, 0')
        a.label(lp)
        a('buffer_load_dword v18, off, s[8:11], s49 sc1')
        a('s_waitcnt vmcnt(0)')
        fcheck(18, 3, seg)
        a('s_cbranch_scc0 %s', ok)
        a('s_sleep 1')
        spin(lp)
        a.label(ok)
    def xcc_gather():
        lp, l2 = a.new('xc'), a.new('xo')
        a('v_min_u32 v20, %d, v0', NTEAM - 1)
        a('v_lshlrev_b32 v20, 2, v20')
        a('s_mov_b32 s14, 0')
        a.label(lp)
        a('buffer_load_dword v3, v20, s[44:47], 0 offen sc1')
        a('s_waitcnt vmcnt(0)')
        a('v_cmp_eq_u32 vcc, 0, v3')
        a('s_cbranch_vccz %s', l2)
        a('s_sleep 4')
        spin(lp)
        a.label(l2)
    def frag_offsets():
        a('s_lshl_b32 s33, s3, 1')
        for lam in range(7):
            a('s_lshl_b32 s%d, s33, 10', 15 + lam)
            if lam < 6:
                a('s_add_u32 s33, s33, 1')
                a('s_cmp_ge_u32 s33, 7')
                a('s_cselect_b32 s32, 7, 0')
                a('s_sub_u32 s33, s33, s32')
    def wload(order, tile_off, early_odd, between, hz=False):
        if dev: a('s_memrealtime s[96:97]')
        for ps in range(2):
            for lam in range(7):
                l = a.new('wl')
                a('s_bitcmp1_b32 s%d, 10', 15 + lam)
                a('s_cbranch_scc%d %s', 0 if (early_odd ^ ps) else 1, l)
                a('s_waitcnt vmcnt(%d)', 40 if not (hz and ps) else HZQ)
                if hz and ps: a('buffer_load_dword v24, off, s[8:11], s49 sc1')
                a('s_lshl_b32 s33, s%d, 1', 15 + lam)
                a('s_add_u32 s33, s33, s30')
                for i, (t, lm) in enumerate(order):
                    if lm != lam: continue
                    a('s_add_u32 s32, s33, %d', tile_off(t))
                    if i >= 49:
                        a('s_add_u32 m0, s29, %d', 2048 * (i - 49))
                        a('s_nop 0')
                        a('buffer_load_dwordx4 v1, s[8:11], s32 offen sc1 lds')
                        a('buffer_load_dwordx4 v1, s[8:11], s32 offen offset:1024 sc1 lds')
                    else:
                        a('buffer_load_dwordx4 %s, v1, s[8:11], s32 offen sc1', Wreg(i, 4, 0))
                        a('buffer_load_dwordx4 %s, v1, s[8:11], s32 offen offset:1024 sc1', Wreg(i, 4, 4))
                a.label(l)
            if ps == 0: between()

    a.label('team')
    if dev: a('s_memrealtime s[90:91]')
    a('s_and_b32 s4, s30, 15')
    a('s_lshr_b32 s5, s30, 4')
    a('v_lshlrev_b32 v1, 4, v0')
    frag_offsets()
    a('s_cmp_ge_u32 s30, 30')
    a('s_cbranch_scc1 export')
    for r in range(4, 16): a('v_mov_b32 v%d, 0', r)
    a('v_and_b32 v3, 2, v0')
    a('v_cmp_eq_u32 s[58:59], 0, v3')
    a('v_mov_b32 v2, 0xeeee')
    a('v_mov_b32 v18, 0x4444')
    a('v_cndmask_b32 v2, v2, v18, s[58:59]')
    a('v_add_u32 v16, s15, v1')
    a('v_add_u32 v17, s16, v1')
    a('s_mov_b32 s49, 0x%x', HZ)
    a('v_cmp_gt_u32 s[62:63], 56, v0')
    xcc_gather()
    a('v_readfirstlane_b32 s31, v3')
    a('s_nop 1')
    a('v_cmp_ne_u32 vcc, s31, v3')
    a('s_nop 1')
    a('s_cmp_lg_u64 vcc, 0')
    a('s_cselect_b32 s51, 1, 0')
    lv, lj = a.new('iv'), a.new('ij')
    a('s_cmp_eq_u32 s5, 1')
    a('s_cbranch_scc1 %s', lv)
    if RELAY:
        a('s_lshl_b32 s34, 1, s4')
        fold.wait_stat(a, 0, 's34', 24)
    else: fold.wait_part(a, FLG_A, 's4', 1, True)
    a('s_mul_i32 s30, s4, 28')
    a('s_mul_i32 s32, s3, 7')
    a('s_add_u32 s30, s30, s32')
    a('s_mul_i32 s30, s30, 14336')
    wload(ORD_S, lambda t: t * 14336, 1, (lambda: fold.wait_stat(a, 1, 's34', 24)) if RELAY else (lambda: fold.wait_head_and_misc(a, FLG_A, 's4', 14, 24)))
    a('v_and_b32 v3, 8, v0')
    a('v_cmp_eq_u32 vcc, 0, v3')
    a('s_nop 1')
    a('v_cndmask_b32 v14, 0, 1.0, vcc')
    bits(4, [(2, 2, 6), (0, 1, 5), (4, 2, 3), (1, 1, 2)])
    bits(5, [(4, 2, 8), (0, 4, 3)])
    a('s_lshl_b32 s30, s3, 11')
    a('s_add_u32 s30, s30, %d', L_T)
    a('v_add_u32 v4, s30, v4')
    a('v_add_u32 v5, s30, v5')
    a('s_mul_i32 s30, s3, 3584')
    a('s_add_u32 s30, s30, %d', L_X)
    a('v_add_u32 v6, s30, v1')
    bits(8, [(5, 1, 8), (1, 2, 6), (0, 1, 4), (4, 1, 3)])
    a('s_mul_i32 s30, s3, 1792')
    a('v_add_u32 v8, s30, v8')
    a('v_add_u32 v9, 1024, v8')
    bits(10, [(4, 2, 9), (1, 1, 6), (2, 2, 4), (0, 1, 2)])
    bits(15, [(4, 2, 9), (3, 1, 7), (0, 1, 6), (1, 2, 4)])
    a('s_lshl_b32 s31, s3, 11')
    a('s_add_u32 s31, s31, %d', L_S)
    a('v_add_u32 v10, s31, v10')
    a('v_add_u32 v15, s31, v15')
    a('s_lshl_b32 s31, s3, 10')
    a('s_add_u32 s31, s31, %d', L_S)
    a('v_add_u32 v11, s31, v1')
    a('s_lshl_b32 s30, s4, 9')
    a('s_lshl_b32 s31, s3, 8')
    a('s_add_u32 s30, s30, s31')
    a('v_lshl_add_u32 v12, v0, 2, s30')
    bits(13, [(4, 2, 4), (0, 2, 2)])
    a('s_lshl_b32 s30, s4, 7')
    a('s_lshl_b32 s31, s3, 6')
    a('s_add_u32 s30, s30, s31')
    a('s_add_u32 s30, s30, 8192')
    a('v_add_u32 v13, s30, v13')
    a('v_and_b32 v3, 12, v0')
    a('v_cmp_eq_u32 vcc, 0, v3')
    a('v_mov_b32 v18, 0x%x', OOB)
    a('s_nop 0')
    a('v_cndmask_b32 v13, v18, v13, vcc')
    a('v_mov_b32 v3, 0')
    a('v_lshlrev_b32 v18, 2, v0')
    a('ds_write_b32 v18, v3 offset:%d', L_MEM + 7168)
    for w in range(4): a('ds_write_b32 v18, v3 offset:%d', L_T + w * 2048 + 1792)
    a('v_add_u32 v18, %d, v18', L_X + 28672)
    for o in (0, 256, ZXS, ZXS + 256): a('ds_write_b32 v18, v3 offset:%d', o)
    a('s_mov_b32 s50, 0')
    a('s_mul_i32 s30, s3, 7168')
    a('s_add_u32 s34, s30, 0x%x', XF)
    a('s_add_u32 s36, s30, %d', L_X)
    xdma()
    a('s_lshl_b32 s31, s4, 10')
    a('s_add_u32 s27, s31, 0x%x', PR)
    a('s_cmp_lt_u32 s4, 10')
    a('s_cselect_b32 s27, s27, 0x%x', OOB)
    a('s_cmp_eq_u32 s3, 2')
    a('s_cselect_b32 s27, s27, 0x%x', OOB)
    a('s_lshl_b32 s31, s4, 2')
    a('s_add_u32 s31, s31, s3')
    if 'thalf' in dev:
        a('s_mul_i32 s35, s31, 3584')
        a('v_lshl_add_u32 v7, v0, 7, s35')
        a('v_lshrrev_b32 v3, 14, v7')
        a('v_lshl_add_u32 v7, v3, 14, v7')
        a('v_add_u32 v7, 0x%x, v7', DD + 2 * DSEG + 16384)
        a('v_cmp_gt_u32 s[62:63], 28, v0')
    elif 't34' in dev:
        a('s_mul_i32 s35, s31, 42')
        a('v_add_u32 v7, s35, v0')
        a('s_movk_i32 s35, 2731')
        a('v_mul_u32_u24 v3, s35, v7')
        a('v_lshrrev_b32 v3, 16, v3')
        a('v_lshl_add_u32 v7, v3, 3, v7')
        a('v_lshlrev_b32 v7, 7, v7')
        a('v_add_u32 v7, 0x%x, v7', DD + 2 * DSEG + 1024)
        a('v_cmp_gt_u32 s[62:63], 42, v0')
    else:
        a('s_mul_i32 s35, s31, 7168')
        a('s_add_u32 s35, s35, 0x%x', DD + 2 * DSEG)
        a('v_lshl_add_u32 v7, v0, 7, s35')
    a('s_lshl_b32 s31, s31, 9')
    a('s_add_u32 s31, s31, 0x%x', XF + 2 * XSEG)
    a('v_and_b32 v3, 3, v0')
    a('v_lshl_add_u32 v3, v3, 7, s31')
    if 'tx' in dev: a('v_cmp_gt_u32 s[62:63], 0, v0'); a('s_nop 1')
    a('v_cndmask_b32 v7, v3, v7, s[62:63]')
    a('s_mov_b32 s38, 0x%x', OOB)
    if 'not0' not in dev:
        a('buffer_load_dword v18, off, s[8:11], s49 sc1')
        a('s_waitcnt vmcnt(0)')
        fcheck(18, 3, '2')
        a('s_cselect_b32 s38, 0x%x, 0', OOB)
    a('s_branch %s', lj)
    a.label(lv)
    a('s_lshl_b32 s34, s3, 2')
    if RELAY:
        a('s_lshl_b32 s34, 0xf0000, s34')
        fold.wait_stat(a, 0, 's34', 24)
    else: fold.wait_part(a, FLG_C, 's34', 4, False)
    a('s_mul_i32 s30, s3, 4*28')
    a('s_lshl_b32 s32, s4, 1')
    a('s_add_u32 s30, s30, s32')
    a('s_mul_i32 s30, s30, 14336')
    a('s_add_u32 s30, s30, 0x%x', WF_C)
    a('s_mul_i32 s29, s3, 14336')
    a('s_add_u32 s29, s29, %d', L_W)
    wload(ORD_C, lambda t: ((t & 3) * 28 + (t >> 2)) * 14336, 0, (lambda: fold.wait_stat(a, 1, 's34', 24)) if RELAY else (lambda: fold.wait_head_and_misc(a, FLG_C, 's34', 56, 24)), hz='noeh' not in dev)
    a('v_add_u32 v14, s29, v1')
    for r, i in zip((4, 5, 7, 12, 13), range(5)): a('v_add_u32 v%d, s%d, v1', r, 17 + i)
    bits(6, [(4, 2, 7), (2, 2, 5), (0, 1, 4)])
    a('s_mul_i32 s30, s3, 1536')
    a('s_sub_u32 s30, 8192, s30')
    a('v_add_u32 v6, s30, v6')
    a('v_mov_b32 v18, 0x%x', OOB)
    a('v_cndmask_b32 v6, v18, v6, s[58:59]')
    bits(8, [(4, 2, 7), (0, 4, 2)])
    a('s_lshl_b32 s30, s3, 9')
    a('s_add_u32 s30, s30, %d', L_C)
    a('v_add_u32 v8, s30, v8')
    bits(10, [(5, 1, 9), (2, 2, 7), (0, 1, 6), (4, 1, 5), (1, 1, 4)])
    a('s_lshl_b32 s48, s3, 11')
    a('s_add_u32 s48, s48, %d', L_V)
    bits(9, [(4, 2, 7), (2, 1, 6), (0, 2, 4), (3, 1, 3)])
    a('s_and_b32 s31, s3, 1')
    a('s_lshl_b32 s30, s31, 11')
    a('s_add_u32 s30, s30, %d', L_C)
    a('v_add_u32 v9, s30, v9')
    a('s_lshl_b32 s30, s4, 9')
    a('s_lshl_b32 s31, s31, 8')
    a('s_add_u32 s30, s30, s31')
    a('v_lshl_add_u32 v11, v0, 2, s30')
    a('s_lshl_b32 s30, s3, 12')
    a('s_lshl_b32 s31, s4, 15')
    a('s_add_u32 s35, s30, s31')
    a('s_add_u32 s35, s35, 0x%x', DD)
    a('s_add_u32 s37, s30, %d', L_D)
    a('s_add_u32 s35, s35, %d', DSEG)
    a('s_mov_b32 s38, 0x%x', OOB)
    a('s_mov_b32 s6, 0x%x', OOB)
    a('s_mov_b32 s7, 1')
    if 'nohy' not in dev:
        lsk = a.new('ds')
        if 'noeh' not in dev:
            l2 = a.new('dl')
            a('s_waitcnt vmcnt(16)')
            fcheck(24, 3, '1')
            a('s_cbranch_scc1 %s', l2)
            for seg in range(2):
                for tl in range(2):
                    if seg: a('s_xor_b32 s31, s37, 0x18000')
                    else: a('s_mov_b32 s31, s37')
                    a('s_add_u32 m0, s31, %d', 16384 * tl)
                    a('s_add_u32 s31, s35, %d', 16384 * tl - (DSEG if seg == 0 else 0))
                    for i in range(4): a('buffer_load_dwordx4 v1, s[8:11], s31 offen offset:%d sc1 lds', 1024 * i)
            a('s_mov_b32 s7, 0')
            a('s_mov_b32 s38, s35')
            a('s_add_u32 s6, s35, 16384')
            a('s_branch %s', lsk)
            a.label(l2)
        a('buffer_load_dword v18, off, s[8:11], s49 sc1')
        a('s_waitcnt vmcnt(0)')
        fcheck(18, 3, '1')
        a('s_cbranch_scc1 %s', lsk)
        for tl in range(2):
            a('s_add_u32 m0, s37, %d', 16384 * tl)
            a('s_add_u32 s31, s35, %d', 16384 * tl - DSEG)
            for i in range(4): a('buffer_load_dwordx4 v1, s[8:11], s31 offen offset:%d sc1 lds', 1024 * i)
        a('s_mov_b32 s38, s35')
        a('s_add_u32 s6, s35, 16384')
        a('s_mov_b32 s7, 0')
        a.label(lsk)
    a('s_mov_b32 s40, 0x%x', OOB)
    a('s_mov_b32 s13, 0')
    a.label(lj)
    a('s_mov_b32 s12, 0')
    a('s_add_u32 s32, s15, 0x%x', MEMX)
    a('s_add_u32 s33, s16, 0x%x', MEMX)
    for r in range(20, 48): a('v_mov_b32 v%d, 0', r)
    a('s_waitcnt lgkmcnt(0)')
    if dev: a('s_waitcnt vmcnt(0)')
    if dev:
        lc = a.new('cal')
        a('s_memrealtime s[82:83]')
        a('s_waitcnt lgkmcnt(0)')
        a.label(lc)
        a('s_memrealtime s[84:85]')
        a('s_memtime s[86:87]')
        a('s_waitcnt lgkmcnt(0)')
        a('s_cmp_eq_u32 s84, s82')
        a('s_cbranch_scc1 %s', lc)
    if 'slow' in dev: a('s_branch tslow')
    a('s_cmp_eq_u32 s51, 1')
    a('s_cbranch_scc1 tslow')
    a('s_cmp_eq_u32 s5, 1')
    a('s_cbranch_scc1 cloopF')
    a('s_branch sloopF')
    a.label('tslow')
    a('s_cmp_eq_u32 s5, 1')
    a('s_cbranch_scc1 cloopS')
    a('s_branch sloopS')
    a.label('tdie')
    a('s_endpgm')
    a.label('export')
    a('s_cmp_eq_u32 s30, 31')
    a('s_cbranch_scc1 relay')
    if RELAY:
        a('s_mov_b32 s34, 1')
        fold.wait_stat(a, 1, 's34', 24)
    else: fold.wait_all(a, FLG_M, 256)
    a('s_mov_b32 s12, 1')
    a('v_mov_b32 v10, 1')
    a('s_mov_b32 s35, 0x%x', OOB)
    a('v_min_u32 v7, 55, v0')
    a('v_lshlrev_b32 v7, 7, v7')
    a('s_mul_i32 s31, s3, %d', UNIT)
    a('s_add_u32 s31, s31, 0x%x', MEMX)
    a('buffer_load_dword v9, v7, s[8:11], s31 offen sc1')
    a('s_lshl_b32 s31, s3, 13')
    a('s_add_u32 s31, s31, 0x%x', PR)
    a('v_lshlrev_b32 v8, 7, v0')
    a('buffer_load_dword v9, v8, s[8:11], s31 offen sc1')
    a('s_add_u32 s31, s31, 8192')
    a('buffer_load_dword v9, v8, s[8:11], s31 offen sc1')
    if 'xw' in dev:
        a('s_mul_i32 s31, s3, 7168')
        a('s_add_u32 s31, s31, 0x%x', XF)
        for k in range(1, 4):
            a('s_add_u32 s31, s31, %d', XSEG)
            a('buffer_load_dword v9, v7, s[8:11], s31 offen sc1')
    a.label('exloop')
    a('s_mul_i32 s30, s12, %d', UNIT)
    a('s_add_u32 s34, s30, 0x%x', MEMX)
    a('s_add_u32 s32, s34, s15')
    a('s_add_u32 s33, s34, s16')
    a('s_add_u32 s34, s34, %d', 3 * UNIT)
    a('s_cmp_eq_u32 s3, 0')
    a('s_cselect_b32 s34, s34, 0x%x', OOB)
    a('buffer_load_dword v9, v7, s[8:11], s34 offen sc1')
    if 'xw' in dev:
        a('s_lshl_b32 s34, s12, 2')
        a('s_add_u32 s34, s34, s3')
        a('s_mul_i32 s34, s34, 7168')
        a('s_add_u32 s34, s34, 0x%x', XF + 3 * XSEG)
        a('buffer_load_dword v9, v7, s[8:11], s34 offen sc1')
    a('s_mov_b32 s14, 0')
    lp = a.new('ex')
    a.label(lp)
    if 'noes' not in dev: a('s_sleep 6')
    a('buffer_load_dwordx4 v[20:23], v1, s[8:11], s32 offen sc1')
    a('buffer_load_dwordx4 v[24:27], v1, s[8:11], s33 offen sc1')
    a('s_add_u32 s14, s14, 1')
    a('s_cmp_lt_u32 s14, %d', SPIN)
    a('s_cbranch_scc0 tdie')
    a('s_waitcnt vmcnt(0)')
    a('v_max3_u32 v3, v20, v21, v22')
    a('v_max3_u32 v4, v23, v24, v25')
    a('v_max3_u32 v3, v26, v27, v3')
    a('v_max_u32 v3, v4, v3')
    a('v_cmp_eq_u32 vcc, -1, v3')
    a('s_cbranch_vccnz %s', lp)
    if EX:
        a('s_memtime s[80:81]')
        a('s_memrealtime s[82:83]')
        a('s_lshl_b32 s30, s12, 2')
        a('s_add_u32 s30, s30, 0x3F30000')
        a('s_waitcnt lgkmcnt(0)')
        a('v_mov_b32 v30, s80')
        a('v_mov_b32 v31, s82')
        a('buffer_store_dword v30, off, s[8:11], s30')
        a('buffer_store_dword v31, off, s[8:11], s30 offset:256')
    a('s_sub_u32 s32, s32, %d', MEMX - MEME)
    a('s_sub_u32 s33, s33, %d', MEMX - MEME)
    a('s_barrier')
    a('buffer_store_dwordx4 v[20:23], v1, s[8:11], s32 offen sc1')
    a('buffer_store_dwordx4 v[24:27], v1, s[8:11], s33 offen sc1')
    a('s_lshl_b32 s31, s3, 8')
    a('s_add_u32 s31, s31, s12')
    a('s_cmp_eq_u32 s31, 1')
    a('s_cselect_b32 s31, 0x%x, s35', GO)
    a('buffer_store_dword v10, off, s[8:11], s31 sc1')
    a('s_add_u32 s12, s12, 1')
    a('s_cmp_lt_u32 s12, 63')
    a('s_cbranch_scc1 exloop')
    a('s_endpgm')
    a.label('relay')
    a('s_cmp_eq_u32 s3, 0')
    a('s_cbranch_scc0 tdie')
    xcc_gather()
    a('v_readfirstlane_b32 s31, v3')
    a('s_mov_b32 s12, 0')
    a('s_mov_b32 s14, 0')
    a('s_mov_b32 s49, 0x%x', DPROG)
    a('v_cmp_ne_u32 s[62:63], s31, v3')
    a('v_and_b32 v3, 31, v0')
    a('v_cmp_gt_u32 s[60:61], 28, v3')
    a('v_lshlrev_b32 v4, 2, v0')
    a('v_lshrrev_b32 v5, 5, v0')
    a('s_mov_b32 s48, 0x%x', HZ)
    if 'slow' in dev: a('s_mov_b64 s[62:63], -1')
    if RELAY:
        a('v_and_b32 v8, 15, v0')
        a('v_mul_u32_u24 v8, 56, v8')
        a('v_bfe_u32 v9, v0, 4, 1')
        a('v_lshl_add_u32 v8, v9, 10, v8')
        a('v_cmp_eq_u32 s[58:59], 0, v9')
        a('s_mov_b32 s32, 0x%x', FLG_A)
        a('s_mov_b32 s33, 0x%x', FLG_M)
        a('s_mov_b32 s34, 0x%x', STAT)
        a.label('stloop')
        for k in range(7): a('buffer_load_dwordx2 %s, v8, s[8:11], s32 offen offset:%d sc1', V(20 + 2 * k, 2), 8 * k)
        a('buffer_load_dwordx4 v[36:39], v1, s[8:11], s33 offen sc1')
        a('s_add_u32 s14, s14, 1')
        a('s_cmp_lt_u32 s14, %d', SPIN)
        a('s_cbranch_scc0 tdie')
        a('s_waitcnt vmcnt(0)')
        a('v_min3_u32 v40, v20, v21, v24')
        a('v_min3_u32 v40, v25, v28, v40')
        a('v_min3_u32 v40, v29, v32, v40')
        a('v_min_u32 v40, v33, v40')
        a('v_min3_u32 v41, v22, v23, v26')
        a('v_min3_u32 v41, v27, v30, v41')
        a('v_min_u32 v41, v31, v41')
        a('v_cndmask_b32 v42, v40, v41, s[58:59]')
        a('v_min_u32 v40, v40, v41')
        a('v_min3_u32 v36, v36, v37, v38')
        a('v_min_u32 v36, v36, v39')
        a('v_cmp_ne_u32 s[36:37], 0, v42')
        a('v_cmp_ne_u32 s[38:39], 0, v40')
        a('v_cmp_eq_u32 vcc, 0, v36')
        a('s_nop 1')
        a('s_cmp_eq_u64 vcc, 0')
        a('s_cselect_b32 s38, s38, 0')
        a('v_mov_b32 v44, s36')
        a('v_mov_b32 v45, s38')
        a('s_cmp_eq_u64 s[62:63], 0')
        a('s_cbranch_scc0 stslow')
        a('buffer_store_dwordx2 v[44:45], off, s[8:11], s34')
        a('s_branch stnext')
        a.label('stslow')
        a('buffer_store_dwordx2 v[44:45], off, s[8:11], s34 sc1')
        a.label('stnext')
        a('s_cmp_eq_u32 s38, -1')
        a('s_cbranch_scc0 stloop')
        a('s_mov_b32 s14, 0')
    a.label('reloop')
    a('s_sleep 2')
    a('buffer_load_dword v6, v4, s[8:11], s49 offen sc1')
    a('s_add_u32 s14, s14, 1')
    a('s_cmp_lt_u32 s14, %d', SPIN)
    a('s_cbranch_scc0 tdie')
    a('s_mov_b32 s13, s12')
    a('s_waitcnt vmcnt(0)')
    a('v_lshl_add_u32 v6, v6, 1, v5')
    a.label('reinc')
    a('v_cmp_ge_u32 vcc, s12, v6')
    a('s_nop 1')
    a('s_and_b64 vcc, vcc, s[60:61]')
    a('s_cbranch_scc1 repub')
    a('s_add_u32 s12, s12, 1')
    a('s_cmp_lt_u32 s12, 64')
    a('s_cbranch_scc1 reinc')
    a.label('repub')
    a('s_cmp_eq_u32 s12, s13')
    a('s_cbranch_scc1 reloop')
    a('v_mov_b32 v7, s12')
    a('s_cmp_eq_u64 s[62:63], 0')
    a('s_cbranch_scc0 reslow')
    a('buffer_store_dword v7, off, s[8:11], s48')
    a('s_branch renext')
    a.label('reslow')
    a('buffer_store_dword v7, off, s[8:11], s48 sc1')
    a.label('renext')
    a('s_cmp_lt_u32 s12, 63')
    a('s_cbranch_scc1 reloop')
    a('s_endpgm')

    def loop(role, mode):
        SC = ' sc1' if mode == 'S' else ''
        ORDER = ORD_S if role == 's' else ORD_C
        TACC = 20
        MF = 48 if role == 's' else 52
        SB, TA, SACC = 76, 100, 108
        VB, PF, CACC, DB, RT = 52, 60, 72, 80, 112
        TMP = TA if role == 's' else 19
        tails = []
        a.l.append('.p2align 6')
        a.label(role + 'loop' + mode)
        if inst:
            l = a.new('p4')
            a('s_cmp_eq_u32 s12, 4')
            a('s_cbranch_scc0 %s', l)
            a('s_memrealtime s[98:99]')
            a.label(l)
            l = a.new('pp')
            a('s_cmp_eq_u32 s12, 8')
            a('s_cbranch_scc0 %s', l)
            a('s_memtime s[78:79]')
            a('s_memrealtime s[88:89]')
            a.label(l)
        if 'stall' in dev and role == 'c':
            a('s_waitcnt lgkmcnt(0)')
            a('s_mov_b32 s70, s76')
        def mpoll():
            a('buffer_load_dwordx4 %s, v1, s[8:11], s32 offen sc1', V(MF, 4))
            a('buffer_load_dwordx4 %s, v1, s[8:11], s33 offen sc1', V(MF + 4, 4))
        NE = 0
        if role == 'c':
            for x in dev:
                if x.startswith('ne'): NE = int(x[2:])
            dd = ddma('s38', 's6') if 'nod' not in dev else []
            a('s_xor_b32 s37, s37, 0x18000')
            a('s_cmp_lg_u32 s13, 0')
            lslow, lback = a.new('dq'), a.new('db')
            a('s_cbranch_scc1 %s', lslow)
            a.label(lback)
            tails.append(('dw', lslow, lback))
            a('s_mov_b32 m0, s37')
            a('s_nop 0')
            for grp in dd[:NE]:
                for ins in grp: a(ins)
                if len(grp) > 1: a('s_nop 0')
        CL = 'cearly' not in dev
        if role == 'c' and not CL: mpoll()
        ZA, ZN = (10, 21) if 'noz' not in dev else (0, 0)
        for x in dev:
            if x.startswith('za'): ZA = int(x[2:]); ZN = ZA + 11
        for r in range(ZN if role == 's' else 0, MF - TACC): a('v_mov_b32 v%d, 0', TACC + r)
        if role == 'c' and not CL: mpoll()
        sc = ['s_and_b32 s30, s12, 3', 's_mul_i32 s22, s30, %d' % PSLOT, 's_add_u32 s22, s22, 0x%x' % PR,
              's_add_u32 s32, s32, %d' % UNIT, 's_add_u32 s33, s33, %d' % UNIT]
        if role == 's':
            for r in range(12): a('v_mov_b32 v%d, 0', SACC + r)
            for i in range(5): a('v_add_u32 v%d, s%d, v1', TA + 2 + i, 17 + i)
            radr = [TA + 2 + i for i in range(5)]
            if 'xt' in dev:
                a('s_add_u32 s36, s36, s50')
                a('s_mov_b32 m0, s36')
            sc += ['s_add_u32 s31, s12, 3', 's_and_b32 s31, s31, 3', 's_mul_i32 s24, s31, %d' % PSLOT, 's_add_u32 s24, s24, s27',
                   's_min_u32 s24, s24, 0x%x' % OOB]
        else:
            radr = [4, 5, 7, 12, 13]
            sc += ['s_lshl_b32 s31, s3, 11', 's_add_u32 s43, s22, s31', 's_sub_u32 s42, s32, s15', 's_xor_b32 s30, s37, 0x18000']
        MD = 2
        if role == 's':
            MD = 3
            for x in dev:
                if x.startswith('md'): MD = int(x[2:])
            for r in range(8): a('v_mov_b32 v%d, -1', MF + r)
            if 'xl' in opt:
                l = a.new('xl')
                a('s_cmp_lt_u32 s3, s50')
                a('s_cbranch_scc0 %s', l)
                xdma()
                a.label(l)
                a('s_mov_b32 s50, 2')
            if 'now' not in dev: a('s_waitcnt vmcnt(0)')
        elif CL:
            MD = 1
            for x in dev:
                if x.startswith('cd'): MD = int(x[2:])
            for r in range(8): a('v_mov_b32 v%d, -1', MF + r)
            if 'cnw' not in dev: a('s_waitcnt vmcnt(0)')
        a('s_mov_b32 s14, 0')
        def smf(i):
            t, lam = ORDER[i]
            if 'nomf' + role in dev: a('s_nop 3'); return
            if 'chalf' in dev and role == 'c' and i >= 42: return
            for x in dev:
                if x.startswith('cs') and role == 'c': a('s_nop %d', int(x[2:]))
            a('v_smfmac_f32_16x16x64_bf16 %s, %s, %s, v2', V(TACC + 4 * t, 4), V(MF + 4 * lam, 4), Wreg(i))
        lp, lf = a.new('mp'), a.new('mf')
        if role == 'c' and not CL: a('s_branch %s', lp)
        a.label(lf)
        for x in dev:
            if x.startswith('ms' + role): a('s_sleep %d', int(x[3:]))
        mpoll()
        a('s_add_u32 s14, s14, 1')
        a('s_cmp_lt_u32 s14, %d', SPIN)
        a('s_cbranch_scc0 tdie')
        for x in dev:
            if x.startswith('spec') and role == 's':
                a('s_nop 1')
                for r in range(4 * int(x[4:])): a('v_mov_b32 v%d, 0', TACC + r)
        a.label(lp)
        a('s_waitcnt vmcnt(%d)', 2 * MD - 2)
        if 'lite' in dev: a('v_max_u32 v3, v%d, v%d', MF + 3, MF + 7)
        else:
            a('v_max3_u32 v3, v%d, v%d, v%d', MF, MF + 1, MF + 2)
            a('v_max3_u32 v%d, v%d, v%d, v%d', TMP, MF + 3, MF + 4, MF + 5)
            a('v_max3_u32 v3, v%d, v%d, v3', MF + 6, MF + 7)
            a('v_max_u32 v3, v%d, v3', TMP)
        a('v_cmp_eq_u32 vcc, -1, v3')
        if 'm0' in dev:
            a('ds_write_b128 v16, %s', V(MF, 4))
            a('ds_write_b128 v17, %s', V(MF + 4, 4))
        NSP = 0
        for x in dev:
            if x.startswith('spec') and role == 's': NSP = int(x[4:])
        for k in range(NSP):
            smf(k)
            if k == 0: a('ds_write_b128 v16, %s', V(MF, 4))
        a('s_cbranch_vccnz %s', lf)
        stamp(0)
        N = len(ORDER)
        gm = [[] for _ in range(N + 12)]
        gv = [[] for _ in range(N + 12)]
        pre = [[] for _ in range(N + 12)]
        rd = ['ds_read_b128 %s, v%d' % (V(MF + 8 + 4 * i, 4), radr[i]) for i in range(5)]
        if 'm0' not in dev:
            gm[0].append('ds_write_b128 v16, %s' % V(MF, 4))
            gm[1].append('ds_write_b128 v17, %s' % V(MF + 4, 4))
        GB = 5
        for x in dev:
            if x.startswith('gb') and role == 's': GB = int(x[2:])
        gm[GB] += ['s_waitcnt lgkmcnt(0)', 's_barrier', rd[0]]
        for i in range(1, 5): gm[GB + i].append(rd[i])
        for k in range(0, len(sc), 2): gv[(8 if role == 'c' else 20) + k // 2] += sc[k:k + 2]
        def place(ins, lo):
            k = lo
            while gm[k]: k += 1
            gm[k] += ins if isinstance(ins, list) else [ins]
            return k
        if role == 's':
            B0 = 21
            def epi(t):
                c = TACC + 4 * t
                return (['v_add_f32 v%d, v%d, v%d' % (c, c, c + 2), 'v_add_f32 v%d, v%d, v%d' % (c + 1, c + 1, c + 3),
                         'v_cvt_pk_bf16_f32 v%d, v%d, v%d' % (c, c, c + 1)], ['ds_write_b32 v4, v%d offset:%d' % (c, 256 * t)])
            for t in range(6):
                v, m = epi(t)
                for i, ins in enumerate(v): gv[B0 + 4 * t + 7 + i].append(ins)
                gm[B0 + 4 * t + 10].append(m[0])
            place('ds_read_b64_tr_b16 %s, v5' % V(TA, 2), B0 + 23)
            place('ds_read_b64_tr_b16 %s, v5 offset:128' % V(TA + 2, 2), B0 + 24)
            def brd(step, xb0, xb1, mb):
                r = []
                for kt, b in ((0, xb0), (1, xb1)):
                    for hh in range(2):
                        r.append('ds_read_b128 %s, v6 offset:%d' % (V(b + 4 * hh, 4), kt * 14336 + (2 * step + hh) * 1024))
                ad = 'v8' if step == 0 else 'v9'
                for hh in range(2):
                    for qq in range(2):
                        r.append('ds_read2_b32 %s, %s offset0:%d offset1:%d' % (V(mb + 4 * hh + 2 * qq, 2), ad, 128 * hh + qq, 128 * hh + qq + 8))
                return r
            place('buffer_load_dword v18, off, s[8:11], s49 sc1', GB)
            place('buffer_load_dword v19, v7, s[8:11], s38 offen' if 'notouch' not in dev else 'buffer_load_dword v19, off, s[8:11], s49 sc1', GB)
            if 'xt' in dev:
                xl = [['buffer_load_dwordx4 v1, s[8:11], s34 offen offset:%d sc1 lds' % (1024 * i)] for i in range(4)]
                xl[3] += ['s_add_u32 m0, s36, 4096', 's_add_u32 s28, s34, 4096']
                xl += [['buffer_load_dwordx4 v1, s[8:11], s28 offen offset:%d sc1 lds' % (1024 * i)] for i in range(3)]
                k, xs = GB + 7, 4
                for x in dev:
                    if x.startswith('xs'): xs = int(x[2:])
                for grp in xl: k = place(grp, k) + xs
            BL = 12
            for x in dev:
                if x.startswith('bl'): BL = int(x[2:])
            for ins in brd(0, SB, SB + 8, SB + 16): place(ins, BL)
            b1 = brd(1, TACC, TACC + 8, MF)
            k = 20
            while gm[k]: k += 1
            yv = sum(1 for kk in range(k) for x in gm[kk] if x.startswith('buffer_'))
            k = place(['s_waitcnt vmcnt(%d)' % yv, b1[4]], 20)
            for ins in b1[5:]: place(ins, k)
            for ins in b1[0:2]: place(ins, B0 + 15)
            for ins in b1[2:4]: place(ins, B0 + 23)
            def younger_ds(k0, k1): return sum(1 for kk in range(k0, k1) for x in gm[kk] if x.startswith('ds_'))
            pre[14].append('s_waitcnt lgkmcnt(%d)' % younger_ds(GB + 1, 14))
            pre[B0].append('s_waitcnt lgkmcnt(%d)' % younger_ds(GB + 5, B0))
        else:
            pre[16].append('s_waitcnt lgkmcnt(4)')
            pre[24].append('s_waitcnt lgkmcnt(0)')
            sp = 4
            for x in dev:
                if x.startswith('sp') and x[2:].isdigit(): sp = int(x[2:])
            rest = dd[NE:]
            for i, grp in enumerate(rest): gm[12 + sp * i] += grp
            gm[10].append('buffer_load_dword v18, off, s[8:11], s49 sc1')
            def cepi(t):
                c = TACC + 4 * t
                return (['v_add_f32 v%d, v%d, v%d' % (c, c, c + 2), 'v_add_f32 v%d, v%d, v%d' % (c + 1, c + 1, c + 3),
                         'v_cvt_pk_bf16_f32 v%d, v%d, v%d' % (c, c, c + 1)], 'ds_write_b32 v19, v%d offset:%d' % (c, 256 * t))
            for t in range(8):
                v, m = cepi(t)
                for i_, ins in enumerate(v): gv[32 + 3 * t + 6 + i_].append(ins)
                gm[32 + 3 * t + 9].insert(0, m)
            wr = ['ds_read_b128 %s, v14 offset:%d' % (V(CSPILL[i >> 1] + 4 * (i & 1), 4), 1024 * i) for i in range(14)]
            for ins in wr[:10]: place(ins, 17)
            k = 30
            while gm[k]: k += 1
            younger = sum(1 for kk in range(k) for x in gm[kk] if x.startswith('buffer_'))
            k = place(['s_waitcnt vmcnt(%d)' % younger, wr[10]], 30)
            place(wr[11], k)
            for ins in wr[12:]: kl = place(ins, 33)
            def yds(k0, k1): return sum(1 for kk in range(k0, k1) for x in gm[kk] if x.startswith('ds_'))
            pre[24] = ['s_waitcnt lgkmcnt(%d)' % yds(GB + 5, 24)]
            pre[49].append('s_waitcnt lgkmcnt(%d)' % yds(kl + 1, 49))
            gv[20].append('v_add_u32 v15, s30, v1')
            gv[21].append('v_lshrrev_b32 v3, 4, v0')
            gv[22].append('v_lshl_add_u32 v3, v3, 2, s48')
            gv[23].append('v_and_b32 v19, 15, v0')
            gv[24].append('v_lshl_add_u32 v19, v19, 4, v3')
            gv[25].append('v_add_u32 v3, s48, v1')
        for k in range(N):
            for ins in pre[k]: a(ins)
            if k >= NSP: smf(k)
            if k == 0 and NSP: continue
            for ins in gm[k] + gv[k]: a(ins)
        stamp(1)
        if role == 's':
            for kk in range(N, N + 3):
                for ins in gm[kk] + gv[kk]: a(ins)
            assert not any(gm[N + 3:]) and not any(gv[N + 3:])
            a('s_cmp_lt_u32 s3, 2')
            a('s_nop 1')
            v, m = epi(6)
            a('v_pk_add_f32 %s, %s, %s', V(TACC + 24, 2), V(TACC + 24, 2), V(TACC + 26, 2))
            for ins in v[2:] + m: a(ins)
            a('ds_read_b64_tr_b16 %s, v5 offset:1024', V(TA + 4, 2))
            a('ds_read_b64_tr_b16 %s, v5 offset:1152', V(TA + 6, 2))
            a('s_waitcnt lgkmcnt(7)')
            for kt in range(3):
                a('v_smfmac_f32_16x16x64_bf16 %s, %s, %s, v2', V(SACC + 4 * kt, 4), V(TA, 4), V(SB + 8 * kt, 8))
            a('s_waitcnt lgkmcnt(0)')
            for kt, b in enumerate((TACC, TACC + 8, MF)):
                a('v_smfmac_f32_16x16x64_bf16 %s, %s, %s, v2', V(SACC + 4 * kt, 4), V(TA + 4, 4), V(b, 8))
            a('s_nop %d', 5 if 'tight' not in dev else 1)
            def sadd(kt):
                c = SACC + 4 * kt
                if 'nopk' not in dev: a('v_pk_add_f32 %s, %s, %s', V(c, 2), V(c, 2), V(c + 2, 2))
                else:
                    a('v_add_f32 v%d, v%d, v%d', c, c, c + 2)
                    a('v_add_f32 v%d, v%d, v%d', c + 1, c + 1, c + 3)
            def swr(kt):
                c = SACC + 4 * kt
                if kt < 2: a('ds_write2_b32 v10, v%d, v%d offset0:%d offset1:%d', c, c + 1, 32 * kt, 32 * kt + 64)
                else: a('ds_write2_b32 v15, v%d, v%d offset0:2 offset1:66', c, c + 1)
            if 'so0' not in dev: sadd(0); sadd(1); swr(0); sadd(2); swr(1); swr(2)
            else:
                for kt in range(3): sadd(kt); swr(kt)
            lns, ljn = a.new('ns'), a.new('jn')
            a('s_cbranch_scc0 %s', lns)
            tails.append(('nv', lns, ljn))
            for r in range(ZA): a('v_mov_b32 v%d, 0', TACC + r)
            a('s_waitcnt lgkmcnt(0)')
            if ZA: a('v_mov_b32 v%d, 0', TACC + ZA)
            a('s_barrier')
            stamp(2)
            for w in range(4): a('ds_read_b96 %s, v11 offset:%d', V(76 + 4 * w, 3), 2048 * w) if 'b96' in dev else a('ds_read_b128 %s, v11 offset:%d', V(76 + 4 * w, 4), 2048 * w)
            for r in range(ZA + 1, ZN): a('v_mov_b32 v%d, 0', TACC + r)
            a('s_waitcnt lgkmcnt(2)')
            a('v_pk_add_f32 v[76:77], v[76:77], v[80:81]')
            a('v_add_f32 v78, v78, v82')
            a('s_waitcnt lgkmcnt(0)')
            a('v_pk_add_f32 v[84:85], v[84:85], v[88:89]')
            a('v_add_f32 v86, v86, v90')
            a('v_pk_add_f32 v[76:77], v[76:77], v[84:85]')
            a('v_add_f32 v78, v78, v86')
            DP = ('quad_perm:[1,0,3,2]', 'quad_perm:[2,3,0,1]', 'row_half_mirror', 'row_mirror')
            def dpp(op, d, s_, ctl): a('%s_dpp v%d, v%d, v%d %s row_mask:0xf bank_mask:0xf', op, d, s_, s_, ctl)
            a('v_max3_f32 v84, v76, v77, v78')
            a('v_sub_f32 v76, v76, v84')
            a('v_sub_f32 v77, v77, v84')
            dpp('v_max_f32', 85, 84, DP[0])
            a('v_sub_f32 v78, v78, v84')
            a('v_exp_f32 v76, v76')
            dpp('v_max_f32', 85, 85, DP[1])
            a('v_exp_f32 v77, v77')
            a('s_nop 0')
            dpp('v_max_f32', 85, 85, DP[2])
            a('v_exp_f32 v78, v78')
            a('v_add_f32 v86, v76, v77')
            dpp('v_max_f32', 85, 85, DP[3])
            a('v_sub_f32 v84, v84, v85')
            a('v_exp_f32 v84, v84')
            a('v_fmac_f32 v86, v78, v14')
            a('v_mul_f32 v86, v86, v84')
            a('v_mul_f32 v76, v76, v84')
            a('v_mul_f32 v77, v77, v84')
            dpp('v_add_f32', 86, 86, DP[0])
            a('v_mul_f32 v78, v78, v84')
            a('s_nop 0')
            for ctl in DP[1:]:
                dpp('v_add_f32', 86, 86, ctl)
                if ctl != DP[3]: a('s_nop 1')
            a('v_rcp_f32 v86, v86')
            a('s_nop 0')
            a('v_mul_f32 v76, v76, v86')
            a('v_mul_f32 v77, v77, v86')
            a('v_cvt_pk_bf16_f32 v88, |v76|, |v77|')
            a('buffer_store_dword v88, v12, s[8:11], s22 offen' + SC)
            a('v_mul_f32_dpp v79, v78, v86 row_shl:4 row_mask:0xf bank_mask:0xf bound_ctrl:0')
            a('v_mul_f32 v78, v78, v86')
            a('v_cvt_pk_bf16_f32 v90, |v78|, |v79|')
            a('buffer_store_dword v90, v13, s[8:11], s22 offen' + SC)
            stamp(3)
            a('s_waitcnt vmcnt(%d)', 3 + (7 if 'xt' in dev else 0))
            a('s_barrier')
            for x in dev:
                if x.startswith('xd'): a('s_sleep %d', int(x[2:]))
            if 'nox' not in dev and 'xl' not in opt: xdma()
            a.label(ljn)
            a('v_add_u32 v7, %d, v7', XSEG)
            a('s_mov_b64 exec, s[62:63]')
            a('v_add_u32 v7, %d, v7', DSEG - XSEG)
            a('s_mov_b64 exec, -1')
            a('s_add_u32 s31, s12, 3')
            fcheck(18, 3, 's31')
            a('s_cselect_b32 s38, 0x%x, 0', OOB)
            a('s_cmp_gt_u32 s31, 62')
            a('s_cselect_b32 s38, 0x%x, s38', OOB)
            for x in dev:
                if x.startswith('ds'): a('s_sleep %d', int(x[2:]))
        else:
            def pld1(k):
                a('buffer_load_dwordx4 %s, %s, s[8:11], s43 offen offset:%d sc1', V(PF + 4 * k, 4), 'v10' if k else 'v6', 1024 if k == 2 else 0)
            def pld():
                for k in range(3): pld1(k)
            l0, l1 = a.new('d0'), a.new('d1')
            a('s_cmp_eq_u32 s7, 1')
            a('s_cbranch_scc1 %s', l0)
            a.label(l1)
            tails.append(('d0', l0, l1))
            for i in range(8): a('ds_read_b128 %s, v15 offset:%d', V(DB + 4 * i, 4), 1024 * (i & 3) + 16384 * (i >> 2))
            pld()
            for kk in range(N, N + 12):
                for ins in gm[kk] + gv[kk]: a(ins)
            a('ds_read_b128 %s, v3', V(VB, 4))
            a('ds_read_b128 %s, v3 offset:1024', V(VB + 4, 4))
            a('v_add_u32 v15, 2048, v8')
            a('s_waitcnt vmcnt(3)')
            a('s_add_u32 s35, s35, %d', DSEG)
            a('s_add_u32 s31, s12, 2')
            fcheck(18, 3, 's31')
            a('s_cselect_b32 s13, 1, 0')
            a('s_add_u32 s6, s35, 16384')
            a('s_cmp_gt_u32 s31, 62')
            a('s_cselect_b32 s38, 0x%x, s35', OOB)
            a('s_cselect_b32 s6, 0x%x, s6', OOB)
            a('s_cselect_b32 s13, 0, s13')
            a('s_mov_b32 s14, 0')
            stamp(4)
            if inst:
                l = a.new('z0')
                a('s_cmp_eq_u32 s12, 0')
                a('s_cbranch_scc0 %s', l)
                a('s_memrealtime s[94:95]')
                a.label(l)
            a('s_waitcnt lgkmcnt(0)')
            lr, lq = a.new('pr'), a.new('pq')
            def pchk():
                a('v_or3_b32 v3, v%d, v%d, v%d', PF, PF + 1, PF + 2)
                a('v_or3_b32 v19, v%d, v%d, v%d', PF + 3, PF + 4, PF + 5)
                a('v_or3_b32 v3, v%d, v%d, v3', PF + 6, PF + 7)
                a('v_or3_b32 v19, v%d, v%d, v19', PF + 8, PF + 9)
                a('v_or3_b32 v3, v%d, v%d, v3', PF + 10, PF + 11)
                a('v_or_b32 v3, v19, v3')
                a('v_cmp_gt_i32 vcc, 0, v3')
            def dn(tl): a('v_mfma_f32_16x16x32_bf16 %s, %s, %s, 0', V(CACC + 4 * tl, 4), V(PF, 4), V(VB + 4 * tl, 4))
            def sp_(tl, k): a('v_smfmac_f32_16x16x64_bf16 %s, %s, %s, v2', V(CACC + 4 * tl, 4), V(PF + 4 + 4 * k, 4), V(DB + 16 * tl + 8 * k, 8))
            for x in dev:
                if x.startswith('pw'): a('s_sleep %d', int(x[2:]))
            a.label(lr)
            pld()
            a('s_add_u32 s14, s14, 1')
            a('s_cmp_lt_u32 s14, %d', SPIN)
            a('s_cbranch_scc0 tdie')
            a('s_cmp_lt_u32 s3, 2')
            a('s_waitcnt vmcnt(3)')
            if 'cold' in dev:
                pchk()
                dn(0)
                a('s_cbranch_vccnz %s', lr)
                sp_(0, 0); sp_(0, 1); dn(1); sp_(1, 0); sp_(1, 1)
                stamp(5)
                n0, n1 = None, 4
            else:
                a('v_or3_b32 v3, v%d, v%d, v%d', PF, PF + 1, PF + 2)
                a('v_or3_b32 v3, v%d, v%d, v3', PF + 3, PF + 4)
                dn(0)
                a('v_or3_b32 v3, v%d, v%d, v3', PF + 5, PF + 6)
                dn(1)
                a('v_or3_b32 v3, v%d, v%d, v3', PF + 7, PF + 8)
                sp_(0, 0)
                a('v_or3_b32 v3, v%d, v%d, v3', PF + 9, PF + 10)
                sp_(1, 0)
                a('v_or_b32 v3, v%d, v3', PF + 11)
                sp_(0, 1)
                a('v_cmp_gt_i32 vcc, 0, v3')
                sp_(1, 1)
                a('s_cbranch_vccnz %s', lr)
                stamp(5)
                n0, n1 = 4, None
            if n0: a('s_nop %d', n0)
            a('v_pk_add_f32 %s, %s, %s', V(CACC, 2), V(CACC, 2), V(CACC + 2, 2))
            if n1: a('s_nop %d', n1 + 2)
            else: a('s_nop 0')
            a('v_pk_add_f32 %s, %s, %s', V(CACC + 4, 2), V(CACC + 4, 2), V(CACC + 6, 2))
            a('ds_write2_b32 v8, v%d, v%d offset0:0 offset1:16', CACC, CACC + 1)
            a('ds_write2_b32 v15, v%d, v%d offset0:0 offset1:16', CACC + 4, CACC + 5)
            lnr, ljr = a.new('nr'), a.new('jr')
            a('s_cbranch_scc0 %s', lnr)
            tails.append(('ns', lnr, ljr))
            a('s_waitcnt lgkmcnt(0)')
            a('s_barrier')
            for w in range(4): a('ds_read_b64 %s, v9 offset:%d', V(RT + 2 * w, 2), 512 * w)
            a('s_waitcnt lgkmcnt(2)')
            a('v_pk_add_f32 %s, %s, %s', V(RT, 2), V(RT, 2), V(RT + 2, 2))
            a('s_waitcnt lgkmcnt(0)')
            a('v_pk_add_f32 %s, %s, %s', V(RT + 4, 2), V(RT + 4, 2), V(RT + 6, 2))
            a('v_pk_add_f32 %s, %s, %s', V(RT, 2), V(RT, 2), V(RT + 4, 2))
            a('v_cvt_pk_bf16_f32 v%d, v%d, v%d', RT, RT, RT + 1)
            a('v_min_u32 v%d, -2, v%d', RT, RT)
            a('buffer_store_dword v%d, v11, s[8:11], s42 offen%s', RT, SC)
            stamp(6)
            a('s_barrier')
            a('s_mov_b32 s40, 0x%x', MEME + 63 * UNIT)
            a.label(ljr)
            for x in dev:
                if x.startswith('dc'): a('s_sleep %d', int(x[2:]))
        if inst and role == 's':
            l = a.new('ts')
            a('s_lshl_b32 s30, s4, 2')
            a('s_add_u32 s30, s30, s3')
            a('s_cmp_eq_u32 s30, 63')
            a('s_cbranch_scc0 %s', l)
            a('s_memtime s[80:81]')
            a('s_memrealtime s[82:83]')
            a('s_lshl_b32 s30, s12, 2')
            a('s_add_u32 s30, s30, 0x3F30000')
            a('s_waitcnt lgkmcnt(0)')
            a('v_mov_b32 v99, s80')
            a('v_mov_b32 v98, s82')
            a('buffer_store_dword v99, off, s[8:11], s30')
            a('buffer_store_dword v98, off, s[8:11], s30 offset:256')
            a.label(l)
        if inst:
            ld = a.new('dv')
            a('s_cmp_eq_u32 s12, 40')
            a('s_cbranch_scc0 %s', ld)
            a('s_memtime s[80:81]')
            a('s_memrealtime s[82:83]')
            a('s_waitcnt lgkmcnt(0)')
            a('s_sub_u32 s78, s80, s78')
            a('s_sub_u32 s88, s82, s88')
            a('s_lshl_b32 s30, s5, 4')
            a('s_add_u32 s30, s30, s4')
            a('s_lshl_b32 s30, s30, 2')
            a('s_add_u32 s30, s30, s3')
            a('s_lshl_b32 s30, s30, 6')
            a('s_add_u32 s30, s30, 0x3F00000')
            for kk in range(13):
                a('v_mov_b32 v99, s%d', 64 + 2 * kk)
                a('buffer_store_dword v99, off, s[8:11], s30 offset:%d', 4 * kk)
                a('s_nop 1')
            a.label(ld)
        a('s_add_u32 s12, s12, 1')
        a('s_cmp_lt_u32 s12, 63')
        a('s_cbranch_scc1 %sloop%s', role, mode)
        if role == 'c':
            a('buffer_store_dword v%d, v11, s[8:11], s40 offen sc1', RT)
            if mode == 'F' and WB:
                l = a.new('wb')
                a('s_or_b32 s30, s3, s4')
                a('s_cbranch_scc1 %s', l)
                a('s_waitcnt vmcnt(0)')
                a('buffer_wbl2 sc1')
                a('s_waitcnt vmcnt(0)')
                a.label(l)
        if dev:
            a('s_memrealtime s[82:83]')
            a('s_waitcnt lgkmcnt(0)')
            a('s_lshl_b32 s30, s2, 4')
            a('s_add_u32 s30, s30, 0x3F10000')
            for kk, r in enumerate((90, 84, 82, 94)):
                a('v_mov_b32 v99, s%d', r)
                a('buffer_store_dword v99, off, s[8:11], s30 offset:%d', 4 * kk)
                a('s_nop 1')
            amp = [x for x in dev if x.startswith('amp')]
            if amp and role == amp[0][3]:
                k = amp[0][4]
                if k == '1': a('s_sub_u32 s31, s84, s92'); a('s_mul_i32 s31, s31, 10')
                if k == '2': a('s_sub_u32 s31, s82, s84'); a('s_mul_i32 s31, s31, 2')
                if k == '3': a('s_sub_u32 s31, s90, s92'); a('s_mul_i32 s31, s31, 10')
                if k == '4': a('s_sub_u32 s31, s96, s92'); a('s_mul_i32 s31, s31, 10')
                if k == '5': a('s_sub_u32 s31, s98, s92'); a('s_mul_i32 s31, s31, 10')
                if k == '0': a('s_mov_b32 s31, 2000')
                l = a.new('am')
                a.label(l)
                a('s_sleep 4')
                a('s_memrealtime s[80:81]')
                a('s_waitcnt lgkmcnt(0)')
                a('s_sub_u32 s30, s80, s82')
                a('s_cmp_lt_u32 s30, s31')
                a('s_cbranch_scc1 %s', l)
            if 'dbgt' in dev:
                l = a.new('dt')
                a('s_cmp_eq_u32 s4, 5')
                a('s_cbranch_scc0 %s', l)
                a('s_lshl_b32 s30, s5, 4')
                for kk, r in enumerate((90, 84, 82, 78)):
                    if r != 78: a('s_sub_u32 s31, s%d, s92', r)
                    else: a('s_mov_b32 s31, s78')
                    a('v_mov_b32 v99, s31')
                    a('buffer_store_dword v99, off, s[44:47], s30 offset:%d', 4 * kk)
                    a('s_nop 1')
                a.label(l)
        a('s_endpgm')
        for p in tails:
            a.label(p[1])
            if p[0] == 'dw':
                a('s_add_u32 s31, s12, 1')
                dwait('s31')
                a('s_branch %s', p[2])
            elif p[0] == 'd0':
                lp = a.new('dz')
                a('s_waitcnt vmcnt(0)')
                a('v_and_b32 v18, 1, v0')
                a('v_lshlrev_b32 v18, 2, v18')
                a('v_bfe_u32 v%d, v0, 1, 1', DB)
                a('v_lshl_add_u32 v%d, v%d, 7, v18', DB, DB)
                a('s_lshl_b32 s31, s4, 3')
                a('s_add_u32 s31, s31, 0x%x', DPROG)
                a('s_mov_b32 s14, 0')
                a.label(lp)
                a('buffer_load_dword v18, v%d, s[8:11], s31 offen sc1', DB)
                a('s_add_u32 s14, s14, 1')
                a('s_cmp_lt_u32 s14, %d', SPIN)
                a('s_cbranch_scc0 tdie')
                a('s_waitcnt vmcnt(0)')
                a('v_cmp_eq_u32 vcc, 0, v18')
                a('s_cbranch_vccnz %s', lp)
                for seg in range(2):
                    for tl in range(2):
                        if seg == 0: a('s_xor_b32 s31, s37, 0x18000')
                        else: a('s_mov_b32 s31, s37')
                        a('s_add_u32 m0, s31, %d', 16384 * tl)
                        a('s_add_u32 s31, s35, %d', 16384 * tl - (DSEG if seg == 0 else 0))
                        for i in range(4): a('buffer_load_dwordx4 v1, s[8:11], s31 offen offset:%d sc1 lds', 1024 * i)
                a('buffer_load_dword v18, off, s[8:11], s49 sc1')
                a('s_waitcnt vmcnt(9)')
                a('s_mov_b32 s7, 0')
                a('s_branch %s', p[2])
            elif p[0] == 'nv':
                for r in range(4): a('v_mov_b32 v%d, -1', 92 + r)
                a('s_waitcnt lgkmcnt(0)')
                a('s_barrier')
                a('buffer_store_dwordx4 v[92:95], v1, s[8:11], s24 offen' + SC)
                if 'xe' in opt: xdma()
                a('s_waitcnt vmcnt(%d)', 2 + (7 if 'xe' in opt else 0))
                a('s_barrier')
                for x in dev:
                    if x.startswith('xd') and 'xe' not in opt: a('s_sleep %d', int(x[2:]))
                if 'xe' not in opt and 'nox' not in dev: xdma()
                for r in range(ZN): a('v_mov_b32 v%d, 0', TACC + r)
                a('s_branch %s', p[2])
            elif p[0] == 'ns':
                a('s_waitcnt lgkmcnt(0)')
                a('s_barrier')
                a('s_barrier')
                a('s_branch %s', p[2])
    for mode in 'FS':
        for role in 'sc':
            n0 = len(a.l)
            loop(role, mode)
            body = a.l[n0:]
            if 'e64' in dev:
                body = [x.replace('v_add_f32 ', 'v_add_f32_e64 ') for x in body]
            if 'al8' in dev:
                body = sum([['.p2align 3', x] if 'mfma' in x else [x] for x in body], [])
            for x in (dev | {'pa6'}):
                if x.startswith('pa'):
                    body = sum([['.p2align %s' % x[2:], y] if y.startswith(('mf_', 'pr_')) else [y] for y in body], [])
                if x.startswith('sh'):
                    body = body[:1] + ['    s_nop 0'] * int(x[2:]) + body[1:]
            a.l[n0:] = body
```

```python
from common import *
import fold
SPIN = 400000
XB = 28672 + 128
KT1 = 14336 + 64
DST = 'sc1'
DEV = False
DROT = False
W0 = True
IMM = True
LEAD = 6
BACKOFF = 24
MSLEEP = 2
DBGT = False
def tl(a, k):
    if DEV:
        a('s_memrealtime s[82:83]')
        a('s_waitcnt lgkmcnt(0)')
        a('s_lshl_b32 s84, s2, 4')
        a('s_add_u32 s84, s84, 0x3F10000')
        a('v_mov_b32 v4, s82')
        a('buffer_store_dword v4, off, s[8:11], s84 offset:%d', 4 * k)
        a('s_nop 1')

NSET_D, NSET_F, NSET_X, NSET_O = 2, 2, 4, 6

def lane_consts(a):
    a('v_lshlrev_b32 v1, 4, v0')
    a('v_and_b32 v2, 15, v0')
    a('v_lshrrev_b32 v3, 4, v0')

def x_setup(a, lx):
    a('s_mul_i32 s30, s3, 7168')
    a('s_mul_i32 s34, s12, %d', XSEG)
    a('s_add_u32 s34, s34, s30')
    a('s_add_u32 s34, s34, 0x%x', XF)
    a('s_lshr_b32 s31, s3, 1')
    a('s_lshl_b32 s31, s31, 6')
    a('s_add_u32 s36, s30, s31')
    a('s_add_u32 s36, s36, %d', lx)
    a('s_mov_b32 s50, %d', XB)

def x_dma(a):
    a('s_mov_b32 m0, s36')
    a('s_add_u32 s30, s34, 4096')
    for i in range(4): a('buffer_load_dwordx4 v1, s[8:11], s34 offen offset:%d sc1 lds', 1024 * i)
    a('s_add_u32 m0, s36, 4096')
    a('s_nop 0')
    for i in range(3): a('buffer_load_dwordx4 v1, s[8:11], s30 offen offset:%d sc1 lds', 1024 * i)

def x_next(a, nset):
    a('s_add_u32 s34, s34, %d', XSEG * nset)
    a('s_add_u32 s36, s36, s50')

def perm_rows_addr(a, dst, lx, gmul_shift, tmp):
    a('v_lshrrev_b32 v%d, 3, v2', tmp)
    a('s_movk_i32 s30, %d', KT1)
    a('v_mul_u32_u24 v%d, s30, v%d', dst, tmp)
    a('v_bfe_u32 v%d, v0, 2, 1', tmp)
    a('v_lshl_add_u32 v%d, v%d, 7, v%d', dst, tmp, dst)
    a('v_and_b32 v%d, 3, v0', tmp)
    a('v_lshl_add_u32 v%d, v%d, 4, v%d', dst, tmp, dst)
    a('v_add_u32 v%d, %d, v%d', dst, lx, dst)

def publish(a, word_sgpr_off, val):
    l = a.new('pb')
    a('s_cmp_eq_u32 s3, 0')
    a('s_cbranch_scc0 %s', l)
    a('v_mov_b32 v4, %s', val)
    a('v_mov_b32 v5, 0')
    a('buffer_store_dword v4, v5, s[8:11], %s offen sc1', word_sgpr_off)
    a.label(l)

def sg_loop(a, name, nset, nst, mfma_fn, epi_fn, rd_fn, tail_fn=None, jord=None, mid_fn=None):
    XR = 64
    if name != 'rd': x_dma(a)
    a('s_mov_b32 s13, 0')
    a('s_waitcnt vmcnt(0)')
    tl(a, 1)
    a('s_branch %s_in', name)
    a.label(name + '_loop')
    a('s_waitcnt vmcnt(%d)', nst)
    a.label(name + '_in')
    a('s_barrier')
    x_next(a, nset)
    x_dma(a)
    jord = jord or list(range(14))
    def rd(j):
        for mt in range(2): rd_fn(XR + 8 * (j % 4) + 4 * mt, jord[j], mt)
    for j in range(3): rd(j)
    for j in range(14):
        if j + 3 < 14: rd(j + 3)
        a('s_waitcnt lgkmcnt(%d)', 2 * min(3, 13 - j))
        mfma_fn(jord[j], XR + 8 * (j % 4))
        if j == 7 and mid_fn: mid_fn()
        if j == 8:
            a('s_waitcnt vmcnt(7)')
            a('s_barrier')
            publish(a, 's35', 's13')
    a('v_add_u32 v6, s50, v6')
    a('s_sub_u32 s50, 0, s50')
    a('s_nop 6')
    epi_fn()
    a('s_add_u32 s13, s13, 1')
    a('s_add_u32 s12, s12, %d', nset)
    if tail_fn is not None:
        tail_fn()
        return
    a('s_cmp_lt_u32 s12, 64')
    a('s_cbranch_scc1 %s_loop', name)
    a('s_waitcnt vmcnt(0)')
    a('s_barrier')
    publish(a, 's35', 's13')
    tl(a, 2)
    a('s_endpgm')

def mem_fetch(a, KO, va0, va1):
    lp, ok = a.new('xm'), a.new('xk')
    a('s_mov_b32 s14, 0')
    a.label(lp)
    a('buffer_load_dwordx4 %s, v1, s[8:11], s32 offen sc1', V(KO, 4))
    a('buffer_load_dwordx4 %s, v1, s[8:11], s33 offen sc1', V(KO + 4, 4))
    a('s_waitcnt vmcnt(0)')
    a('v_max3_u32 v4, v%d, v%d, v%d', KO, KO + 1, KO + 2)
    a('v_max3_u32 v5, v%d, v%d, v%d', KO + 3, KO + 4, KO + 5)
    a('v_max3_u32 v4, v%d, v%d, v4', KO + 6, KO + 7)
    a('v_max_u32 v4, v4, v5')
    a('v_cmp_eq_u32 vcc, -1, v4')
    a('s_cbranch_vccz %s', ok)
    if MSLEEP: a('s_sleep %d', MSLEEP)
    a('s_add_u32 s14, s14, 1')
    a('s_cmp_lt_u32 s14, %d', SPIN)
    a('s_cbranch_scc1 %s', lp)
    a('s_endpgm')
    a.label(ok)
    a('ds_write_b128 v%d, %s', va0, V(KO, 4))
    a('ds_write_b128 v%d, %s', va1, V(KO + 4, 4))

def own_frags(a, lm, va0, va1):
    a('s_lshl_b32 s15, s3, 11')
    a('s_add_u32 s16, s15, 1024')
    a('s_cmp_eq_u32 s3, 3')
    a('s_cselect_b32 s16, 0, s16')
    a('s_add_u32 s31, s15, %d', lm)
    a('v_add_u32 v%d, s31, v1', va0)
    a('s_add_u32 s31, s16, %d', lm)
    a('v_add_u32 v%d, s31, v1', va1)

def gen_d(a, vtail=True):
    a.label('role_d')
    tl(a, 0)
    a('s_lshr_b32 s6, s30, 1')
    a('s_and_b32 s12, s30, 1')
    lane_consts(a)
    a('s_lshl_b32 s34, s3, 2')
    fold.wait_c_misc_w0(a, True) if W0 else fold.wait_part(a, FLG_C, 's34', 4, False)
    a('s_mul_i32 s33, s34, 28')
    a('s_add_u32 s33, s33, s6')
    a('s_mul_i32 s33, s33, 14336')
    a('s_add_u32 s33, s33, 0x%x', WF_C)
    a('s_mov_b32 s20, s33')
    a('s_mov_b32 s21, s34')
    def wpass1(ps, order):
        for hh in order:
            for j in range(14):
                if (j >> 1) & 1 != ps: continue
                if j % 2 == 0: a('s_add_u32 s32, s20, %d', hh * 28 * 14336 + j * 1024)
                a('buffer_load_dwordx4 %s, v1, s[8:11], s32 offen offset:%d sc1', A((hh * 14 + j) * 4, 4), (j % 2) * 1024)
    def wpass(ps):
        if not DROT: return wpass1(ps, (0, 1, 2, 3))
        l1, l2 = a.new('w1'), a.new('w2')
        a('s_cmp_eq_u32 s12, 0')
        a('s_cbranch_scc1 %s', l1)
        wpass1(ps, (2, 3, 0, 1))
        a('s_branch %s', l2)
        a.label(l1)
        wpass1(ps, (0, 1, 2, 3))
        a.label(l2)
    wpass(0)
    x_setup(a, 0)
    x_dma(a)
    fold.wait_c_misc_w0(a, False)
    wpass(1)
    def mid():
        l = a.new('md')
        a('s_cmp_eq_u32 s13, 0')
        a('s_cbranch_scc0 %s', l)
        fold.wait_head(a, FLG_C, 's21', 56, w0=False)
        wpass(1)
        a('s_waitcnt vmcnt(0)')
        a.label(l)
    perm_rows_addr(a, 6, 0, 0, 7)
    a('v_lshl_add_u32 v6, v3, 8, v6')
    a('s_lshl_b32 s35, s12, 7')
    a('s_lshl_b32 s31, s6, 2')
    a('s_add_u32 s35, s35, s31')
    a('s_add_u32 s35, s35, 0x%x', DPROG)
    ACC = 32
    def rd(b, j, mt): a('ds_read_b128 %s, v6 offset:%d', V(b, 4), j * 1024 + mt * 64)
    def mf(j, xb):
        for hh in range(4):
            for mt in range(2):
                c = ACC + (hh * 2 + mt) * 4
                a('v_mfma_f32_16x16x32_bf16 %s, %s, %s, %s', V(c, 4), V(xb + 4 * mt, 4), A((hh * 14 + j) * 4, 4), V(c, 4) if j else '0')
    def epi():
        a('s_mul_i32 s30, s12, %d', DSEG)
        a('s_lshl_b32 s31, s6, 14')
        a('s_add_u32 s30, s30, s31')
        a('s_lshl_b32 s31, s3, 12')
        a('s_add_u32 s30, s30, s31')
        a('s_add_u32 s30, s30, 0x%x', DD)
        for hh in range(4):
            c = ACC + hh * 8
            o = 96 + 4 * hh
            for d in range(4): a('v_cvt_pk_bf16_f32 v%d, v%d, v%d', o + d, c + 2 * d, c + 2 * d + 1)
            a('buffer_store_dwordx4 %s, v1, s[8:11], s30 offen offset:%d %s', V(o, 4), 1024 * hh, DST)
    def vsetup():
        LM = 65536
        own_frags(a, LM, 9, 10)
        a('v_lshrrev_b32 v4, 1, v3')
        a('v_lshlrev_b32 v8, 8, v4')
        a('v_bfe_u32 v4, v0, 1, 2')
        a('v_lshl_add_u32 v8, v4, 6, v8')
        a('v_and_b32 v4, 1, v0')
        a('v_lshl_add_u32 v8, v4, 4, v8')
        a('v_and_b32 v4, 1, v3')
        a('v_lshl_add_u32 v8, v4, 3, v8')
        a('v_add_u32 v8, %d, v8', LM)
        a('v_lshlrev_b32 v11, 4, v2')
        a('v_lshl_add_u32 v11, v4, 3, v11')
        a('v_lshrrev_b32 v4, 1, v3')
        a('v_lshl_add_u32 v11, v4, 8, v11')
        a('v_cmp_gt_u32 s[60:61], 32, v0')
        a('s_mov_b32 s17, s12')
        a('s_lshl_b32 s19, s12, 9')
        a('s_lshl_b32 s31, s6, 4')
        a('s_add_u32 s19, s19, s31')
        a('s_lshl_b32 s31, s3, 2')
        a('s_add_u32 s19, s19, s31')
        a('s_add_u32 s19, s19, 0x%x', VPROG)
        a('s_mov_b32 s18, 0')
    def tail():
        if IMM:
            l = a.new('fp')
            a('s_cmp_eq_u32 s13, 1')
            a('s_cbranch_scc0 %s', l)
            a('s_waitcnt vmcnt(0)')
            a('s_barrier')
            publish(a, 's35', 's13')
            tl(a, 2)
            a.label(l)
        a('s_cmp_le_u32 s13, %d', LEAD)
        a('s_cbranch_scc1 rd_loop')
        a.label('rv_loop')
        a('s_mul_i32 s39, s17, %d', UNIT)
        a('s_add_u32 s39, s39, 0x%x', MEME)
        a('s_add_u32 s32, s39, s15')
        a('s_add_u32 s33, s39, s16')
        mem_fetch(a, 64, 9, 10)
        a('s_waitcnt lgkmcnt(0)')
        a('s_barrier')
        publish(a, 's35', 's13')
        AF = 120
        def ard(j):
            if j % 2 == 0 and j: a('v_add_u32 v8, 1024, v8')
            for qq in range(2):
                o = 128 * (j & 1) + qq
                a('ds_read2_b32 %s, v8 offset0:%d offset1:%d', V(AF + 4 * j + 2 * qq, 2), o, o + 8)
        for j in range(3): ard(j)
        for j in range(14):
            if j + 3 < 14: ard(j + 3)
            a('s_waitcnt lgkmcnt(%d)', 2 * min(3, 13 - j))
            for hh in range(4):
                c = ACC + hh * 4
                a('v_mfma_f32_16x16x32_bf16 %s, %s, %s, %s', V(c, 4), V(AF + 4 * j, 4), A((hh * 14 + j) * 4, 4), V(c, 4) if j else '0')
        a('v_subrev_u32 v8, 6144, v8')
        for r in (8, 9, 10): a('v_xor_b32 v%d, 0x2000, v%d', r, r)
        a('s_mul_i32 s30, s17, %d', VSLOT)
        a('s_lshl_b32 s31, s6, 12')
        a('s_add_u32 s30, s30, s31')
        a('s_lshl_b32 s31, s3, 10')
        a('s_add_u32 s30, s30, s31')
        a('s_add_u32 s30, s30, 0x%x', VE)
        a('s_add_u32 s18, s18, 1')
        a('s_nop 1')
        for hp in range(2):
            c = ACC + hp * 8
            for r in range(4): a('v_cndmask_b32 v%d, v%d, v%d, s[60:61]', c + r, c + 4 + r, c + r)
            a('v_cvt_pk_bf16_f32 v%d, v%d, v%d', 96 + 2 * hp, c, c + 1)
            a('v_cvt_pk_bf16_f32 v%d, v%d, v%d', 97 + 2 * hp, c + 2, c + 3)
            a('buffer_store_dwordx2 %s, v11, s[8:11], s30 offen offset:%d sc1', V(96 + 2 * hp, 2), 512 * hp)
        a('v_mov_b32 v4, s18')
        a('s_waitcnt vmcnt(0)')
        a('buffer_store_dword v4, off, s[8:11], s19 sc1')
        a('s_add_u32 s17, s17, %d', NSET_D)
        a('s_cmp_lt_u32 s12, 64')
        a('s_cbranch_scc1 rd_loop')
        a('s_cmp_lt_u32 s17, 64')
        a('s_cbranch_scc1 rv_loop')
        tl(a, 3)
        a('s_endpgm')
    vsetup()
    sg_loop(a, 'rd', NSET_D, 4, mf, epi, rd, tail if vtail else None)

def gen_f1(a):
    a.label('role_f1')
    tl(a, 0)
    a('s_lshr_b32 s6, s30, 1')
    a('s_and_b32 s12, s30, 1')
    a('s_load_dwordx4 s[56:59], s[0:1], %d', KA['wg'])
    lane_consts(a)
    RS = 272
    a('s_lshl_b32 s31, s3, 2')
    a('v_add_u32 v4, s31, v3')
    a('s_movk_i32 s30, 3584')
    a('v_mul_u32_u24 v5, s30, v4')
    a('v_lshl_add_u32 v5, v2, 4, v5')
    a('s_movk_i32 s30, %d', RS)
    a('v_mul_u32_u24 v7, s30, v4')
    a('v_lshl_add_u32 v7, v2, 4, v7')
    a('v_add_u32 v8, %d, v7', 14 * 16 * RS)
    a('v_lshrrev_b32 v9, 2, v2')
    a('v_lshl_add_u32 v9, v3, 3, v9')
    a('v_mul_u32_u24 v9, s30, v9')
    a('v_and_b32 v4, 3, v0')
    a('v_lshl_add_u32 v9, v4, 4, v9')
    a('s_lshl_b32 s31, s3, 6')
    a('v_add_u32 v9, s31, v9')
    a('v_add_u32 v10, %d, v9', 7 * 32 * RS)
    a('s_waitcnt lgkmcnt(0)')
    a.srd(16, 56, FBYTES)
    a.srd(20, 58, FBYTES)
    ST = 16
    for mat in range(2):
        a('s_lshl_b32 s31, s6, 8')
        for p in range(28):
            a('buffer_load_dwordx4 %s, v5, s[%d:%d], s31 offen', V(ST + (mat * 28 + p) * 4, 4), 16 + 4 * mat, 19 + 4 * mat)
            if p < 27: a('s_add_u32 s31, s31, %d', 16 * 3584)
    for mat in range(2):
        a('s_waitcnt vmcnt(%d)', 28 if mat == 0 else 0)
        for p in range(28):
            a('ds_write_b128 v%d, %s offset:%d', 7 if p < 14 else 8, V(ST + (mat * 28 + p) * 4, 4), (p % 14) * 16 * RS)
        a('s_waitcnt lgkmcnt(0)')
        a('s_barrier')
        for u in range(2):
            for j in range(14):
                b = ((mat * 2 + u) * 14 + j) * 4
                o = (j % 7) * 32 * RS + u * 8
                a('ds_read_b64_tr_b16 %s, v%d offset:%d', A(b, 2), 9 if j < 7 else 10, o)
                a('ds_read_b64_tr_b16 %s, v%d offset:%d', A(b + 2, 2), 9 if j < 7 else 10, o + 4 * RS)
        a('s_waitcnt lgkmcnt(0)')
        a('s_barrier')
    x_setup(a, 0)
    a('v_mov_b32 v6, v1')
    a('s_lshl_b32 s35, s12, 7')
    a('s_lshl_b32 s31, s6, 2')
    a('s_add_u32 s35, s35, s31')
    a('s_add_u32 s35, s35, 0x%x', HPROG)
    ACC = 32
    def rd(b, j, tt): a('ds_read_b128 %s, v6 offset:%d', V(b, 4), j * 1024 + tt * KT1)
    def mf(j, xb):
        for q in range(4):
            for tt in range(2):
                c = ACC + (tt * 4 + q) * 4
                a('v_mfma_f32_16x16x32_bf16 %s, %s, %s, %s', V(c, 4), A((q * 14 + j) * 4, 4), V(xb + 4 * tt, 4), V(c, 4) if j else '0')
    def epi():
        a('s_mul_i32 s30, s12, %d', VSLOT)
        a('s_lshl_b32 s31, s6, 12')
        a('s_add_u32 s30, s30, s31')
        a('s_lshl_b32 s31, s3, 10')
        a('s_add_u32 s30, s30, s31')
        a('s_add_u32 s30, s30, 0x%x', H1)
        a('s_add_u32 s31, s30, 57344')
        for tt in range(2):
            g = ACC + tt * 16
            u = g + 8
            t = 104
            for i in range(8): a('v_mul_f32 v%d, 0x%x, v%d', t + i, fbits(-LOG2E), g + i)
            for i in range(8): a('v_exp_f32 v%d, v%d', t + i, t + i)
            for i in range(8): a('v_mul_f32 v%d, v%d, v%d', u + i, u + i, g + i)
            for i in range(8): a('v_add_f32 v%d, 1.0, v%d', t + i, t + i)
            for i in range(8): a('v_rcp_f32 v%d, v%d', t + i, t + i)
            a('s_nop 0')
            for i in range(8): a('v_mul_f32 v%d, v%d, v%d', u + i, u + i, t + i)
            o = 96 + 4 * tt
            for d in range(4): a('v_cvt_pk_bf16_f32 v%d, v%d, v%d', o + d, u + 2 * d, u + 2 * d + 1)
            a('buffer_store_dwordx4 %s, v1, s[8:11], s%d offen sc1', V(o, 4), 30 + tt)
    sg_loop(a, 'rf', NSET_F, 2, mf, epi, rd)

def poll_ge(a, voff, soff, vthr, tmp):
    lp, ok, near = a.new('pl'), a.new('pk'), a.new('pn')
    a('s_mov_b32 s14, 0')
    a.label(lp)
    a('buffer_load_dword v%d, v%d, s[8:11], %s offen sc1', tmp, voff, soff)
    a('s_waitcnt vmcnt(0)')
    a('v_cmp_lt_u32 vcc, v%d, v%d', tmp, vthr)
    a('s_cbranch_vccz %s', ok)
    if BACKOFF:
        a('v_add_u32 v%d, 1, v%d', tmp, tmp)
        a('v_cmp_lt_u32 vcc, v%d, v%d', tmp, vthr)
        a('s_cbranch_vccz %s', near)
        a('s_sleep %d', BACKOFF)
        a.label(near)
        a('s_sleep 1')
    else: a('s_sleep 4')
    a('s_add_u32 s14, s14, 1')
    a('s_cmp_lt_u32 s14, %d', SPIN)
    a('s_cbranch_scc1 %s', lp)
    a('s_endpgm')
    a.label(ok)

def gen_xs(a):
    LX, LM, LP = 0, 2 * XB, 2 * XB + 7168
    a.label('role_xs')
    tl(a, 0)
    a('s_mul_i32 s4, s30, %d', 65536 // NSET_X + 1)
    a('s_lshr_b32 s4, s4, 16')
    a('s_mul_i32 s31, s4, %d', NSET_X)
    a('s_sub_u32 s12, s30, s31')
    lane_consts(a)
    def W(t, j):
        i = t * 14 + j
        return A(4 * i, 4) if i < 64 else V(120 + 4 * (i - 64), 4)
    a('s_mul_i32 s31, s4, 28')
    a('s_mul_i32 s32, s3, 7')
    a('s_add_u32 s31, s31, s32')
    a('s_mul_i32 s31, s31, 14336')
    if WF_A: a('s_add_u32 s31, s31, 0x%x', WF_A)
    for i in range(98):
        if i % 4 == 0 and i: a('s_add_u32 s31, s31, 4096')
        a('buffer_load_dwordx4 %s, v1, s[8:11], s31 offen offset:%d sc1', W(i // 14, i % 14), (i % 4) * 1024)
        if i >= 48 and i % 8 == 0: a('s_waitcnt vmcnt(40)')
    x_setup(a, LX)
    a('v_add_u32 v6, %d, v1', LX) if LX else a('v_mov_b32 v6, v1')
    perm_rows_addr(a, 7, LX, 0, 4)
    a('v_lshrrev_b32 v4, 1, v3')
    a('s_mul_i32 s31, s3, 14')
    a('v_add_u32 v4, s31, v4')
    a('v_lshl_add_u32 v7, v4, 8, v7')
    a('v_and_b32 v4, 1, v3')
    a('v_lshl_add_u32 v7, v4, 3, v7')
    a('v_bfe_u32 v4, v0, 1, 2')
    a('v_lshlrev_b32 v8, 6, v4')
    a('v_and_b32 v4, 1, v0')
    a('v_lshl_add_u32 v8, v4, 4, v8')
    a('v_lshl_add_u32 v8, v3, 2, v8')
    a('s_mul_i32 s31, s3, 1792')
    a('s_add_u32 s31, s31, %d', LM)
    a('v_add_u32 v8, s31, v8')
    own_frags(a, LM, 9, 10)
    a('s_mul_i32 s31, s3, 6144')
    a('s_add_u32 s31, s31, %d', LP)
    a('v_add_u32 v11, s31, v1')
    a('s_lshl_b32 s31, s3, 10')
    a('s_add_u32 s31, s31, %d', LP)
    a('v_add_u32 v12, s31, v1')
    a('s_lshl_b32 s31, s3, 4')
    a('v_add_u32 v4, s31, v2')
    a('v_lshlrev_b32 v5, 3, v3')
    a('v_sub_u32 v4, v4, v5')
    for i in range(8): a('v_cmp_gt_i32 s[%d:%d], %d, v4', 64 + 2 * i, 65 + 2 * i, i)
    a('v_cmp_gt_u32 vcc, 2, v3')
    a('v_mov_b32 v13, 0xff800000')
    a('s_nop 0')
    a('v_cndmask_b32 v14, 0, 1.0, vcc')
    a('s_lshl_b32 s31, s4, 11')
    a('s_lshl_b32 s32, s3, 10')
    a('s_add_u32 s31, s31, s32')
    a('v_add_u32 v15, s31, v1')
    a('s_lshr_b32 s31, s4, 2')
    a('s_lshl_b32 s31, s31, 11')
    a('s_add_u32 s31, s31, s32')
    a('s_and_b32 s32, s4, 3')
    a('s_lshl_b32 s32, s32, 8')
    a('s_add_u32 s31, s31, s32')
    a('s_add_u32 s31, s31, 32768')
    a('v_and_b32 v4, 1, v3')
    a('v_lshlrev_b32 v16, 4, v2')
    a('v_lshl_add_u32 v16, v4, 3, v16')
    a('v_add_u32 v16, s31, v16')
    a('s_lshl_b32 s35, s12, 7')
    a('s_lshl_b32 s31, s4, 3')
    a('s_add_u32 s35, s35, s31')
    a('s_lshl_b32 s31, s3, 2')
    a('s_add_u32 s35, s35, s31')
    a('s_add_u32 s35, s35, 0x%x', XPROG)
    a('v_mov_b32 v17, 0')
    a('s_mov_b32 s13, 0')
    x_dma(a)
    ACC, XR, SA, KO = 20, 76, 92, 76
    if DEV: a('s_waitcnt vmcnt(0)')
    tl(a, 1)
    a.label('rx_loop')
    a('s_waitcnt vmcnt(0)')
    a('s_barrier')
    x_next(a, NSET_X)
    x_dma(a)
    def rd(j):
        for tt in range(2): a('ds_read_b128 %s, v6 offset:%d', V(XR + 8 * (j & 1) + 4 * tt, 4), j * 1024 + tt * KT1)
    rd(0)
    for j in range(14):
        if j + 1 < 14: rd(j + 1)
        a('s_waitcnt lgkmcnt(%d)', 2 if j < 13 else 0)
        for t in range(7):
            for tt in range(2):
                c = ACC + (t * 2 + tt) * 4
                a('v_mfma_f32_16x16x32_bf16 %s, %s, %s, %s', V(c, 4), W(t, j), V(XR + 8 * (j & 1) + 4 * tt, 4), V(c, 4) if j else '0')
    a('s_mul_i32 s39, s12, %d', UNIT)
    a('s_add_u32 s39, s39, 0x%x', MEME)
    a('s_add_u32 s32, s39, s15')
    a('s_add_u32 s33, s39, s16')
    def krd(t):
        for ku in range(2): a('ds_read_b64 %s, v7 offset:%d', V(KO + 4 * (t % 4) + 2 * ku, 2), t * 512 + ku * 64)
    for t in range(3): krd(t)
    a('s_nop 2')
    for i in range(14):
        c = ACC + 4 * i
        a('v_cvt_pk_bf16_f32 v%d, v%d, v%d', c, c, c + 1)
        a('v_cvt_pk_bf16_f32 v%d, v%d, v%d', c + 1, c + 2, c + 3)
    a('s_nop 1')
    for t in range(7):
        if t + 3 < 7: krd(t + 3)
        a('s_waitcnt lgkmcnt(%d)', 2 * min(3, 6 - t))
        for ku in range(2):
            for tt in range(2):
                c = SA + (ku * 2 + tt) * 4
                a('v_mfma_f32_16x16x16_bf16 %s, %s, %s, %s', V(c, 4), V(KO + 4 * (t % 4) + 2 * ku, 2), V(ACC + (t * 2 + tt) * 4, 2), V(c, 4) if t else '0')
    a('v_add_u32 v6, s50, v6')
    a('v_add_u32 v7, s50, v7')
    a('s_sub_u32 s50, 0, s50')
    mem_fetch(a, KO, 9, 10)
    for b in range(4): a('ds_write_b128 v11, %s offset:%d', V(SA + 4 * b, 4), 1024 * b)
    a('s_waitcnt lgkmcnt(0)')
    a('s_barrier')
    for t in range(7):
        a('ds_read_b32 v%d, v8 offset:%d', KO + 2 * t, 256 * t)
        a('ds_read_b32 v%d, v8 offset:%d', KO + 2 * t + 1, 256 * t + 32)
    for t in range(7):
        a('s_waitcnt lgkmcnt(%d)', 2 * (6 - t))
        for tt in range(2):
            c = SA + 16 + tt * 4
            a('v_mfma_f32_16x16x16_bf16 %s, %s, %s, %s', V(c, 4), V(KO + 2 * t, 2), V(ACC + (t * 2 + tt) * 4, 2), V(c, 4) if t else '0')
    a('s_nop 7')
    for b in (4, 5): a('ds_write_b128 v11, %s offset:%d', V(SA + 4 * b, 4), 1024 * b)
    a('s_waitcnt lgkmcnt(0)')
    a('s_barrier')
    lsk = a.new('xs')
    a('s_add_u32 s13, s13, 1')
    a('s_cmp_lt_u32 s3, 2')
    a('s_cbranch_scc0 %s', lsk)
    R = 20
    for w in range(4):
        for b in range(3): a('ds_read_b128 %s, v12 offset:%d', V(R + 12 * w + 4 * b, 4), 6144 * w + 2048 * b)
    a('s_mul_i32 s30, s12, %d', PXSEG)
    a('s_add_u32 s30, s30, 0x%x', PX)
    for w in range(1, 4):
        a('s_waitcnt lgkmcnt(%d)', 3 * (3 - w))
        for i in range(6): a('v_pk_add_f32 %s, %s, %s', V(R + 2 * i, 2), V(R + 2 * i, 2), V(R + 12 * w + 2 * i, 2))
    for i in range(8): a('v_cndmask_b32 v%d, v%d, v13, s[%d:%d]', R + i, R + i, 64 + 2 * i, 65 + 2 * i)
    a('v_max3_f32 v4, v%d, v%d, v%d', R, R + 1, R + 2)
    for i in range(3, 11, 2): a('v_max3_f32 v4, v%d, v%d, v4', R + i, R + i + 1)
    a('v_max_f32 v4, v%d, v4', R + 11)
    def xred(op):
        for sw in ('v_permlane32_swap_b32', 'v_permlane16_swap_b32'):
            a('v_mov_b32 v5, v4')
            a('s_nop 1')
            a('%s v4, v5', sw)
            a('%s v4, v4, v5', op)
    xred('v_max_f32')
    for i in range(12): a('v_sub_f32 v%d, v%d, v4', R + i, R + i)
    for i in range(12): a('v_exp_f32 v%d, v%d', R + i, R + i)
    a('v_add_f32 v4, v%d, v%d', R, R + 1)
    for i in range(2, 8): a('v_add_f32 v4, v%d, v4', R + i)
    for i in range(8, 12): a('v_fmac_f32 v4, v%d, v14', R + i)
    xred('v_add_f32')
    a('v_rcp_f32 v4, v4')
    a('s_nop 0')
    for i in range(12): a('v_mul_f32 v%d, v%d, v4', R + i, R + i)
    for d in range(6): a('v_cvt_pk_bf16_f32 v%d, v%d, v%d', 40 + d, R + 2 * d, R + 2 * d + 1)
    a('buffer_store_dwordx4 v[40:43], v15, s[8:11], s30 offen sc1')
    a('buffer_store_dwordx2 v[44:45], v16, s[8:11], s30 offen sc1')
    a('v_mov_b32 v4, s13')
    a('s_waitcnt vmcnt(0)')
    a('buffer_store_dword v4, v17, s[8:11], s35 offen sc1')
    a.label(lsk)
    a('s_add_u32 s12, s12, %d', NSET_X)
    a('s_cmp_lt_u32 s12, 64')
    a('s_cbranch_scc1 rx_loop')
    tl(a, 2)
    a('s_endpgm')

def gen_fin(a):
    a.label('role_fin')
    tl(a, 0)
    a('s_mul_i32 s12, s30, 9363')
    a('s_lshr_b32 s12, s12, 16')
    a('s_mul_i32 s31, s12, 7')
    a('s_sub_u32 s6, s30, s31')
    a('s_load_dwordx2 s[56:57], s[0:1], %d', KA['wd'])
    a('s_load_dwordx2 s[58:59], s[0:1], %d', KA['out'])
    lane_consts(a)
    RS = 144
    a('v_lshrrev_b32 v4, 3, v0')
    a('v_and_b32 v5, 7, v0')
    a('s_movk_i32 s30, 896')
    a('v_mul_u32_u24 v6, s30, v4')
    a('v_lshl_add_u32 v6, v5, 4, v6')
    a('s_movk_i32 s30, %d', RS)
    a('v_mul_u32_u24 v7, s30, v4')
    a('v_lshl_add_u32 v7, v5, 4, v7')
    a('s_mul_i32 s31, s3, %d', 224 * RS)
    a('v_add_u32 v7, s31, v7')
    a('v_lshrrev_b32 v8, 2, v2')
    a('v_lshl_add_u32 v8, v3, 3, v8')
    a('v_mul_u32_u24 v8, s30, v8')
    a('v_and_b32 v4, 3, v0')
    a('v_lshl_add_u32 v8, v4, 3, v8')
    a('v_add_u32 v8, s31, v8')
    a('s_waitcnt lgkmcnt(0)')
    a.srd(16, 56, FBYTES)
    a.srd(20, 58, XBYTES)
    ST = 16
    a('s_mul_i32 s31, s3, %d', 448 * 896)
    a('s_lshl_b32 s32, s6, 7')
    a('s_add_u32 s31, s31, s32')
    for p in range(56):
        a('buffer_load_dwordx4 %s, v6, s[16:19], s31 offen', V(ST + 4 * p, 4))
        if p < 55: a('s_add_u32 s31, s31, %d', 8 * 896)
    for rnd in range(2):
        a('s_waitcnt vmcnt(%d)', 28 if rnd == 0 else 0)
        for p in range(28): a('ds_write_b128 v7, %s offset:%d', V(ST + 4 * (rnd * 28 + p), 4), p * 8 * RS)
        for jj in range(7):
            for t in range(4):
                b = ((rnd * 7 + jj) * 4 + t) * 4
                a('ds_read_b64_tr_b16 %s, v8 offset:%d', A(b, 2), jj * 32 * RS + t * 32)
                a('ds_read_b64_tr_b16 %s, v8 offset:%d', A(b + 2, 2), jj * 32 * RS + t * 32 + 4 * RS)
            a('s_waitcnt lgkmcnt(0)')
    a('s_barrier')
    tl(a, 1)
    a('v_lshlrev_b32 v4, 2, v0')
    a('s_lshl_b32 s31, s6, 4')
    a('s_sub_u32 s31, s31, 56')
    a('v_add_u32 v5, s31, v4')
    a('v_add_u32 v4, %d, v4', HPROG - CNT)
    a('v_cmp_gt_u32 vcc, 14, v0')
    a('s_nop 1')
    a('v_cndmask_b32 v4, v5, v4, vcc')
    a('v_cmp_gt_u32 vcc, 18, v0')
    a('v_mov_b32 v5, %d', HPROG - CNT)
    a('s_nop 0')
    a('v_cndmask_b32 v4, v5, v4, vcc')
    a('v_and_b32 v5, 7, v0')
    a('v_lshlrev_b32 v5, 2, v5')
    a('s_lshl_b32 s31, s3, 5')
    a('s_add_u32 s31, s31, %d', XPROG - CNT)
    a('v_add_u32 v5, s31, v5')
    a('v_and_b32 v6, 3, v0')
    a('v_lshlrev_b32 v6, 4, v6')
    a('s_lshl_b32 s31, s3, 2')
    a('s_lshl_b32 s32, s6, 6')
    a('s_add_u32 s31, s31, s32')
    a('s_add_u32 s31, s31, %d', VPROG - CNT)
    a('v_add_u32 v6, s31, v6')
    a('v_cmp_gt_u32 s[60:61], 8, v2')
    a('v_lshlrev_b32 v8, 2, v2')
    RO = 272
    a('s_lshl_b32 s31, s3, 5')
    a('v_add_u32 v9, s31, v2')
    a('s_movk_i32 s30, %d', RO)
    a('v_mul_u32_u24 v9, s30, v9')
    a('v_lshl_add_u32 v9, v3, 4, v9')
    a('v_lshrrev_b32 v12, 3, v0')
    a('s_lshl_b32 s31, s3, 3')
    a('v_add_u32 v12, s31, v12')
    a('v_mul_u32_u24 v10, s30, v12')
    a('v_and_b32 v13, 7, v0')
    a('v_lshl_add_u32 v10, v13, 5, v10')
    a('s_movk_i32 s30, 896')
    a('v_mul_u32_u24 v11, s30, v12')
    a('v_lshl_add_u32 v11, v13, 4, v11')
    a('s_mov_b32 s50, %d', 128 * RO)
    HF, DF, AB, AA, GR = 16, 128, 192, 224, 14
    a.label('ro_loop')
    a('s_and_b32 s30, s12, 1')
    a('s_lshl_b32 s30, s30, 7')
    a('s_add_u32 s30, s30, 0x%x', CNT)
    a('s_lshr_b32 s31, s12, 1')
    a('s_add_u32 s31, s31, 1')
    a('v_mov_b32 v12, s31')
    poll_ge(a, 4, 's30', 12, 13)
    a('s_mul_i32 s30, s12, %d', VSLOT)
    a('s_mul_i32 s31, s3, 14336')
    a('s_add_u32 s30, s30, s31')
    a('s_add_u32 s30, s30, 0x%x', H1)
    for jj in range(14):
        if jj % 4 == 0:
            a('s_add_u32 s32, s30, %d', jj * 1024)
            a('s_add_u32 s33, s30, %d', jj * 1024 + 57344)
        for tt in range(2):
            a('buffer_load_dwordx4 %s, v1, s[8:11], s%d offen offset:%d sc1', V(HF + (jj * 2 + tt) * 4, 4), 32 + tt, (jj % 4) * 1024)
    a('s_mul_i32 s30, s12, %d', DSEG)
    a('s_lshl_b32 s31, s6, 16')
    a('s_add_u32 s30, s30, s31')
    a('s_lshl_b32 s31, s3, 12')
    a('s_add_u32 s30, s30, s31')
    a('s_add_u32 s30, s30, 0x%x', DD)
    for t in range(4):
        for hh in range(4):
            a('buffer_load_dwordx4 %s, v1, s[8:11], s30 offen offset:%d sc1', V(DF + (t * 4 + hh) * 4, 4), hh * 1024)
        if t < 3: a('s_add_u32 s30, s30, 16384')
    a('s_lshl_b32 s30, s12, 7')
    a('s_add_u32 s30, s30, 0x%x', GG)
    for tt in range(2): a('buffer_load_dword v%d, v8, s[8:11], s30 offen offset:%d sc1', GR + tt, 64 * tt)
    for jj in range(14):
        a('s_waitcnt vmcnt(%d)', 18 + 2 * (13 - jj))
        for tt in range(2):
            for t in range(4):
                c = AB + (t * 2 + tt) * 4
                a('v_mfma_f32_16x16x32_bf16 %s, %s, %s, %s', V(c, 4), A((jj * 4 + t) * 4, 4), V(HF + (jj * 2 + tt) * 4, 4), V(c, 4) if jj else '0')
    a('s_mul_i32 s31, s12, %d', 65536 // NSET_X + 1)
    a('s_lshr_b32 s31, s31, 16')
    a('s_mul_i32 s32, s31, %d', NSET_X)
    a('s_sub_u32 s32, s12, s32')
    a('s_lshl_b32 s32, s32, 7')
    a('v_add_u32 v12, s32, v5')
    a('s_and_b32 s32, s12, 1')
    a('s_lshl_b32 s32, s32, 9')
    a('v_add_u32 v13, s32, v6')
    a('v_cndmask_b32 v%d, v13, v12, s[60:61]', HF)
    a('s_add_u32 s31, s31, 1')
    a('s_lshr_b32 s32, s12, 1')
    a('s_add_u32 s32, s32, 1')
    a('v_mov_b32 v12, s31')
    a('v_mov_b32 v13, s32')
    a('v_cndmask_b32 v12, v13, v12, s[60:61]')
    a('s_mov_b32 s30, 0x%x', CNT)
    poll_ge(a, HF, 's30', 12, 13)
    PF, PM, VF = 20, 52, 60
    a('s_mul_i32 s30, s12, %d', PXSEG)
    a('s_add_u32 s30, s30, 0x%x', PX)
    a('s_lshl_b32 s31, s3, 13')
    a('s_add_u32 s31, s31, s30')
    a('s_add_u32 s32, s31, 4096')
    for i in range(8):
        a('buffer_load_dwordx4 %s, v1, s[8:11], s%d offen offset:%d sc1', V(PF + 4 * i, 4), 31 + (i >> 2), (i & 3) * 1024)
    a('s_lshl_b32 s31, s3, 11')
    a('s_add_u32 s31, s31, s30')
    a('s_add_u32 s31, s31, 32768')
    for tt in range(2): a('buffer_load_dwordx4 %s, v1, s[8:11], s31 offen offset:%d sc1', V(PM + 4 * tt, 4), 1024 * tt)
    a('s_mul_i32 s30, s12, %d', VSLOT)
    a('s_lshl_b32 s31, s3, 10')
    a('s_add_u32 s30, s30, s31')
    a('s_lshl_b32 s31, s6, 14')
    a('s_add_u32 s30, s30, s31')
    a('s_add_u32 s30, s30, 0x%x', VE)
    for t in range(4):
        a('buffer_load_dwordx4 %s, v1, s[8:11], s30 offen sc1', V(VF + 4 * t, 4))
        if t < 3: a('s_add_u32 s30, s30, 4096')
    for hh in range(4):
        a('s_waitcnt vmcnt(%d)', 6 + 2 * (3 - hh))
        for tt in range(2):
            for t in range(4):
                c = AA + (t * 2 + tt) * 4
                a('v_mfma_f32_16x16x32_bf16 %s, %s, %s, %s', V(c, 4), V(DF + (t * 4 + hh) * 4, 4), V(PF + (hh * 2 + tt) * 4, 4), V(c, 4) if hh else '0')
    a('s_waitcnt vmcnt(0)')
    for t in range(4):
        for tt in range(2):
            c = AA + (t * 2 + tt) * 4
            a('v_mfma_f32_16x16x32_bf16 %s, %s, %s, %s', V(c, 4), V(VF + 4 * t, 4), V(PM + 4 * tt, 4), V(c, 4))
    a('s_mul_i32 s30, s12, %d', 32 * 896)
    a('s_lshl_b32 s31, s6, 7')
    a('s_add_u32 s30, s30, s31')
    for t in range(4):
        for tt in range(2):
            i = (t * 2 + tt) * 4
            for r in range(4): a('v_sub_f32 v%d, v%d, v%d', AA + i + r, AA + i + r, AB + i + r)
            for r in range(4): a('v_fmac_f32 v%d, v%d, v%d', AB + i + r, GR + tt, AA + i + r)
            a('ds_write_b128 v9, %s offset:%d', V(AB + i, 4), tt * 16 * RO + t * 64)
    a('s_waitcnt lgkmcnt(0)')
    a('s_barrier')
    for w in range(4):
        for hf in range(2): a('ds_read_b128 %s, v10 offset:%d', V(20 + 8 * w + 4 * hf, 4), w * 32 * RO + 16 * hf)
    a('v_add_u32 v9, s50, v9')
    a('v_add_u32 v10, s50, v10')
    a('s_sub_u32 s50, 0, s50')
    for w in range(1, 4):
        a('s_waitcnt lgkmcnt(%d)', 2 * (3 - w))
        for i in range(4): a('v_pk_add_f32 %s, %s, %s', V(20 + 2 * i, 2), V(20 + 2 * i, 2), V(20 + 8 * w + 2 * i, 2))
    for d in range(4): a('v_cvt_pk_bf16_f32 v%d, v%d, v%d', 56 + d, 20 + 2 * d, 21 + 2 * d)
    a('buffer_store_dwordx4 v[56:59], v11, s[20:23], s30 offen sc1')
    a('s_add_u32 s12, s12, %d', NSET_O)
    a('s_cmp_lt_u32 s12, 64')
    a('s_cbranch_scc1 ro_loop')
    if DEV: a('s_waitcnt vmcnt(0)')
    tl(a, 2)
    if DBGT:
        a('s_sub_u32 s82, s82, s92')
        a('v_mov_b32 v4, s82')
        a('v_mov_b32 v5, 32')
        a('buffer_atomic_umax v4, v5, s[44:47], 0 offen')
        for k in (1, 2, 3):
            a('s_sub_u32 s82, s%d, s92', 93 + k)
            a('v_mov_b32 v%d, s82', 6 + k)
            a('buffer_atomic_umax v%d, v5, s[44:47], 0 offen offset:%d', 6 + k, 4 * k)
    a('s_endpgm')
```

```python
import sys
from common import *
import fold, team, workers

HEADER = open('cdna_kernels/%s.s.ref' % NAME).read().split('; Override launch geometry')[0]
MAIN_LDS = team.TEAM_LDS

def kd(name, vgpr, acc, sgpr):
    return '''.p2align 6
.amdhsa_kernel %s
  .amdhsa_next_free_vgpr %d
  .amdhsa_next_free_sgpr %d
  .amdhsa_accum_offset %d
  .amdhsa_group_segment_fixed_size 0
  .amdhsa_kernarg_size 120
  .amdhsa_user_sgpr_count 2
  .amdhsa_user_sgpr_kernarg_segment_ptr 1
  .amdhsa_system_sgpr_workgroup_id_x 1
.end_amdhsa_kernel
''' % (name, vgpr, sgpr, acc)

def build(mask, dev=False, aslist=False):
    a = Asm()
    workers.DEV = fold.DEV = bool(dev)
    fold.FINE = bool(dev) and 'fine' in dev
    if dev and 'ov' in dev.split('+'): fold.OVERLAP = True
    for x in (dev or '').split('+'):
        if x.startswith('fd'): fold.DEPTH = int(x[2:])
        if x.startswith('bo'): workers.BACKOFF = int(x[2:])
        if x.startswith('msl'): workers.MSLEEP = int(x[3:])
        if x == 'norot': fold.ROT = False
        if x == 'x3': workers.NSET_X, workers.NSET_O = 3, 13
        if x.startswith('fo'): workers.NSET_O = int(x[2:])
        if x.startswith('lead'): workers.LEAD = int(x[4:])
        if x == 'imm': workers.IMM = True
        if x == 'now0': workers.W0 = False
        if x == 'nodrot': workers.DROT = False
        if x == 'wst01': fold.WST = 'sc0 sc1'
        if x == 'wstnt': fold.WST = 'nt sc1'
        if x.startswith('af'): fold.AFIRST = int(x[2:]); fold.BYK = False
    workers.DBGT = fold.DBGT = bool(dev) and 'dbgt' in dev
    nm = NAME + '_kernel'
    a.l.append('.globl %s\n.p2align 8\n.type %s,@function' % (nm, nm))
    a.label(nm)
    a('s_cmp_ge_u32 s2, 256')
    a('s_cbranch_scc1 quit')
    if dev: a('s_memrealtime s[92:93]')
    a('s_load_dwordx8 s[64:71], s[0:1], 0')
    a('s_load_dwordx4 s[72:75], s[0:1], 32')
    a('s_load_dwordx2 s[76:77], s[0:1], %d', KA['gw'])
    a('s_load_dwordx4 s[52:55], s[0:1], %d', KA['dbg'])
    a('v_lshrrev_b32 v1, 6, v0')
    a('v_and_b32 v0, 63, v0')
    a('v_readfirstlane_b32 s3, v1')
    if not (dev and 'nocw' in dev):
        a('s_getpc_b64 s[32:33]')
        a.label('pcref')
        a('s_lshr_b32 s31, s2, 3')
        a('s_lshl_b32 s31, s31, 2')
        a('s_add_u32 s31, s31, s3')
        a('s_and_b32 s31, s31, 7')
        a('s_lshl_b32 s31, s31, 13')
        a('v_lshl_add_u32 v252, v0, 7, s31')
        a('v_min_u32 v252, codeend-pcref-4, v252')
        a('global_load_dword v253, v252, s[32:33]')
    a('s_waitcnt lgkmcnt(0)')
    a.srd(8, 54, team.OOB)
    a.srd(44, 52, 256)
    a.srd(60, 72, WBYTES)
    a.srd(16, 74, WBYTES)
    a.srd(36, 68, WBYTES)
    a.srd(56, 70, WBYTES)
    a.srd(20, 64, XBYTES)
    a.srd(24, 76, 896)
    a.srd(40, 66, 7168)
    fold.tl(a, 0)
    a('s_and_b32 s31, s2, 7')
    a('s_lshr_b32 s53, s2, 3')
    a('s_cmp_eq_u32 s31, 0')
    a('s_cbranch_scc1 die0')
    a('s_sub_u32 s31, s31, 1')
    a('s_lshl_b32 s31, s31, 5')
    a('s_add_u32 s53, s53, s31')
    fold.gen_fold(a)
    a('s_cmp_eq_u32 s5, 1')
    a('s_cselect_b32 s31, 192, 0')
    for x in (dev or '').split('+'):
        if x.startswith('rs'): a('s_mov_b32 s31, %d', 224 - int(x[2:]))
    a('s_add_u32 s30, s53, s31')
    a('s_cmp_ge_u32 s30, 224')
    a('s_cselect_b32 s31, 224, 0')
    a('s_sub_u32 s30, s30, s31')
    a('s_cmp_ge_u32 s30, %d', 56 + 16 * workers.NSET_X + 28 + 7 * workers.NSET_O)
    a('s_cbranch_scc1 quit')
    for bit, n, lab in ((2, 56, 'role_d'), (4, 16 * workers.NSET_X, 'role_xs'), (8, 28, 'role_f1'), (16, 7 * workers.NSET_O, 'role_fin')):
        a('s_cmp_lt_u32 s30, %d', n)
        a('s_cbranch_scc1 %s', lab if mask & bit else 'quit')
        a('s_sub_u32 s30, s30, %d', n)
        if lab == 'role_d':
            fold.wait_started(a)
    a.label('quit')
    a('s_endpgm')
    a.label('die0')
    l = a.new('nj')
    a('s_cmp_eq_u32 s53, 31')
    a('s_cbranch_scc0 %s', l)
    fold.janitor(a)
    a.label(l)
    fold.misc_loads(a)
    a('s_getreg_b32 s31, hwreg(HW_REG_XCC_ID)')
    a('s_and_b32 s31, s31, 15')
    a('s_add_u32 s31, s31, 1')
    a('v_mov_b32 v3, s31')
    a('s_lshl_b32 s32, s53, 2')
    a('s_cmp_eq_u32 s3, 0')
    a('s_cselect_b32 s32, s32, 256')
    a('buffer_store_dword v3, off, s[44:47], s32 sc1')
    fold.unit_fill(a)
    a('s_waitcnt vmcnt(0)')
    fold.misc_rest(a)
    fold.wait_janitor(a)
    a('s_add_u32 s34, s53, 224')
    fold.set_flag(a, FLG_M, 's34')
    a('s_mov_b32 s30, s53')
    team.gen_team(a, dev)
    workers.gen_d(a, vtail=bool(mask & 16))
    workers.gen_xs(a)
    workers.gen_f1(a)
    workers.gen_fin(a)
    a.label('codeend')
    s = HEADER
    if aslist: s += '; @launch kernel=%s grid=(256,1,1) block=(256,1,1) lds=%d\n' % (nm, MAIN_LDS)
    else: s += '; @launch grid=(256,1,1) block=(256,1,1) lds=%d\n' % MAIN_LDS
    s += '.amdgcn_target "amdgcn-amd-amdhsa--gfx950"\n.text\n' + a.text()
    s += '.section .rodata,"a"\n' + kd(nm, 512, 256, 100)
    return s

if __name__ == '__main__':
    out = sys.argv[1]
    dev = sys.argv[3] if len(sys.argv) > 3 else False
    open(out, 'w').write(build(int(sys.argv[2]), dev, aslist='/bench/' in out and 'dbgt' not in (dev or '') and 'amp' not in (dev or '')))
```

```python
from common import *
SPIN = 400000
DEV = False
GLOOP = False
ROT = True
DEPTH = 5
FINE = False
DBGT = False
OVERLAP = False
AFIRST = 16
BYK = True
WST = 'sc1'
LATEFLAG = False
LA, LB, LG = 0, 32768, 147456

def tl(a, k, base=0x3F20000):
    if DEV:
        a('s_memrealtime s[82:83]')
        a('s_waitcnt lgkmcnt(0)')
        a('s_lshl_b32 s84, s2, 4')
        a('s_add_u32 s84, s84, 0x%x', base)
        a('v_mov_b32 v250, s82')
        a('buffer_store_dword v250, off, s[8:11], s84 offset:%d', 4 * k)
        if DBGT and k:
            a('s_mov_b32 s%d, s82', 93 + k)

def rt(a, r):
    if FINE:
        a('s_memrealtime s[%d:%d]', r, r + 1)
        a('s_waitcnt lgkmcnt(0)')

def claim_share(a):
    l = a.new('cs')
    a('v_mov_b32 v19, %d', LG + 2048)
    a('s_cmp_eq_u32 s3, 0')
    a('s_cbranch_scc0 %s', l)
    a('v_readfirstlane_b32 s31, v18')
    a('s_nop 1')
    a('v_mov_b32 v18, s31')
    a('ds_write_b32 v19, v18')
    a('s_waitcnt lgkmcnt(0)')
    a.label(l)

def claim_read(a):
    a('ds_read_b32 v18, v19')
    a('s_waitcnt lgkmcnt(0)')
    a('v_readfirstlane_b32 s31, v18')
    a('s_bitcmp1_b32 s31, s53')

def wait_words(a, voff, soff, width, wave0_only=True, R=244):
    lp, ok = a.new('ww'), a.new('wk')
    if wave0_only:
        a('s_cmp_eq_u32 s3, 0')
        a('s_cbranch_scc0 %s', ok)
    a('s_mov_b32 s14, 0')
    a.label(lp)
    srd = 's[44:47]' if soff is None else 's[8:11]'
    if width == 4:
        a('buffer_load_dwordx4 %s, %s, %s, %s offen sc1', V(R, 4), voff, srd, soff or '0')
        a('s_waitcnt vmcnt(0)')
        a('v_min3_u32 v%d, v%d, v%d, v%d', R, R, R + 1, R + 2)
        a('v_min_u32 v%d, v%d, v%d', R, R, R + 3)
    else:
        a('buffer_load_dword v%d, %s, %s, %s offen sc1', R, voff, srd, soff or '0')
        a('s_waitcnt vmcnt(0)')
    a('v_cmp_eq_u32 vcc, 0, v%d', R)
    a('s_cbranch_vccz %s', ok)
    a('s_sleep 3')
    a('s_add_u32 s14, s14, 1')
    a('s_cmp_lt_u32 s14, %d', SPIN)
    a('s_cbranch_scc1 %s', lp)
    a('s_endpgm')
    a.label(ok)
    if wave0_only: a('s_barrier')

def wait_all(a, base, n, R=244):
    a('v_min_u32 v%d, %d, v0', R - 1, n // 4 - 1)
    a('v_lshlrev_b32 v%d, 4, v%d', R - 1, R - 1)
    a('s_mov_b32 s31, 0x%x', base)
    wait_words(a, 'v%d' % (R - 1), 's31', 4, R=R)

def wait_head(a, base, hreg, n=14, R=244, w0=True):
    a('v_min_u32 v%d, %d, v0', R - 1, n - 1)
    a('v_lshlrev_b32 v%d, 2, v%d', R - 1, R - 1)
    a('s_mul_i32 s31, %s, 56', hreg)
    a('s_add_u32 s31, s31, 0x%x', base)
    wait_words(a, 'v%d' % (R - 1), 's31', 1, wave0_only=w0, R=R)

def set_flag(a, base, idx, younger=0, also=None):
    a('s_waitcnt vmcnt(%d)', younger)
    a('s_barrier')
    l = a.new('sf')
    a('s_cmp_eq_u32 s3, 0')
    a('s_cbranch_scc0 %s', l)
    a('s_lshl_b32 s31, %s, 2', idx)
    a('s_add_u32 s31, s31, 0x%x', base)
    a('v_mov_b32 v244, 1')
    a('buffer_store_dword v244, off, s[8:11], s31 sc1')
    if also:
        a('s_add_u32 s31, s31, %d', also - base)
        a('buffer_store_dword v244, off, s[8:11], s31 sc1')
    a.label(l)

def misc_loads(a):
    a('s_lshl_b32 s31, s3, 6')
    a('v_add_u32 v240, s31, v0')
    a('v_lshrrev_b32 v225, 3, v240')
    a('v_and_b32 v224, 7, v0')
    a('s_movk_i32 s31, 896')
    a('v_mul_u32_u24 v226, s31, v224')
    a('v_lshlrev_b32 v230, 4, v225')
    a('v_add_u32 v226, v226, v230')
    a('v_cmp_gt_u32 vcc, 192, v240')
    a('v_mov_b32 v227, 0x7000000')
    a('v_lshlrev_b32 v228, 4, v240')
    a('v_cndmask_b32 v227, v227, v226, vcc')
    a('s_mul_i32 s30, s2, 7168')
    a('buffer_load_dwordx4 v[208:211], v226, s[20:23], s30 offen')
    a('buffer_load_dwordx4 v[212:215], v227, s[20:23], s30 offen offset:512')
    a('buffer_load_dwordx4 v[216:219], v230, s[24:27], 0 offen')
    a('buffer_load_dwordx4 v[220:223], v230, s[24:27], 0 offen offset:512')
    return 4

def misc_rest(a):
    a('s_lshr_b32 s32, s2, 1')
    a('s_mul_i32 s32, s32, 14336')
    a('s_and_b32 s30, s2, 1')
    a('s_lshl_b32 s30, s30, 7')
    a('s_add_u32 s32, s32, s30')
    a('s_add_u32 s32, s32, 0x%x', XF)
    a('s_add_u32 s30, s32, 8192')
    a('v_cmp_gt_u32 vcc, 192, v240')
    a('v_lshlrev_b32 v233, 8, v225')
    a('v_lshl_add_u32 v233, v224, 4, v233')
    a('v_mov_b32 v232, 0x8000000')
    a('v_cndmask_b32 v232, v232, v233, vcc')
    a('buffer_store_dwordx4 v[208:211], v233, s[8:11], s32 offen sc1')
    a('buffer_store_dwordx4 v[212:215], v232, s[8:11], s30 offen sc1')
    a('v_mov_b32 v234, 0')
    for d in range(8): a('v_dot2_f32_bf16 v234, v%d, v%d, v234', 208 + d, 216 + d)
    a('v_lshlrev_b32 v232, 7, v224')
    a('v_lshl_add_u32 v232, v225, 2, v232')
    a('v_add_u32 v232, %d, v232', LG)
    a('s_nop 0')
    a('ds_write_b32 v232, v234')
    a('s_waitcnt lgkmcnt(0)')
    a('s_barrier')
    lg = a.new('ng')
    a('s_cmp_eq_u32 s3, 3')
    a('s_cbranch_scc0 %s', lg)
    a('v_lshlrev_b32 v232, 4, v0')
    a('v_add_u32 v232, %d, v232', LG)
    a('ds_read_b128 v[236:239], v232')
    a('s_waitcnt lgkmcnt(0)')
    a('v_add_f32 v233, v236, v237')
    a('v_add_f32 v238, v238, v239')
    a('v_add_f32 v233, v233, v238')
    for ctl in ('quad_perm:[1,0,3,2]', 'quad_perm:[2,3,0,1]', 'row_half_mirror'):
        a('s_nop 1')
        a('v_add_f32_dpp v233, v233, v233 %s row_mask:0xf bank_mask:0xf', ctl)
    a('v_mul_f32 v233, 0x%x, v233', fbits(-LOG2E))
    a('v_exp_f32 v233, v233')
    a('s_nop 0')
    a('v_add_f32 v233, 1.0, v233')
    a('v_rcp_f32 v233, v233')
    a('v_lshrrev_b32 v232, 3, v0')
    a('v_lshlrev_b32 v232, 2, v232')
    a('s_lshl_b32 s30, s2, 5')
    a('s_add_u32 s30, s30, 0x%x', GG)
    a('buffer_store_dword v233, v232, s[8:11], s30 offen sc1')
    a.label(lg)

def unit_fill(a):
    a('v_cmp_gt_u32 vcc, 192, v240')
    a('v_mov_b32 v229, 0x8000000')
    a('v_add_u32 v232, 4096, v228')
    a('v_cndmask_b32 v229, v229, v232, vcc')
    for r in range(8): a('v_mov_b32 v%d, -1', 200 + r)
    a('s_mul_i32 s30, s53, 7168')
    a('s_add_u32 s30, s30, 0x%x', U0)
    for k in (1, 3, 4):
        a('s_add_u32 s31, s30, %d', 32 * k * UNIT)
        if k == 4:
            a('s_cmp_lt_u32 s53, %d', NUNITS - 128)
            a('s_cselect_b32 s31, s31, 0x8000000')
        a('buffer_store_dwordx4 v[200:203], v228, s[8:11], s31 offen sc1')
        a('buffer_store_dwordx4 v[204:207], v229, s[8:11], s31 offen sc1')
    lm0, lst = a.new('m0'), a.new('fs')
    a('s_cmp_eq_u32 s53, 10')
    a('s_cbranch_scc0 %s', lst)
    a.label(lm0)
    a('v_bfe_u32 v232, v0, 2, 2')
    a('v_and_b32 v233, 1, v0')
    a('v_lshl_add_u32 v232, v232, 1, v233')
    a('s_movk_i32 s31, 896')
    a('v_mul_u32_u24 v232, s31, v232')
    a('v_lshrrev_b32 v233, 4, v240')
    a('v_lshl_add_u32 v232, v233, 5, v232')
    a('v_bfe_u32 v233, v0, 1, 1')
    a('v_lshl_add_u32 v232, v233, 2, v232')
    for r in range(2):
        for q in range(4): a('buffer_load_dword v%d, v232, s[40:43], 0 offen offset:%d', 200 + 4 * r + q, 8 * q + 512 * r)
    a('s_waitcnt vmcnt(0)')
    for r in range(8): a('v_min_u32 v%d, -2, v%d', 200 + r, 200 + r)
    a.label(lst)
    a('s_add_u32 s31, s30, %d', 64 * UNIT)
    for sr in (30, 31):
        a('buffer_store_dwordx4 v[200:203], v228, s[8:11], s%d offen sc1', sr)
        a('buffer_store_dwordx4 v[204:207], v229, s[8:11], s%d offen sc1', sr)

def wait_janitor(a):
    a('v_mov_b32 v243, 252')
    lp = a.new('wj')
    a('s_cmp_eq_u32 s3, 0')
    a('s_cbranch_scc0 %s', lp)
    wait_words(a, 'v243', None, 1, wave0_only=False)
    a.label(lp)

def janitor(a):
    for r in range(4): a('v_mov_b32 v%d, 0', 244 + r)
    a('v_lshlrev_b32 v243, 4, v0')
    a('s_mov_b32 s31, 0x%x', CNT)
    l = a.new('jn')
    a('s_cmp_eq_u32 s3, 0')
    a('s_cbranch_scc0 %s', l)
    for i in range(4): a('buffer_store_dwordx4 v[244:247], v243, s[8:11], s31 offen offset:%d sc1', 1024 * i)
    a('s_add_u32 s31, s31, 4096')
    a('buffer_store_dwordx4 v[244:247], v243, s[8:11], s31 offen sc1')
    a('buffer_store_dwordx4 v[244:247], v243, s[8:11], s31 offen offset:1024 sc1')
    a('s_waitcnt vmcnt(0)')
    a('s_sub_u32 s31, 2, s13')
    a('v_mov_b32 v244, s31')
    a('buffer_store_dword v244, off, s[44:47], 0 offset:252 sc1')
    a.label(l)

def gen_fold(a):
    a('s_mul_i32 s4, s53, 4682')
    a('s_lshr_b32 s4, s4, 16')
    a('s_mul_i32 s31, s4, 14')
    a('s_sub_u32 s31, s53, s31')
    a('s_and_b32 s6, s31, 1')
    a('s_lshr_b32 s7, s31, 1')
    a('v_and_b32 v2, 15, v0')
    a('v_lshrrev_b32 v3, 4, v0')
    a('v_lshlrev_b32 v1, 4, v0')
    a('v_lshrrev_b32 v4, 5, v0')
    a('v_and_b32 v5, 31, v0')
    a('v_xor_b32 v5, v5, v4')
    a('s_and_b32 s31, s3, 1')
    a('s_lshl_b32 s30, s31, 3')
    a('v_xor_b32 v5, s30, v5')
    a('v_lshlrev_b32 v5, 4, v5')
    a('v_lshl_add_u32 v4, v4, 13, v5')
    a('s_lshl_b32 s28, s7, 2')
    a('s_add_u32 s28, s28, s3')
    a('s_lshl_b32 s28, s28, 17')
    a('s_lshl_b32 s29, s4, 9')
    a('s_add_u32 s28, s28, s29')
    a('s_lshl_b32 s48, s3, 13')
    a('s_lshl_b32 s31, s6, %d', 12)
    a('s_xor_b32 s54, s48, s31')
    a('s_lshl_b32 s31, s6, 16')
    a('s_xor_b32 s55, s28, s31')
    a('s_lshl_b32 s31, s6, 6')
    a('v_xor_b32 v17, s31, v4')
    def aside(srd, rng=range(8)):
        for ii in rng:
            a('v_xor_b32 v5, %d, v17', ((2 * (ii & 1)) ^ (4 * (ii >> 2))) << 4)
            a('s_xor_b32 m0, s54, %d', 1024 * ii)
            a('s_xor_b32 s33, s55, %d', 2 * ii * 8192)
            a('buffer_load_dwordx4 v5, %s, s33 offen lds', srd)
    a('s_mul_i32 s35, s4, 229376')
    a('s_mul_i32 s31, s3, 64*896')
    a('s_add_u32 s35, s35, s31')
    a('s_mul_i32 s31, s6, 448')
    a('s_add_u32 s35, s35, s31')
    a('s_mul_i32 s49, s3, 28672')
    a('s_add_u32 s49, s49, %d', LB)
    a('s_mul_i32 s50, s6, 224')
    a('s_mul_i32 s31, s3, 56')
    a('s_add_u32 s50, s50, s31')
    a('s_lshl_b32 s50, s50, 13')
    a('s_add_u32 s50, s50, s29')
    def issue(mat, mid):
        if mat:
            aside('s[60:63]', range(4))
            a('s_movk_i32 s31, 2341')
            a('s_movk_i32 s32, 896')
            for z in range(7):
                a('v_add_u32 v5, %d, v0', 64 * z)
                a('v_mul_u32_u24 v6, s31, v5')
                a('v_lshrrev_b32 v6, 16, v6')
                a('v_mul_u32_u24 v13, 28, v6')
                a('v_sub_u32 v13, v5, v13')
                a('v_mul_u32_u24 v6, s32, v6')
                a('v_lshl_add_u32 v%d, v13, 4, v6', 20 + z)
            for grp in range(4):
                a('s_lshr_b32 s31, s7, %d', 1 if BYK and ROT else 0)
                a('s_add_u32 s31, s31, %d', grp)
                a('s_and_b32 s31, s31, 3')
                a('s_mul_i32 s32, s31, 14336')
                a('s_add_u32 s32, s32, s35')
                a('s_mul_i32 s31, s31, 7168')
                a('s_add_u32 s31, s31, s49')
                for z in range(7):
                    a('s_add_u32 m0, s31, %d', z * 1024)
                    a('s_nop 0')
                    a('buffer_load_dwordx4 v%d, s[16:19], s32 offen lds', 20 + z)
                if grp == 0 and mid: mid()
            aside('s[60:63]', range(4, 8))
            return 21
        aside('s[36:39]', range(4))
        for q in range(7):
            a('s_add_u32 s31, s7, %d', q)
            a('s_cmp_ge_u32 s31, 7')
            a('s_cselect_b32 s32, 7, 0')
            a('s_sub_u32 s31, s31, s32')
            a('s_lshl_b32 s32, s31, 16')
            a('s_add_u32 s32, s32, s50')
            a('s_and_b32 s30, s31, 1')
            a('s_lshl_b32 s30, s30, 7')
            a('v_xor_b32 v6, s30, v4')
            a('s_lshl_b32 s31, s31, 12')
            a('s_add_u32 s31, s31, s49')
            for i in range(4):
                a('v_xor_b32 v5, %d, v6', (2 * i) << 4)
                a('s_add_u32 m0, s31, %d', 1024 * i)
                a('s_nop 0')
                a('buffer_load_dwordx4 v5, s[56:59], s32 offen lds')
                if i < 3: a('s_add_u32 s32, s32, 16384')
            if q == 0 and mid: mid()
        aside('s[36:39]', range(4, 8))
        return 24
    def raddr():
        a('s_lshr_b32 s51, s3, 1')
        a('s_and_b32 s52, s3, 1')
        a('v_xor_b32 v6, v3, v2')
        a('v_lshlrev_b32 v6, 4, v6')
        a('v_lshrrev_b32 v7, 2, v2')
        a('v_lshlrev_b32 v7, 3, v7')
        a('v_and_b32 v8, 3, v0')
        a('v_add_u32 v7, v7, v8')
        a('v_lshl_add_u32 v7, v7, 9, v6')
        a('s_lshl_b32 s30, s51, 14')
        a('v_add_u32 v7, s30, v7')
        a('v_lshl_add_u32 v9, v2, 9, v6')
        a('s_mul_i32 s30, s52, 57344')
        a('s_add_u32 s30, s30, %d', LB)
        a('v_add_u32 v9, s30, v9')
        a('v_lshrrev_b32 v10, 2, v2')
        a('v_lshl_add_u32 v10, v3, 3, v10')
        a('s_movk_i32 s30, 448')
        a('v_mul_u32_u24 v10, s30, v10')
        a('v_lshl_add_u32 v10, v8, 3, v10')
        a('s_mul_i32 s30, s52, 224')
        a('s_add_u32 s30, s30, %d', LB)
        a('v_add_u32 v10, s30, v10')
    def warm(mat):
        a('v_bfe_u32 v5, v0, 2, 3')
        a('v_lshlrev_b32 v5, 13, v5')
        a('v_lshl_add_u32 v5, v8, 7, v5')
        a('s_lshl_b32 s30, s6, 16')
        a('s_add_u32 s30, s30, s28')
        a('buffer_load_dword v14, v5, %s, s30 offen', 's[60:63]' if mat else 's[36:39]')
        if BYK and ROT: return
        if mat:
            a('v_lshrrev_b32 v5, 2, v0')
            a('v_min_u32 v5, 9, v5')
            a('s_movk_i32 s31, 896')
            a('v_mul_u32_u24 v5, s31, v5')
            a('v_lshl_add_u32 v5, v8, 7, v5')
            a('s_mul_i32 s31, s7, 9*896')
            a('s_add_u32 s31, s31, s35')
            a('buffer_load_dword v15, v5, s[16:19], s31 offen')
        else:
            a('s_lshl_b32 s31, s7, 16')
            a('s_add_u32 s31, s31, s50')
            a('buffer_load_dword v15, v5, s[56:59], s31 offen')
    ACC, AF, BF = 48, 104, 168
    PFD = DEPTH
    def gemm(mat):
        seq = [(es, t) for es in range(8) for t in range(7)]
        def rdA(es):
            a('v_xor_b32 v11, %d, v7', es << 6)
            for u in range(2): a('ds_read_b128 %s, v11 offset:%d', V(AF + 8 * (es & 1) + 4 * u, 4), LA + 2048 * u)
        def rdB(i):
            es, t = seq[i]
            b = BF + 4 * (i % 8)
            if t == 0:
                if mat == 0: a('v_xor_b32 v12, %d, v9', es << 6)
                else: a('v_add_u32 v12, %d, v10', es * 14336)
            if mat == 0: a('ds_read_b128 %s, v12 offset:%d', V(b, 4), t * 8192)
            else:
                a('ds_read_b64_tr_b16 %s, v12 offset:%d', V(b, 2), t * 32)
                a('ds_read_b64_tr_b16 %s, v12 offset:%d', V(b + 2, 2), t * 32 + 1792)
        per = 2 if mat else 1
        rdA(0)
        issued = []
        for i in range(PFD): rdB(i); issued.append(per)
        for i, (es, t) in enumerate(seq):
            n = 0
            if t == 0 and es < 7: rdA(es + 1); n += 2
            if i + PFD < len(seq): rdB(i + PFD); n += per
            issued.append(n)
            a('s_waitcnt lgkmcnt(%d)', sum(issued[i + 1:]))
            for u in range(2):
                c = ACC + (t * 2 + u) * 4
                a('v_mfma_f32_16x16x32_bf16 %s, %s, %s, %s', V(c, 4), V(AF + 8 * (es & 1) + 4 * u, 4), V(BF + 4 * (i % 8), 4), V(c, 4) if es else '0')
    def zero_acc():
        for r in range(56): a('v_mov_b32 v%d, 0', ACC + r)
    def gemm_loop(mat):
        per = 2 if mat else 1
        P = 5
        def rdA(par):
            a('v_xor_b32 v11, s30, v7')
            for u in range(2): a('ds_read_b128 %s, v11 offset:%d', V(AF + 8 * par + 4 * u, 4), LA + 2048 * u)
        def addrB():
            if mat == 0: a('v_xor_b32 v12, s30, v9')
            else: a('v_add_u32 v12, 14336, v12')
        def rdB(t):
            b = BF + 4 * t
            if mat == 0: a('ds_read_b128 %s, v12 offset:%d', V(b, 4), t * 8192)
            else:
                a('ds_read_b64_tr_b16 %s, v12 offset:%d', V(b, 2), t * 32)
                a('ds_read_b64_tr_b16 %s, v12 offset:%d', V(b + 2, 2), t * 32 + 1792)
        a('s_mov_b32 s30, 0')
        rdA(0)
        a('v_mov_b32 v12, v%d', 10 if mat else 9)
        for t in range(P): rdB(t)
        lp = a.new('gl')
        a.label(lp)
        for par in range(2):
            for t in range(7):
                if t == 0:
                    a('s_add_u32 s30, s30, 64')
                    rdA(1 - par)
                if t + P == 7: addrB()
                rdB((t + P) % 7)
                a('s_waitcnt lgkmcnt(%d)', P * per + (2 if t < P else 0))
                for u in range(2):
                    c = ACC + (t * 2 + u) * 4
                    a('v_mfma_f32_16x16x32_bf16 %s, %s, %s, %s', V(c, 4), V(AF + 8 * par + 4 * u, 4), V(BF + 4 * t, 4), V(c, 4))
        a('s_cmp_lt_u32 s30, 512')
        a('s_cbranch_scc1 %s', lp)
        a('s_waitcnt lgkmcnt(0)')
    def store(mat):
        a('s_mul_i32 s30, s4, 28')
        a('s_mul_i32 s31, s6, 14')
        a('s_add_u32 s30, s30, s31')
        a('s_mul_i32 s31, s52, 7')
        a('s_add_u32 s30, s30, s31')
        a('s_mul_i32 s30, s30, 14')
        a('s_lshl_b32 s31, s7, 1')
        a('s_add_u32 s30, s30, s31')
        a('s_add_u32 s30, s30, s51')
        a('s_lshl_b32 s30, s30, 10')
        if mat: a('s_add_u32 s30, s30, 0x%x', WF_C)
        a('s_mov_b32 s31, 0x%x', fbits(LOG2E / 16.0))
        for t in range(7):
            c = ACC + t * 8
            if mat == 0:
                for r in range(8): a('v_mul_f32 v%d, s31, v%d', c + r, c + r)
            o = 136 + 4 * t
            for d in range(4): a('v_cvt_pk_bf16_f32 v%d, v%d, v%d', o + d, c + 2 * d, c + 2 * d + 1)
            a('buffer_store_dwordx4 %s, v1, s[8:11], s30 offen %s', V(o, 4), WST)
            if t < 6: a('s_add_u32 s30, s30, 14336')
    def flow(m1):
        m2 = 1 - m1
        n = issue(m1, lambda: misc_loads(a))
        a('buffer_load_dword v16, off, s[44:47], 0 offset:252 sc1')
        raddr()
        if GLOOP: zero_acc()
        rt(a, 86)
        a('s_waitcnt vmcnt(0)')
        claim_share(a)
        a('s_barrier')
        lc = a.new('ck')
        a('s_cmp_eq_u32 s12, 0')
        a('s_cbranch_scc1 %s', lc)
        claim_read(a)
        a('s_cbranch_scc1 die0')
        a.label(lc)
        rt(a, 90)
        tl(a, 2)
        warm(m2)
        gemm_loop(m1) if GLOOP else gemm(m1)
        rt(a, 80)
        store(m1)
        misc_rest(a)
        rt(a, 94)
        lj = a.new('js')
        a('v_cmp_eq_u32 vcc, 0, v16')
        a('s_cbranch_vccz %s', lj)
        a('v_mov_b32 v243, 252')
        wait_words(a, 'v243', None, 1, wave0_only=False, R=16)
        a.label(lj)
        a('v_readfirstlane_b32 s5, v16')
        if OVERLAP: issue(m2, None)
        set_flag(a, FLG_C if m1 else FLG_A, 's53', 36 if OVERLAP else 0, also=FLG_M)
        tl(a, 3)
        if not OVERLAP: issue(m2, None)
        if GLOOP: zero_acc()
        a('s_waitcnt vmcnt(0)')
        a('s_barrier')
        gemm_loop(m2) if GLOOP else gemm(m2)
        store(m2)
        set_flag(a, FLG_C if m2 else FLG_A, 's53')
        tl(a, 1)
        if FINE:
            a('s_lshl_b32 s84, s2, 5')
            a('s_add_u32 s84, s84, 0x3F40000')
            a('s_cmp_eq_u32 s3, 0')
            a('s_cselect_b32 s84, s84, 0x8000000')
            for k, r in enumerate((92, 86, 88, 90, 78, 80, 94)):
                a('v_mov_b32 v250, s%d', r)
                a('buffer_store_dword v250, off, s[8:11], s84 offset:%d', 4 * k)
                a('s_nop 1')
    l1, l2 = a.new('fa'), a.new('fe')
    if BYK: a('s_bitcmp1_b32 s7, 0')
    else: a('s_cmp_ge_u32 s4, %d', AFIRST)
    a('s_cbranch_scc1 %s', l1)
    flow(1)
    a('s_branch %s', l2)
    a.label(l1)
    flow(0)
    a.label(l2)

def wait_started(a):
    lp, ok = a.new('ws'), a.new('wo')
    a('s_cmp_eq_u32 s3, 0')
    a('s_cbranch_scc0 %s', ok)
    a('s_mov_b32 s14, 0')
    a('s_mov_b32 s31, 0x%x', GO)
    a.label(lp)
    a('buffer_load_dword v244, off, s[8:11], s31 sc1')
    a('s_waitcnt vmcnt(0)')
    a('v_cmp_eq_u32 vcc, 0, v244')
    a('s_cbranch_vccz %s', ok)
    a('s_sleep 16')
    a('s_add_u32 s14, s14, 1')
    a('s_cmp_lt_u32 s14, %d', SPIN)
    a('s_cbranch_scc1 %s', lp)
    a('s_endpgm')
    a.label(ok)
    a('s_barrier')

def wait_wave_heads(a):
    a('v_min_u32 v243, 55, v0')
    a('v_lshlrev_b32 v243, 2, v243')
    a('s_mul_i32 s31, s3, 224')
    a('s_add_u32 s31, s31, 0x%x', FLG_C)
    wait_words(a, 'v243', 's31', 1, wave0_only=False)

def wait_part(a, base, hreg, nheads, odd):
    a('v_min_u32 v243, %d, v0', 14 * nheads - 1)
    a('s_movk_i32 s31, 4682')
    a('v_mul_u32_u24 v242, s31, v243')
    a('v_lshrrev_b32 v242, 16, v242')
    a('v_mul_u32_u24 v242, 14, v242')
    a('v_sub_u32 v241, v243, v242')
    a('v_and_b32 v241, 2, v241')
    a('v_cmp_eq_u32 vcc, %d, v241', 2 if odd else 0)
    a('v_add_u32 v242, %d, v242', 2 if odd else 0)
    a('s_nop 0')
    a('v_cndmask_b32 v243, v242, v243, vcc')
    a('v_lshlrev_b32 v243, 2, v243')
    a('s_mul_i32 s31, %s, 56', hreg)
    a('s_add_u32 s31, s31, 0x%x', base)
    wait_words(a, 'v243', 's31', 1, wave0_only=False)

def wait_head_and_misc(a, base, hreg, n, R):
    lp, ok = a.new('wh'), a.new('wi')
    a('v_min_u32 v%d, %d, v0', R - 1, n - 1)
    a('v_lshlrev_b32 v%d, 2, v%d', R - 1, R - 1)
    a('s_mul_i32 s31, %s, 56', hreg)
    a('s_add_u32 s31, s31, 0x%x', base)
    a('s_mov_b32 s32, 0x%x', FLG_M)
    a('s_mov_b32 s14, 0')
    a.label(lp)
    a('buffer_load_dwordx4 %s, v1, s[8:11], s32 offen sc1', V(R, 4))
    a('buffer_load_dword v%d, v%d, s[8:11], s31 offen sc1', R + 4, R - 1)
    a('s_waitcnt vmcnt(0)')
    a('v_min3_u32 v%d, v%d, v%d, v%d', R, R, R + 1, R + 2)
    a('v_min3_u32 v%d, v%d, v%d, v%d', R, R, R + 3, R + 4)
    a('v_cmp_eq_u32 vcc, 0, v%d', R)
    a('s_cbranch_vccz %s', ok)
    a('s_sleep 3')
    a('s_add_u32 s14, s14, 1')
    a('s_cmp_lt_u32 s14, %d', SPIN)
    a('s_cbranch_scc1 %s', lp)
    a('s_endpgm')
    a.label(ok)

def wait_stat(a, word, mask_sgpr, tmp):
    lp = a.new('wt')
    a('s_mov_b32 s31, 0x%x', STAT + 4 * word)
    a('s_mov_b32 s14, 0')
    a.label(lp)
    a('buffer_load_dword v%d, off, s[8:11], s31 sc1', tmp)
    a('s_add_u32 s14, s14, 1')
    a('s_cmp_lt_u32 s14, %d', SPIN)
    a('s_cbranch_scc0 tdie')
    a('s_waitcnt vmcnt(0)')
    a('v_readfirstlane_b32 s32, v%d', tmp)
    a('s_and_b32 s32, s32, %s', mask_sgpr)
    a('s_cmp_eq_u32 s32, %s', mask_sgpr)
    a('s_cbranch_scc0 %s', lp)

def wait_c_misc_w0(a, early_only):
    lp, ok = a.new('wc'), a.new('wd')
    a('s_cmp_eq_u32 s3, 0')
    a('s_cbranch_scc0 %s', ok)
    a('v_min_u32 v23, 55, v0')
    a('v_lshlrev_b32 v23, 4, v23')
    a('s_mov_b32 s31, 0x%x', FLG_C)
    a('s_mov_b32 s32, 0x%x', FLG_M)
    a('s_mov_b32 s14, 0')
    a.label(lp)
    if early_only: a('buffer_load_dwordx4 v[24:27], v1, s[8:11], s32 offen sc1')
    else: a('buffer_load_dwordx4 v[24:27], v23, s[8:11], s31 offen sc1')
    a('s_waitcnt vmcnt(0)')
    a('v_min3_u32 v24, v24, v25, v26')
    a('v_min_u32 v24, v24, v27')
    a('v_cmp_eq_u32 vcc, 0, v24')
    a('s_cbranch_vccz %s', ok)
    a('s_sleep 4')
    a('s_add_u32 s14, s14, 1')
    a('s_cmp_lt_u32 s14, %d', SPIN)
    a('s_cbranch_scc1 %s', lp)
    a('s_endpgm')
    a.label(ok)
    a('s_barrier')
```

```python
from common import *
import fold

L_MEM = 0
L_T = 7680
L_S = L_T + 8192
L_X = L_S + 12288
ZXS = 28672 + 512
KT = 14336 + 16
L_C = 7680
L_V = L_C + 4096
L_D = 32768
L_W = 98304
TEAM_LDS = L_W + 57344
SPIN = 200000
OOB = 0x8000000
NTEAM = 32
WB = False

ORD_S = ([(0, 0), (1, 0), (0, 1), (1, 1), (2, 0), (3, 0), (2, 1), (3, 1), (4, 0), (5, 0), (6, 0), (4, 1), (5, 1), (6, 1)]
         + [(t, 2) for t in range(7)] + [(t, l) for t in range(7) for l in range(3, 7)])
ORD_C = [(t, l) for l in range(4) for t in range(8)] + [(t, l) for t in range(8) for l in range(4, 7)]
CSPILL = [80, 88, 96, 104, 112, 52, 60]
def Wreg(i, n=8, off=0):
    if i >= 49: return V(CSPILL[i - 49] + off, n)
    return A(8 * i + off, n) if i < 32 else V(120 + 8 * (i - 32) + off, n)

def gen_team(a, dev=False):
    dev = set(dev.split('+')) if dev else set()
    RELAY = 'relay' in dev
    opt = set(dev)
    HZQ = 8
    for x in dev:
        if x.startswith('hq'): HZQ = int(x[2:])
    EX = 'ex' in dev
    inst = bool(dev) and not EX
    if 'xnew' in dev: opt |= {'xe', 'xl'}
    def stamp(k):
        if 'st%d' % k in dev or 'stall' in dev: a('s_memtime s[%d:%d]', 64 + 2 * k, 65 + 2 * k)
    def bits(dst, spec, first=True):
        for pos, w, sh in spec:
            a('v_bfe_u32 v3, v0, %d, %d', pos, w)
            if first: a('v_lshlrev_b32 v%d, %d, v3', dst, sh); first = False
            else: a('v_lshl_add_u32 v%d, v3, %d, v%d', dst, sh, dst)
    def spin(lp):
        a('s_add_u32 s14, s14, 1')
        a('s_cmp_lt_u32 s14, %d', SPIN)
        a('s_cbranch_scc1 %s', lp)
        a('s_endpgm')
    def xdma():
        a('s_mov_b32 m0, s36')
        a('s_add_u32 s30, s34, 4096')
        for i in range(4): a('buffer_load_dwordx4 v1, s[8:11], s34 offen offset:%d sc1 lds', 1024 * i)
        a('s_add_u32 m0, s36, 4096')
        a('s_add_u32 s34, s34, %d', XSEG)
        for i in range(3): a('buffer_load_dwordx4 v1, s[8:11], s30 offen offset:%d sc1 lds', 1024 * i)
    def ddma(src0, src1):
        r = [['buffer_load_dwordx4 v1, s[8:11], %s offen offset:%d sc1 lds' % (src0, 1024 * i)] for i in range(4)]
        r[3].append('s_add_u32 m0, s37, 16384')
        r += [['buffer_load_dwordx4 v1, s[8:11], %s offen offset:%d sc1 lds' % (src1, 1024 * i)] for i in range(4)]
        return r
    def fcheck(src, tmp, seg):
        a('v_readfirstlane_b32 s29, v%d', src)
        a('s_cmp_le_u32 s29, %s', seg)
    def dwait(seg):
        lp, ok = a.new('dw'), a.new('dk')
        a('s_mov_b32 s14, 0')
        a.label(lp)
        a('buffer_load_dword v18, off, s[8:11], s49 sc1')
        a('s_waitcnt vmcnt(0)')
        fcheck(18, 3, seg)
        a('s_cbranch_scc0 %s', ok)
        a('s_sleep 1')
        spin(lp)
        a.label(ok)
    def xcc_gather():
        lp, l2 = a.new('xc'), a.new('xo')
        a('v_min_u32 v20, %d, v0', NTEAM - 1)
        a('v_lshlrev_b32 v20, 2, v20')
        a('s_mov_b32 s14, 0')
        a.label(lp)
        a('buffer_load_dword v3, v20, s[44:47], 0 offen sc1')
        a('s_waitcnt vmcnt(0)')
        a('v_cmp_eq_u32 vcc, 0, v3')
        a('s_cbranch_vccz %s', l2)
        a('s_sleep 4')
        spin(lp)
        a.label(l2)
    def frag_offsets():
        a('s_lshl_b32 s33, s3, 1')
        for lam in range(7):
            a('s_lshl_b32 s%d, s33, 10', 15 + lam)
            if lam < 6:
                a('s_add_u32 s33, s33, 1')
                a('s_cmp_ge_u32 s33, 7')
                a('s_cselect_b32 s32, 7, 0')
                a('s_sub_u32 s33, s33, s32')
    def wload(order, tile_off, early_odd, between, hz=False):
        if dev: a('s_memrealtime s[96:97]')
        for ps in range(2):
            for lam in range(7):
                l = a.new('wl')
                a('s_bitcmp1_b32 s%d, 10', 15 + lam)
                a('s_cbranch_scc%d %s', 0 if (early_odd ^ ps) else 1, l)
                a('s_waitcnt vmcnt(%d)', 40 if not (hz and ps) else HZQ)
                if hz and ps: a('buffer_load_dword v24, off, s[8:11], s49 sc1')
                a('s_lshl_b32 s33, s%d, 1', 15 + lam)
                a('s_add_u32 s33, s33, s30')
                for i, (t, lm) in enumerate(order):
                    if lm != lam: continue
                    a('s_add_u32 s32, s33, %d', tile_off(t))
                    if i >= 49:
                        a('s_add_u32 m0, s29, %d', 2048 * (i - 49))
                        a('s_nop 0')
                        a('buffer_load_dwordx4 v1, s[8:11], s32 offen sc1 lds')
                        a('buffer_load_dwordx4 v1, s[8:11], s32 offen offset:1024 sc1 lds')
                    else:
                        a('buffer_load_dwordx4 %s, v1, s[8:11], s32 offen sc1', Wreg(i, 4, 0))
                        a('buffer_load_dwordx4 %s, v1, s[8:11], s32 offen offset:1024 sc1', Wreg(i, 4, 4))
                a.label(l)
            if ps == 0: between()

    a.label('team')
    if dev: a('s_memrealtime s[90:91]')
    a('s_and_b32 s4, s30, 15')
    a('s_lshr_b32 s5, s30, 4')
    a('v_lshlrev_b32 v1, 4, v0')
    frag_offsets()
    a('s_cmp_ge_u32 s30, 30')
    a('s_cbranch_scc1 export')
    for r in range(4, 16): a('v_mov_b32 v%d, 0', r)
    a('v_and_b32 v3, 2, v0')
    a('v_cmp_eq_u32 s[58:59], 0, v3')
    a('v_mov_b32 v2, 0xeeee')
    a('v_mov_b32 v18, 0x4444')
    a('v_cndmask_b32 v2, v2, v18, s[58:59]')
    a('v_add_u32 v16, s15, v1')
    a('v_add_u32 v17, s16, v1')
    a('s_mov_b32 s49, 0x%x', HZ)
    a('v_cmp_gt_u32 s[62:63], 56, v0')
    xcc_gather()
    a('v_readfirstlane_b32 s31, v3')
    a('s_nop 1')
    a('v_cmp_ne_u32 vcc, s31, v3')
    a('s_nop 1')
    a('s_cmp_lg_u64 vcc, 0')
    a('s_cselect_b32 s51, 1, 0')
    lv, lj = a.new('iv'), a.new('ij')
    a('s_cmp_eq_u32 s5, 1')
    a('s_cbranch_scc1 %s', lv)
    if RELAY:
        a('s_lshl_b32 s34, 1, s4')
        fold.wait_stat(a, 0, 's34', 24)
    else: fold.wait_part(a, FLG_A, 's4', 1, True)
    a('s_mul_i32 s30, s4, 28')
    a('s_mul_i32 s32, s3, 7')
    a('s_add_u32 s30, s30, s32')
    a('s_mul_i32 s30, s30, 14336')
    wload(ORD_S, lambda t: t * 14336, 1, (lambda: fold.wait_stat(a, 1, 's34', 24)) if RELAY else (lambda: fold.wait_head_and_misc(a, FLG_A, 's4', 14, 24)))
    a('v_and_b32 v3, 8, v0')
    a('v_cmp_eq_u32 vcc, 0, v3')
    a('s_nop 1')
    a('v_cndmask_b32 v14, 0, 1.0, vcc')
    bits(4, [(2, 2, 6), (0, 1, 5), (4, 2, 3), (1, 1, 2)])
    bits(5, [(4, 2, 8), (0, 4, 3)])
    a('s_lshl_b32 s30, s3, 11')
    a('s_add_u32 s30, s30, %d', L_T)
    a('v_add_u32 v4, s30, v4')
    a('v_add_u32 v5, s30, v5')
    a('s_mul_i32 s30, s3, 3584')
    a('s_add_u32 s30, s30, %d', L_X)
    bits(6, [(4, 2, 8), (0, 2, 6), (2, 1, 5)])
    a('v_bfe_u32 v3, v0, 3, 1')
    a('s_movk_i32 s31, %d', KT)
    a('v_mul_u32_u24 v3, s31, v3')
    a('v_add3_u32 v6, v6, v3, s30')
    bits(8, [(5, 1, 8), (0, 2, 6), (2, 1, 4), (4, 1, 3)])
    a('s_mul_i32 s30, s3, 1792')
    a('v_add_u32 v8, s30, v8')
    a('v_add_u32 v9, 1024, v8')
    a('s_max_u32 s31, s3, 1')
    a('s_lshl_b32 s31, s31, 10')
    a('s_add_u32 s31, s31, %d', L_S - 1024)
    a('v_add_u32 v10, s31, v1')
    a('s_lshl_b32 s31, s3, 12')
    a('s_add_u32 s31, s31, %d', L_S)
    a('v_add_u32 v11, s31, v1')
    a('s_lshl_b32 s30, s4, 9')
    a('s_lshl_b32 s31, s3, 6')
    a('s_add_u32 s30, s30, s31')
    bits(12, [(4, 2, 7), (0, 4, 2)])
    a('v_add_u32 v12, s30, v12')
    bits(13, [(4, 2, 5), (0, 2, 2)])
    a('s_lshl_b32 s30, s4, 7')
    a('s_lshl_b32 s31, s3, 4')
    a('s_add_u32 s30, s30, s31')
    a('s_add_u32 s30, s30, 8192')
    a('v_add_u32 v13, s30, v13')
    a('v_and_b32 v3, 12, v0')
    a('v_cmp_eq_u32 vcc, 0, v3')
    a('v_mov_b32 v18, 0x%x', OOB)
    a('s_nop 0')
    a('v_cndmask_b32 v13, v18, v13, vcc')
    a('v_mov_b32 v3, 0')
    a('v_lshlrev_b32 v18, 2, v0')
    a('ds_write_b32 v18, v3 offset:%d', L_MEM + 7168)
    for w in range(4): a('ds_write_b32 v18, v3 offset:%d', L_T + w * 2048 + 1792)
    a('ds_write_b32 v18, v3 offset:%d', L_X + 14336 - 128)
    for o in (16, 272): a('ds_write_b32 v18, v3 offset:%d', L_X + 28672 + o)
    a('s_waitcnt lgkmcnt(0)')
    a('s_barrier')
    a('s_mov_b32 s50, 0')
    a('s_mul_i32 s30, s3, 7168')
    a('s_add_u32 s34, s30, 0x%x', XF)
    a('s_add_u32 s36, s30, %d', L_X)
    a('s_lshr_b32 s31, s3, 1')
    a('s_lshl_b32 s31, s31, 4')
    a('s_add_u32 s36, s36, s31')
    xdma()
    a('s_lshl_b32 s31, s4, 10')
    a('s_add_u32 s27, s31, 0x%x', PR)
    a('s_cmp_lt_u32 s4, 10')
    a('s_cselect_b32 s27, s27, 0x%x', OOB)
    a('s_cmp_eq_u32 s3, 2')
    a('s_cselect_b32 s27, s27, 0x%x', OOB)
    a('s_lshl_b32 s31, s4, 2')
    a('s_add_u32 s31, s31, s3')
    if 'thalf' in dev:
        a('s_mul_i32 s35, s31, 3584')
        a('v_lshl_add_u32 v7, v0, 7, s35')
        a('v_lshrrev_b32 v3, 14, v7')
        a('v_lshl_add_u32 v7, v3, 14, v7')
        a('v_add_u32 v7, 0x%x, v7', DD + 2 * DSEG + 16384)
        a('v_cmp_gt_u32 s[62:63], 28, v0')
    elif 't34' in dev:
        a('s_mul_i32 s35, s31, 42')
        a('v_add_u32 v7, s35, v0')
        a('s_movk_i32 s35, 2731')
        a('v_mul_u32_u24 v3, s35, v7')
        a('v_lshrrev_b32 v3, 16, v3')
        a('v_lshl_add_u32 v7, v3, 3, v7')
        a('v_lshlrev_b32 v7, 7, v7')
        a('v_add_u32 v7, 0x%x, v7', DD + 2 * DSEG + 1024)
        a('v_cmp_gt_u32 s[62:63], 42, v0')
    else:
        a('s_mul_i32 s35, s31, 7168')
        a('s_add_u32 s35, s35, 0x%x', DD + 2 * DSEG)
        a('v_lshl_add_u32 v7, v0, 7, s35')
    a('s_lshl_b32 s31, s31, 9')
    a('s_add_u32 s31, s31, 0x%x', XF + 2 * XSEG)
    a('v_and_b32 v3, 3, v0')
    a('v_lshl_add_u32 v3, v3, 7, s31')
    if 'tx' in dev: a('v_cmp_gt_u32 s[62:63], 0, v0'); a('s_nop 1')
    a('v_cndmask_b32 v7, v3, v7, s[62:63]')
    a('s_mov_b32 s38, 0x%x', OOB)
    if 'not0' not in dev:
        a('buffer_load_dword v18, off, s[8:11], s49 sc1')
        a('s_waitcnt vmcnt(0)')
        fcheck(18, 3, '2')
        a('s_cselect_b32 s38, 0x%x, 0', OOB)
    a('s_branch %s', lj)
    a.label(lv)
    a('s_lshl_b32 s34, s3, 2')
    if RELAY:
        a('s_lshl_b32 s34, 0xf0000, s34')
        fold.wait_stat(a, 0, 's34', 24)
    else: fold.wait_part(a, FLG_C, 's34', 4, False)
    a('s_mul_i32 s30, s3, 4*28')
    a('s_lshl_b32 s32, s4, 1')
    a('s_add_u32 s30, s30, s32')
    a('s_mul_i32 s30, s30, 14336')
    a('s_add_u32 s30, s30, 0x%x', WF_C)
    a('s_mul_i32 s29, s3, 14336')
    a('s_add_u32 s29, s29, %d', L_W)
    wload(ORD_C, lambda t: ((t & 3) * 28 + (t >> 2)) * 14336, 0, (lambda: fold.wait_stat(a, 1, 's34', 24)) if RELAY else (lambda: fold.wait_head_and_misc(a, FLG_C, 's34', 56, 24)), hz='noeh' not in dev)
    a('v_add_u32 v14, s29, v1')
    for r, i in zip((4, 5, 7, 12, 13), range(5)): a('v_add_u32 v%d, s%d, v1', r, 17 + i)
    bits(6, [(4, 2, 7), (2, 2, 5), (0, 1, 4)])
    a('s_mul_i32 s30, s3, 1536')
    a('s_sub_u32 s30, 8192, s30')
    a('v_add_u32 v6, s30, v6')
    a('v_mov_b32 v18, 0x%x', OOB)
    a('v_cndmask_b32 v6, v18, v6, s[58:59]')
    bits(8, [(4, 2, 7), (0, 4, 2)])
    a('s_lshl_b32 s30, s3, 9')
    a('s_add_u32 s30, s30, %d', L_C)
    a('v_add_u32 v8, s30, v8')
    bits(10, [(5, 1, 9), (2, 2, 7), (0, 1, 6), (4, 1, 5), (1, 1, 4)])
    a('s_lshl_b32 s48, s3, 11')
    a('s_add_u32 s48, s48, %d', L_V)
    bits(9, [(4, 2, 7), (2, 1, 6), (0, 2, 4), (3, 1, 3)])
    a('s_and_b32 s31, s3, 1')
    a('s_lshl_b32 s30, s31, 11')
    a('s_add_u32 s30, s30, %d', L_C)
    a('v_add_u32 v9, s30, v9')
    a('s_lshl_b32 s30, s4, 9')
    a('s_lshl_b32 s31, s31, 8')
    a('s_add_u32 s30, s30, s31')
    a('v_lshl_add_u32 v11, v0, 2, s30')
    a('s_lshl_b32 s30, s3, 12')
    a('s_lshl_b32 s31, s4, 15')
    a('s_add_u32 s35, s30, s31')
    a('s_add_u32 s35, s35, 0x%x', DD)
    a('s_add_u32 s37, s30, %d', L_D)
    a('s_add_u32 s35, s35, %d', DSEG)
    a('s_mov_b32 s38, 0x%x', OOB)
    a('s_mov_b32 s6, 0x%x', OOB)
    a('s_mov_b32 s7, 1')
    if 'nohy' not in dev:
        lsk = a.new('ds')
        if 'noeh' not in dev:
            l2 = a.new('dl')
            a('s_waitcnt vmcnt(16)')
            fcheck(24, 3, '1')
            a('s_cbranch_scc1 %s', l2)
            for seg in range(2):
                for tl in range(2):
                    if seg: a('s_xor_b32 s31, s37, 0x18000')
                    else: a('s_mov_b32 s31, s37')
                    a('s_add_u32 m0, s31, %d', 16384 * tl)
                    a('s_add_u32 s31, s35, %d', 16384 * tl - (DSEG if seg == 0 else 0))
                    for i in range(4): a('buffer_load_dwordx4 v1, s[8:11], s31 offen offset:%d sc1 lds', 1024 * i)
            a('s_mov_b32 s7, 0')
            a('s_mov_b32 s38, s35')
            a('s_add_u32 s6, s35, 16384')
            a('s_branch %s', lsk)
            a.label(l2)
        a('buffer_load_dword v18, off, s[8:11], s49 sc1')
        a('s_waitcnt vmcnt(0)')
        fcheck(18, 3, '1')
        a('s_cbranch_scc1 %s', lsk)
        for tl in range(2):
            a('s_add_u32 m0, s37, %d', 16384 * tl)
            a('s_add_u32 s31, s35, %d', 16384 * tl - DSEG)
            for i in range(4): a('buffer_load_dwordx4 v1, s[8:11], s31 offen offset:%d sc1 lds', 1024 * i)
        a('s_mov_b32 s38, s35')
        a('s_add_u32 s6, s35, 16384')
        a('s_mov_b32 s7, 0')
        a.label(lsk)
    a('s_mov_b32 s40, 0x%x', OOB)
    a('s_mov_b32 s13, 0')
    a.label(lj)
    a('s_mov_b32 s12, 0')
    a('s_add_u32 s32, s15, 0x%x', MEMX)
    a('s_add_u32 s33, s16, 0x%x', MEMX)
    for r in range(20, 48): a('v_mov_b32 v%d, 0', r)
    a('s_waitcnt lgkmcnt(0)')
    if dev: a('s_waitcnt vmcnt(0)')
    if dev:
        lc = a.new('cal')
        a('s_memrealtime s[82:83]')
        a('s_waitcnt lgkmcnt(0)')
        a.label(lc)
        a('s_memrealtime s[84:85]')
        a('s_memtime s[86:87]')
        a('s_waitcnt lgkmcnt(0)')
        a('s_cmp_eq_u32 s84, s82')
        a('s_cbranch_scc1 %s', lc)
    if 'slow' in dev: a('s_branch tslow')
    a('s_cmp_eq_u32 s51, 1')
    a('s_cbranch_scc1 tslow')
    a('s_cmp_eq_u32 s5, 1')
    a('s_cbranch_scc1 cloopF')
    a('s_branch sloopF')
    a.label('tslow')
    a('s_cmp_eq_u32 s5, 1')
    a('s_cbranch_scc1 cloopS')
    a('s_branch sloopS')
    a.label('tdie')
    a('s_endpgm')
    a.label('export')
    a('s_cmp_eq_u32 s30, 31')
    a('s_cbranch_scc1 relay')
    if RELAY:
        a('s_mov_b32 s34, 1')
        fold.wait_stat(a, 1, 's34', 24)
    else: fold.wait_all(a, FLG_M, 256)
    a('s_mov_b32 s12, 1')
    a('v_mov_b32 v10, 1')
    a('s_mov_b32 s35, 0x%x', OOB)
    a('v_min_u32 v7, 55, v0')
    a('v_lshlrev_b32 v7, 7, v7')
    a('s_mul_i32 s31, s3, %d', UNIT)
    a('s_add_u32 s31, s31, 0x%x', MEMX)
    a('buffer_load_dword v9, v7, s[8:11], s31 offen sc1')
    a('s_lshl_b32 s31, s3, 13')
    a('s_add_u32 s31, s31, 0x%x', PR)
    a('v_lshlrev_b32 v8, 7, v0')
    a('buffer_load_dword v9, v8, s[8:11], s31 offen sc1')
    a('s_add_u32 s31, s31, 8192')
    a('buffer_load_dword v9, v8, s[8:11], s31 offen sc1')
    if 'xw' in dev:
        a('s_mul_i32 s31, s3, 7168')
        a('s_add_u32 s31, s31, 0x%x', XF)
        for k in range(1, 4):
            a('s_add_u32 s31, s31, %d', XSEG)
            a('buffer_load_dword v9, v7, s[8:11], s31 offen sc1')
    a.label('exloop')
    a('s_mul_i32 s30, s12, %d', UNIT)
    a('s_add_u32 s34, s30, 0x%x', MEMX)
    a('s_add_u32 s32, s34, s15')
    a('s_add_u32 s33, s34, s16')
    a('s_add_u32 s34, s34, %d', 3 * UNIT)
    a('s_cmp_eq_u32 s3, 0')
    a('s_cselect_b32 s34, s34, 0x%x', OOB)
    a('buffer_load_dword v9, v7, s[8:11], s34 offen sc1')
    if 'xw' in dev:
        a('s_lshl_b32 s34, s12, 2')
        a('s_add_u32 s34, s34, s3')
        a('s_mul_i32 s34, s34, 7168')
        a('s_add_u32 s34, s34, 0x%x', XF + 3 * XSEG)
        a('buffer_load_dword v9, v7, s[8:11], s34 offen sc1')
    a('s_mov_b32 s14, 0')
    lp = a.new('ex')
    a.label(lp)
    if 'noes' not in dev: a('s_sleep 6')
    a('buffer_load_dwordx4 v[20:23], v1, s[8:11], s32 offen sc1')
    a('buffer_load_dwordx4 v[24:27], v1, s[8:11], s33 offen sc1')
    a('s_add_u32 s14, s14, 1')
    a('s_cmp_lt_u32 s14, %d', SPIN)
    a('s_cbranch_scc0 tdie')
    a('s_waitcnt vmcnt(0)')
    a('v_max3_u32 v3, v20, v21, v22')
    a('v_max3_u32 v4, v23, v24, v25')
    a('v_max3_u32 v3, v26, v27, v3')
    a('v_max_u32 v3, v4, v3')
    a('v_cmp_eq_u32 vcc, -1, v3')
    a('s_cbranch_vccnz %s', lp)
    if EX:
        a('s_memtime s[80:81]')
        a('s_memrealtime s[82:83]')
        a('s_lshl_b32 s30, s12, 2')
        a('s_add_u32 s30, s30, 0x3F30000')
        a('s_waitcnt lgkmcnt(0)')
        a('v_mov_b32 v30, s80')
        a('v_mov_b32 v31, s82')
        a('buffer_store_dword v30, off, s[8:11], s30')
        a('buffer_store_dword v31, off, s[8:11], s30 offset:256')
    a('s_sub_u32 s32, s32, %d', MEMX - MEME)
    a('s_sub_u32 s33, s33, %d', MEMX - MEME)
    a('s_barrier')
    a('buffer_store_dwordx4 v[20:23], v1, s[8:11], s32 offen sc1')
    a('buffer_store_dwordx4 v[24:27], v1, s[8:11], s33 offen sc1')
    a('s_lshl_b32 s31, s3, 8')
    a('s_add_u32 s31, s31, s12')
    a('s_cmp_eq_u32 s31, 1')
    a('s_cselect_b32 s31, 0x%x, s35', GO)
    a('buffer_store_dword v10, off, s[8:11], s31 sc1')
    a('s_add_u32 s12, s12, 1')
    a('s_cmp_lt_u32 s12, 63')
    a('s_cbranch_scc1 exloop')
    a('s_endpgm')
    a.label('relay')
    a('s_cmp_eq_u32 s3, 0')
    a('s_cbranch_scc0 tdie')
    xcc_gather()
    a('v_readfirstlane_b32 s31, v3')
    a('s_mov_b32 s12, 0')
    a('s_mov_b32 s14, 0')
    a('s_mov_b32 s49, 0x%x', DPROG)
    a('v_cmp_ne_u32 s[62:63], s31, v3')
    a('v_and_b32 v3, 31, v0')
    a('v_cmp_gt_u32 s[60:61], 28, v3')
    a('v_lshlrev_b32 v4, 2, v0')
    a('v_lshrrev_b32 v5, 5, v0')
    a('s_mov_b32 s48, 0x%x', HZ)
    if 'slow' in dev: a('s_mov_b64 s[62:63], -1')
    if RELAY:
        a('v_and_b32 v8, 15, v0')
        a('v_mul_u32_u24 v8, 56, v8')
        a('v_bfe_u32 v9, v0, 4, 1')
        a('v_lshl_add_u32 v8, v9, 10, v8')
        a('v_cmp_eq_u32 s[58:59], 0, v9')
        a('s_mov_b32 s32, 0x%x', FLG_A)
        a('s_mov_b32 s33, 0x%x', FLG_M)
        a('s_mov_b32 s34, 0x%x', STAT)
        a.label('stloop')
        for k in range(7): a('buffer_load_dwordx2 %s, v8, s[8:11], s32 offen offset:%d sc1', V(20 + 2 * k, 2), 8 * k)
        a('buffer_load_dwordx4 v[36:39], v1, s[8:11], s33 offen sc1')
        a('s_add_u32 s14, s14, 1')
        a('s_cmp_lt_u32 s14, %d', SPIN)
        a('s_cbranch_scc0 tdie')
        a('s_waitcnt vmcnt(0)')
        a('v_min3_u32 v40, v20, v21, v24')
        a('v_min3_u32 v40, v25, v28, v40')
        a('v_min3_u32 v40, v29, v32, v40')
        a('v_min_u32 v40, v33, v40')
        a('v_min3_u32 v41, v22, v23, v26')
        a('v_min3_u32 v41, v27, v30, v41')
        a('v_min_u32 v41, v31, v41')
        a('v_cndmask_b32 v42, v40, v41, s[58:59]')
        a('v_min_u32 v40, v40, v41')
        a('v_min3_u32 v36, v36, v37, v38')
        a('v_min_u32 v36, v36, v39')
        a('v_cmp_ne_u32 s[36:37], 0, v42')
        a('v_cmp_ne_u32 s[38:39], 0, v40')
        a('v_cmp_eq_u32 vcc, 0, v36')
        a('s_nop 1')
        a('s_cmp_eq_u64 vcc, 0')
        a('s_cselect_b32 s38, s38, 0')
        a('v_mov_b32 v44, s36')
        a('v_mov_b32 v45, s38')
        a('s_cmp_eq_u64 s[62:63], 0')
        a('s_cbranch_scc0 stslow')
        a('buffer_store_dwordx2 v[44:45], off, s[8:11], s34')
        a('s_branch stnext')
        a.label('stslow')
        a('buffer_store_dwordx2 v[44:45], off, s[8:11], s34 sc1')
        a.label('stnext')
        a('s_cmp_eq_u32 s38, -1')
        a('s_cbranch_scc0 stloop')
        a('s_mov_b32 s14, 0')
    a.label('reloop')
    a('s_sleep 2')
    a('buffer_load_dword v6, v4, s[8:11], s49 offen sc1')
    a('s_add_u32 s14, s14, 1')
    a('s_cmp_lt_u32 s14, %d', SPIN)
    a('s_cbranch_scc0 tdie')
    a('s_mov_b32 s13, s12')
    a('s_waitcnt vmcnt(0)')
    a('v_lshl_add_u32 v6, v6, 1, v5')
    a.label('reinc')
    a('v_cmp_ge_u32 vcc, s12, v6')
    a('s_nop 1')
    a('s_and_b64 vcc, vcc, s[60:61]')
    a('s_cbranch_scc1 repub')
    a('s_add_u32 s12, s12, 1')
    a('s_cmp_lt_u32 s12, 64')
    a('s_cbranch_scc1 reinc')
    a.label('repub')
    a('s_cmp_eq_u32 s12, s13')
    a('s_cbranch_scc1 reloop')
    a('v_mov_b32 v7, s12')
    a('s_cmp_eq_u64 s[62:63], 0')
    a('s_cbranch_scc0 reslow')
    a('buffer_store_dword v7, off, s[8:11], s48')
    a('s_branch renext')
    a.label('reslow')
    a('buffer_store_dword v7, off, s[8:11], s48 sc1')
    a.label('renext')
    a('s_cmp_lt_u32 s12, 63')
    a('s_cbranch_scc1 reloop')
    a('s_endpgm')

    def loop(role, mode):
        SC = ' sc1' if mode == 'S' else ''
        ORDER = ORD_S if role == 's' else ORD_C
        TACC = 20
        MF = 48 if role == 's' else 52
        SB, TA, SACC = 76, 100, 108
        VB, PF, CACC, DB, RT = 52, 60, 72, 80, 112
        TMP = TA if role == 's' else 19
        tails = []
        a.l.append('.p2align 6')
        a.label(role + 'loop' + mode)
        if inst:
            l = a.new('p4')
            a('s_cmp_eq_u32 s12, 4')
            a('s_cbranch_scc0 %s', l)
            a('s_memrealtime s[98:99]')
            a.label(l)
            l = a.new('pp')
            a('s_cmp_eq_u32 s12, 8')
            a('s_cbranch_scc0 %s', l)
            a('s_memtime s[78:79]')
            a('s_memrealtime s[88:89]')
            a.label(l)
        if 'stall' in dev and role == 'c':
            a('s_waitcnt lgkmcnt(0)')
            a('s_mov_b32 s70, s76')
        def mpoll():
            a('buffer_load_dwordx4 %s, v1, s[8:11], s32 offen sc1', V(MF, 4))
            a('buffer_load_dwordx4 %s, v1, s[8:11], s33 offen sc1', V(MF + 4, 4))
        NE = 0
        if role == 'c':
            for x in dev:
                if x.startswith('ne'): NE = int(x[2:])
            dd = ddma('s38', 's6') if 'nod' not in dev else []
            a('s_xor_b32 s37, s37, 0x18000')
            a('s_cmp_lg_u32 s13, 0')
            lslow, lback = a.new('dq'), a.new('db')
            a('s_cbranch_scc1 %s', lslow)
            a.label(lback)
            tails.append(('dw', lslow, lback))
            a('s_mov_b32 m0, s37')
            a('s_nop 0')
            for grp in dd[:NE]:
                for ins in grp: a(ins)
                if len(grp) > 1: a('s_nop 0')
        CL = 'cearly' not in dev
        if role == 'c' and not CL: mpoll()
        ZA, ZN = (6, 17) if 'noz' not in dev else (0, 0)
        for x in dev:
            if x.startswith('za'): ZA = int(x[2:]); ZN = ZA + 11
        for r in range(ZN if role == 's' else 0, MF - TACC): a('v_mov_b32 v%d, 0', TACC + r)
        if role == 'c' and not CL: mpoll()
        sc = ['s_and_b32 s30, s12, 3', 's_mul_i32 s22, s30, %d' % PSLOT, 's_add_u32 s22, s22, 0x%x' % PR,
              's_add_u32 s32, s32, %d' % UNIT, 's_add_u32 s33, s33, %d' % UNIT]
        if role == 's':
            for r in range(12): a('v_mov_b32 v%d, 0', SACC + r)
            for i in range(5): a('v_add_u32 v%d, s%d, v1', TA + 2 + i, 17 + i)
            radr = [TA + 2 + i for i in range(5)]
            if 'xt' in dev:
                a('s_add_u32 s36, s36, s50')
                a('s_mov_b32 m0, s36')
            sc += ['s_add_u32 s31, s12, 3', 's_and_b32 s31, s31, 3', 's_mul_i32 s24, s31, %d' % PSLOT, 's_add_u32 s24, s24, s27',
                   's_min_u32 s24, s24, 0x%x' % OOB]
        else:
            radr = [4, 5, 7, 12, 13]
            sc += ['s_lshl_b32 s31, s3, 11', 's_add_u32 s43, s22, s31', 's_sub_u32 s42, s32, s15', 's_xor_b32 s30, s37, 0x18000']
        MD = 2
        if role == 's':
            MD = 3
            for x in dev:
                if x.startswith('md'): MD = int(x[2:])
            for r in range(8): a('v_mov_b32 v%d, -1', MF + r)
            if 'xl' in opt:
                l = a.new('xl')
                a('s_cmp_lt_u32 s3, s50')
                a('s_cbranch_scc0 %s', l)
                xdma()
                a.label(l)
                a('s_mov_b32 s50, 2')
            if 'now' not in dev: a('s_waitcnt vmcnt(0)')
            for x in dev:
                if x.startswith('qn'):
                    n = int(x[2:]) // 4
                    while n > 0: a('s_nop %d', min(n, 16) - 1); n -= 16
        elif CL:
            MD = 1
            for x in dev:
                if x.startswith('cd'): MD = int(x[2:])
            for r in range(8): a('v_mov_b32 v%d, -1', MF + r)
            if 'cnw' not in dev: a('s_waitcnt vmcnt(0)')
        a('s_mov_b32 s14, 0')
        def smf(i):
            t, lam = ORDER[i]
            if 'nomf' + role in dev: a('s_nop 3'); return
            if 'chalf' in dev and role == 'c' and i >= 42: return
            for x in dev:
                if x.startswith('cs') and role == 'c': a('s_nop %d', int(x[2:]))
            a('v_smfmac_f32_16x16x64_bf16 %s, %s, %s, v2', V(TACC + 4 * t, 4), V(MF + 4 * lam, 4), Wreg(i))
        lp, lf = a.new('mp'), a.new('mf')
        if role == 'c' and not CL: a('s_branch %s', lp)
        a.label(lf)
        for x in dev:
            if x.startswith('ms' + role): a('s_sleep %d', int(x[3:]))
            if x.startswith('mn' + role): a('s_nop %d', int(x[3:]))
        mpoll()
        a('s_add_u32 s14, s14, 1')
        a('s_cmp_lt_u32 s14, %d', SPIN)
        a('s_cbranch_scc0 tdie')
        for x in dev:
            if x.startswith('spec') and role == 's':
                a('s_nop 1')
                for r in range(4 * int(x[4:])): a('v_mov_b32 v%d, 0', TACC + r)
        a.label(lp)
        KC = 1
        for x in dev:
            if x.startswith('kc') and role == 's': KC = int(x[2:])
        lok = a.new('mo')
        for kc in range(KC):
            a('s_waitcnt vmcnt(%d)', 2 * MD - 2) if kc == 0 else None
            if 'lite' in dev: a('v_max_u32 v3, v%d, v%d', MF + 3, MF + 7)
            else:
                a('v_max3_u32 v3, v%d, v%d, v%d', MF, MF + 1, MF + 2)
                a('v_max3_u32 v%d, v%d, v%d, v%d', TMP, MF + 3, MF + 4, MF + 5)
                a('v_max3_u32 v3, v%d, v%d, v3', MF + 6, MF + 7)
                a('v_max_u32 v3, v%d, v3', TMP)
            a('v_cmp_eq_u32 vcc, -1, v3')
            if kc < KC - 1: a('s_cbranch_vccz %s', lok)
        if 'm0' in dev:
            a('ds_write_b128 v16, %s', V(MF, 4))
            a('ds_write_b128 v17, %s', V(MF + 4, 4))
        NSP = 0
        for x in dev:
            if x.startswith('spec') and role == 's': NSP = int(x[4:])
        for k in range(NSP):
            smf(k)
            if k == 0: a('ds_write_b128 v16, %s', V(MF, 4))
        a('s_cbranch_vccnz %s', lf)
        a.label(lok)
        stamp(0)
        N = len(ORDER)
        gm = [[] for _ in range(N + 12)]
        gv = [[] for _ in range(N + 12)]
        pre = [[] for _ in range(N + 12)]
        rd = ['ds_read_b128 %s, v%d' % (V(MF + 8 + 4 * i, 4), radr[i]) for i in range(5)]
        if 'm0' not in dev:
            gm[0].append('ds_write_b128 v16, %s' % V(MF, 4))
            gm[1].append('ds_write_b128 v17, %s' % V(MF + 4, 4))
        GB = 5
        for x in dev:
            if x.startswith('gb') and role == 's': GB = int(x[2:])
        gm[GB] += ['s_waitcnt lgkmcnt(0)', 's_barrier', rd[0]]
        for i in range(1, 5): gm[GB + i].append(rd[i])
        for k in range(0, len(sc), 2): gv[(8 if role == 'c' else 20) + k // 2] += sc[k:k + 2]
        def place(ins, lo):
            k = lo
            while gm[k]: k += 1
            gm[k] += ins if isinstance(ins, list) else [ins]
            return k
        if role == 's':
            B0 = 21
            def epi(t):
                c = TACC + 4 * t
                return (['v_add_f32 v%d, v%d, v%d' % (c, c, c + 2), 'v_add_f32 v%d, v%d, v%d' % (c + 1, c + 1, c + 3),
                         'v_cvt_pk_bf16_f32 v%d, v%d, v%d' % (c, c, c + 1)], ['ds_write_b32 v4, v%d offset:%d' % (c, 256 * t)])
            for t in range(6):
                v, m = epi(t)
                for i, ins in enumerate(v): gv[B0 + 4 * t + 7 + i].append(ins)
                gm[B0 + 4 * t + 10].append(m[0])
            place('ds_read_b64_tr_b16 %s, v5' % V(TA, 2), B0 + 23)
            place('ds_read_b64_tr_b16 %s, v5 offset:128' % V(TA + 2, 2), B0 + 24)
            def brd(step, xb0, xb1, mb):
                r = []
                for kt, b in ((0, xb0), (1, xb1)):
                    for hh in range(2):
                        r.append('ds_read_b128 %s, v6 offset:%d' % (V(b + 4 * hh, 4), kt * 16 + (2 * step + hh) * 1024))
                ad = 'v8' if step == 0 else 'v9'
                for hh in range(2):
                    for qq in range(2):
                        r.append('ds_read2_b32 %s, %s offset0:%d offset1:%d' % (V(mb + 4 * hh + 2 * qq, 2), ad, 128 * hh + qq, 128 * hh + qq + 8))
                return r
            place('buffer_load_dword v18, off, s[8:11], s49 sc1', GB)
            place('buffer_load_dword v19, v7, s[8:11], s38 offen' if 'notouch' not in dev else 'buffer_load_dword v19, off, s[8:11], s49 sc1', GB)
            if 'xt' in dev:
                xl = [['buffer_load_dwordx4 v1, s[8:11], s34 offen offset:%d sc1 lds' % (1024 * i)] for i in range(4)]
                xl[3] += ['s_add_u32 m0, s36, 4096', 's_add_u32 s28, s34, 4096']
                xl += [['buffer_load_dwordx4 v1, s[8:11], s28 offen offset:%d sc1 lds' % (1024 * i)] for i in range(3)]
                k, xs = GB + 7, 4
                for x in dev:
                    if x.startswith('xs'): xs = int(x[2:])
                for grp in xl: k = place(grp, k) + xs
            if 't64' in dev: place('buffer_load_dword v19, v7, s[8:11], s38 offen offset:64', GB)
            if 'tx4' in dev: gm[GB + 6] = ['buffer_load_dword v19, v7, s[8:11], s38 offen sc1']
            if 'tnt' in dev: gm[GB + 6] = ['buffer_load_dword v19, v7, s[8:11], s38 offen nt']
            BL = 12
            for x in dev:
                if x.startswith('bl'): BL = int(x[2:])
            for ins in brd(0, SB, SB + 8, SB + 16): place(ins, BL)
            b1 = brd(1, TACC, TACC + 8, MF)
            k = 20
            while gm[k]: k += 1
            yv = sum(1 for kk in range(k) for x in gm[kk] if x.startswith('buffer_'))
            k = place(['s_waitcnt vmcnt(%d)' % yv, b1[4]], 20)
            for ins in b1[5:]: place(ins, k)
            for ins in b1[0:2]: place(ins, B0 + 15)
            for ins in b1[2:4]: place(ins, B0 + 23)
            def younger_ds(k0, k1): return sum(1 for kk in range(k0, k1) for x in gm[kk] if x.startswith('ds_'))
            pre[14].append('s_waitcnt lgkmcnt(%d)' % younger_ds(GB + 1, 14))
            pre[B0].append('s_waitcnt lgkmcnt(%d)' % younger_ds(GB + 5, B0))
        else:
            pre[16].append('s_waitcnt lgkmcnt(4)')
            pre[24].append('s_waitcnt lgkmcnt(0)')
            sp = 4
            for x in dev:
                if x.startswith('sp') and x[2:].isdigit(): sp = int(x[2:])
            rest = dd[NE:]
            for i, grp in enumerate(rest): gm[12 + sp * i] += grp
            gm[10].append('buffer_load_dword v18, off, s[8:11], s49 sc1')
            def cepi(t):
                c = TACC + 4 * t
                return (['v_add_f32 v%d, v%d, v%d' % (c, c, c + 2), 'v_add_f32 v%d, v%d, v%d' % (c + 1, c + 1, c + 3),
                         'v_cvt_pk_bf16_f32 v%d, v%d, v%d' % (c, c, c + 1)], 'ds_write_b32 v19, v%d offset:%d' % (c, 256 * t))
            for t in range(8):
                v, m = cepi(t)
                for i_, ins in enumerate(v): gv[32 + 3 * t + 6 + i_].append(ins)
                gm[32 + 3 * t + 9].insert(0, m)
            wr = ['ds_read_b128 %s, v14 offset:%d' % (V(CSPILL[i >> 1] + 4 * (i & 1), 4), 1024 * i) for i in range(14)]
            for ins in wr[:10]: place(ins, 17)
            k = 30
            while gm[k]: k += 1
            younger = sum(1 for kk in range(k) for x in gm[kk] if x.startswith('buffer_'))
            k = place(['s_waitcnt vmcnt(%d)' % younger, wr[10]], 30)
            place(wr[11], k)
            for ins in wr[12:]: kl = place(ins, 33)
            def yds(k0, k1): return sum(1 for kk in range(k0, k1) for x in gm[kk] if x.startswith('ds_'))
            pre[24] = ['s_waitcnt lgkmcnt(%d)' % yds(GB + 5, 24)]
            pre[49].append('s_waitcnt lgkmcnt(%d)' % yds(kl + 1, 49))
            gv[20].append('v_add_u32 v15, s30, v1')
            gv[21].append('v_lshrrev_b32 v3, 4, v0')
            gv[22].append('v_lshl_add_u32 v3, v3, 2, s48')
            gv[23].append('v_and_b32 v19, 15, v0')
            gv[24].append('v_lshl_add_u32 v19, v19, 4, v3')
            gv[25].append('v_add_u32 v3, s48, v1')
        for k in range(N):
            for ins in pre[k]: a(ins)
            if k >= NSP: smf(k)
            if k == 0 and NSP: continue
            for ins in gm[k] + gv[k]: a(ins)
        stamp(1)
        if role == 's':
            for kk in range(N, N + 3):
                for ins in gm[kk] + gv[kk]: a(ins)
            assert not any(gm[N + 3:]) and not any(gv[N + 3:])
            a('s_cmp_lt_u32 s3, 2')
            a('s_nop 1')
            v, m = epi(6)
            a('v_pk_add_f32 %s, %s, %s', V(TACC + 24, 2), V(TACC + 24, 2), V(TACC + 26, 2))
            for ins in v[2:] + m: a(ins)
            a('ds_read_b64_tr_b16 %s, v5 offset:1024', V(TA + 4, 2))
            a('ds_read_b64_tr_b16 %s, v5 offset:1152', V(TA + 6, 2))
            a('s_waitcnt lgkmcnt(7)')
            for kt in range(3):
                a('v_smfmac_f32_16x16x64_bf16 %s, %s, %s, v2', V(SACC + 4 * kt, 4), V(TA, 4), V(SB + 8 * kt, 8))
            a('s_waitcnt lgkmcnt(0)')
            for kt, b in enumerate((TACC, TACC + 8, MF)):
                a('v_smfmac_f32_16x16x64_bf16 %s, %s, %s, v2', V(SACC + 4 * kt, 4), V(TA + 4, 4), V(b, 8))
            lns, ljn, lw1, lsm = a.new('ns'), a.new('jn'), a.new('w1'), a.new('sm')
            WOP = 'ds_write_b96 v10, v[%d:%d] offset:%d' if 'w128' not in dev else 'ds_write_b128 v10, v[%d:%d] offset:%d'
            WN = 2 if 'w128' not in dev else 3
            def sepi(own, nop):
                r0, r1 = (80, 76) if own == 1 else (76, 80)
                a('s_nop %d', nop)
                for kt in range(3):
                    c = SACC + 4 * kt
                    first = [(r1, 1), (r0, 0)] if own == 0 else [(r0, 0), (r1, 1)]
                    if kt == 2 and own is not None:
                        a('v_add_f32 v%d, v%d, v%d', first[0][0] + kt, c + first[0][1], c + first[0][1] + 2)
                        a(WOP, 80, 80 + WN, 4096 * (1 - own))
                        a('v_add_f32 v%d, v%d, v%d', first[1][0] + kt, c + first[1][1], c + first[1][1] + 2)
                    else:
                        for r, b in first: a('v_add_f32 v%d, v%d, v%d', r + kt, c + b, c + b + 2)
                if own is None:
                    a(WOP, 76, 76 + WN, 0)
                    a(WOP, 80, 80 + WN, 4096)
            a('s_cbranch_scc0 %s', lns)
            tails.append(('nv', lns, ljn, sepi))
            a('s_cmp_eq_u32 s3, 0')
            a('s_cbranch_scc0 %s', lw1)
            tails.append(('w1', lw1, lsm, sepi))
            sepi(0, 2)
            a.label(lsm)
            for r in range(ZA): a('v_mov_b32 v%d, 0', TACC + r)
            a('s_waitcnt lgkmcnt(0)')
            if ZA: a('v_mov_b32 v%d, 0', TACC + ZA)
            a('s_barrier')
            stamp(2)
            for w in range(3): a('ds_read_b128 %s, v11 offset:%d', V(80 + 4 * w, 4), 1024 * w)
            for r in range(ZA + 1, ZN): a('v_mov_b32 v%d, 0', TACC + r)
            a('s_waitcnt lgkmcnt(2)')
            a('v_pk_add_f32 v[76:77], v[76:77], v[80:81]')
            a('v_add_f32 v78, v78, v82')
            a('s_waitcnt lgkmcnt(0)')
            a('v_pk_add_f32 v[84:85], v[84:85], v[88:89]')
            a('v_add_f32 v86, v86, v90')
            a('v_pk_add_f32 v[76:77], v[76:77], v[84:85]')
            a('v_add_f32 v78, v78, v86')
            DP = ('quad_perm:[1,0,3,2]', 'quad_perm:[2,3,0,1]', 'row_half_mirror', 'row_mirror')
            def dpp(op, d, s_, ctl): a('%s_dpp v%d, v%d, v%d %s row_mask:0xf bank_mask:0xf', op, d, s_, s_, ctl)
            a('v_max3_f32 v84, v76, v77, v78')
            a('v_sub_f32 v76, v76, v84')
            a('v_sub_f32 v77, v77, v84')
            dpp('v_max_f32', 85, 84, DP[0])
            a('v_sub_f32 v78, v78, v84')
            a('v_exp_f32 v76, v76')
            dpp('v_max_f32', 85, 85, DP[1])
            a('v_exp_f32 v77, v77')
            a('s_nop 0')
            dpp('v_max_f32', 85, 85, DP[2])
            a('v_exp_f32 v78, v78')
            a('v_add_f32 v86, v76, v77')
            dpp('v_max_f32', 85, 85, DP[3])
            a('v_sub_f32 v84, v84, v85')
            a('v_exp_f32 v84, v84')
            a('v_fmac_f32 v86, v78, v14')
            a('v_mul_f32 v86, v86, v84')
            a('v_mul_f32 v76, v76, v84')
            a('v_mul_f32 v77, v77, v84')
            dpp('v_add_f32', 86, 86, DP[0])
            a('v_mul_f32 v78, v78, v84')
            a('s_nop 0')
            for ctl in DP[1:]:
                dpp('v_add_f32', 86, 86, ctl)
                if ctl != DP[3]: a('s_nop 1')
            a('v_rcp_f32 v86, v86')
            a('s_nop 0')
            a('v_mul_f32 v76, v76, v86')
            a('v_mul_f32 v77, v77, v86')
            a('v_cvt_pk_bf16_f32 v88, |v76|, |v77|')
            a('buffer_store_dword v88, v12, s[8:11], s22 offen' + SC)
            a('v_mul_f32_dpp v79, v78, v86 row_shl:4 row_mask:0xf bank_mask:0xf bound_ctrl:0')
            a('v_mul_f32 v78, v78, v86')
            a('v_cvt_pk_bf16_f32 v90, |v78|, |v79|')
            a('buffer_store_dword v90, v13, s[8:11], s22 offen' + SC)
            stamp(3)
            a('s_waitcnt vmcnt(%d)', 3 + ('t64' in dev))
            a('s_barrier')
            for x in dev:
                if x.startswith('xd'): a('s_sleep %d', int(x[2:]))
            if 'nox' not in dev and 'xl' not in opt: xdma()
            a.label(ljn)
            a('v_add_u32 v7, %d, v7', XSEG)
            a('s_mov_b64 exec, s[62:63]')
            a('v_add_u32 v7, %d, v7', DSEG - XSEG)
            a('s_mov_b64 exec, -1')
            a('s_add_u32 s31, s12, 3')
            fcheck(18, 3, 's31')
            a('s_cselect_b32 s38, 0x%x, 0', OOB)
            a('s_cmp_gt_u32 s31, 62')
            a('s_cselect_b32 s38, 0x%x, s38', OOB)
            for x in dev:
                if x.startswith('ds'): a('s_sleep %d', int(x[2:]))
        else:
            def pld1(k):
                a('buffer_load_dwordx4 %s, %s, s[8:11], s43 offen offset:%d sc1', V(PF + 4 * k, 4), 'v10' if k else 'v6', 1024 if k == 2 else 0)
            def pld():
                if 'nopm' in dev:
                    a('buffer_load_dword v%d, off, s[8:11], s49 sc1', PF)
                    for r in range(1, 4): a('v_mov_b32 v%d, 0', PF + r)
                for k in range(1 if 'nopm' in dev else 0, 3): pld1(k)
            l0, l1 = a.new('d0'), a.new('d1')
            a('s_cmp_eq_u32 s7, 1')
            a('s_cbranch_scc1 %s', l0)
            a.label(l1)
            tails.append(('d0', l0, l1))
            for i in range(8): a('ds_read_b128 %s, v15 offset:%d', V(DB + 4 * i, 4), 1024 * (i & 3) + 16384 * (i >> 2))
            if 'nop1' not in dev: pld()
            for kk in range(N, N + 12):
                for ins in gm[kk] + gv[kk]: a(ins)
            a('ds_read_b128 %s, v3', V(VB, 4))
            a('ds_read_b128 %s, v3 offset:1024', V(VB + 4, 4))
            a('v_add_u32 v15, 2048, v8')
            if 'nop1' in dev:
                a('s_waitcnt vmcnt(0)')
                pld()
            a('s_waitcnt vmcnt(3)')
            a('s_add_u32 s35, s35, %d', DSEG)
            a('s_add_u32 s31, s12, 2')
            fcheck(18, 3, 's31')
            a('s_cselect_b32 s13, 1, 0')
            a('s_add_u32 s6, s35, 16384')
            a('s_cmp_gt_u32 s31, 62')
            a('s_cselect_b32 s38, 0x%x, s35', OOB)
            a('s_cselect_b32 s6, 0x%x, s6', OOB)
            a('s_cselect_b32 s13, 0, s13')
            a('s_mov_b32 s14, 0')
            stamp(4)
            if inst:
                l = a.new('z0')
                a('s_cmp_eq_u32 s12, 0')
                a('s_cbranch_scc0 %s', l)
                a('s_memrealtime s[94:95]')
                a.label(l)
            a('s_waitcnt lgkmcnt(0)')
            lr, lq = a.new('pr'), a.new('pq')
            def pchk():
                a('v_or3_b32 v3, v%d, v%d, v%d', PF, PF + 1, PF + 2)
                a('v_or3_b32 v19, v%d, v%d, v%d', PF + 3, PF + 4, PF + 5)
                a('v_or3_b32 v3, v%d, v%d, v3', PF + 6, PF + 7)
                a('v_or3_b32 v19, v%d, v%d, v19', PF + 8, PF + 9)
                a('v_or3_b32 v3, v%d, v%d, v3', PF + 10, PF + 11)
                a('v_or_b32 v3, v19, v3')
                a('v_cmp_gt_i32 vcc, 0, v3')
            def dn(tl): a('v_mfma_f32_16x16x32_bf16 %s, %s, %s, 0', V(CACC + 4 * tl, 4), V(PF, 4), V(VB + 4 * tl, 4))
            def sp_(tl, k): a('v_smfmac_f32_16x16x64_bf16 %s, %s, %s, v2', V(CACC + 4 * tl, 4), V(PF + 4 + 4 * k, 4), V(DB + 16 * tl + 8 * k, 8))
            for x in dev:
                if x.startswith('pw'): a('s_sleep %d', int(x[2:]))
                if x.startswith('pn'):
                    n = int(x[2:]) // 4
                    while n > 0: a('s_nop %d', min(n, 16) - 1); n -= 16
            a.label(lr)
            pld()
            a('s_add_u32 s14, s14, 1')
            a('s_cmp_lt_u32 s14, %d', SPIN)
            a('s_cbranch_scc0 tdie')
            a('s_cmp_lt_u32 s3, 2')
            a('s_waitcnt vmcnt(%d)', 0 if 'pd1' in dev else 3)
            if 'cold' in dev:
                pchk()
                dn(0)
                a('s_cbranch_vccnz %s', lr)
                sp_(0, 0); sp_(0, 1); dn(1); sp_(1, 0); sp_(1, 1)
                stamp(5)
                n0, n1 = None, 4
            else:
                a('v_or3_b32 v3, v%d, v%d, v%d', PF, PF + 1, PF + 2)
                a('v_or3_b32 v3, v%d, v%d, v3', PF + 3, PF + 4)
                dn(0)
                a('v_or3_b32 v3, v%d, v%d, v3', PF + 5, PF + 6)
                dn(1)
                a('v_or3_b32 v3, v%d, v%d, v3', PF + 7, PF + 8)
                sp_(0, 0)
                a('v_or3_b32 v3, v%d, v%d, v3', PF + 9, PF + 10)
                sp_(1, 0)
                a('v_or_b32 v3, v%d, v3', PF + 11)
                sp_(0, 1)
                a('v_cmp_gt_i32 vcc, 0, v3')
                sp_(1, 1)
                a('s_cbranch_vccnz %s', lr)
                stamp(5)
                n0, n1 = 4, None
            if n0: a('s_nop %d', n0)
            a('v_pk_add_f32 %s, %s, %s', V(CACC, 2), V(CACC, 2), V(CACC + 2, 2))
            if n1: a('s_nop %d', n1 + 2)
            else: a('s_nop 0')
            a('v_pk_add_f32 %s, %s, %s', V(CACC + 4, 2), V(CACC + 4, 2), V(CACC + 6, 2))
            a('ds_write2_b32 v8, v%d, v%d offset0:0 offset1:16', CACC, CACC + 1)
            a('ds_write2_b32 v15, v%d, v%d offset0:0 offset1:16', CACC + 4, CACC + 5)
            lnr, ljr = a.new('nr'), a.new('jr')
            a('s_cbranch_scc0 %s', lnr)
            tails.append(('ns', lnr, ljr))
            a('s_waitcnt lgkmcnt(0)')
            a('s_barrier')
            for w in range(4): a('ds_read_b64 %s, v9 offset:%d', V(RT + 2 * w, 2), 512 * w)
            a('s_waitcnt lgkmcnt(2)')
            a('v_pk_add_f32 %s, %s, %s', V(RT, 2), V(RT, 2), V(RT + 2, 2))
            a('s_waitcnt lgkmcnt(0)')
            a('v_pk_add_f32 %s, %s, %s', V(RT + 4, 2), V(RT + 4, 2), V(RT + 6, 2))
            a('v_pk_add_f32 %s, %s, %s', V(RT, 2), V(RT, 2), V(RT + 4, 2))
            a('v_cvt_pk_bf16_f32 v%d, v%d, v%d', RT, RT, RT + 1)
            a('v_min_u32 v%d, -2, v%d', RT, RT)
            a('buffer_store_dword v%d, v11, s[8:11], s42 offen%s', RT, SC)
            stamp(6)
            a('s_barrier')
            a('s_mov_b32 s40, 0x%x', MEME + 63 * UNIT)
            a.label(ljr)
            for x in dev:
                if x.startswith('dc'): a('s_sleep %d', int(x[2:]))
        if inst and role == 's':
            l = a.new('ts')
            a('s_lshl_b32 s30, s4, 2')
            a('s_add_u32 s30, s30, s3')
            a('s_cmp_eq_u32 s30, 63')
            a('s_cbranch_scc0 %s', l)
            a('s_memtime s[80:81]')
            a('s_memrealtime s[82:83]')
            a('s_lshl_b32 s30, s12, 2')
            a('s_add_u32 s30, s30, 0x3F30000')
            a('s_waitcnt lgkmcnt(0)')
            a('v_mov_b32 v99, s80')
            a('v_mov_b32 v98, s82')
            a('buffer_store_dword v99, off, s[8:11], s30')
            a('buffer_store_dword v98, off, s[8:11], s30 offset:256')
            a.label(l)
        if inst:
            ld = a.new('dv')
            a('s_cmp_eq_u32 s12, 40')
            a('s_cbranch_scc0 %s', ld)
            a('s_memtime s[80:81]')
            a('s_memrealtime s[82:83]')
            a('s_waitcnt lgkmcnt(0)')
            a('s_sub_u32 s78, s80, s78')
            a('s_sub_u32 s88, s82, s88')
            a('s_lshl_b32 s30, s5, 4')
            a('s_add_u32 s30, s30, s4')
            a('s_lshl_b32 s30, s30, 2')
            a('s_add_u32 s30, s30, s3')
            a('s_lshl_b32 s30, s30, 6')
            a('s_add_u32 s30, s30, 0x3F00000')
            for kk in range(13):
                a('v_mov_b32 v99, s%d', 64 + 2 * kk)
                a('buffer_store_dword v99, off, s[8:11], s30 offset:%d', 4 * kk)
                a('s_nop 1')
            a.label(ld)
        a('s_add_u32 s12, s12, 1')
        a('s_cmp_lt_u32 s12, 63')
        a('s_cbranch_scc1 %sloop%s', role, mode)
        if role == 'c':
            a('buffer_store_dword v%d, v11, s[8:11], s40 offen sc1', RT)
            if mode == 'F' and WB:
                l = a.new('wb')
                a('s_or_b32 s30, s3, s4')
                a('s_cbranch_scc1 %s', l)
                a('s_waitcnt vmcnt(0)')
                a('buffer_wbl2 sc1')
                a('s_waitcnt vmcnt(0)')
                a.label(l)
        if dev:
            a('s_memrealtime s[82:83]')
            a('s_waitcnt lgkmcnt(0)')
            a('s_lshl_b32 s30, s2, 4')
            a('s_add_u32 s30, s30, 0x3F10000')
            for kk, r in enumerate((90, 84, 82, 94)):
                a('v_mov_b32 v99, s%d', r)
                a('buffer_store_dword v99, off, s[8:11], s30 offset:%d', 4 * kk)
                a('s_nop 1')
            amp = [x for x in dev if x.startswith('amp')]
            if amp and role == amp[0][3]:
                k = amp[0][4]
                if k == '1': a('s_sub_u32 s31, s84, s92'); a('s_mul_i32 s31, s31, 10')
                if k == '2': a('s_sub_u32 s31, s82, s84'); a('s_mul_i32 s31, s31, 2')
                if k == '3': a('s_sub_u32 s31, s90, s92'); a('s_mul_i32 s31, s31, 10')
                if k == '4': a('s_sub_u32 s31, s96, s92'); a('s_mul_i32 s31, s31, 10')
                if k == '5': a('s_sub_u32 s31, s98, s92'); a('s_mul_i32 s31, s31, 10')
                if k == '0': a('s_mov_b32 s31, 2000')
                l = a.new('am')
                a.label(l)
                a('s_sleep 4')
                a('s_memrealtime s[80:81]')
                a('s_waitcnt lgkmcnt(0)')
                a('s_sub_u32 s30, s80, s82')
                a('s_cmp_lt_u32 s30, s31')
                a('s_cbranch_scc1 %s', l)
            if 'dbgt' in dev:
                l = a.new('dt')
                a('s_cmp_eq_u32 s4, 5')
                a('s_cbranch_scc0 %s', l)
                a('s_lshl_b32 s30, s5, 4')
                for kk, r in enumerate((90, 84, 82, 78)):
                    if r != 78: a('s_sub_u32 s31, s%d, s92', r)
                    else: a('s_mov_b32 s31, s78')
                    a('v_mov_b32 v99, s31')
                    a('buffer_store_dword v99, off, s[44:47], s30 offset:%d', 4 * kk)
                    a('s_nop 1')
                a.label(l)
        a('s_endpgm')
        for p in tails:
            a.label(p[1])
            if p[0] == 'dw':
                a('s_add_u32 s31, s12, 1')
                dwait('s31')
                a('s_branch %s', p[2])
            elif p[0] == 'd0':
                lp = a.new('dz')
                a('s_waitcnt vmcnt(0)')
                a('v_and_b32 v18, 1, v0')
                a('v_lshlrev_b32 v18, 2, v18')
                a('v_bfe_u32 v%d, v0, 1, 1', DB)
                a('v_lshl_add_u32 v%d, v%d, 7, v18', DB, DB)
                a('s_lshl_b32 s31, s4, 3')
                a('s_add_u32 s31, s31, 0x%x', DPROG)
                a('s_mov_b32 s14, 0')
                a.label(lp)
                a('buffer_load_dword v18, v%d, s[8:11], s31 offen sc1', DB)
                a('s_add_u32 s14, s14, 1')
                a('s_cmp_lt_u32 s14, %d', SPIN)
                a('s_cbranch_scc0 tdie')
                a('s_waitcnt vmcnt(0)')
                a('v_cmp_eq_u32 vcc, 0, v18')
                a('s_cbranch_vccnz %s', lp)
                for seg in range(2):
                    for tl in range(2):
                        if seg == 0: a('s_xor_b32 s31, s37, 0x18000')
                        else: a('s_mov_b32 s31, s37')
                        a('s_add_u32 m0, s31, %d', 16384 * tl)
                        a('s_add_u32 s31, s35, %d', 16384 * tl - (DSEG if seg == 0 else 0))
                        for i in range(4): a('buffer_load_dwordx4 v1, s[8:11], s31 offen offset:%d sc1 lds', 1024 * i)
                a('buffer_load_dword v18, off, s[8:11], s49 sc1')
                a('s_waitcnt vmcnt(9)')
                a('s_mov_b32 s7, 0')
                a('s_branch %s', p[2])
            elif p[0] == 'w1':
                p[3](1, 2)
                a('s_branch %s', p[2])
            elif p[0] == 'nv':
                p[3](None, 4)
                for r in range(4): a('v_mov_b32 v%d, -1', 92 + r)
                a('s_waitcnt lgkmcnt(0)')
                a('s_barrier')
                a('buffer_store_dwordx4 v[92:95], v1, s[8:11], s24 offen' + SC)
                if 'xe' in opt: xdma()
                a('s_waitcnt vmcnt(%d)', 2 + ('t64' in dev) + (7 if 'xe' in opt else 0))
                a('s_barrier')
                for x in dev:
                    if x.startswith('xd') and 'xe' not in opt: a('s_sleep %d', int(x[2:]))
                if 'xe' not in opt and 'nox' not in dev: xdma()
                for r in range(ZN): a('v_mov_b32 v%d, 0', TACC + r)
                a('s_branch %s', p[2])
            elif p[0] == 'ns':
                a('s_waitcnt lgkmcnt(0)')
                a('s_barrier')
                a('s_barrier')
                a('s_branch %s', p[2])
    for mode in 'FS':
        for role in 'sc':
            n0 = len(a.l)
            loop(role, mode)
            body = a.l[n0:]
            if 'e64' in dev:
                body = [x.replace('v_add_f32 ', 'v_add_f32_e64 ') for x in body]
            if 'al8' in dev:
                body = sum([['.p2align 3', x] if 'mfma' in x else [x] for x in body], [])
            for x in (dev | {'pa6'}):
                if x.startswith('pa'):
                    body = sum([['.p2align %s' % x[2:], y] if y.startswith(('mf_', 'pr_')) else [y] for y in body], [])
                if x.startswith('sh'):
                    body = body[:1] + ['    s_nop 0'] * int(x[2:]) + body[1:]
            a.l[n0:] = body
```

```python
import sys
from common import *
import fold, team, workers

HEADER = open('cdna_kernels/%s.s.ref' % NAME).read().split('; Override launch geometry')[0]
MAIN_LDS = team.TEAM_LDS
TEAMX = 4

DOC = '''; Structure (one persistent launch, one workgroup per CU, roles by workgroup id; generated by the scripts in gen/):
;   A_h = Wq_h Wk_h^T * log2(e)/16 and C_h = Wv_h Wo_h are folded first, so scores = (h A_h) h^T and out = sum_h P_h (h C_h).
;   most workgroups: fold tiles, then D = x C (+ mem C), x-token softmax, FFN up/gate, or FFN down + mix + store.
;   32 workgroups 8 ids apart: the 63-step memory recurrence with A_h / C in registers (16 score + 14 combine workgroups,
'''

def kd(name, vgpr, acc, sgpr):
    return '''.p2align 6
.amdhsa_kernel %s
  .amdhsa_next_free_vgpr %d
  .amdhsa_next_free_sgpr %d
  .amdhsa_accum_offset %d
  .amdhsa_group_segment_fixed_size 0
  .amdhsa_kernarg_size 120
  .amdhsa_user_sgpr_count 2
  .amdhsa_user_sgpr_kernarg_segment_ptr 1
  .amdhsa_system_sgpr_workgroup_id_x 1
.end_amdhsa_kernel
''' % (name, vgpr, sgpr, acc)

def build(mask, dev=False, aslist=False):
    a = Asm()
    workers.DEV = fold.DEV = bool(dev)
    fold.FINE = bool(dev) and 'fine' in dev
    if dev and 'ov' in dev.split('+'): fold.OVERLAP = True
    for x in (dev or '').split('+'):
        if x.startswith('fd'): fold.DEPTH = int(x[2:])
        if x.startswith('bo'): workers.BACKOFF = int(x[2:])
        if x.startswith('msl'): workers.MSLEEP = int(x[3:])
        if x == 'norot': fold.ROT = False
        if x == 'x3': workers.NSET_X, workers.NSET_O = 3, 13
        if x.startswith('fo'): workers.NSET_O = int(x[2:])
        if x.startswith('lead'): workers.LEAD = int(x[4:])
        if x == 'imm': workers.IMM = True
        if x == 'now0': workers.W0 = False
        if x == 'nodrot': workers.DROT = False
        if x == 'nogl': fold.GLOOP = False
        if x == 'wst01': fold.WST = 'sc0 sc1'
        if x == 'wstnt': fold.WST = 'nt sc1'
        if x.startswith('af'): fold.AFIRST = int(x[2:]); fold.BYK = False
    workers.DBGT = fold.DBGT = bool(dev) and 'dbgt' in dev
    nm = NAME + '_kernel'
    a.l.append('.globl %s\n.p2align 8\n.type %s,@function' % (nm, nm))
    a.label(nm)
    a('s_cmp_ge_u32 s2, 256')
    a('s_cbranch_scc1 quit')
    if dev: a('s_memrealtime s[92:93]')
    a('s_load_dwordx8 s[64:71], s[0:1], 0')
    a('s_load_dwordx4 s[72:75], s[0:1], 32')
    a('s_load_dwordx2 s[76:77], s[0:1], %d', KA['gw'])
    a('s_load_dwordx4 s[52:55], s[0:1], %d', KA['dbg'])
    a('v_lshrrev_b32 v1, 6, v0')
    a('v_and_b32 v0, 63, v0')
    a('v_readfirstlane_b32 s3, v1')
    if not (dev and 'nocw' in dev):
        a('s_getpc_b64 s[32:33]')
        a.label('pcref')
        a('s_lshr_b32 s31, s2, 3')
        a('s_lshl_b32 s31, s31, 2')
        a('s_add_u32 s31, s31, s3')
        a('s_and_b32 s31, s31, 7')
        a('s_lshl_b32 s31, s31, 13')
        a('v_lshl_add_u32 v252, v0, 7, s31')
        a('v_min_u32 v252, codeend-pcref-4, v252')
        a('global_load_dword v253, v252, s[32:33]')
    a('s_waitcnt lgkmcnt(0)')
    a.srd(8, 54, team.OOB)
    a.srd(44, 52, 256)
    a.srd(60, 72, WBYTES)
    a.srd(16, 74, WBYTES)
    a.srd(36, 68, WBYTES)
    a.srd(56, 70, WBYTES)
    a.srd(20, 64, XBYTES)
    a.srd(24, 76, 896)
    a.srd(40, 66, 7168)
    fold.tl(a, 0)
    TX = TEAMX
    for x in (dev or '').split('+'):
        if x.startswith('tm'): TX = int(x[2:])
    a('s_sub_u32 s13, s2, %d', TX)
    a('s_and_b32 s13, s13, 7')
    a('s_lshr_b32 s53, s2, 3')
    a('s_mov_b32 s12, 0')
    a('v_mov_b32 v18, 0')
    a('s_cmp_ge_u32 s13, 2')
    a('s_cbranch_scc1 plain')
    a('s_getreg_b32 s12, hwreg(HW_REG_XCC_ID)')
    if dev and 'inv' in dev.split('+'): a('s_mov_b32 s12, %d', 1 if 'inv1' in dev else 0)
    a('s_and_b32 s12, s12, 1')
    l = a.new('cl')
    a('s_cmp_eq_u32 s3, 0')
    a('s_cbranch_scc0 %s', l)
    a('s_lshl_b32 s31, 1, s53')
    a('s_lshl_b32 s32, s12, 2')
    a('v_mov_b32 v18, s31')
    a('s_mov_b64 exec, 1')
    a('buffer_atomic_or v18, off, s[44:47], s32 offset:240 sc0')
    a('s_mov_b64 exec, -1')
    a.label(l)
    a('s_cmp_eq_u32 s12, 1')
    a('s_mov_b32 s12, 1')
    a('s_cbranch_scc0 dofold')
    a('s_waitcnt vmcnt(0)')
    fold.claim_share(a)
    a('s_barrier')
    fold.claim_read(a)
    a('s_cbranch_scc0 die0')
    a('s_mov_b32 s12, 0')
    a('s_branch dofold')
    a.label('plain')
    a('s_sub_u32 s31, s13, 1')
    a('s_lshl_b32 s31, s31, 5')
    a('s_add_u32 s53, s53, s31')
    a.label('dofold')
    fold.gen_fold(a)
    a('s_cmp_eq_u32 s5, 1')
    a('s_cselect_b32 s31, 192, 0')
    for x in (dev or '').split('+'):
        if x.startswith('rs'): a('s_mov_b32 s31, %d', 224 - int(x[2:]))
    a('s_add_u32 s30, s53, s31')
    a('s_cmp_ge_u32 s30, 224')
    a('s_cselect_b32 s31, 224, 0')
    a('s_sub_u32 s30, s30, s31')
    a('s_cmp_ge_u32 s30, %d', 56 + 16 * workers.NSET_X + 28 + 7 * workers.NSET_O)
    a('s_cbranch_scc1 quit')
    for bit, n, lab in ((2, 56, 'role_d'), (4, 16 * workers.NSET_X, 'role_xs'), (8, 28, 'role_f1'), (16, 7 * workers.NSET_O, 'role_fin')):
        a('s_cmp_lt_u32 s30, %d', n)
        a('s_cbranch_scc1 %s', lab if mask & bit else 'quit')
        a('s_sub_u32 s30, s30, %d', n)
        if lab == 'role_d':
            fold.wait_started(a)
    a.label('quit')
    a('s_endpgm')
    a.label('die0')
    l = a.new('nj')
    a('s_cmp_eq_u32 s53, 31')
    a('s_cbranch_scc0 %s', l)
    fold.janitor(a)
    a.label(l)
    fold.misc_loads(a)
    a('s_getreg_b32 s31, hwreg(HW_REG_XCC_ID)')
    a('s_and_b32 s31, s31, 15')
    a('s_add_u32 s31, s31, 1')
    a('v_mov_b32 v3, s31')
    a('s_lshl_b32 s32, s53, 2')
    a('s_cmp_eq_u32 s3, 0')
    a('s_cselect_b32 s32, s32, 256')
    a('buffer_store_dword v3, off, s[44:47], s32 sc1')
    fold.unit_fill(a)
    a('s_waitcnt vmcnt(0)')
    fold.misc_rest(a)
    fold.wait_janitor(a)
    a('s_add_u32 s34, s53, 224')
    fold.set_flag(a, FLG_M, 's34')
    a('s_mov_b32 s30, s53')
    team.gen_team(a, dev)
    workers.gen_d(a, vtail=bool(mask & 16))
    workers.gen_xs(a)
    workers.gen_f1(a)
    workers.gen_fin(a)
    a.label('codeend')
    s = HEADER
    if aslist: s += '; @launch kernel=%s grid=(256,1,1) block=(256,1,1) lds=%d\n' % (nm, MAIN_LDS)
    else: s += '; @launch grid=(256,1,1) block=(256,1,1) lds=%d\n' % MAIN_LDS
    s += DOC
    s += '.amdgcn_target "amdgcn-amd-amdhsa--gfx950"\n.text\n' + a.text()
    s += '.section .rodata,"a"\n' + kd(nm, 512, 256, 100)
    return s

if __name__ == '__main__':
    out = sys.argv[1]
    dev = sys.argv[3] if len(sys.argv) > 3 else False
    open(out, 'w').write(build(int(sys.argv[2]), dev, aslist='/bench/' in out and 'dbgt' not in (dev or '') and 'amp' not in (dev or '')))
```
